```python
import torch

def _softmax(x, axis=-1):
    return torch.softmax(x, dim=axis)
def _gelu(x):
    return torch.nn.functional.gelu(x, approximate="tanh")
def _silu(x):
    return torch.nn.functional.silu(x)
def _sigmoid(x):
    return torch.sigmoid(x)
def _layernorm(x, axis=-1, eps=1e-5):
    m = x.mean(dim=axis, keepdim=True)
    v = x.var(dim=axis, keepdim=True, unbiased=False)
    return (x - m) / torch.sqrt(v + eps)
def _scatter_add(tgt, idx, src, axis=0):
    return tgt.clone().index_add_(axis, idx, src)
def _segment_sum(src, seg, n):
    out = torch.zeros((n,) + src.shape[1:], dtype=src.dtype)
    return out.index_add_(0, seg, src)
def _pad(x, pw):
    flat = tuple(v for pair in reversed(pw) for v in pair)
    return torch.nn.functional.pad(x, flat)

kernel_name = 'interleave_layers__gqa_block_cached__glu_gated_bilinear__decode'

def setup_inputs():

    _w = (lambda a: (lambda t: t.to(torch.bfloat16) if t.is_floating_point() else t)(torch.as_tensor(a)))
    def _A_setup():
        B, Sq, D = 4, 1, 512
        Hq, Hkv, Sk, Dh = 32, 8, 8192, 128
        assert Hq % Hkv == 0, (Hq, Hkv)
        return {
            "x": _w((lambda *s: torch.randn(*s, dtype=torch.bfloat16) * 0.05)(B, Sq, D)),
            "k_cache": _w((lambda *s: torch.randn(*s, dtype=torch.bfloat16) * 1.6)(B, Hkv, Sk, Dh)),
            "v_cache": _w((lambda *s: torch.randn(*s, dtype=torch.bfloat16) * 0.8)(B, Hkv, Sk, Dh)),
            "wq": _w((lambda *s: torch.randn(*s, dtype=torch.bfloat16) * 1.6)(D, Hq * Dh) * (D ** -0.5)),
            "wo": _w((lambda *s: torch.randn(*s, dtype=torch.bfloat16) * 0.8)(Hq * Dh, D) * ((Hq * Dh) ** -0.5)),
        }
    _A_in = _A_setup()

    def _B_setup():
        B, S, D, F = 4, 1, 512, 1792
        return {
            "x": _w((lambda *s: torch.randn(*s, dtype=torch.bfloat16) * 0.05)(B, S, D)),
            "w_gate": _w((lambda *s: torch.randn(*s, dtype=torch.bfloat16) * 0.4)(D, F) * (D ** -0.5)),
            "w_up": _w((lambda *s: torch.randn(*s, dtype=torch.bfloat16) * 0.4)(D, F) * (D ** -0.5)),
            "w_down": _w((lambda *s: torch.randn(*s, dtype=torch.bfloat16) * 0.4)(F, D) * (F ** -0.5)),
        }
    _B_in = _B_setup()

    return {
        "A_x": _A_in["x"],
        "A_k_cache": _A_in["k_cache"],
        "A_v_cache": _A_in["v_cache"],
        "A_wq": _A_in["wq"],
        "A_wo": _A_in["wo"],
        "B_x": _B_in["x"],
        "B_w_gate": _B_in["w_gate"],
        "B_w_up": _B_in["w_up"],
        "B_w_down": _B_in["w_down"],
    }

def reference(A_x, A_k_cache, A_v_cache, A_wq, A_wo, B_x, B_w_gate, B_w_up, B_w_down):
    def _A_ref(x, k_cache, v_cache, wq, wo):
        B, Sq, D = x.shape
        Hq, Dh = 32, 128
        Hkv = k_cache.shape[1]
        rep = Hq // Hkv
        q = (lambda x, *d: x.permute(*d))((x @ wq).reshape(B, Sq, Hq, Dh), 0, 2, 1, 3)
        k = (lambda x, n, axis: torch.repeat_interleave(x, n, dim=axis))(k_cache, rep, axis=1)
        v = (lambda x, n, axis: torch.repeat_interleave(x, n, dim=axis))(v_cache, rep, axis=1)
        scores = torch.einsum("bhqd,bhkd->bhqk", q, k) * (Dh ** -0.5)
        p = _softmax(scores, axis=-1)
        o = torch.einsum("bhqk,bhkd->bhqd", p, v)
        return (lambda x, *d: x.permute(*d))(o, 0, 2, 1, 3).reshape(B, Sq, Hq * Dh) @ wo

    def _B_ref(x, w_gate, w_up, w_down):
        g = torch.einsum("bsd,df->bsf", x, w_gate)
        u = torch.einsum("bsd,df->bsf", x, w_up)
        h = g * u
        return torch.einsum("bsf,fd->bsd", h, w_down)

    x = A_x
    x = x + _A_ref(_layernorm(x, axis=-1), A_k_cache, A_v_cache, A_wq, A_wo)
    x = x + _B_ref(_layernorm(x, axis=-1), B_w_gate, B_w_up, B_w_down)
    x = x + _A_ref(_layernorm(x, axis=-1), A_k_cache, A_v_cache, A_wq, A_wo)
    x = x + _B_ref(_layernorm(x, axis=-1), B_w_gate, B_w_up, B_w_down)
    return x
```

```python
import re

REG = re.compile(r"^(-?)(?:abs\()?([vas])(?:(\d+)|\[(\d+):(\d+)\])\)?$")
TRANS = ("v_exp_f32", "v_log_f32", "v_rcp_f32", "v_rsq_f32", "v_sqrt_f32", "v_sin_f32", "v_cos_f32")


def regs(tok):
    tok = tok.strip()
    if tok == "vcc":
        return {("s", "vcc")}
    if tok == "exec":
        return {("s", "exec")}
    if tok == "m0":
        return {("s", "m0")}
    m = REG.match(tok)
    if not m:
        return set()
    k = m.group(2)
    if m.group(3) is not None:
        return {(k, int(m.group(3)))}
    return {(k, i) for i in range(int(m.group(4)), int(m.group(5)) + 1)}


class Ins:
    def __init__(self, text):
        self.text = text
        t = text.split(";")[0].strip()
        self.label = t[:-1] if t.endswith(":") else None
        self.op = "" if self.label or t.startswith(".") else t.split()[0]
        self.directive = t.startswith(".")
        rest = t[len(self.op):].strip() if self.op else ""
        parts = [p.strip() for p in rest.split(",")] if rest else []
        mods = ""
        if "quad_perm" in rest:
            i = rest.index("quad_perm")
            mods = rest[i:]
            parts = [p.strip() for p in rest[:i].split(",")]
        ops = []
        for p in parts:
            w = p.split()
            if w:
                ops.append(w[0])
                mods += " " + " ".join(w[1:])
        self.ops, self.mods = ops, mods
        op = self.op
        self.mfma = op.startswith("v_mfma") or op.startswith("v_smfmac")
        self.valu = op.startswith("v_") and not self.mfma
        self.ds = op.startswith("ds_")
        self.vmem = op.startswith("buffer_") or op.startswith("global_")
        self.salu = op.startswith("s_")
        self.dpp = "_dpp" in op or any(k in mods for k in ("quad_perm", "row_", "wave_"))
        self.trans = op.replace("_e32", "").replace("_e64", "") in TRANS
        self.dot = op.startswith("v_dot")
        self.perm = op.startswith("v_permlane")
        self.branch = op.startswith("s_cbranch") or op == "s_branch"
        self.target = ops[0] if self.branch else None
        self.ends = op in ("s_branch", "s_endpgm", "s_setpc_b64")
        self.w, self.r = set(), set()
        self.srcc, self.ab, self.stdata = set(), set(), set()
        R = [regs(o) for o in ops]
        if self.mfma:
            self.w = R[0]
            self.ab = R[1] | R[2]
            if op.startswith("v_smfmac"):
                self.srcc = R[0]
                self.ab |= R[3]
            else:
                self.srcc = R[3]
            self.r = self.ab | self.srcc
            self.passes = 8 if "32x32" in op else 4
            if op.startswith("v_smfmac"):
                self.passes = 8
        elif self.valu:
            self.w = set(R[0])
            self.r = set().union(*R[1:]) if len(R) > 1 else set()
            if self.perm:
                self.w = R[0] | R[1]
                self.r = R[0] | R[1]
            if op.startswith(("v_fmac", "v_dot2c", "v_writelane")) or self.dpp:
                self.r |= R[0]
            if op.startswith("v_cndmask") and len(ops) == 3:
                self.r |= {("s", "vcc")}
        elif self.ds:
            if op.startswith("ds_read") or "bpermute" in op or "swizzle" in op:
                self.w = R[0]
                self.r = set().union(*R[1:])
            else:
                self.r = set().union(*R)
        elif self.vmem:
            lds = " lds" in (" " + mods) or "_lds_" in op
            self.ldsdma = lds
            if lds:
                self.r = set().union(*R) | {("s", "m0")}
            elif "load" in op:
                self.w = R[0]
                self.r = set().union(*R[1:])
            elif op.startswith("buffer_"):
                if R:
                    self.r = set().union(*R)
                    if "x4" in op or "x3" in op:
                        self.stdata = R[0]
                    if "atomic" in op and "sc0" in mods:
                        self.w = R[0]
            else:
                self.r = set().union(*R) if R else set()
        elif self.salu and ops and not self.branch and not op.startswith(("s_cmp", "s_waitcnt", "s_nop", "s_sleep", "s_setprio", "s_bitcmp")):
            self.w = set(R[0])
            self.r = set().union(*R[1:]) if len(R) > 1 else set()
            if "saveexec" in op:
                self.w |= {("s", "exec")}
        elif self.salu:
            self.r = set().union(*R) if R else set()

    def states(self):
        if self.label or self.directive or not self.op:
            return 0
        if self.op == "s_nop":
            return int(self.ops[0], 0) + 1
        return 1


def vec(s):
    return {x for x in s if x[0] in "va"}


def sca(s):
    return {x for x in s if x[0] == "s"}


def need(p, c):
    n = 0
    if p.valu:
        pw = vec(p.w)
        if c.mfma and pw & c.r:
            n = max(n, 3 if p.dot else 2)
        if c.valu and c.dpp and pw & c.r:
            n = max(n, 2)
        if c.perm and pw & c.r:
            n = max(n, 2)
        if c.op.startswith(("v_readlane", "v_readfirstlane")) and pw & c.r:
            n = max(n, 1)
        if p.trans and c.valu and not c.trans and pw & c.r:
            n = max(n, 1)
        if p.trans and (c.ds or c.vmem) and pw & c.r:
            n = max(n, 1)
        if p.dot and pw & (c.r | c.w):
            same_chain = c.op == p.op and len(c.ops) == 4 and not (pw & (regs(c.ops[1]) | regs(c.ops[2])))
            if not same_chain:
                n = max(n, 3)
        if "sdwa" in p.op and c.valu and pw & (c.r | c.w):
            n = max(n, 1)
        ps = sca(p.w)
        if ps & c.r:
            if c.vmem:
                n = max(n, 5)
            elif c.op.startswith(("v_readlane", "v_writelane")):
                n = max(n, 4)
            elif c.valu:
                n = max(n, 2)
            elif c.salu:
                n = max(n, 1)
    if p.mfma:
        t = {4: (6, 8, 3), 8: (10, 12, 7)}[p.passes]
        if c.mfma:
            if p.w & c.ab:
                n = max(n, t[1])
            if p.w & c.srcc and (p.w != c.srcc or p.op != c.op):
                n = max(n, t[0])
            if p.w & c.w and not (p.w & c.srcc):
                n = max(n, t[0])
        elif (c.valu or c.ds or c.vmem) and p.w & (c.r | c.w):
            n = max(n, t[1])
        if c.valu and p.srcc & c.w:
            n = max(n, t[2])
    if p.vmem and p.stdata and p.stdata & c.w:
        n = max(n, 2 if c.valu or c.mfma else 1)
    if p.ds and p.op.startswith("ds_write") and ("b128" in p.op or "b96" in p.op) and c.valu and vec(p.r) & c.w:
        n = max(n, 2)
    if p.salu and ("s", "m0") in p.w and ("s", "m0") in c.r and (c.vmem or c.ds or c.valu):
        n = max(n, 1)
    return n


class Asm:
    def __init__(self):
        self.l = []
        self.vm = 0
        self.nlab = 0

    def __call__(self, *lines):
        for s in lines:
            for t in s.split("\n"):
                t = t.strip()
                if not t:
                    continue
                i = Ins(t)
                self.l.append(i)
                if i.vmem and i.op not in ("buffer_inv", "buffer_wbl2"):
                    self.vm += 1
        return self.vm

    def mark(self):
        return self.vm

    def wait_vm(self, token, lgkm=None):
        n = min(self.vm - token, 63)
        self("s_waitcnt vmcnt(%d)%s" % (n, "" if lgkm is None else " lgkmcnt(%d)" % lgkm))

    def uncounted(self, token):
        self.vm = token

    def lab(self, name):
        self.nlab += 1
        return "L_%s_%d" % (name, self.nlab)

    def pad(self):
        changed = True
        total = 0
        while changed:
            changed = False
            L = self.l
            src = {}
            for k, i in enumerate(L):
                if i.branch:
                    src.setdefault(i.target, []).append(k)
            for k, c in enumerate(L):
                if not c.op or c.op in ("s_nop", "s_waitcnt", "s_barrier"):
                    continue
                worst = 0
                stack = [(k - 1, 0, True)]
                seen = set()
                while stack:
                    j, dist, fall = stack.pop()
                    while j >= 0 and dist < 13:
                        p = L[j]
                        if (j, dist) in seen:
                            break
                        seen.add((j, dist))
                        if p.label:
                            for b in src.get(p.label, []):
                                stack.append((b, dist, False))
                        elif p.ends and fall:
                            break
                        elif p.op:
                            worst = max(worst, need(p, c) - dist)
                            dist += p.states()
                        fall = True
                        j -= 1
                if worst > 0:
                    L.insert(k, Ins("s_nop %d" % (worst - 1)))
                    total += worst
                    changed = True
                    break
        return total

    def text(self):
        return "\n".join((i.text if i.label else "    " + i.text) for i in self.l) + "\n"
```

```python
import sys
from asmlib import Asm

KNAME = "interleave_layers__gqa_block_cached__glu_gated_bilinear__decode_kernel"

LS = 1 << 20
OFF_A, OFF_ML, OFF_XB, OFF_C, OFF_XD, OFF_E = 0, 32768, 36864, 40960, 45056, 49152
OFF_B, OFF_D = 512 << 10, 768 << 10
WS_SIZE = 3 * LS
STAMP_OFF = 8 << 20
OOB = 0x7FFF0000

RING = 24576
L_WQ = 4 * RING
L_WO = L_WQ + 16384
L_WG = L_WO + 16384
L_WU = L_WG + 8192 + 128
L_WD = L_WU + 8192
L_SCR = L_WD + 7168
L_STAT = L_SCR + 8192
assert L_STAT + 64 <= 163840

sK, sV, sWS, sWF, sWL, sOUT, sDBG, sXI, sT = 28, 32, 36, 40, 44, 48, 52, 56, 96
sw, sg, sj, sb, ss, su, sring, srot, stmp, slayer = 60, 61, 62, 63, 64, 65, 66, 67, 68, 69
(sMLst, sMLld, sAst, sAld, sBst, sBld, sBld2, sXBst, sXBld, sCst, sCld, sDst, sDld, sXDst, sEst, sEld) = range(70, 86)
sXs = 86
sX0 = 87
sM1, sM2, sM3 = 88, 90, 92
sspin, scmp = 94, 95
sclr = 3
SPIN_LIMIT = 1 << 18

vL, vA16, vTRV, vRES, vC = 0, 1, 2, 3, 4
vQ, vS, vT, vP, vPV, vAI, vO, vVF, vVR = 8, 24, 40, 40, 48, 56, 64, 8, 96
vW, vX, vD, vCR = 8, 56, 72, 92
vKS, vKR = 240, 244
ORDER = [0, 1, 2, 5, 3, 6, 4, 7]
SLOT = {5: 2, 6: 4, 7: 0}
SCALE = 128 ** -0.5 * 1.4426950408889634


def f32(x):
    import struct
    return "0x%08x" % struct.unpack("<I", struct.pack("<f", x))[0]


def q(r, n=4, k="v"):
    return "%s[%d:%d]" % (k, r, r + n - 1)


def srd(r):
    return "s[%d:%d]" % (r, r + 3)


class Gen:
    def __init__(self, depth=6, burst=12, rotg=5, stamps=False, force_slow=False, warm_cross=False):
        self.a = Asm()
        self.depth, self.burst, self.rotg = depth, burst, rotg
        self.stamps, self.force_slow, self.warm_cross = stamps, force_slow, warm_cross
        self.nst = 0
        self.stamp_names = []

    def stamp(self, name, per_layer=False):
        if not self.stamps:
            return
        a = self.a
        k = self.nst
        self.nst += 2 if per_layer else 1
        assert self.nst <= 24
        a("s_memrealtime s[0:1]", "s_waitcnt lgkmcnt(0)")
        if per_layer:
            self.stamp_names += [name + "/1", name + "/2"]
            a("s_cmp_eq_u32 s%d, 1" % slayer,
              "s_cselect_b32 s%d, s0, s%d" % (4 + k, 4 + k),
              "s_cselect_b32 s%d, s%d, s0" % (5 + k, 5 + k))
        else:
            self.stamp_names.append(name)
            a("s_mov_b32 s%d, s0" % (4 + k))

    def mk_srd(self, d, p, size):
        self.a("s_mov_b32 s%d, s%d" % (d, p), "s_mov_b32 s%d, s%d" % (d + 1, p + 1),
               "s_mov_b32 s%d, %s" % (d + 2, size), "s_mov_b32 s%d, 0x20000" % (d + 3))

    def oob_unless(self, v, cond):
        self.a(cond, "v_mov_b32 v%d, 0x%x" % (self.tmp, OOB), "v_cndmask_b32 v%d, v%d, v%d, vcc" % (v, self.tmp, v))

    def st_intra(self, op, data, voff, soff):
        self.a("%s %s, v%d, %s, s%d offen" % (op, data, voff, srd(sWF), soff),
               "%s %s, v%d, %s, s%d offen sc1" % (op, data, voff, srd(sWL), soff))

    def poll(self, loads, regs, acc, name):
        a = self.a
        L = a.lab(name)
        a(L + ":")
        a(*loads)
        a("s_add_u32 s%d, s%d, 1" % (sspin, sspin), "s_cmp_lt_u32 s%d, 0x%x" % (sspin, SPIN_LIMIT),
          "s_cselect_b32 s%d, -2, -1" % scmp)
        self.check(regs, acc, len(loads))
        a("s_cbranch_vccnz " + L)

    def check(self, regs, acc, n):
        a = self.a
        have = None
        for i, rr in enumerate(regs):
            if n:
                a("s_waitcnt vmcnt(%d)" % (n - 1 - i))
            rr = list(rr)
            while rr:
                if have is None:
                    if len(rr) >= 3:
                        a("v_max3_u32 v%d, v%d, v%d, v%d" % (acc, rr[0], rr[1], rr[2])); rr = rr[3:]; have = acc
                    elif len(rr) == 2:
                        a("v_max_u32 v%d, v%d, v%d" % (acc, rr[0], rr[1])); rr = []; have = acc
                    else:
                        have = rr[0]; rr = []
                elif len(rr) >= 2:
                    a("v_max3_u32 v%d, v%d, v%d, v%d" % (acc, have, rr[0], rr[1])); rr = rr[2:]; have = acc
                else:
                    a("v_max_u32 v%d, v%d, v%d" % (acc, have, rr[0])); rr = []; have = acc
        a("v_cmp_lt_u32 vcc, s%d, v%d" % (scmp, have))

    def mfma(self, d, A, B, c):
        self.a("v_mfma_f32_16x16x32_bf16 %s, %s, %s, %s" % (q(d), A, B, q(d) if c else "0"))

    def xrows(self, op, v, t):
        for sw_ in ("v_permlane16_swap_b32", "v_permlane32_swap_b32"):
            self.a("v_mov_b32 v%d, v%d" % (t, v), "%s v%d, v%d" % (sw_, t, v), "%s v%d, v%d, v%d" % (op, v, v, t))

    def dpp(self, op, d, s0, s1, ctl):
        self.a("%s_dpp v%d, v%d, v%d %s row_mask:0xf bank_mask:0xf" % (op, d, s0, s1, ctl))

    def pack_pairs(self, d, v):
        self.a("v_mov_b32_dpp v%d, v%d quad_perm:[1,1,3,3] row_mask:0xf bank_mask:0xf" % (d, v),
               "v_cvt_pk_bf16_f32 v%d, v%d, v%d" % (d, v, d))

    def tile_issue(self, T, between=None):
        a = self.a
        a("s_and_b32 s%d, s%d, 15" % (srot, srot), "s_lshl_b32 s%d, s%d, 17" % (stmp, srot),
          "s_add_u32 s%d, s%d, s%d" % (stmp, stmp, su), "s_add_u32 s%d, s%d, 1" % (srot, srot),
          "s_add_u32 m0, s%d, %d" % (sring, (T % 6) * 4096))
        if T >= 6:
            a("s_waitcnt lgkmcnt(0)")
        for jj in range(4):
            va = vKS + jj if T < 16 else 5 + (jj & 1)
            a("buffer_load_dwordx4 v%d, %s, s%d offen offset:%d nt lds" % (va, srd(sK if T < 16 else sV), stmp, jj * 1024))
            if between:
                between(jj)
            if 4 * T + jj < 128 - self.burst and T > 0:
                a("s_waitcnt vmcnt(%d)" % (self.depth - 1))
        self.tok[T] = a.mark() if not between else self.last_tile_tok

    def tile_consume(self, T):
        a = self.a
        a.wait_vm(self.tok[T])
        if T < 16:
            for st in range(4):
                a("ds_read_b128 %s, v%d offset:%d" % (q(16 * T + 4 * st, 4, "a"), vKR + st, (T % 6) * 4096))
        else:
            p, half = (T - 16) >> 1, T & 1
            base = vVR + 32 * p if p < 5 else vVF
            for i in range(8):
                a("ds_read_b64_tr_b16 %s, v%d offset:%d" % (q(base + 4 * i + 2 * half, 2), vAI + i, (T % 6) * 4096))

    def mk_ai(self):
        for i in range(8):
            self.a("v_xor_b32 v%d, %d, v%d" % (vAI + i, i << 5, vTRV))

    def qk_chunks(self):
        seq = [(G, half, t) for G in range(2) for half in range(2) for t in range(4)]
        chunks = []
        for n in range(18):
            def chunk(n=n):
                sel = []
                if n >= 2:
                    G, half, t = seq[n - 2]
                    if t:
                        s = vS + 8 * G + 4 * half
                        sel = ["v_cndmask_b32 v%d, v%d, v%d, s[%d:%d]" % (s + r, s + r, vT + 4 * (t - 1) + r, sM1 + 2 * (t - 1), sM1 + 2 * t - 1)
                               for r in range(4)]
                if n < 16:
                    G, half, t = seq[n]
                    tau = 2 * ORDER[4 * G + t] + half
                    d = vS + 8 * G + 4 * half if t == 0 else vT + 4 * (t - 1)
                    for st in range(4):
                        self.mfma(d, q(16 * tau + 4 * st, 4, "a"), q(vQ + 4 * st), st > 0)
                        if sel:
                            self.a(sel.pop(0))
                self.a(*sel)
            chunks.append(chunk)
        return chunks

    def softmax(self, stat):
        a = self.a
        m, t, c, mu = 8, 9, 10, 11
        a("v_mov_b32 v%d, 0x%x" % (t, L_STAT + stat), "v_lshl_add_u32 v%d, s%d, 2, v%d" % (t, sb, t),
          "ds_read_b32 v%d, v%d" % (c, t))
        a("v_max3_f32 v%d, v%d, v%d, v%d" % (m, vS, vS + 1, vS + 2))
        for k in range(3, 15, 2):
            a("v_max3_f32 v%d, v%d, v%d, v%d" % (m, m, vS + k, vS + k + 1))
        a("v_max_f32 v%d, v%d, v%d" % (m, m, vS + 15))
        self.dpp("v_max_f32", m, m, m, "quad_perm:[1,0,3,2]")
        self.dpp("v_max_f32", m, m, m, "quad_perm:[2,3,0,1]")
        self.xrows("v_max_f32", m, t)
        a("s_waitcnt lgkmcnt(0)", "v_mul_f32 v%d, %s, v%d" % (c, f32(SCALE), c), "v_mul_f32 v%d, v%d, v%d" % (mu, c, m))
        for k in range(16):
            a("v_fma_f32 v%d, v%d, v%d, -v%d" % (vS + k, vS + k, c, mu))
        for k in range(16):
            a("v_exp_f32 v%d, v%d" % (vS + k, vS + k))
        for r in range(4):
            a("v_mov_b32 v%d, 0x3f803f80" % (12 + r))
        for k in range(8):
            a("v_cvt_pk_bf16_f32 v%d, v%d, v%d" % (vP + k, vS + 2 * k, vS + 2 * k + 1))
        self.mfma(16, q(vP), q(12), False)
        self.mfma(16, q(vP + 4), q(12), True)
        a("s_mov_b32 vcc_lo, 0x00f0000f", "s_mov_b32 vcc_hi, 0xf0000f00", "v_mov_b32 v%d, 0xff800000" % t,
          "v_cndmask_b32 v7, v%d, v%d, vcc" % (t, mu))
        self.dpp("v_max_f32", 7, 7, 7, "row_ror:4")
        self.dpp("v_max_f32", 7, 7, 7, "row_ror:8")
        self.tmp = t
        a("v_lshlrev_b32 v20, 4, v%d" % vL, "v_and_b32 v21, 15, v%d" % vL)
        self.oob_unless(20, "v_cmp_eq_u32 vcc, 0, v21")
        a("v_add_f32 v16, v16, v17", "v_add_f32 v18, v18, v19", "v_add_f32 v23, v16, v18", "v_mov_b32 v22, v7")
        self.st_intra("buffer_store_dwordx2", "v[22:23]", 20, sMLst)

    def ml_load(self, r):
        return "buffer_load_dwordx4 %s, v%d, %s, s%d offen sc1" % (q(r), vA16, srd(sWS), sMLld)

    def ml_finish(self, r, M, z):
        a = self.a
        a("v_max_f32 v%d, v%d, v%d" % (M, r, r + 2))
        for k in (1, 2, 4, 8):
            self.dpp("v_max_f32", M, M, M, "row_ror:%d" % k)
        a("v_sub_f32 v%d, v%d, v%d" % (r, r, M), "v_sub_f32 v%d, v%d, v%d" % (r + 2, r + 2, M), "v_sub_f32 v7, v7, v%d" % M,
          "v_exp_f32 v%d, v%d" % (r, r), "v_exp_f32 v%d, v%d" % (r + 2, r + 2), "v_exp_f32 v7, v7",
          "v_mul_f32 v%d, v%d, v%d" % (z, r, r + 1), "v_fmac_f32 v%d, v%d, v%d" % (z, r + 2, r + 3))
        for k in (1, 2, 4, 8):
            self.dpp("v_add_f32", z, z, z, "row_ror:%d" % k)
        a("v_rcp_f32 v%d, v%d" % (z, z), "v_mul_f32 v7, v7, v%d" % z)

    def pvar(self, p, buf):
        idx = ORDER.index(p)
        G, t = idx >> 2, idx & 3
        if t == 0:
            return [], vP + 4 * G
        d = vPV + 4 * buf
        return ["v_mov_b32_dpp v%d, v%d quad_perm:[%d,%d,%d,%d] row_mask:0xf bank_mask:0xf" % (d + r, vP + 4 * G + r, t, t, t, t)
                for r in range(4)], d

    def pv_group(self, p, A, first, fill=(), lgkm=None):
        fill = list(fill)
        base = vVR + 32 * p if p < 5 else vVF
        for i in range(8):
            if lgkm is not None:
                self.a("s_waitcnt lgkmcnt(%d)" % lgkm(i))
            self.mfma(vO + 4 * i, q(A), q(base + 4 * i), not first)
            for _ in range(2):
                if fill:
                    self.a(fill.pop(0))
        self.a(*fill)

    def lds_group_reads(self, p):
        return ["ds_read_b64_tr_b16 %s, v%d offset:%d" % (q(vVF + 4 * i + 2 * h, 2), vAI + i, (SLOT[p] + h) * 4096)
                for i in range(8) for h in range(2)]

    def w_reads(self, va, tiles, dst, tstride):
        return ["ds_read_b64_tr_b16 %s, v%d offset:%d" % (q(dst + 4 * k + 2 * h, 2), va, t * tstride + h * tstride // 2)
                for k, t in enumerate(tiles) for h in range(2)]

    def w_addr(self, va, kind):
        a = self.a
        if kind == "g":
            a("v_lshrrev_b32 v%d, 2, v%d" % (va, vL), "v_lshlrev_b32 v%d, 4, v%d" % (va, va),
              "v_and_b32 v7, 1, v%d" % vL, "v_lshl_add_u32 v%d, v7, 3, v%d" % (va, va),
              "v_bfe_u32 v7, v%d, 1, 1" % vL, "v_mul_u32_u24 v7, %d, v7" % (L_WU - L_WG),
              "v_add_u32 v%d, v%d, v7" % (va, va), "v_add_u32 v%d, 0x%x, v%d" % (va, L_WG, va))
        else:
            a("v_lshlrev_b32 v%d, 3, v%d" % (va, vL), "v_add_u32 v%d, 0x%x, v%d" % (va, {"q": L_WQ, "d": L_WD}[kind], va))

    def colsum(self, kind):
        a = self.a
        ts = 512 if kind == "g" else 1024
        self.w_addr(5, kind)
        a(*self.w_reads(5, range(16), vW, ts))
        for r in range(4):
            a("v_mov_b32 v%d, 0x3f803f80" % (vCR + r))
        a("s_waitcnt lgkmcnt(0)")
        for t in range(16):
            self.mfma(vD, q(vCR), q(vW + 4 * t), t > 0)
        a("v_mul_f32 v%d, %s, v%d" % (vC, f32(-1.0 / 512), vD), "v_cvt_pk_bf16_f32 v%d, v%d, v%d" % (vC, vC, vC))

    def gemv_pre(self, kind):
        ts = 512 if kind == "g" else 1024
        self.w_addr(5, kind)
        self.a(*self.w_reads(5, range(12), vW, ts))
        for r in range(4):
            self.a("v_mov_b32 v%d, v%d" % (vCR + r, vC))

    def gemv(self, kind, loads):
        a = self.a
        ts = 512 if kind == "g" else 1024
        a("s_waitcnt lgkmcnt(0)")
        self.poll(loads, [range(vX + 4 * s, vX + 4 * s + 4) for s in range(4)], 7, "poll" + kind)
        late = self.w_reads(5, range(12, 16), vW, ts)
        for st in range(4):
            if st == 3:
                a("s_waitcnt lgkmcnt(0)")
            self.mfma(vD + 16, q(vX + 4 * st), q(vCR), st > 0)
            for kb in range(4):
                self.mfma(vD + 4 * kb, q(vX + 4 * st), q(vW + 4 * ((4 * st + kb) % 12)), st > 0)
                if st == 1:
                    a(late.pop(0), late.pop(0))
        a("v_add_f32 v%d, v%d, v%d" % (vD + 16, vD + 16, vD + 17), "v_add_f32 v%d, v%d, v%d" % (vD + 18, vD + 18, vD + 19),
          "v_add_f32 v7, v%d, v%d" % (vD + 16, vD + 18))
        for kb in range(4):
            a("v_add_f32 v7, v7, v%d" % (vD + 5 * kb))

    def stats(self, stat):
        a = self.a
        s1, s2, t, one = vD, vD + 1, vD + 2, vD + 3
        a("v_mov_b32 v%d, 0x3f803f80" % one, "v_mov_b32 v%d, 0" % s1, "v_mov_b32 v%d, 0" % s2)
        for k in range(16):
            a("v_dot2_f32_bf16 v%d, v%d, v%d, v%d" % (s1, vX + k, one, s1),
              "v_dot2_f32_bf16 v%d, v%d, v%d, v%d" % (s2, vX + k, vX + k, s2))
        for ctl in ("quad_perm:[1,0,3,2]", "quad_perm:[2,3,0,1]"):
            self.dpp("v_add_f32", s1, s1, s1, ctl)
            self.dpp("v_add_f32", s2, s2, s2, ctl)
        self.xrows("v_add_f32", s1, t)
        self.xrows("v_add_f32", s2, t)
        a("v_mul_f32 v%d, %s, v%d" % (s1, f32(1.0 / 512), s1), "v_mul_f32 v%d, %s, v%d" % (s2, f32(1.0 / 512), s2),
          "v_fma_f32 v%d, -v%d, v%d, v%d" % (s2, s1, s1, s2), "v_max_f32 v%d, 0, v%d" % (s2, s2),
          "v_add_f32 v%d, %s, v%d" % (s2, f32(1e-5), s2), "v_rsq_f32 v%d, v%d" % (s2, s2),
          "v_and_b32 v%d, 12, v%d" % (t, vL), "v_add_u32 v%d, %s, v%d" % (t, stat, t),
          "ds_write_b32 v%d, v%d" % (t, s2), "s_waitcnt lgkmcnt(0)")

    def x_store_off(self, v):
        a = self.a
        self.tmp = 7
        a("v_lshrrev_b32 v%d, 4, v%d" % (v, vL), "v_lshlrev_b32 v%d, 3, v%d" % (v, v), "v_and_b32 v7, 3, v%d" % vL,
          "v_lshl_add_u32 v%d, v7, 1, v%d" % (v, v), "v_and_b32 v7, 13, v%d" % vL)
        self.oob_unless(v, "v_cmp_eq_u32 vcc, 0, v7")

    def part_store_off(self, v, t):
        self.a("v_lshrrev_b32 v%d, 4, v%d" % (v, vL), "v_lshlrev_b32 v%d, 6, v%d" % (v, v),
               "v_and_b32 v%d, 3, v%d" % (t, vL), "v_lshl_add_u32 v%d, v%d, 4, v%d" % (v, t, v),
               "v_and_b32 v%d, 12, v%d" % (t, vL), "v_add_u32 v%d, v%d, v%d" % (v, v, t))

    def next_region(self):
        for r in (sWS, sWF, sWL):
            self.a("s_add_u32 s%d, s%d, 0x%x" % (r, r, LS), "s_addc_u32 s%d, s%d, 0" % (r + 1, r + 1))

    def q_loads(self, va):
        return ["buffer_load_dwordx4 %s, v%d, %s, s%d offen offset:%d sc1" % (q(vQ + 4 * st), va, srd(sWS), sEld, st * 256)
                for st in range(4)]

    def prologue(self):
        a = self.a
        a("s_cmp_ge_u32 s2, 256", "s_cbranch_scc1 L_end",
          "s_load_dwordx16 s[4:19], s[0:1], 0", "s_load_dwordx8 s[20:27], s[0:1], 64",
          "v_lshrrev_b32 v1, 6, v0", "v_and_b32 v0, 63, v0", "v_readfirstlane_b32 s%d, v1" % sw,
          "s_and_b32 s%d, s2, 7" % sg, "s_lshr_b32 s%d, s2, 3" % sj, "s_lshr_b32 s%d, s2, 6" % sb,
          "s_and_b32 s%d, s%d, 7" % (ss, sj), "s_lshl_b32 s%d, s%d, 2" % (su, ss), "s_add_u32 s%d, s%d, s%d" % (su, su, sw),
          "s_lshl_b32 s%d, s%d, 3" % (sMLst, su), "s_lshl_b32 s%d, s%d, 12" % (su, su),
          "s_lshl_b32 s%d, s%d, 3" % (stmp, sb), "s_add_u32 s%d, s%d, s%d" % (stmp, stmp, sg),
          "s_mul_i32 s%d, s%d, %d" % (srot, stmp, self.rotg), "s_lshl_b32 s%d, s%d, 21" % (stmp, stmp),
          "s_mul_i32 s%d, s%d, %d" % (sring, sw, RING))
        a("v_lshrrev_b32 v5, 4, v0", "v_and_b32 v6, 15, v0", "v_xor_b32 v7, v5, v6", "v_lshlrev_b32 v7, 4, v7",
          "v_lshl_add_u32 v%d, v5, 8, v7" % vKS)
        for jj in range(1, 4):
            a("v_xor_b32 v%d, %d, v%d" % (vKS + jj, jj << 6, vKS))
        a("v_lshl_add_u32 v%d, v6, 8, v7" % vKR, "v_add_u32 v%d, s%d, v%d" % (vKR, sring, vKR))
        for st in range(1, 4):
            a("v_xor_b32 v%d, %d, v%d" % (vKR + st, st << 6, vKR))
        a("v_lshlrev_b32 v%d, 4, v0" % vA16)
        a("s_waitcnt lgkmcnt(0)")
        for d, p in ((sK, 6), (sV, 8)):
            a("s_add_u32 s%d, s%d, s%d" % (d, p, stmp), "s_addc_u32 s%d, s%d, 0" % (d + 1, p + 1),
              "s_mov_b32 s%d, 0x200000" % (d + 2), "s_mov_b32 s%d, 0x20000" % (d + 3))
        self.tok = {}
        self.tile_issue(0)
        self.mk_srd(sWS, 26, "0x%x" % WS_SIZE)
        self.mk_srd(sWF, 26, "0")
        self.mk_srd(sWL, 26, "0x%x" % WS_SIZE)
        self.mk_srd(sOUT, 22, "4096")
        self.mk_srd(sDBG, 24, "256")
        self.mk_srd(sXI, 4, "4096")

        tk = a.mark()
        a("v_lshrrev_b32 v8, 5, v0", "v_bfe_u32 v9, v0, 3, 2", "v_bfe_u32 v10, v0, 1, 2", "v_and_b32 v11, 1, v0",
          "v_lshl_add_u32 v8, v8, 2, v10", "v_lshlrev_b32 v11, 4, v11",
          "v_lshl_add_u32 v12, v9, 5, v8", "v_lshl_add_u32 v12, v12, 13, v11",
          "v_lshl_add_u32 v13, v9, 3, v8", "v_lshl_add_u32 v13, v13, 10, v11")
        a("s_lshl_b32 s%d, s%d, 5" % (sclr, sj))
        a("s_cmp_eq_u32 s%d, 0" % sw, "s_cbranch_scc1 L_wo", "s_cmp_eq_u32 s%d, 2" % sw, "s_cbranch_scc1 L_wgu")
        self.mk_srd(sT, 10, "0x400000")
        a("s_lshl_b32 s100, s%d, 10" % sg, "s_add_u32 s100, s100, s%d" % sclr,
          "s_cmp_eq_u32 s%d, 1" % sw, "s_cbranch_scc1 L_wq1")

        def wq(tiles):
            for t in tiles:
                a("s_add_u32 s%d, s100, 0x%x" % (stmp, (128 * (t >> 2) + 8 * (t & 3)) * 8192), "s_mov_b32 m0, 0x%x" % (L_WQ + t * 1024),
                  "buffer_load_dwordx4 v12, %s, s%d offen nt lds" % (srd(sT), stmp))
        wq(range(4, 16))
        a("s_branch L_wo", "L_wq1:")
        wq(range(4))
        self.mk_srd(sT, 20, "0x%x" % (1792 * 1024))
        a("s_mul_i32 s100, s%d, %d" % (sg, 224 * 1024), "s_add_u32 s100, s100, s%d" % sclr)
        for t in range(7):
            a("s_add_u32 s%d, s100, 0x%x" % (stmp, 32 * t * 1024), "s_mov_b32 m0, 0x%x" % (L_WD + t * 1024),
              "buffer_load_dwordx4 v13, %s, s%d offen nt lds" % (srd(sT), stmp))
        a("s_branch L_wo", "L_wgu:")
        a("v_lshrrev_b32 v8, 5, v0", "v_bfe_u32 v9, v0, 4, 1", "v_bfe_u32 v10, v0, 2, 2", "v_and_b32 v11, 3, v0",
          "v_lshl_add_u32 v8, v8, 3, v11", "v_lshl_add_u32 v8, v9, 2, v8", "v_lshl_add_u32 v8, v10, 5, v8",
          "v_mul_u32_u24 v12, 3584, v8",
          "s_mul_i32 s100, s%d, 448" % sg, "s_lshl_b32 s101, s%d, 4" % sj, "s_add_u32 s100, s100, s101",
          "s_cmp_lt_u32 s%d, 28" % sj, "s_cselect_b32 s101, 0x%x, 0" % (512 * 3584))
        for p, base in ((16, L_WG), (18, L_WU)):
            self.mk_srd(sT, p, "s101")
            for t in range(8):
                a("s_add_u32 s%d, s100, 0x%x" % (stmp, (128 * (t >> 1) + 16 * (t & 1)) * 3584), "s_mov_b32 m0, 0x%x" % (base + t * 1024),
                  "buffer_load_dwordx4 v12, %s, s%d offen nt lds" % (srd(sT), stmp))
        a("L_wo:")
        a.uncounted(tk)
        self.mk_srd(sT, 12, "0x400000")
        a("v_lshrrev_b32 v8, 5, v0", "v_bfe_u32 v9, v0, 3, 2", "v_and_b32 v10, 7, v0",
          "v_lshl_add_u32 v8, v8, 4, v9", "v_lshlrev_b32 v10, 4, v10", "v_lshl_add_u32 v14, v8, 10, v10",
          "s_lshl_b32 s100, s%d, 2" % sg, "s_add_u32 s100, s100, s%d" % sb, "s_lshl_b32 s100, s100, 5",
          "s_add_u32 s100, s100, s%d" % sw, "s_lshl_b32 s100, s100, 5", "s_add_u32 s100, s100, s%d" % ss,
          "s_lshl_b32 s100, s100, 7", "s_lshl_b32 s101, s%d, 12" % sw)
        for ii in range(4):
            a("s_add_u32 s%d, s100, 0x%x" % (stmp, 32 * ii * 1024), "s_add_u32 m0, s101, 0x%x" % (L_WO + ii * 1024),
              "buffer_load_dwordx4 v14, %s, s%d offen nt lds" % (srd(sT), stmp))

        a("s_lshl_b32 s100, s%d, 16" % sg,
          "s_lshl_b32 s%d, s2, 8" % sclr, "s_add_u32 s%d, s%d, 0x%x" % (sclr, sclr, OFF_D), "s_mov_b32 s101, 16",
          "s_lshl_b32 s%d, s%d, 10" % (stmp, sj), "s_add_u32 s%d, s%d, s100" % (stmp, stmp),
          "s_cmp_eq_u32 s%d, 1" % sw, "s_cselect_b32 s%d, s%d, s%d" % (sclr, stmp, sclr), "s_cselect_b32 s101, 64, s101",
          "s_mul_i32 s%d, s%d, 640" % (stmp, sj), "s_add_u32 s%d, s%d, s100" % (stmp, stmp), "s_add_u32 s%d, s%d, 0x%x" % (stmp, stmp, OFF_ML),
          "s_cmp_eq_u32 s%d, 2" % sw, "s_cselect_b32 s%d, s%d, s%d" % (sclr, stmp, sclr), "s_cselect_b32 s101, 40, s101",
          "s_lshl_b32 s%d, s2, 10" % stmp, "s_add_u32 s%d, s%d, 0x%x" % (stmp, stmp, OFF_B),
          "s_cmp_eq_u32 s%d, 3" % sw, "s_cselect_b32 s%d, s%d, s%d" % (sclr, stmp, sclr), "s_cselect_b32 s101, 64, s101",
          "v_mov_b32 v15, v%d" % vA16)
        self.tmp = 8
        self.oob_unless(15, "v_cmp_gt_u32 vcc, s101, v0")
        a("v_mov_b32 v8, -1", "v_mov_b32 v9, -1", "v_mov_b32 v10, -1", "v_mov_b32 v11, -1")
        for r in (1, 2):
            a("s_add_u32 s%d, s%d, 0x%x" % (stmp, sclr, r * LS),
              "buffer_store_dwordx4 v[8:11], v15, %s, s%d offen sc1" % (srd(sWS), stmp))
        a("v_lshrrev_b32 v16, 4, v0", "v_and_b32 v17, 3, v0", "v_lshl_add_u32 v16, v16, 2, v17", "v_lshlrev_b32 v16, 1, v16",
          "s_lshl_b32 s%d, s%d, 5" % (stmp, sw), "s_add_u32 s%d, s%d, s%d" % (stmp, stmp, sj), "s_lshl_b32 s%d, s%d, 5" % (stmp, stmp),
          "buffer_load_ushort v%d, v16, %s, s%d offen" % (vRES, srd(sXI), stmp))
        self.tok_pro = a.mark()

        a("s_lshl_b32 s101, s%d, 10" % sb, "s_add_u32 s101, s101, s100",
          "s_add_u32 s%d, s101, 0x%x" % (sMLld, OFF_ML), "s_add_u32 s%d, s%d, s%d" % (sMLst, sMLst, sMLld),
          "s_add_u32 s%d, s101, 0x%x" % (sEld, OFF_E),
          "s_lshl_b32 s%d, s%d, 3" % (sAst, sw), "s_lshr_b32 s%d, s%d, 2" % (stmp, ss), "s_add_u32 s%d, s%d, s%d" % (sAst, sAst, stmp),
          "s_lshl_b32 s%d, s%d, 4" % (sAst, sAst), "s_add_u32 s%d, s%d, s%d" % (sAst, sAst, sb), "s_lshl_b32 s%d, s%d, 2" % (sAst, sAst),
          "s_and_b32 s%d, s%d, 3" % (stmp, ss), "s_add_u32 s%d, s%d, s%d" % (sAst, sAst, stmp), "s_lshl_b32 s%d, s%d, 4" % (sAst, sAst),
          "s_add_u32 s%d, s%d, s100" % (sAst, sAst),
          "s_lshl_b32 s%d, s%d, 2" % (sAld, sb), "s_add_u32 s%d, s%d, s%d" % (sAld, sAld, sw), "s_lshl_b32 s%d, s%d, 11" % (sAld, sAld),
          "s_add_u32 s%d, s%d, s100" % (sAld, sAld),
          "s_lshl_b32 s%d, s%d, 1" % (sBst, su), "s_lshl_b32 s%d, s%d, 2" % (stmp, sg), "s_add_u32 s%d, s%d, s%d" % (stmp, stmp, sb),
          "s_lshl_b32 s%d, s%d, 8" % (stmp, stmp), "s_add_u32 s%d, s%d, s%d" % (sBst, sBst, stmp), "s_add_u32 s%d, s%d, 0x%x" % (sBst, sBst, OFF_B),
          "s_lshl_b32 s101, s%d, 6" % sw,
          "s_lshl_b32 s%d, s%d, 13" % (sBld, sj), "s_add_u32 s%d, s%d, s101" % (sBld, sBld), "s_add_u32 s%d, s%d, 0x%x" % (sBld, sBld, OFF_B),
          "s_add_u32 s%d, s%d, 4096" % (sBld2, sBld),
          "s_lshl_b32 s%d, s%d, 11" % (sDld, sj), "s_add_u32 s%d, s%d, 0x%x" % (sDld, sDld, OFF_D),
          "s_lshl_b32 s%d, s%d, 8" % (stmp, sg), "s_add_u32 s%d, s%d, s%d" % (sDst, sDld, stmp), "s_add_u32 s%d, s%d, s101" % (sDld, sDld),
          "s_lshr_b32 s%d, s%d, 1" % (sXBst, sj), "s_lshl_b32 s%d, s%d, 8" % (sXBst, sXBst), "s_add_u32 s%d, s%d, s101" % (sXBst, sXBst),
          "s_and_b32 s%d, s%d, 1" % (stmp, sj), "s_lshl_b32 s%d, s%d, 5" % (stmp, stmp), "s_add_u32 s%d, s%d, s%d" % (sXBst, sXBst, stmp),
          "s_add_u32 s%d, s%d, s100" % (sXBst, sXBst), "s_add_u32 s%d, s%d, 0x%x" % (sXDst, sXBst, OFF_XD),
          "s_add_u32 s%d, s%d, 0x%x" % (sXBst, sXBst, OFF_XB), "s_add_u32 s%d, s100, 0x%x" % (sXBld, OFF_XB),
          "s_add_u32 s%d, s100, 0x%x" % (sCld, OFF_C),
          "s_lshr_b32 s%d, s%d, 4" % (sCst, sj), "s_lshl_b32 s%d, s%d, 2" % (sCst, sCst), "s_and_b32 s%d, s%d, 3" % (stmp, sj),
          "s_add_u32 s%d, s%d, s%d" % (sCst, sCst, stmp), "s_lshl_b32 s%d, s%d, 8" % (sCst, sCst),
          "s_and_b32 s%d, s%d, 12" % (stmp, sj), "s_lshl_b32 s%d, s%d, 2" % (stmp, stmp), "s_add_u32 s%d, s%d, s%d" % (sCst, sCst, stmp),
          "s_add_u32 s%d, s%d, s%d" % (sCst, sCst, sCld),
          "s_lshl_b32 s%d, s%d, 7" % (sEst, ss), "s_lshl_b32 s%d, s%d, 4" % (stmp, sb), "s_add_u32 s%d, s%d, s%d" % (sEst, sEst, stmp),
          "s_add_u32 s%d, s%d, s100" % (sEst, sEst), "s_add_u32 s%d, s%d, 0x%x" % (sEst, sEst, OFF_E),
          "s_mov_b32 s%d, 0" % slayer, "s_mov_b32 s%d, 0" % sspin, "s_mov_b32 s%d, -2" % scmp,
          "s_mov_b32 s%d, 256" % sXs, "s_mov_b32 s%d, 0" % sX0)
        for k, m in enumerate((0x22222222, 0x44444444, 0x88888888)):
            a("s_mov_b32 s%d, 0x%x" % (sM1 + 2 * k, m), "s_mov_b32 s%d, 0x%x" % (sM1 + 2 * k + 1, m))
        a("v_lshrrev_b32 v16, 2, v0", "v_and_b32 v17, 7, v16", "v_and_b32 v18, 3, v0",
          "v_lshlrev_b32 v16, 8, v16", "v_lshl_add_u32 v16, v17, 5, v16", "v_lshl_add_u32 v16, v18, 3, v16",
          "v_add_u32 v%d, s%d, v16" % (vTRV, sring))
        if self.stamps:
            for k in range(24):
                a("s_mov_b32 s%d, 0" % (4 + k))
        self.stamp("start")

    def stream(self):
        a = self.a
        qk = None
        for T in range(1, 32):
            if T == 16:
                a("v_lshrrev_b32 v7, 4, v0", "v_lshlrev_b32 v5, 1, v7", "v_and_b32 v6, 15, v0", "v_xor_b32 v5, v5, v6",
                  "v_lshlrev_b32 v5, 4, v5", "v_lshl_add_u32 v5, v7, 8, v5", "v_xor_b32 v6, 128, v5")
                self.mk_ai()
            between = None
            if T in (19, 20):
                if T == 19:
                    a.wait_vm(tok_q, 0)
                    self.next_region()
                    qk = self.qk_chunks()

                def between(jj):
                    self.last_tile_tok = a.mark()
                    for _ in range(2):
                        qk.pop(0)()
            self.tile_issue(T, between)
            if 2 <= T < 28:
                self.tile_consume(T - 2)
            if T == 2:
                a.wait_vm(self.tok_pro)
                a("v_lshlrev_b32 v%d, 16, v%d" % (vRES, vRES), "s_barrier")
                tk = a.mark()
                a("s_cmp_eq_u32 s%d, 2" % sw, "s_cbranch_scc0 L_notg0")
                self.colsum("g")
                a("L_notg0:", "s_cmp_eq_u32 s%d, 0" % sw, "s_cbranch_scc0 L_q1done")
                self.colsum("q")
                self.gemv_pre("q")
                a("v_lshrrev_b32 v6, 4, v0", "v_lshlrev_b32 v6, 6, v6", "v_bfe_u32 v7, v0, 2, 2", "v_lshl_add_u32 v6, v7, 10, v6",
                  "v_and_b32 v7, 3, v0", "v_lshl_add_u32 v6, v7, 4, v6", "s_branch L_stageq", "L_q1ret:")
                a("s_getreg_b32 s100, hwreg(HW_REG_XCC_ID, 0, 3)", "s_lshl_b32 s100, s100, 3", "s_lshl_b64 s[100:101], 1, s100",
                  "v_mov_b32 v8, s100", "v_mov_b32 v9, s101", "s_lshl_b32 s%d, s%d, 3" % (stmp, sg), "v_lshlrev_b32 v10, 8, v0",
                  "s_waitcnt vmcnt(0)",
                  "buffer_atomic_add_x2 v[8:9], v10, %s, s%d offen sc1" % (srd(sDBG), stmp), "L_q1done:")
                a.uncounted(tk)
            if T == 14:
                a("v_and_b32 v7, 7, v0", "v_lshlrev_b32 v7, 3, v7",
                  "buffer_load_dwordx2 v[8:9], v7, %s, 0 offen sc1" % srd(sDBG))
                tok_bar = a.mark()
            if T == 16:
                a.wait_vm(tok_bar)
                tk = a.mark()
                a("s_branch L_barchk", "L_barspin:", "s_sleep 8", "v_and_b32 v7, 7, v0", "v_lshlrev_b32 v7, 3, v7",
                  "buffer_load_dwordx2 v[8:9], v7, %s, 0 offen sc1" % srd(sDBG),
                  "s_add_u32 s%d, s%d, 1" % (sspin, sspin), "s_cmp_lt_u32 s%d, 0x%x" % (sspin, SPIN_LIMIT), "s_cbranch_scc0 L_bardone",
                  "s_waitcnt vmcnt(0)", "L_barchk:",
                  "v_sad_u8 v10, v8, 0, 0", "v_sad_u8 v10, v9, 0, v10", "v_cmp_ne_u32 vcc, 32, v10", "s_cbranch_vccnz L_barspin",
                  "L_bardone:")
                a.uncounted(tk)
                a("s_getreg_b32 s100, hwreg(HW_REG_XCC_ID, 0, 3)", "s_lshl_b32 s100, s100, 3", "s_lshl_b64 s[100:101], 32, s100",
                  "v_readlane_b32 s98, v8, s%d" % sg, "v_readlane_b32 s99, v9, s%d" % sg, "s_cmp_eq_u64 s[98:99], s[100:101]")
                if not self.force_slow:
                    a("s_cselect_b32 s%d, 0x%x, 0" % (sWF + 2, WS_SIZE), "s_cselect_b32 s%d, 0, 0x%x" % (sWL + 2, WS_SIZE))
                a("v_lshrrev_b32 v7, 2, v0", "v_lshlrev_b32 v7, 4, v7")
                a(*self.q_loads(7))
                tok_q = a.mark()
                self.stamp("barrier")
            if T == 20:
                while qk:
                    qk.pop(0)()
                self.softmax(0)
                self.stamp("softmax1")
            if T in (21, 22, 23, 25, 27):
                p = {21: 0, 22: 1, 23: 2, 25: 3, 27: 4}[T]
                mv, A = self.pvar(p, 0)
                a(*mv)
                a("s_waitcnt lgkmcnt(0)")
                self.pv_group(p, A, p == 0)
            if T == 24:
                a(self.ml_load(8))
                tok_ml = a.mark()
                a("v_mov_b32 v20, v%d" % vA16, "s_cmp_eq_u32 s%d, 2" % sw, "s_cselect_b32 s101, 40, 64")
                if not self.warm_cross:
                    a("s_cmp_eq_u32 s%d, 0" % sw, "s_cselect_b32 s101, 0, s101", "s_cmp_eq_u32 s%d, 3" % sw, "s_cselect_b32 s101, 0, s101")
                else:
                    a("s_cmp_eq_u32 s%d, 0" % sw, "s_cselect_b32 s101, 16, s101")
                self.tmp = 21
                self.oob_unless(20, "v_cmp_gt_u32 vcc, s101, v0")
                a("s_add_u32 s101, s%d, 0x%x" % (sclr, LS),
                  "buffer_load_dwordx4 v[16:19], v20, %s, s%d offen sc1" % (srd(sWS), sclr),
                  "buffer_load_dwordx4 v[16:19], v20, %s, s101 offen sc1" % srd(sWS))
                tok_warm = a.mark()
            if T == 26:
                a.wait_vm(tok_warm)
                tk = a.mark()
                self.check([range(8, 12)], 12, 0)
                a("s_cbranch_vccz L_ml1ok")
                self.poll([self.ml_load(8)], [range(8, 12)], 12, "ml1")
                a("L_ml1ok:")
                a.uncounted(tk)
                self.ml_finish(8, 12, 13)
        self.stamp("issued")
        for p in (5, 6, 7):
            mv, A = self.pvar(p, p & 1)
            a(*mv)
            self.tile_consume(16 + 2 * p)
            self.tile_consume(17 + 2 * p)
            self.pv_group(p, A, False, lgkm=lambda i: 7 - i)
        a("s_mov_b32 s%d, 1" % slayer)
        self.stamp("pv1")

    def chain(self):
        a = self.a
        a("L_tail:")
        a("v_lshrrev_b32 v5, 4, v0", "v_lshlrev_b32 v5, 11, v5", "v_and_b32 v6, 15, v0", "v_lshl_add_u32 v5, v6, 4, v5",
          "s_lshl_b32 s100, s%d, 9" % sw, "s_add_u32 s100, s100, 0x%x" % L_SCR, "v_add_u32 v5, s100, v5")
        for i in range(8):
            a("v_mul_f32 v%d, v7, v%d" % (8 + i, vO + 4 * i))
        a("ds_write_b128 v5, v[8:11]", "ds_write_b128 v5, v[12:15] offset:256")
        a("s_lshl_b32 s100, s%d, 11" % sw, "s_add_u32 s100, s100, 0x%x" % L_SCR,
          "v_lshrrev_b32 v16, 2, v0", "v_lshlrev_b32 v6, 4, v16", "v_bfe_u32 v17, v0, 1, 1", "v_lshl_add_u32 v6, v17, 8, v6",
          "v_and_b32 v17, 1, v0", "v_lshl_add_u32 v6, v17, 3, v6", "v_add_u32 v6, s100, v6",
          "s_waitcnt lgkmcnt(0)", "s_barrier")
        for src in range(4):
            a("ds_read_b64 %s, v6 offset:%d" % (q(8 + 2 * src, 2), src * 512))
        a("v_lshrrev_b32 v17, 4, v0", "v_lshlrev_b32 v17, 11, v17", "v_and_b32 v16, 3, v16", "v_lshl_add_u32 v17, v16, 8, v17",
          "v_and_b32 v16, 3, v0", "v_lshl_add_u32 v17, v16, 2, v17",
          "s_waitcnt lgkmcnt(2)", "v_add_f32 v8, v8, v10", "v_add_f32 v9, v9, v11",
          "s_waitcnt lgkmcnt(0)", "v_add_f32 v12, v12, v14", "v_add_f32 v13, v13, v15",
          "v_add_f32 v8, v8, v12", "v_add_f32 v9, v9, v13", "v_cvt_pk_bf16_f32 v8, v8, v9")
        self.st_intra("buffer_store_dword", "v8", 17, sAst)
        self.stamp("Apub", True)
        a("v_bfe_u32 v5, v0, 2, 2", "v_lshlrev_b32 v5, 9, v5", "v_lshrrev_b32 v6, 4, v0", "v_lshl_add_u32 v5, v6, 7, v5",
          "v_lshl_add_u32 v5, v16, 3, v5", "s_lshl_b32 s101, s%d, 12" % sw, "s_add_u32 s101, s101, 0x%x" % L_WO, "v_add_u32 v5, s101, v5")
        for t in range(4):
            for h in range(2):
                a("ds_read_b64_tr_b16 %s, v5 offset:%d" % (q(24 + 4 * t + 2 * h, 2), h * 2048 + t * 32))
        a("v_add_u32 v5, s100, v%d" % vA16, "s_lshl_b32 s101, s%d, 2" % sw, "s_add_u32 s101, s101, 0x%x" % L_SCR,
          "v_add_u32 v6, s101, v%d" % vA16)
        self.part_store_off(18, 19)
        a("s_waitcnt lgkmcnt(0)")
        self.poll(["buffer_load_dwordx4 %s, v%d, %s, s%d offen offset:%d sc1" % (q(8 + 4 * h), vA16, srd(sWS), sAld, h * 1024) for h in range(2)],
                  [range(8, 12), range(12, 16)], 7, "pollA")
        for t in range(4):
            self.mfma(40 + 4 * t, q(8), q(24 + 4 * t), False)
            self.mfma(40 + 4 * t, q(12), q(24 + 4 * t), True)
        for t in range(4):
            d = 40 + 4 * t
            a("v_add_f32 v%d, v%d, v%d" % (d, d, d + 1), "v_add_f32 v%d, v%d, v%d" % (d + 2, d + 2, d + 3),
              "v_add_f32 v%d, v%d, v%d" % (20 + t, d, d + 2))
        a("ds_write_b128 v5, v[20:23]", "s_waitcnt lgkmcnt(0)", "s_barrier",
          "ds_read2st64_b32 v[8:9], v6 offset0:0 offset1:8", "ds_read2st64_b32 v[10:11], v6 offset0:16 offset1:24",
          "s_waitcnt lgkmcnt(1)", "v_add_f32 v8, v8, v9", "s_waitcnt lgkmcnt(0)", "v_add_f32 v10, v10, v11", "v_add_f32 v8, v8, v10",
          "buffer_store_dword v8, v18, %s, s%d offen sc1" % (srd(sWS), sBst))
        self.stamp("Bpub", True)
        a("s_cmp_eq_u32 s%d, 2" % sw, "s_cbranch_scc0 L_pre1")
        self.gemv_pre("g")
        a("L_pre1:", "s_cmp_eq_u32 s%d, 1" % sw, "s_cbranch_scc0 L_pre2")
        self.w_addr(5, "d")
        a(*self.w_reads(5, range(7), vW, 1024))
        a("L_pre2:", "s_cmp_eq_u32 s%d, 0" % sw, "s_cbranch_scc0 L_pre3")
        self.gemv_pre("q")
        a("L_pre3:")
        r = vX
        a("v_lshrrev_b32 v%d, 2, v0" % (r + 8), "v_lshlrev_b32 v%d, 8, v%d" % (r + 8, r + 8), "v_and_b32 v7, 3, v0",
          "v_lshl_add_u32 v%d, v7, 4, v%d" % (r + 8, r + 8))
        self.x_store_off(6)
        self.poll(["buffer_load_dwordx4 %s, v%d, %s, s%d offen sc1" % (q(r + 4 * h), r + 8, srd(sWS), (sBld, sBld2)[h]) for h in range(2)],
                  [range(r, r + 4), range(r + 4, r + 8)], 7, "pollB")
        for e in (0, 2, 1, 3):
            a("v_add_f32 v%d, v%d, v%d" % (r + e, r + e, r + 4 + e))
        a("v_permlane32_swap_b32 v%d, v%d" % (r, r + 2), "v_permlane32_swap_b32 v%d, v%d" % (r + 1, r + 3),
          "v_add_f32 v%d, v%d, v%d" % (r, r, r + 2), "v_add_f32 v%d, v%d, v%d" % (r + 1, r + 1, r + 3),
          "v_permlane16_swap_b32 v%d, v%d" % (r, r + 1), "v_add_f32 v%d, v%d, v%d" % (r, r, r + 1))
        self.dpp("v_add_f32", r, r, r, "row_ror:4")
        self.dpp("v_add_f32", r, r, r, "row_ror:8")
        a("v_add_f32 v%d, v%d, v%d" % (vRES, vRES, r))
        self.pack_pairs(7, vRES)
        self.st_intra("buffer_store_dword", "v7", 6, sXBst)
        a("v_lshlrev_b32 v%d, 16, v7" % vRES)
        self.stamp("XBpub", True)
        a("s_cmp_eq_u32 s%d, 2" % sw, "s_cbranch_scc0 L_nog")
        self.tmp = 7
        a("v_lshrrev_b32 v6, 4, v0", "v_lshlrev_b32 v6, 6, v6", "v_and_b32 v7, 15, v0", "v_lshl_add_u32 v6, v7, 1, v6",
          "s_cmp_lt_u32 s%d, 28" % sj, "s_cselect_b32 s100, 0, -1", "v_and_b32 v7, 9, v0")
        self.oob_unless(6, "v_cmp_eq_u32 vcc, s100, v7")
        self.gemv("g", ["buffer_load_dwordx4 %s, v%d, %s, s%d offen offset:%d sc1" % (q(vX + 4 * s), vA16, srd(sWS), sXBld, s * 1024) for s in range(4)])
        self.dpp("v_mul_f32", 7, 7, 7, "row_ror:8")
        self.pack_pairs(5, 7)
        self.st_intra("buffer_store_dword", "v5", 6, sCst)
        self.stamp("Cpub", True)
        self.stats("0x%x" % (L_STAT + 16))
        a("L_nog:", "s_cmp_eq_u32 s%d, 1" % sw, "s_cbranch_scc0 L_nod")
        self.part_store_off(6, 7)
        self.tmp = 7
        a("v_mov_b32 v5, v%d" % vA16, "v_and_b32 v7, 3, v0")
        self.oob_unless(5, "v_cmp_ne_u32 vcc, 3, v7")
        a("s_waitcnt lgkmcnt(0)")
        self.poll(["buffer_load_dwordx4 %s, v%d, %s, s%d offen offset:%d sc1" % (q(vX + 4 * s), (vA16, 5)[s], srd(sWS), sCld, s * 1024) for s in range(2)],
                  [range(vX, vX + 4), range(vX + 4, vX + 8)], 7, "pollC")
        for mf in (3, 0, 4, 1, 5, 2, 6):
            self.mfma(vD + 4 * (mf & 3), q(vX + 4 * (mf >> 2)), q(vW + 4 * mf), mf >= 4)
        a("v_add_f32 v7, v%d, v%d" % (vD + 15, vD), "v_add_f32 v7, v7, v%d" % (vD + 5), "v_add_f32 v7, v7, v%d" % (vD + 10),
          "buffer_store_dword v7, v6, %s, s%d offen sc1" % (srd(sWS), sDst))
        self.stamp("Dpub", True)
        a("L_nod:")
        a("s_lshr_b32 s100, s%d, 2" % sj, "s_cmp_eq_u32 s100, s%d" % sg, "s_cselect_b32 s100, 1, s%d" % slayer,
          "s_cmp_eq_u32 s100, 2", "s_cbranch_scc1 L_fin", "s_barrier")
        a("s_lshl_b32 s100, s%d, 2" % sw, "s_add_u32 s100, s100, 0x%x" % (L_STAT + 16), "v_mov_b32 v7, s100", "ds_read_b32 v%d, v7" % (r + 2),
          "v_bfe_u32 v%d, v0, 2, 2" % (r + 8), "v_lshlrev_b32 v%d, 8, v%d" % (r + 8, r + 8), "v_and_b32 v7, 3, v0",
          "v_lshl_add_u32 v%d, v7, 4, v%d" % (r + 8, r + 8), "v_lshrrev_b32 v7, 4, v0", "v_lshl_add_u32 v%d, v7, 2, v%d" % (r + 8, r + 8))
        self.x_store_off(6)
        a("s_waitcnt lgkmcnt(0)", "v_mul_f32 v%d, v%d, v%d" % (r + 2, r + 2, r + 2))
        self.poll(["buffer_load_dword v%d, v%d, %s, s%d offen offset:%d sc1" % (r + h, r + 8, srd(sWS), sDld, h * 1024) for h in range(2)],
                  [[r], [r + 1]], 7, "pollD")
        a("v_add_f32 v%d, v%d, v%d" % (r, r, r + 1))
        self.dpp("v_add_f32", r, r, r, "row_ror:4")
        self.dpp("v_add_f32", r, r, r, "row_ror:8")
        a("v_fmac_f32 v%d, v%d, v%d" % (vRES, r, r + 2))
        self.pack_pairs(7, vRES)
        a("s_cmp_eq_u32 s%d, 2" % slayer, "s_cbranch_scc1 L_out")
        self.st_intra("buffer_store_dword", "v7", 6, sXDst)
        a("v_lshlrev_b32 v%d, 16, v7" % vRES)
        self.stamp("XDpub")
        a("s_cmp_eq_u32 s%d, 0" % sw, "s_cbranch_scc0 L_noq")
        self.mk_srd(sXI, sWS, "0x%x" % WS_SIZE)
        a("s_mov_b32 s%d, 1024" % sXs, "s_add_u32 s%d, s%d, 0x%x" % (sX0, sXBld, OFF_XD - OFF_XB), "v_mov_b32 v6, v%d" % vA16)
        a("L_stageq:")
        a("s_add_u32 s99, s%d, s%d" % (sX0, sXs), "s_add_u32 s100, s99, s%d" % sXs, "s_add_u32 s101, s100, s%d" % sXs)
        self.gemv("q", ["buffer_load_dwordx4 %s, v6, %s, s%d offen sc1" % (q(vX + 4 * s), srd(sXI), (sX0, 99, 100, 101)[s]) for s in range(4)])
        self.pack_pairs(vCR, 7)
        self.tmp = 7
        a("v_lshrrev_b32 v6, 4, v0", "v_lshlrev_b32 v6, 10, v6", "v_bfe_u32 v7, v0, 3, 1", "v_lshl_add_u32 v6, v7, 6, v6",
          "v_and_b32 v7, 7, v0", "v_lshl_add_u32 v6, v7, 1, v6", "v_and_b32 v7, 1, v0")
        self.oob_unless(6, "v_cmp_eq_u32 vcc, 0, v7")
        self.st_intra("buffer_store_dword", "v%d" % vCR, 6, sEst)
        a("s_lshl_b32 s100, s%d, 5" % slayer, "s_add_u32 s100, s100, 0x%x" % L_STAT)
        self.stats("s100")
        a("s_cmp_eq_u32 s%d, 0" % slayer, "s_cbranch_scc1 L_q1ret")
        self.stamp("Epub")
        a("L_noq:", "s_barrier")
        self.mk_ai()
        a("v_lshrrev_b32 v5, 2, v0", "v_lshlrev_b32 v5, 4, v5")
        self.poll(self.q_loads(5), [range(vQ + 4 * s, vQ + 4 * s + 4) for s in range(4)], 7, "pollE")
        self.stamp("Eget")
        for c in self.qk_chunks():
            c()
        self.next_region()
        self.softmax(32)
        mv, A = self.pvar(ORDER[0], 0)
        for n, p in enumerate(ORDER):
            fill = []
            if n < 7:
                mv, An = self.pvar(ORDER[n + 1], (n + 1) & 1)
                fill += mv
                if ORDER[n + 1] >= 5:
                    fill = self.lds_group_reads(ORDER[n + 1]) + fill
            if p >= 5:
                a("s_waitcnt lgkmcnt(0)")
            if n == 4:
                a(self.ml_load(vP))
            self.pv_group(p, A, n == 0, fill)
            if n == 5:
                a("s_waitcnt vmcnt(0)")
                self.check([range(vP, vP + 4)], 5, 0)
                a("s_cbranch_vccz L_ml2ok")
                self.poll([self.ml_load(vP)], [range(vP, vP + 4)], 5, "ml2")
                a("L_ml2ok:")
                self.ml_finish(vP, 5, 6)
            A = An
        a("s_mov_b32 s%d, 2" % slayer)
        self.stamp("pv2")
        a("s_branch L_tail")
        a("L_out:")
        a("s_lshl_b32 s100, s%d, 5" % sw, "s_add_u32 s100, s100, s%d" % sj, "s_lshl_b32 s100, s100, 5",
          "buffer_store_dword v7, v6, %s, s100 offen" % srd(sOUT))
        a("L_fin:")
        if self.stamps:
            self.stamp("end")
            a("s_lshl_b32 s100, s2, 2", "s_add_u32 s100, s100, s%d" % sw, "s_lshl_b32 s100, s100, 7",
              "s_add_u32 s100, s100, 0x%x" % (STAMP_OFF - 2 * LS), "s_mov_b32 s%d, 0x1000000" % (sWS + 2), "v_mov_b32 v8, 0")
            for k in range(24):
                a("v_writelane_b32 v8, s%d, %d" % (4 + k, k))
            a("v_writelane_b32 v8, s%d, 24" % sspin, "v_writelane_b32 v8, s%d, 25" % (sWF + 2),
              "v_lshlrev_b32 v9, 2, v0", "v_cmp_gt_u32 vcc, 32, v0", "s_and_saveexec_b64 s[98:99], vcc",
              "buffer_store_dword v8, v9, %s, s100 offen" % srd(sWS))
        a("L_end:", "s_endpgm")

    def build(self):
        self.prologue()
        self.stream()
        self.chain()
        self.a.pad()
        head = open("cdna_kernels/" + KNAME[:-7] + ".s.ref").read().split("; Override launch")[0]
        return (head + "; @launch grid=(256,1,1) block=(256,1,1) lds=163840\n"
                '.amdgcn_target "amdgcn-amd-amdhsa--gfx950"\n.text\n.globl %s\n.p2align 8\n.type %s,@function\n%s:\n' % (KNAME, KNAME, KNAME)
                + self.a.text() +
                '.section .rodata,"a"\n.p2align 6\n.amdhsa_kernel %s\n  .amdhsa_next_free_vgpr 512\n  .amdhsa_next_free_sgpr 102\n'
                "  .amdhsa_accum_offset 256\n  .amdhsa_group_segment_fixed_size 0\n  .amdhsa_kernarg_size 96\n"
                "  .amdhsa_user_sgpr_count 2\n  .amdhsa_user_sgpr_kernarg_segment_ptr 1\n  .amdhsa_system_sgpr_workgroup_id_x 1\n"
                ".end_amdhsa_kernel\n" % KNAME)


if __name__ == "__main__":
    out = sys.argv[1]
    kw = eval("dict(%s)" % (sys.argv[2] if len(sys.argv) > 2 else ""))
    g = Gen(**kw)
    s = g.build()
    open(out, "w").write(s)
    if g.stamps:
        open(out[:-2] + ".names", "w").write("\n".join(g.stamp_names))
```

```python
import struct
import sys
from asmlib import Asm

KNAME = "interleave_layers__gqa_block_cached__glu_gated_bilinear__decode_kernel"

LS = 2 << 20
OFF_A, OFF_C, OFF_ML, OFF_XB, OFF_XD, OFF_E = 0, 32 << 10, 48 << 10, 52 << 10, 56 << 10, 60 << 10
OFF_CSQ, OFF_CSG = 64 << 10, 72 << 10
OFF_B, OFF_D = 1 << 20, (1 << 20) + (128 << 10)
WS_SIZE = 3 * LS
STAMP_OFF = 8 << 20
OOB = 0x7FFF0000

RING = 24576
L_WQ = 4 * RING
L_WO = L_WQ + 16384
L_WG = L_WO + 16384
L_WD = L_WG + 16384
L_SCR = L_WD + 8192
L_H = L_SCR + 1024
L_Q, QSTR = L_SCR + 1536, 2112
assert L_SCR + 8192 == 163840

sK, sV, sWS, sWF, sWL, sOUT, sDBG, sXI, sT = 28, 32, 36, 40, 44, 48, 52, 56, 96
sw, sg, sj, sb, ss, su, sring, srot, stmp, slayer = range(60, 70)
(sMLst, sMLld, sAst, sAld, sBst, sBld, sXst, sXld, sCst, sCld, sCS, sS1, sSC, sRow, sEst, sEld) = range(70, 86)
sWo, sWl = 86, 87
sM1 = 88
sspin, scmp = 94, 95
sclr, slead, sact = 3, 14, 15
sLO, sHI = 6, 7
SPIN_LIMIT = 1 << 18

vL, vA16, vTRV, vRES = 0, 1, 2, 3
vQ, vS, vT, vP, vPV, vAI, vO, vVF, vVR = 8, 24, 40, 40, 48, 56, 64, 8, 96
vWG, vWD, vWQ, vCG, vCQ, vSEL, vX, vD = 8, 24, 32, 48, 50, 52, 56, 72
vKS, vKR = 240, 244
ORDER = [0, 1, 2, 5, 3, 6, 4, 7]
SLOT = {5: 2, 6: 4, 7: 0}
SCALE = 128 ** -0.5 * 1.4426950408889634
ONES = "0x3f803f80"


def f32(x):
    return "0x%08x" % struct.unpack("<I", struct.pack("<f", x))[0]


def q(r, n=4, k="v"):
    return "%s[%d:%d]" % (k, r, r + n - 1)


def srd(r):
    return "s[%d:%d]" % (r, r + 3)


class Gen:
    def __init__(self, depth=6, burst=12, rotg=5, stamps=False, force_slow=False, warm_cross=False, skip="",
                 wpol="nt", kvpol="nt", dbgstamps=False, tq=(1, 1, 2, 2), tg=(6, 7, 8, 9), td=(10, 11), to=(12, 13, 14, 15),
                 tbar=15, lag=2, noclear=False):
        self.__dict__.update(locals())
        self.a = Asm()
        self.nst = 0
        self.stamp_names = []

    def stamp(self, name, per_layer=False):
        if not self.stamps or (self.stamps is not True and name not in self.stamps):
            return
        a = self.a
        k = self.nst
        self.nst += 2 if per_layer else 1
        assert self.nst <= 30
        a("s_memrealtime s[0:1]", "s_waitcnt lgkmcnt(0)")
        if per_layer:
            self.stamp_names += [name + "/1", name + "/2"]
            a("s_add_u32 m0, s%d, %d" % (slayer, k - 1), "v_writelane_b32 v4, s0, m0")
        else:
            self.stamp_names.append(name)
            a("v_writelane_b32 v4, s0, %d" % k)

    def mk_srd(self, d, p, size):
        self.a("s_mov_b32 s%d, s%d" % (d, p), "s_mov_b32 s%d, s%d" % (d + 1, p + 1),
               "s_mov_b32 s%d, %s" % (d + 2, size), "s_mov_b32 s%d, 0x20000" % (d + 3))

    def lin(self, d, t, *terms):
        first = True
        for sh, bits, sc in terms:
            r = d if first else t
            if sh + bits >= 6:
                src = vL
                if sh:
                    self.a("v_lshrrev_b32 v%d, %d, v0" % (r, sh)); src = r
            elif sh == 0:
                self.a("v_and_b32 v%d, %d, v0" % (r, (1 << bits) - 1)); src = r
            else:
                self.a("v_bfe_u32 v%d, v0, %d, %d" % (r, sh, bits)); src = r
            if first:
                if sc or src != d:
                    self.a("v_lshlrev_b32 v%d, %d, v%d" % (d, sc, src))
            else:
                self.a("v_lshl_add_u32 v%d, v%d, %d, v%d" % (d, src, sc, d))
            first = False

    def sexpr(self, d, const, *terms):
        a = self.a
        first = True
        for reg, mult in terms:
            r = d if first else 101
            if mult & (mult - 1) == 0:
                a("s_lshl_b32 s%d, s%d, %d" % (r, reg, mult.bit_length() - 1))
            else:
                a("s_mul_i32 s%d, s%d, %d" % (r, reg, mult))
            if not first:
                a("s_add_u32 s%d, s%d, s101" % (d, d))
            first = False
        if const:
            a("s_add_u32 s%d, s%d, 0x%x" % (d, d, const))

    def oob_unless(self, v, t, cond):
        self.a(cond, "v_mov_b32 v%d, 0x%x" % (t, OOB), "v_cndmask_b32 v%d, v%d, v%d, vcc" % (v, t, v))

    def even_only(self, v, t, cmp="0"):
        self.a("v_and_b32 v%d, 1, v0" % t)
        self.oob_unless(v, t, "v_cmp_eq_u32 vcc, %s, v%d" % (cmp, t))

    def st_intra(self, op, data, voff, soff):
        self.a("%s %s, v%d, %s, s%d offen" % (op, data, voff, srd(sWF), soff),
               "%s %s, v%d, %s, s%d offen sc1" % (op, data, voff, srd(sWL), soff))

    def ld(self, r, voff, soff, off=0, n=4, rs=sWS):
        return "buffer_load_dword%s %s, v%d, %s, s%d offen offset:%d sc1" % (
            "x%d" % n if n > 1 else "", q(r, n) if n > 1 else "v%d" % r, voff, srd(rs), soff, off)

    def poll(self, loads, regs, acc, name):
        a = self.a
        L = a.lab(name)
        a(L + ":")
        a(*loads)
        a("s_add_u32 s%d, s%d, 1" % (sspin, sspin), "s_cmp_lt_u32 s%d, 0x%x" % (sspin, SPIN_LIMIT),
          "s_cselect_b32 s%d, -2, -1" % scmp)
        self.check(regs, acc, len(loads))
        a("s_cbranch_vccnz " + L)

    def check(self, regs, acc, n):
        a = self.a
        have, rr = None, []
        for i, part in enumerate(regs):
            if n:
                a("s_waitcnt vmcnt(%d)" % (n - 1 - i))
            rr += list(part)
            last = i == len(regs) - 1
            while rr:
                pool = ([have] if have is not None else []) + rr
                if len(pool) >= 3:
                    a("v_max3_u32 v%d, v%d, v%d, v%d" % (acc, *pool[:3])); rr = pool[3:]; have = acc
                elif not last:
                    break
                elif len(pool) == 2:
                    a("v_max_u32 v%d, v%d, v%d" % (acc, *pool)); rr = []; have = acc
                else:
                    have = pool[0]; rr = []
        a("v_cmp_lt_u32 vcc, s%d, v%d" % (scmp, have))

    def check_or_poll(self, loads, regs, acc, name, pre=()):
        a = self.a
        tk = a.mark()
        self.check(regs, acc, 0)
        a("s_cbranch_vccz L_%s_ok" % name, *pre)
        self.poll(loads, regs, acc, name)
        a("L_%s_ok:" % name)
        a.uncounted(tk)

    def mfma(self, d, A, B, c):
        self.a("v_mfma_f32_16x16x32_bf16 %s, %s, %s, %s" % (q(d), A, B, q(d) if c else "0"))

    def xrows(self, op, v, t):
        for sw_ in ("v_permlane16_swap_b32", "v_permlane32_swap_b32"):
            self.a("v_mov_b32 v%d, v%d" % (t, v), "%s v%d, v%d" % (sw_, t, v), "%s v%d, v%d, v%d" % (op, v, v, t))

    def dpp(self, op, d, s0, s1, ctl, rm="0xf"):
        self.a("%s_dpp v%d, v%d, v%d %s row_mask:%s bank_mask:0xf" % (op, d, s0, s1, ctl, rm))

    def pack_pairs(self, d, v):
        self.a("v_mov_b32_dpp v%d, v%d quad_perm:[1,1,3,3] row_mask:0xf bank_mask:0xf" % (d, v),
               "v_cvt_pk_bf16_f32 v%d, v%d, v%d" % (d, v, d))

    def tile_issue(self, T, between=None):
        a = self.a
        a("s_and_b32 s%d, s%d, 15" % (srot, srot), "s_lshl_b32 s%d, s%d, 17" % (stmp, srot),
          "s_add_u32 s%d, s%d, s%d" % (stmp, stmp, su), "s_add_u32 s%d, s%d, 1" % (srot, srot),
          "s_add_u32 m0, s%d, %d" % (sring, (T % 6) * 4096))
        if T >= 6:
            a("s_waitcnt lgkmcnt(0)")
        for jj in range(4):
            if 4 * T + jj < 128 - self.burst and T > 1:
                a.wait_vm(self.ltok[-self.depth])
            va = vKS + jj if T < 16 else 5 + (jj & 1)
            a("buffer_load_dwordx4 v%d, %s, s%d offen offset:%d %s lds" % (va, srd(sK if T < 16 else sV), stmp, jj * 1024, self.kvpol))
            self.ltok.append(a.mark())
            self.tok[T] = a.mark()
            if between:
                between(jj)

    def tile_consume(self, T):
        a = self.a
        a.wait_vm(self.tok[T])
        if T < 16:
            for st in range(4):
                a("ds_read_b128 %s, v%d offset:%d" % (q(16 * T + 4 * st, 4, "a"), vKR + st, (T % 6) * 4096))
        else:
            p, half = (T - 16) >> 1, T & 1
            base = vVR + 32 * p if p < 5 else vVF
            for i in range(8):
                a("ds_read_b64_tr_b16 %s, v%d offset:%d" % (q(base + 4 * i + 2 * half, 2), vAI + i, (T % 6) * 4096))

    def mk_ai(self):
        for i in range(8):
            self.a("v_xor_b32 v%d, %d, v%d" % (vAI + i, i << 5, vTRV))

    def weight_load(self, kind, k, T):
        a = self.a
        pitch = {"q": 8192, "g": 3584, "d": 1024, "o": 1024}[kind]
        if k == 0:
            if kind == "o":
                self.lin(52, 53, (5, 1, 14), (3, 2, 10), (0, 3, 4))
                self.mk_srd(sT, 12, "0x400000")
                self.sexpr(sWo, 0, (sg, 512 * 1024), (sb, 128 * 1024), (sw, 4096), (ss, 128))
                self.sexpr(sWl, L_WO, (sw, 4096))
            else:
                a("v_lshrrev_b32 v52, 3, v0", "v_mul_u32_u24 v52, %d, v52" % pitch, "v_and_b32 v53, 7, v0", "v_lshl_add_u32 v52, v53, 4, v52")
            if kind == "q":
                self.mk_srd(sT, 10, "0x400000")
                self.sexpr(sWo, 0, (sb, 128 * pitch), (sw, 32 * pitch), (sg, 1024), (ss, 128))
                self.sexpr(sWl, L_WQ, (sw, 4096))
            if kind in "gd":
                a("s_lshr_b32 s100, s%d, 1" % sg, "s_mul_i32 s100, s100, 7", "s_and_b32 s%d, s%d, 1" % (stmp, sg),
                  "s_lshl_b32 s%d, s%d, 2" % (stmp, stmp), "s_add_u32 s100, s100, s%d" % stmp)
            if kind == "g":
                a("s_and_b32 s%d, s%d, 3" % (stmp, ss), "s_add_u32 s100, s100, s%d" % stmp)
                self.sexpr(sWo, 0, (sb, 128 * pitch), (sw, 32 * pitch), (100, 128))
                self.sexpr(sWl, L_WG, (sw, 4096))
                a("s_bitcmp1_b32 s%d, 0" % sact, "s_cselect_b32 s100, 0x%x, 0" % (512 * pitch))
                self.mk_srd(sT, 16, "s100")
                a("s_cmp_ge_u32 s%d, 4" % ss, "s_cselect_b32 s%d, s18, s16" % sT, "s_cselect_b32 s%d, s19, s17" % (sT + 1))
            if kind == "d":
                a("s_add_u32 s100, s100, s%d" % sb)
                self.sexpr(sWo, 0, (100, 64 * pitch), (sw, 16 * pitch), (ss, 128))
                self.sexpr(sWl, L_WD, (sw, 2048))
                a("s_bitcmp1_b32 s%d, 1" % sact, "s_cselect_b32 s100, 0x%x, 0" % (1792 * pitch))
                self.mk_srd(sT, 20, "s100")
        a("s_add_u32 s%d, s%d, 0x%x" % (stmp, sWo, (32 if kind == "o" else 8) * pitch * k), "s_add_u32 m0, s%d, 0x%x" % (sWl, 1024 * k))
        if kind not in self.skip:
            if 1 < T < 29:
                a.wait_vm(self.ltok[-self.depth])
            a("buffer_load_dwordx4 v52, %s, s%d offen %s lds" % (srd(sT), stmp, self.wpol))
            self.ltok.append(a.mark())
        self.wtok[kind] = a.mark()

    def qk_chunks(self):
        seq = [(G, half, t) for G in range(2) for half in range(2) for t in range(4)]
        chunks = []
        for n in range(18):
            def chunk(n=n):
                sel = []
                if n >= 2:
                    G, half, t = seq[n - 2]
                    if t:
                        s = vS + 8 * G + 4 * half
                        sel = ["v_cndmask_b32 v%d, v%d, v%d, s[%d:%d]" % (s + r, s + r, vT + 4 * (t - 1) + r, sM1 + 2 * (t - 1), sM1 + 2 * t - 1)
                               for r in range(4)]
                if n < 16:
                    G, half, t = seq[n]
                    tau = 2 * ORDER[4 * G + t] + half
                    d = vS + 8 * G + 4 * half if t == 0 else vT + 4 * (t - 1)
                    for st in range(4):
                        self.mfma(d, q(16 * tau + 4 * st, 4, "a"), q(vQ + 4 * st), st > 0)
                        if sel:
                            self.a(sel.pop(0))
                self.a(*sel)
            chunks.append(chunk)
        return chunks

    def softmax(self):
        a = self.a
        m, t, mu = 8, 9, 11
        a("v_max3_f32 v%d, v%d, v%d, v%d" % (m, vS, vS + 1, vS + 2))
        for k in range(3, 15, 2):
            a("v_max3_f32 v%d, v%d, v%d, v%d" % (m, m, vS + k, vS + k + 1))
        a("v_max_f32 v%d, v%d, v%d" % (m, m, vS + 15))
        self.dpp("v_max_f32", m, m, m, "quad_perm:[1,0,3,2]")
        self.dpp("v_max_f32", m, m, m, "quad_perm:[2,3,0,1]")
        self.xrows("v_max_f32", m, t)
        a("v_mul_f32 v%d, s%d, v%d" % (mu, sSC, m))
        for k in range(16):
            a("v_fma_f32 v%d, v%d, s%d, -v%d" % (vS + k, vS + k, sSC, mu))
        for k in range(16):
            a("v_exp_f32 v%d, v%d" % (vS + k, vS + k))
        for r in range(4):
            a("v_mov_b32 v%d, %s" % (12 + r, ONES))
        for k in range(8):
            a("v_cvt_pk_bf16_f32 v%d, v%d, v%d" % (vP + k, vS + 2 * k, vS + 2 * k + 1))
        self.mfma(16, q(vP), q(12), False)
        self.mfma(16, q(vP + 4), q(12), True)
        a("s_mov_b32 vcc_lo, 0x00f0000f", "s_mov_b32 vcc_hi, 0xf0000f00", "v_mov_b32 v%d, 0xff800000" % t,
          "v_cndmask_b32 v7, v%d, v%d, vcc" % (t, mu))
        self.dpp("v_max_f32", 7, 7, 7, "row_ror:4")
        self.dpp("v_max_f32", 7, 7, 7, "row_ror:8")
        a("v_mov_b32 v20, v%d" % vA16, "v_and_b32 v21, 15, v0")
        self.oob_unless(20, 21, "v_cmp_eq_u32 vcc, 0, v21")
        a("v_add_f32 v16, v16, v17", "v_add_f32 v18, v18, v19", "v_add_f32 v23, v16, v18", "v_mov_b32 v22, v7")
        self.st_intra("buffer_store_dwordx2", "v[22:23]", 20, sMLst)

    def ml_finish(self, r, M, z):
        a = self.a
        a("v_max_f32 v%d, v%d, v%d" % (M, r, r + 2))
        for k in (1, 2, 4, 8):
            self.dpp("v_max_f32", M, M, M, "row_ror:%d" % k)
        a("v_sub_f32 v%d, v%d, v%d" % (r, r, M), "v_sub_f32 v%d, v%d, v%d" % (r + 2, r + 2, M), "v_sub_f32 v7, v7, v%d" % M,
          "v_exp_f32 v%d, v%d" % (r, r), "v_exp_f32 v%d, v%d" % (r + 2, r + 2), "v_exp_f32 v7, v7",
          "v_mul_f32 v%d, v%d, v%d" % (z, r, r + 1), "v_fmac_f32 v%d, v%d, v%d" % (z, r + 2, r + 3))
        for k in (1, 2, 4, 8):
            self.dpp("v_add_f32", z, z, z, "row_ror:%d" % k)
        a("v_rcp_f32 v%d, v%d" % (z, z), "v_mul_f32 v7, v7, v%d" % z)

    def pvar(self, p, buf):
        idx = ORDER.index(p)
        G, t = idx >> 2, idx & 3
        if t == 0:
            return [], vP + 4 * G
        d = vPV + 4 * buf
        return ["v_mov_b32_dpp v%d, v%d quad_perm:[%d,%d,%d,%d] row_mask:0xf bank_mask:0xf" % (d + r, vP + 4 * G + r, t, t, t, t)
                for r in range(4)], d

    def pv_group(self, p, A, first, fill=(), lgkm=None):
        fill = list(fill)
        base = vVR + 32 * p if p < 5 else vVF
        for i in range(8):
            if lgkm is not None:
                self.a("s_waitcnt lgkmcnt(%d)" % lgkm(i))
            self.mfma(vO + 4 * i, q(A), q(base + 4 * i), not first)
            for _ in range(2):
                if fill:
                    self.a(fill.pop(0))
        self.a(*fill)

    def lds_group_reads(self, p):
        return ["ds_read_b64_tr_b16 %s, v%d offset:%d" % (q(vVF + 4 * i + 2 * h, 2), vAI + i, (SLOT[p] + h) * 4096)
                for i in range(8) for h in range(2)]

    def w_tiles(self, kinds, va, t):
        a = self.a
        self.sexpr(100, L_WQ, (sw, 32))
        last = None
        for kind, dst in kinds:
            qs = 10 if kind == "d" else 12
            if qs != last:
                self.lin(va, t, (4, 2, qs), (2, 2, 7), (0, 2, 3))
                a("v_add_u32 v%d, s100, v%d" % (va, va))
                last = qs
            base = {"q": L_WQ, "g": L_WG, "d": L_WD}[kind] - L_WQ
            for kb in range(2 if kind == "d" else 4):
                for h in range(2):
                    a("ds_read_b64_tr_b16 %s, v%d offset:%d" % (q(dst + 4 * kb + 2 * h, 2), va,
                                                                  base + kb * (4096 if kind == "d" else 1024) + h * 512))

    def gemv4(self, x, W, out):
        for kb in range(4):
            self.mfma(vD + 4 * kb, q(x), q(W + 4 * kb), False)
        self.a("v_add_f32 v%d, v%d, v%d" % (out, vD, vD + 5), "v_add_f32 v%d, v%d, v%d" % (out, out, vD + 10),
               "v_add_f32 v%d, v%d, v%d" % (out, out, vD + 15))

    def colsum_pub(self, W, ones, d, va, t, off, *terms):
        a = self.a
        for r in range(4):
            a("v_mov_b32 v%d, %s" % (ones + r, ONES))
        for kb in range(4):
            self.mfma(d, q(ones), q(W + 4 * kb), kb > 0)
        a("v_mov_b32 v%d, v%d" % (va, vA16))
        self.oob_unless(va, t, "v_cmp_gt_u32 vcc, 16, v0")
        self.sexpr(100, off, (sCS, 1), (sb, 4), (sw, 256), *terms)
        return a("buffer_store_dword v%d, v%d, %s, s100 offen sc1" % (d, va, srd(sWS)))

    def colsum_ld(self, r, va, off, sel):
        self.sexpr(100, off, (sCS, 1), (sel, 2048))
        return [self.ld(r, va, 100, 0), self.ld(r + 4, va, 100, 16)]

    def colsum_fin(self, r, c):
        for k in range(2):
            b = r + 4 * k
            self.a("v_add_f32 v%d, v%d, v%d" % (b, b, b + 1), "v_add_f32 v%d, v%d, v%d" % (b + 2, b + 2, b + 3),
                   "v_add_f32 v%d, v%d, v%d" % (b, b, b + 2), "v_mul_f32 v%d, %s, v%d" % (c + k, f32(-1.0 / 512), b))

    def stats(self, x, t, att):
        a = self.a
        s1, s2 = t, t + 1
        a("s_mov_b32 s100, %s" % ONES)
        for k in range(4):
            a("v_dot2_f32_bf16 v%d, v%d, s100, %s" % (s1, x + k, "v%d" % s1 if k else "0"),
              "v_dot2_f32_bf16 v%d, v%d, v%d, %s" % (s2, x + k, x + k, "v%d" % s2 if k else "0"))
        a("v_permlane32_swap_b32 v%d, v%d" % (s1, s2), "v_add_f32 v%d, v%d, v%d" % (s1, s1, s2))
        for k in (1, 2, 4, 8):
            self.dpp("v_add_f32", s1, s1, s1, "row_ror:%d" % k)
        self.dpp("v_add_f32", s1, s1, s1, "row_bcast:15", "0xa")
        a("v_readlane_b32 s%d, v%d, 31" % (sS1, s1), "v_mul_f32 v%d, %s, v%d" % (s1, f32(1.0 / 512), s1),
          "v_mov_b32 v%d, s%d" % (s2, sS1), "v_mul_f32 v%d, %s, v%d" % (s2, f32(1.0 / 512), s2),
          "v_fma_f32 v%d, -v%d, v%d, v%d" % (s1, s2, s2, s1), "v_max_f32 v%d, 0, v%d" % (s1, s1),
          "v_add_f32 v%d, %s, v%d" % (s1, f32(1e-5), s1))
        if att:
            a("v_rsq_f32 v%d, v%d" % (s1, s1), "v_mul_f32 v%d, %s, v%d" % (s1, f32(SCALE), s1))
        else:
            a("v_rcp_f32 v%d, v%d" % (s1, s1), "s_nop 0")
        a("v_readlane_b32 s%d, v%d, 63" % (sSC, s1))

    def sum4_init(self, acc, c):
        self.a("v_mul_f32 v%d, s%d, v%d" % (acc, sS1, c), "v_mul_f32 v%d, s%d, v%d" % (acc + 1, sS1, c + 1))

    def sum4(self, x, acc):
        for k in range(4):
            self.a("v_dot2_f32_bf16 v%d, v%d, s%d, v%d" % (acc, x + k, sLO, acc),
                   "v_dot2_f32_bf16 v%d, v%d, s%d, v%d" % (acc + 1, x + k, sHI, acc + 1))

    def q_addrs(self, vw, vr, t):
        self.sexpr(100, L_Q, (sw, QSTR))
        self.a("v_lshl_add_u32 v%d, v0, 2, s100" % vw, "v_bfe_u32 v%d, v0, 2, 2" % vr, "v_mul_u32_u24 v%d, %d, v%d" % (vr, QSTR, vr),
               "v_and_b32 v%d, 48, v0" % t, "v_add_u32 v%d, v%d, v%d" % (vr, vr, t), "v_add_u32 v%d, 0x%x, v%d" % (vr, L_Q, vr))

    def q_assemble(self, x, acc, vw, vr):
        a = self.a
        self.sum4(x, acc)
        a("v_cvt_pk_bf16_f32 v%d, v%d, v%d" % (acc, acc, acc + 1), "ds_write_b32 v%d, v%d" % (vw, acc),
          "s_waitcnt lgkmcnt(0)", "s_barrier")
        for st in range(4):
            a("ds_read_b128 %s, v%d offset:%d" % (q(vQ + 4 * st), vr, st * 64))

    def next_region(self):
        for r in (sWS, sWF, sWL):
            self.a("s_add_u32 s%d, s%d, 0x%x" % (r, r, LS), "s_addc_u32 s%d, s%d, 0" % (r + 1, r + 1))
        self.a("s_sub_u32 s%d, s%d, 0x%x" % (sCS, sCS, LS))

    def leader_fill(self):
        a = self.a
        self.mk_srd(sWS, 26, "0x%x" % WS_SIZE)
        self.mk_srd(sDBG, 24, "256")
        a("v_mov_b32 v8, -1", "v_mov_b32 v9, -1", "v_mov_b32 v10, -1", "v_mov_b32 v11, -1",
          "s_or_b32 s%d, s%d, s%d" % (slead, sj, sw), "s_cmp_eq_u32 s%d, 0" % slead, "s_cbranch_scc0 L_nolead0")
        tk = a.mark()
        a("s_lshl_b32 s100, s%d, 17" % sg, "buffer_store_dwordx4 v[8:11], v%d, %s, s100 offen sc1" % (vA16, srd(sWS)), "L_nolead0:")
        a.uncounted(tk)
        self.tok_lead = tk

    def leader_flag(self, word, name, tok=None):
        a = self.a
        a("s_cmp_eq_u32 s%d, 0" % slead, "s_cbranch_scc0 " + name)
        if tok is not None:
            a.wait_vm(tok)
        tk = a.mark()
        a("v_mov_b32 v53, 1", "v_lshlrev_b32 v54, 8, v0", "s_lshl_b32 s100, s%d, 2" % sg,
          "buffer_store_dword v53, v54, %s, s100 offen offset:%d sc1" % (srd(sDBG), word), name + ":")
        a.uncounted(tk)

    def flag_load(self, v, word, own):
        a = self.a
        if own:
            a("s_lshl_b32 s100, s%d, 2" % sg, "v_mov_b32 v%d, s100" % v)
        else:
            a("v_and_b32 v%d, 7, v0" % v, "v_lshlrev_b32 v%d, 2, v%d" % (v, v))
        return a("buffer_load_dword v%d, v%d, %s, 0 offen offset:%d sc1" % (v, v, srd(sDBG), word))

    def flag_check(self, v, word, own, tok, name):
        a = self.a
        a.wait_vm(tok)
        tk = a.mark()
        a("s_branch %s_c" % name, name + "_s:", "s_sleep 8")
        self.flag_load(v, word, own)
        a("s_add_u32 s%d, s%d, 1" % (sspin, sspin), "s_cmp_lt_u32 s%d, 0x%x" % (sspin, SPIN_LIMIT), "s_waitcnt vmcnt(0)",
          "s_cbranch_scc0 %s_d" % name, name + "_c:", "v_cmp_eq_u32 vcc, 0, v%d" % v, "s_cbranch_vccnz %s_s" % name, name + "_d:")
        a.uncounted(tk)

    def fill_addrs(self, v1, v2, t, region, cross):
        a = self.a
        self.sexpr(100, (1 - region) * LS, (sg, 1 << 17), (sj, 2560), (sw, 640))
        a("v_add_u32 v%d, s100, v%d" % (v1, vA16))
        self.oob_unless(v1, t, "v_cmp_gt_u32 vcc, 40, v0")
        self.sexpr(100, (2 - region) * LS, (sg, 1 << 17), (sj, 2048), (sw, 512))
        a("v_add_u32 v%d, s100, v%d" % (v2, vA16), "v_cmp_gt_u32 vcc, 32, v0")
        if cross:
            a("s_lshr_b32 s%d, s%d, 1" % (stmp, sw), "s_and_b32 s%d, s%d, 1" % (sclr, sw))
            self.sexpr(100, (1 - region) * LS + OFF_B - 512, (stmp, LS), (2, 1024), (sclr, 512))
            a("v_add_u32 v%d, s100, v%d" % (t, vA16))
        else:
            a("v_mov_b32 v%d, 0x%x" % (t, OOB))
        a("v_cndmask_b32 v%d, v%d, v%d, vcc" % (v2, t, v2))

    def prologue(self):
        a = self.a
        if self.stamps:
            a("s_memrealtime s[92:93]")
        a("s_cmp_ge_u32 s2, 256", "s_cbranch_scc1 L_end",
          "s_load_dwordx16 s[4:19], s[0:1], 0", "s_load_dwordx8 s[20:27], s[0:1], 64",
          "v_lshrrev_b32 v1, 6, v0", "v_and_b32 v0, 63, v0", "v_readfirstlane_b32 s%d, v1" % sw,
          "s_and_b32 s%d, s2, 7" % sg, "s_lshr_b32 s%d, s2, 3" % sj, "s_lshr_b32 s%d, s2, 6" % sb,
          "s_and_b32 s%d, s%d, 7" % (ss, sj), "s_lshl_b32 s%d, s%d, 2" % (su, ss), "s_add_u32 s%d, s%d, s%d" % (su, su, sw),
          "s_lshl_b32 s%d, s%d, 12" % (su, su),
          "s_lshl_b32 s100, s%d, 3" % sb, "s_add_u32 s100, s100, s%d" % sg,
          "s_mul_i32 s%d, s100, %d" % (srot, self.rotg), "s_lshl_b32 s100, s100, 21",
          "s_mul_i32 s%d, s%d, %d" % (sring, sw, RING))
        a("v_lshrrev_b32 v5, 4, v0", "v_and_b32 v6, 15, v0", "v_xor_b32 v7, v5, v6", "v_lshlrev_b32 v7, 4, v7",
          "v_lshl_add_u32 v%d, v5, 8, v7" % vKS)
        for jj in range(1, 4):
            a("v_xor_b32 v%d, %d, v%d" % (vKS + jj, jj << 6, vKS))
        a("s_mov_b32 s%d, 0x200000" % (sK + 2), "s_mov_b32 s%d, 0x20000" % (sK + 3), "s_waitcnt lgkmcnt(0)",
          "s_add_u32 s%d, s6, s100" % sK, "s_addc_u32 s%d, s7, 0" % (sK + 1))
        self.tok, self.ltok, self.wtok = {}, [], {}
        self.tile_issue(0)
        self.tile_issue(1)
        a("s_add_u32 s%d, s8, s100" % sV, "s_addc_u32 s%d, s9, 0" % (sV + 1),
          "s_mov_b32 s%d, 0x200000" % (sV + 2), "s_mov_b32 s%d, 0x20000" % (sV + 3))
        a("v_lshl_add_u32 v%d, v6, 8, v7" % vKR, "v_add_u32 v%d, s%d, v%d" % (vKR, sring, vKR))
        for st in range(1, 4):
            a("v_xor_b32 v%d, %d, v%d" % (vKR + st, st << 6, vKR))
        a("v_lshlrev_b32 v%d, 4, v0" % vA16)
        if self.stamps:
            a("v_mov_b32 v4, 0", "v_writelane_b32 v4, s92, 0")
            self.nst = 1
            self.stamp_names.append("entry")
        self.stamp("start")

    def setup_a(self):
        a = self.a
        self.mk_srd(sXI, 4, "4096")
        self.lin(6, 7, (4, 2, 6), (2, 2, 10), (0, 2, 4))
        self.lin(5, 7, (5, 1, 10), (4, 1, 11), (0, 4, 1))
        a("s_lshl_b32 s100, s%d, 8" % sb, "s_lshl_b32 s101, s%d, 10" % sb, "s_lshl_b32 s%d, s%d, 5" % (stmp, sj),
          "buffer_load_dwordx4 %s, v6, %s, s100 offen" % (q(vX), srd(sXI)),
          "buffer_load_dwordx4 %s, v%d, %s, s101 offen" % (q(vX + 4), vA16, srd(sXI)),
          "buffer_load_ushort v%d, v5, %s, s%d offen" % (vRES, srd(sXI), stmp))
        self.fill_addrs(12, 13, 14, 0, True)
        if not self.noclear:
            a("buffer_store_dwordx4 v[8:11], v12, %s, 0 offen sc1" % srd(sWS), "buffer_store_dwordx4 v[8:11], v13, %s, 0 offen sc1" % srd(sWS))
        self.tok_pro = a.mark()

    def setup_b(self):
        a = self.a
        self.mk_srd(sWF, 26, "0")
        self.mk_srd(sWL, 26, "0x%x" % WS_SIZE)
        self.mk_srd(sOUT, 22, "4096")
        G = (sg, 1 << 17)
        self.sexpr(sCS, 2 * LS, G)
        self.sexpr(sEst, OFF_E, G, (ss, 512), (sw, 128), (sb, 4))
        self.sexpr(sEld, OFF_E, G, (sb, 4096), (sw, 1024))
        self.sexpr(sMLld, OFF_ML, G, (sb, 1024))
        a("s_lshr_b32 s%d, s%d, 9" % (sMLst, su), "s_add_u32 s%d, s%d, s%d" % (sMLst, sMLst, sMLld),
          "s_mov_b32 s%d, 0" % slayer, "s_mov_b32 s%d, 0" % sspin, "s_mov_b32 s%d, -2" % scmp,
          "s_mov_b32 s%d, 0x3f80" % sLO, "s_mov_b32 s%d, 0x3f800000" % sHI,
          "s_and_b32 s100, s%d, 3" % ss, "s_cmp_eq_u32 s100, 3", "s_cselect_b32 s%d, 0, 1" % sact,
          "s_cmp_eq_u32 s%d, 3" % sb, "s_cselect_b32 s100, 0, 2", "s_or_b32 s%d, s%d, s100" % (sact, sact),
          "s_bitcmp1_b32 s%d, 0" % sg, "s_cselect_b32 s%d, s%d, 3" % (sact, sact))

    def setup_c(self):
        a = self.a
        G = (sg, 1 << 17)
        a("s_lshr_b32 s%d, s%d, 2" % (stmp, ss), "s_and_b32 s100, s%d, 3" % ss)
        self.sexpr(sAst, OFF_A, G, (sw, 8192), (stmp, 1024), (sb, 64), (100, 16))
        self.sexpr(sCst, OFF_C, G, (100, 4096), (stmp, 512), (sw, 128), (sb, 4))
        self.sexpr(sAld, OFF_A, G, (sb, 8192), (sw, 2048))
        self.sexpr(sCld, OFF_C, G, (sb, 4096), (sw, 1024))
        self.sexpr(sBst, OFF_B, (su, 1), (sg, 512), (sb, 128))
        self.sexpr(sBld, OFF_B, (sj, 4096))
        a("s_lshr_b32 s%d, s%d, 1" % (stmp, sj), "s_and_b32 s100, s%d, 1" % sj)
        self.sexpr(sXst, OFF_XB, G, (stmp, 256), (100, 32))
        self.sexpr(sXld, OFF_XB, G, (sb, 1024))
        self.sexpr(sRow, OFF_XB, G)
        for k, m in enumerate((0x22222222, 0x44444444, 0x88888888)):
            a("s_mov_b32 s%d, 0x%x" % (sM1 + 2 * k, m), "s_mov_b32 s%d, 0x%x" % (sM1 + 2 * k + 1, m))
        self.lin(vTRV, 7, (2, 4, 8), (2, 3, 5), (0, 2, 3))
        a("v_add_u32 v%d, s%d, v%d" % (vTRV, sring, vTRV))

    def part_off(self, v, t, bs, cmp="0"):
        self.lin(v, t, (4, 2, bs), (0, 4, 3))
        self.even_only(v, t, cmp)

    def stream(self):
        a = self.a
        tb, lag = self.tbar, self.lag
        wl = {}
        for kind, ts in (("q", self.tq), ("g", self.tg), ("d", self.td), ("o", self.to)):
            for k, T in enumerate(ts):
                wl.setdefault(T, []).append((kind, k))
        tq1 = max(self.tq[-1] + 2, 4)
        tqk = max(tb + 4, 16 + lag)
        assert self.tg[-1] + 2 <= tb + 4 and tq1 + 3 <= tb
        pvat = {}
        for p in range(5):
            pvat.setdefault(max(tqk + 3 + (p >> 1), 17 + 2 * p + lag), []).append(p)
        vF = 94
        xcc_ld = self.ld(vF, vF + 1, 101, n=1)
        qk = None
        for T in range(1, 32):
            if T == 16:
                a("v_lshrrev_b32 v7, 4, v0", "v_lshlrev_b32 v5, 1, v7", "v_and_b32 v6, 15, v0", "v_xor_b32 v5, v5, v6",
                  "v_lshlrev_b32 v5, 4, v5", "v_lshl_add_u32 v5, v7, 8, v5", "v_xor_b32 v6, 128, v5")
                self.mk_ai()
            between = None
            if T in (tqk + 1, tqk + 2):
                def between(jj):
                    for _ in range(2):
                        qk.pop(0)()
            if T > 1:
                self.tile_issue(T, between)
            if T == 1:
                self.leader_fill()
            for kind, k in wl.get(T, []):
                self.weight_load(kind, k, T)
            if self.stamps is not True and T > 1:
                self.stamp("T%02d" % T)
            if T == 1:
                self.setup_a()
            if lag <= T < 26 + lag:
                self.tile_consume(T - lag)
            if T == 2:
                self.setup_b()
                self.leader_flag(128, "L_nolead1", self.tok_lead)
            if T == 3:
                self.setup_c()
            if T == tq1:
                a.wait_vm(max(self.wtok["q"], self.tok_pro))
                a("s_barrier")
                self.w_tiles([("q", vWQ)], 5, 7)
                a("v_lshlrev_b32 v%d, 16, v%d" % (vRES, vRES))
                self.stats(vX + 4, 8, True)
                self.part_off(6, 7, 12)
                a("s_waitcnt lgkmcnt(0)")
                self.gemv4(vX, vWQ, 8)
                self.pack_pairs(9, 8)
                a("buffer_store_dword v9, v6, %s, s%d offen sc1" % (srd(sWS), sEst))
                self.colsum_pub(vWQ, 12, 16, 10, 11, OFF_CSQ, (ss, 1024))
                tok_f0 = self.flag_load(vF, 128, True)
            if T == tq1 + 2:
                self.flag_check(vF, 128, True, tok_f0, "L_f0")
                a("s_barrier",
                  "s_getreg_b32 s100, hwreg(HW_REG_XCC_ID, 0, 4)", "v_mov_b32 v14, s100", "v_add_u32 v15, s%d, v0" % sw,
                  "v_lshlrev_b32 v15, 24, v15")
                self.sexpr(100, 0, (sg, 1 << 17), (sj, 16))
                a("buffer_store_dword v14, v15, %s, s100 offen sc1" % srd(sWS))
                self.stamp("arrive")
            if T == tb:
                a("v_and_b32 v%d, 0x1f0, v%d" % (vF + 1, vA16), "s_lshl_b32 s101, s%d, 17" % sg)
                tok_x = a(xcc_ld)
            if T == tb + 2:
                a.wait_vm(tok_x)
                self.check_or_poll([xcc_ld], [[vF]], 7, "xcc", ["s_lshl_b32 s101, s%d, 17" % sg])
                a("v_lshlrev_b32 v7, 5, v0")
                a(*self.colsum_ld(68, 7, OFF_CSQ, sw))
                tok_q = a(self.ld(64, vA16, sEld))
                self.leader_flag(160, "L_nolead2")
                if not self.force_slow:
                    a("s_getreg_b32 s100, hwreg(HW_REG_XCC_ID, 0, 4)", "v_cmp_ne_u32 vcc, s100, v%d" % vF, "s_cmp_eq_u64 vcc, 0",
                      "s_cselect_b32 s%d, 0x%x, 0" % (sWF + 2, WS_SIZE), "s_cselect_b32 s%d, 0, 0x%x" % (sWL + 2, WS_SIZE))
                self.stamp("barrier")
            if T == tqk:
                a.wait_vm(max(tok_q, self.wtok["g"]))
                self.colsum_fin(68, 76)
                self.sum4_init(78, 76)
                self.q_addrs(80, 81, 7)
                self.q_assemble(64, 78, 80, 81)
                self.w_tiles([("g", 64)], 80, 7)
                a("s_waitcnt lgkmcnt(0)", "s_lshr_b32 s%d, s%d, 2" % (stmp, ss), "s_and_b32 s%d, s%d, 3" % (sclr, ss))
                self.colsum_pub(64, 84, 88, 82, 7, OFF_CSG, (sclr, 2048), (stmp, 1024))
                self.next_region()
                qk = self.qk_chunks()
            if T == tqk + 2:
                while qk:
                    qk.pop(0)()
                self.softmax()
                self.stamp("softmax1")
            for p in pvat.get(T, ()):
                mv, A = self.pvar(p, 0)
                a(*mv)
                a("s_waitcnt lgkmcnt(0)")
                self.pv_group(p, A, p == 0)
            if T == 26:
                a(self.ld(8, vA16, sMLld))
                self.fill_addrs(20, 21, 22, 1, self.warm_cross)
                a("buffer_load_dwordx4 v[16:19], v20, %s, 0 offen sc1" % srd(sWS), "buffer_load_dwordx4 v[16:19], v21, %s, 0 offen sc1" % srd(sWS))
                tok_warm = self.flag_load(22, 160, False)
        self.stamp("issued")
        self.flag_check(22, 160, False, tok_warm, "L_f1")
        self.check_or_poll([self.ld(8, vA16, sMLld)], [range(8, 12)], 12, "ml1")
        self.ml_finish(8, 12, 13)
        for p in (5, 6, 7):
            mv, A = self.pvar(p, p & 1)
            a(*mv)
            self.tile_consume(16 + 2 * p)
            self.tile_consume(17 + 2 * p)
            self.pv_group(p, A, False, lgkm=lambda i: 7 - i)
        a("s_mov_b32 s%d, 1" % slayer)
        self.stamp("pv1")

    def reduce_x(self, name, va, soff):
        a = self.a
        self.poll([self.ld(vX + 4 * i, va, soff, i * 1024) for i in range(4)], [range(vX + 4 * i, vX + 4 * i + 4) for i in range(4)], 7, name)
        for i in range(4):
            self.mfma(vD, q(vX + 4 * i), q(vSEL), i > 0)
        a("s_mov_b32 vcc_lo, 0xff00ff00", "s_mov_b32 vcc_hi, 0xff00ff00",
          "v_cndmask_b32 v%d, v%d, v%d, vcc" % (vD, vD, vD + 1), "v_cndmask_b32 v%d, v%d, v%d, vcc" % (vD + 2, vD + 2, vD + 3),
          "v_permlane32_swap_b32 v%d, v%d" % (vD, vD + 2), "v_add_f32 v%d, v%d, v%d" % (vRES, vRES, vD),
          "v_add_f32 v%d, v%d, v%d" % (vRES, vRES, vD + 2))
        self.pack_pairs(7, vRES)

    def chain(self):
        a = self.a
        a("L_tail:")
        self.lin(5, 6, (4, 2, 11), (0, 4, 4))
        self.sexpr(100, L_SCR, (sw, 512))
        a("v_add_u32 v5, s100, v5")
        for i in range(8):
            a("v_mul_f32 v%d, v7, v%d" % (8 + i, vO + 4 * i))
        a("ds_write_b128 v5, v[8:11]", "ds_write_b128 v5, v[12:15] offset:256")
        self.lin(6, 17, (2, 4, 4), (1, 1, 8), (0, 1, 3))
        self.sexpr(stmp, L_SCR, (sw, 2048))
        a("v_add_u32 v6, s%d, v6" % stmp, "s_waitcnt vmcnt(0) lgkmcnt(0)", "s_barrier")
        for src in range(4):
            a("ds_read_b64 %s, v6 offset:%d" % (q(8 + 2 * src, 2), src * 512))
        self.lin(17, 16, (4, 2, 11), (2, 2, 8), (0, 2, 2))
        a("s_waitcnt lgkmcnt(2)", "v_add_f32 v8, v8, v10", "v_add_f32 v9, v9, v11",
          "s_waitcnt lgkmcnt(0)", "v_add_f32 v12, v12, v14", "v_add_f32 v13, v13, v15",
          "v_add_f32 v8, v8, v12", "v_add_f32 v9, v9, v13", "v_cvt_pk_bf16_f32 v8, v8, v9")
        self.st_intra("buffer_store_dword", "v8", 17, sAst)
        self.stamp("Apub", True)
        self.lin(5, 6, (2, 2, 9), (4, 2, 7), (0, 2, 3))
        self.sexpr(100, L_WO, (sw, 4096))
        a("v_add_u32 v5, s100, v5")
        for t in range(4):
            for h in range(2):
                a("ds_read_b64_tr_b16 %s, v5 offset:%d" % (q(24 + 4 * t + 2 * h, 2), h * 2048 + t * 32))
        self.sexpr(100, L_SCR, (sw, 4))
        a("v_add_u32 v5, s%d, v%d" % (stmp, vA16), "v_add_u32 v6, s100, v%d" % vA16, "v_lshlrev_b32 v95, 1, v0")
        self.even_only(95, 19)
        a("s_waitcnt lgkmcnt(0)")
        self.poll([self.ld(8 + 4 * h, vA16, sAld, h * 1024) for h in range(2)], [range(8, 12), range(12, 16)], 7, "pollA")
        for t in range(4):
            self.mfma(40 + 4 * t, q(8), q(24 + 4 * t), False)
            self.mfma(40 + 4 * t, q(12), q(24 + 4 * t), True)
        for t in range(4):
            d = 40 + 4 * t
            a("v_add_f32 v%d, v%d, v%d" % (d, d, d + 1), "v_add_f32 v%d, v%d, v%d" % (d + 2, d + 2, d + 3),
              "v_add_f32 v%d, v%d, v%d" % (20 + t, d, d + 2))
        a("ds_write_b128 v5, v[20:23]", "s_waitcnt lgkmcnt(0)", "s_barrier",
          "ds_read2st64_b32 v[8:9], v6 offset0:0 offset1:8", "ds_read2st64_b32 v[10:11], v6 offset0:16 offset1:24",
          "s_waitcnt lgkmcnt(1)", "v_add_f32 v8, v8, v9", "s_waitcnt lgkmcnt(0)", "v_add_f32 v10, v10, v11", "v_add_f32 v8, v8, v10")
        self.pack_pairs(7, 8)
        a("buffer_store_dword v7, v95, %s, s%d offen sc1" % (srd(sWS), sBst))
        self.stamp("Bpub", True)
        a("v_lshlrev_b32 v7, 5, v0")
        a(*self.colsum_ld(vX, 7, OFF_CSG, sb))
        a(*self.colsum_ld(vX + 8, 7, OFF_CSQ, sw))
        self.w_tiles([("g", vWG), ("q", vWQ), ("d", vWD)], 5, 7)
        a("v_and_b32 v5, 1, v0", "v_lshlrev_b32 v5, 4, v5", "v_lshlrev_b32 v5, v5, s%d" % sLO, "v_bfe_u32 v6, v0, 1, 2")
        for r in range(4):
            a("v_cmp_eq_u32 vcc, %d, v6" % r, "v_cndmask_b32 v%d, 0, v5, vcc" % (vSEL + r))
        self.lin(94, 7, (5, 1, 6), (4, 1, 7), (0, 4, 1))
        self.even_only(94, 7)
        self.lin(93, 7, (2, 4, 8), (0, 2, 4))
        a("s_bitcmp1_b32 s%d, 0" % sact, "s_cselect_b32 s%d, 0, -1" % stmp)
        self.part_off(92, 7, 10, "s%d" % stmp)
        self.part_off(91, 7, 12)
        a("s_waitcnt vmcnt(0) lgkmcnt(0)")
        self.colsum_fin(vX, vCG)
        self.colsum_fin(vX + 8, vCQ)
        a("s_cmp_eq_u32 s%d, 0" % sw, "s_cbranch_scc0 L_nored1")
        self.reduce_x("pollB", vA16, sBld)
        self.st_intra("buffer_store_dword", "v7", 94, sXst)
        a("v_lshlrev_b32 v%d, 16, v7" % vRES)
        self.stamp("XBpub", True)
        a("L_nored1:", "s_barrier")
        self.poll([self.ld(vX, vA16, sXld)], [range(vX, vX + 4)], 7, "pollXB")
        self.gemv4(vX, vWG, 7)
        self.pack_pairs(6, 7)
        self.st_intra("buffer_store_dword", "v6", 92, sCst)
        self.stamp("Cpub", True)
        a("s_bitcmp1_b32 s%d, 1" % sact, "s_cbranch_scc0 L_nod")
        self.sexpr(stmp, 0, (sRow, 1), (sw, 64))
        self.poll([self.ld(vX + 4, 93, stmp)], [range(vX + 4, vX + 8)], 7, "rowB")
        self.stats(vX + 4, vD, False)
        self.sum4_init(vD, vCG)
        self.lin(5, 7, (0, 5, 2), (5, 1, 1))
        self.sexpr(100, L_H, (sw, 128))
        a("v_add_u32 v5, s100, v5")
        self.lin(6, 7, (2, 2, 7), (0, 1, 6), (4, 2, 4))
        a("v_add_u32 v6, 0x%x, v6" % L_H, "s_add_u32 s%d, s%d, 0x%x" % (stmp, sBst, OFF_D - OFF_B))
        self.poll([self.ld(vX, vA16, sCld)], [range(vX, vX + 4)], 7, "pollC")
        self.sum4(vX, vD)
        a("v_permlane32_swap_b32 v%d, v%d" % (vD, vD + 1), "v_mul_f32 v%d, s%d, v%d" % (vD, sSC, vD),
          "v_mul_f32 v%d, v%d, v%d" % (vD, vD, vD + 1), "v_cvt_pk_bf16_f32 v%d, v%d, v%d" % (vD, vD, vD),
          "ds_write_b16 v5, v%d" % vD, "s_waitcnt lgkmcnt(0)", "s_barrier", "ds_read_b128 %s, v6" % q(vX), "s_waitcnt lgkmcnt(0)")
        for kb in range(2):
            self.mfma(vD + 4 * kb, q(vX), q(vWD + 4 * kb), False)
        a("v_add_f32 v7, v%d, v%d" % (vD, vD + 5))
        self.pack_pairs(6, 7)
        a("buffer_store_dword v6, v95, %s, s%d offen sc1" % (srd(sWS), stmp))
        self.stamp("Dpub", True)
        a("L_nod:")
        a("s_lshr_b32 s100, s%d, 2" % sj, "s_xor_b32 s100, s100, s%d" % sg, "s_or_b32 s100, s100, s%d" % sw,
          "s_cmp_eq_u32 s100, 0", "s_cselect_b32 s100, 1, s%d" % slayer, "s_cmp_eq_u32 s100, 2", "s_cbranch_scc1 L_fin",
          "s_cmp_eq_u32 s%d, 0" % sw, "s_cbranch_scc0 L_nored2",
          "s_add_u32 s%d, s%d, 0x%x" % (stmp, sBld, OFF_D - OFF_B), "s_add_u32 s%d, s%d, 0x%x" % (sclr, sXst, OFF_XD - OFF_XB),
          "v_mov_b32 v5, v%d" % vA16)
        self.oob_unless(5, 7, "v_cmp_gt_u32 vcc, 56, v0")
        self.lin(6, 7, (5, 1, 10), (4, 1, 11), (0, 4, 1))
        self.even_only(6, 7)
        self.reduce_x("pollD", 5, stmp)
        a("s_cmp_eq_u32 s%d, 2" % slayer, "s_cbranch_scc1 L_out")
        self.st_intra("buffer_store_dword", "v7", 94, sclr)
        a("v_lshlrev_b32 v%d, 16, v7" % vRES)
        self.stamp("XDpub")
        a("L_nored2:", "s_add_u32 s%d, s%d, 0x%x" % (stmp, sXld, OFF_XD - OFF_XB), "s_barrier")
        self.poll([self.ld(vX, vA16, stmp)], [range(vX, vX + 4)], 7, "pollXD")
        self.gemv4(vX, vWQ, 7)
        self.pack_pairs(6, 7)
        self.st_intra("buffer_store_dword", "v6", 91, sEst)
        self.stamp("Epub")
        self.sexpr(stmp, OFF_XD - OFF_XB, (sRow, 1), (sb, 64))
        self.poll([self.ld(64, 93, stmp)], [range(64, 68)], 7, "rowD")
        self.stats(64, vD, True)
        self.sum4_init(vD, vCQ)
        self.q_addrs(5, 6, 7)
        self.mk_ai()
        self.poll([self.ld(64, vA16, sEld)], [range(64, 68)], 7, "pollE")
        self.stamp("Eget")
        self.q_assemble(64, vD, 5, 6)
        self.next_region()
        a("s_waitcnt lgkmcnt(0)")
        for c in self.qk_chunks():
            c()
        self.softmax()
        mv, A = self.pvar(ORDER[0], 0)
        for n, p in enumerate(ORDER):
            fill = []
            if n < 7:
                mv, An = self.pvar(ORDER[n + 1], (n + 1) & 1)
                fill += mv
                if ORDER[n + 1] >= 5:
                    fill = self.lds_group_reads(ORDER[n + 1]) + fill
            if p >= 5:
                a("s_waitcnt lgkmcnt(0)")
            if n == 4:
                a(self.ld(vP, vA16, sMLld))
            self.pv_group(p, A, n == 0, fill)
            if n == 5:
                a("s_waitcnt vmcnt(0)")
                self.check_or_poll([self.ld(vP, vA16, sMLld)], [range(vP, vP + 4)], 5, "ml2")
                self.ml_finish(vP, 5, 6)
            A = An
        a("s_mov_b32 s%d, 2" % slayer)
        self.stamp("pv2")
        a("s_branch L_tail")
        a("L_out:", "s_lshl_b32 s100, s%d, 5" % sj, "buffer_store_dword v7, v6, %s, s100 offen" % srd(sOUT))
        a("L_fin:")
        if self.stamps:
            self.stamp("end")
            a("s_lshl_b32 s100, s2, 2", "s_add_u32 s100, s100, s%d" % sw, "s_lshl_b32 s100, s100, 7",
              "s_add_u32 s100, s100, 0x%x" % (STAMP_OFF - 2 * LS), "s_mov_b32 s%d, 0x1000000" % (sWS + 2),
              "v_writelane_b32 v4, s%d, 30" % sspin, "v_writelane_b32 v4, s%d, 31" % (sWF + 2),
              "v_lshlrev_b32 v9, 2, v0", "v_cmp_gt_u32 vcc, 32, v0", "s_and_saveexec_b64 s[98:99], vcc",
              "buffer_store_dword v4, v9, %s, s100 offen" % srd(sWS))
            if self.dbgstamps:
                a("v_readlane_b32 s100, v4, 0", "s_not_b32 s100, s100", "v_writelane_b32 v4, s100, 15",
                  "v_cmp_gt_u32 vcc, 16, v0", "s_and_saveexec_b64 s[98:99], vcc",
                  "buffer_atomic_umax v4, v9, %s, 0 offen sc1" % srd(sDBG))
        a("L_end:", "s_endpgm")

    def build(self):
        self.prologue()
        self.stream()
        self.chain()
        self.a.pad()
        head = open("cdna_kernels/" + KNAME[:-7] + ".s.ref").read().split("; Override launch")[0]
        return (head + "; @launch grid=(256,1,1) block=(256,1,1) lds=163840\n"
                '.amdgcn_target "amdgcn-amd-amdhsa--gfx950"\n.text\n.globl %s\n.p2align 8\n.type %s,@function\n%s:\n' % (KNAME, KNAME, KNAME)
                + self.a.text() +
                '.section .rodata,"a"\n.p2align 6\n.amdhsa_kernel %s\n  .amdhsa_next_free_vgpr 512\n  .amdhsa_next_free_sgpr 102\n'
                "  .amdhsa_accum_offset 256\n  .amdhsa_group_segment_fixed_size 0\n  .amdhsa_kernarg_size 96\n"
                "  .amdhsa_user_sgpr_count 2\n  .amdhsa_user_sgpr_kernarg_segment_ptr 1\n  .amdhsa_system_sgpr_workgroup_id_x 1\n"
                ".end_amdhsa_kernel\n" % KNAME)


if __name__ == "__main__":
    out = sys.argv[1]
    kw = eval("dict(%s)" % (sys.argv[2] if len(sys.argv) > 2 else ""))
    g = Gen(**kw)
    s = g.build()
    open(out, "w").write(s)
    if g.stamps:
        open(out[:-2] + ".names", "w").write("\n".join(g.stamp_names))
```

```python
import re

REG = re.compile(r"^(-?)(?:abs\()?([vas])(?:(\d+)|\[(\d+):(\d+)\])\)?$")
TRANS = ("v_exp_f32", "v_log_f32", "v_rcp_f32", "v_rsq_f32", "v_sqrt_f32", "v_sin_f32", "v_cos_f32")


def regs(tok):
    tok = tok.strip()
    if tok == "vcc":
        return {("s", "vcc")}
    if tok == "exec":
        return {("s", "exec")}
    if tok == "m0":
        return {("s", "m0")}
    m = REG.match(tok)
    if not m:
        return set()
    k = m.group(2)
    if m.group(3) is not None:
        return {(k, int(m.group(3)))}
    return {(k, i) for i in range(int(m.group(4)), int(m.group(5)) + 1)}


class Ins:
    def __init__(self, text):
        self.text = text
        t = text.split(";")[0].strip()
        self.label = t[:-1] if t.endswith(":") else None
        self.op = "" if self.label or t.startswith(".") else t.split()[0]
        self.directive = t.startswith(".")
        rest = t[len(self.op):].strip() if self.op else ""
        parts = [p.strip() for p in rest.split(",")] if rest else []
        mods = ""
        if "quad_perm" in rest:
            i = rest.index("quad_perm")
            mods = rest[i:]
            parts = [p.strip() for p in rest[:i].split(",")]
        ops = []
        for p in parts:
            w = p.split()
            if w:
                ops.append(w[0])
                mods += " " + " ".join(w[1:])
        self.ops, self.mods = ops, mods
        op = self.op
        self.mfma = op.startswith("v_mfma") or op.startswith("v_smfmac")
        self.valu = op.startswith("v_") and not self.mfma
        self.ds = op.startswith("ds_")
        self.vmem = op.startswith("buffer_") or op.startswith("global_")
        self.salu = op.startswith("s_")
        self.dpp = "_dpp" in op or any(k in mods for k in ("quad_perm", "row_", "wave_"))
        self.trans = op.replace("_e32", "").replace("_e64", "") in TRANS
        self.dot = op.startswith("v_dot")
        self.perm = op.startswith("v_permlane")
        self.branch = op.startswith("s_cbranch") or op == "s_branch"
        self.target = ops[0] if self.branch else None
        self.ends = op in ("s_branch", "s_endpgm", "s_setpc_b64")
        self.w, self.r = set(), set()
        self.srcc, self.ab, self.stdata = set(), set(), set()
        R = [regs(o) for o in ops]
        if self.mfma:
            self.w = R[0]
            self.ab = R[1] | R[2]
            if op.startswith("v_smfmac"):
                self.srcc = R[0]
                self.ab |= R[3]
            else:
                self.srcc = R[3]
            self.r = self.ab | self.srcc
            self.passes = 8 if "32x32" in op else 4
            if op.startswith("v_smfmac"):
                self.passes = 8
        elif self.valu:
            self.w = set(R[0])
            self.r = set().union(*R[1:]) if len(R) > 1 else set()
            if self.perm:
                self.w = R[0] | R[1]
                self.r = R[0] | R[1]
            if op.startswith(("v_fmac", "v_dot2c", "v_writelane")) or self.dpp:
                self.r |= R[0]
            if op.startswith("v_cndmask") and len(ops) == 3:
                self.r |= {("s", "vcc")}
        elif self.ds:
            if op.startswith("ds_read") or "bpermute" in op or "swizzle" in op:
                self.w = R[0]
                self.r = set().union(*R[1:])
            else:
                self.r = set().union(*R)
        elif self.vmem:
            lds = " lds" in (" " + mods) or "_lds_" in op
            self.ldsdma = lds
            if lds:
                self.r = set().union(*R) | {("s", "m0")}
            elif "load" in op:
                self.w = R[0]
                self.r = set().union(*R[1:])
            elif op.startswith("buffer_"):
                if R:
                    self.r = set().union(*R)
                    if "x4" in op or "x3" in op:
                        self.stdata = R[0]
                    if "atomic" in op and "sc0" in mods:
                        self.w = R[0]
            else:
                self.r = set().union(*R) if R else set()
        elif self.salu and ops and not self.branch and not op.startswith(("s_cmp", "s_waitcnt", "s_nop", "s_sleep", "s_setprio", "s_bitcmp")):
            self.w = set(R[0])
            self.r = set().union(*R[1:]) if len(R) > 1 else set()
            if "saveexec" in op:
                self.w |= {("s", "exec")}
        elif self.salu:
            self.r = set().union(*R) if R else set()

    def states(self):
        if self.label or self.directive or not self.op:
            return 0
        if self.op == "s_nop":
            return int(self.ops[0], 0) + 1
        return 1


def vec(s):
    return {x for x in s if x[0] in "va"}


def sca(s):
    return {x for x in s if x[0] == "s"}


def need(p, c):
    n = 0
    if p.valu:
        pw = vec(p.w)
        if c.mfma and pw & c.r:
            n = max(n, 3 if p.dot else 2)
        if c.valu and c.dpp and pw & c.r:
            n = max(n, 2)
        if c.perm and pw & c.r:
            n = max(n, 2)
        if c.op.startswith(("v_readlane", "v_readfirstlane")) and pw & c.r:
            n = max(n, 1)
        if p.trans and c.valu and not c.trans and pw & c.r:
            n = max(n, 1)
        if p.trans and (c.ds or c.vmem) and pw & c.r:
            n = max(n, 1)
        if p.dot and pw & (c.r | c.w):
            same_chain = c.op == p.op and len(c.ops) == 4 and not (pw & (regs(c.ops[1]) | regs(c.ops[2])))
            if not same_chain:
                n = max(n, 3)
        if "sdwa" in p.op and c.valu and pw & (c.r | c.w):
            n = max(n, 1)
        ps = sca(p.w)
        if ps & c.r:
            if c.vmem:
                n = max(n, 5)
            elif c.op.startswith(("v_readlane", "v_writelane")):
                n = max(n, 4)
            elif c.valu:
                n = max(n, 2)
            elif c.salu:
                n = max(n, 1)
    if p.mfma:
        t = {4: (6, 8, 3), 8: (10, 12, 7)}[p.passes]
        if c.mfma:
            if p.w & c.ab:
                n = max(n, t[1])
            if p.w & c.srcc and (p.w != c.srcc or p.op != c.op):
                n = max(n, t[0])
            if p.w & c.w and not (p.w & c.srcc):
                n = max(n, t[0])
        elif (c.valu or c.ds or c.vmem) and p.w & (c.r | c.w):
            n = max(n, t[1])
        if c.valu and p.srcc & c.w:
            n = max(n, t[2])
    if p.vmem and p.stdata and p.stdata & c.w:
        n = max(n, 2 if c.valu or c.mfma else 1)
    if p.ds and p.op.startswith("ds_write") and ("b128" in p.op or "b96" in p.op) and c.valu and vec(p.r) & c.w:
        n = max(n, 2)
    if p.salu and ("s", "m0") in p.w and ("s", "m0") in c.r and (c.vmem or c.ds or c.valu):
        n = max(n, 1)
    return n


class Asm:
    def __init__(self):
        self.l = []
        self.vm = 0
        self.nlab = 0

    def __call__(self, *lines):
        for s in lines:
            for t in s.split("\n"):
                t = t.strip()
                if not t:
                    continue
                i = Ins(t)
                self.l.append(i)
                if i.vmem and i.op not in ("buffer_inv", "buffer_wbl2"):
                    self.vm += 1
        return self.vm

    def mark(self):
        return self.vm

    def wait_vm(self, token, lgkm=None):
        n = min(self.vm - token, 63)
        self("s_waitcnt vmcnt(%d)%s" % (n, "" if lgkm is None else " lgkmcnt(%d)" % lgkm))

    def uncounted(self, token):
        self.vm = token

    def lab(self, name):
        self.nlab += 1
        return "L_%s_%d" % (name, self.nlab)

    def pad(self):
        changed = True
        total = 0
        while changed:
            changed = False
            L = self.l
            src = {}
            for k, i in enumerate(L):
                if i.branch:
                    src.setdefault(i.target, []).append(k)
            for k, c in enumerate(L):
                if not c.op or c.op in ("s_nop", "s_waitcnt", "s_barrier"):
                    continue
                worst = 0
                stack = [(k - 1, 0, True)]
                seen = set()
                while stack:
                    j, dist, fall = stack.pop()
                    while j >= 0 and dist < 13:
                        p = L[j]
                        if (j, dist) in seen:
                            break
                        seen.add((j, dist))
                        if p.label:
                            for b in src.get(p.label, []):
                                stack.append((b, dist, False))
                        elif p.ends and fall:
                            break
                        elif p.op:
                            worst = max(worst, need(p, c) - dist)
                            dist += p.states()
                        fall = True
                        j -= 1
                if worst > 0:
                    L.insert(k, Ins("s_nop %d" % (worst - 1)))
                    total += worst
                    changed = True
                    break
        return total

    def text(self):
        return "\n".join((i.text if i.label else "    " + i.text) for i in self.l) + "\n"


def schedule(lines, pre=()):
    ins = [Ins(t) for t in lines]
    n = len(ins)
    for i in ins:
        m = re.search(r"guards=(\S+)", i.text)
        if m:
            i.w = i.w | regs(m.group(1))
            i.r = i.r | regs(m.group(1))
        m = re.search(r"after=(\S+)", i.text)
        if m:
            i.r = i.r | regs(m.group(1))
        if i.op.startswith("s_") and not i.op.startswith(("s_mov", "s_waitcnt", "s_nop")):
            i.w = i.w | {("s", "scc")}
            if i.op.startswith(("s_addc", "s_cselect", "s_subb")):
                i.r = i.r | {("s", "scc")}
        for o in i.ops[:1]:
            if o in ("vcc_lo", "vcc_hi"):
                i.w = i.w | {("s", "vcc")}
                i.r = i.r | {("s", "vcc")}
        m = re.search(r"prio=(-?\d+)", i.text)
        i.bias = int(m.group(1)) if m else 0
        i.cost = 8 if i.mfma or i.trans else 4
    pred = [[] for _ in range(n)]
    for b in range(n):
        B = ins[b]
        for a in range(b):
            A = ins[a]
            lat = None
            if A.w & B.r:
                lat = 100 if A.ds else 300 if A.vmem else A.cost
                if A.mfma:
                    lat = 16 if B.mfma and A.w == B.srcc and not (A.w & B.ab) else 40
            elif A.w & B.w:
                lat = 100 if A.ds else 40 if A.mfma else A.cost
            elif A.r & B.w:
                lat = A.cost
            elif (A.ds and B.ds) or ((A.vmem or A.op == "s_waitcnt") and (B.vmem or B.op == "s_waitcnt")):
                lat = A.cost
            if lat is not None:
                pred[b].append((a, lat))
    succ = [[] for _ in range(n)]
    for b in range(n):
        for a, lat in pred[b]:
            succ[a].append((b, lat))
    mf = [k for k in range(n) if ins[k].mfma]
    nxt = dict(zip(mf, mf[1:]))
    crit = [0] * n
    for a in range(n - 1, -1, -1):
        crit[a] = max([lat + crit[b] for b, lat in succ[a]] + [ins[a].cost] + ([16 + crit[nxt[a]]] if a in nxt else []))
    done, out, t, pipe = {}, [], 0, 0
    left = set(range(n))

    def short(c):
        dist, worst = 0, 0
        for p in reversed(out[-13:]):
            worst = max(worst, need(ins[p], ins[c]) - dist)
            dist += 1
        return worst

    while left:
        ready = [k for k in left if all(a in done for a, _ in pred[k]) and not (ins[k].mfma and any(m in left for m in mf if m < k))]
        def start(k):
            s = max([t] + [done[a] + lat for a, lat in pred[k]])
            if ins[k].mfma:
                s = max(s, pipe)
            return max(s, t + 4 * short(k))
        st = {k: start(k) for k in ready}
        now = [k for k in ready if st[k] <= t]
        m = [k for k in ready if ins[k].mfma]
        if m and st[m[0]] <= t:
            k = m[0]
        elif now:
            fit = [k for k in now if not m or t + ins[k].cost <= st[m[0]]]
            top = max(now, key=lambda k: crit[k] + ins[k].bias)
            if fit and not (m and crit[top] + ins[top].bias > crit[m[0]] + 8):
                k = max(fit, key=lambda k: crit[k] + ins[k].bias)
            elif m and crit[top] + ins[top].bias <= crit[m[0]] + 8 and st[m[0]] - t <= 4:
                k = m[0]
            else:
                k = top
        else:
            k = min(ready, key=lambda k: (st[k], -crit[k]))
        t = st[k]
        done[k] = t
        if ins[k].mfma:
            pipe = t + 16
        t += ins[k].cost
        out.append(k)
        left.discard(k)
    res, pend = [], [(set(Ins(p).w), 0) for p in pre]
    for k in out:
        i = ins[k]
        hit = [p for p, (w, _) in enumerate(pend) if w & (i.r | i.w)]
        if hit:
            old = [p for p, (_, ti) in enumerate(pend) if done[k] - ti >= 140]
            pend = pend[max(hit + old) + 1:]
            res.append("s_waitcnt lgkmcnt(%d)" % min(len(pend), 15))
        res.append(i.text.split(";")[0].rstrip())
        if i.ds:
            pend.append((set(i.w), done[k]))
    return res, t
```

```python
import struct
import sys
from asmlib import Asm, schedule

KNAME = "interleave_layers__gqa_block_cached__glu_gated_bilinear__decode_kernel"

LS = 1 << 20
OFF_ML, OFF_A, OFF_C, OFF_XB, OFF_XD, OFF_E = 0, 4 << 10, 36 << 10, 52 << 10, 56 << 10, 60 << 10
OFF_CSG, OFF_CSQ = 56 << 10, 64 << 10
WS_SIZE = 3 * LS
STAMP_OFF = 8 << 20
OOB = 0x7FFF0000

RING = 24576
L_WQ = 4 * RING
L_WO = L_WQ + 16384
L_WG = L_WO + 16384
L_WD = L_WG + 16384
L_SCR = L_WD + 8192
L_H = L_SCR + 1024
L_Q, QSTR = L_SCR + 1536, 2112
L_Z = L_SCR + 3072
assert L_SCR + 8192 == 163840

sK, sV, sWS, sWF, sWL, sOUT, sDBG, sXI, sT = 28, 32, 36, 40, 44, 48, 52, 56, 96
sw, sg, sj, sb, ss, su, sring, srot, stmp, slayer = range(60, 70)
(sMLst, sMLld, sAst, sAld, sBst, sBld, sXst, sXld, sCst, sCld, sCS, sS1, sSC, sRow, sEst, sEld) = range(70, 86)
sWo, sWl = 86, 87
sM1 = 88
sspin, scmp = 94, 95
sclr, slead, sact = 3, 14, 15
sLO, sHI = 6, 7
sXW, sB2, svote = 24, 23, 22
sWo2, sWl2 = 8, 9
SPIN_LIMIT = 1 << 18

vL, vA16, vTRV, vRES = 0, 1, 2, 3
vQ, vS, vT, vP, vPV, vMK, vAI, vO, vVF, vVR = 8, 24, 40, 40, 48, 56, 56, 64, 8, 96
vWG, vWD, vWQ, vCG, vCQ, vSEL, vX, vD = 8, 24, 32, 48, 50, 52, 56, 72
vKS, vKR = 240, 244
ORDER = [5, 0, 1, 2, 6, 3, 7, 4]
SLOT = {5: 2, 6: 4, 7: 0}
SCALE = 128 ** -0.5 * 1.4426950408889634
ONES = "0x3f803f80"


def f32(x):
    return "0x%08x" % struct.unpack("<I", struct.pack("<f", x))[0]


def q(r, n=4, k="v"):
    return "%s[%d:%d]" % (k, r, r + n - 1)


def srd(r):
    return "s[%d:%d]" % (r, r + 3)


class Gen:
    def __init__(self, depth=6, burst=12, rotg=5, stamps=False, force_slow=False, skip="", wpol="nt", kvpol="nt",
                 dbgstamps=False, tq=(2, 3, 4, 5), tg=(6, 7, 8, 9), to=(31, 31, 31, 31), td=None, lag=2, probe=None, cyc=False,
                 d0=None, tclr=27, dbl="", gap=1, mlat=5, near=1, dly=None, ipf=24, sync=(3, 5, 8, 10, 12, 15, 17), owait=None):
        self.__dict__.update(locals())
        self.a = Asm()
        self.nst = 0
        self.cold = []
        self.stamp_names = []

    def stamp(self, name, per_layer=False):
        if not self.stamps or (self.stamps is not True and name not in self.stamps):
            return
        a = self.a
        k = self.nst
        self.nst += 2 if per_layer else 1
        assert self.nst <= 28
        a("%s s[0:1]" % ("s_memtime" if self.cyc else "s_memrealtime"), "s_waitcnt lgkmcnt(0)")
        if per_layer:
            self.stamp_names += [name + "/1", name + "/2"]
            a("s_add_u32 m0, s%d, %d" % (slayer, k - 1), "v_writelane_b32 v4, s0, m0")
        else:
            self.stamp_names.append(name)
            a("v_writelane_b32 v4, s0, %d" % k)

    def mk_srd(self, d, p, size):
        self.a("s_mov_b32 s%d, s%d" % (d, p), "s_mov_b32 s%d, s%d" % (d + 1, p + 1),
               "s_mov_b32 s%d, %s" % (d + 2, size), "s_mov_b32 s%d, 0x20000" % (d + 3))

    def lin(self, d, t, *terms):
        first = True
        for sh, bits, sc in terms:
            r = d if first else t
            if sh + bits >= 6:
                src = vL
                if sh:
                    self.a("v_lshrrev_b32 v%d, %d, v0" % (r, sh)); src = r
            elif sh == 0:
                self.a("v_and_b32 v%d, %d, v0" % (r, (1 << bits) - 1)); src = r
            else:
                self.a("v_bfe_u32 v%d, v0, %d, %d" % (r, sh, bits)); src = r
            if first:
                if sc or src != d:
                    self.a("v_lshlrev_b32 v%d, %d, v%d" % (d, sc, src))
            else:
                self.a("v_lshl_add_u32 v%d, v%d, %d, v%d" % (d, src, sc, d))
            first = False

    def sexpr(self, d, const, *terms):
        a = self.a
        first = True
        for reg, mult in terms:
            r = d if first else 101
            if mult & (mult - 1) == 0:
                a("s_lshl_b32 s%d, s%d, %d" % (r, reg, mult.bit_length() - 1))
            else:
                a("s_mul_i32 s%d, s%d, %d" % (r, reg, mult))
            if not first:
                a("s_add_u32 s%d, s%d, s101" % (d, d))
            first = False
        if const:
            a("s_add_u32 s%d, s%d, 0x%x" % (d, d, const))

    def oob_unless(self, v, t, cond):
        self.a(cond, "v_mov_b32 v%d, 0x%x" % (t, OOB), "v_cndmask_b32 v%d, v%d, v%d, vcc" % (v, t, v))

    def even_only(self, v, t, cmp="0"):
        self.a("v_and_b32 v%d, 1, v0" % t)
        self.oob_unless(v, t, "v_cmp_eq_u32 vcc, %s, v%d" % (cmp, t))

    def st_intra(self, op, data, voff, soff):
        self.a("%s %s, v%d, %s, s%d offen" % (op, data, voff, srd(sWF), soff),
               "%s %s, v%d, %s, s%d offen sc1" % (op, data, voff, srd(sWL), soff))

    def ld(self, r, voff, soff, off=0, n=4, rs=sWS):
        return "buffer_load_dword%s %s, v%d, %s, s%d offen offset:%d sc1" % (
            "x%d" % n if n > 1 else "", q(r, n) if n > 1 else "v%d" % r, voff, srd(rs), soff, off)

    def spin_count(self):
        return ["s_add_u32 s%d, s%d, 1" % (sspin, sspin), "s_cmp_lt_u32 s%d, 0x%x" % (sspin, SPIN_LIMIT), "s_cselect_b32 s%d, -2, -1" % scmp]

    def poll(self, loads, regs, acc, name, spec=None, issued=False):
        a = self.a
        L = a.lab(name)
        dbl = name in self.dbl.split(",")
        n = len(loads)
        if issued and not dbl:
            a(L + "_w:")
            self.check(regs, acc, n, spec)
            a("s_cbranch_vccnz " + L)
            self.cold += [L + ":"] + loads + self.spin_count() + ["s_branch %s_w" % L]
            if self.stamps is not True:
                self.stamp(name, True)
            return
        if dbl:
            if not issued:
                a(*loads)
            a(L + ":", "s_sleep %d" % self.gap)
        else:
            a(L + ":")
        a(*loads)
        a(*self.spin_count())
        self.check(regs, acc, 2 * n if dbl else n, None if dbl else spec)
        a("s_cbranch_vccnz " + L)
        if dbl and spec:
            for k in range(n):
                spec(k)
        if self.stamps is not True:
            self.stamp(name, True)

    def check(self, regs, acc, n, spec=None):
        a = self.a
        have, rr = None, []
        for i, part in enumerate(regs):
            if n:
                a("s_waitcnt vmcnt(%d)" % (n - 1 - i))
            if spec:
                spec(i)
            rr += list(part)
            last = i == len(regs) - 1
            while rr:
                pool = ([have] if have is not None else []) + rr
                if len(pool) >= 3:
                    a("v_max3_u32 v%d, v%d, v%d, v%d" % (acc, *pool[:3])); rr = pool[3:]; have = acc
                elif not last:
                    break
                elif len(pool) == 2:
                    a("v_max_u32 v%d, v%d, v%d" % (acc, *pool)); rr = []; have = acc
                else:
                    have = pool[0]; rr = []
        a("v_cmp_lt_u32 vcc, s%d, v%d" % (scmp, have))

    def check_or_poll(self, loads, regs, acc, name, pre=()):
        a = self.a
        a("L_%s_c:" % name)
        self.check(regs, acc, 0)
        a("s_cbranch_vccnz L_%s_r" % name)
        self.cold += ["L_%s_r:" % name] + list(pre) + loads + self.spin_count() + ["s_waitcnt vmcnt(0)", "s_branch L_%s_c" % name]

    def mfma(self, d, A, B, c):
        self.a("v_mfma_f32_16x16x32_bf16 %s, %s, %s, %s" % (q(d), A, B, q(d) if c else "0"))

    def xrows(self, op, v, t):
        for sw_ in ("v_permlane16_swap_b32", "v_permlane32_swap_b32"):
            self.a("v_mov_b32 v%d, v%d" % (t, v), "%s v%d, v%d" % (sw_, t, v), "%s v%d, v%d, v%d" % (op, v, v, t))

    def dpp(self, op, d, s0, s1, ctl, rm="0xf"):
        self.a("%s_dpp v%d, v%d, v%d %s row_mask:%s bank_mask:0xf" % (op, d, s0, s1, ctl, rm))

    def pack_pairs(self, d, v):
        self.a("v_mov_b32_dpp v%d, v%d quad_perm:[1,1,3,3] row_mask:0xf bank_mask:0xf" % (d, v),
               "v_cvt_pk_bf16_f32 v%d, v%d, v%d" % (d, v, d))

    def tile_issue(self, T, between=None):
        a = self.a
        a("s_and_b32 s%d, s%d, 15" % (srot, srot), "s_lshl_b32 s%d, s%d, 17" % (stmp, srot),
          "s_add_u32 s%d, s%d, s%d" % (stmp, stmp, su), "s_add_u32 s%d, s%d, 1" % (srot, srot),
          "s_add_u32 m0, s%d, %d" % (sring, (T % 6) * 4096))
        if T >= 6:
            a("s_waitcnt lgkmcnt(0)")
        for jj in range(4):
            d = self.d0.get(T, self.depth) if self.d0 else self.depth
            if 4 * T + jj < 128 - self.burst and T > 1 and d < len(self.ltok):
                a.wait_vm(self.ltok[-d])
            va = vKS + jj if T < 16 else 5 + (jj & 1)
            a("buffer_load_dwordx4 v%d, %s, s%d offen offset:%d %s lds" % (va, srd(sK if T < 16 else sV), stmp, jj * 1024, self.kvpol))
            self.ltok.append(a.mark())
            self.tok[T] = a.mark()
            if between:
                between(jj)

    def tile_consume(self, T):
        a = self.a
        a.wait_vm(self.tok[T])
        if T < 16:
            for st in range(4):
                a("ds_read_b128 %s, v%d offset:%d" % (q(16 * T + 4 * st, 4, "a"), vKR + st, (T % 6) * 4096))
        else:
            p, half = (T - 16) >> 1, T & 1
            base = vVR + 32 * p if p < 5 else vVF
            for i in range(8):
                a("ds_read_b64_tr_b16 %s, v%d offset:%d" % (q(base + 4 * i + 2 * half, 2), vAI + i if i else vTRV, (T % 6) * 4096))

    def mk_ai(self):
        for i in range(1, 8):
            self.a("v_xor_b32 v%d, %d, v%d" % (vAI + i, i << 5, vTRV))
        self.a("v_and_b32 v%d, 3, v0" % vMK, "v_cmp_eq_u32 vcc, 0, v%d" % vMK, "v_cndmask_b32 v%d, 0, -1, vcc" % vMK)

    def weight_load(self, kind, k, T, va=52):
        a = self.a
        t = va + 1
        pitch = {"q": 8192, "g": 3584, "d": 1024, "o": 1024}[kind]
        if k == 0:
            if kind == "o":
                self.lin(va, t, (5, 1, 14), (3, 2, 10), (0, 3, 4))
                a("v_and_b32 v%d, 32, v0" % t, "v_xor_b32 v%d, v%d, v%d" % (va, va, t))
                self.mk_srd(sT, 12, "0x400000")
                self.sexpr(sWo, 0, (sg, 512 * 1024), (sb, 128 * 1024), (sw, 4096), (ss, 128))
                self.sexpr(sWl, L_WO, (sw, 4096))
            else:
                a("v_lshrrev_b32 v%d, 3, v0" % va, "v_mul_u32_u24 v%d, %d, v%d" % (va, pitch, va), "v_and_b32 v%d, 7, v0" % t,
                  "v_lshl_add_u32 v%d, v%d, 4, v%d" % (va, t, va), "v_bfe_u32 v%d, v0, 4, 1" % t, "v_lshlrev_b32 v%d, 5, v%d" % (t, t),
                  "v_xor_b32 v%d, v%d, v%d" % (va, va, t))
            if kind in "qg":
                a("s_and_b32 s100, s%d, 1" % sw, "s_lshl_b32 s100, s100, 6", "v_xor_b32 v%d, s100, v%d" % (va, va))
            if kind == "q":
                self.mk_srd(sT, 10, "0x400000")
                self.sexpr(sWo, 0, (sb, 128 * pitch), (sw, 32 * pitch), (sg, 1024), (ss, 128))
                self.sexpr(sWl, L_WQ, (sw, 4096))
            if kind in "gd":
                a("s_lshr_b32 s100, s%d, 1" % sg, "s_mul_i32 s100, s100, 7", "s_and_b32 s%d, s%d, 1" % (stmp, sg),
                  "s_lshl_b32 s%d, s%d, 2" % (stmp, stmp), "s_add_u32 s100, s100, s%d" % stmp)
            if kind == "g":
                a("s_and_b32 s%d, s%d, 3" % (stmp, ss), "s_add_u32 s100, s100, s%d" % stmp)
                self.sexpr(sWo, 0, (sb, 128 * pitch), (sw, 32 * pitch), (100, 128))
                self.sexpr(sWl, L_WG, (sw, 4096))
                a("s_bitcmp1_b32 s%d, 0" % sact, "s_cselect_b32 s100, 0x%x, 0" % (512 * pitch))
                self.mk_srd(sT, 16, "s100")
                a("s_cmp_ge_u32 s%d, 4" % ss, "s_cselect_b32 s%d, s18, s16" % sT, "s_cselect_b32 s%d, s19, s17" % (sT + 1))
            if kind == "d":
                a("s_add_u32 s100, s100, s%d" % sb)
                self.sexpr(sWo2, 0, (100, 64 * pitch), (sw, 16 * pitch), (ss, 128))
                self.sexpr(sWl2, L_WD, (sw, 2048))
                a("s_bitcmp1_b32 s%d, 1" % sact, "s_cselect_b32 s100, 0x%x, 0" % (1792 * pitch))
                self.mk_srd(sXI, 20, "s100")
            if kind in "od":
                a("v_xor_b32 v%d, 64, v%d" % (t, va))
            if T is None:
                return
        self.weight_issue(kind, k, T, va)

    def weight_issue(self, kind, k, T, va):
        a = self.a
        pitch = {"q": 8192, "g": 3584, "d": 1024, "o": 1024}[kind]
        so, sl, rs = (sWo2, sWl2, sXI) if kind == "d" else (sWo, sWl, sT)
        a("s_add_u32 s%d, s%d, 0x%x" % (stmp, so, (32 if kind == "o" else 8) * pitch * k), "s_add_u32 m0, s%d, 0x%x" % (sl, 1024 * k))
        if kind not in self.skip:
            if 1 < T < 29:
                a.wait_vm(self.ltok[-self.depth])
            a("buffer_load_dwordx4 v%d, %s, s%d offen %s lds" % (va + (k & 1 if kind in "od" else 0), srd(rs), stmp, self.wpol))
            self.ltok.append(a.mark())
        self.wtok[kind] = a.mark()

    def lines(self, fn, *args):
        keep, self.a = self.a, Asm()
        fn(*args)
        out, self.a = [i.text for i in self.a.l], keep
        return out

    def sched(self, lines, pre=()):
        out, t = schedule(lines, pre)
        self.a(*out)
        return t

    def qk(self):
        perm = {1: "[1,0,1,1]", 2: "[1,1,0,1]", 3: "[1,1,1,0]"}
        for G in range(2):
            for half in range(2):
                s = vS + 8 * G + 4 * half
                for t in range(4):
                    tau = 2 * ORDER[4 * G + t] + half
                    d = s if t == 0 else vT + 4 * (t - 1)
                    for st in range(4):
                        self.mfma(d, q(16 * tau + 4 * st, 4, "a"), q(vQ + 4 * st), st > 0)
                    if t:
                        for r in range(4):
                            self.dpp("v_add_f32", s + r, d + r, s + r, "quad_perm:" + perm[t])
                if s == vS:
                    self.a("v_max3_f32 v7, v%d, v%d, v%d" % (s, s + 1, s + 2), "v_max_f32 v7, v7, v%d" % (s + 3))
                else:
                    self.a("v_max3_f32 v7, v7, v%d, v%d" % (s, s + 1), "v_max3_f32 v7, v7, v%d, v%d" % (s + 2, s + 3))

    def ml_off(self, v, t):
        self.a("v_mov_b32 v%d, v%d" % (v, vA16), "v_and_b32 v%d, 15, v0" % t)
        self.oob_unless(v, t, "v_cmp_eq_u32 vcc, 0, v%d" % t)

    def softmax(self):
        a = self.a
        m, t, mu = 7, 9, 11
        self.dpp("v_max_f32", m, m, m, "quad_perm:[1,0,3,2]")
        self.dpp("v_max_f32", m, m, m, "quad_perm:[2,3,0,1]")
        self.xrows("v_max_f32", m, t)
        a("v_mul_f32 v%d, s%d, v%d" % (mu, sSC, m))
        for k in range(16):
            a("v_fma_f32 v%d, v%d, s%d, -v%d" % (vS + k, vS + k, sSC, mu))
        for k in range(16):
            a("v_exp_f32 v%d, v%d" % (vS + k, vS + k))
        for k in range(8):
            a("v_cvt_pk_bf16_f32 v%d, v%d, v%d" % (vP + k, vS + 2 * k, vS + 2 * k + 1))

    def ml_pub(self, voff):
        a = self.a
        for r in range(4):
            a("v_mov_b32 v%d, %s" % (12 + r, ONES))
        self.mfma(16, q(vP), q(12), False)
        self.mfma(16, q(vP + 4), q(12), True)
        a("v_mov_b32 v10, 0xff800000", "v_cndmask_b32 v22, v10, v11, s[%d:%d]" % (sM1, sM1 + 1))
        self.dpp("v_max_f32", 22, 22, 22, "row_ror:4")
        self.dpp("v_max_f32", 22, 22, 22, "row_ror:8")
        a("v_add_f32 v16, v16, v17", "v_add_f32 v18, v18, v19", "v_add_f32 v23, v16, v18")
        self.st_intra("buffer_store_dwordx2", "v[22:23]", voff, sMLst)
        a("v_mov_b32 v7, v22")

    def ml_finish(self, r):
        a = self.a
        a("v_sub_f32 v%d, v%d, v7" % (r, r), "v_sub_f32 v%d, v%d, v7" % (r + 2, r + 2),
          "v_exp_f32 v%d, v%d" % (r, r), "v_exp_f32 v%d, v%d" % (r + 2, r + 2),
          "v_mul_f32 v7, v%d, v%d" % (r, r + 1), "v_fmac_f32 v7, v%d, v%d" % (r + 2, r + 3))
        for k in (1, 2, 4, 8):
            self.dpp("v_add_f32", 7, 7, 7, "row_ror:%d" % k)
        a("v_rcp_f32 v7, v7")

    def pvar(self, p, buf):
        idx = ORDER.index(p)
        G, t = idx >> 2, idx & 3
        for r in range(4):
            self.dpp("v_and_b32", vPV + 4 * buf + r, vP + 4 * G + r, vMK, "quad_perm:[%d,%d,%d,%d]" % (t, t, t, t))

    def pv_group(self, p, buf, first, base=None, lgkm=None):
        if base is None:
            base = vVR + 32 * p if p < 5 else vVF
        for i in range(8):
            if lgkm is not None:
                self.a("s_waitcnt lgkmcnt(%d)" % lgkm(i))
            self.mfma(vO + 4 * i, q(vPV + 4 * buf), q(base + 4 * i), not first)

    def lds_group_reads(self, p, base):
        for i in range(8):
            for h in range(2):
                self.a("ds_read_b64_tr_b16 %s, v%d offset:%d" % (q(base + 4 * i + 2 * h, 2), vAI + i if i else vTRV, (SLOT[p] + h) * 4096))

    def o_addr(self, v, t):
        self.lin(v, t, (4, 2, 11), (0, 4, 4))
        self.sexpr(100, L_SCR, (sw, 512))
        self.a("v_add_u32 v%d, s100, v%d" % (v, v))

    def o_write(self):
        for i in range(8):
            self.a("v_mul_f32 v%d, v7, v%d" % (vP + i, vO + 4 * i))
        self.a("ds_write_b128 v5, %s" % q(vP), "ds_write_b128 v5, %s offset:256" % q(vP + 4))

    def w_tiles(self, kinds, va, t):
        a = self.a
        last = None
        for kind, dst in kinds:
            qs = 10 if kind == "d" else 12
            if qs != last:
                self.lin(va, t, (4, 2, qs), (2, 2, 7), (0, 2, 3))
                a("v_bfe_u32 v%d, v0, 3, 2" % t, "v_xor_b32 v%d, s%d, v%d" % (t, sw, t), "v_lshl_add_u32 v%d, v%d, 5, v%d" % (va, t, va),
                  "v_add_u32 v%d, 0x%x, v%d" % (va, L_WQ, va))
                last = qs
            base = {"q": L_WQ, "g": L_WG, "d": L_WD}[kind] - L_WQ
            for kb in range(2 if kind == "d" else 4):
                for h in range(2):
                    a("ds_read_b64_tr_b16 %s, v%d offset:%d" % (q(dst + 4 * kb + 2 * h, 2), va,
                                                                  base + kb * (4096 if kind == "d" else 1024) + h * 512))

    def gemv4(self, x, W, vD):
        for kb in range(4):
            self.mfma(vD + 4 * kb, q(x), q(W + 4 * kb), False)

    def gemv4_fin(self, out, vD):
        self.a("v_add_f32 v%d, v%d, v%d" % (out, vD, vD + 5), "v_add_f32 v%d, v%d, v%d" % (out, out, vD + 10),
               "v_add_f32 v%d, v%d, v%d" % (out, out, vD + 15))

    def colsum_pub(self, W, ones, d, va, t, off, *terms):
        a = self.a
        for r in range(4):
            a("v_mov_b32 v%d, %s" % (ones + r, ONES))
        a("v_mov_b32 v%d, v%d" % (va, vA16))
        self.oob_unless(va, t, "v_cmp_gt_u32 vcc, 16, v0")
        self.sexpr(100, off, (sCS, 1), (sb, 4), (sw, 256), *terms)
        a("s_waitcnt lgkmcnt(0)")
        for kb in range(4):
            self.mfma(d, q(ones), q(W + 4 * kb), kb > 0)
        self.st_intra("buffer_store_dword", "v%d" % d, va, 100)

    def colsum_ld(self, r, va, off, sel, so=100):
        self.sexpr(so, off, (sCS, 1), (sel, 2048))
        return [self.ld(r, va, so, 0), self.ld(r + 4, va, so, 16)]

    def colsum_fin(self, r, c):
        for k in range(2):
            b = r + 4 * k
            self.a("v_add_f32 v%d, v%d, v%d" % (b, b, b + 1), "v_add_f32 v%d, v%d, v%d" % (b + 2, b + 2, b + 3),
                   "v_add_f32 v%d, v%d, v%d" % (b, b, b + 2), "v_mul_f32 v%d, %s, v%d" % (c + k, f32(-1.0 / 512), b))

    def stats(self, x, t, att):
        a = self.a
        s1, s2 = t, t + 1
        a("s_mov_b32 s100, %s" % ONES)
        for k in range(4):
            a("v_dot2_f32_bf16 v%d, v%d, s100, %s" % (s1, x + k, "v%d" % s1 if k else "0"),
              "v_dot2_f32_bf16 v%d, v%d, v%d, %s" % (s2, x + k, x + k, "v%d" % s2 if k else "0"))
        a("v_permlane32_swap_b32 v%d, v%d" % (s1, s2), "v_add_f32 v%d, v%d, v%d" % (s1, s1, s2))
        for k in (1, 2, 4, 8):
            self.dpp("v_add_f32", s1, s1, s1, "row_ror:%d" % k)
        self.dpp("v_add_f32", s1, s1, s1, "row_bcast:15", "0xa")
        a("v_readlane_b32 s%d, v%d, 31" % (sS1, s1), "v_mul_f32 v%d, %s, v%d" % (s1, f32(1.0 / 512), s1),
          "v_mov_b32 v%d, s%d" % (s2, sS1), "v_mul_f32 v%d, %s, v%d" % (s2, f32(1.0 / 512), s2),
          "v_fma_f32 v%d, -v%d, v%d, v%d" % (s1, s2, s2, s1), "v_max_f32 v%d, 0, v%d" % (s1, s1),
          "v_add_f32 v%d, %s, v%d" % (s1, f32(1e-5), s1))
        if att:
            a("v_rsq_f32 v%d, v%d" % (s1, s1), "v_mul_f32 v%d, %s, v%d" % (s1, f32(SCALE), s1))
        else:
            a("v_rcp_f32 v%d, v%d" % (s1, s1), "s_nop 0")
        a("v_readlane_b32 s%d, v%d, 63" % (sSC, s1))

    def sum4_init(self, acc, c):
        self.a("v_mul_f32 v%d, s%d, v%d" % (acc, sS1, c), "v_mul_f32 v%d, s%d, v%d" % (acc + 1, sS1, c + 1))

    def sum4(self, x, acc, init):
        for k in range(4):
            c = acc if k else init
            self.a("v_dot2_f32_bf16 v%d, v%d, s%d, v%d" % (acc, x + k, sLO, c),
                   "v_dot2_f32_bf16 v%d, v%d, s%d, v%d" % (acc + 1, x + k, sHI, c + 1))

    def q_addrs(self, vw, vr, t):
        self.sexpr(100, L_Q, (sw, QSTR))
        self.a("v_lshl_add_u32 v%d, v0, 2, s100" % vw, "v_bfe_u32 v%d, v0, 2, 2" % vr, "v_mul_u32_u24 v%d, %d, v%d" % (vr, QSTR, vr),
               "v_and_b32 v%d, 48, v0" % t, "v_add_u32 v%d, v%d, v%d" % (vr, vr, t), "v_add_u32 v%d, 0x%x, v%d" % (vr, L_Q, vr),
               "v_mov_b32 v%d, 0x%x" % (t, L_Z), "v_cndmask_b32 v%d, v%d, v%d, s[%d:%d]" % (vr, t, vr, sM1 + 2, sM1 + 3))

    def q_assemble(self, acc, vw, vr):
        a = self.a
        a("v_cvt_pk_bf16_f32 v%d, v%d, v%d" % (acc, acc, acc + 1), "ds_write_b32 v%d, v%d" % (vw, acc),
          "s_waitcnt lgkmcnt(0)", "s_barrier")
        rd = ["ds_read_b128 %s, v%d offset:%d" % (q(vQ + 4 * st), vr, st * 64) for st in range(4)]
        a(*rd)
        return rd

    def late_loads(self, name):
        self.layer1(name)
        for k in range(0 if self.td else 2):
            self.weight_issue("d", k, 32, 62)
        self.a("buffer_load_dword v64, v64, %s, 0 offen sc1" % srd(sWS), name + ":")

    def next_region(self):
        for r in (sWS, sWF, sWL):
            self.a("s_add_u32 s%d, s%d, 0x%x" % (r, r, LS), "s_addc_u32 s%d, s%d, 0" % (r + 1, r + 1))
        self.a("s_sub_u32 s%d, s%d, 0x%x" % (sCS, sCS, LS))

    def leader_fill(self):
        a = self.a
        a("v_mov_b32 v8, -1", "v_mov_b32 v9, -1", "v_mov_b32 v10, -1", "v_mov_b32 v11, -1",
          "s_or_b32 s%d, s%d, s%d" % (slead, sj, sw), "s_cmp_eq_u32 s%d, 0" % slead, "s_cbranch_scc0 L_nolead0")
        tk = a.mark()
        a("s_lshl_b32 s100, s%d, 17" % sg, "buffer_store_dwordx4 v[8:11], v%d, %s, s100 offen sc1" % (vA16, srd(sWS)), "L_nolead0:")
        a.uncounted(tk)
        self.tok_lead = tk

    def leader_flag(self, word, name, tok=None):
        a = self.a
        a("s_cmp_eq_u32 s%d, 0" % slead, "s_cbranch_scc0 " + name)
        if tok is not None:
            a.wait_vm(tok)
        tk = a.mark()
        a("v_mov_b32 v53, 1", "v_lshlrev_b32 v54, 8, v0", "s_lshl_b32 s100, s%d, 2" % sg,
          "buffer_store_dword v53, v54, %s, s100 offen offset:%d sc1" % (srd(sDBG), word), name + ":")
        a.uncounted(tk)

    def flag_load(self, v, word, own):
        a = self.a
        if own:
            a("s_lshl_b32 s100, s%d, 2" % sg, "v_mov_b32 v%d, s100" % v)
        else:
            a("v_and_b32 v%d, 7, v0" % v, "v_lshlrev_b32 v%d, 2, v%d" % (v, v))
        return a("buffer_load_dword v%d, v%d, %s, 0 offen offset:%d sc1" % (v, v, srd(sDBG), word))

    def flag_check(self, v, word, own, tok, name):
        a = self.a
        a.wait_vm(tok)
        tk = a.mark()
        a("s_branch %s_c" % name, name + "_s:", "s_sleep 8")
        self.flag_load(v, word, own)
        a("s_add_u32 s%d, s%d, 1" % (sspin, sspin), "s_cmp_lt_u32 s%d, 0x%x" % (sspin, SPIN_LIMIT), "s_waitcnt vmcnt(0)",
          "s_cbranch_scc0 %s_d" % name, name + "_c:", "v_cmp_eq_u32 vcc, 0, v%d" % v, "s_cbranch_vccnz %s_s" % name, name + "_d:")
        a.uncounted(tk)

    def fill_intra(self, v, t, d, start, per_wave):
        a = self.a
        self.sexpr(100, start, (sg, 1 << 17), (sj, 4 * per_wave), (sw, per_wave))
        a("v_mov_b32 v%d, v%d" % (v, vA16))
        self.oob_unless(v, t, "v_cmp_gt_u32 vcc, %d, v0" % (per_wave // 16))
        self.st_intra("buffer_store_dwordx4", q(d), v, 100)

    def sentinels(self, d):
        for r in range(4):
            self.a("v_mov_b32 v%d, -1" % (d + r))

    def prologue(self):
        a = self.a
        if self.stamps:
            a("%s s[92:93]" % ("s_memtime" if self.cyc else "s_memrealtime"))
        a("s_cmp_ge_u32 s2, 256", "s_cbranch_scc1 L_end",
          "s_load_dwordx16 s[4:19], s[0:1], 0", "s_load_dwordx8 s[20:27], s[0:1], 64",
          "v_lshrrev_b32 v1, 6, v0", "v_and_b32 v0, 63, v0", "v_readfirstlane_b32 s%d, v1" % sw,
          "s_and_b32 s%d, s2, 7" % sg, "s_lshr_b32 s%d, s2, 3" % sj, "s_lshr_b32 s%d, s2, 6" % sb,
          "s_and_b32 s%d, s%d, 7" % (ss, sj), "s_lshl_b32 s%d, s%d, 2" % (su, ss), "s_add_u32 s%d, s%d, s%d" % (su, su, sw),
          "s_lshl_b32 s%d, s%d, 12" % (su, su),
          "s_lshl_b32 s100, s%d, 3" % sb, "s_add_u32 s100, s100, s%d" % sg,
          "s_mul_i32 s%d, s100, %d" % (srot, self.rotg), "s_lshl_b32 s100, s100, 21",
          "s_mul_i32 s%d, s%d, %d" % (sring, sw, RING))
        a("v_lshrrev_b32 v5, 4, v0", "v_and_b32 v6, 15, v0", "v_xor_b32 v7, v5, v6", "v_lshlrev_b32 v7, 4, v7",
          "v_lshl_add_u32 v%d, v5, 8, v7" % vKS)
        for jj in range(1, 4):
            a("v_xor_b32 v%d, %d, v%d" % (vKS + jj, jj << 6, vKS))
        a("s_and_b32 s98, s2, 63", "s_lshl_b32 s98, s98, 7", "s_lshl_b32 s99, s%d, 14" % sb, "s_add_u32 s98, s98, s99",
          "s_and_b32 s99, s%d, 1" % sj, "s_lshl_b32 s99, s99, 13", "s_add_u32 s98, s98, s99", "s_add_u32 s98, s98, 0x100000",
          "s_xor_b32 s99, s98, 0x2000", "v_add_u32 v9, s%d, v0" % sw, "v_lshlrev_b32 v9, 24, v9")
        a("s_mov_b32 s%d, 0x200000" % (sK + 2), "s_mov_b32 s%d, 0x20000" % (sK + 3), "s_waitcnt lgkmcnt(0)",
          "s_add_u32 s%d, s6, s100" % sK, "s_addc_u32 s%d, s7, 0" % (sK + 1))
        self.tok, self.ltok, self.wtok = {}, [], {}
        self.mk_srd(sDBG, 24, "256")
        self.mk_srd(sWS, 26, "0x%x" % WS_SIZE)
        a("s_add_u32 s%d, s26, 0x%x" % (sXW, WS_SIZE + (2 << 20) - 1), "s_addc_u32 s%d, s27, 0" % (sXW + 1),
          "s_and_b32 s%d, s%d, 0xffe00000" % (sXW, sXW), "s_mov_b32 s%d, 0x200000" % (sXW + 2), "s_mov_b32 s%d, 0x20000" % (sXW + 3),
          "buffer_load_dword v95, v9, %s, s98 offen sc1" % srd(sXW))
        tok_cal = a.mark()
        a("buffer_load_dword v95, v9, %s, s99 offen sc1" % srd(sXW))
        self.tile_issue(0)
        self.tile_issue(1)
        a("s_add_u32 s%d, s8, s100" % sV, "s_addc_u32 s%d, s9, 0" % (sV + 1),
          "s_mov_b32 s%d, 0x200000" % (sV + 2), "s_mov_b32 s%d, 0x20000" % (sV + 3))
        a("v_lshl_add_u32 v%d, v6, 8, v7" % vKR, "v_add_u32 v%d, s%d, v%d" % (vKR, sring, vKR))
        for st in range(1, 4):
            a("v_xor_b32 v%d, %d, v%d" % (vKR + st, st << 6, vKR))
        a("v_lshlrev_b32 v%d, 4, v0" % vA16)
        self.mk_srd(sOUT, 22, "4096")
        a("s_cmp_eq_u32 s%d, 0" % sw, "s_cbranch_scc0 L_novote")
        a.wait_vm(tok_cal)
        a("s_sleep 1", "s_getreg_b32 s%d, hwreg(HW_REG_IB_STS, 0, 4)" % svote, "s_cmp_gt_u32 s%d, 8" % svote, "s_cselect_b32 s%d, 16, 0" % svote,
          "L_novote:")
        if self.stamps:
            a("v_mov_b32 v4, 0", "v_writelane_b32 v4, s92, 0")
            self.nst = 1
            self.stamp_names.append("entry")
        self.stamp("start")

    def setup_a(self):
        a = self.a
        self.mk_srd(sXI, 4, "4096")
        self.lin(6, 7, (4, 2, 6), (2, 2, 10), (0, 2, 4))
        self.lin(5, 7, (5, 1, 10), (4, 1, 11), (0, 4, 1))
        a("s_lshl_b32 s100, s%d, 8" % sb, "s_lshl_b32 s101, s%d, 10" % sb, "s_lshl_b32 s%d, s%d, 5" % (stmp, sj),
          "buffer_load_dwordx4 %s, v6, %s, s100 offen" % (q(vX), srd(sXI)),
          "buffer_load_dwordx4 %s, v%d, %s, s101 offen" % (q(vX + 4), vA16, srd(sXI)),
          "buffer_load_ushort v%d, v5, %s, s%d offen" % (vRES, srd(sXI), stmp))
        self.sexpr(100, 0, (sj, 32768), (sg, 2048), (sw, 512))
        a("v_mov_b32 v12, v%d" % vA16)
        self.oob_unless(12, 13, "v_cmp_gt_u32 vcc, 32, v0")
        a("buffer_store_dwordx4 v[8:11], v12, %s, s100 offen sc1" % srd(sXW))
        self.tok_pro = a.mark()

    def setup_b(self):
        a = self.a
        self.mk_srd(sWF, sWS, "0")
        self.mk_srd(sWL, sWS, "0x%x" % WS_SIZE)
        G = (sg, 1 << 17)
        self.sexpr(sCS, 2 * LS, G)
        self.sexpr(sEst, OFF_E, G, (ss, 512), (sw, 128), (sb, 4))
        self.sexpr(sEld, OFF_E, G, (sb, 4096), (sw, 1024))
        self.sexpr(sMLld, OFF_ML, G, (sb, 1024))
        a("s_lshr_b32 s%d, s%d, 9" % (sMLst, su), "s_add_u32 s%d, s%d, s%d" % (sMLst, sMLst, sMLld),
          "s_mov_b32 s%d, 0" % slayer, "s_mov_b32 s%d, 0" % sspin, "s_mov_b32 s%d, -2" % scmp,
          "s_mov_b32 s%d, 0x3f80" % sLO, "s_mov_b32 s%d, 0x3f800000" % sHI,
          "s_and_b32 s100, s%d, 3" % ss, "s_cmp_eq_u32 s100, 3", "s_cselect_b32 s%d, 0, 1" % sact,
          "s_cmp_eq_u32 s%d, 3" % sb, "s_cselect_b32 s100, 0, 2", "s_or_b32 s%d, s%d, s100" % (sact, sact),
          "s_bitcmp1_b32 s%d, 0" % sg, "s_cselect_b32 s%d, s%d, 3" % (sact, sact))

    def setup_c(self):
        a = self.a
        G = (sg, 1 << 17)
        a("s_lshr_b32 s%d, s%d, 2" % (stmp, ss), "s_and_b32 s100, s%d, 3" % ss)
        self.sexpr(sAst, OFF_A, G, (sw, 8192), (stmp, 1024), (sb, 64), (100, 16))
        self.sexpr(sCst, OFF_C, G, (100, 4096), (stmp, 512), (sw, 128), (sb, 4))
        self.sexpr(sAld, OFF_A, G, (sb, 8192), (sw, 2048))
        self.sexpr(sCld, OFF_C, G, (sb, 4096), (sw, 1024))
        self.sexpr(sBst, 0, (su, 8), (sg, 512), (sb, 128))
        self.sexpr(sBld, 0, (sj, 32768))
        a("s_lshr_b32 s%d, s%d, 1" % (stmp, sj), "s_and_b32 s100, s%d, 1" % sj)
        self.sexpr(sXst, OFF_XB, G, (stmp, 256), (100, 32))
        self.sexpr(sXld, OFF_XB, G, (sb, 1024))
        self.sexpr(sRow, OFF_XB, G)
        for k, m in enumerate((0x00f0000f, 0xf0000f00, 0x11111111, 0x11111111, 0xff00ff00, 0xff00ff00)):
            a("s_mov_b32 s%d, 0x%x" % (sM1 + k, m))
        self.lin(vTRV, 7, (2, 4, 8), (2, 3, 5), (0, 2, 3))
        a("v_add_u32 v%d, s%d, v%d" % (vTRV, sring, vTRV))

    def part_off(self, v, t, bs, cmp="0"):
        self.lin(v, t, (4, 2, bs), (0, 4, 3))
        self.even_only(v, t, cmp)

    def group_flag(self, k, val):
        a = self.a
        a("v_mov_b32 v14, %s" % val, "v_add_u32 v15, s%d, v0" % sw, "v_lshlrev_b32 v15, 24, v15")
        self.sexpr(100, 512 * k, (sg, 1 << 17), (sj, 16))
        self.st_intra("buffer_store_dword", "v14", 15, 100)

    def stream(self):
        a = self.a
        lag = self.lag
        t_dl, t_f1, t_l1, t_c1, t_f2, t_l2, t_c2 = self.sync
        wl = {}
        for kind, ts in (("q", self.tq), ("g", self.tg), ("d", self.td or ()), ("o", self.to if self.owait is None else ())):
            for k, T in enumerate(ts):
                wl.setdefault(T, []).append((kind, k))
        tqk = max(t_c2 + 2, 16 + lag)
        assert self.tq[-1] + 2 <= t_c1 and self.tg[-1] + 2 <= t_f2
        pvat = {}
        for p in range(5):
            pvat.setdefault(max(tqk + 3 + (p >> 1), 17 + 2 * p + lag), []).append(p)
        vF = 94
        G17 = "s_lshl_b32 s101, s%d, 17" % sg
        qk = None
        for T in range(1, 32):
            if T == 16:
                a("v_lshrrev_b32 v7, 4, v0", "v_lshlrev_b32 v5, 1, v7", "v_and_b32 v6, 15, v0", "v_xor_b32 v5, v5, v6",
                  "v_lshlrev_b32 v5, 4, v5", "v_lshl_add_u32 v5, v7, 8, v5", "v_xor_b32 v6, 128, v5")
                self.mk_ai()
            between = None
            if T in (tqk + 1, tqk + 2):
                def between(jj):
                    a(*qk.pop(0))
            if T > 1:
                self.tile_issue(T, between)
            if T == 1:
                self.leader_fill()
            for kind, k in wl.get(T, []):
                self.weight_load(kind, k, T)
            if self.stamps is not True and T > 1:
                self.stamp("T%02d" % T)
            if T == 1:
                self.setup_a()
                self.setup_b()
            if lag <= T < 26 + lag:
                self.tile_consume(T - lag)
            if T == 2:
                self.leader_flag(128, "L_nolead1", self.tok_lead)
                self.setup_c()
            if T == t_dl:
                tok_f = self.flag_load(vF, 128, True)
            if T == t_f1:
                self.flag_check(vF, 128, True, tok_f, "L_f0")
                a("s_barrier", "s_getreg_b32 s%d, hwreg(HW_REG_XCC_ID, 0, 4)" % stmp, "s_or_b32 s%d, s%d, s%d" % (stmp, stmp, svote))
                self.group_flag(0, "s%d" % stmp)
                a("v_lshlrev_b32 v%d, 16, v%d" % (vRES, vRES))
                self.stats(vX + 4, 8, True)
                self.zero_area(8, 9)
            if T in (t_l1, t_l2):
                fld = self.ld(vF, vF + 1, 101, 0 if T == t_l1 else 512, n=1)
                a("v_and_b32 v%d, 0x1f0, v%d" % (vF + 1, vA16), G17)
                tok_f = a(fld)
            if T == t_c1:
                a.wait_vm(max(tok_f, self.wtok["q"]))
                self.check_or_poll([fld], [[vF]], 7, "xcc", [G17])
                a("s_barrier")
                self.w_tiles([("q", vWQ)], 5, 7)
                self.leader_flag(160, "L_nolead2")
                a("v_cmp_lt_u32 vcc, 15, v%d" % vF, "v_and_b32 v%d, 15, v%d" % (vF, vF),
                  "s_and_b32 s100, vcc_lo, 0x55555555", "s_and_b32 s101, vcc_lo, 0xaaaaaaaa",
                  "s_bcnt1_i32_b32 s100, s100", "s_bcnt1_i32_b32 s101, s101")
                if self.stamps:
                    a("v_writelane_b32 v4, s100, 28", "v_writelane_b32 v4, s101, 29")
                a("s_cmp_ge_u32 s100, s101", "s_cselect_b32 s100, %s" % {0: "0, 0", 1: "0, 0x2000", 2: "0x2000, 0"}[self.near],
                  "s_add_u32 s%d, s%d, s100" % (sBld, sBld), "s_add_u32 s%d, s%d, s100" % (sB2, sBst), "s_xor_b32 s%d, s%d, 0x2000" % (sBst, sB2))
                if not self.force_slow:
                    a("s_getreg_b32 s100, hwreg(HW_REG_XCC_ID, 0, 4)", "v_cmp_ne_u32 vcc, s100, v%d" % vF, "s_cmp_eq_u64 vcc, 0",
                      "s_cselect_b32 s%d, 0x%x, 0" % (sWF + 2, WS_SIZE), "s_cselect_b32 s%d, 0, 0x%x" % (sWL + 2, WS_SIZE))
                self.part_off(6, 7, 12)
                self.colsum_pub(vWQ, 12, 16, 10, 11, OFF_CSQ, (ss, 1024))
                self.gemv4(vX, vWQ, vD)
                self.sentinels(20)
                self.gemv4_fin(8, vD)
                self.pack_pairs(9, 8)
                self.st_intra("buffer_store_dword", "v9", 6, sEst)
                self.fill_intra(24, 7, 20, LS + OFF_ML, 288)
                tok_q = a.mark()
                self.stamp("arrive")
            if T == t_f2:
                a.wait_vm(max(tok_q, self.wtok["g"]))
                a("s_barrier")
                self.group_flag(1, "1")
                self.w_tiles([("g", vWQ)], 5, 7)
                a("s_lshr_b32 s%d, s%d, 2" % (stmp, ss), "s_and_b32 s%d, s%d, 3" % (sclr, ss))
                self.colsum_pub(vWQ, 16, 20, 10, 11, OFF_CSG, (sclr, 2048), (stmp, 1024))
            if T == t_c2:
                a.wait_vm(tok_f)
                self.check_or_poll([fld], [[vF]], 7, "q1", [G17])
                a("v_lshlrev_b32 v7, 5, v0")
                a(*self.colsum_ld(68, 7, OFF_CSQ, sw))
                tok_q = a(self.ld(64, vA16, sEld))
                self.next_region()
                self.stamp("barrier")
            if T == tqk:
                a.wait_vm(tok_q)
                self.colsum_fin(68, 76)
                self.sum4_init(78, 76)
                self.q_addrs(80, 81, 7)
                self.sum4(64, 78, 78)
                self.q_assemble(78, 80, 81)
                ls, _ = schedule(self.lines(self.qk))
                qk = [ls[len(ls) * k // 8:len(ls) * (k + 1) // 8] for k in range(8)]
            if T == tqk + 2:
                self.ml_off(20, 21)
                self.softmax()
                self.ml_pub(20)
                self.stamp("softmax1")
            for p in pvat.get(T, ()):
                self.pvar(p, 0)
                a("s_waitcnt lgkmcnt(0)")
                self.pv_group(p, 0, p == 0)
            if T == self.ipf:
                a("s_getpc_b64 s[4:5]", "L_pc:", "s_add_u32 s4, s4, L_tail-L_pc", "s_addc_u32 s5, s5, 0")
                self.sexpr(100, 0, (sj, 512), (sw, 128))
                a("s_min_u32 s100, s100, L_codeend-L_tail-4", "v_mov_b32 v23, s100", "global_load_dword v23, v23, s[4:5]")
            if T == 26:
                ml1 = [self.ld(8, vA16, sMLld)]
                a(*ml1)
                self.sexpr(100, OFF_A, (sg, 1 << 17), (sj, 1024), (sw, 256))
                a("v_lshlrev_b32 v16, 7, v0")
                self.oob_unless(16, 17, "v_cmp_gt_u32 vcc, 2, v0")
                a(self.ld(16, 16, 100, n=1))
                tok_warm = self.flag_load(22, 160, False)
            if T == self.tclr:
                self.sentinels(24)
                self.fill_intra(28, 29, 24, OFF_C, 320)
                self.fill_intra(30, 29, 24, LS, 448)
        self.stamp("issued")
        self.o_addr(5, 17)
        self.flag_check(22, 160, False, tok_warm, "L_f1")
        self.check_or_poll(ml1, [range(8, 12)], 17, "ml1")
        self.ml_finish(8)
        a("s_mov_b32 s%d, 1" % slayer)
        if not self.td:
            a(*[x for x in self.lines(self.weight_load, "d", 0, None, 62) if x.startswith("s_")])
        for p in (5, 6, 7):
            self.pvar(p, p & 1)
            if p == 6 and self.owait is not None:
                self.weight_load("o", 0, None, vP)
            for T in (16 + 2 * p, 17 + 2 * p):
                keep = len(a.l)
                self.tile_consume(T)
                pre = [i.text for i in a.l[keep:] if i.ds]
                if T == self.owait:
                    for k in range(4):
                        self.weight_issue("o", k, 32, vP)
            if p < 7:
                self.pv_group(p, p & 1, False, lgkm=lambda i: 7 - i)
            else:
                self.sched(self.lines(self.pv_group, p, 1, False) + self.lines(self.o_write), pre)
        self.n_after_o = min(a.mark() - self.wtok["o"], 60)
        self.stamp("pv1")

    def touch_addr(self, v, t):
        a = self.a
        self.sexpr(100, OFF_C, (sg, 1 << 17), (sj, 1280))
        a("v_lshl_add_u32 v%d, v0, 7, s100" % v)
        self.sexpr(100, LS - 2048, (sg, 1 << 17), (sj, 2048))
        a("v_lshl_add_u32 v%d, v0, 7, s100" % t, "v_cmp_gt_u32 vcc, 16, v0", "v_cndmask_b32 v%d, v%d, v%d, vcc" % (v, t, v),
          "s_mov_b32 vcc_lo, 0xffff03ff", "s_mov_b32 vcc_hi, 0", "s_cmp_eq_u32 s%d, 3" % sw, "s_cselect_b64 vcc, vcc, 0",
          "v_mov_b32 v%d, 0x%x" % (t, OOB), "v_cndmask_b32 v%d, v%d, v%d, vcc" % (v, t, v))

    def zero_area(self, v, z):
        self.a("v_lshlrev_b32 v%d, 2, v0" % v, "v_add_u32 v%d, 0x%x, v%d" % (v, L_Z, v), "v_mov_b32 v%d, 0" % z, "ds_write_b32 v%d, v%d" % (v, z))

    def st_cross(self, v):
        a = self.a
        for so in (sBst, sB2) if self.near else (sB2,):
            a("buffer_store_dword v%d, v95, %s, s%d offen sc1" % (v, srd(sXW), so))

    def delay(self, name):
        n = (self.dly or {}).get(name, 0)
        if n:
            self.a("s_sleep %d" % n)

    def reduce_x(self, name, x, d, soff):
        a = self.a
        self.delay(name)
        self.poll([self.ld(x + 4 * i, vA16, soff, i * 1024, rs=sXW) for i in range(4)], [range(x + 4 * i, x + 4 * i + 4) for i in range(4)], 7, name,
                  lambda i: self.mfma(d, q(x + 4 * i), q(vSEL), i > 0))
        m = "s[%d:%d]" % (sM1 + 4, sM1 + 5)
        a("v_cndmask_b32 v%d, v%d, v%d, %s" % (d, d, d + 1, m), "v_cndmask_b32 v%d, v%d, v%d, %s" % (d + 2, d + 2, d + 3, m),
          "v_permlane32_swap_b32 v%d, v%d" % (d, d + 2), "v_add_f32 v%d, v%d, v%d" % (vRES, vRES, d),
          "v_add_f32 v%d, v%d, v%d" % (vRES, vRES, d + 2))
        self.pack_pairs(7, vRES)

    def x_off(self, v, t, bs):
        self.lin(v, t, (5, 1, bs), (4, 1, bs + 1), (0, 4, 1))
        self.even_only(v, t)

    def layer1(self, name):
        self.a("s_cmp_eq_u32 s%d, 1" % slayer, "s_cbranch_scc0 " + name)

    def chain(self):
        a = self.a
        a("L_tail:")
        self.lin(18, 17, (2, 4, 4), (1, 1, 8), (0, 1, 3))
        self.sexpr(sclr, L_SCR, (sw, 2048))
        a("v_add_u32 v18, s%d, v18" % sclr, "s_waitcnt lgkmcnt(0)", "s_barrier")
        for src in range(4):
            a("ds_read_b64 %s, v18 offset:%d" % (q(8 + 2 * src, 2), src * 512))
        self.lin(17, 16, (4, 2, 11), (2, 2, 8), (0, 2, 2))
        self.lin(56, 16, (2, 2, 9), (4, 2, 7), (2, 2, 5), (0, 2, 3))
        a("s_waitcnt lgkmcnt(2)", "v_add_f32 v8, v8, v10", "v_add_f32 v9, v9, v11",
          "s_waitcnt lgkmcnt(0)", "v_add_f32 v12, v12, v14", "v_add_f32 v13, v13, v15",
          "v_add_f32 v8, v8, v12", "v_add_f32 v9, v9, v13", "v_cvt_pk_bf16_f32 v7, v8, v9")
        self.st_intra("buffer_store_dword", "v7", 17, sAst)
        self.stamp("Apub", True)
        self.sexpr(100, L_WO, (sw, 4096))
        a("v_add_u32 v56, s100, v56")
        for t in range(1, 4):
            a("v_xor_b32 v%d, %d, v56" % (56 + t, t << 5))
        a("s_waitcnt vmcnt(%d)" % (2 + self.n_after_o))
        for t in range(4):
            for h in range(2):
                a("ds_read_b64_tr_b16 %s, v%d offset:%d" % (q(24 + 4 * t + 2 * h, 2), 56 + t, h * 2048))
        lda = [self.ld(8 + 4 * h, vA16, sAld, h * 1024) for h in range(2)]
        self.delay("pollA")
        a(*lda)
        self.sexpr(100, L_SCR, (sw, 4))
        a("v_add_u32 v5, s%d, v%d" % (sclr, vA16), "v_add_u32 v94, s100, v%d" % vA16, "v_lshlrev_b32 v95, 1, v0")
        self.even_only(95, 19)
        self.layer1("L_l1a")
        if not self.td:
            a(*[x for x in self.lines(self.weight_load, "d", 0, None, 62) if x.startswith("v_")])
        self.touch_addr(64, 65)
        a("L_l1a:", "s_waitcnt lgkmcnt(0)")

        def spec_a(h):
            if h == 1:
                for t in range(2):
                    self.mfma(40 + 4 * t, q(8), q(24 + 4 * t), False)
                    self.mfma(40 + 4 * t, q(12), q(24 + 4 * t), True)
        self.poll(lda, [range(8, 12), range(12, 16)], 7, "pollA", spec_a, issued=True)

        def o_rest():
            for t in range(2, 4):
                self.mfma(40 + 4 * t, q(8), q(24 + 4 * t), False)
                self.mfma(40 + 4 * t, q(12), q(24 + 4 * t), True)
            for t in range(4):
                d = 40 + 4 * t
                self.a("v_add_f32 v%d, v%d, v%d" % (d, d, d + 1), "v_add_f32 v%d, v%d, v%d" % (d + 2, d + 2, d + 3),
                       "v_add_f32 v%d, v%d, v%d" % (20 + t, d, d + 2))
        ls = self.lines(o_rest)
        a(*ls[:4])
        a(*ls[4:])
        a("ds_write_b128 v5, v[20:23]")
        self.late_loads("L_l1b")
        a("s_waitcnt lgkmcnt(0)", "s_barrier",
          "ds_read2st64_b32 v[16:17], v94 offset0:0 offset1:8", "ds_read2st64_b32 v[18:19], v94 offset0:16 offset1:24",
          "s_waitcnt lgkmcnt(1)", "v_add_f32 v16, v16, v17", "s_waitcnt lgkmcnt(0)", "v_add_f32 v18, v18, v19", "v_add_f32 v16, v16, v18")
        self.pack_pairs(7, 16)
        self.st_cross(7)
        self.stamp("Bpub", True)
        a("v_lshlrev_b32 v90, 5, v0")
        a(*self.colsum_ld(80, 90, OFF_CSG, sb))
        self.w_tiles([("g", vWG), ("q", vWQ)], 5, 7)
        self.layer1("L_l1c")
        self.sentinels(72)
        self.lin(76, 77, (3, 3, 12), (0, 3, 4))
        a("s_and_b32 s100, s%d, 0xffffdfff" % sBst, "s_add_u32 s100, s100, 0x4000")
        self.oob_unless(76, 77, "v_cmp_gt_u32 vcc, 32, v0")
        a("buffer_store_dwordx4 v[72:75], v76, %s, s100 offen sc1" % srd(sXW))
        a(*self.colsum_ld(24, 90, OFF_CSQ, sw))
        self.zero_area(5, 7)
        a("L_l1c:")
        a("v_and_b32 v5, 1, v0", "v_lshlrev_b32 v5, 4, v5", "v_lshlrev_b32 v5, v5, s%d" % sLO, "v_bfe_u32 v6, v0, 1, 2")
        for r in range(4):
            a("v_cmp_eq_u32 vcc, %d, v6" % r, "v_cndmask_b32 v%d, 0, v5, vcc" % (vSEL + r))
        self.x_off(94, 7, 6)
        self.lin(93, 7, (2, 4, 8), (0, 2, 4))
        a("s_bitcmp1_b32 s%d, 0" % sact, "s_cselect_b32 s%d, 0, -1" % stmp)
        self.part_off(92, 7, 10, "s%d" % stmp)
        self.lin(89, 7, (0, 5, 2), (5, 1, 1))
        self.sexpr(100, L_H, (sw, 128))
        a("v_add_u32 v89, s100, v89")
        self.lin(88, 7, (2, 2, 7), (0, 1, 6), (4, 2, 4))
        a("v_add_u32 v88, 0x%x, v88" % L_H)
        wt = self.lines(self.w_tiles, [("d", vWD)], 91, 7)
        a(*[x for x in wt if not x.startswith("ds_")])
        self.sexpr(stmp, 0, (sRow, 1), (sw, 64))
        aux = [self.ld(vX + 4, 93, stmp)]
        a("s_cmp_eq_u32 s%d, 0" % sw, "s_cbranch_scc0 L_nored1")
        self.reduce_x("pollB", vX, vD, sBld)
        self.st_intra("buffer_store_dword", "v7", 94, sXst)
        a("v_lshlrev_b32 v%d, 16, v7" % vRES)
        self.stamp("XBpub", True)
        a("s_branch L_red1", "L_nored1:", "s_waitcnt vmcnt(0)", "L_red1:", "s_barrier")
        ldx = [self.ld(vX, vA16, sXld)]
        self.colsum_fin(80, vCG)
        self.colsum_fin(24, vCQ)
        a("s_waitcnt lgkmcnt(0)")
        a(*[x for x in wt if x.startswith("ds_")])
        self.delay("pollXB")
        self.poll(ldx, [range(vX, vX + 4)], 7, "pollXB", lambda i: self.gemv4(vX, vWG, vD))
        a(*aux)
        self.gemv4_fin(7, vD)
        self.pack_pairs(6, 7)
        self.st_intra("buffer_store_dword", "v6", 92, sCst)
        self.stamp("Cpub", True)
        a("s_add_u32 s%d, s%d, 0x1000" % (sBst, sBst), "s_add_u32 s%d, s%d, 0x1000" % (sB2, sB2), "v_mov_b32 v6, 0",
          "s_bitcmp1_b32 s%d, 1" % sact, "s_cbranch_scc0 L_nod", "s_waitcnt vmcnt(2)")
        ldc = [self.ld(vX, vA16, sCld)]
        a(*ldc)
        self.check_or_poll(aux, [range(vX + 4, vX + 8)], 7, "auxB")
        self.stats(vX + 4, vD, False)
        self.sum4_init(vD + 2, vCG)
        self.poll(ldc, [range(vX, vX + 4)], 7, "pollC", lambda i: self.sum4(vX, vD, vD + 2), issued=True)
        a("v_permlane32_swap_b32 v%d, v%d" % (vD, vD + 1), "v_mul_f32 v%d, s%d, v%d" % (vD, sSC, vD),
          "v_mul_f32 v%d, v%d, v%d" % (vD, vD, vD + 1), "v_cvt_pk_bf16_f32 v%d, v%d, v%d" % (vD, vD, vD),
          "ds_write_b16 v89, v%d" % vD, "s_waitcnt lgkmcnt(0)", "s_barrier", "ds_read_b128 %s, v88" % q(vX + 4), "s_waitcnt lgkmcnt(0)")
        for kb in range(2):
            self.mfma(vD + 4 * kb, q(vX + 4), q(vWD + 4 * kb), False)
        a("v_add_f32 v7, v%d, v%d" % (vD, vD + 5))
        self.pack_pairs(6, 7)
        a("L_nod:")
        self.st_cross(6)
        self.stamp("Dpub", True)
        a("s_add_u32 s%d, s%d, 0x1000" % (stmp, sBld))
        self.layer1("L_last")
        a("v_mov_b32 v28, v94", "v_mov_b32 v30, v93", "s_add_u32 s%d, s%d, 0x3000" % (sBst, sBst),
          "s_add_u32 s%d, s%d, 0x3000" % (sB2, sB2), "s_add_u32 s%d, s%d, 0x4000" % (sBld, sBld), "s_waitcnt vmcnt(%d)" % (2 if self.near else 1))
        self.mk_ai()
        self.lds_group_reads(ORDER[0], vO)
        self.part_off(29, 7, 12)
        self.q_addrs(31, 48, 7)
        self.o_addr(5, 7)
        self.ml_off(6, 7)
        self.sexpr(98, OFF_XD - OFF_XB, (sRow, 1), (sb, 64))
        a("s_add_u32 s%d, s%d, 0x%x" % (sclr, sXst, OFF_XD - OFF_XB), "s_add_u32 s99, s%d, 0x%x" % (sXld, OFF_XD - OFF_XB),
          "s_waitcnt lgkmcnt(0)", "s_cmp_eq_u32 s%d, 0" % sw, "s_cbranch_scc0 L_nored2", "L_redd:")
        self.reduce_x("pollD", 8, 24, stmp)
        a("s_cmp_eq_u32 s%d, 2" % slayer, "s_cbranch_scc1 L_out")
        self.st_intra("buffer_store_dword", "v7", 28, sclr)
        a("v_lshlrev_b32 v%d, 16, v7" % vRES)
        self.stamp("XDpub")
        a("L_nored2:", "s_barrier")
        self.delay("pollXD")
        self.poll([self.ld(24, vA16, 99)], [range(24, 28)], 7, "pollXD", lambda i: self.gemv4(24, vWQ, 8))
        row = [self.ld(24, 30, 98)]
        a(*row)
        self.gemv4_fin(7, 8)
        self.pack_pairs(49, 7)
        self.st_intra("buffer_store_dword", "v49", 29, sEst)
        self.stamp("Epub")
        lde = [self.ld(52, vA16, sEld)]
        a("s_waitcnt vmcnt(2)", *lde)
        self.check_or_poll(row, [range(24, 28)], 7, "rowD")
        self.stats(24, 32, True)
        self.sum4_init(34, vCQ)
        self.poll(lde, [range(52, 56)], 7, "pollE", lambda i: self.sum4(52, 32, 34), issued=True)
        self.stamp("Eget")
        rd = self.q_assemble(32, 31, 48)
        def pv(n, last):
            for k in range(n, last):
                p = ORDER[k]
                if k == 2:
                    self.a(*[x + " ; prio=400" for x in self.lines(self.ml_pub, 6)])
                if p >= 5 and k:
                    self.lds_group_reads(p, vVF)
                if k + 1 < 8:
                    self.pvar(ORDER[k + 1], (k + 1) & 1)
                if k == self.mlat:
                    self.a(self.ld(vP, vA16, sMLld) + " ; prio=900 after=v%d" % (vPV + 4 * ((k + 1) & 1)))
                self.pv_group(p, k & 1, k == 0, vO if k == 0 else None)
        blk = (self.lines(self.next_region) + ["s_waitcnt vmcnt(0) ; guards=v[52:55]"] + self.lines(self.qk) + self.lines(self.softmax)
               + self.lines(self.pvar, ORDER[0], 0) + self.lines(pv, 0, 7) + ["s_mov_b32 s%d, 2" % slayer])
        t1 = self.sched(blk, rd)
        if self.stamps is not True:
            self.stamp("pv2a")
        last = self.lines(pv, 7, 8)
        a("s_waitcnt vmcnt(0)", last[0])
        self.check_or_poll([self.ld(vP, vA16, sMLld)], [range(vP, vP + 4)], 6, "ml2")
        t2 = self.sched(self.lines(self.ml_finish, vP) + last[1:] + self.lines(self.o_write))
        self.est = (t1, t2)
        self.stamp("pv2")
        a("s_branch L_tail")
        a("L_last:", "s_lshr_b32 s100, s%d, 2" % sj, "s_xor_b32 s100, s100, s%d" % sg, "s_or_b32 s100, s100, s%d" % sw,
          "s_cmp_eq_u32 s100, 0", "s_cbranch_scc0 L_fin")
        self.x_off(6, 7, 10)
        self.delay("last")
        a("s_branch L_redd")
        a("L_out:", "s_lshl_b32 s100, s%d, 5" % sj, "buffer_store_dword v7, v6, %s, s100 offen" % srd(sOUT))
        if self.probe:
            self.stamp("out")
            k = self.stamp_names.index(self.probe)
            a("v_readlane_b32 s100, v4, %d" % k, "v_readlane_b32 s101, v4, 0", "s_sub_u32 s100, s100, s101", "s_lshl_b32 s100, s100, 2",
              "s_min_u32 s100, s100, 100000", "s_memrealtime s[0:1]", "s_waitcnt lgkmcnt(0)", "s_mov_b32 s101, s0",
              "L_probe:", "s_memrealtime s[0:1]", "s_waitcnt lgkmcnt(0)", "s_sub_u32 s0, s0, s101", "s_cmp_lt_u32 s0, s100",
              "s_cbranch_scc1 L_probe")
        a("L_fin:")
        if self.stamps and not self.probe:
            self.stamp("end")
            a("s_lshl_b32 s100, s2, 2", "s_add_u32 s100, s100, s%d" % sw, "s_lshl_b32 s100, s100, 7",
              "s_add_u32 s100, s100, 0x%x" % (STAMP_OFF - 2 * LS), "s_mov_b32 s%d, 0x1000000" % (sWS + 2),
              "v_writelane_b32 v4, s%d, 30" % sspin, "v_writelane_b32 v4, s%d, 31" % (sWF + 2),
              "v_lshlrev_b32 v9, 2, v0", "v_cmp_gt_u32 vcc, 32, v0", "s_and_saveexec_b64 s[98:99], vcc",
              "buffer_store_dword v4, v9, %s, s100 offen" % srd(sWS))
            if self.dbgstamps:
                a("v_readlane_b32 s100, v4, 0", "s_not_b32 s100, s100", "v_writelane_b32 v4, s100, 15",
                  "v_cmp_gt_u32 vcc, 16, v0", "s_and_saveexec_b64 s[98:99], vcc",
                  "buffer_atomic_umax v4, v9, %s, 0 offen sc1" % srd(sDBG))
        a("L_end:", "s_endpgm")
        a(*self.cold)
        a("L_codeend:")

    def build(self):
        self.prologue()
        self.stream()
        self.chain()
        self.a.pad()
        head = open("cdna_kernels/" + KNAME[:-7] + ".s.ref").read().split("; Override launch")[0]
        return (head + "; @launch grid=(256,1,1) block=(256,1,1) lds=163840\n"
                '.amdgcn_target "amdgcn-amd-amdhsa--gfx950"\n.text\n.globl %s\n.p2align 8\n.type %s,@function\n%s:\n' % (KNAME, KNAME, KNAME)
                + self.a.text() +
                '.section .rodata,"a"\n.p2align 6\n.amdhsa_kernel %s\n  .amdhsa_next_free_vgpr 512\n  .amdhsa_next_free_sgpr 102\n'
                "  .amdhsa_accum_offset 256\n  .amdhsa_group_segment_fixed_size 0\n  .amdhsa_kernarg_size 96\n"
                "  .amdhsa_user_sgpr_count 2\n  .amdhsa_user_sgpr_kernarg_segment_ptr 1\n  .amdhsa_system_sgpr_workgroup_id_x 1\n"
                ".end_amdhsa_kernel\n" % KNAME)


if __name__ == "__main__":
    out = sys.argv[1]
    kw = eval("dict(%s)" % (sys.argv[2] if len(sys.argv) > 2 else ""))
    g = Gen(**kw)
    s = g.build()
    open(out, "w").write(s)
    if len(sys.argv) > 3:
        print("estimated attention cycles", g.est)
    if g.stamps:
        open(out[:-2] + ".names", "w").write("\n".join(g.stamp_names))
```

```python
import re

REG = re.compile(r"^(-?)(?:abs\()?([vas])(?:(\d+)|\[(\d+):(\d+)\])\)?$")
TRANS = ("v_exp_f32", "v_log_f32", "v_rcp_f32", "v_rsq_f32", "v_sqrt_f32", "v_sin_f32", "v_cos_f32")


def regs(tok):
    tok = tok.strip()
    if tok == "vcc":
        return {("s", "vcc")}
    if tok == "exec":
        return {("s", "exec")}
    if tok == "m0":
        return {("s", "m0")}
    m = re.match(r"^vp\[(\d+)\]$", tok)
    if m:
        i = int(m.group(1))
        return {("v", b + 4 * i + r) for b in (64, 96) for r in range(4)}
    m = REG.match(tok)
    if not m:
        return set()
    k = m.group(2)
    if m.group(3) is not None:
        return {(k, int(m.group(3)))}
    return {(k, i) for i in range(int(m.group(4)), int(m.group(5)) + 1)}


class Ins:
    def __init__(self, text):
        self.text = text
        t = text.split(";")[0].strip()
        self.label = t[:-1] if t.endswith(":") else None
        self.op = "" if self.label or t.startswith(".") else t.split()[0]
        self.directive = t.startswith(".")
        rest = t[len(self.op):].strip() if self.op else ""
        parts = [p.strip() for p in rest.split(",")] if rest else []
        mods = ""
        if "quad_perm" in rest:
            i = rest.index("quad_perm")
            mods = rest[i:]
            parts = [p.strip() for p in rest[:i].split(",")]
        ops = []
        for p in parts:
            w = p.split()
            if w:
                ops.append(w[0])
                mods += " " + " ".join(w[1:])
        self.ops, self.mods = ops, mods
        op = self.op
        self.mfma = op.startswith("v_mfma") or op.startswith("v_smfmac")
        self.valu = op.startswith("v_") and not self.mfma
        self.ds = op.startswith("ds_")
        self.vmem = op.startswith("buffer_") or op.startswith("global_")
        self.salu = op.startswith("s_")
        self.dpp = "_dpp" in op or any(k in mods for k in ("quad_perm", "row_", "wave_"))
        self.trans = op.replace("_e32", "").replace("_e64", "") in TRANS
        self.dot = op.startswith("v_dot")
        self.perm = op.startswith("v_permlane")
        self.branch = op.startswith("s_cbranch") or op == "s_branch"
        self.target = ops[0] if self.branch else None
        self.ends = op in ("s_branch", "s_endpgm", "s_setpc_b64")
        self.w, self.r = set(), set()
        self.srcc, self.ab, self.stdata = set(), set(), set()
        R = [regs(o) for o in ops]
        if self.mfma:
            self.w = R[0]
            self.ab = R[1] | R[2]
            if op.startswith("v_smfmac"):
                self.srcc = R[0]
                self.ab |= R[3]
            else:
                self.srcc = R[3]
            self.r = self.ab | self.srcc
            self.passes = 8 if "32x32" in op else 4
        elif self.valu:
            self.w = set(R[0])
            self.r = set().union(*R[1:]) if len(R) > 1 else set()
            if self.perm:
                self.w = R[0] | R[1]
                self.r = R[0] | R[1]
            if op.startswith(("v_fmac", "v_dot2c", "v_writelane")) or self.dpp:
                self.r |= R[0]
            if op.startswith("v_cndmask") and len(ops) == 3:
                self.r |= {("s", "vcc")}
        elif self.ds:
            if op.startswith("ds_read") or "bpermute" in op or "swizzle" in op:
                self.w = R[0]
                self.r = set().union(*R[1:])
            else:
                self.r = set().union(*R)
        elif self.vmem:
            lds = " lds" in (" " + mods) or "_lds_" in op
            self.ldsdma = lds
            if lds:
                self.r = set().union(*R) | {("s", "m0")}
            elif "load" in op:
                self.w = R[0]
                self.r = set().union(*R[1:])
            elif op.startswith("buffer_"):
                if R:
                    self.r = set().union(*R)
                    if "x4" in op or "x3" in op:
                        self.stdata = R[0]
                    if "atomic" in op and "sc0" in mods:
                        self.w = R[0]
            else:
                self.r = set().union(*R) if R else set()
        elif self.salu and ops and not self.branch and not op.startswith(("s_cmp", "s_waitcnt", "s_nop", "s_sleep", "s_setprio", "s_bitcmp")):
            self.w = set(R[0])
            self.r = set().union(*R[1:]) if len(R) > 1 else set()
            if "saveexec" in op:
                self.w |= {("s", "exec")}
        elif self.salu:
            self.r = set().union(*R) if R else set()

    def states(self):
        if self.label or self.directive or not self.op:
            return 0
        if self.op == "s_nop":
            return int(self.ops[0], 0) + 1
        return 1


def vec(s):
    return {x for x in s if x[0] in "va"}


def sca(s):
    return {x for x in s if x[0] == "s"}


def need(p, c):
    n = 0
    if p.valu:
        pw = vec(p.w)
        if c.mfma and pw & c.r:
            n = max(n, 3 if p.dot else 2)
        if c.valu and c.dpp and pw & c.r:
            n = max(n, 2)
        if c.perm and pw & c.r:
            n = max(n, 2)
        if c.op.startswith(("v_readlane", "v_readfirstlane")) and pw & c.r:
            n = max(n, 1)
        if p.trans and c.valu and not c.trans and pw & c.r:
            n = max(n, 1)
        if p.trans and (c.ds or c.vmem) and pw & c.r:
            n = max(n, 1)
        if p.dot and pw & (c.r | c.w):
            same_chain = c.op == p.op and len(c.ops) == 4 and not (pw & (regs(c.ops[1]) | regs(c.ops[2])))
            if not same_chain:
                n = max(n, 3)
        if "sdwa" in p.op and c.valu and pw & (c.r | c.w):
            n = max(n, 1)
        ps = sca(p.w)
        if ps & c.r:
            if c.vmem:
                n = max(n, 5)
            elif c.op.startswith(("v_readlane", "v_writelane")):
                n = max(n, 4)
            elif c.valu:
                n = max(n, 2)
            elif c.salu:
                n = max(n, 1)
    if p.mfma:
        t = {4: (6, 8, 3), 8: (10, 12, 7)}[p.passes]
        if c.mfma:
            if p.w & c.ab:
                n = max(n, t[1])
            if p.w & c.srcc and (p.w != c.srcc or p.passes != c.passes):
                n = max(n, t[0])
            if p.w & c.w and not (p.w & c.srcc):
                n = max(n, t[0])
        elif (c.valu or c.ds or c.vmem) and p.w & (c.r | c.w):
            n = max(n, t[1])
        if c.valu and p.srcc & c.w:
            n = max(n, t[2])
    if p.vmem and p.stdata and p.stdata & c.w:
        n = max(n, 2 if c.valu or c.mfma else 1)
    if p.ds and p.op.startswith("ds_write") and ("b128" in p.op or "b96" in p.op) and c.valu and vec(p.r) & c.w:
        n = max(n, 2)
    if p.salu and ("s", "m0") in p.w and ("s", "m0") in c.r and (c.vmem or c.ds or c.valu):
        n = max(n, 1)
    return n


def physical(text):
    def ph(r):
        if 64 <= r < 128:
            return 64 + 8 * (((r - 64) & 31) >> 2) + (4 if r >= 96 else 0) + (r & 3)
        return r

    def one(m):
        if m.group(1):
            return "v%d" % ph(int(m.group(1)))
        a, b = int(m.group(2)), int(m.group(3))
        assert ph(b) - ph(a) == b - a, text
        return "v[%d:%d]" % (ph(a), ph(b))
    text = re.sub(r"\bv(?:(\d+)\b|\[(\d+):(\d+)\])", one, text)
    return re.sub(r"\bvp\[(\d+)\]", lambda m: "v[%d:%d]" % (64 + 8 * int(m.group(1)), 71 + 8 * int(m.group(1))), text)


class Asm:
    def __init__(self):
        self.l = []
        self.vm = 0
        self.nlab = 0

    def __call__(self, *lines):
        for s in lines:
            for t in s.split("\n"):
                t = t.strip()
                if not t:
                    continue
                i = Ins(t)
                self.l.append(i)
                if i.vmem and i.op not in ("buffer_inv", "buffer_wbl2"):
                    self.vm += 1
        return self.vm

    def mark(self):
        return self.vm

    def wait_vm(self, token, lgkm=None):
        n = min(self.vm - token, 63)
        self("s_waitcnt vmcnt(%d)%s" % (n, "" if lgkm is None else " lgkmcnt(%d)" % lgkm))

    def uncounted(self, token):
        self.vm = token

    def lab(self, name):
        self.nlab += 1
        return "L_%s_%d" % (name, self.nlab)

    def pad(self):
        changed = True
        total = 0
        while changed:
            changed = False
            L = self.l
            src = {}
            for k, i in enumerate(L):
                if i.branch:
                    src.setdefault(i.target, []).append(k)
            for k, c in enumerate(L):
                if not c.op or c.op in ("s_nop", "s_waitcnt", "s_barrier"):
                    continue
                worst = 0
                stack = [(k - 1, 0, True)]
                seen = set()
                while stack:
                    j, dist, fall = stack.pop()
                    while j >= 0 and dist < 13:
                        p = L[j]
                        if (j, dist) in seen:
                            break
                        seen.add((j, dist))
                        if p.label:
                            for b in src.get(p.label, []):
                                stack.append((b, dist, False))
                        elif p.ends and fall:
                            break
                        elif p.op:
                            worst = max(worst, need(p, c) - dist)
                            dist += p.states()
                        fall = True
                        j -= 1
                if worst > 0:
                    L.insert(k, Ins("s_nop %d" % (worst - 1)))
                    total += worst
                    changed = True
                    break
        return total

    def text(self):
        return "\n".join((i.text if i.label else "    " + physical(i.text)) for i in self.l) + "\n"


def schedule(lines, pre=()):
    ins = [Ins(t) for t in lines]
    n = len(ins)
    for i in ins:
        m = re.search(r"guards=(\S+)", i.text)
        if m:
            i.w = i.w | regs(m.group(1))
            i.r = i.r | regs(m.group(1))
        m = re.search(r"after=(\S+)", i.text)
        if m:
            i.r = i.r | regs(m.group(1))
        if i.op.startswith("s_") and not i.op.startswith(("s_mov", "s_waitcnt", "s_nop")):
            i.w = i.w | {("s", "scc")}
            if i.op.startswith(("s_addc", "s_cselect", "s_subb")):
                i.r = i.r | {("s", "scc")}
        for o in i.ops[:1]:
            if o in ("vcc_lo", "vcc_hi"):
                i.w = i.w | {("s", "vcc")}
                i.r = i.r | {("s", "vcc")}
        m = re.search(r"prio=(-?\d+)", i.text)
        i.bias = int(m.group(1)) if m else 0
        m = re.search(r"lat=(\d+)", i.text)
        i.minlat = int(m.group(1)) if m else 0
        m = re.search(r"tail=(\d+)", i.text)
        i.tail = int(m.group(1)) if m else 0
        m = re.search(r"mem=(\w+)", i.text)
        i.tag = m.group(1) if m else ""
        i.cost = 12 if i.op.startswith('v_smfmac') else 8 if i.mfma or i.trans else 4
    pred = [[] for _ in range(n)]
    for b in range(n):
        B = ins[b]
        for a in range(b):
            A = ins[a]
            lat = None
            if A.w & B.r:
                lat = 100 if A.ds else 300 if A.vmem else A.cost
                if A.mfma:
                    lat = 16 if B.mfma and A.w == B.srcc and not (A.w & B.ab) else 40
            elif A.w & B.w:
                lat = 100 if A.ds else 40 if A.mfma else A.cost
            elif A.r & B.w:
                lat = A.cost
            elif A.ds and B.ds and A.tag != B.tag:
                pass
            elif A.ds and B.ds and not A.w and B.w:
                lat = 8
            elif (A.ds and B.ds) or ((A.vmem or A.op == "s_waitcnt") and (B.vmem or B.op == "s_waitcnt")):
                lat = A.cost
            if lat is not None:
                if A.vmem and B.vmem:
                    lat = max(lat, B.minlat)
                pred[b].append((a, lat))
    succ = [[] for _ in range(n)]
    for b in range(n):
        for a, lat in pred[b]:
            succ[a].append((b, lat))
    mf = [k for k in range(n) if ins[k].mfma]
    nxt = dict(zip(mf, mf[1:]))
    crit = [0] * n
    for a in range(n - 1, -1, -1):
        crit[a] = max([lat + crit[b] for b, lat in succ[a]] + [ins[a].cost, ins[a].tail] + ([16 + crit[nxt[a]]] if a in nxt else []))
    done, out, t, pipe = {}, [], 0, 0
    left = set(range(n))

    def short(c):
        dist, worst = 0, 0
        for p in reversed(out[-13:]):
            worst = max(worst, need(ins[p], ins[c]) - dist)
            dist += 1
        return worst

    while left:
        ready = [k for k in left if all(a in done for a, _ in pred[k]) and not (ins[k].mfma and any(m in left for m in mf if m < k))]
        def start(k):
            s = max([t] + [done[a] + lat for a, lat in pred[k]])
            if ins[k].mfma:
                s = max(s, pipe)
            return max(s, t + 4 * short(k))
        st = {k: start(k) for k in ready}
        now = [k for k in ready if st[k] <= t]
        m = [k for k in ready if ins[k].mfma]
        if m and st[m[0]] <= t:
            k = m[0]
        elif now:
            fit = [k for k in now if not m or t + ins[k].cost <= st[m[0]]]
            top = max(now, key=lambda k: crit[k] + ins[k].bias)
            if fit and not (m and crit[top] + ins[top].bias > crit[m[0]] + 8):
                k = max(fit, key=lambda k: crit[k] + ins[k].bias)
            elif m and crit[top] + ins[top].bias <= crit[m[0]] + 8 and st[m[0]] - t <= 4:
                k = m[0]
            else:
                k = top
        else:
            k = min(ready, key=lambda k: (st[k], -crit[k]))
        t = st[k]
        done[k] = t
        if ins[k].mfma:
            pipe = t + 16
        t += ins[k].cost
        out.append(k)
        left.discard(k)
    res, pend = [], [(set(Ins(p).w), 0) for p in pre]
    for k in out:
        i = ins[k]
        hit = [p for p, (w, _) in enumerate(pend) if w & (i.r | i.w)]
        if hit:
            old = [p for p, (_, ti) in enumerate(pend) if done[k] - ti >= 140]
            pend = pend[max(hit + old) + 1:]
            res.append("s_waitcnt lgkmcnt(%d)" % min(len(pend), 15))
        res.append(i.text.split(";")[0].rstrip())
        if i.ds:
            pend.append((set(i.w), done[k]))
    return res, t


def align(asm, window=32, nop_cost=1.0):
    import os
    import subprocess
    import tempfile
    llvm = "bin/"
    with tempfile.TemporaryDirectory() as d:
        open(d + "/a.s", "w").write('.amdgcn_target "amdgcn-amd-amdhsa--gfx950"\n.text\n' + asm.text())
        subprocess.run([llvm + "clang", "-x", "assembler", "-target", "amdgcn-amd-amdhsa", "-mcpu=gfx950", "-c", d + "/a.s", "-o", d + "/a.o"], check=True)
        out = subprocess.run([llvm + "llvm-objdump", "-d", "--mcpu=gfx950", d + "/a.o"], capture_output=True, text=True, check=True).stdout
    sizes = [4 * len(m.group(1).split()) for m in re.finditer(r"// [0-9A-F]{12}: ((?:[0-9A-F]{8} ?)+)", out)]
    ins = [i for i in asm.l if i.op]
    assert len(ins) == len(sizes), (len(ins), len(sizes))
    n = window // 4
    INF = 1e18
    cost = [0.0] + [INF] * (n - 1)
    back = []
    for i, sz in zip(ins, sizes):
        wide = sz == 4 and i.valu and not i.op.startswith(("v_readfirstlane", "v_permlane", "v_nop"))
        new, arg = [INF] * n, [None] * n
        for o in range(n):
            if cost[o] >= INF:
                continue
            for ch, pre, s_, extra in (("", 0, sz, 0.0), ("w", 0, 8, 0.01), ("n", 1, sz, nop_cost)):
                if ch == "w" and not wide:
                    continue
                st = (o + pre) % n
                c = cost[o] + extra + (1.0 if st + s_ // 4 > n else 0.0)
                e = (st + s_ // 4) % n
                if c < new[e]:
                    new[e], arg[e] = c, (o, ch)
        cost = new
        back.append(arg)
    o = min(range(n), key=lambda k: cost[k])
    total = cost[o]
    choice = []
    for arg in reversed(back):
        o, ch = arg[o]
        choice.append(ch)
    choice.reverse()
    res, k = [], 0
    for i in asm.l:
        if i.op:
            if choice[k] == "n":
                res.append(Ins("s_nop 0"))
            if choice[k] == "w":
                i = Ins(i.text.replace(i.op, i.op + "_e64", 1))
            k += 1
        res.append(i)
    asm.l = res
    return total, choice.count("w"), choice.count("n")
```

```python
import struct
import sys
from asmlib import Asm, align, schedule

KNAME = "interleave_layers__gqa_block_cached__glu_gated_bilinear__decode_kernel"

LS = 1 << 20
OFF_ML, OFF_A, OFF_C, OFF_XB, OFF_XD, OFF_E = 0, 4 << 10, 36 << 10, 52 << 10, 56 << 10, 60 << 10
OFF_CSG, OFF_CSQ = 56 << 10, 64 << 10
WS_SIZE = 3 * LS
STAMP_OFF = 8 << 20
OOB = 0x7FFF0000

RING = 24576
L_WQ = 4 * RING
L_WO = L_WQ + 16384
L_WG = L_WO + 16384
L_WD = L_WG + 16384
L_SCR = L_WD + 8192
L_H = L_SCR + 1024
L_Q, QSTR = L_SCR + 1536, 2112
L_OOB = 0x30000
assert L_SCR + 8192 == 163840

sK, sV, sWS, sWF, sWL, sOUT, sDBG, sXI, sT = 28, 32, 36, 40, 44, 48, 52, 56, 96
sw, sg, sj, sb, ss, su, sring, srot, stmp, slayer = range(60, 70)
(sMLst, sMLld, sAst, sAld, sBst, sBld, sXst, sXld, sCst, sCld, sCS, sS1, sSC, sRow, sEst, sEld) = range(70, 86)
sWo, sWl = 86, 87
sM1 = 88
sspin, scmp = 94, 95
sclr, slead, sact = 3, 14, 15
sLO, sHI = 6, 7
sXW, sB2, svote = 24, 23, 22
sslow = 10
sWo2, sWl2 = 8, 9
SPIN_LIMIT = 1 << 18

vL, vA16, vTRV, vRES = 0, 1, 2, 3
vQ, vO, vIX, vAI, vS = 8, 24, 56, 56, 64
vWG, vWD, vWQ, vCG, vCQ, vSEL, vX, vD = 8, 24, 32, 48, 50, 52, 56, 72
vKS, vKR = 240, 244
ORDER = [0, 1, 2, 3, 5, 6, 7, 4]
SLOT = {5: 2, 6: 4, 7: 0}
SCALE = 128 ** -0.5 * 1.4426950408889634
ONES = "0x3f803f80"


def f32(x):
    return "0x%08x" % struct.unpack("<I", struct.pack("<f", x))[0]


def q(r, n=4, k="v"):
    return "%s[%d:%d]" % (k, r, r + n - 1)


def srd(r):
    return "s[%d:%d]" % (r, r + 3)


class Gen:
    def __init__(self, depth=6, burst=6, rotg=5, stamps=False, force_slow=False, skip="", wpol="nt", kvpol="nt",
                 dbgstamps=False, tq=(2, 3, 4, 5), tg=(6, 7, 8, 9), to=(31, 31, 31, 31), lag=2, probe=None, cyc=False,
                 d0=None, tclr=27, dbl="pollXB,pollC,pollXD,pollE", gap=1, near=1, dly=None, ipf=24,
                 sync=(3, 5, 8, 10, 12, 15, 17), nB=200, nD=200, wb=False, gap2=14, mlat=(200, 120), mltail=500, mlcut=8, p0=400, win=32, ipf0=True, back={}, dup=False):
        self.__dict__.update(locals())
        self.a = Asm()
        self.nst = 0
        self.cold = []
        self.nslow = 0
        self.stamp_names = []

    def stamp(self, name, per_layer=False):
        if not self.stamps or (self.stamps is not True and name not in self.stamps):
            return
        a = self.a
        k = self.nst
        self.nst += 2 if per_layer else 1
        assert self.nst <= 28
        a("%s s[0:1]" % ("s_memtime" if self.cyc else "s_memrealtime"), "s_waitcnt lgkmcnt(0)")
        if per_layer:
            self.stamp_names += [name + "/1", name + "/2"]
            a("s_add_u32 m0, s%d, %d" % (slayer, k - 1), "v_writelane_b32 v4, s0, m0")
        else:
            self.stamp_names.append(name)
            a("v_writelane_b32 v4, s0, %d" % k)

    def mk_srd(self, d, p, size):
        self.a("s_mov_b32 s%d, s%d" % (d, p), "s_mov_b32 s%d, s%d" % (d + 1, p + 1),
               "s_mov_b32 s%d, %s" % (d + 2, size), "s_mov_b32 s%d, 0x20000" % (d + 3))

    def lin(self, d, t, *terms):
        first = True
        for sh, bits, sc in terms:
            r = d if first else t
            if sh + bits >= 6:
                src = vL
                if sh:
                    self.a("v_lshrrev_b32 v%d, %d, v0" % (r, sh)); src = r
            elif sh == 0:
                self.a("v_and_b32 v%d, %d, v0" % (r, (1 << bits) - 1)); src = r
            else:
                self.a("v_bfe_u32 v%d, v0, %d, %d" % (r, sh, bits)); src = r
            if first:
                if sc or src != d:
                    self.a("v_lshlrev_b32 v%d, %d, v%d" % (d, sc, src))
            else:
                self.a("v_lshl_add_u32 v%d, v%d, %d, v%d" % (d, src, sc, d))
            first = False

    def sexpr(self, d, const, *terms):
        a = self.a
        first = True
        for reg, mult in terms:
            r = d if first else 101
            if mult & (mult - 1) == 0:
                a("s_lshl_b32 s%d, s%d, %d" % (r, reg, mult.bit_length() - 1))
            else:
                a("s_mul_i32 s%d, s%d, %d" % (r, reg, mult))
            if not first:
                a("s_add_u32 s%d, s%d, s101" % (d, d))
            first = False
        if const:
            a("s_add_u32 s%d, s%d, 0x%x" % (d, d, const))

    def oob_unless(self, v, t, cond):
        self.a(cond, "v_mov_b32 v%d, 0x%x" % (t, OOB), "v_cndmask_b32 v%d, v%d, v%d, vcc" % (v, t, v))

    def even_only(self, v, t, cmp="0"):
        self.a("v_and_b32 v%d, 1, v0" % t)
        self.oob_unless(v, t, "v_cmp_eq_u32 vcc, %s, v%d" % (cmp, t))

    def st_intra(self, op, data, voff, soff, both=False):
        a = self.a
        slow = "%s %s, v%d, %s, s%d offen sc1" % (op, data, voff, srd(sWL), soff)
        a("%s %s, v%d, %s, s%d offen" % (op, data, voff, srd(sWF), soff))
        if both or self.dup:
            tk = a.mark()
            a(slow)
            a.uncounted(tk)
            return
        self.nslow += 1
        L = "L_slow%d" % self.nslow
        a("s_cmp_eq_u32 s%d, 0" % (sWF + 2), "s_cbranch_scc1 " + L, L + "_b:")
        self.cold += [L + ":", slow, "s_branch %s_b" % L]

    def ld(self, r, voff, soff, off=0, n=4, rs=sWS):
        return "buffer_load_dword%s %s, v%d, %s, s%d offen offset:%d sc1" % (
            "x%d" % n if n > 1 else "", q(r, n) if n > 1 else "v%d" % r, voff, srd(rs), soff, off)

    def spin_count(self):
        return ["s_add_u32 s%d, s%d, 1" % (sspin, sspin), "s_cmp_lt_u32 s%d, 0x%x" % (sspin, SPIN_LIMIT), "s_cselect_b32 s%d, -2, -1" % scmp]

    def two(self, name):
        return name in self.dbl.split(",")

    def poll(self, loads, regs, acc, name, spec=None, issued=0, then=()):
        a = self.a
        L = a.lab(name)
        k = 2 if self.two(name) else 1
        n = len(loads)
        for r in range(issued, k):
            if r:
                a("s_sleep %d" % self.gap)
            a(*loads)
        a("s_branch %s_w" % L, L + ":")
        b = self.back.get(name, self.back.get("*", 0)) if k > 1 or name in self.back else 0
        for _ in range(b // 16):
            a("s_nop 15")
        if b % 16:
            a("s_nop %d" % (b % 16 - 1))
        a(*loads)
        a(*self.spin_count())
        a(L + "_w:")
        self.check(regs, acc, k * n, spec if k == 1 else None)
        a("s_cbranch_vccnz " + L, *then)
        if k > 1 and spec:
            for r in range(n):
                spec(r)
        if self.stamps is not True:
            self.stamp(name, True)

    def with_loads(self, name, work, loads):
        a = self.a
        d = (self.dly or {}).get(name, 0)
        cut = [d, d + self.gap2] if self.two(name) else [d]
        for k, ln in enumerate(work):
            if cut and k == cut[0]:
                a(*loads)
                cut.pop(0)
            a(ln)
        return (2 if self.two(name) else 1) - len(cut)

    def check(self, regs, acc, n, spec=None):
        a = self.a
        have, rr = None, []
        for i, part in enumerate(regs):
            if n:
                a("s_waitcnt vmcnt(%d)" % (n - 1 - i))
            if spec:
                spec(i)
            rr += list(part)
            last = i == len(regs) - 1
            while rr:
                pool = ([have] if have is not None else []) + rr
                if len(pool) >= 3:
                    a("v_max3_u32 v%d, v%d, v%d, v%d" % (acc, *pool[:3])); rr = pool[3:]; have = acc
                elif not last:
                    break
                elif len(pool) == 2:
                    a("v_max_u32 v%d, v%d, v%d" % (acc, *pool)); rr = []; have = acc
                else:
                    have = pool[0]; rr = []
        a("v_cmp_lt_u32 vcc, s%d, v%d" % (scmp, have))

    def check_or_poll(self, loads, regs, acc, name, wait, pre=()):
        a = self.a
        tk = a.mark()
        a("s_branch L_%s_c" % name, "L_%s_r:" % name, *pre)
        a(*loads)
        a(*self.spin_count())
        a("s_waitcnt vmcnt(0)", "L_%s_c:" % name)
        a.uncounted(tk)
        a.wait_vm(wait)
        self.check(regs, acc, 0)
        a("s_cbranch_vccnz L_%s_r" % name)

    def mfma(self, d, A, B, c):
        self.a("v_mfma_f32_16x16x32_bf16 %s, %s, %s, %s" % (q(d), A, B, q(d) if c else "0"))

    def smf(self, d, A, B):
        self.a("v_smfmac_f32_16x16x64_bf16 %s, %s, %s, v%d" % (q(d), A, B, vIX))

    def dpp(self, op, d, s0, s1, ctl, rm="0xf"):
        self.a("%s_dpp v%d, v%d, v%d %s row_mask:%s bank_mask:0xf" % (op, d, s0, s1, ctl, rm))

    def pack_pairs(self, d, v):
        self.a("v_mov_b32_dpp v%d, v%d quad_perm:[1,1,3,3] row_mask:0xf bank_mask:0xf" % (d, v),
               "v_cvt_pk_bf16_f32 v%d, v%d, v%d" % (d, v, d))

    def tile_issue(self, T, between=None):
        a = self.a
        a("s_and_b32 s%d, s%d, 15" % (srot, srot), "s_lshl_b32 s%d, s%d, 17" % (stmp, srot),
          "s_add_u32 s%d, s%d, s%d" % (stmp, stmp, su), "s_add_u32 s%d, s%d, 1" % (srot, srot),
          "s_add_u32 m0, s%d, %d" % (sring, (T % 6) * 4096))
        if T >= 6:
            a("s_waitcnt lgkmcnt(%d)" % (0 if between else 1))
        for jj in range(4):
            self.throttle(T, 4 * T + jj >= 128 - self.burst)
            va = vKS + jj if T < 16 else 5 + (jj & 1)
            a("buffer_load_dwordx4 v%d, %s, s%d offen offset:%d %s lds" % (va, srd(sK if T < 16 else sV), stmp, jj * 1024, self.kvpol))
            self.ltok.append(a.mark())
            self.tok[T] = a.mark()
            if between:
                between(jj)
        if 16 <= T < 31:
            a("v_xor_b32 v5, 64, v5", "v_xor_b32 v6, 64, v6")

    def throttle(self, T, burst):
        d = self.d0.get(T, self.depth) if self.d0 else self.depth
        if T > 1 and not burst and d < len(self.ltok):
            self.a.wait_vm(self.ltok[-d])

    def vreg(self, p, i):
        return 128 + 64 * (p >> 1) + 8 * i + 4 * (p & 1) if p < 4 else (96 if p == 4 else vS) + 4 * i

    def v_reads(self, p, dst=None):
        slot = (16 + 2 * p) % 6
        for i in range(8):
            for h in range(2):
                d = dst(i, h) if dst else q(self.vreg(p, i) + 2 * h, 2)
                self.a("ds_read_b64_tr_b16 %s, v%d offset:%d ; mem=v" % (d, vAI + i if i else vTRV, slot * 4096 + h * 512))

    def tile_consume(self, T):
        a = self.a
        if T < 16:
            a.wait_vm(self.tok[T])
            for st in range(4):
                a("ds_read_b128 %s, v%d offset:%d" % (q(16 * T + 4 * st, 4, "a"), vKR + st, (T % 6) * 4096))
        elif T & 1:
            a.wait_vm(self.tok[T])
            self.v_reads((T - 16) >> 1)

    def mk_ai(self):
        for i in range(1, 8):
            self.a("v_xor_b32 v%d, %d, v%d" % (vAI + i, i << 5, vTRV))
        self.a("v_and_b32 v%d, 1, v0" % vIX, "v_mul_u32_u24 v%d, 0xaaaa, v%d" % (vIX, vIX), "v_add_u32 v%d, 0x4444, v%d" % (vIX, vIX))

    def weight_load(self, kind, k, T, va=52):
        a = self.a
        t = va + 1
        pitch = {"q": 8192, "g": 3584, "d": 1024, "o": 1024}[kind]
        if k == 0:
            if kind == "o":
                self.lin(va, t, (5, 1, 14), (3, 2, 10), (0, 3, 4))
                a("v_and_b32 v%d, 32, v0" % t, "v_xor_b32 v%d, v%d, v%d" % (va, va, t))
                self.mk_srd(sT, 12, "0x400000")
                self.sexpr(sWo, 0, (sg, 512 * 1024), (sb, 128 * 1024), (sw, 4096), (ss, 128))
                self.sexpr(sWl, L_WO, (sw, 4096))
            else:
                a("v_lshrrev_b32 v%d, 3, v0" % va, "v_mul_u32_u24 v%d, %d, v%d" % (va, pitch, va), "v_and_b32 v%d, 7, v0" % t,
                  "v_lshl_add_u32 v%d, v%d, 4, v%d" % (va, t, va), "v_bfe_u32 v%d, v0, 4, 1" % t, "v_lshlrev_b32 v%d, 5, v%d" % (t, t),
                  "v_xor_b32 v%d, v%d, v%d" % (va, va, t))
            if kind in "qg":
                a("s_and_b32 s100, s%d, 1" % sw, "s_lshl_b32 s100, s100, 6", "v_xor_b32 v%d, s100, v%d" % (va, va))
            if kind == "q":
                self.mk_srd(sT, 10, "0x400000")
                self.sexpr(sWo, 0, (sb, 128 * pitch), (sw, 32 * pitch), (sg, 1024), (ss, 128))
                self.sexpr(sWl, L_WQ, (sw, 4096))
            if kind in "gd":
                a("s_lshr_b32 s100, s%d, 1" % sg, "s_mul_i32 s100, s100, 7", "s_and_b32 s%d, s%d, 1" % (stmp, sg),
                  "s_lshl_b32 s%d, s%d, 2" % (stmp, stmp), "s_add_u32 s100, s100, s%d" % stmp)
            if kind == "g":
                a("s_and_b32 s%d, s%d, 3" % (stmp, ss), "s_add_u32 s100, s100, s%d" % stmp)
                self.sexpr(sWo, 0, (sb, 128 * pitch), (sw, 32 * pitch), (100, 128))
                self.sexpr(sWl, L_WG, (sw, 4096))
                a("s_bitcmp1_b32 s%d, 0" % sact, "s_cselect_b32 s100, 0x%x, 0" % (512 * pitch))
                self.mk_srd(sT, 16, "s100")
                a("s_cmp_ge_u32 s%d, 4" % ss, "s_cselect_b32 s%d, s18, s16" % sT, "s_cselect_b32 s%d, s19, s17" % (sT + 1))
            if kind == "d":
                a("s_add_u32 s100, s100, s%d" % sb)
                self.sexpr(sWo2, 0, (100, 64 * pitch), (sw, 16 * pitch), (ss, 128))
                self.sexpr(sWl2, L_WD, (sw, 2048))
                a("s_bitcmp1_b32 s%d, 1" % sact, "s_cselect_b32 s100, 0x%x, 0" % (1792 * pitch))
                self.mk_srd(sXI, 20, "s100")
            if kind in "od":
                a("v_xor_b32 v%d, 64, v%d" % (t, va))
            if T is None:
                return
        self.weight_issue(kind, k, T, va)

    def weight_issue(self, kind, k, T, va):
        a = self.a
        pitch = {"q": 8192, "g": 3584, "d": 1024, "o": 1024}[kind]
        so, sl, rs = (sWo2, sWl2, sXI) if kind == "d" else (sWo, sWl, sT)
        a("s_add_u32 s%d, s%d, 0x%x" % (stmp, so, (32 if kind == "o" else 8) * pitch * k), "s_add_u32 m0, s%d, 0x%x" % (sl, 1024 * k))
        if kind not in self.skip:
            if T < 31:
                self.throttle(T, False)
            a("buffer_load_dwordx4 v%d, %s, s%d offen %s lds" % (va + (k & 1 if kind in "od" else 0), srd(rs), stmp, self.wpol))
            self.ltok.append(a.mark())
        self.wtok[kind] = a.mark()

    def lines(self, fn, *args):
        keep, self.a = self.a, Asm()
        fn(*args)
        out, self.a = [i.text for i in self.a.l], keep
        return out

    def sched(self, lines, pre=()):
        out, t = schedule(lines, pre)
        self.a(*out)
        return t

    def s_zero(self):
        for r in range(vS, vS + 32, 2):
            self.a("v_mov_b64 %s, 0" % q(r, 2))

    def qk(self):
        a = self.a
        for k, p in enumerate(ORDER):
            d = vS + 4 * k
            for sg_ in range(2):
                for hf in range(2):
                    self.smf(d, q(vQ + 8 * sg_ + 4 * hf), q(16 * (2 * p + sg_) + 8 * hf, 8, "a"))
            a("v_add_f32 v%d, v%d, v%d" % (d, d, d + 1), "v_add_f32 v%d, v%d, v%d" % (d + 2, d + 2, d + 3))
            a("v_max3_f32 v7, v7, v%d, v%d" % (d, d + 2) if k else "v_max_f32 v7, v%d, v%d" % (d, d + 2))

    def ml_off(self, v, t):
        self.a("v_mov_b32 v%d, v%d" % (v, vA16), "v_and_b32 v%d, 15, v0" % t)
        self.oob_unless(v, t, "v_cmp_eq_u32 vcc, 0, v%d" % t)

    def softmax(self, vw, voff):
        a = self.a
        for k in (1, 2, 4, 8):
            self.dpp("v_max_f32", 7, 7, 7, "row_ror:%d" % k)
        a("v_mul_f32 v20, s%d, v7" % sSC, "s_mov_b32 s100, %s" % ONES)
        for k in range(0, 8, 2):
            rr = [vS + 4 * k, vS + 4 * k + 2, vS + 4 * k + 4, vS + 4 * k + 6]
            a(*["v_fma_f32 v%d, v%d, s%d, -v20" % (r, r, sSC) for r in rr])
            a(*["v_exp_f32 v%d, v%d" % (r, r) for r in rr])
            a(*["v_cvt_pk_bf16_f32 v%d, v%d, v%d" % (r + 1, r, r + 2) for r in rr[::2]])
            a("ds_write2st64_b32 v%d, v%d, v%d offset0:%d offset1:%d ; mem=p%d" % (vw, rr[0] + 1, rr[2] + 1, k, k + 1, k))
        for k in range(8):
            a("v_dot2_f32_bf16 v21, v%d, s100, %s" % (vS + 4 * k + 1, "v21" if k else "0"))
        for k in (1, 2, 4, 8):
            self.dpp("v_add_f32", 21, 21, 21, "row_ror:%d" % k)
        self.st_intra("buffer_store_dwordx2", "v[20:21]", voff, sMLst, both=True)

    def ml_finish(self, r):
        a = self.a
        a("v_sub_f32 v%d, v%d, v20" % (r, r), "v_sub_f32 v%d, v%d, v20" % (r + 2, r + 2),
          "v_exp_f32 v%d, v%d" % (r, r), "v_exp_f32 v%d, v%d" % (r + 2, r + 2),
          "v_mul_f32 v7, v%d, v%d" % (r, r + 1), "v_fmac_f32 v7, v%d, v%d" % (r + 2, r + 3))
        for k in (1, 2, 4, 8):
            self.dpp("v_add_f32", 7, 7, 7, "row_ror:%d" % k)
        a("v_rcp_f32 v7, v7")

    def lds_or_zero(self, v, t, mask, val=0):
        self.a("v_and_b32 v%d, %d, v0" % (t, mask), "v_cmp_eq_u32 vcc, %d, v%d" % (val, t), "v_mov_b32 v%d, 0x%x" % (t, L_OOB),
               "v_cndmask_b32 v%d, v%d, v%d, vcc" % (v, t, v))

    def p_read(self, k, va, buf):
        self.a("ds_read_b128 %s, v%d offset:%d ; mem=p%d" % (q(vQ + 4 * buf), va, k * 256, k & ~1))

    def pv_dense(self, p, buf, lgkm=None):
        for i in range(8):
            if lgkm is not None:
                self.a("s_waitcnt lgkmcnt(%d)" % lgkm(i))
            self.mfma(vO + 4 * i, q(vQ + 4 * buf), q(self.vreg(p, i)), p > 0)

    def o_write(self, t0, t1):
        a = self.a
        self.sexpr(100, L_SCR, (sw, 2048))
        a("v_add_u32 v22, s100, v%d" % vA16)
        for i in range(8):
            a("v_mul_f32 v%d, v7, v%d" % ((t0, t1)[i >> 2] + (i & 3), vO + 4 * i))
        a("ds_write_b128 v22, %s" % q(t0), "ds_write_b128 v22, %s offset:1024" % q(t1))

    def w_tiles(self, kinds, va, t):
        a = self.a
        last = None
        for kind, dst in kinds:
            qs = 10 if kind == "d" else 12
            if qs != last:
                self.lin(va, t, (4, 2, qs), (2, 2, 7), (0, 2, 3))
                a("v_bfe_u32 v%d, v0, 3, 2" % t, "v_xor_b32 v%d, s%d, v%d" % (t, sw, t), "v_lshl_add_u32 v%d, v%d, 5, v%d" % (va, t, va),
                  "v_add_u32 v%d, 0x%x, v%d" % (va, L_WQ, va))
                last = qs
            base = {"q": L_WQ, "g": L_WG, "d": L_WD}[kind] - L_WQ
            for kb in range(2 if kind == "d" else 4):
                for h in range(2):
                    a("ds_read_b64_tr_b16 %s, v%d offset:%d" % (q(dst + 4 * kb + 2 * h, 2), va,
                                                                  base + kb * (4096 if kind == "d" else 1024) + h * 512))

    def gemv4(self, x, W, vD):
        for kb in range(4):
            self.mfma(vD + 4 * kb, q(x), q(W + 4 * kb), False)

    def gemv4_fin(self, out, vD):
        self.a("v_add_f32 v%d, v%d, v%d" % (out, vD, vD + 5), "v_add_f32 v%d, v%d, v%d" % (out, out, vD + 10),
               "v_add_f32 v%d, v%d, v%d" % (out, out, vD + 15))

    def colsum_pub(self, W, ones, d, va, t, off, *terms):
        a = self.a
        for r in range(4):
            a("v_mov_b32 v%d, %s" % (ones + r, ONES))
        self.lin(va, t, (0, 1, 10), (1, 3, 4))
        self.oob_unless(va, t, "v_cmp_gt_u32 vcc, 16, v0")
        self.sexpr(100, off, (sCS, 1), (sb, 4), (sw, 128), *terms)
        a("s_waitcnt lgkmcnt(0)")
        for kb in range(4):
            self.mfma(d, q(ones), q(W + 4 * kb), kb > 0)
        self.st_intra("buffer_store_dword", "v%d" % d, va, 100)

    def colsum_ld(self, r, off, sel):
        self.sexpr(100, off, (sCS, 1), (sel, 2048))
        self.a(self.ld(r, vA16, 100, 0), self.ld(r + 4, vA16, 100, 1024))

    def colsum_fin(self, r, c):
        for k in range(2):
            b = r + 4 * k
            self.a("v_add_f32 v%d, v%d, v%d" % (b, b, b + 1), "v_add_f32 v%d, v%d, v%d" % (b + 2, b + 2, b + 3),
                   "v_add_f32 v%d, v%d, v%d" % (b, b, b + 2), "v_mul_f32 v%d, %s, v%d" % (c + k, f32(-1.0 / 512), b))

    def stats(self, x, t, att):
        a = self.a
        s1, s2 = t, t + 1
        a("s_mov_b32 s100, %s" % ONES)
        for k in range(4):
            a("v_dot2_f32_bf16 v%d, v%d, s100, %s" % (s1, x + k, "v%d" % s1 if k else "0"),
              "v_dot2_f32_bf16 v%d, v%d, v%d, %s" % (s2, x + k, x + k, "v%d" % s2 if k else "0"))
        a("v_permlane32_swap_b32 v%d, v%d" % (s1, s2), "v_add_f32 v%d, v%d, v%d" % (s1, s1, s2))
        for k in (1, 2, 4, 8):
            self.dpp("v_add_f32", s1, s1, s1, "row_ror:%d" % k)
        self.dpp("v_add_f32", s1, s1, s1, "row_bcast:15", "0xa")
        a("v_readlane_b32 s%d, v%d, 31" % (sS1, s1), "v_mul_f32 v%d, %s, v%d" % (s1, f32(1.0 / 512), s1),
          "v_mov_b32 v%d, s%d" % (s2, sS1), "v_mul_f32 v%d, %s, v%d" % (s2, f32(1.0 / 512), s2),
          "v_fma_f32 v%d, -v%d, v%d, v%d" % (s1, s2, s2, s1), "v_max_f32 v%d, 0, v%d" % (s1, s1),
          "v_add_f32 v%d, %s, v%d" % (s1, f32(1e-5), s1))
        if att:
            a("v_rsq_f32 v%d, v%d" % (s1, s1), "v_mul_f32 v%d, %s, v%d" % (s1, f32(SCALE), s1))
        else:
            a("v_rcp_f32 v%d, v%d" % (s1, s1), "s_nop 0")
        a("v_readlane_b32 s%d, v%d, 63" % (sSC, s1))

    def sum4_init(self, acc, c):
        self.a("v_mul_f32 v%d, s%d, v%d" % (acc, sS1, c), "v_mul_f32 v%d, s%d, v%d" % (acc + 1, sS1, c + 1))

    def sum4(self, x, acc, init):
        for k in range(4):
            c = acc if k else init
            self.a("v_dot2_f32_bf16 v%d, v%d, s%d, v%d" % (acc, x + k, sLO, c),
                   "v_dot2_f32_bf16 v%d, v%d, s%d, v%d" % (acc + 1, x + k, sHI, c + 1))

    def q_addrs(self, vw, vr, t):
        a = self.a
        self.lin(vw, t, (3, 3, 5), (0, 1, 4), (1, 2, 2))
        self.sexpr(100, L_Q, (sw, QSTR))
        a("v_add_u32 v%d, s100, v%d" % (vw, vw))
        self.lin(vr, t, (4, 2, 5), (0, 1, 4))
        a("v_bfe_u32 v%d, v0, 2, 2" % t, "v_mul_u32_u24 v%d, %d, v%d" % (t, QSTR, t), "v_add_u32 v%d, v%d, v%d" % (vr, vr, t),
          "v_add_u32 v%d, 0x%x, v%d" % (vr, L_Q, vr), "v_mov_b32 v%d, v%d" % (vr + 1, vr))
        self.lds_or_zero(vr, t, 2, 0)
        self.lds_or_zero(vr + 1, t, 2, 2)

    def q_assemble(self, acc, vw, vr, fill=()):
        a = self.a
        a("v_cvt_pk_bf16_f32 v%d, v%d, v%d" % (acc, acc, acc + 1), "ds_write_b32 v%d, v%d" % (vw, acc), *fill)
        a("s_waitcnt lgkmcnt(0)", "s_barrier")
        rd = ["ds_read_b128 %s, v%d offset:%d" % (q(vQ + 4 * st), vr + (st >> 1), (st & 1) * 128) for st in range(4)]
        a(*rd)
        return rd

    def late_loads(self, name):
        self.layer1(name)
        for k in range(2):
            self.weight_issue("d", k, 32, 62)
        self.a(name + ":")

    def next_region(self):
        for r in (sWS, sWF, sWL):
            self.a("s_add_u32 s%d, s%d, 0x%x" % (r, r, LS), "s_addc_u32 s%d, s%d, 0" % (r + 1, r + 1))
        self.a("s_sub_u32 s%d, s%d, 0x%x" % (sCS, sCS, LS))

    def leader_fill(self):
        a = self.a
        a("v_mov_b32 v8, -1", "v_mov_b32 v9, -1", "v_mov_b32 v10, -1", "v_mov_b32 v11, -1",
          "s_or_b32 s%d, s%d, s%d" % (slead, sj, sw), "s_cmp_eq_u32 s%d, 0" % slead, "s_cbranch_scc0 L_nolead0")
        tk = a.mark()
        a("s_lshl_b32 s100, s%d, 17" % sg, "buffer_store_dwordx4 v[8:11], v%d, %s, s100 offen sc1" % (vA16, srd(sWS)), "L_nolead0:")
        a.uncounted(tk)
        self.tok_lead = tk

    def leader_flag(self, word, name, tok=None):
        a = self.a
        a("s_cmp_eq_u32 s%d, 0" % slead, "s_cbranch_scc0 " + name)
        if tok is not None:
            a.wait_vm(tok)
        tk = a.mark()
        a("v_mov_b32 v53, 1", "v_lshlrev_b32 v54, 8, v0", "s_lshl_b32 s100, s%d, 2" % sg,
          "buffer_store_dword v53, v54, %s, s100 offen offset:%d sc1" % (srd(sDBG), word), name + ":")
        a.uncounted(tk)

    def flag_load(self, v, word, own):
        a = self.a
        if own:
            a("s_lshl_b32 s100, s%d, 2" % sg, "v_mov_b32 v%d, s100" % v)
        else:
            a("v_and_b32 v%d, 7, v0" % v, "v_lshlrev_b32 v%d, 2, v%d" % (v, v))
        return a("buffer_load_dword v%d, v%d, %s, 0 offen offset:%d sc1" % (v, v, srd(sDBG), word))

    def flag_check(self, v, word, own, tok, name):
        a = self.a
        a.wait_vm(tok)
        tk = a.mark()
        a("s_branch %s_c" % name, name + "_s:", "s_sleep 8")
        self.flag_load(v, word, own)
        a("s_add_u32 s%d, s%d, 1" % (sspin, sspin), "s_cmp_lt_u32 s%d, 0x%x" % (sspin, SPIN_LIMIT), "s_waitcnt vmcnt(0)",
          "s_cbranch_scc0 %s_d" % name, name + "_c:", "v_cmp_eq_u32 vcc, 0, v%d" % v, "s_cbranch_vccnz %s_s" % name, name + "_d:")
        a.uncounted(tk)

    def fill_intra(self, v, t, d, start, per_wave):
        a = self.a
        self.sexpr(100, start, (sg, 1 << 17), (sj, 4 * per_wave), (sw, per_wave))
        a("v_mov_b32 v%d, v%d" % (v, vA16))
        self.oob_unless(v, t, "v_cmp_gt_u32 vcc, %d, v0" % (per_wave // 16))
        self.st_intra("buffer_store_dwordx4", q(d), v, 100)

    def sentinels(self, d):
        for r in range(4):
            self.a("v_mov_b32 v%d, -1" % (d + r))

    def prologue(self):
        a = self.a
        if self.stamps:
            a("%s s[92:93]" % ("s_memtime" if self.cyc else "s_memrealtime"))
        a("s_cmp_ge_u32 s2, 256", "s_cbranch_scc1 L_end",
          "s_load_dwordx16 s[4:19], s[0:1], 0", "s_load_dwordx8 s[20:27], s[0:1], 64",
          "v_lshrrev_b32 v1, 6, v0", "v_and_b32 v0, 63, v0", "v_readfirstlane_b32 s%d, v1" % sw,
          "s_and_b32 s%d, s2, 7" % sg, "s_lshr_b32 s%d, s2, 3" % sj, "s_lshr_b32 s%d, s2, 6" % sb,
          "s_and_b32 s%d, s%d, 7" % (ss, sj), "s_lshl_b32 s%d, s%d, 2" % (su, ss), "s_add_u32 s%d, s%d, s%d" % (su, su, sw),
          "s_lshl_b32 s%d, s%d, 12" % (su, su),
          "s_lshl_b32 s100, s%d, 3" % sb, "s_add_u32 s100, s100, s%d" % sg,
          "s_mul_i32 s%d, s100, %d" % (srot, self.rotg), "s_lshl_b32 s100, s100, 21",
          "s_mul_i32 s%d, s%d, %d" % (sring, sw, RING))
        a("v_lshrrev_b32 v5, 4, v0", "v_and_b32 v6, 15, v0", "v_xor_b32 v7, v5, v6", "v_lshlrev_b32 v7, 4, v7",
          "v_lshl_add_u32 v%d, v5, 8, v7" % vKS)
        for jj in range(1, 4):
            a("v_xor_b32 v%d, %d, v%d" % (vKS + jj, jj << 6, vKS))
        a("s_and_b32 s98, s2, 63", "s_lshl_b32 s98, s98, 7", "s_lshl_b32 s99, s%d, 14" % sb, "s_add_u32 s98, s98, s99",
          "s_and_b32 s99, s%d, 1" % sj, "s_lshl_b32 s99, s99, 13", "s_add_u32 s98, s98, s99", "s_add_u32 s98, s98, 0x100000",
          "s_xor_b32 s99, s98, 0x2000", "v_add_u32 v9, s%d, v0" % sw, "v_lshlrev_b32 v9, 24, v9")
        a("s_mov_b32 s%d, 0x200000" % (sK + 2), "s_mov_b32 s%d, 0x20000" % (sK + 3), "s_waitcnt lgkmcnt(0)",
          "s_add_u32 s%d, s6, s100" % sK, "s_addc_u32 s%d, s7, 0" % (sK + 1))
        self.tok, self.ltok, self.wtok = {}, [], {}
        self.mk_srd(sDBG, 24, "256")
        self.mk_srd(sWS, 26, "0x%x" % WS_SIZE)
        a("s_add_u32 s%d, s26, 0x%x" % (sXW, WS_SIZE + (2 << 20) - 1), "s_addc_u32 s%d, s27, 0" % (sXW + 1),
          "s_and_b32 s%d, s%d, 0xffe00000" % (sXW, sXW), "s_mov_b32 s%d, 0x200000" % (sXW + 2), "s_mov_b32 s%d, 0x20000" % (sXW + 3),
          "buffer_load_dword v95, v9, %s, s98 offen sc1" % srd(sXW))
        tok_cal = a.mark()
        a("buffer_load_dword v95, v9, %s, s99 offen sc1" % srd(sXW))
        self.tile_issue(0)
        self.tile_issue(1)
        a("s_add_u32 s%d, s8, s100" % sV, "s_addc_u32 s%d, s9, 0" % (sV + 1),
          "s_mov_b32 s%d, 0x200000" % (sV + 2), "s_mov_b32 s%d, 0x20000" % (sV + 3))
        a("v_lshl_add_u32 v%d, v6, 8, v7" % vKR, "v_add_u32 v%d, s%d, v%d" % (vKR, sring, vKR))
        for st in range(1, 4):
            a("v_xor_b32 v%d, %d, v%d" % (vKR + st, st << 6, vKR))
        a("v_lshlrev_b32 v%d, 4, v0" % vA16)
        self.mk_srd(sOUT, 22, "4096")
        a("s_cmp_eq_u32 s%d, 0" % sw, "s_cbranch_scc0 L_novote")
        a.wait_vm(tok_cal)
        a("s_sleep 1", "s_getreg_b32 s%d, hwreg(HW_REG_IB_STS, 0, 4)" % svote, "s_cmp_gt_u32 s%d, 8" % svote, "s_cselect_b32 s%d, 16, 0" % svote,
          "L_novote:")
        if self.stamps:
            a("v_mov_b32 v4, 0", "v_writelane_b32 v4, s92, 0")
            self.nst = 1
            self.stamp_names.append("entry")
        self.stamp("start")

    def setup_a(self):
        a = self.a
        self.mk_srd(sXI, 4, "4096")
        self.lin(6, 7, (4, 2, 6), (2, 2, 10), (0, 2, 4))
        self.lin(5, 7, (5, 1, 10), (4, 1, 11), (0, 4, 1))
        a("s_lshl_b32 s100, s%d, 8" % sb, "s_lshl_b32 s101, s%d, 10" % sb, "s_lshl_b32 s%d, s%d, 5" % (stmp, sj),
          "buffer_load_dwordx4 %s, v6, %s, s100 offen" % (q(vX), srd(sXI)),
          "buffer_load_dwordx4 %s, v%d, %s, s101 offen" % (q(vX + 4), vA16, srd(sXI)),
          "buffer_load_ushort v%d, v5, %s, s%d offen" % (vRES, srd(sXI), stmp))
        self.sexpr(100, 0, (sj, 32768), (sg, 2048), (sw, 512))
        a("v_mov_b32 v12, v%d" % vA16)
        self.oob_unless(12, 13, "v_cmp_gt_u32 vcc, 32, v0")
        a("buffer_store_dwordx4 v[8:11], v12, %s, s100 offen sc1" % srd(sXW))
        self.tok_pro = a.mark()

    def setup_b(self):
        a = self.a
        self.mk_srd(sWF, sWS, "0")
        self.mk_srd(sWL, sWS, "0x%x" % WS_SIZE)
        G = (sg, 1 << 17)
        self.sexpr(sCS, 2 * LS, G)
        self.sexpr(sEst, OFF_E, G, (ss, 512), (sw, 128), (sb, 4))
        self.sexpr(sEld, OFF_E, G, (sb, 4096), (sw, 1024))
        self.sexpr(sMLld, OFF_ML, G, (sb, 1024))
        a("s_lshr_b32 s%d, s%d, 9" % (sMLst, su), "s_add_u32 s%d, s%d, s%d" % (sMLst, sMLst, sMLld),
          "s_mov_b32 s%d, 0" % slayer, "s_mov_b32 s%d, 0" % sspin, "s_mov_b32 s%d, -2" % scmp,
          "s_mov_b32 s%d, 0x3f80" % sLO, "s_mov_b32 s%d, 0x3f800000" % sHI,
          "s_and_b32 s100, s%d, 3" % ss, "s_cmp_eq_u32 s100, 3", "s_cselect_b32 s%d, 0, 1" % sact,
          "s_cmp_eq_u32 s%d, 3" % sb, "s_cselect_b32 s100, 0, 2", "s_or_b32 s%d, s%d, s100" % (sact, sact),
          "s_bitcmp1_b32 s%d, 0" % sg, "s_cselect_b32 s%d, s%d, 3" % (sact, sact))

    def setup_c(self):
        a = self.a
        G = (sg, 1 << 17)
        a("s_lshr_b32 s%d, s%d, 2" % (stmp, ss), "s_and_b32 s100, s%d, 3" % ss)
        self.sexpr(sAst, OFF_A, G, (sw, 8192), (stmp, 1024), (sb, 64), (100, 16))
        self.sexpr(sCst, OFF_C, G, (100, 4096), (stmp, 512), (sw, 128), (sb, 4))
        self.sexpr(sAld, OFF_A, G, (sb, 8192), (sw, 2048))
        self.sexpr(sCld, OFF_C, G, (sb, 4096), (sw, 1024))
        self.sexpr(sBst, 0, (su, 8), (sg, 512), (sb, 128))
        self.sexpr(sBld, 0, (sj, 32768))
        a("s_lshr_b32 s%d, s%d, 1" % (stmp, sj), "s_and_b32 s100, s%d, 1" % sj)
        self.sexpr(sXst, OFF_XB, G, (stmp, 256), (100, 32))
        self.sexpr(sXld, OFF_XB, G, (sb, 1024))
        self.sexpr(sRow, OFF_XB, G)
        a("s_mov_b32 s%d, 0xff00ff00" % sM1, "s_mov_b32 s%d, 0xff00ff00" % (sM1 + 1))
        self.lin(vTRV, 7, (2, 1, 12), (4, 2, 10), (3, 1, 8), (4, 1, 7), (2, 1, 6), (3, 1, 5), (0, 2, 3))
        a("v_add_u32 v%d, s%d, v%d" % (vTRV, sring, vTRV))

    def part_off(self, v, t, bs, cmp="0"):
        self.lin(v, t, (4, 2, bs), (0, 4, 3))
        self.even_only(v, t, cmp)

    def group_flag(self, k, val):
        a = self.a
        a("v_mov_b32 v14, %s" % val, "v_add_u32 v15, s%d, v0" % sw, "v_lshlrev_b32 v15, 24, v15")
        self.sexpr(100, 512 * k, (sg, 1 << 17), (sj, 16))
        self.st_intra("buffer_store_dword", "v14", 15, 100)

    def stream(self):
        a = self.a
        lag = self.lag
        t_dl, t_f1, t_l1, t_c1, t_f2, t_l2, t_c2 = self.sync
        wl = {}
        for kind, ts in (("q", self.tq), ("g", self.tg), ("o", self.to)):
            for k, T in enumerate(ts):
                wl.setdefault(T, []).append((kind, k))
        tqk = max(t_c2 + 2, 16 + lag)
        assert self.tq[-1] + 2 <= t_c1 and self.tg[-1] + 2 <= t_f2
        pvat = {}
        for p in range(5):
            pvat.setdefault(max(tqk + 3 + (p >> 1), 17 + 2 * p + lag), []).append(p)
        vF = 94
        G17 = "s_lshl_b32 s101, s%d, 17" % sg
        qk = None
        for T in range(1, 32):
            if T == 16:
                self.lin(5, 7, (4, 2, 8), (0, 4, 4))
                a("v_and_b32 v7, 16, v0", "v_lshlrev_b32 v7, 1, v7", "v_xor_b32 v5, v5, v7", "v_xor_b32 v6, 128, v5")
                self.mk_ai()
            between = None
            if T in (tqk + 1, tqk + 2):
                def between(jj):
                    a(*qk.pop(0))
            if T > 1:
                self.tile_issue(T, between)
            if T == 1:
                if self.ipf0:
                    a("s_getpc_b64 s[98:99]", "L_pc0:")
                    self.sexpr(100, 0, (sj, 512), (sw, 128))
                    a("s_min_u32 s100, s100, L_codeend-L_pc0-4", "v_mov_b32 v93, s100", "global_load_dword v93, v93, s[98:99]")
                self.leader_fill()
            for kind, k in wl.get(T, []):
                self.weight_load(kind, k, T, 52 if T < 20 else 18)
            if self.stamps is not True and T > 1:
                self.stamp("T%02d" % T)
            if T == 1:
                self.setup_a()
                self.setup_b()
            if lag <= T < 26 + lag:
                self.tile_consume(T - lag)
            if T == 2:
                self.leader_flag(128, "L_nolead1", self.tok_lead)
                self.setup_c()
            if T == t_dl:
                tok_f = self.flag_load(vF, 128, True)
            if T == t_f1:
                self.flag_check(vF, 128, True, tok_f, "L_f0")
                a("s_barrier", "s_getreg_b32 s%d, hwreg(HW_REG_XCC_ID, 0, 4)" % stmp, "s_or_b32 s%d, s%d, s%d" % (stmp, stmp, svote))
                self.group_flag(0, "s%d" % stmp)
                a("v_lshlrev_b32 v%d, 16, v%d" % (vRES, vRES))
                self.stats(vX + 4, 8, True)
            if T in (t_l1, t_l2):
                fld = self.ld(vF, vF + 1, 101, 0 if T == t_l1 else 512, n=1)
                a("v_and_b32 v%d, 0x1f0, v%d" % (vF + 1, vA16), G17)
                tok_f = a(fld)
            if T == t_c1:
                self.check_or_poll([fld], [[vF]], 7, "xcc", max(tok_f, self.wtok["q"]), [G17])
                a("s_barrier")
                self.w_tiles([("q", vWQ)], 5, 7)
                self.leader_flag(160, "L_nolead2")
                a("v_cmp_lt_u32 vcc, 15, v%d" % vF, "v_and_b32 v%d, 15, v%d" % (vF, vF),
                  "s_and_b32 s100, vcc_lo, 0x55555555", "s_and_b32 s101, vcc_lo, 0xaaaaaaaa",
                  "s_bcnt1_i32_b32 s100, s100", "s_bcnt1_i32_b32 s101, s101")
                if self.stamps:
                    a("v_writelane_b32 v4, s100, 28", "v_writelane_b32 v4, s101, 29")
                a("s_cmp_ge_u32 s100, s101", "s_cselect_b32 s100, %s" % {0: "0, 0", 1: "0, 0x2000", 2: "0x2000, 0"}[self.near],
                  "s_add_u32 s%d, s%d, s100" % (sBld, sBld), "s_add_u32 s%d, s%d, s100" % (sB2, sBst), "s_xor_b32 s%d, s%d, 0x2000" % (sBst, sB2))
                if not self.force_slow:
                    a("s_getreg_b32 s100, hwreg(HW_REG_XCC_ID, 0, 4)", "v_cmp_ne_u32 vcc, s100, v%d" % vF, "s_cmp_eq_u64 vcc, 0",
                      "s_cselect_b32 s%d, 0x%x, 0" % (sWF + 2, WS_SIZE), "s_cselect_b32 s%d, 0, 0x%x" % (sWL + 2, WS_SIZE))
                self.part_off(6, 7, 12)
                a("s_lshr_b32 s%d, s%d, 1" % (stmp, ss), "s_and_b32 s%d, s%d, 1" % (sclr, ss))
                self.colsum_pub(vWQ, 12, 16, 10, 11, OFF_CSQ, (stmp, 2048), (sclr, 512))
                self.gemv4(vX, vWQ, vD)
                self.sentinels(20)
                self.gemv4_fin(8, vD)
                self.pack_pairs(9, 8)
                self.st_intra("buffer_store_dword", "v9", 6, sEst)
                self.fill_intra(24, 7, 20, LS + OFF_ML, 288)
                tok_q = a.mark()
                self.stamp("arrive")
            if T == t_f2:
                a.wait_vm(max(tok_q, self.wtok["g"]))
                a("s_barrier")
                self.group_flag(1, "1")
                self.w_tiles([("g", vWQ)], 5, 7)
                a("s_lshr_b32 s%d, s%d, 2" % (stmp, ss), "s_and_b32 s%d, s%d, 3" % (sclr, ss))
                self.colsum_pub(vWQ, 16, 20, 10, 11, OFF_CSG, (sclr, 2048), (stmp, 512))
            if T == t_c2:
                self.check_or_poll([fld], [[vF]], 7, "q1", tok_f, [G17])
                self.colsum_ld(28, OFF_CSQ, sw)
                tok_q = a(self.ld(24, vA16, sEld))
                self.next_region()
                self.stamp("barrier")
            if T == t_c2 + 1:
                self.s_zero()
                self.q_addrs(40, 42, 7)
            if T == tqk:
                a.wait_vm(tok_q)
                self.colsum_fin(28, 36)
                self.sum4_init(38, 36)
                self.sum4(24, 38, 38)
                self.q_assemble(38, 40, 42)
                ls, _ = schedule(self.lines(self.qk))
                qk = [ls[len(ls) * k // 4:len(ls) * (k + 1) // 4] for k in range(4)]
            if T == tqk + 1:
                self.ml_off(22, 23)
                self.sexpr(100, L_WD, (sw, 2048))
                self.lin(16, 23, (2, 2, 6), (4, 2, 4))
                a("v_add_u32 v16, s100, v16", "v_lshl_add_u32 v17, v0, 2, s100")
                self.lds_or_zero(16, 23, 3)
                ls, _ = schedule(self.lines(self.softmax, 17, 22))
                qk = [ls[len(ls) * k // 4:len(ls) * (k + 1) // 4] for k in range(4)]
            if T == tqk + 2:
                self.stamp("softmax1")
            for p in pvat.get(T, ()):
                self.p_read(ORDER.index(p), 16, p & 1)
                a("s_waitcnt lgkmcnt(0)")
                self.pv_dense(p, p & 1)
            if T == self.ipf:
                a("s_getpc_b64 s[98:99]", "L_pc:", "s_add_u32 s98, s98, L_tail-L_pc", "s_addc_u32 s99, s99, 0")
                self.sexpr(100, 0, (sj, 512), (sw, 128))
                a("s_min_u32 s100, s100, L_codeend-L_tail-4", "v_mov_b32 v80, s100", "global_load_dword v80, v80, s[98:99]")
            if T == 26:
                ml1 = [self.ld(64, vA16, sMLld)]
                a(*ml1)
                self.sexpr(100, OFF_A, (sg, 1 << 17), (sj, 1024), (sw, 256))
                a("v_lshlrev_b32 v68, 7, v0")
                self.oob_unless(68, 69, "v_cmp_gt_u32 vcc, 2, v0")
                a(self.ld(68, 68, 100, n=1))
                tok_warm = self.flag_load(70, 160, False)
            if T == self.tclr + 1:
                self.touch_addr(81, 82)
                tok_warm = a("buffer_load_dword v81, v81, %s, 0 offen sc1" % srd(sWS))
            if T == self.tclr:
                self.sentinels(72)
                self.fill_intra(76, 77, 72, OFF_C, 320)
                self.fill_intra(78, 77, 72, LS, 448)
        self.stamp("issued")
        self.flag_check(70, 160, False, tok_warm, "L_f1")
        self.check_or_poll(ml1, [range(64, 68)], 69, "ml1", tok_warm)
        self.ml_finish(64)
        a("s_mov_b32 s%d, 1" % slayer)
        a(*[x for x in self.lines(self.weight_load, "d", 0, None, 62) if x.startswith("s_")])
        for p in (5, 6, 7):
            self.p_read(ORDER.index(p), 16, p & 1)
            keep = len(a.l)
            self.tile_consume(17 + 2 * p)
            if p < 7:
                self.pv_dense(p, p & 1, lgkm=lambda i: 14 - 2 * i)
            else:
                pre = [i.text for i in a.l[keep:] if i.ds]
                self.sched(self.lines(self.pv_dense, p, p & 1) + self.lines(self.o_write, 8, 16), pre)
        self.n_after_o = min(a.mark() - self.wtok["o"], 60)
        self.stamp("pv1")

    def touch_addr(self, v, t):
        a = self.a
        self.sexpr(100, OFF_C, (sg, 1 << 17), (sj, 1280))
        a("v_lshl_add_u32 v%d, v0, 7, s100" % v)
        self.sexpr(100, LS - 2048, (sg, 1 << 17), (sj, 2048))
        a("v_lshl_add_u32 v%d, v0, 7, s100" % t, "v_cmp_gt_u32 vcc, 16, v0", "v_cndmask_b32 v%d, v%d, v%d, vcc" % (v, t, v),
          "s_mov_b32 vcc_lo, 0xffff03ff", "s_mov_b32 vcc_hi, 0", "s_cmp_eq_u32 s%d, 3" % sw, "s_cselect_b64 vcc, vcc, 0",
          "v_mov_b32 v%d, 0x%x" % (t, OOB), "v_cndmask_b32 v%d, v%d, v%d, vcc" % (v, t, v))

    def st_cross(self, v):
        a = self.a
        for so in (sBst, sB2) if self.near else (sB2,):
            a("buffer_store_dword v%d, v95, %s, s%d offen sc1" % (v, srd(sXW), so))

    def delay(self, name):
        n = (self.dly or {}).get(name, 0)
        if n:
            self.a("s_sleep %d" % n)

    def red_loads(self, x, soff):
        return [self.ld(x + 4 * i, vA16, soff, i * 1024, rs=sXW) for i in range(4)]

    def prep_split(self, name, work, n, loads):
        a = self.a
        while n < len(work) and work[n].startswith(("s_cselect", "s_addc", "s_cbranch")):
            n += 1
        a(*work[:n])
        a("s_cmp_eq_u32 s%d, 0" % sw, "s_cbranch_scc0 L_%s_n" % name)
        self.delay(name)
        a(*loads)
        a("L_%s_n:" % name, *work[n:])

    def reduce_x(self, name, x, d, soff):
        a = self.a
        self.poll(self.red_loads(x, soff), [range(x + 4 * i, x + 4 * i + 4) for i in range(4)], 7, name,
                  lambda i: self.mfma(d, q(x + 4 * i), q(vSEL), i > 0), issued=1)
        m = "s[%d:%d]" % (sM1, sM1 + 1)
        a("v_cndmask_b32 v%d, v%d, v%d, %s" % (d, d, d + 1, m), "v_cndmask_b32 v%d, v%d, v%d, %s" % (d + 2, d + 2, d + 3, m),
          "v_permlane32_swap_b32 v%d, v%d" % (d, d + 2), "v_add_f32 v%d, v%d, v%d" % (vRES, vRES, d),
          "v_add_f32 v%d, v%d, v%d" % (vRES, vRES, d + 2))
        self.pack_pairs(7, vRES)

    def x_off(self, v, t, bs):
        self.lin(v, t, (5, 1, bs), (4, 1, bs + 1), (0, 4, 1))
        self.even_only(v, t)

    def layer1(self, name):
        self.a("s_cmp_eq_u32 s%d, 1" % slayer, "s_cbranch_scc0 " + name)

    def chain(self):
        a = self.a
        a("L_tail:")
        self.lin(23, 6, (2, 4, 4), (1, 1, 10), (0, 1, 3))
        self.sexpr(sclr, L_SCR, (sw, 256))
        a("v_add_u32 v23, s%d, v23" % sclr, "s_waitcnt lgkmcnt(0)", "s_barrier")
        for src in range(4):
            a("ds_read_b64 %s, v23 offset:%d" % (q(8 + 2 * src, 2), src * 2048))
        self.lin(17, 16, (4, 2, 11), (2, 2, 8), (0, 2, 2))
        self.lin(56, 16, (2, 2, 9), (4, 2, 7), (2, 2, 5), (0, 2, 3))
        a("s_waitcnt lgkmcnt(2)", "v_add_f32 v8, v8, v10", "v_add_f32 v9, v9, v11",
          "s_waitcnt lgkmcnt(0)", "v_add_f32 v12, v12, v14", "v_add_f32 v13, v13, v15",
          "v_add_f32 v8, v8, v12", "v_add_f32 v9, v9, v13", "v_cvt_pk_bf16_f32 v7, v8, v9")
        self.st_intra("buffer_store_dword", "v7", 17, sAst)
        self.stamp("Apub", True)
        self.sexpr(100, L_WO, (sw, 4096))
        a("v_add_u32 v56, s100, v56")
        for t in range(1, 4):
            a("v_xor_b32 v%d, %d, v56" % (56 + t, t << 5))
        a("s_waitcnt vmcnt(%d)" % (1 + self.n_after_o))
        for t in range(4):
            for h in range(2):
                a("ds_read_b64_tr_b16 %s, v%d offset:%d" % (q(24 + 4 * t + 2 * h, 2), 56 + t, h * 2048))
        lda = [self.ld(8 + 4 * h, vA16, sAld, h * 1024) for h in range(2)]

        def prep_a():
            self.lin(5, 19, (4, 2, 11), (0, 4, 4))
            self.sexpr(100, L_SCR, (sw, 4))
            self.a("v_add_u32 v94, s100, v5", "v_add_u32 v5, s%d, v5" % sclr, "v_lshlrev_b32 v95, 1, v0")
            self.even_only(95, 19)
            self.a(*[x for x in self.lines(self.weight_load, "d", 0, None, 62) if x.startswith("v_")])
        n = self.with_loads("pollA", self.lines(prep_a), lda)
        a("s_waitcnt lgkmcnt(0)")

        def o_mfma(ts):
            for t in ts:
                self.mfma(40 + 4 * t, q(8), q(24 + 4 * t), False)
                self.mfma(40 + 4 * t, q(12), q(24 + 4 * t), True)
        self.poll(lda, [range(8, 12), range(12, 16)], 7, "pollA", lambda h: o_mfma([0]) if h else None, issued=n)

        def o_rest():
            o_mfma([1, 2, 3])
            for t in range(4):
                d = 40 + 4 * t
                self.a("v_add_f32 v%d, v%d, v%d" % (d, d, d + 1), "v_add_f32 v%d, v%d, v%d" % (d + 2, d + 2, d + 3),
                       "v_add_f32 v%d, v%d, v%d" % (20 + t, d, d + 2))
        ls = self.lines(o_rest)
        a(*ls[:3], ls[6], ls[7], ls[3], ls[8], ls[4], ls[5], *ls[9:])
        a("ds_write_b128 v5, v[20:23]")
        self.late_loads("L_l1b")
        a("s_waitcnt lgkmcnt(0)", "s_barrier",
          "ds_read2st64_b32 v[16:17], v94 offset0:0 offset1:1", "ds_read2st64_b32 v[18:19], v94 offset0:2 offset1:3",
          "s_waitcnt lgkmcnt(1)", "v_add_f32 v16, v16, v17", "s_waitcnt lgkmcnt(0)", "v_add_f32 v18, v18, v19", "v_add_f32 v16, v16, v18")
        self.pack_pairs(7, 16)
        self.st_cross(7)
        self.stamp("Bpub", True)
        if self.two("pollA"):
            a("s_waitcnt vmcnt(%d)" % (2 if self.near else 1))
        self.colsum_ld(80, OFF_CSG, sb)
        self.layer1("L_l1c")
        self.colsum_ld(24, OFF_CSQ, sw)
        self.sentinels(72)
        self.lin(76, 77, (3, 3, 12), (0, 3, 4))
        a("s_and_b32 s100, s%d, 0xffffdfff" % sBst, "s_add_u32 s100, s100, 0x4000")
        self.oob_unless(76, 77, "v_cmp_gt_u32 vcc, 32, v0")
        a("buffer_store_dwordx4 v[72:75], v76, %s, s100 offen sc1" % srd(sXW))
        a("L_l1c:")
        wt = self.lines(self.w_tiles, [("d", vWD)], 91, 7)

        def prep_b():
            a = self.a
            self.w_tiles([("g", vWG), ("q", vWQ)], 5, 7)
            a("v_and_b32 v5, 1, v0", "v_lshlrev_b32 v5, 4, v5", "v_lshlrev_b32 v5, v5, s%d" % sLO, "v_bfe_u32 v6, v0, 1, 2")
            for r in range(4):
                a("v_cmp_eq_u32 vcc, %d, v6" % r, "v_cndmask_b32 v%d, 0, v5, vcc" % (vSEL + r))
            self.x_off(94, 7, 6)
            self.lin(93, 7, (2, 4, 8), (0, 2, 4))
            a("s_bitcmp1_b32 s%d, 0" % sact, "s_cselect_b32 s%d, 0, -1" % stmp)
            self.part_off(92, 7, 10, "s%d" % stmp)
            self.lin(89, 7, (0, 5, 2), (5, 1, 1))
            self.sexpr(100, L_H, (sw, 128))
            a("v_add_u32 v89, s100, v89")
            self.lin(88, 7, (2, 2, 7), (0, 1, 6), (4, 2, 4))
            a("v_add_u32 v88, 0x%x, v88" % L_H)
            a(*[x for x in wt if not x.startswith("ds_")])
            self.sexpr(stmp, 0, (sRow, 1), (sw, 64))
            a("s_add_u32 s%d, s%d, 0x1000" % (sBst, sBst), "s_add_u32 s%d, s%d, 0x1000" % (sB2, sB2))
        self.prep_split("pollB", self.lines(prep_b), self.nB, self.red_loads(vX, sBld))
        aux = [self.ld(vX + 4, 93, stmp)]
        a("s_waitcnt lgkmcnt(0)", "s_cmp_eq_u32 s%d, 0" % sw, "s_cbranch_scc0 L_nored1")
        self.cold += ["L_nored1:", "s_waitcnt vmcnt(0)", "s_branch L_red1"]
        self.reduce_x("pollB", vX, vD, sBld)
        self.st_intra("buffer_store_dword", "v7", 94, sXst)
        a("v_lshlrev_b32 v%d, 16, v7" % vRES)
        self.stamp("XBpub", True)
        a("L_red1:", "s_barrier")
        ldx = [self.ld(vX, vA16, sXld)]
        n = self.with_loads("pollXB", self.lines(self.colsum_fin, 24, vCQ) + [x for x in wt if x.startswith("ds_")]
                            + self.lines(self.colsum_fin, 80, vCG), ldx)
        self.poll(ldx, [range(vX, vX + 4)], 7, "pollXB", lambda i: self.gemv4(vX, vWG, vD), issued=n, then=aux)
        self.gemv4_fin(7, vD)
        self.pack_pairs(6, 7)
        self.st_intra("buffer_store_dword", "v6", 92, sCst)
        self.stamp("Cpub", True)
        a("v_mov_b32 v5, 0", "s_bitcmp1_b32 s%d, 1" % sact, "s_cbranch_scc0 L_nod")
        ldc = [self.ld(vX, vA16, sCld)]
        self.check_or_poll(aux, [range(vX + 4, vX + 8)], 7, "auxB", a.mark() - 1)
        n = self.with_loads("pollC", self.lines(self.stats, vX + 4, vD, False) + self.lines(self.sum4_init, vD + 2, vCG), ldc)
        self.poll(ldc, [range(vX, vX + 4)], 7, "pollC", lambda i: self.sum4(vX, vD, vD + 2), issued=n)
        a("v_permlane32_swap_b32 v%d, v%d" % (vD, vD + 1), "v_mul_f32 v%d, s%d, v%d" % (vD, sSC, vD),
          "v_mul_f32 v%d, v%d, v%d" % (vD, vD, vD + 1), "v_cvt_pk_bf16_f32 v%d, v%d, v%d" % (vD, vD, vD),
          "ds_write_b16 v89, v%d" % vD, "s_waitcnt lgkmcnt(0)", "s_barrier", "ds_read_b128 %s, v88" % q(vX + 4), "s_waitcnt lgkmcnt(0)")
        for kb in range(2):
            self.mfma(vD + 4 * kb, q(vX + 4), q(vWD + 4 * kb), False)
        a("v_add_f32 v7, v%d, v%d" % (vD, vD + 5))
        self.pack_pairs(5, 7)
        a("L_nod:")
        self.st_cross(5)
        self.stamp("Dpub", True)
        a("s_add_u32 s%d, s%d, 0x1000" % (stmp, sBld))
        self.layer1("L_last")
        a("s_waitcnt vmcnt(%d) lgkmcnt(0)" % (2 if self.near else 1))

        def prep_d():
            a = self.a
            a("v_mov_b32 v28, v94", "v_mov_b32 v30, v93", "s_add_u32 s%d, s%d, 0x3000" % (sBst, sBst),
              "s_add_u32 s%d, s%d, 0x3000" % (sB2, sB2), "s_add_u32 s%d, s%d, 0x4000" % (sBld, sBld))
            self.mk_ai()
            self.s_zero()
            self.part_off(29, 7, 12)
            self.q_addrs(31, 48, 7)
            self.lin(5, 7, (2, 2, 6), (5, 1, 8), (4, 1, 5), (0, 1, 4))
            self.sexpr(100, L_WQ, (sw, QSTR))
            a("v_add_u32 v5, s100, v5")
            self.lds_or_zero(5, 7, 2)
            self.ml_off(6, 7)
            self.sexpr(98, OFF_XD - OFF_XB, (sRow, 1), (sb, 64))
            a("s_add_u32 s%d, s%d, 0x%x" % (sclr, sXst, OFF_XD - OFF_XB), "s_add_u32 s99, s%d, 0x%x" % (sXld, OFF_XD - OFF_XB))
        self.prep_split("pollD", self.lines(prep_d), self.nD, self.red_loads(8, stmp))
        a("s_waitcnt lgkmcnt(0)", "s_cmp_eq_u32 s%d, 0" % sw, "s_cbranch_scc0 L_nored2", "L_redd:")
        self.reduce_x("pollD", 8, 24, stmp)
        a("s_cmp_eq_u32 s%d, 2" % slayer, "s_cbranch_scc1 L_out")
        self.st_intra("buffer_store_dword", "v7", 28, sclr)
        a("v_lshlrev_b32 v%d, 16, v7" % vRES)
        self.stamp("XDpub")
        a("L_nored2:", "s_barrier")
        self.delay("pollXD")
        row = [self.ld(24, 30, 98)]
        self.poll([self.ld(52, vA16, 99)], [range(52, 56)], 7, "pollXD", lambda i: self.gemv4(52, vWQ, 8), then=row)
        self.gemv4_fin(7, 8)
        self.pack_pairs(9, 7)
        self.st_intra("buffer_store_dword", "v9", 29, sEst)
        self.stamp("Epub")
        lde = [self.ld(52, vA16, sEld)]
        self.check_or_poll(row, [range(24, 28)], 7, "rowD", a.mark() - 1)
        n = self.with_loads("pollE", self.lines(self.stats, 24, 32, True) + self.lines(self.sum4_init, 34, vCQ), lde)
        self.poll(lde, [range(52, 56)], 7, "pollE", lambda i: self.sum4(52, 32, 34), issued=n)
        self.stamp("Eget")
        rd = self.q_assemble(32, 31, 48, self.lines(self.next_region) + ["s_mov_b32 s%d, 2" % slayer])
        for i in range(7):
            a("v_mov_b64 %s, 0" % q(vO + 4 * i, 2))
        ldm = [self.ld(16, vA16, sMLld)]

        def att():
            a = self.a
            a("s_waitcnt vmcnt(0) ; guards=v[52:55]")
            self.qk()
            a("v_subrev_u32 v23, 0x%x, v31" % (L_Q - L_WQ))
            a("v_mov_b64 %s, 0" % q(vO + 28, 2))
            self.softmax(23, 6)
            for d in self.mlat:
                a(ldm[0] + " ; lat=%d tail=%d" % (d, self.mltail))
            for h in range(2):
                self.v_reads(5 + h, lambda i, e: q(8 * i + 4 * h + 2 * e, 2, "a"))
            self.v_reads(7)
            for n in range(4):
                self.p_read(2 * n, 5, n & 1)
                for i in range(8):
                    B = q(128 + 64 * n + 8 * i, 8) if n < 2 else q(8 * i, 8, "a") if n == 2 else "vp[%d]" % i
                    self.smf(vO + 4 * i, q(vQ + 4 * (n & 1)), B)
            for i in range(8):
                a("v_add_f32 v%d, v%d, v%d" % (vO + 4 * i, vO + 4 * i, vO + 4 * i + 1))
        ls = [x + " prio=%d" % self.p0 if x.endswith("mem=p0") else x for x in self.lines(att)]
        cut = len(ls) - 8 - self.mlcut
        t1 = self.sched(ls[:cut], rd)
        a("s_waitcnt lgkmcnt(0)")
        if self.stamps is not True:
            self.stamp("pv2a")
        L = a.lab("ml2")
        a(L + "_w:")
        self.check([range(16, 20)], 6, len(self.mlat))
        a("s_cbranch_vccnz " + L)
        fin = self.lines(self.ml_finish, 16)
        fin = ["v_sub_f32 v8, v16, v20", "v_sub_f32 v9, v18, v20", "v_exp_f32 v8, v8", "v_exp_f32 v9, v9",
               "v_mul_f32 v7, v8, v17", "v_fmac_f32 v7, v9, v19"] + fin[6:]
        t2 = self.sched([x + " ; prio=200" for x in fin] + ls[cut:] + self.lines(self.o_write, 8, 60))
        a("s_waitcnt vmcnt(0)")
        self.est = (t1, t2)
        self.stamp("pv2")
        a("s_branch L_tail", L + ":", *ldm)
        a(*self.spin_count())
        a("s_branch %s_w" % L)
        a("L_last:", "s_lshr_b32 s100, s%d, 2" % sj, "s_xor_b32 s100, s100, s%d" % sg, "s_or_b32 s100, s100, s%d" % sw,
          "s_cmp_eq_u32 s100, 0", "s_cbranch_scc0 %s" % ("L_wb" if self.wb else "L_fin"))
        if self.wb:
            self.cold += ["L_wb:", "s_cmp_eq_u32 s%d, 0" % slead, "s_cbranch_scc0 L_fin", "buffer_wbl2 sc1", "s_branch L_fin"]
        self.x_off(6, 7, 10)
        self.delay("last")
        a(*self.red_loads(8, stmp))
        a("s_branch L_redd")
        a("L_out:", "s_lshl_b32 s100, s%d, 5" % sj, "buffer_store_dword v7, v6, %s, s100 offen" % srd(sOUT))
        if self.probe:
            self.stamp("out")
            k = self.stamp_names.index(self.probe)
            a("v_readlane_b32 s100, v4, %d" % k, "v_readlane_b32 s101, v4, 0", "s_sub_u32 s100, s100, s101", "s_lshl_b32 s100, s100, 2",
              "s_min_u32 s100, s100, 100000", "s_memrealtime s[0:1]", "s_waitcnt lgkmcnt(0)", "s_mov_b32 s101, s0",
              "L_probe:", "s_memrealtime s[0:1]", "s_waitcnt lgkmcnt(0)", "s_sub_u32 s0, s0, s101", "s_cmp_lt_u32 s0, s100",
              "s_cbranch_scc1 L_probe")
        a("L_fin:")
        if self.stamps and not self.probe:
            self.stamp("end")
            a("s_lshl_b32 s100, s2, 2", "s_add_u32 s100, s100, s%d" % sw, "s_lshl_b32 s100, s100, 7",
              "s_add_u32 s100, s100, 0x%x" % (STAMP_OFF - 2 * LS), "s_mov_b32 s%d, 0x1000000" % (sWS + 2),
              "v_writelane_b32 v4, s%d, 30" % sspin, "v_writelane_b32 v4, s%d, 31" % (sWF + 2),
              "v_lshlrev_b32 v9, 2, v0", "v_cmp_gt_u32 vcc, 32, v0", "s_and_saveexec_b64 s[98:99], vcc",
              "buffer_store_dword v4, v9, %s, s100 offen" % srd(sWS))
            if self.dbgstamps:
                a("v_readlane_b32 s100, v4, 0", "s_not_b32 s100, s100", "v_writelane_b32 v4, s100, 15",
                  "v_cmp_gt_u32 vcc, 16, v0", "s_and_saveexec_b64 s[98:99], vcc",
                  "buffer_atomic_umax v4, v9, %s, 0 offen sc1" % srd(sDBG))
        a("L_end:", "s_endpgm")
        a(*self.cold)
        a("L_codeend:")

    def build(self):
        self.prologue()
        self.stream()
        self.chain()
        self.a.pad()
        if self.win:
            self.est += align(self.a, self.win)
        head = open("cdna_kernels/" + KNAME[:-7] + ".s.ref").read().split("; Override launch")[0]
        return (head + "; @launch grid=(256,1,1) block=(256,1,1) lds=163840\n"
                '.amdgcn_target "amdgcn-amd-amdhsa--gfx950"\n.text\n.globl %s\n.p2align 8\n.type %s,@function\n%s:\n' % (KNAME, KNAME, KNAME)
                + self.a.text() +
                '.section .rodata,"a"\n.p2align 6\n.amdhsa_kernel %s\n  .amdhsa_next_free_vgpr 512\n  .amdhsa_next_free_sgpr 102\n'
                "  .amdhsa_accum_offset 256\n  .amdhsa_group_segment_fixed_size 0\n  .amdhsa_kernarg_size 96\n"
                "  .amdhsa_user_sgpr_count 2\n  .amdhsa_user_sgpr_kernarg_segment_ptr 1\n  .amdhsa_system_sgpr_workgroup_id_x 1\n"
                ".end_amdhsa_kernel\n" % KNAME)


if __name__ == "__main__":
    out = sys.argv[1]
    kw = eval("dict(%s)" % (sys.argv[2] if len(sys.argv) > 2 else ""))
    g = Gen(**kw)
    s = g.build()
    open(out, "w").write(s)
    if len(sys.argv) > 3:
        print("estimated attention cycles", g.est)
    if g.stamps:
        open(out[:-2] + ".names", "w").write("\n".join(g.stamp_names))
```

```python
import re

REG = re.compile(r"^(-?)(?:abs\()?([vas])(?:(\d+)|\[(\d+):(\d+)\])\)?$")
TRANS = ("v_exp_f32", "v_log_f32", "v_rcp_f32", "v_rsq_f32", "v_sqrt_f32", "v_sin_f32", "v_cos_f32")


def regs(tok):
    tok = tok.strip()
    if tok == "vcc":
        return {("s", "vcc")}
    if tok == "exec":
        return {("s", "exec")}
    if tok == "m0":
        return {("s", "m0")}
    m = re.match(r"^vp\[(\d+)\]$", tok)
    if m:
        i = int(m.group(1))
        return {("v", b + 4 * i + r) for b in (64, 96) for r in range(4)}
    m = REG.match(tok)
    if not m:
        return set()
    k = m.group(2)
    if m.group(3) is not None:
        return {(k, int(m.group(3)))}
    return {(k, i) for i in range(int(m.group(4)), int(m.group(5)) + 1)}


class Ins:
    def __init__(self, text):
        self.text = text
        t = text.split(";")[0].strip()
        self.label = t[:-1] if t.endswith(":") else None
        self.op = "" if self.label or t.startswith(".") else t.split()[0]
        self.directive = t.startswith(".")
        rest = t[len(self.op):].strip() if self.op else ""
        parts = [p.strip() for p in rest.split(",")] if rest else []
        mods = ""
        if "quad_perm" in rest or "op_sel" in rest:
            i = rest.index("quad_perm" if "quad_perm" in rest else "op_sel")
            mods = rest[i:]
            parts = [p.strip() for p in rest[:i].split(",")]
        ops = []
        for p in parts:
            w = p.split()
            if w:
                ops.append(w[0])
                mods += " " + " ".join(w[1:])
        self.ops, self.mods = ops, mods
        op = self.op
        self.mfma = op.startswith("v_mfma") or op.startswith("v_smfmac")
        self.valu = op.startswith("v_") and not self.mfma
        self.ds = op.startswith("ds_")
        self.vmem = op.startswith("buffer_") or op.startswith("global_")
        self.salu = op.startswith("s_")
        self.dpp = "_dpp" in op or any(k in mods for k in ("quad_perm", "row_", "wave_"))
        self.trans = op.replace("_e32", "").replace("_e64", "") in TRANS
        self.dot = op.startswith("v_dot")
        self.perm = op.startswith("v_permlane")
        self.branch = op.startswith("s_cbranch") or op == "s_branch"
        self.target = ops[0] if self.branch else None
        self.ends = op in ("s_branch", "s_endpgm", "s_setpc_b64")
        self.w, self.r = set(), set()
        self.srcc, self.ab, self.stdata = set(), set(), set()
        R = [regs(o) for o in ops]
        if self.mfma:
            self.w = R[0]
            self.ab = R[1] | R[2]
            if op.startswith("v_smfmac"):
                self.srcc = R[0]
                self.ab |= R[3]
            else:
                self.srcc = R[3]
            self.r = self.ab | self.srcc
            self.passes = 8 if "32x32" in op else 4
        elif self.valu:
            self.w = set(R[0])
            self.r = set().union(*R[1:]) if len(R) > 1 else set()
            if self.perm:
                self.w = R[0] | R[1]
                self.r = R[0] | R[1]
            if op.startswith(("v_fmac", "v_dot2c", "v_writelane")) or self.dpp:
                self.r |= R[0]
            if op.startswith("v_cndmask") and len(ops) == 3:
                self.r |= {("s", "vcc")}
        elif self.ds:
            if op.startswith("ds_read") or "bpermute" in op or "swizzle" in op:
                self.w = R[0]
                self.r = set().union(*R[1:])
            else:
                self.r = set().union(*R)
        elif self.vmem:
            lds = " lds" in (" " + mods) or "_lds_" in op
            self.ldsdma = lds
            if lds:
                self.r = set().union(*R) | {("s", "m0")}
            elif "load" in op:
                self.w = R[0]
                self.r = set().union(*R[1:])
            elif op.startswith("buffer_"):
                if R:
                    self.r = set().union(*R)
                    if "x4" in op or "x3" in op:
                        self.stdata = R[0]
                    if "atomic" in op and "sc0" in mods:
                        self.w = R[0]
            else:
                self.r = set().union(*R) if R else set()
        elif self.salu and ops and not self.branch and not op.startswith(("s_cmp", "s_waitcnt", "s_nop", "s_sleep", "s_setprio", "s_bitcmp")):
            self.w = set(R[0])
            self.r = set().union(*R[1:]) if len(R) > 1 else set()
            if "saveexec" in op:
                self.w |= {("s", "exec")}
        elif self.salu:
            self.r = set().union(*R) if R else set()

    def states(self):
        if self.label or self.directive or not self.op:
            return 0
        if self.op == "s_nop":
            return int(self.ops[0], 0) + 1
        return 1


def vec(s):
    return {x for x in s if x[0] in "va"}


def sca(s):
    return {x for x in s if x[0] == "s"}


def need(p, c):
    n = 0
    if p.valu:
        pw = vec(p.w)
        if c.mfma and pw & c.r:
            n = max(n, 3 if p.dot else 2)
        if c.valu and c.dpp and pw & c.r:
            n = max(n, 2)
        if c.perm and pw & c.r:
            n = max(n, 2)
        if c.op.startswith(("v_readlane", "v_readfirstlane")) and pw & c.r:
            n = max(n, 1)
        if p.trans and c.valu and not c.trans and pw & c.r:
            n = max(n, 1)
        if p.trans and (c.ds or c.vmem) and pw & c.r:
            n = max(n, 1)
        if p.dot and pw & (c.r | c.w):
            same_chain = c.op == p.op and len(c.ops) == 4 and not (pw & (regs(c.ops[1]) | regs(c.ops[2])))
            if not same_chain:
                n = max(n, 3)
        if "sdwa" in p.op and c.valu and pw & (c.r | c.w):
            n = max(n, 1)
        ps = sca(p.w)
        if ps & c.r:
            if c.vmem:
                n = max(n, 5)
            elif c.op.startswith(("v_readlane", "v_writelane")):
                n = max(n, 4)
            elif c.valu:
                n = max(n, 2)
            elif c.salu:
                n = max(n, 1)
    if p.mfma:
        t = {4: (6, 8, 3), 8: (10, 12, 7)}[p.passes]
        if c.mfma:
            if p.w & c.ab:
                n = max(n, t[1])
            if p.w & c.srcc and (p.w != c.srcc or p.passes != c.passes):
                n = max(n, t[0])
            if p.w & c.w and not (p.w & c.srcc):
                n = max(n, t[0])
        elif (c.valu or c.ds or c.vmem) and p.w & (c.r | c.w):
            n = max(n, t[1])
        if c.valu and p.srcc & c.w:
            n = max(n, t[2])
    if p.vmem and p.stdata and p.stdata & c.w:
        n = max(n, 2 if c.valu or c.mfma else 1)
    if p.ds and p.op.startswith("ds_write") and ("b128" in p.op or "b96" in p.op) and c.valu and vec(p.r) & c.w:
        n = max(n, 2)
    if p.salu and ("s", "m0") in p.w and ("s", "m0") in c.r and (c.vmem or c.ds or c.valu):
        n = max(n, 1)
    return n


def physical(text):
    def ph(r):
        if 64 <= r < 128:
            return 64 + 8 * (((r - 64) & 31) >> 2) + (4 if r >= 96 else 0) + (r & 3)
        return r

    def one(m):
        if m.group(1):
            return "v%d" % ph(int(m.group(1)))
        a, b = int(m.group(2)), int(m.group(3))
        assert ph(b) - ph(a) == b - a, text
        return "v[%d:%d]" % (ph(a), ph(b))
    text = re.sub(r"\bv(?:(\d+)\b|\[(\d+):(\d+)\])", one, text)
    return re.sub(r"\bvp\[(\d+)\]", lambda m: "v[%d:%d]" % (64 + 8 * int(m.group(1)), 71 + 8 * int(m.group(1))), text)


class Asm:
    def __init__(self):
        self.l = []
        self.vm = 0
        self.nlab = 0

    def __call__(self, *lines):
        for s in lines:
            for t in s.split("\n"):
                t = t.strip()
                if not t:
                    continue
                i = Ins(t)
                self.l.append(i)
                if i.vmem and i.op not in ("buffer_inv", "buffer_wbl2"):
                    self.vm += 1
        return self.vm

    def mark(self):
        return self.vm

    def wait_vm(self, token, lgkm=None):
        n = min(self.vm - token, 63)
        self("s_waitcnt vmcnt(%d)%s" % (n, "" if lgkm is None else " lgkmcnt(%d)" % lgkm))

    def uncounted(self, token):
        self.vm = token

    def lab(self, name):
        self.nlab += 1
        return "L_%s_%d" % (name, self.nlab)

    def pad(self):
        changed = True
        total = 0
        while changed:
            changed = False
            L = self.l
            src = {}
            for k, i in enumerate(L):
                if i.branch:
                    src.setdefault(i.target, []).append(k)
            for k, c in enumerate(L):
                if not c.op or c.op in ("s_nop", "s_waitcnt", "s_barrier"):
                    continue
                worst = 0
                stack = [(k - 1, 0, True)]
                seen = set()
                while stack:
                    j, dist, fall = stack.pop()
                    while j >= 0 and dist < 13:
                        p = L[j]
                        if (j, dist) in seen:
                            break
                        seen.add((j, dist))
                        if p.label:
                            for b in src.get(p.label, []):
                                stack.append((b, dist, False))
                        elif p.ends and fall:
                            break
                        elif p.op:
                            worst = max(worst, need(p, c) - dist)
                            dist += p.states()
                        fall = True
                        j -= 1
                if worst > 0:
                    L.insert(k, Ins("s_nop %d" % (worst - 1)))
                    total += worst
                    changed = True
                    break
        return total

    def text(self):
        return "\n".join((i.text if i.label else "    " + physical(i.text)) for i in self.l) + "\n"


def schedule(lines, pre=()):
    ins = [Ins(t) for t in lines]
    n = len(ins)
    for i in ins:
        m = re.search(r"guards=(\S+)", i.text)
        if m:
            i.w = i.w | regs(m.group(1))
            i.r = i.r | regs(m.group(1))
        m = re.search(r"after=(\S+)", i.text)
        if m:
            i.r = i.r | regs(m.group(1))
        if i.op.startswith("s_") and not i.op.startswith(("s_mov", "s_waitcnt", "s_nop")):
            i.w = i.w | {("s", "scc")}
            if i.op.startswith(("s_addc", "s_cselect", "s_subb")):
                i.r = i.r | {("s", "scc")}
        for o in i.ops[:1]:
            if o in ("vcc_lo", "vcc_hi"):
                i.w = i.w | {("s", "vcc")}
                i.r = i.r | {("s", "vcc")}
        m = re.search(r"prio=(-?\d+)", i.text)
        i.bias = int(m.group(1)) if m else 0
        m = re.search(r"lat=(\d+)", i.text)
        i.minlat = int(m.group(1)) if m else 0
        m = re.search(r"tail=(\d+)", i.text)
        i.tail = int(m.group(1)) if m else 0
        m = re.search(r"mem=(\w+)", i.text)
        i.tag = m.group(1) if m else ""
        i.cost = 8 if i.trans else 4
        i.vblock = 12 if i.op.startswith('v_smfmac') else 8
    pred = [[] for _ in range(n)]
    for b in range(n):
        B = ins[b]
        for a in range(b):
            A = ins[a]
            lat = None
            if A.w & B.r:
                lat = 80 if A.ds else 300 if A.vmem else A.cost
                if A.mfma:
                    lat = 16 if B.mfma and A.w == B.srcc and not (A.w & B.ab) else 40
            elif A.w & B.w:
                lat = 100 if A.ds else 40 if A.mfma else A.cost
            elif A.r & B.w:
                lat = 20 if A.mfma and B.ds else A.cost
            elif A.ds and B.ds and A.tag != B.tag:
                pass
            elif A.ds and B.ds and not A.w and B.w:
                lat = 8
            elif (A.ds and B.ds) or ((A.vmem or A.op == "s_waitcnt") and (B.vmem or B.op == "s_waitcnt")):
                lat = A.cost
            if lat is not None:
                if A.vmem and B.vmem:
                    lat = max(lat, B.minlat)
                pred[b].append((a, lat))
    succ = [[] for _ in range(n)]
    for b in range(n):
        for a, lat in pred[b]:
            succ[a].append((b, lat))
    mf = [k for k in range(n) if ins[k].mfma]
    nxt = dict(zip(mf, mf[1:]))
    crit = [0] * n
    for a in range(n - 1, -1, -1):
        crit[a] = max([lat + crit[b] for b, lat in succ[a]] + [ins[a].cost, ins[a].tail] + ([16 + crit[nxt[a]]] if a in nxt else []))
    done, out, t = {}, [], 0
    pipe = vfree = mfree = lds = 0
    left = set(range(n))

    def short(c):
        dist, worst = 0, 0
        for p in reversed(out[-13:]):
            worst = max(worst, need(ins[p], ins[c]) - dist)
            dist += 1
        return worst

    def pipe_op(i):
        return i.dot or i.op.startswith("v_pk_")

    while left:
        ready = [k for k in left if all(a in done for a, _ in pred[k]) and not (ins[k].mfma and any(m in left for m in mf if m < k))]

        def start(k):
            i = ins[k]
            s = max([t] + [done[a] + lat for a, lat in pred[k]])
            if i.mfma or pipe_op(i):
                s = max(s, pipe)
            if i.valu or i.mfma:
                s = max(s, vfree)
            if i.ds or i.vmem:
                s = max(s, mfree)
            if i.ds:
                s = max(s, lds)
            return max(s, t + 4 * short(k))
        st = {k: start(k) for k in ready}
        pr = {k: crit[k] + ins[k].bias for k in ready}
        m = [k for k in ready if ins[k].mfma]
        top = max(ready, key=lambda k: pr[k] - st[k])
        lead = m[0] if m and pr[m[0]] + 8 >= pr[top] else top
        fit = [k for k in ready if k != lead and st[k] + ins[k].cost <= st[lead]
               and not (ins[k].valu and (ins[lead].ds or ins[lead].vmem) and st[k] + ins[k].cost + 8 > st[lead])
               and not (ins[k].mfma and ins[lead].valu and st[k] + (16 if pipe_op(ins[lead]) else ins[k].vblock - 8) > st[lead])]
        k = min(fit, key=lambda k: (st[k], -pr[k])) if fit else lead
        i = ins[k]
        t = st[k]
        done[k] = t
        if i.mfma:
            pipe, vfree = t + 16, t + i.vblock
        elif i.valu:
            vfree, mfree = t + i.cost, t + i.cost + 8
        if i.ds:
            lds = t + (24 if "write2" in i.op else 52 if "write_b128" in i.op else 16 if "b128" in i.op else 8)
        t += i.cost
        out.append(k)
        left.discard(k)
    res, pend = [], [(set(Ins(p).w), 0) for p in pre]
    for k in out:
        i = ins[k]
        hit = [p for p, (w, _) in enumerate(pend) if w & (i.r | i.w)]
        if hit:
            old = [p for p, (_, ti) in enumerate(pend) if done[k] - ti >= 140]
            pend = pend[max(hit + old) + 1:]
            res.append("s_waitcnt lgkmcnt(%d)" % min(len(pend), 15))
        res.append(i.text.split(";")[0].rstrip())
        if i.ds:
            pend.append((set(i.w), done[k]))
    return res, t


def align(asm, window=32, nop_cost=1.0):
    import os
    import subprocess
    import tempfile
    llvm = "bin/"
    with tempfile.TemporaryDirectory() as d:
        open(d + "/a.s", "w").write('.amdgcn_target "amdgcn-amd-amdhsa--gfx950"\n.text\n' + asm.text())
        subprocess.run([llvm + "clang", "-x", "assembler", "-target", "amdgcn-amd-amdhsa", "-mcpu=gfx950", "-c", d + "/a.s", "-o", d + "/a.o"], check=True)
        out = subprocess.run([llvm + "llvm-objdump", "-d", "--mcpu=gfx950", d + "/a.o"], capture_output=True, text=True, check=True).stdout
    sizes = [4 * len(m.group(1).split()) for m in re.finditer(r"// [0-9A-F]{12}: ((?:[0-9A-F]{8} ?)+)", out)]
    ins = [i for i in asm.l if i.op]
    assert len(ins) == len(sizes), (len(ins), len(sizes))
    n = window // 4
    INF = 1e18
    cost = [0.0] + [INF] * (n - 1)
    back = []
    for i, sz in zip(ins, sizes):
        wide = sz == 4 and i.valu and not i.op.startswith(("v_readfirstlane", "v_permlane", "v_nop"))
        new, arg = [INF] * n, [None] * n
        for o in range(n):
            if cost[o] >= INF:
                continue
            for ch, pre, s_, extra in (("", 0, sz, 0.0), ("w", 0, 8, 0.01), ("n", 1, sz, nop_cost)):
                if ch == "w" and not wide:
                    continue
                st = (o + pre) % n
                c = cost[o] + extra + (1.0 if st + s_ // 4 > n else 0.0)
                e = (st + s_ // 4) % n
                if c < new[e]:
                    new[e], arg[e] = c, (o, ch)
        cost = new
        back.append(arg)
    o = min(range(n), key=lambda k: cost[k])
    total = cost[o]
    choice = []
    for arg in reversed(back):
        o, ch = arg[o]
        choice.append(ch)
    choice.reverse()
    res, k = [], 0
    for i in asm.l:
        if i.op:
            if choice[k] == "n":
                res.append(Ins("s_nop 0"))
            if choice[k] == "w":
                i = Ins(i.text.replace(i.op, i.op + "_e64", 1))
            k += 1
        res.append(i)
    asm.l = res
    return total, choice.count("w"), choice.count("n")
```

```python
import struct
import sys
from asmlib import Asm, align, schedule

KNAME = "interleave_layers__gqa_block_cached__glu_gated_bilinear__decode_kernel"

LS = 1 << 20
OFF_ML, OFF_A, OFF_C, OFF_XB, OFF_XD, OFF_E = 0, 4 << 10, 36 << 10, 52 << 10, 56 << 10, 60 << 10
OFF_CSG, OFF_CSQ = 56 << 10, 64 << 10
WS_SIZE = 3 * LS
OFF_XW = 4 << 20
STAMP_OFF = 8 << 20
OOB = 0x7FFF0000

RING = 24576
L_WQ = 4 * RING
L_WO = L_WQ + 16384
L_WG = L_WO + 16384
L_WD = L_WG + 16384
L_SCR = L_WD + 8192
L_H = L_SCR + 1024
L_Q, QSTR = L_SCR + 1536, 2112
L_OOB = 0x30000
assert L_SCR + 8192 == 163840

sK, sV, sWS, sWF, sWL, sOUT, sDBG, sXI, sT = 28, 32, 36, 40, 44, 48, 52, 56, 96
sw, sg, sj, sb, ss, su, sring, srot, stmp, slayer = range(60, 70)
(sMLst, sMLld, sAst, sAld, sBst, sBld, sXst, sXld, sCst, sCld, sCS, sS1, sSC, sRow, sEst, sEld) = range(70, 86)
sWo, sWl = 86, 87
sM1 = 88
sspin, scmp = 94, 95
sclr, slead, sact = 3, 14, 15
sLO, sHI = 6, 7
sXW, sB2, svote = 24, 23, 22
sslow = 10
sWo2, sWl2 = 8, 9
SPIN_LIMIT = 1 << 18

vL, vA16, vTRV, vRES = 0, 1, 2, 3
vQ, vO, vIX, vAI, vS = 8, 24, 56, 56, 64
vWG, vWD, vWQ, vCG, vCQ, vSEL, vX, vD = 8, 24, 32, 48, 50, 52, 56, 72
vKS, vKR = 240, 244
ORDER = [0, 1, 2, 3, 5, 6, 7, 4]
SLOT = {5: 2, 6: 4, 7: 0}
SCALE = 128 ** -0.5 * 1.4426950408889634
ONES = "0x3f803f80"


def f32(x):
    return "0x%08x" % struct.unpack("<I", struct.pack("<f", x))[0]


def q(r, n=4, k="v"):
    return "%s[%d:%d]" % (k, r, r + n - 1)


def srd(r):
    return "s[%d:%d]" % (r, r + 3)


class Gen:
    def __init__(self, depth=6, burst=6, rotg=5, stamps=False, force_slow=False, skip="", wpol="nt", kvpol="nt",
                 dbgstamps=False, tq=(2, 3, 4, 5), tg=(6, 7, 8, 9), to=(31, 31, 31, 31), lag=2, probe=None, cyc=False,
                 d0=None, tclr=27, dbl="pollXB,pollC,pollXD,pollE", gap=1, near=1, dly=dict(last=8, pollA=22), ipf=24,
                 sync=(3, 5, 8, 10, 12, 15, 17), nB=200, nD=200, wb=False, gap2=14, mlat=(160, 100), mltail=500, mlcut=4, p0=400, win=32, ipf0=True, back={}, outpol='sc1', hop=True, nvote=0, dup=False):
        self.__dict__.update(locals())
        self.a = Asm()
        self.nst = 0
        self.cold = []
        self.nslow = 0
        self.stamp_names = []

    def stamp(self, name, per_layer=False):
        if not self.stamps or (self.stamps is not True and name not in self.stamps):
            return
        a = self.a
        k = self.nst
        self.nst += 2 if per_layer else 1
        assert self.nst <= 28
        a("%s s[0:1]" % ("s_memtime" if self.cyc else "s_memrealtime"), "s_waitcnt lgkmcnt(0)")
        if per_layer:
            self.stamp_names += [name + "/1", name + "/2"]
            a("s_add_u32 m0, s%d, %d" % (slayer, k - 1), "v_writelane_b32 v4, s0, m0")
        else:
            self.stamp_names.append(name)
            a("v_writelane_b32 v4, s0, %d" % k)

    def mk_srd(self, d, p, size):
        self.a("s_mov_b32 s%d, s%d" % (d, p), "s_mov_b32 s%d, s%d" % (d + 1, p + 1),
               "s_mov_b32 s%d, %s" % (d + 2, size), "s_mov_b32 s%d, 0x20000" % (d + 3))

    def lin(self, d, t, *terms):
        first = True
        for sh, bits, sc in terms:
            r = d if first else t
            if sh + bits >= 6:
                src = vL
                if sh:
                    self.a("v_lshrrev_b32 v%d, %d, v0" % (r, sh)); src = r
            elif sh == 0:
                self.a("v_and_b32 v%d, %d, v0" % (r, (1 << bits) - 1)); src = r
            else:
                self.a("v_bfe_u32 v%d, v0, %d, %d" % (r, sh, bits)); src = r
            if first:
                if sc or src != d:
                    self.a("v_lshlrev_b32 v%d, %d, v%d" % (d, sc, src))
            else:
                self.a("v_lshl_add_u32 v%d, v%d, %d, v%d" % (d, src, sc, d))
            first = False

    def sexpr(self, d, const, *terms):
        a = self.a
        first = True
        for reg, mult in terms:
            r = d if first else 101
            if mult & (mult - 1) == 0:
                a("s_lshl_b32 s%d, s%d, %d" % (r, reg, mult.bit_length() - 1))
            else:
                a("s_mul_i32 s%d, s%d, %d" % (r, reg, mult))
            if not first:
                a("s_add_u32 s%d, s%d, s101" % (d, d))
            first = False
        if const:
            a("s_add_u32 s%d, s%d, 0x%x" % (d, d, const))

    def oob_unless(self, v, t, cond):
        self.a(cond, "v_mov_b32 v%d, 0x%x" % (t, OOB), "v_cndmask_b32 v%d, v%d, v%d, vcc" % (v, t, v))

    def even_only(self, v, t, cmp="0"):
        self.a("v_and_b32 v%d, 1, v0" % t)
        self.oob_unless(v, t, "v_cmp_eq_u32 vcc, %s, v%d" % (cmp, t))

    def st_intra(self, op, data, voff, soff, both=False):
        a = self.a
        slow = "%s %s, v%d, %s, s%d offen sc1" % (op, data, voff, srd(sWL), soff)
        a("%s %s, v%d, %s, s%d offen" % (op, data, voff, srd(sWF), soff))
        if both or self.dup:
            tk = a.mark()
            a(slow)
            a.uncounted(tk)
            return
        self.nslow += 1
        L = "L_slow%d" % self.nslow
        a("s_cmp_eq_u32 s%d, 0" % (sWF + 2), "s_cbranch_scc1 " + L, L + "_b:")
        self.cold += [L + ":", slow, "s_branch %s_b" % L]

    def ld(self, r, voff, soff, off=0, n=4, rs=sWS):
        return "buffer_load_dword%s %s, v%d, %s, s%d offen offset:%d sc1" % (
            "x%d" % n if n > 1 else "", q(r, n) if n > 1 else "v%d" % r, voff, srd(rs), soff, off)

    def spin_count(self):
        return ["s_add_u32 s%d, s%d, 1" % (sspin, sspin), "s_cmp_lt_u32 s%d, 0x%x" % (sspin, SPIN_LIMIT), "s_cselect_b32 s%d, -2, -1" % scmp]

    def two(self, name):
        return name in self.dbl.split(",")

    def rounds(self, name):
        return 1 + self.dbl.split(",").count(name)

    def poll(self, loads, regs, acc, name, spec=None, issued=0, then=()):
        a = self.a
        L = a.lab(name)
        k = self.rounds(name)
        n = len(loads)
        for r in range(issued, k):
            if r:
                a("s_sleep %d" % self.gap)
            a(*loads)
        a("s_branch %s_w" % L, L + ":")
        b = self.back.get(name, self.back.get("*", 0)) if k > 1 or name in self.back else 0
        for _ in range(b // 16):
            a("s_nop 15")
        if b % 16:
            a("s_nop %d" % (b % 16 - 1))
        a(*loads)
        a(*self.spin_count())
        a(L + "_w:")
        self.check(regs, acc, k * n, spec if k == 1 else None)
        a("s_cbranch_vccnz " + L, *then)
        if k > 1 and spec:
            for r in range(n):
                spec(r)
        if self.stamps is not True:
            self.stamp(name, True)

    def with_loads(self, name, work, loads):
        a = self.a
        d = (self.dly or {}).get(name, 0)
        cut = [d + self.gap2 * r for r in range(self.rounds(name))]
        for k, ln in enumerate(work):
            if cut and k == cut[0]:
                a(*loads)
                cut.pop(0)
            a(ln)
        return self.rounds(name) - len(cut)

    def check(self, regs, acc, n, spec=None):
        a = self.a
        have, rr = None, []
        for i, part in enumerate(regs):
            if n:
                a("s_waitcnt vmcnt(%d)" % (n - 1 - i))
            if spec:
                spec(i)
            rr += list(part)
            last = i == len(regs) - 1
            while rr:
                pool = ([have] if have is not None else []) + rr
                if len(pool) >= 3:
                    a("v_max3_u32 v%d, v%d, v%d, v%d" % (acc, *pool[:3])); rr = pool[3:]; have = acc
                elif not last:
                    break
                elif len(pool) == 2:
                    a("v_max_u32 v%d, v%d, v%d" % (acc, *pool)); rr = []; have = acc
                else:
                    have = pool[0]; rr = []
        a("v_cmp_lt_u32 vcc, s%d, v%d" % (scmp, have))

    def check_or_poll(self, loads, regs, acc, name, wait, pre=()):
        a = self.a
        tk = a.mark()
        a("s_branch L_%s_c" % name, "L_%s_r:" % name, *pre)
        a(*loads)
        a(*self.spin_count())
        a("s_waitcnt vmcnt(0)", "L_%s_c:" % name)
        a.uncounted(tk)
        a.wait_vm(wait)
        self.check(regs, acc, 0)
        a("s_cbranch_vccnz L_%s_r" % name)

    def mfma(self, d, A, B, c):
        self.a("v_mfma_f32_16x16x32_bf16 %s, %s, %s, %s" % (q(d), A, B, q(d) if c else "0"))

    def smf(self, d, A, B):
        self.a("v_smfmac_f32_16x16x64_bf16 %s, %s, %s, v%d" % (q(d), A, B, vIX))

    def dpp(self, op, d, s0, s1, ctl, rm="0xf"):
        self.a("%s_dpp v%d, v%d, v%d %s row_mask:%s bank_mask:0xf" % (op, d, s0, s1, ctl, rm))

    def pack_pairs(self, d, v):
        self.a("v_mov_b32_dpp v%d, v%d quad_perm:[1,1,3,3] row_mask:0xf bank_mask:0xf" % (d, v),
               "v_cvt_pk_bf16_f32 v%d, v%d, v%d" % (d, v, d))

    def tile_issue(self, T, between=None):
        a = self.a
        a("s_and_b32 s%d, s%d, 15" % (srot, srot), "s_lshl_b32 s%d, s%d, 17" % (stmp, srot),
          "s_add_u32 s%d, s%d, s%d" % (stmp, stmp, su), "s_add_u32 s%d, s%d, 1" % (srot, srot),
          "s_add_u32 m0, s%d, %d" % (sring, (T % 6) * 4096))
        if T >= 6:
            a("s_waitcnt lgkmcnt(%d)" % (0 if between else 1))
        for jj in range(4):
            self.throttle(T, 4 * T + jj >= 128 - self.burst)
            va = vKS + jj if T < 16 else 5 + (jj & 1)
            a("buffer_load_dwordx4 v%d, %s, s%d offen offset:%d %s lds" % (va, srd(sK if T < 16 else sV), stmp, jj * 1024, self.kvpol))
            self.ltok.append(a.mark())
            self.tok[T] = a.mark()
            if between:
                between(jj)
        if 16 <= T < 31:
            a("v_xor_b32 v5, 64, v5", "v_xor_b32 v6, 64, v6")

    def throttle(self, T, burst):
        d = self.d0.get(T, self.depth) if self.d0 else self.depth
        if T > 1 and not burst and d < len(self.ltok):
            self.a.wait_vm(self.ltok[-d])

    def vreg(self, p, i):
        return 128 + 64 * (p >> 1) + 8 * i + 4 * (p & 1) if p < 4 else (96 if p == 4 else vS) + 4 * i

    def v_reads(self, p, dst=None):
        slot = (16 + 2 * p) % 6
        for i in range(8):
            for h in range(2):
                d = dst(i, h) if dst else q(self.vreg(p, i) + 2 * h, 2)
                self.a("ds_read_b64_tr_b16 %s, v%d offset:%d ; mem=v" % (d, vAI + i if i else vTRV, slot * 4096 + h * 512))

    def tile_consume(self, T):
        a = self.a
        if T < 16:
            a.wait_vm(self.tok[T])
            for st in range(4):
                a("ds_read_b128 %s, v%d offset:%d" % (q(16 * T + 4 * st, 4, "a"), vKR + st, (T % 6) * 4096))
        elif T & 1:
            a.wait_vm(self.tok[T])
            self.v_reads((T - 16) >> 1)

    def mk_ai(self):
        for i in range(1, 8):
            self.a("v_xor_b32 v%d, %d, v%d" % (vAI + i, i << 5, vTRV))
        self.a("v_and_b32 v%d, 1, v0" % vIX, "v_mul_u32_u24 v%d, 0xaaaa, v%d" % (vIX, vIX), "v_add_u32 v%d, 0x4444, v%d" % (vIX, vIX))

    def weight_load(self, kind, k, T, va=52):
        a = self.a
        t = va + 1
        pitch = {"q": 8192, "g": 3584, "d": 1024, "o": 1024}[kind]
        if k == 0:
            if kind == "o":
                self.lin(va, t, (5, 1, 14), (3, 2, 10), (0, 3, 4))
                a("v_and_b32 v%d, 32, v0" % t, "v_xor_b32 v%d, v%d, v%d" % (va, va, t))
                self.mk_srd(sT, 12, "0x400000")
                self.sexpr(sWo, 0, (sg, 512 * 1024), (sb, 128 * 1024), (sw, 4096), (ss, 128))
                self.sexpr(sWl, L_WO, (sw, 4096))
            else:
                a("v_lshrrev_b32 v%d, 3, v0" % va, "v_mul_u32_u24 v%d, %d, v%d" % (va, pitch, va), "v_and_b32 v%d, 7, v0" % t,
                  "v_lshl_add_u32 v%d, v%d, 4, v%d" % (va, t, va), "v_bfe_u32 v%d, v0, 4, 1" % t, "v_lshlrev_b32 v%d, 5, v%d" % (t, t),
                  "v_xor_b32 v%d, v%d, v%d" % (va, va, t))
            if kind in "qg":
                a("s_and_b32 s100, s%d, 1" % sw, "s_lshl_b32 s100, s100, 6", "v_xor_b32 v%d, s100, v%d" % (va, va))
            if kind == "q":
                self.mk_srd(sT, 10, "0x400000")
                self.sexpr(sWo, 0, (sb, 128 * pitch), (sw, 32 * pitch), (sg, 1024), (ss, 128))
                self.sexpr(sWl, L_WQ, (sw, 4096))
            if kind in "gd":
                a("s_lshr_b32 s100, s%d, 1" % sg, "s_mul_i32 s100, s100, 7", "s_and_b32 s%d, s%d, 1" % (stmp, sg),
                  "s_lshl_b32 s%d, s%d, 2" % (stmp, stmp), "s_add_u32 s100, s100, s%d" % stmp)
            if kind == "g":
                a("s_and_b32 s%d, s%d, 3" % (stmp, ss), "s_add_u32 s100, s100, s%d" % stmp)
                self.sexpr(sWo, 0, (sb, 128 * pitch), (sw, 32 * pitch), (100, 128))
                self.sexpr(sWl, L_WG, (sw, 4096))
                a("s_bitcmp1_b32 s%d, 0" % sact, "s_cselect_b32 s100, 0x%x, 0" % (512 * pitch))
                self.mk_srd(sT, 16, "s100")
                a("s_cmp_ge_u32 s%d, 4" % ss, "s_cselect_b32 s%d, s18, s16" % sT, "s_cselect_b32 s%d, s19, s17" % (sT + 1))
            if kind == "d":
                a("s_add_u32 s100, s100, s%d" % sb)
                self.sexpr(sWo2, 0, (100, 64 * pitch), (sw, 16 * pitch), (ss, 128))
                self.sexpr(sWl2, L_WD, (sw, 2048))
                a("s_bitcmp1_b32 s%d, 1" % sact, "s_cselect_b32 s100, 0x%x, 0" % (1792 * pitch))
                self.mk_srd(sXI, 20, "s100")
            if kind in "od":
                a("v_xor_b32 v%d, 64, v%d" % (t, va))
            if T is None:
                return
        self.weight_issue(kind, k, T, va)

    def weight_issue(self, kind, k, T, va):
        a = self.a
        pitch = {"q": 8192, "g": 3584, "d": 1024, "o": 1024}[kind]
        so, sl, rs = (sWo2, sWl2, sXI) if kind == "d" else (sWo, sWl, sT)
        a("s_add_u32 s%d, s%d, 0x%x" % (stmp, so, (32 if kind == "o" else 8) * pitch * k), "s_add_u32 m0, s%d, 0x%x" % (sl, 1024 * k))
        if kind not in self.skip:
            if T < 31:
                self.throttle(T, False)
            a("buffer_load_dwordx4 v%d, %s, s%d offen %s lds" % (va + (k & 1 if kind in "od" else 0), srd(rs), stmp, self.wpol))
            self.ltok.append(a.mark())
        self.wtok[kind] = a.mark()

    def lines(self, fn, *args):
        keep, self.a = self.a, Asm()
        fn(*args)
        out, self.a = [i.text for i in self.a.l], keep
        return out

    def sched(self, lines, pre=()):
        out, t = schedule(lines, pre)
        self.a(*out)
        return t

    def s_zero(self):
        for r in range(vS, vS + 32, 2):
            self.a("v_mov_b64 %s, 0" % q(r, 2))

    def qk(self):
        a = self.a
        for k, p in enumerate(ORDER):
            d = vS + 4 * k
            for sg_ in range(2):
                for hf in range(2):
                    self.smf(d, q(vQ + 8 * sg_ + 4 * hf), q(16 * (2 * p + sg_) + 8 * hf, 8, "a"))
            a("v_add_f32 v%d, v%d, v%d" % (d, d, d + 1), "v_add_f32 v%d, v%d, v%d" % (d + 1, d + 2, d + 3))
            a("v_max3_f32 v7, v7, v%d, v%d" % (d, d + 1) if k else "v_max_f32 v7, v%d, v%d" % (d, d + 1))

    def ml_off(self, v, t):
        self.a("v_mov_b32 v%d, v%d" % (v, vA16), "v_and_b32 v%d, 15, v0" % t)
        self.oob_unless(v, t, "v_cmp_eq_u32 vcc, 0, v%d" % t)

    def softmax(self, vw, voff):
        a = self.a
        for k in (1, 2, 4, 8):
            self.dpp("v_max_f32", 7, 7, 7, "row_ror:%d" % k)
        a("v_mul_f32 v20, s%d, v7" % sSC, "s_mov_b32 s100, %s" % ONES)
        for k in range(8):
            r = q(vS + 4 * k, 2)
            a("v_pk_fma_f32 %s, %s, s[%d:%d], v[20:21] op_sel_hi:[1,0,0] neg_lo:[0,0,1] neg_hi:[0,0,1]" % (r, r, sSC, sSC + 1))
        for k in range(8):
            r = vS + 4 * k
            a("v_exp_f32 v%d, v%d" % (r, r), "v_exp_f32 v%d, v%d" % (r + 1, r + 1), "v_cvt_pk_bf16_f32 v%d, v%d, v%d" % (r + 2, r, r + 1))
            if k & 1:
                a("ds_write2st64_b32 v%d, v%d, v%d offset0:%d offset1:%d ; mem=p%d" % (vw, r - 2, r + 2, k - 1, k, k - 1))
        for k in range(8):
            a("v_dot2_f32_bf16 v21, v%d, s100, %s" % (vS + 4 * k + 2, "v21" if k else "0"))
        for k in (1, 2, 4, 8):
            self.dpp("v_add_f32", 21, 21, 21, "row_ror:%d" % k)
        self.st_intra("buffer_store_dwordx2", "v[20:21]", voff, sMLst, both=True)

    def ml_finish(self, r):
        a = self.a
        a("v_sub_f32 v%d, v%d, v20" % (r, r), "v_sub_f32 v%d, v%d, v20" % (r + 2, r + 2),
          "v_exp_f32 v%d, v%d" % (r, r), "v_exp_f32 v%d, v%d" % (r + 2, r + 2),
          "v_mul_f32 v7, v%d, v%d" % (r, r + 1), "v_fmac_f32 v7, v%d, v%d" % (r + 2, r + 3))
        for k in (1, 2, 4, 8):
            self.dpp("v_add_f32", 7, 7, 7, "row_ror:%d" % k)
        a("v_rcp_f32 v7, v7")

    def lds_or_zero(self, v, t, mask, val=0):
        self.a("v_and_b32 v%d, %d, v0" % (t, mask), "v_cmp_eq_u32 vcc, %d, v%d" % (val, t), "v_mov_b32 v%d, 0x%x" % (t, L_OOB),
               "v_cndmask_b32 v%d, v%d, v%d, vcc" % (v, t, v))

    def p_read(self, k, va, buf):
        self.a("ds_read_b128 %s, v%d offset:%d ; mem=p%d" % (q(vQ + 4 * buf), va, k * 256, k & ~1))

    def pv_dense(self, p, buf, lgkm=None):
        for i in range(8):
            if lgkm is not None:
                self.a("s_waitcnt lgkmcnt(%d)" % lgkm(i))
            self.mfma(vO + 4 * i, q(vQ + 4 * buf), q(self.vreg(p, i)), p > 0)

    def o_write(self, t0, t1):
        a = self.a
        self.sexpr(100, L_SCR, (sw, 2048))
        a("v_add_u32 v22, s100, v%d" % vA16)
        for i in range(8):
            a("v_mul_f32 v%d, v7, v%d" % ((t0, t1)[i >> 2] + (i & 3), vO + 4 * i))
        a("ds_write_b128 v22, %s" % q(t0), "ds_write_b128 v22, %s offset:1024" % q(t1))

    def w_tiles(self, kinds, va, t):
        a = self.a
        last = None
        for kind, dst in kinds:
            qs = 10 if kind == "d" else 12
            if qs != last:
                self.lin(va, t, (4, 2, qs), (2, 2, 7), (0, 2, 3))
                a("v_bfe_u32 v%d, v0, 3, 2" % t, "v_xor_b32 v%d, s%d, v%d" % (t, sw, t), "v_lshl_add_u32 v%d, v%d, 5, v%d" % (va, t, va),
                  "v_add_u32 v%d, 0x%x, v%d" % (va, L_WQ, va))
                last = qs
            base = {"q": L_WQ, "g": L_WG, "d": L_WD}[kind] - L_WQ
            for kb in range(2 if kind == "d" else 4):
                for h in range(2):
                    a("ds_read_b64_tr_b16 %s, v%d offset:%d" % (q(dst + 4 * kb + 2 * h, 2), va,
                                                                  base + kb * (4096 if kind == "d" else 1024) + h * 512))

    def gemv4(self, x, W, vD):
        for kb in range(4):
            self.mfma(vD + 4 * kb, q(x), q(W + 4 * kb), False)

    def gemv4_fin(self, out, vD):
        self.a("v_add_f32 v%d, v%d, v%d" % (out, vD, vD + 5), "v_add_f32 v%d, v%d, v%d" % (out, out, vD + 10),
               "v_add_f32 v%d, v%d, v%d" % (out, out, vD + 15))

    def colsum_pub(self, W, ones, d, va, t, off, *terms):
        a = self.a
        for r in range(4):
            a("v_mov_b32 v%d, %s" % (ones + r, ONES))
        self.lin(va, t, (0, 1, 10), (1, 3, 4))
        self.oob_unless(va, t, "v_cmp_gt_u32 vcc, 16, v0")
        self.sexpr(100, off, (sCS, 1), (sb, 4), (sw, 128), *terms)
        a("s_waitcnt lgkmcnt(0)")
        for kb in range(4):
            self.mfma(d, q(ones), q(W + 4 * kb), kb > 0)
        self.st_intra("buffer_store_dword", "v%d" % d, va, 100)

    def colsum_ld(self, r, off, sel):
        self.sexpr(100, off, (sCS, 1), (sel, 2048))
        self.a(self.ld(r, vA16, 100, 0), self.ld(r + 4, vA16, 100, 1024))

    def colsum_fin(self, r, c):
        for k in range(2):
            b = r + 4 * k
            self.a("v_add_f32 v%d, v%d, v%d" % (b, b, b + 1), "v_add_f32 v%d, v%d, v%d" % (b + 2, b + 2, b + 3),
                   "v_add_f32 v%d, v%d, v%d" % (b, b, b + 2), "v_mul_f32 v%d, %s, v%d" % (c + k, f32(-1.0 / 512), b))

    def stats(self, x, t, att):
        a = self.a
        s1, s2 = t, t + 1
        a("s_mov_b32 s100, %s" % ONES)
        for k in range(4):
            a("v_dot2_f32_bf16 v%d, v%d, s100, %s" % (s1, x + k, "v%d" % s1 if k else "0"),
              "v_dot2_f32_bf16 v%d, v%d, v%d, %s" % (s2, x + k, x + k, "v%d" % s2 if k else "0"))
        a("v_permlane32_swap_b32 v%d, v%d" % (s1, s2), "v_add_f32 v%d, v%d, v%d" % (s1, s1, s2))
        for k in (1, 2, 4, 8):
            self.dpp("v_add_f32", s1, s1, s1, "row_ror:%d" % k)
        self.dpp("v_add_f32", s1, s1, s1, "row_bcast:15", "0xa")
        a("v_readlane_b32 s%d, v%d, 31" % (sS1, s1), "v_mul_f32 v%d, %s, v%d" % (s1, f32(1.0 / 512), s1),
          "v_mov_b32 v%d, s%d" % (s2, sS1), "v_mul_f32 v%d, %s, v%d" % (s2, f32(1.0 / 512), s2),
          "v_fma_f32 v%d, -v%d, v%d, v%d" % (s1, s2, s2, s1), "v_max_f32 v%d, 0, v%d" % (s1, s1),
          "v_add_f32 v%d, %s, v%d" % (s1, f32(1e-5), s1))
        if att:
            a("v_rsq_f32 v%d, v%d" % (s1, s1), "v_mul_f32 v%d, %s, v%d" % (s1, f32(SCALE), s1))
        else:
            a("v_rcp_f32 v%d, v%d" % (s1, s1), "s_nop 0")
        a("v_readlane_b32 s%d, v%d, 63" % (sSC, s1))

    def sum4_init(self, acc, c):
        self.a("v_mul_f32 v%d, s%d, v%d" % (acc, sS1, c), "v_mul_f32 v%d, s%d, v%d" % (acc + 1, sS1, c + 1))

    def sum4(self, x, acc, init):
        for k in range(4):
            c = acc if k else init
            self.a("v_dot2_f32_bf16 v%d, v%d, s%d, v%d" % (acc, x + k, sLO, c),
                   "v_dot2_f32_bf16 v%d, v%d, s%d, v%d" % (acc + 1, x + k, sHI, c + 1))

    def q_addrs(self, vw, vr, t):
        a = self.a
        self.lin(vw, t, (3, 3, 5), (0, 1, 4), (1, 2, 2))
        self.sexpr(100, L_Q, (sw, QSTR))
        a("v_add_u32 v%d, s100, v%d" % (vw, vw))
        self.lin(vr, t, (4, 2, 5), (0, 1, 4))
        a("v_bfe_u32 v%d, v0, 2, 2" % t, "v_mul_u32_u24 v%d, %d, v%d" % (t, QSTR, t), "v_add_u32 v%d, v%d, v%d" % (vr, vr, t),
          "v_add_u32 v%d, 0x%x, v%d" % (vr, L_Q, vr), "v_mov_b32 v%d, v%d" % (vr + 1, vr))
        self.lds_or_zero(vr, t, 2, 0)
        self.lds_or_zero(vr + 1, t, 2, 2)

    def q_assemble(self, acc, vw, vr, fill=()):
        a = self.a
        a("v_cvt_pk_bf16_f32 v%d, v%d, v%d" % (acc, acc, acc + 1), "ds_write_b32 v%d, v%d" % (vw, acc), *fill)
        a("s_waitcnt lgkmcnt(0)", "s_barrier")
        rd = ["ds_read_b128 %s, v%d offset:%d" % (q(vQ + 4 * st), vr + (st >> 1), (st & 1) * 128) for st in range(4)]
        a(*rd)
        return rd

    def late_loads(self, name):
        self.layer1(name)
        for k in range(2):
            self.weight_issue("d", k, 32, 62)
        self.a(name + ":")

    def next_region(self):
        for r in (sWS, sWF, sWL):
            self.a("s_add_u32 s%d, s%d, 0x%x" % (r, r, LS), "s_addc_u32 s%d, s%d, 0" % (r + 1, r + 1))
        self.a("s_sub_u32 s%d, s%d, 0x%x" % (sCS, sCS, LS))

    def leader_fill(self):
        a = self.a
        a("v_mov_b32 v8, -1", "v_mov_b32 v9, -1", "v_mov_b32 v10, -1", "v_mov_b32 v11, -1",
          "s_or_b32 s%d, s%d, s%d" % (slead, sj, sw), "s_cmp_eq_u32 s%d, 0" % slead, "s_cbranch_scc0 L_nolead0")
        tk = a.mark()
        a("s_lshl_b32 s100, s%d, 17" % sg, "buffer_store_dwordx4 v[8:11], v%d, %s, s100 offen sc1" % (vA16, srd(sWS)), "L_nolead0:")
        a.uncounted(tk)
        self.tok_lead = tk

    def leader_flag(self, word, name, tok=None, val="1"):
        a = self.a
        a("s_cmp_eq_u32 s%d, 0" % slead, "s_cbranch_scc0 " + name)
        if tok is not None:
            a.wait_vm(tok)
        tk = a.mark()
        a("v_mov_b32 v53, %s" % val, "v_lshlrev_b32 v54, 8, v0", "s_lshl_b32 s100, s%d, 2" % sg,
          "buffer_store_dword v53, v54, %s, s100 offen offset:%d sc1" % (srd(sDBG), word), name + ":")
        a.uncounted(tk)

    def flag_load(self, v, word, own):
        a = self.a
        if own:
            a("s_lshl_b32 s100, s%d, 2" % sg, "v_mov_b32 v%d, s100" % v)
        else:
            a("v_and_b32 v%d, 7, v0" % v, "v_lshlrev_b32 v%d, 2, v%d" % (v, v))
        return a("buffer_load_dword v%d, v%d, %s, 0 offen offset:%d sc1" % (v, v, srd(sDBG), word))

    def flag_check(self, v, word, own, tok, name):
        a = self.a
        a.wait_vm(tok)
        tk = a.mark()
        a("s_branch %s_c" % name, name + "_s:", "s_sleep 8")
        self.flag_load(v, word, own)
        a("s_add_u32 s%d, s%d, 1" % (sspin, sspin), "s_cmp_lt_u32 s%d, 0x%x" % (sspin, SPIN_LIMIT), "s_waitcnt vmcnt(0)",
          "s_cbranch_scc0 %s_d" % name, name + "_c:", "v_cmp_eq_u32 vcc, 0, v%d" % v, "s_cbranch_vccnz %s_s" % name, name + "_d:")
        a.uncounted(tk)

    def fill_intra(self, v, t, d, start, per_wave):
        a = self.a
        self.sexpr(100, start, (sg, 1 << 17), (sj, 4 * per_wave), (sw, per_wave))
        a("v_mov_b32 v%d, v%d" % (v, vA16))
        self.oob_unless(v, t, "v_cmp_gt_u32 vcc, %d, v0" % (per_wave // 16))
        self.st_intra("buffer_store_dwordx4", q(d), v, 100)

    def sentinels(self, d):
        for r in range(4):
            self.a("v_mov_b32 v%d, -1" % (d + r))

    def prologue(self):
        a = self.a
        if self.stamps:
            a("%s s[92:93]" % ("s_memtime" if self.cyc else "s_memrealtime"))
        a("s_load_dwordx16 s[4:19], s[0:1], 0", "s_load_dwordx8 s[20:27], s[0:1], 64",
          "v_lshrrev_b32 v1, 6, v0", "s_cmpk_ge_u32 s2, 256", "v_readfirstlane_b32 s%d, v1" % sw, "s_cbranch_scc1 L_end")
        if self.hop:
            a("s_cmp_eq_u32 s%d, 3" % sw, "s_cbranch_scc1 L_hop", "L_hopback:")
        a("v_and_b32 v0, 63, v0", "s_and_b32 s%d, s2, 7" % sg, "s_lshr_b32 s%d, s2, 3" % sj, "s_lshr_b32 s%d, s2, 6" % sb,
          "s_and_b32 s%d, s%d, 7" % (ss, sj), "s_lshl2_add_u32 s%d, s%d, s%d" % (su, ss, sw), "s_lshl_b32 s%d, s%d, 12" % (su, su),
          "s_lshl3_add_u32 s100, s%d, s%d" % (sb, sg), "s_mul_i32 s%d, s100, %d" % (srot, self.rotg), "s_lshl_b32 s100, s100, 21",
          "s_mul_i32 s%d, s%d, %d" % (sring, sw, RING))
        a("v_lshrrev_b32 v5, 4, v0", "v_and_b32 v6, 15, v0", "v_xor_b32 v7, v5, v6", "v_lshlrev_b32 v7, 4, v7",
          "v_lshl_add_u32 v%d, v5, 8, v7" % vKS)
        for jj in range(1, 4):
            a("v_xor_b32 v%d, %d, v%d" % (vKS + jj, jj << 6, vKS))
        a("s_lshl_b32 s98, s2, 10", "s_or_b32 s98, s98, 0x%x" % (OFF_XW + (1 << 20)), "v_mov_b32 v9, s98", "v_xor_b32 v10, 0x2000, v9",
          "s_mov_b32 s%d, 0x200000" % (sK + 2), "s_mov_b32 s%d, 0x20000" % (sK + 3))
        self.tok, self.ltok, self.wtok = {}, [], {}
        first = self.lines(self.tile_issue, 0)
        self.tok, self.ltok = {}, []
        a(*first[:5])
        a("s_waitcnt lgkmcnt(0)", "global_load_dword v95, v9, s[26:27] sc1")
        tok_cal = a.mark()
        a("global_load_dword v95, v10, s[26:27] offset:128 sc1", "s_add_u32 s%d, s6, s100" % sK, "s_addc_u32 s%d, s7, 0" % (sK + 1))
        for x in first[5:]:
            self.ltok.append(a(x))
        self.tok[0] = a.mark()
        if self.hop:
            a("s_branch L_hopover", "L_hop:", "s_branch L_hopback", "L_hopover:")
        self.tile_issue(1)
        a("s_add_u32 s%d, s8, s100" % sV, "s_addc_u32 s%d, s9, 0" % (sV + 1),
          "s_mov_b32 s%d, 0x200000" % (sV + 2), "s_mov_b32 s%d, 0x20000" % (sV + 3))
        a("v_lshl_add_u32 v%d, v6, 8, v7" % vKR, "v_add_u32 v%d, s%d, v%d" % (vKR, sring, vKR))
        for st in range(1, 4):
            a("v_xor_b32 v%d, %d, v%d" % (vKR + st, st << 6, vKR))
        a("v_lshlrev_b32 v%d, 4, v0" % vA16)
        self.mk_srd(sDBG, 24, "256")
        self.mk_srd(sWS, 26, "0x%x" % WS_SIZE)
        self.mk_srd(sOUT, 22, "4096")
        a("s_add_u32 s%d, s26, 0x%x" % (sXW, OFF_XW), "s_addc_u32 s%d, s27, 0" % (sXW + 1),
          "s_mov_b32 s%d, 0x100000" % (sXW + 2), "s_mov_b32 s%d, 0x20000" % (sXW + 3))
        if self.stamps:
            a("v_mov_b32 v4, 0", "v_writelane_b32 v4, s92, 0")
            self.nst = 1
            self.stamp_names.append("entry")
        self.stamp("start")
        rest = self.lines(self.setup_b) + self.lines(self.setup_c)
        n = self.nvote
        while rest[n].startswith(("s_cselect", "s_addc")):
            n += 1
        a(*rest[:n])
        a("s_cmp_eq_u32 s%d, 0" % sw, "s_cbranch_scc0 L_novote")
        a.wait_vm(tok_cal)
        a("s_sleep 1", "s_getreg_b32 s%d, hwreg(HW_REG_IB_STS, 0, 4)" % svote, "s_cmp_gt_u32 s%d, 8" % svote, "s_cselect_b32 s%d, 16, 0" % svote,
          "L_novote:", *rest[n:])

    def setup_a(self):
        a = self.a
        self.mk_srd(sXI, 4, "4096")
        self.lin(6, 7, (4, 2, 6), (2, 2, 10), (0, 2, 4))
        self.lin(5, 7, (5, 1, 10), (4, 1, 11), (0, 4, 1))
        a("s_lshl_b32 s100, s%d, 8" % sb, "s_lshl_b32 s101, s%d, 10" % sb, "s_lshl_b32 s%d, s%d, 5" % (stmp, sj),
          "buffer_load_dwordx4 %s, v6, %s, s100 offen" % (q(vX), srd(sXI)),
          "buffer_load_dwordx4 %s, v%d, %s, s101 offen" % (q(vX + 4), vA16, srd(sXI)),
          "buffer_load_ushort v%d, v5, %s, s%d offen" % (vRES, srd(sXI), stmp))
        self.sexpr(100, 0, (sj, 32768), (sg, 2048), (sw, 512))
        a("v_mov_b32 v12, v%d" % vA16)
        self.oob_unless(12, 13, "v_cmp_gt_u32 vcc, 32, v0")
        a("buffer_store_dwordx4 v[8:11], v12, %s, s100 offen sc1" % srd(sXW))
        self.tok_pro = a.mark()

    def setup_b(self):
        a = self.a
        self.mk_srd(sWF, sWS, "0")
        self.mk_srd(sWL, sWS, "0x%x" % WS_SIZE)
        G = (sg, 1 << 17)
        self.sexpr(sCS, 2 * LS, G)
        self.sexpr(sEst, OFF_E, G, (ss, 512), (sw, 128), (sb, 4))
        self.sexpr(sEld, OFF_E, G, (sb, 4096), (sw, 1024))
        self.sexpr(sMLld, OFF_ML, G, (sb, 1024))
        a("s_lshr_b32 s%d, s%d, 9" % (sMLst, su), "s_add_u32 s%d, s%d, s%d" % (sMLst, sMLst, sMLld),
          "s_mov_b32 s%d, 0" % slayer, "s_mov_b32 s%d, 0" % sspin, "s_mov_b32 s%d, -2" % scmp,
          "s_mov_b32 s%d, 0x3f80" % sLO, "s_mov_b32 s%d, 0x3f800000" % sHI,
          "s_and_b32 s100, s%d, 3" % ss, "s_cmp_eq_u32 s100, 3", "s_cselect_b32 s%d, 0, 1" % sact,
          "s_cmp_eq_u32 s%d, 3" % sb, "s_cselect_b32 s100, 0, 2", "s_or_b32 s%d, s%d, s100" % (sact, sact),
          "s_bitcmp1_b32 s%d, 0" % sg, "s_cselect_b32 s%d, s%d, 3" % (sact, sact))

    def setup_c(self):
        a = self.a
        G = (sg, 1 << 17)
        a("s_lshr_b32 s%d, s%d, 2" % (stmp, ss), "s_and_b32 s100, s%d, 3" % ss)
        self.sexpr(sAst, OFF_A, G, (sw, 8192), (stmp, 1024), (sb, 64), (100, 16))
        self.sexpr(sCst, OFF_C, G, (100, 4096), (stmp, 512), (sw, 128), (sb, 4))
        self.sexpr(sAld, OFF_A, G, (sb, 8192), (sw, 2048))
        self.sexpr(sCld, OFF_C, G, (sb, 4096), (sw, 1024))
        self.sexpr(sBst, 0, (su, 8), (sg, 512), (sb, 128))
        self.sexpr(sBld, 0, (sj, 32768))
        a("s_lshr_b32 s%d, s%d, 1" % (stmp, sj), "s_and_b32 s100, s%d, 1" % sj)
        self.sexpr(sXst, OFF_XB, G, (stmp, 256), (100, 32))
        self.sexpr(sXld, OFF_XB, G, (sb, 1024))
        self.sexpr(sRow, OFF_XB, G)
        a("s_mov_b32 s%d, 0xff00ff00" % sM1, "s_mov_b32 s%d, 0xff00ff00" % (sM1 + 1))
        self.lin(vTRV, 7, (2, 1, 12), (4, 2, 10), (3, 1, 8), (4, 1, 7), (2, 1, 6), (3, 1, 5), (0, 2, 3))
        a("v_add_u32 v%d, s%d, v%d" % (vTRV, sring, vTRV))

    def part_off(self, v, t, bs, cmp="0"):
        self.lin(v, t, (4, 2, bs), (0, 4, 3))
        self.even_only(v, t, cmp)

    def group_flag(self, k, val):
        a = self.a
        a("v_mov_b32 v14, %s" % val, "v_add_u32 v15, s%d, v0" % sw, "v_lshlrev_b32 v15, 24, v15")
        self.sexpr(100, 512 * k, (sg, 1 << 17), (sj, 16))
        self.st_intra("buffer_store_dword", "v14", 15, 100)

    def stream(self):
        a = self.a
        lag = self.lag
        t_dl, t_f1, t_l1, t_c1, t_f2, t_l2, t_c2 = self.sync
        wl = {}
        for kind, ts in (("q", self.tq), ("g", self.tg), ("o", self.to)):
            for k, T in enumerate(ts):
                wl.setdefault(T, []).append((kind, k))
        tqk = max(t_c2 + 2, 16 + lag)
        assert self.tq[-1] + 2 <= t_c1 and self.tg[-1] + 2 <= t_f2
        pvat = {}
        for p in range(5):
            pvat.setdefault(max(tqk + 3 + (p >> 1), 17 + 2 * p + lag), []).append(p)
        vF = 94
        G17 = "s_lshl_b32 s101, s%d, 17" % sg
        qk = None
        for T in range(1, 32):
            if T == 16:
                self.lin(5, 7, (4, 2, 8), (0, 4, 4))
                a("v_and_b32 v7, 16, v0", "v_lshlrev_b32 v7, 1, v7", "v_xor_b32 v5, v5, v7", "v_xor_b32 v6, 128, v5")
                self.mk_ai()
            between = None
            if T in (tqk + 1, tqk + 2):
                def between(jj):
                    a(*qk.pop(0))
            if T > 1:
                self.tile_issue(T, between)
            if T == 1:
                if self.ipf0:
                    a("s_getpc_b64 s[98:99]", "L_pc0:")
                    self.sexpr(100, 0, (sj, 512), (sw, 128))
                    a("s_min_u32 s100, s100, L_codeend-L_pc0-4", "v_mov_b32 v93, s100", "global_load_dword v93, v93, s[98:99]")
                self.leader_fill()
            for kind, k in wl.get(T, []):
                self.weight_load(kind, k, T, 52 if T < 20 else 18)
            if self.stamps is not True and T > 1:
                self.stamp("T%02d" % T)
            if T == 1:
                self.setup_a()
            if lag <= T < 26 + lag:
                self.tile_consume(T - lag)
            if T == 2:
                self.leader_flag(0, "L_nolead1", self.tok_lead)
            if T == t_dl:
                tok_f = self.flag_load(vF, 0, True)
            if T == t_f1:
                self.flag_check(vF, 0, True, tok_f, "L_f0")
                a("s_barrier", "s_getreg_b32 s%d, hwreg(HW_REG_XCC_ID, 0, 4)" % stmp, "s_or_b32 s%d, s%d, s%d" % (stmp, stmp, svote))
                self.group_flag(0, "s%d" % stmp)
                a("v_lshlrev_b32 v%d, 16, v%d" % (vRES, vRES))
                self.stats(vX + 4, 8, True)
            if T in (t_l1, t_l2):
                fld = self.ld(vF, vF + 1, 101, 0 if T == t_l1 else 512, n=1)
                a("v_and_b32 v%d, 0x1f0, v%d" % (vF + 1, vA16), G17)
                tok_f = a(fld)
            if T == t_c1:
                self.check_or_poll([fld], [[vF]], 7, "xcc", max(tok_f, self.wtok["q"]), [G17])
                a("s_barrier")
                self.w_tiles([("q", vWQ)], 5, 7)
                a("v_cmp_lt_u32 vcc, 15, v%d" % vF, "v_and_b32 v%d, 15, v%d" % (vF, vF),
                  "s_and_b32 s100, vcc_lo, 0x55555555", "s_and_b32 s101, vcc_lo, 0xaaaaaaaa",
                  "s_bcnt1_i32_b32 s100, s100", "s_bcnt1_i32_b32 s101, s101")
                if self.stamps:
                    a("v_writelane_b32 v4, s100, 28", "v_writelane_b32 v4, s101, 29")
                a("s_getreg_b32 s%d, hwreg(HW_REG_XCC_ID, 0, 4)" % svote, "s_sub_u32 s%d, s100, s101" % stmp, "s_sub_u32 s101, s101, s100",
                  "s_bitcmp1_b32 s%d, 2" % svote, "s_cselect_b32 s101, s101, s%d" % stmp, "s_add_u32 s101, s101, 64")
                self.leader_flag(32, "L_nolead2", val="s101")
                if not self.force_slow:
                    a("v_cmp_ne_u32 vcc, s%d, v%d" % (svote, vF), "s_cmp_eq_u64 vcc, 0",
                      "s_cselect_b32 s%d, 0x%x, 0" % (sWF + 2, WS_SIZE), "s_cselect_b32 s%d, 0, 0x%x" % (sWL + 2, WS_SIZE))
                self.part_off(6, 7, 12)
                a("s_lshr_b32 s%d, s%d, 1" % (stmp, ss), "s_and_b32 s%d, s%d, 1" % (sclr, ss))
                self.colsum_pub(vWQ, 12, 16, 10, 11, OFF_CSQ, (stmp, 2048), (sclr, 512))
                self.gemv4(vX, vWQ, vD)
                self.sentinels(20)
                self.gemv4_fin(8, vD)
                self.pack_pairs(9, 8)
                self.st_intra("buffer_store_dword", "v9", 6, sEst)
                self.fill_intra(24, 7, 20, LS + OFF_ML, 288)
                tok_q = a.mark()
                self.stamp("arrive")
            if T == t_f2:
                a.wait_vm(max(tok_q, self.wtok["g"]))
                a("s_barrier")
                self.group_flag(1, "1")
                self.w_tiles([("g", vWQ)], 5, 7)
                a("s_lshr_b32 s%d, s%d, 2" % (stmp, ss), "s_and_b32 s%d, s%d, 3" % (sclr, ss))
                self.colsum_pub(vWQ, 16, 20, 10, 11, OFF_CSG, (sclr, 2048), (stmp, 512))
            if T == t_c2:
                self.check_or_poll([fld], [[vF]], 7, "q1", tok_f, [G17])
                self.colsum_ld(28, OFF_CSQ, sw)
                tok_q = a(self.ld(24, vA16, sEld))
                self.next_region()
                self.stamp("barrier")
            if T == t_c2 + 1:
                self.s_zero()
                self.q_addrs(40, 42, 7)
            if T == tqk:
                a.wait_vm(tok_q)
                self.colsum_fin(28, 36)
                self.sum4_init(38, 36)
                self.sum4(24, 38, 38)
                self.q_assemble(38, 40, 42)
                ls, _ = schedule(self.lines(self.qk))
                qk = [ls[len(ls) * k // 4:len(ls) * (k + 1) // 4] for k in range(4)]
            if T == tqk + 1:
                self.ml_off(22, 23)
                self.sexpr(100, L_WD, (sw, 2048))
                self.lin(16, 23, (2, 2, 6), (4, 2, 4))
                a("v_add_u32 v16, s100, v16", "v_lshl_add_u32 v17, v0, 2, s100")
                self.lds_or_zero(16, 23, 3)
                ls, _ = schedule(self.lines(self.softmax, 17, 22))
                qk = [ls[len(ls) * k // 4:len(ls) * (k + 1) // 4] for k in range(4)]
            if T == tqk + 2:
                self.stamp("softmax1")
            for p in pvat.get(T, ()):
                self.p_read(ORDER.index(p), 16, p & 1)
                a("s_waitcnt lgkmcnt(0)")
                self.pv_dense(p, p & 1)
            if T == self.ipf:
                a("s_getpc_b64 s[98:99]", "L_pc:", "s_add_u32 s98, s98, L_tail-L_pc", "s_addc_u32 s99, s99, 0")
                self.sexpr(100, 0, (sj, 512), (sw, 128))
                a("s_min_u32 s100, s100, L_codeend-L_tail-4", "v_mov_b32 v80, s100", "global_load_dword v80, v80, s[98:99]")
            if T == 26:
                ml1 = [self.ld(64, vA16, sMLld)]
                a(*ml1)
                self.sexpr(100, OFF_A, (sg, 1 << 17), (sj, 1024), (sw, 256))
                a("v_lshlrev_b32 v68, 7, v0")
                self.oob_unless(68, 69, "v_cmp_gt_u32 vcc, 2, v0")
                a(self.ld(68, 68, 100, n=1))
                tok_warm = self.flag_load(70, 32, False)
            if T == self.tclr + 1:
                self.touch_addr(81, 82)
                tok_warm = a("buffer_load_dword v81, v81, %s, 0 offen sc1" % srd(sWS))
            if T == self.tclr:
                self.sentinels(72)
                self.fill_intra(76, 77, 72, OFF_C, 320)
                self.fill_intra(78, 77, 72, LS, 448)
        self.stamp("issued")
        self.flag_check(70, 32, False, tok_warm, "L_f1")
        for k in (1, 2, 4):
            self.dpp("v_add_u32", 70, 70, 70, "row_ror:%d" % k)
        a("v_readfirstlane_b32 s100, v70", "s_cmpk_ge_u32 s100, 512", "s_cselect_b32 s100, 0, 4", "s_xor_b32 s100, s100, s%d" % svote,
          "s_bitcmp1_b32 s100, 2", "s_cselect_b32 s100, %s" % {0: "0, 0", 1: "0x2000, 0", 2: "0, 0x2000"}[self.near],
          "s_add_u32 s%d, s%d, s100" % (sBld, sBld), "s_add_u32 s%d, s%d, s100" % (sB2, sBst), "s_xor_b32 s%d, s%d, 0x2000" % (sBst, sB2))
        self.check_or_poll(ml1, [range(64, 68)], 69, "ml1", tok_warm)
        self.ml_finish(64)
        a("s_mov_b32 s%d, 1" % slayer)
        a(*[x for x in self.lines(self.weight_load, "d", 0, None, 62) if x.startswith("s_")])
        for p in (5, 6, 7):
            self.p_read(ORDER.index(p), 16, p & 1)
            keep = len(a.l)
            self.tile_consume(17 + 2 * p)
            if p < 7:
                self.pv_dense(p, p & 1, lgkm=lambda i: 14 - 2 * i)
            else:
                pre = [i.text for i in a.l[keep:] if i.ds]
                self.sched(self.lines(self.pv_dense, p, p & 1) + self.lines(self.o_write, 8, 16), pre)
        self.n_after_o = min(a.mark() - self.wtok["o"], 60)
        self.stamp("pv1")

    def touch_addr(self, v, t):
        a = self.a
        self.sexpr(100, OFF_C, (sg, 1 << 17), (sj, 1280))
        a("v_lshl_add_u32 v%d, v0, 7, s100" % v)
        self.sexpr(100, LS - 2048, (sg, 1 << 17), (sj, 2048))
        a("v_lshl_add_u32 v%d, v0, 7, s100" % t, "v_cmp_gt_u32 vcc, 16, v0", "v_cndmask_b32 v%d, v%d, v%d, vcc" % (v, t, v),
          "s_mov_b32 vcc_lo, 0xffff03ff", "s_mov_b32 vcc_hi, 0", "s_cmp_eq_u32 s%d, 3" % sw, "s_cselect_b64 vcc, vcc, 0",
          "v_mov_b32 v%d, 0x%x" % (t, OOB), "v_cndmask_b32 v%d, v%d, v%d, vcc" % (v, t, v))

    def st_cross(self, v):
        a = self.a
        for so in (sBst, sB2) if self.near else (sB2,):
            a("buffer_store_dword v%d, v95, %s, s%d offen sc1" % (v, srd(sXW), so))

    def delay(self, name):
        n = (self.dly or {}).get(name, 0)
        if n:
            self.a("s_sleep %d" % n)

    def red_loads(self, x, soff):
        return [self.ld(x + 4 * i, vA16, soff, i * 1024, rs=sXW) for i in range(4)]

    def prep_split(self, name, work, n, loads):
        a = self.a
        while n < len(work) and work[n].startswith(("s_cselect", "s_addc", "s_cbranch")):
            n += 1
        a(*work[:n])
        a("s_cmp_eq_u32 s%d, 0" % sw, "s_cbranch_scc0 L_%s_n" % name)
        self.delay(name)
        a(*loads)
        a("L_%s_n:" % name, *work[n:])

    def reduce_x(self, name, x, d, soff):
        a = self.a
        self.poll(self.red_loads(x, soff), [range(x + 4 * i, x + 4 * i + 4) for i in range(4)], 7, name,
                  lambda i: self.mfma(d, q(x + 4 * i), q(vSEL), i > 0), issued=1)
        m = "s[%d:%d]" % (sM1, sM1 + 1)
        a("v_cndmask_b32 v%d, v%d, v%d, %s" % (d, d, d + 1, m), "v_cndmask_b32 v%d, v%d, v%d, %s" % (d + 2, d + 2, d + 3, m),
          "v_permlane32_swap_b32 v%d, v%d" % (d, d + 2), "v_add_f32 v%d, v%d, v%d" % (vRES, vRES, d),
          "v_add_f32 v%d, v%d, v%d" % (vRES, vRES, d + 2))
        self.pack_pairs(7, vRES)

    def x_off(self, v, t, bs):
        self.lin(v, t, (5, 1, bs), (4, 1, bs + 1), (0, 4, 1))
        self.even_only(v, t)

    def layer1(self, name):
        self.a("s_cmp_eq_u32 s%d, 1" % slayer, "s_cbranch_scc0 " + name)

    def chain(self):
        a = self.a
        a("L_tail:")
        self.lin(23, 6, (2, 4, 4), (1, 1, 10), (0, 1, 3))
        self.sexpr(sclr, L_SCR, (sw, 256))
        a("v_add_u32 v23, s%d, v23" % sclr, "s_waitcnt lgkmcnt(0)", "s_barrier")
        for src in range(4):
            a("ds_read_b64 %s, v23 offset:%d" % (q(8 + 2 * src, 2), src * 2048))
        self.lin(17, 16, (4, 2, 11), (2, 2, 8), (0, 2, 2))
        self.lin(56, 16, (2, 2, 9), (4, 2, 7), (2, 2, 5), (0, 2, 3))
        a("s_waitcnt lgkmcnt(2)", "v_add_f32 v8, v8, v10", "v_add_f32 v9, v9, v11",
          "s_waitcnt lgkmcnt(0)", "v_add_f32 v12, v12, v14", "v_add_f32 v13, v13, v15",
          "v_add_f32 v8, v8, v12", "v_add_f32 v9, v9, v13", "v_cvt_pk_bf16_f32 v7, v8, v9")
        self.st_intra("buffer_store_dword", "v7", 17, sAst)
        self.stamp("Apub", True)
        self.sexpr(100, L_WO, (sw, 4096))
        a("v_add_u32 v56, s100, v56")
        for t in range(1, 4):
            a("v_xor_b32 v%d, %d, v56" % (56 + t, t << 5))
        a("s_waitcnt vmcnt(%d)" % (1 + self.n_after_o))
        for t in range(4):
            for h in range(2):
                a("ds_read_b64_tr_b16 %s, v%d offset:%d" % (q(24 + 4 * t + 2 * h, 2), 56 + t, h * 2048))
        lda = [self.ld(8 + 4 * h, vA16, sAld, h * 1024) for h in range(2)]

        def prep_a():
            self.lin(5, 19, (4, 2, 11), (0, 4, 4))
            self.sexpr(100, L_SCR, (sw, 4))
            self.a("v_add_u32 v94, s100, v5", "v_add_u32 v5, s%d, v5" % sclr, "v_lshlrev_b32 v95, 1, v0")
            self.even_only(95, 19)
            self.a(*[x for x in self.lines(self.weight_load, "d", 0, None, 62) if x.startswith("v_")])
        n = self.with_loads("pollA", self.lines(prep_a), lda)
        a("s_waitcnt lgkmcnt(0)")

        def o_mfma(ts):
            for t in ts:
                self.mfma(40 + 4 * t, q(8), q(24 + 4 * t), False)
                self.mfma(40 + 4 * t, q(12), q(24 + 4 * t), True)
        self.poll(lda, [range(8, 12), range(12, 16)], 7, "pollA", lambda h: o_mfma([0]) if h else None, issued=n)

        def o_rest():
            o_mfma([1, 2, 3])
            for t in range(4):
                d = 40 + 4 * t
                self.a("v_add_f32 v%d, v%d, v%d" % (d, d, d + 1), "v_add_f32 v%d, v%d, v%d" % (d + 2, d + 2, d + 3),
                       "v_add_f32 v%d, v%d, v%d" % (20 + t, d, d + 2))
        ls = self.lines(o_rest)
        a(*ls[:3], ls[6], ls[7], ls[3], ls[8], ls[4], ls[5], *ls[9:])
        a("ds_write_b128 v5, v[20:23]")
        self.late_loads("L_l1b")
        a("s_waitcnt lgkmcnt(0)", "s_barrier",
          "ds_read2st64_b32 v[16:17], v94 offset0:0 offset1:1", "ds_read2st64_b32 v[18:19], v94 offset0:2 offset1:3",
          "s_waitcnt lgkmcnt(1)", "v_add_f32 v16, v16, v17", "s_waitcnt lgkmcnt(0)", "v_add_f32 v18, v18, v19", "v_add_f32 v16, v16, v18")
        self.pack_pairs(7, 16)
        self.st_cross(7)
        self.stamp("Bpub", True)
        if self.two("pollA"):
            a("s_waitcnt vmcnt(%d)" % (2 if self.near else 1))
        self.colsum_ld(80, OFF_CSG, sb)
        self.layer1("L_l1c")
        self.colsum_ld(24, OFF_CSQ, sw)
        self.sentinels(72)
        self.lin(76, 77, (3, 3, 12), (0, 3, 4))
        a("s_and_b32 s100, s%d, 0xffffdfff" % sBst, "s_add_u32 s100, s100, 0x4000")
        self.oob_unless(76, 77, "v_cmp_gt_u32 vcc, 32, v0")
        a("buffer_store_dwordx4 v[72:75], v76, %s, s100 offen sc1" % srd(sXW))
        a("L_l1c:")
        wt = self.lines(self.w_tiles, [("d", vWD)], 91, 7)

        def prep_b():
            a = self.a
            self.w_tiles([("g", vWG), ("q", vWQ)], 5, 7)
            a("v_and_b32 v5, 1, v0", "v_lshlrev_b32 v5, 4, v5", "v_lshlrev_b32 v5, v5, s%d" % sLO, "v_bfe_u32 v6, v0, 1, 2")
            for r in range(4):
                a("v_cmp_eq_u32 vcc, %d, v6" % r, "v_cndmask_b32 v%d, 0, v5, vcc" % (vSEL + r))
            self.x_off(94, 7, 6)
            self.lin(93, 7, (2, 4, 8), (0, 2, 4))
            a("s_bitcmp1_b32 s%d, 0" % sact, "s_cselect_b32 s%d, 0, -1" % stmp)
            self.part_off(92, 7, 10, "s%d" % stmp)
            self.lin(89, 7, (0, 5, 2), (5, 1, 1))
            self.sexpr(100, L_H, (sw, 128))
            a("v_add_u32 v89, s100, v89")
            self.lin(88, 7, (2, 2, 7), (0, 1, 6), (4, 2, 4))
            a("v_add_u32 v88, 0x%x, v88" % L_H)
            a(*[x for x in wt if not x.startswith("ds_")])
            self.sexpr(stmp, 0, (sRow, 1), (sw, 64))
            a("s_add_u32 s%d, s%d, 0x1000" % (sBst, sBst), "s_add_u32 s%d, s%d, 0x1000" % (sB2, sB2))
        self.prep_split("pollB", self.lines(prep_b), self.nB, self.red_loads(vX, sBld))
        aux = [self.ld(vX + 4, 93, stmp)]
        a("s_waitcnt lgkmcnt(0)", "s_cmp_eq_u32 s%d, 0" % sw, "s_cbranch_scc0 L_nored1")
        self.cold += ["L_nored1:"]
        if self.wb & 4:
            self.cold += ["s_lshl_b32 s100, s%d, 2" % sj, "s_add_u32 s100, s100, s%d" % sw, "s_lshl_b32 s100, s100, 2", "s_add_u32 s100, s100, s%d" % slayer,
                          "s_cmp_eq_u32 s100, 14", "s_cbranch_scc0 L_nowb4", "buffer_wbl2 sc1", "L_nowb4:"]
        self.cold += ["s_waitcnt vmcnt(0)", "s_branch L_red1"]
        self.reduce_x("pollB", vX, vD, sBld)
        self.st_intra("buffer_store_dword", "v7", 94, sXst)
        a("v_lshlrev_b32 v%d, 16, v7" % vRES)
        self.stamp("XBpub", True)
        a("L_red1:", "s_barrier")
        ldx = [self.ld(vX, vA16, sXld)]
        n = self.with_loads("pollXB", self.lines(self.colsum_fin, 24, vCQ) + [x for x in wt if x.startswith("ds_")]
                            + self.lines(self.colsum_fin, 80, vCG), ldx)
        self.poll(ldx, [range(vX, vX + 4)], 7, "pollXB", lambda i: self.gemv4(vX, vWG, vD), issued=n, then=aux)
        self.gemv4_fin(7, vD)
        self.pack_pairs(6, 7)
        self.st_intra("buffer_store_dword", "v6", 92, sCst)
        self.stamp("Cpub", True)
        a("v_mov_b32 v5, 0", "s_bitcmp1_b32 s%d, 1" % sact, "s_cbranch_scc0 L_nod")
        ldc = [self.ld(vX, vA16, sCld)]
        self.check_or_poll(aux, [range(vX + 4, vX + 8)], 7, "auxB", a.mark() - 1)
        n = self.with_loads("pollC", self.lines(self.stats, vX + 4, vD, False) + self.lines(self.sum4_init, vD + 2, vCG), ldc)
        self.poll(ldc, [range(vX, vX + 4)], 7, "pollC", lambda i: self.sum4(vX, vD, vD + 2), issued=n)
        a("v_permlane32_swap_b32 v%d, v%d" % (vD, vD + 1), "v_mul_f32 v%d, s%d, v%d" % (vD, sSC, vD),
          "v_mul_f32 v%d, v%d, v%d" % (vD, vD, vD + 1), "v_cvt_pk_bf16_f32 v%d, v%d, v%d" % (vD, vD, vD),
          "ds_write_b16 v89, v%d" % vD, "s_waitcnt lgkmcnt(0)", "s_barrier", "ds_read_b128 %s, v88" % q(vX + 4), "s_waitcnt lgkmcnt(0)")
        for kb in range(2):
            self.mfma(vD + 4 * kb, q(vX + 4), q(vWD + 4 * kb), False)
        a("v_add_f32 v7, v%d, v%d" % (vD, vD + 5))
        self.pack_pairs(5, 7)
        a("L_nod:")
        self.st_cross(5)
        self.stamp("Dpub", True)
        a("s_add_u32 s%d, s%d, 0x1000" % (stmp, sBld))
        self.layer1("L_last")
        a("s_waitcnt vmcnt(%d) lgkmcnt(0)" % (2 if self.near else 1))

        def prep_d():
            a = self.a
            a("v_mov_b32 v28, v94", "v_mov_b32 v30, v93", "s_add_u32 s%d, s%d, 0x3000" % (sBst, sBst),
              "s_add_u32 s%d, s%d, 0x3000" % (sB2, sB2), "s_add_u32 s%d, s%d, 0x4000" % (sBld, sBld))
            self.mk_ai()
            self.s_zero()
            self.part_off(29, 7, 12)
            self.q_addrs(31, 48, 7)
            self.lin(5, 7, (2, 2, 6), (5, 1, 8), (4, 1, 5), (0, 1, 4))
            self.sexpr(100, L_WQ, (sw, QSTR))
            a("v_add_u32 v5, s100, v5")
            self.lds_or_zero(5, 7, 2)
            self.ml_off(6, 7)
            self.sexpr(98, OFF_XD - OFF_XB, (sRow, 1), (sb, 64))
            a("s_add_u32 s%d, s%d, 0x%x" % (sclr, sXst, OFF_XD - OFF_XB), "s_add_u32 s99, s%d, 0x%x" % (sXld, OFF_XD - OFF_XB))
        self.prep_split("pollD", self.lines(prep_d), self.nD, self.red_loads(8, stmp))
        a("s_waitcnt lgkmcnt(0)", "s_cmp_eq_u32 s%d, 0" % sw, "s_cbranch_scc0 L_nored2", "L_redd:")
        self.reduce_x("pollD", 8, 24, stmp)
        a("s_cmp_eq_u32 s%d, 2" % slayer, "s_cbranch_scc1 L_out")
        self.st_intra("buffer_store_dword", "v7", 28, sclr)
        a("v_lshlrev_b32 v%d, 16, v7" % vRES)
        self.stamp("XDpub")
        a("L_nored2:", "s_barrier")
        self.delay("pollXD")
        row = [self.ld(24, 30, 98)]
        self.poll([self.ld(52, vA16, 99)], [range(52, 56)], 7, "pollXD", lambda i: self.gemv4(52, vWQ, 8), then=row)
        self.gemv4_fin(7, 8)
        self.pack_pairs(9, 7)
        self.st_intra("buffer_store_dword", "v9", 29, sEst)
        self.stamp("Epub")
        lde = [self.ld(52, vA16, sEld)]
        self.check_or_poll(row, [range(24, 28)], 7, "rowD", a.mark() - 1)
        n = self.with_loads("pollE", self.lines(self.stats, 24, 32, True) + self.lines(self.sum4_init, 34, vCQ), lde)
        self.poll(lde, [range(52, 56)], 7, "pollE", lambda i: self.sum4(52, 32, 34), issued=n)
        self.stamp("Eget")
        rd = self.q_assemble(32, 31, 48, self.lines(self.next_region) + ["s_mov_b32 s%d, 2" % slayer])
        for i in range(7):
            a("v_mov_b64 %s, 0" % q(vO + 4 * i, 2))
        if self.stamps is not True:
            self.stamp("qrdy")
        ldm = [self.ld(16, vA16, sMLld)]

        def att():
            a = self.a
            self.qk()
            a("s_waitcnt vmcnt(0) ; guards=v[52:55] after=v%d" % (vS + 20))
            a("v_subrev_u32 v23, 0x%x, v31" % (L_Q - L_WQ))
            a("v_mov_b64 %s, 0" % q(vO + 28, 2))
            self.softmax(23, 6)
            for d in self.mlat:
                a(ldm[0] + " ; lat=%d tail=%d" % (d, self.mltail))
            for h in range(2):
                self.v_reads(5 + h, lambda i, e: q(8 * i + 4 * h + 2 * e, 2, "a"))
            self.v_reads(7)
            for n in range(4):
                self.p_read(2 * n, 5, n & 1)
                for i in range(8):
                    B = q(128 + 64 * n + 8 * i, 8) if n < 2 else q(8 * i, 8, "a") if n == 2 else "vp[%d]" % i
                    self.smf(vO + 4 * i, q(vQ + 4 * (n & 1)), B)
            for i in range(8):
                a("v_add_f32 v%d, v%d, v%d" % (vO + 4 * i, vO + 4 * i, vO + 4 * i + 1))
        ls = [x + " prio=%d" % self.p0 if x.endswith("mem=p0") else x for x in self.lines(att)]
        cut = len(ls) - 8 - self.mlcut
        out, t1 = schedule(ls[:cut], rd)
        if self.wb & 2:
            k = out.index("s_waitcnt vmcnt(0)") + 1
            out[k:k] = ["s_cmp_eq_u32 s%d, 0" % slead, "s_cbranch_scc0 L_nowb2", "buffer_wbl2 sc1", "L_nowb2:"]
        if self.stamps and self.stamps is not True:
            k = max(i for i, x in enumerate(out) if x.startswith("buffer_store")) + 1
            out[k:k] = self.lines(self.stamp, "mlpub")
            k = min(i for i, x in enumerate(out) if x.startswith("v_pk_fma"))
            out[k:k] = self.lines(self.stamp, "maxed")
        a(*out)
        a("s_waitcnt lgkmcnt(0)")
        if self.stamps is not True:
            self.stamp("pv2a")
        L = a.lab("ml2")
        a(L + "_w:")
        self.check([range(16, 20)], 6, len(self.mlat))
        a("s_cbranch_vccnz " + L)
        if self.stamps is not True:
            self.stamp("mlget")
        fin = self.lines(self.ml_finish, 16)
        fin = ["v_sub_f32 v8, v16, v20", "v_sub_f32 v9, v18, v20", "v_exp_f32 v8, v8", "v_exp_f32 v9, v9",
               "v_mul_f32 v7, v8, v17", "v_fmac_f32 v7, v9, v19"] + fin[6:]
        t2 = self.sched([x + " ; prio=200" for x in fin] + ls[cut:] + self.lines(self.o_write, 8, 60))
        a("s_waitcnt vmcnt(0)")
        self.est = (t1, t2)
        self.stamp("pv2")
        a("s_branch L_tail", L + ":", *ldm)
        a(*self.spin_count())
        a("s_branch %s_w" % L)
        a("L_last:", "s_lshr_b32 s100, s%d, 2" % sj, "s_xor_b32 s100, s100, s%d" % sg, "s_or_b32 s100, s100, s%d" % sw,
          "s_cmp_eq_u32 s100, 0", "s_cbranch_scc0 %s" % ("L_wb" if self.wb & 1 else "L_fin"))
        if self.wb & 1:
            self.cold += ["L_wb:", "s_cmp_eq_u32 s%d, 0" % slead, "s_cbranch_scc0 L_fin", "buffer_wbl2 sc1", "s_branch L_fin"]
        self.x_off(6, 7, 10)
        self.delay("last")
        a(*self.red_loads(8, stmp))
        a("s_branch L_redd")
        a("L_out:", "s_lshl_b32 s100, s%d, 5" % sj, "buffer_store_dword v7, v6, %s, s100 offen %s" % (srd(sOUT), self.outpol))
        if self.probe:
            self.stamp("out")
            k = self.stamp_names.index(self.probe)
            a("v_readlane_b32 s100, v4, %d" % k, "v_readlane_b32 s101, v4, 0", "s_sub_u32 s100, s100, s101", "s_lshl_b32 s100, s100, 2",
              "s_min_u32 s100, s100, 100000", "s_memrealtime s[0:1]", "s_waitcnt lgkmcnt(0)", "s_mov_b32 s101, s0",
              "L_probe:", "s_memrealtime s[0:1]", "s_waitcnt lgkmcnt(0)", "s_sub_u32 s0, s0, s101", "s_cmp_lt_u32 s0, s100",
              "s_cbranch_scc1 L_probe")
        a("L_fin:")
        if self.stamps and not self.probe:
            self.stamp("end")
            a("s_lshl_b32 s100, s2, 2", "s_add_u32 s100, s100, s%d" % sw, "s_lshl_b32 s100, s100, 7",
              "s_add_u32 s100, s100, 0x%x" % (STAMP_OFF - 2 * LS), "s_mov_b32 s%d, 0x1000000" % (sWS + 2),
              "v_writelane_b32 v4, s%d, 30" % sspin, "v_writelane_b32 v4, s%d, 31" % (sWF + 2),
              "v_lshlrev_b32 v9, 2, v0", "v_cmp_gt_u32 vcc, 32, v0", "s_and_saveexec_b64 s[98:99], vcc",
              "buffer_store_dword v4, v9, %s, s100 offen sc1" % srd(sWS))
            if self.dbgstamps:
                a("v_readlane_b32 s100, v4, 0", "s_not_b32 s100, s100", "v_writelane_b32 v4, s100, 15",
                  "v_cmp_gt_u32 vcc, 16, v0", "s_and_saveexec_b64 s[98:99], vcc",
                  "buffer_atomic_umax v4, v9, %s, 0 offen sc1" % srd(sDBG))
        a("L_end:", "s_endpgm")
        a(*self.cold)
        a("L_codeend:")

    def build(self):
        self.prologue()
        self.stream()
        self.chain()
        self.a.pad()
        if self.win:
            self.est += align(self.a, self.win)
        head = open("cdna_kernels/" + KNAME[:-7] + ".s.ref").read().split("; Override launch")[0]
        return (head + "; @launch grid=(256,1,1) block=(256,1,1) lds=163840\n"
                '.amdgcn_target "amdgcn-amd-amdhsa--gfx950"\n.text\n.globl %s\n.p2align 8\n.type %s,@function\n%s:\n' % (KNAME, KNAME, KNAME)
                + self.a.text() +
                '.section .rodata,"a"\n.p2align 6\n.amdhsa_kernel %s\n  .amdhsa_next_free_vgpr 512\n  .amdhsa_next_free_sgpr 102\n'
                "  .amdhsa_accum_offset 256\n  .amdhsa_group_segment_fixed_size 0\n  .amdhsa_kernarg_size 96\n"
                "  .amdhsa_user_sgpr_count 2\n  .amdhsa_user_sgpr_kernarg_segment_ptr 1\n  .amdhsa_system_sgpr_workgroup_id_x 1\n"
                ".end_amdhsa_kernel\n" % KNAME)


if __name__ == "__main__":
    out = sys.argv[1]
    kw = eval("dict(%s)" % (sys.argv[2] if len(sys.argv) > 2 else ""))
    g = Gen(**kw)
    s = g.build()
    open(out, "w").write(s)
    if len(sys.argv) > 3:
        print("estimated attention cycles", g.est)
    if g.stamps:
        open(out[:-2] + ".names", "w").write("\n".join(g.stamp_names))
```

```python
import re

REG = re.compile(r"^(-?)(?:abs\()?([vas])(?:(\d+)|\[(\d+):(\d+)\])\)?$")
TRANS = ("v_exp_f32", "v_log_f32", "v_rcp_f32", "v_rsq_f32", "v_sqrt_f32", "v_sin_f32", "v_cos_f32")


def regs(tok):
    tok = tok.strip()
    if tok == "vcc":
        return {("s", "vcc")}
    if tok == "exec":
        return {("s", "exec")}
    if tok == "m0":
        return {("s", "m0")}
    m = re.match(r"^vp\[(\d+)\]$", tok)
    if m:
        i = int(m.group(1))
        return {("v", b + 4 * i + r) for b in (64, 96) for r in range(4)}
    m = REG.match(tok)
    if not m:
        return set()
    k = m.group(2)
    if m.group(3) is not None:
        return {(k, int(m.group(3)))}
    return {(k, i) for i in range(int(m.group(4)), int(m.group(5)) + 1)}


class Ins:
    def __init__(self, text):
        self.text = text
        t = text.split(";")[0].strip()
        self.label = t[:-1] if t.endswith(":") else None
        self.op = "" if self.label or t.startswith(".") else t.split()[0]
        self.directive = t.startswith(".")
        rest = t[len(self.op):].strip() if self.op else ""
        parts = [p.strip() for p in rest.split(",")] if rest else []
        mods = ""
        if "quad_perm" in rest or "op_sel" in rest:
            i = rest.index("quad_perm" if "quad_perm" in rest else "op_sel")
            mods = rest[i:]
            parts = [p.strip() for p in rest[:i].split(",")]
        ops = []
        for p in parts:
            w = p.split()
            if w:
                ops.append(w[0])
                mods += " " + " ".join(w[1:])
        self.ops, self.mods = ops, mods
        op = self.op
        self.mfma = op.startswith("v_mfma") or op.startswith("v_smfmac")
        self.valu = op.startswith("v_") and not self.mfma
        self.ds = op.startswith("ds_")
        self.vmem = op.startswith("buffer_") or op.startswith("global_")
        self.salu = op.startswith("s_")
        self.dpp = "_dpp" in op or any(k in mods for k in ("quad_perm", "row_", "wave_"))
        self.trans = op.replace("_e32", "").replace("_e64", "") in TRANS
        self.dot = op.startswith("v_dot")
        self.perm = op.startswith("v_permlane")
        self.branch = op.startswith("s_cbranch") or op == "s_branch"
        self.target = ops[0] if self.branch else None
        self.ends = op in ("s_branch", "s_endpgm", "s_setpc_b64")
        self.w, self.r = set(), set()
        self.srcc, self.ab, self.stdata = set(), set(), set()
        R = [regs(o) for o in ops]
        if self.mfma:
            self.w = R[0]
            self.ab = R[1] | R[2]
            if op.startswith("v_smfmac"):
                self.srcc = R[0]
                self.ab |= R[3]
            else:
                self.srcc = R[3]
            self.r = self.ab | self.srcc
            self.passes = 8 if "32x32" in op else 4
        elif self.valu:
            self.w = set(R[0])
            self.r = set().union(*R[1:]) if len(R) > 1 else set()
            if self.perm:
                self.w = R[0] | R[1]
                self.r = R[0] | R[1]
            if op.startswith(("v_fmac", "v_dot2c", "v_writelane")) or self.dpp:
                self.r |= R[0]
            if op.startswith("v_cndmask") and len(ops) == 3:
                self.r |= {("s", "vcc")}
        elif self.ds:
            if op.startswith("ds_read") or "bpermute" in op or "swizzle" in op:
                self.w = R[0]
                self.r = set().union(*R[1:])
            else:
                self.r = set().union(*R)
        elif self.vmem:
            lds = " lds" in (" " + mods) or "_lds_" in op
            self.ldsdma = lds
            if lds:
                self.r = set().union(*R) | {("s", "m0")}
            elif "load" in op:
                self.w = R[0]
                self.r = set().union(*R[1:])
            elif op.startswith("buffer_"):
                if R:
                    self.r = set().union(*R)
                    if "x4" in op or "x3" in op:
                        self.stdata = R[0]
                    if "atomic" in op and "sc0" in mods:
                        self.w = R[0]
            else:
                self.r = set().union(*R) if R else set()
        elif self.salu and ops and not self.branch and not op.startswith(("s_cmp", "s_waitcnt", "s_nop", "s_sleep", "s_setprio", "s_bitcmp")):
            self.w = set(R[0])
            self.r = set().union(*R[1:]) if len(R) > 1 else set()
            if "saveexec" in op:
                self.w |= {("s", "exec")}
        elif self.salu:
            self.r = set().union(*R) if R else set()

    def states(self):
        if self.label or self.directive or not self.op:
            return 0
        if self.op == "s_nop":
            return int(self.ops[0], 0) + 1
        return 1


def vec(s):
    return {x for x in s if x[0] in "va"}


def sca(s):
    return {x for x in s if x[0] == "s"}


def need(p, c):
    n = 0
    if p.valu:
        pw = vec(p.w)
        if c.mfma and pw & c.r:
            n = max(n, 3 if p.dot else 2)
        if c.valu and c.dpp and pw & c.r:
            n = max(n, 2)
        if c.perm and pw & c.r:
            n = max(n, 2)
        if c.op.startswith(("v_readlane", "v_readfirstlane")) and pw & c.r:
            n = max(n, 1)
        if p.trans and c.valu and not c.trans and pw & c.r:
            n = max(n, 1)
        if p.trans and (c.ds or c.vmem) and pw & c.r:
            n = max(n, 1)
        if p.dot and pw & (c.r | c.w):
            same_chain = c.op == p.op and len(c.ops) == 4 and not (pw & (regs(c.ops[1]) | regs(c.ops[2])))
            if not same_chain:
                n = max(n, 3)
        if "sdwa" in p.op and c.valu and pw & (c.r | c.w):
            n = max(n, 1)
        ps = sca(p.w)
        if ps & c.r:
            if c.vmem:
                n = max(n, 5)
            elif c.op.startswith(("v_readlane", "v_writelane")):
                n = max(n, 4)
            elif c.valu:
                n = max(n, 2)
            elif c.salu:
                n = max(n, 1)
    if p.mfma:
        t = {4: (6, 8, 3), 8: (10, 12, 7)}[p.passes]
        if c.mfma:
            if p.w & c.ab:
                n = max(n, t[1])
            if p.w & c.srcc and (p.w != c.srcc or p.passes != c.passes):
                n = max(n, t[0])
            if p.w & c.w and not (p.w & c.srcc):
                n = max(n, t[0])
        elif (c.valu or c.ds or c.vmem) and p.w & (c.r | c.w):
            n = max(n, t[1])
        if c.valu and p.srcc & c.w:
            n = max(n, t[2])
    if p.vmem and p.stdata and p.stdata & c.w:
        n = max(n, 2 if c.valu or c.mfma else 1)
    if p.ds and p.op.startswith("ds_write") and ("b128" in p.op or "b96" in p.op) and c.valu and vec(p.r) & c.w:
        n = max(n, 2)
    if p.salu and ("s", "m0") in p.w and ("s", "m0") in c.r and (c.vmem or c.ds or c.valu):
        n = max(n, 1)
    return n


def physical(text):
    def ph(r):
        if 64 <= r < 128:
            return 64 + 8 * (((r - 64) & 31) >> 2) + (4 if r >= 96 else 0) + (r & 3)
        return r

    def one(m):
        if m.group(1):
            return "v%d" % ph(int(m.group(1)))
        a, b = int(m.group(2)), int(m.group(3))
        assert ph(b) - ph(a) == b - a, text
        return "v[%d:%d]" % (ph(a), ph(b))
    text = re.sub(r"\bv(?:(\d+)\b|\[(\d+):(\d+)\])", one, text)
    return re.sub(r"\bvp\[(\d+)\]", lambda m: "v[%d:%d]" % (64 + 8 * int(m.group(1)), 71 + 8 * int(m.group(1))), text)


class Asm:
    def __init__(self):
        self.l = []
        self.vm = 0
        self.nlab = 0

    def __call__(self, *lines):
        for s in lines:
            for t in s.split("\n"):
                t = t.strip()
                if not t:
                    continue
                i = Ins(t)
                self.l.append(i)
                if i.vmem and i.op not in ("buffer_inv", "buffer_wbl2"):
                    self.vm += 1
        return self.vm

    def mark(self):
        return self.vm

    def wait_vm(self, token, lgkm=None):
        n = min(self.vm - token, 63)
        self("s_waitcnt vmcnt(%d)%s" % (n, "" if lgkm is None else " lgkmcnt(%d)" % lgkm))

    def uncounted(self, token):
        self.vm = token

    def lab(self, name):
        self.nlab += 1
        return "L_%s_%d" % (name, self.nlab)

    def pad(self):
        changed = True
        total = 0
        while changed:
            changed = False
            L = self.l
            src = {}
            for k, i in enumerate(L):
                if i.branch:
                    src.setdefault(i.target, []).append(k)
            for k, c in enumerate(L):
                if not c.op or c.op in ("s_nop", "s_waitcnt", "s_barrier"):
                    continue
                worst = 0
                stack = [(k - 1, 0, True)]
                seen = set()
                while stack:
                    j, dist, fall = stack.pop()
                    while j >= 0 and dist < 13:
                        p = L[j]
                        if (j, dist) in seen:
                            break
                        seen.add((j, dist))
                        if p.label:
                            for b in src.get(p.label, []):
                                stack.append((b, dist, False))
                        elif p.ends and fall:
                            break
                        elif p.op:
                            worst = max(worst, need(p, c) - dist)
                            dist += p.states()
                        fall = True
                        j -= 1
                if worst > 0:
                    L.insert(k, Ins("s_nop %d" % (worst - 1)))
                    total += worst
                    changed = True
                    break
        return total

    def text(self):
        return "\n".join((i.text if i.label else "    " + physical(i.text)) for i in self.l) + "\n"


def schedule(lines, pre=()):
    ins = [Ins(t) for t in lines]
    n = len(ins)
    for i in ins:
        m = re.search(r"guards=(\S+)", i.text)
        if m:
            i.w = i.w | regs(m.group(1))
            i.r = i.r | regs(m.group(1))
        m = re.search(r"after=(\S+)", i.text)
        if m:
            i.r = i.r | regs(m.group(1))
        if i.op.startswith("s_") and not i.op.startswith(("s_mov", "s_waitcnt", "s_nop")):
            i.w = i.w | {("s", "scc")}
            if i.op.startswith(("s_addc", "s_cselect", "s_subb")):
                i.r = i.r | {("s", "scc")}
        for o in i.ops[:1]:
            if o in ("vcc_lo", "vcc_hi"):
                i.w = i.w | {("s", "vcc")}
                i.r = i.r | {("s", "vcc")}
        m = re.search(r"prio=(-?\d+)", i.text)
        i.bias = int(m.group(1)) if m else 0
        m = re.search(r"lat=(\d+)", i.text)
        i.minlat = int(m.group(1)) if m else 0
        m = re.search(r"tail=(\d+)", i.text)
        i.tail = int(m.group(1)) if m else 0
        m = re.search(r"mem=(\w+)", i.text)
        i.tag = m.group(1) if m else ""
        i.cost = 8 if i.trans else 4
        i.vblock = 12 if i.op.startswith('v_smfmac') else 8
    pred = [[] for _ in range(n)]
    for b in range(n):
        B = ins[b]
        for a in range(b):
            A = ins[a]
            lat = None
            if A.w & B.r:
                lat = 80 if A.ds else 300 if A.vmem else A.cost
                if A.mfma:
                    lat = 16 if B.mfma and A.w == B.srcc and not (A.w & B.ab) else 40
            elif A.w & B.w:
                lat = 100 if A.ds else 40 if A.mfma else A.cost
            elif A.r & B.w:
                lat = 20 if A.mfma and B.ds else A.cost
            elif A.ds and B.ds and A.tag != B.tag:
                pass
            elif A.ds and B.ds and not A.w and B.w:
                lat = 8
            elif (A.ds and B.ds) or ((A.vmem or A.op == "s_waitcnt") and (B.vmem or B.op == "s_waitcnt")):
                lat = A.cost
            if lat is not None:
                if A.vmem and B.vmem:
                    lat = max(lat, B.minlat)
                pred[b].append((a, lat))
    succ = [[] for _ in range(n)]
    for b in range(n):
        for a, lat in pred[b]:
            succ[a].append((b, lat))
    mf = [k for k in range(n) if ins[k].mfma]
    nxt = dict(zip(mf, mf[1:]))
    crit = [0] * n
    for a in range(n - 1, -1, -1):
        crit[a] = max([lat + crit[b] for b, lat in succ[a]] + [ins[a].cost, ins[a].tail] + ([16 + crit[nxt[a]]] if a in nxt else []))
    done, out, t = {}, [], 0
    pipe = vfree = mfree = lds = 0
    left = set(range(n))

    def short(c):
        dist, worst = 0, 0
        for p in reversed(out[-13:]):
            worst = max(worst, need(ins[p], ins[c]) - dist)
            dist += 1
        return worst

    def pipe_op(i):
        return i.dot or i.op.startswith("v_pk_")

    while left:
        ready = [k for k in left if all(a in done for a, _ in pred[k]) and not (ins[k].mfma and any(m in left for m in mf if m < k))]

        def start(k):
            i = ins[k]
            s = max([t] + [done[a] + lat for a, lat in pred[k]])
            if i.mfma or pipe_op(i):
                s = max(s, pipe)
            if i.valu or i.mfma:
                s = max(s, vfree)
            if i.ds or i.vmem:
                s = max(s, mfree)
            if i.ds:
                s = max(s, lds)
            return max(s, t + 4 * short(k))
        st = {k: start(k) for k in ready}
        pr = {k: crit[k] + ins[k].bias for k in ready}
        m = [k for k in ready if ins[k].mfma]
        top = max(ready, key=lambda k: pr[k] - st[k])
        lead = m[0] if m and pr[m[0]] + 8 >= pr[top] else top
        fit = [k for k in ready if k != lead and st[k] + ins[k].cost <= st[lead]
               and not (ins[k].valu and (ins[lead].ds or ins[lead].vmem) and st[k] + ins[k].cost + 8 > st[lead])
               and not (ins[k].mfma and ins[lead].valu and st[k] + (16 if pipe_op(ins[lead]) else ins[k].vblock - 8) > st[lead])]
        k = min(fit, key=lambda k: (st[k], -pr[k])) if fit else lead
        i = ins[k]
        t = st[k]
        done[k] = t
        if i.mfma:
            pipe, vfree = t + 16, t + i.vblock
        elif i.valu:
            vfree, mfree = t + i.cost, t + i.cost + 8
        if i.ds:
            lds = t + (24 if "write2" in i.op else 52 if "write_b128" in i.op else 16 if "b128" in i.op else 8)
        t += i.cost
        out.append(k)
        left.discard(k)
    res, pend = [], [(set(Ins(p).w), 0) for p in pre]
    for k in out:
        i = ins[k]
        hit = [p for p, (w, _) in enumerate(pend) if w & (i.r | i.w)]
        if hit:
            old = [p for p, (_, ti) in enumerate(pend) if done[k] - ti >= 140]
            pend = pend[max(hit + old) + 1:]
            res.append("s_waitcnt lgkmcnt(%d)" % min(len(pend), 15))
        res.append(i.text.split(";")[0].rstrip())
        if i.ds:
            pend.append((set(i.w), done[k]))
    return res, t


def align(asm, window=32, start=None, nop_cost=1.0):
    import os
    import subprocess
    import tempfile
    llvm = "bin/"
    with tempfile.TemporaryDirectory() as d:
        open(d + "/a.s", "w").write('.amdgcn_target "amdgcn-amd-amdhsa--gfx950"\n.text\n' + asm.text())
        subprocess.run([llvm + "clang", "-x", "assembler", "-target", "amdgcn-amd-amdhsa", "-mcpu=gfx950", "-c", d + "/a.s", "-o", d + "/a.o"], check=True)
        out = subprocess.run([llvm + "llvm-objdump", "-d", "--mcpu=gfx950", d + "/a.o"], capture_output=True, text=True, check=True).stdout
    sizes = [4 * len(m.group(1).split()) for m in re.finditer(r"// [0-9A-F]{12}: ((?:[0-9A-F]{8} ?)+)", out)]
    ins = [i for i in asm.l if i.op]
    assert len(ins) == len(sizes), (len(ins), len(sizes))
    n = window // 4
    INF = 1e18
    cost = [0.0] + [INF] * (n - 1)
    back = []
    first = sum(1 for i in asm.l[:[x.label for x in asm.l].index(start)] if i.op) if start else 0
    for pos, (i, sz) in enumerate(zip(ins, sizes)):
        wide = sz == 4 and i.valu and not i.op.startswith(("v_readfirstlane", "v_permlane", "v_nop"))
        new, arg = [INF] * n, [None] * n
        for o in range(n):
            if cost[o] >= INF:
                continue
            for ch, pre, s_, extra in (("", 0, sz, 0.0), ("w", 0, 8, 0.01), ("n", 1, sz, nop_cost)):
                if (ch == "w" and not wide) or (ch and pos < first):
                    continue
                st = (o + pre) % n
                c = cost[o] + extra + (1.0 if st + s_ // 4 > n else 0.0)
                e = (st + s_ // 4) % n
                if c < new[e]:
                    new[e], arg[e] = c, (o, ch)
        cost = new
        back.append(arg)
    o = min(range(n), key=lambda k: cost[k])
    total = cost[o]
    choice = []
    for arg in reversed(back):
        o, ch = arg[o]
        choice.append(ch)
    choice.reverse()
    res, k = [], 0
    for i in asm.l:
        if i.op:
            if choice[k] == "n":
                res.append(Ins("s_nop 0"))
            if choice[k] == "w":
                i = Ins(i.text.replace(i.op, i.op + "_e64", 1))
            k += 1
        res.append(i)
    asm.l = res
    return total, choice.count("w"), choice.count("n")
```

```python
import struct
import sys
from asmlib import Asm, align, schedule

KNAME = "interleave_layers__gqa_block_cached__glu_gated_bilinear__decode_kernel"

LS = 1 << 20
OFF_ML, OFF_A, OFF_C, OFF_XB, OFF_XD, OFF_E = 0, 4 << 10, 36 << 10, 52 << 10, 56 << 10, 60 << 10
OFF_CSG, OFF_CSQ = 56 << 10, 64 << 10
WS_SIZE = 3 * LS
OFF_XW = 5 << 20
STAMP_OFF = 8 << 20
OOB = 0x7FFF0000

RING = 24576
L_WQ = 4 * RING
L_WO = L_WQ + 16384
L_WG = L_WO + 16384
L_WD = L_WG + 16384
L_SCR = L_WD + 8192
L_H = L_SCR + 1024
L_Q, QSTR = L_SCR + 1536, 2112
L_OOB = 0x30000
assert L_SCR + 8192 == 163840

sK, sV, sWS, sWF, sWL, sOUT, sDBG, sXI, sT = 28, 32, 36, 40, 44, 48, 52, 56, 96
sw, sg, sj, sb, ss, su, sring, srot, stmp, slayer = range(60, 70)
(sMLst, sMLld, sAst, sAld, sBst, sBld, sXst, sXld, sCst, sCld, sCS, sS1, sSC, sRow, sEst, sEld) = range(70, 86)
sWo, sWl = 86, 87
sM1 = 88
sspin, scmp = 94, 95
sclr, slead, sact = 3, 14, 15
sLO, sHI = 6, 7
sXW, sB2, svote = 24, 23, 22
searly = 10
sWo2, sWl2 = 8, 9
SPIN_LIMIT = 1 << 18

vL, vA16, vTRV, vRES = 0, 1, 2, 3
vQ, vO, vIX, vAI, vS = 8, 24, 56, 56, 64
vWG, vWD, vWQ, vCG, vCQ, vSEL, vX, vD = 8, 24, 32, 48, 50, 52, 56, 72
vKS, vKR = 240, 244
ORDER = [0, 1, 2, 3, 5, 6, 7, 4]
SLOT = {5: 2, 6: 4, 7: 0}
SCALE = 128 ** -0.5 * 1.4426950408889634
ONES = "0x3f803f80"


def f32(x):
    return "0x%08x" % struct.unpack("<I", struct.pack("<f", x))[0]


def q(r, n=4, k="v"):
    return "%s[%d:%d]" % (k, r, r + n - 1)


def srd(r):
    return "s[%d:%d]" % (r, r + 3)


class Gen:
    def __init__(self, depth=6, burst=4, rotg=1, stamps=False, force_slow=False, skip="", wpol="nt", kvpol="nt",
                 dbgstamps=False, tq=(2, 2, 3, 3), tg=(6, 6, 7, 7), to=(31, 31, 31, 31), lag=2, probe=None, cyc=False,
                 d0=None, tclr=25, dbl="pollXB,pollC,pollXD,pollE", gap=1, near=1, at={}, ipf=24,
                 sync=(4, 6, 9, 11, 13, 16, 18), wb=False, mlat=(176, 84), mltail=500, mlcut=3, p0=400, win=32, ipf0=False, back={}, outpol='sc1', step=1, rotu=None, off='', bars=(), early=None, eth=7, etill=32, estat=None, stpol='', clr2=1, clr1=1, lateg=0, tml=27, ttouch=None, obar=False, owait=(6, 6, 6, 6), dup=False):
        self.__dict__.update(locals())
        self.a = Asm()
        self.nst = 0
        self.cold = []
        self.nslow = 0
        self.est = ()
        self.at = dict(pollA=(30, 14), pollB=(108,), pollXB=(8, 14), pollC=(4, 14), pollD=(91,), pollXD=(4, 22), pollE=(6, 14), last=(112,))
        self.at.update(at)
        assert self.two("pollXB") and self.two("pollXD")
        self.stamp_names = []

    def stamp(self, name, per_layer=False):
        if not self.stamps or (self.stamps is not True and name not in self.stamps):
            return
        a = self.a
        k = self.nst
        self.nst += 2 if per_layer else 1
        assert self.nst <= 28
        a("%s s[0:1]" % ("s_memtime" if self.cyc else "s_memrealtime"), "s_waitcnt lgkmcnt(0)")
        if per_layer:
            self.stamp_names += [name + "/1", name + "/2"]
            a("s_add_u32 m0, s%d, %d" % (slayer, k - 1), "v_writelane_b32 v4, s0, m0")
        else:
            self.stamp_names.append(name)
            a("v_writelane_b32 v4, s0, %d" % k)

    def mk_srd(self, d, p, size):
        self.a("s_mov_b32 s%d, s%d" % (d, p), "s_mov_b32 s%d, s%d" % (d + 1, p + 1),
               "s_mov_b32 s%d, %s" % (d + 2, size), "s_mov_b32 s%d, 0x20000" % (d + 3))

    def lin(self, d, t, *terms):
        first = True
        for sh, bits, sc in terms:
            r = d if first else t
            if sh + bits >= 6:
                src = vL
                if sh:
                    self.a("v_lshrrev_b32 v%d, %d, v0" % (r, sh)); src = r
            elif sh == 0:
                self.a("v_and_b32 v%d, %d, v0" % (r, (1 << bits) - 1)); src = r
            else:
                self.a("v_bfe_u32 v%d, v0, %d, %d" % (r, sh, bits)); src = r
            if first:
                if sc or src != d:
                    self.a("v_lshlrev_b32 v%d, %d, v%d" % (d, sc, src))
            else:
                self.a("v_lshl_add_u32 v%d, v%d, %d, v%d" % (d, src, sc, d))
            first = False

    def sexpr(self, d, const, *terms):
        a = self.a
        first = True
        for reg, mult in terms:
            r = d if first else 101
            if mult & (mult - 1) == 0:
                a("s_lshl_b32 s%d, s%d, %d" % (r, reg, mult.bit_length() - 1))
            else:
                a("s_mul_i32 s%d, s%d, %d" % (r, reg, mult))
            if not first:
                a("s_add_u32 s%d, s%d, s101" % (d, d))
            first = False
        if const:
            a("s_add_u32 s%d, s%d, 0x%x" % (d, d, const))

    def oob_unless(self, v, t, cond):
        self.a(cond, "v_mov_b32 v%d, 0x%x" % (t, OOB), "v_cndmask_b32 v%d, v%d, v%d, vcc" % (v, t, v))

    def even_only(self, v, t, cmp="0"):
        self.a("v_and_b32 v%d, 1, v0" % t)
        self.oob_unless(v, t, "v_cmp_eq_u32 vcc, %s, v%d" % (cmp, t))

    def st_intra(self, op, data, voff, soff, both=False):
        a = self.a
        slow = "%s %s, v%d, %s, s%d offen sc1" % (op, data, voff, srd(sWL), soff)
        a("%s %s, v%d, %s, s%d offen %s" % (op, data, voff, srd(sWF), soff, self.stpol))
        if both or self.dup:
            tk = a.mark()
            a(slow)
            a.uncounted(tk)
            return
        self.nslow += 1
        L = "L_slow%d" % self.nslow
        a("s_cmp_eq_u32 s%d, 0" % (sWF + 2), "s_cbranch_scc1 " + L, L + "_b:")
        self.cold += [L + ":", slow, "s_branch %s_b" % L]

    def ld(self, r, voff, soff, off=0, n=4, rs=sWS):
        return "buffer_load_dword%s %s, v%d, %s, s%d offen offset:%d sc1" % (
            "x%d" % n if n > 1 else "", q(r, n) if n > 1 else "v%d" % r, voff, srd(rs), soff, off)

    def spin_count(self):
        return ["s_add_u32 s%d, s%d, 1" % (sspin, sspin), "s_cmp_lt_u32 s%d, 0x%x" % (sspin, SPIN_LIMIT), "s_cselect_b32 s%d, -2, -1" % scmp]

    def two(self, name):
        return name in self.dbl.split(",")

    def rounds(self, name):
        return 1 + self.dbl.split(",").count(name)

    def poll(self, loads, regs, acc, name, spec=None, issued=0, then=()):
        a = self.a
        L = a.lab(name)
        k = self.rounds(name)
        n = len(loads)
        for r in range(issued, k):
            if r:
                a("s_sleep %d" % self.gap)
            a(*loads)
        a("s_branch %s_w" % L, L + ":")
        b = self.back.get(name, self.back.get("*", 0)) if k > 1 or name in self.back else 0
        for _ in range(b // 16):
            a("s_nop 15")
        if b % 16:
            a("s_nop %d" % (b % 16 - 1))
        a(*loads)
        a(*self.spin_count())
        a(L + "_w:")
        self.check(regs, acc, k * n, spec if k == 1 else None)
        a("s_cbranch_vccnz " + L, *then)
        if k > 1 and spec:
            for r in range(n):
                spec(r)
        if self.stamps is not True:
            self.stamp(name, True)

    def idle(self, n):
        if n >= 16:
            self.a("s_sleep %d" % (n // 16))
        if n > 0 and n % 16:
            self.a("s_nop %d" % (n % 16 - 1))

    def with_loads(self, name, work, loads):
        pos = 0
        for d in self.at[name][:self.rounds(name)]:
            self.a(*work[pos:pos + d])
            self.idle(pos + d - max(pos, len(work)))
            self.a(*loads)
            pos += d
        self.a(*work[pos:])
        return self.rounds(name)

    def check(self, regs, acc, n, spec=None):
        a = self.a
        have, rr = None, []
        for i, part in enumerate(regs):
            if n:
                a("s_waitcnt vmcnt(%d)" % (n - 1 - i))
            if spec:
                spec(i)
            rr += list(part)
            last = i == len(regs) - 1
            while rr:
                pool = ([have] if have is not None else []) + rr
                if len(pool) >= 3:
                    a("v_max3_u32 v%d, v%d, v%d, v%d" % (acc, *pool[:3])); rr = pool[3:]; have = acc
                elif not last:
                    break
                elif len(pool) == 2:
                    a("v_max_u32 v%d, v%d, v%d" % (acc, *pool)); rr = []; have = acc
                else:
                    have = pool[0]; rr = []
        a("v_cmp_lt_u32 vcc, s%d, v%d" % (scmp, have))

    def check_or_poll(self, loads, regs, acc, name, wait, pre=()):
        a = self.a
        tk = a.mark()
        a("s_branch L_%s_c" % name, "L_%s_r:" % name, *pre)
        a(*loads)
        a(*self.spin_count())
        a("s_waitcnt vmcnt(0)", "L_%s_c:" % name)
        a.uncounted(tk)
        a.wait_vm(wait)
        self.check(regs, acc, 0)
        a("s_cbranch_vccnz L_%s_r" % name)

    def mfma(self, d, A, B, c):
        self.a("v_mfma_f32_16x16x32_bf16 %s, %s, %s, %s" % (q(d), A, B, q(d) if c else "0"))

    def smf(self, d, A, B, ix=None):
        self.a("v_smfmac_f32_16x16x64_bf16 %s, %s, %s, v%d" % (q(d), A, B, ix or vIX))

    def mk_ix(self, v):
        self.a("v_and_b32 v%d, 1, v0" % v, "v_mul_u32_u24 v%d, 0xaaaa, v%d" % (v, v), "v_add_u32 v%d, 0x4444, v%d" % (v, v))

    def dpp(self, op, d, s0, s1, ctl, rm="0xf"):
        self.a("%s_dpp v%d, v%d, v%d %s row_mask:%s bank_mask:0xf" % (op, d, s0, s1, ctl, rm))

    def pack_pairs(self, d, v):
        self.a("v_mov_b32_dpp v%d, v%d quad_perm:[1,1,3,3] row_mask:0xf bank_mask:0xf" % (d, v),
               "v_cvt_pk_bf16_f32 v%d, v%d, v%d" % (d, v, d))

    def tile_issue(self, T, between=None):
        a = self.a
        a("s_and_b32 s%d, s%d, 15" % (srot, srot), "s_lshl_b32 s%d, s%d, 17" % (stmp, srot),
          "s_add_u32 s%d, s%d, s%d" % (stmp, stmp, su), "s_add_u32 s%d, s%d, %d" % (srot, srot, self.step),
          "s_add_u32 m0, s%d, %d" % (sring, (T % 6) * 4096))
        if T >= 6:
            a("s_waitcnt lgkmcnt(%d)" % (0 if between else 1))
        for jj in range(4):
            self.throttle(T, 4 * T + jj >= 128 - self.burst)
            va = vKS + jj if T < 16 else 5 + (jj & 1)
            a("buffer_load_dwordx4 v%d, %s, s%d offen offset:%d %s lds" % (va, srd(sK if T < 16 else sV), stmp, jj * 1024, self.kvpol))
            self.ltok.append(a.mark())
            self.tok[T] = a.mark()
            if between:
                between(jj)
        if 16 <= T < 31:
            a("v_xor_b32 v5, 64, v5", "v_xor_b32 v6, 64, v6")

    def throttle(self, T, burst):
        d = self.d0.get(T, self.depth) if self.d0 else self.depth
        if T > 1 and not burst and d < len(self.ltok):
            a = self.a
            e = self.early[T % len(self.early)] if self.early and self.sync[1] < T < self.etill else d
            a.wait_vm(self.ltok[-d])
            if e < d:
                L = a.lab("th")
                a("s_cmp_eq_u32 s%d, 0" % searly, "s_cbranch_scc1 " + L)
                a.wait_vm(self.ltok[-e])
                a(L + ":")

    def vreg(self, p, i):
        return 128 + 64 * (p >> 1) + 8 * i + 4 * (p & 1) if p < 4 else (96 if p == 4 else vS) + 4 * i

    def v_reads(self, p, dst=None):
        slot = (16 + 2 * p) % 6
        for i in range(8):
            for h in range(2):
                d = dst(i, h) if dst else q(self.vreg(p, i) + 2 * h, 2)
                self.a("ds_read_b64_tr_b16 %s, v%d offset:%d ; mem=v" % (d, vAI + i if i else vTRV, slot * 4096 + h * 512))

    def tile_consume(self, T):
        a = self.a
        if T < 16:
            a.wait_vm(self.tok[T])
            for st in range(4):
                a("ds_read_b128 %s, v%d offset:%d" % (q(16 * T + 4 * st, 4, "a"), vKR + st, (T % 6) * 4096))
        elif T & 1:
            a.wait_vm(self.tok[T])
            self.v_reads((T - 16) >> 1)

    def mk_ai(self):
        for i in range(1, 8):
            self.a("v_xor_b32 v%d, %d, v%d" % (vAI + i, i << 5, vTRV))
        self.mk_ix(vIX)

    def weight_load(self, kind, k, T, va=52):
        a = self.a
        t = va + 1
        pitch = {"q": 8192, "g": 3584, "d": 1024, "o": 1024}[kind]
        if k == 0:
            if kind == "o":
                self.lin(va, t, (5, 1, 14), (3, 2, 10), (0, 3, 4))
                self.mk_srd(sT, 12, "0x400000")
                self.sexpr(sWo, 0, (sg, 512 * 1024), (sb, 128 * 1024), (sw, 4096), (ss, 128))
                self.sexpr(sWl, L_WO, (sw, 4096))
            else:
                a("v_lshrrev_b32 v%d, 3, v0" % va, "v_mul_u32_u24 v%d, %d, v%d" % (va, pitch, va), "v_and_b32 v%d, 7, v0" % t,
                  "v_lshl_add_u32 v%d, v%d, 4, v%d" % (va, t, va))
            a("v_and_b32 v%d, 32, v0" % t, "v_xor_b32 v%d, v%d, v%d" % (va, va, t), "v_xor_b32 v%d, 64, v%d" % (t, va))
            if kind == "q":
                self.mk_srd(sT, 10, "0x400000")
                self.sexpr(sWo, 0, (sb, 128 * pitch), (sw, 32 * pitch), (sg, 1024), (ss, 128))
                self.sexpr(sWl, L_WQ, (sw, 4096))
            if kind in "gd":
                a("s_lshr_b32 s100, s%d, 1" % sg, "s_mul_i32 s100, s100, 7", "s_and_b32 s%d, s%d, 1" % (stmp, sg),
                  "s_lshl_b32 s%d, s%d, 2" % (stmp, stmp), "s_add_u32 s100, s100, s%d" % stmp)
            if kind == "g":
                a("s_and_b32 s%d, s%d, 3" % (stmp, ss), "s_add_u32 s100, s100, s%d" % stmp)
                self.sexpr(sWo, 0, (sb, 128 * pitch), (sw, 32 * pitch), (100, 128))
                self.sexpr(sWl, L_WG, (sw, 4096))
                a("s_bitcmp1_b32 s%d, 0" % sact, "s_cselect_b32 s100, 0x%x, 0" % (512 * pitch))
                self.mk_srd(sT, 16, "s100")
                a("s_cmp_ge_u32 s%d, 4" % ss, "s_cselect_b32 s%d, s18, s16" % sT, "s_cselect_b32 s%d, s19, s17" % (sT + 1))
            if kind == "d":
                a("s_add_u32 s100, s100, s%d" % sb)
                self.sexpr(sWo2, 0, (100, 64 * pitch), (sw, 16 * pitch), (ss, 128))
                self.sexpr(sWl2, L_WD, (sw, 2048))
                a("s_bitcmp1_b32 s%d, 1" % sact, "s_cselect_b32 s100, 0x%x, 0" % (1792 * pitch))
                self.mk_srd(sXI, 20, "s100")
            if T is None:
                return
        self.weight_issue(kind, k, T, va)

    def weight_issue(self, kind, k, T, va):
        a = self.a
        pitch = {"q": 8192, "g": 3584, "d": 1024, "o": 1024}[kind]
        so, sl, rs = (sWo2, sWl2, sXI) if kind == "d" else (sWo, sWl, sT)
        a("s_add_u32 s%d, s%d, 0x%x" % (stmp, so, (32 if kind == "o" else 8) * pitch * k), "s_add_u32 m0, s%d, 0x%x" % (sl, 1024 * k))
        if kind not in self.skip:
            if T < 31:
                self.throttle(T, False)
            a("buffer_load_dwordx4 v%d, %s, s%d offen %s lds" % (va + (k & 1), srd(rs), stmp, self.wpol))
            self.ltok.append(a.mark())
        self.wtok[kind] = a.mark()

    def lines(self, fn, *args):
        keep, self.a = self.a, Asm()
        fn(*args)
        out, self.a = [i.text for i in self.a.l], keep
        return out

    def sched(self, lines, pre=()):
        out, t = schedule(lines, pre)
        self.a(*out)
        return t

    def s_zero(self):
        for r in range(vS, vS + 32, 2):
            self.a("v_mov_b64 %s, 0" % q(r, 2))

    def qk(self):
        a = self.a
        for k, p in enumerate(ORDER):
            d = vS + 4 * k
            for sg_ in range(2):
                for hf in range(2):
                    self.smf(d, q(vQ + 8 * sg_ + 4 * hf), q(16 * (2 * p + sg_) + 8 * hf, 8, "a"))
            a("v_add_f32 v%d, v%d, v%d" % (d, d, d + 1), "v_add_f32 v%d, v%d, v%d" % (d + 1, d + 2, d + 3))
            a("v_max3_f32 v7, v7, v%d, v%d" % (d, d + 1) if k else "v_max_f32 v7, v%d, v%d" % (d, d + 1))

    def ml_off(self, v, t):
        self.a("v_mov_b32 v%d, v%d" % (v, vA16), "v_and_b32 v%d, 15, v0" % t)
        self.oob_unless(v, t, "v_cmp_eq_u32 vcc, 0, v%d" % t)

    def softmax(self, vw, voff):
        a = self.a
        for k in (1, 2, 4, 8):
            self.dpp("v_max_f32", 7, 7, 7, "row_ror:%d" % k)
        a("v_mul_f32 v20, s%d, v7" % sSC, "s_mov_b32 s100, %s" % ONES)
        for k in range(8):
            r = q(vS + 4 * k, 2)
            a("v_pk_fma_f32 %s, %s, s[%d:%d], v[20:21] op_sel_hi:[1,0,0] neg_lo:[0,0,1] neg_hi:[0,0,1]" % (r, r, sSC, sSC + 1))
        for k in range(8):
            r = vS + 4 * k
            a("v_exp_f32 v%d, v%d" % (r, r), "v_exp_f32 v%d, v%d" % (r + 1, r + 1), "v_cvt_pk_bf16_f32 v%d, v%d, v%d" % (r + 2, r, r + 1))
            if k & 1:
                a("ds_write2st64_b32 v%d, v%d, v%d offset0:%d offset1:%d ; mem=p%d" % (vw, r - 2, r + 2, k - 1, k, k - 1))
        for k in range(8):
            a("v_dot2_f32_bf16 v21, v%d, s100, %s" % (vS + 4 * k + 2, "v21" if k else "0"))
        for k in (1, 2, 4, 8):
            self.dpp("v_add_f32", 21, 21, 21, "row_ror:%d" % k)
        self.st_intra("buffer_store_dwordx2", "v[20:21]", voff, sMLst, both=True)

    def ml_finish(self, r):
        a = self.a
        a("v_sub_f32 v%d, v%d, v20" % (r, r), "v_sub_f32 v%d, v%d, v20" % (r + 2, r + 2),
          "v_exp_f32 v%d, v%d" % (r, r), "v_exp_f32 v%d, v%d" % (r + 2, r + 2),
          "v_mul_f32 v7, v%d, v%d" % (r, r + 1), "v_fmac_f32 v7, v%d, v%d" % (r + 2, r + 3))
        for k in (1, 2, 4, 8):
            self.dpp("v_add_f32", 7, 7, 7, "row_ror:%d" % k)
        a("v_rcp_f32 v7, v7")

    def lds_or_zero(self, v, t, mask, val=0):
        self.a("v_and_b32 v%d, %d, v0" % (t, mask), "v_cmp_eq_u32 vcc, %d, v%d" % (val, t), "v_mov_b32 v%d, 0x%x" % (t, L_OOB),
               "v_cndmask_b32 v%d, v%d, v%d, vcc" % (v, t, v))

    def p_read(self, k, va, buf):
        self.a("ds_read_b128 %s, v%d offset:%d ; mem=p%d" % (q(vQ + 4 * buf), va, k * 256, k & ~1))

    def pv_dense(self, p, buf, lgkm=None):
        for i in range(8):
            if lgkm is not None:
                self.a("s_waitcnt lgkmcnt(%d)" % lgkm(i))
            self.mfma(vO + 4 * i, q(vQ + 4 * buf), q(self.vreg(p, i)), p > 0)

    def o_write(self, t0, t1, sparse):
        a = self.a
        self.sexpr(100, L_SCR, (sw, 2048))
        a("v_add_u32 v22, s100, v%d" % vA16)
        for h, t in enumerate((t0, t1)):
            for i in range(4):
                o = vO + 16 * h + 4 * i
                a("v_add_f32 v%d, v%d, v%d" % (t + i, o, o + 1) if sparse else "v_mul_f32 v%d, v7, v%d" % (t + i, o))
            if sparse:
                for i in (0, 2):
                    a("v_pk_mul_f32 %s, %s, v[6:7] op_sel:[0,1] op_sel_hi:[1,1]" % (q(t + i, 2), q(t + i, 2)))
            a("ds_write_b128 v22, %s offset:%d" % (q(t), 1024 * h))

    def w_tiles(self, kinds, va, t):
        a = self.a
        last = None
        for kind, dst in kinds:
            qs = 11 if kind == "d" else 12
            if qs != last:
                self.lin(va, t, (4, 1, 5), (3, 1, 6))
                a("s_lshl_b32 s100, s%d, 5" % sw, "v_xor_b32 v%d, s100, v%d" % (va, va), "v_add_u32 v%d, 0x%x, v%d" % (va, L_WQ, va))
                for sh, bits, sc in ((5, 1, qs), (3, 1, 10), (4, 1, 9), (2, 1, 7), (0, 2, 3)):
                    a("v_bfe_u32 v%d, v0, %d, %d" % (t, sh, bits), "v_lshl_add_u32 v%d, v%d, %d, v%d" % (va, t, sc, va))
                last = qs
            base = {"q": L_WQ, "g": L_WG, "d": L_WD}[kind] - L_WQ
            for kb in range(2 if kind == "d" else 4):
                for h in range(2):
                    a("ds_read_b64_tr_b16 %s, v%d offset:%d" % (q(dst + 4 * kb + 2 * h, 2), va,
                                                                  base + (kb & 1) * (2 << qs) + (kb >> 1) * 2048 + h * 256))

    def gemv_zero(self, d):
        self.a("v_mov_b64 %s, 0" % q(d, 2), "v_mov_b64 %s, 0" % q(d + 6, 2))

    def gemv4(self, x, W, d, ix):
        for k in range(2):
            self.smf(d + 4 * k, q(x), q(W + 8 * k, 8), ix)

    def gemv4_fin(self, out, d):
        self.a("v_add_f32 v%d, v%d, v%d" % (d, d, d + 1), "v_add_f32 v%d, v%d, v%d" % (d + 6, d + 6, d + 7),
               "v_add_f32 v%d, v%d, v%d" % (d, d, d + 6))
        self.pack_pairs(out, d)

    def colsum_pub(self, W, ones, d, va, t, off, *terms):
        a = self.a
        for r in range(4):
            a("v_mov_b32 v%d, %s" % (ones + r, ONES))
        self.lin(va, t, (0, 1, 10), (1, 3, 4))
        self.oob_unless(va, t, "v_cmp_gt_u32 vcc, 16, v0")
        self.sexpr(100, off, (sCS, 1), (sb, 4), (sw, 128), *terms)
        a("s_waitcnt lgkmcnt(0)")
        for kb in range(4):
            self.mfma(d, q(ones), q(W + 4 * kb), kb > 0)
        self.st_intra("buffer_store_dword", "v%d" % d, va, 100)

    def colsum_ld(self, r, off, sel):
        self.sexpr(100, off, (sCS, 1), (sel, 2048))
        self.a(self.ld(r, vA16, 100, 0), self.ld(r + 4, vA16, 100, 1024))

    def colsum_fin(self, r, c):
        for k in range(2):
            b = r + 4 * k
            self.a("v_add_f32 v%d, v%d, v%d" % (b, b, b + 1), "v_add_f32 v%d, v%d, v%d" % (b + 2, b + 2, b + 3),
                   "v_add_f32 v%d, v%d, v%d" % (b, b, b + 2), "v_mul_f32 v%d, %s, v%d" % (c + k, f32(-1.0 / 512), b))

    def stats(self, x, t, att):
        a = self.a
        s1, s2 = t, t + 1
        a("s_mov_b32 s100, %s" % ONES)
        for k in range(4):
            a("v_dot2_f32_bf16 v%d, v%d, s100, %s" % (s1, x + k, "v%d" % s1 if k else "0"),
              "v_dot2_f32_bf16 v%d, v%d, v%d, %s" % (s2, x + k, x + k, "v%d" % s2 if k else "0"))
        a("v_permlane32_swap_b32 v%d, v%d" % (s1, s2), "v_add_f32 v%d, v%d, v%d" % (s1, s1, s2))
        for k in (1, 2, 4, 8):
            self.dpp("v_add_f32", s1, s1, s1, "row_ror:%d" % k)
        self.dpp("v_add_f32", s1, s1, s1, "row_bcast:15", "0xa")
        a("v_readlane_b32 s%d, v%d, 31" % (sS1, s1), "v_mul_f32 v%d, %s, v%d" % (s1, f32(1.0 / 512), s1),
          "v_mov_b32 v%d, s%d" % (s2, sS1), "v_mul_f32 v%d, %s, v%d" % (s2, f32(1.0 / 512), s2),
          "v_fma_f32 v%d, -v%d, v%d, v%d" % (s1, s2, s2, s1), "v_max_f32 v%d, 0, v%d" % (s1, s1),
          "v_add_f32 v%d, %s, v%d" % (s1, f32(1e-5), s1))
        if att:
            a("v_rsq_f32 v%d, v%d" % (s1, s1), "v_mul_f32 v%d, %s, v%d" % (s1, f32(SCALE), s1))
        else:
            a("v_rcp_f32 v%d, v%d" % (s1, s1), "s_nop 0")
        a("v_readlane_b32 s%d, v%d, 63" % (sSC, s1))

    def sum4_init(self, acc, c):
        self.a("v_mul_f32 v%d, s%d, v%d" % (acc, sS1, c), "v_mul_f32 v%d, s%d, v%d" % (acc + 1, sS1, c + 1))

    def sum4(self, x, acc, init):
        for k in range(4):
            c = acc if k else init
            self.a("v_dot2_f32_bf16 v%d, v%d, s%d, v%d" % (acc, x + k, sLO, c),
                   "v_dot2_f32_bf16 v%d, v%d, s%d, v%d" % (acc + 1, x + k, sHI, c + 1))

    def q_addrs(self, vw, vr, t):
        a = self.a
        self.lin(vw, t, (3, 3, 5), (0, 1, 4), (1, 2, 2))
        self.sexpr(100, L_Q, (sw, QSTR))
        a("v_add_u32 v%d, s100, v%d" % (vw, vw))
        self.lin(vr, t, (4, 2, 5), (0, 1, 4))
        a("v_bfe_u32 v%d, v0, 2, 2" % t, "v_mul_u32_u24 v%d, %d, v%d" % (t, QSTR, t), "v_add_u32 v%d, v%d, v%d" % (vr, vr, t),
          "v_add_u32 v%d, 0x%x, v%d" % (vr, L_Q, vr), "v_mov_b32 v%d, v%d" % (vr + 1, vr))
        self.lds_or_zero(vr, t, 2, 0)
        self.lds_or_zero(vr + 1, t, 2, 2)

    def q_assemble(self, acc, vw, vr, fill=()):
        a = self.a
        a("v_cvt_pk_bf16_f32 v%d, v%d, v%d" % (acc, acc, acc + 1), "ds_write_b32 v%d, v%d" % (vw, acc), *fill)
        a("s_waitcnt lgkmcnt(0)", "s_barrier")
        rd = ["ds_read_b128 %s, v%d offset:%d" % (q(vQ + 4 * st), vr + (st >> 1), (st & 1) * 128) for st in range(4)]
        a(*rd)
        return rd

    def late_loads(self, name):
        self.layer1(name)
        for k in range(4 - self.lateg, 4):
            self.weight_issue("g", k, 32, 60)
        for k in range(2):
            self.weight_issue("d", k, 32, 62)
        self.a(name + ":")

    def next_region(self):
        for r in (sWS, sWF, sWL):
            self.a("s_add_u32 s%d, s%d, 0x%x" % (r, r, LS), "s_addc_u32 s%d, s%d, 0" % (r + 1, r + 1))
        self.a("s_sub_u32 s%d, s%d, 0x%x" % (sCS, sCS, LS))

    def leader_fill(self):
        a = self.a
        a("v_mov_b32 v8, -1", "v_mov_b32 v9, -1", "v_mov_b32 v10, -1", "v_mov_b32 v11, -1",
          "s_or_b32 s%d, s%d, s%d" % (slead, sj, sw), "s_cmp_eq_u32 s%d, 0" % slead, "s_cbranch_scc0 L_nolead0")
        tk = a.mark()
        a("s_lshl_b32 s100, s%d, 17" % sg, "buffer_store_dwordx4 v[8:11], v%d, %s, s100 offen sc1" % (vA16, srd(sWS)), "L_nolead0:")
        a.uncounted(tk)
        self.tok_lead = tk

    def leader_flag(self, word, name, tok=None, val="1"):
        a = self.a
        a("s_cmp_eq_u32 s%d, 0" % slead, "s_cbranch_scc0 " + name)
        if tok is not None:
            a.wait_vm(tok)
        tk = a.mark()
        a("v_mov_b32 v55, %s" % val, "v_lshlrev_b32 v54, 8, v0", "s_lshl_b32 s100, s%d, 2" % sg,
          "buffer_store_dword v55, v54, %s, s100 offen offset:%d sc1" % (srd(sDBG), word), name + ":")
        a.uncounted(tk)

    def flag_load(self, v, word, own):
        a = self.a
        if own:
            a("s_lshl_b32 s100, s%d, 2" % sg, "v_mov_b32 v%d, s100" % v)
        else:
            a("v_and_b32 v%d, 7, v0" % v, "v_lshlrev_b32 v%d, 2, v%d" % (v, v))
        return a("buffer_load_dword v%d, v%d, %s, 0 offen offset:%d sc1" % (v, v, srd(sDBG), word))

    def flag_check(self, v, word, own, tok, name):
        a = self.a
        a.wait_vm(tok)
        tk = a.mark()
        a("s_branch %s_c" % name, name + "_s:", "s_sleep 8")
        self.flag_load(v, word, own)
        a("s_add_u32 s%d, s%d, 1" % (sspin, sspin), "s_cmp_lt_u32 s%d, 0x%x" % (sspin, SPIN_LIMIT), "s_waitcnt vmcnt(0)",
          "s_cbranch_scc0 %s_d" % name, name + "_c:", "v_cmp_eq_u32 vcc, 0, v%d" % v, "s_cbranch_vccnz %s_s" % name, name + "_d:")
        a.uncounted(tk)

    def fill_intra(self, v, t, d, start, per_wave):
        a = self.a
        self.sexpr(100, start, (sg, 1 << 17), (sj, 4 * per_wave), (sw, per_wave))
        a("v_mov_b32 v%d, v%d" % (v, vA16))
        self.oob_unless(v, t, "v_cmp_gt_u32 vcc, %d, v0" % (per_wave // 16))
        if "fill" not in self.off:
            self.st_intra("buffer_store_dwordx4", q(d), v, 100)

    def sentinels(self, d):
        for r in range(4):
            self.a("v_mov_b32 v%d, -1" % (d + r))

    def prologue(self):
        a = self.a
        if self.stamps:
            a("%s s[92:93]" % ("s_memtime" if self.cyc else "s_memrealtime"))
        a("s_load_dwordx16 s[4:19], s[0:1], 0", "s_load_dwordx8 s[20:27], s[0:1], 64",
          "v_lshrrev_b32 v1, 6, v0", "s_cmpk_ge_u32 s2, 256", "v_readfirstlane_b32 s%d, v1" % sw, "s_cbranch_scc1 L_end")
        a("v_and_b32 v0, 63, v0", "s_and_b32 s%d, s2, 7" % sg, "s_lshr_b32 s%d, s2, 3" % sj, "s_lshr_b32 s%d, s2, 6" % sb,
          "s_and_b32 s%d, s%d, 7" % (ss, sj), "s_lshl2_add_u32 s%d, s%d, s%d" % (su, ss, sw), "s_lshl_b32 s%d, s%d, 12" % (su, su),
          "s_lshl3_add_u32 s100, s%d, s%d" % (sb, sg), "s_mul_i32 s%d, s%d, %d" % (srot, sg, self.rotg), "s_lshl2_add_u32 s%d, s%d, s%d" % (srot, sb, srot), "s_lshl_b32 s100, s100, 21",
          *(["s_lshr_b32 s101, s%d, %d" % (su, 12 + self.rotu[1]), "s_mul_i32 s101, s101, %d" % self.rotu[0], "s_add_u32 s%d, s%d, s101" % (srot, srot)] if self.rotu else []),
          "s_mul_i32 s%d, s%d, %d" % (sring, sw, RING))
        a("v_lshrrev_b32 v5, 4, v0", "v_and_b32 v6, 15, v0", "v_xor_b32 v7, v5, v6", "v_lshlrev_b32 v7, 4, v7",
          "v_lshl_add_u32 v%d, v5, 8, v7" % vKS)
        a("v_xor_b32 v%d, 64, v%d" % (vKS + 1, vKS), "v_xor_b32 v%d, 128, v%d" % (vKS + 2, vKS), "v_xor_b32 v%d, 64, v%d" % (vKS + 3, vKS + 2),
          "s_lshl_b32 s98, s2, 10", "s_bitset1_b32 s98, 22", "v_mov_b32 v9, s98", "v_xor_b32 v10, 0x2000, v9",
          "s_lshl_b32 s%d, 1, 21" % (sK + 2), "s_mov_b32 s%d, 0x20000" % (sK + 3))
        self.tok, self.ltok, self.wtok = {}, [], {}
        first = self.lines(self.tile_issue, 0)
        self.tok, self.ltok = {}, []
        a(*first[:5])
        a("s_waitcnt lgkmcnt(0)", "global_load_dword v95, v9, s[26:27] sc1")
        tok_cal = a.mark()
        a("global_load_dword v95, v10, s[26:27] offset:128 sc1", "s_add_u32 s%d, s6, s100" % sK, "s_addc_u32 s%d, s7, 0" % (sK + 1))
        for x in first[5:]:
            self.ltok.append(a(x))
        self.tok[0] = a.mark()
        a("s_cmp_eq_u32 s%d, 0" % sw, "s_cbranch_scc0 L_novote")
        a.wait_vm(tok_cal)
        a("s_sleep 1", "s_getreg_b32 s99, hwreg(HW_REG_IB_STS, 0, 4)", "L_novote:")
        self.tile_issue(1)
        a("s_add_u32 s%d, s8, s100" % sV, "s_addc_u32 s%d, s9, 0" % (sV + 1),
          "s_mov_b32 s%d, 0x200000" % (sV + 2), "s_mov_b32 s%d, 0x20000" % (sV + 3))
        a("v_lshl_add_u32 v%d, v6, 8, v7" % vKR, "v_add_u32 v%d, s%d, v%d" % (vKR, sring, vKR))
        for st in range(1, 4):
            a("v_xor_b32 v%d, %d, v%d" % (vKR + st, st << 6, vKR))
        a("v_lshlrev_b32 v%d, 4, v0" % vA16)
        self.mk_srd(sDBG, 24, "256")
        self.mk_srd(sWS, 26, "0x%x" % WS_SIZE)
        self.mk_srd(sOUT, 22, "4096")
        a("s_add_u32 s%d, s26, 0x%x" % (sXW, OFF_XW), "s_addc_u32 s%d, s27, 0" % (sXW + 1),
          "s_mov_b32 s%d, 0x100000" % (sXW + 2), "s_mov_b32 s%d, 0x20000" % (sXW + 3))
        if self.stamps:
            a("v_mov_b32 v4, 0", "v_writelane_b32 v4, s92, 0")
            self.nst = 1
            self.stamp_names.append("entry")
        self.stamp("start")
        a("s_cmp_gt_u32 s99, 4", "s_cselect_b32 s%d, 16, 0" % svote)
        self.setup_b()
        self.setup_c()

    def setup_a(self):
        a = self.a
        self.mk_srd(sXI, 4, "4096")
        self.lin(6, 7, (4, 2, 6), (2, 2, 10), (0, 2, 4))
        self.lin(5, 7, (5, 1, 10), (4, 1, 11), (0, 4, 1))
        a("s_lshl_b32 s100, s%d, 8" % sb, "s_lshl_b32 s101, s%d, 10" % sb, "s_lshl_b32 s%d, s%d, 5" % (stmp, sj),
          "buffer_load_dwordx4 %s, v6, %s, s100 offen" % (q(vX), srd(sXI)),
          "buffer_load_dwordx4 %s, v%d, %s, s101 offen" % (q(vX + 4), vA16, srd(sXI)),
          "buffer_load_ushort v%d, v5, %s, s%d offen" % (vRES, srd(sXI), stmp))
        if self.clr1 == 1:
            self.sexpr(100, 0, (sj, 32768), (sg, 2048), (sw, 512))
            a("v_mov_b32 v12, v%d" % vA16)
            self.oob_unless(12, 13, "v_cmp_gt_u32 vcc, 32, v0")
        else:
            self.sexpr(100, 0, (sj, 32768), (sg, 512), (sw, 128))
            self.lin(12, 13, (3, 1, 13), (0, 3, 4))
            self.oob_unless(12, 13, "v_cmp_gt_u32 vcc, 16, v0")
        if "clr" not in self.off:
            a("buffer_store_dwordx4 v[8:11], v12, %s, s100 offen sc1" % srd(sXW))
        self.tok_pro = a.mark()

    def setup_b(self):
        a = self.a
        self.mk_srd(sWF, sWS, "0")
        self.mk_srd(sWL, sWS, "0x%x" % WS_SIZE)
        G = (sg, 1 << 17)
        self.sexpr(sCS, 2 * LS, G)
        self.sexpr(sEst, OFF_E, G, (ss, 512), (sw, 128), (sb, 4))
        self.sexpr(sEld, OFF_E, G, (sb, 4096), (sw, 1024))
        self.sexpr(sMLld, OFF_ML, G, (sb, 1024))
        a("s_lshr_b32 s%d, s%d, 9" % (sMLst, su), "s_add_u32 s%d, s%d, s%d" % (sMLst, sMLst, sMLld),
          "s_mov_b32 s%d, 0" % slayer, "s_mov_b32 s%d, 0" % sspin, "s_mov_b32 s%d, -2" % scmp,
          "s_mov_b32 s%d, 0x3f80" % sLO, "s_mov_b32 s%d, 0x3f800000" % sHI,
          "s_and_b32 s100, s%d, 3" % ss, "s_cmp_eq_u32 s100, 3", "s_cselect_b32 s%d, 0, 1" % sact,
          "s_cmp_eq_u32 s%d, 3" % sb, "s_cselect_b32 s100, 0, 2", "s_or_b32 s%d, s%d, s100" % (sact, sact),
          "s_bitcmp1_b32 s%d, 0" % sg, "s_cselect_b32 s%d, s%d, 3" % (sact, sact))

    def setup_c(self):
        a = self.a
        G = (sg, 1 << 17)
        a("s_lshr_b32 s%d, s%d, 2" % (stmp, ss), "s_and_b32 s100, s%d, 3" % ss)
        self.sexpr(sAst, OFF_A, G, (sw, 8192), (stmp, 1024), (sb, 64), (100, 16))
        self.sexpr(sCst, OFF_C, G, (100, 4096), (stmp, 512), (sw, 128), (sb, 4))
        self.sexpr(sAld, OFF_A, G, (sb, 8192), (sw, 2048))
        self.sexpr(sCld, OFF_C, G, (sb, 4096), (sw, 1024))
        self.sexpr(sBst, 0, (su, 8), (sg, 512), (sb, 128))
        self.sexpr(sBld, 0, (sj, 32768))
        a("s_lshr_b32 s%d, s%d, 1" % (stmp, sj), "s_and_b32 s100, s%d, 1" % sj)
        self.sexpr(sXst, OFF_XB, G, (stmp, 256), (100, 32))
        self.sexpr(sXld, OFF_XB, G, (sb, 1024))
        self.sexpr(sRow, OFF_XB, G)
        a("s_mov_b32 s%d, 0xff00ff00" % sM1, "s_mov_b32 s%d, 0xff00ff00" % (sM1 + 1))
        self.lin(vTRV, 7, (2, 1, 12), (4, 2, 10), (3, 1, 8), (4, 1, 7), (2, 1, 6), (3, 1, 5), (0, 2, 3))
        a("v_add_u32 v%d, s%d, v%d" % (vTRV, sring, vTRV))

    def part_off(self, v, t, bs, cmp="0"):
        self.lin(v, t, (4, 2, bs), (0, 4, 3))
        self.even_only(v, t, cmp)

    def group_flag(self, k, val):
        a = self.a
        a("v_mov_b32 v14, %s" % val, "v_add_u32 v15, s%d, v0" % sw, "v_lshlrev_b32 v15, 24, v15")
        self.sexpr(100, 512 * k, (sg, 1 << 17), (sj, 16))
        self.st_intra("buffer_store_dword", "v14", 15, 100)

    def stream(self):
        a = self.a
        lag = self.lag
        t_dl, t_f1, t_l1, t_c1, t_f2, t_l2, t_c2 = self.sync
        wl = {}
        for kind, ts in (("q", self.tq), ("g", self.tg[:4 - self.lateg]), ("o", self.to)):
            for k, T in enumerate(ts):
                wl.setdefault(T, []).append((kind, k))
        tqk = max(t_c2 + 2, 16 + lag)
        assert self.tq[-1] + 2 <= t_c1 and self.tg[-1] + 2 <= t_f2
        pvat = {}
        for p in range(5):
            pvat.setdefault(max(tqk + 3 + (p >> 1), 17 + 2 * p + lag), []).append(p)
        assert min(self.ipf, self.tml, self.tclr, self.ttouch or 99) >= tqk + 3 and max(pvat) < 32
        vF = 94
        G17 = "s_lshl_b32 s101, s%d, 17" % sg
        qk = None
        for T in range(1, 32):
            if T == 16:
                self.lin(5, 7, (4, 2, 8), (0, 4, 4))
                a("v_and_b32 v7, 16, v0", "v_lshlrev_b32 v7, 1, v7", "v_xor_b32 v5, v5, v7", "v_xor_b32 v6, 128, v5")
                self.mk_ai()
            between = None
            if T in (tqk + 1, tqk + 2):
                def between(jj):
                    a(*qk.pop(0))
            if T in self.bars:
                a("s_barrier")
            if T > 1:
                self.tile_issue(T, between)
            if T == 1:
                if self.ipf0:
                    a("s_getpc_b64 s[98:99]", "L_pc0:")
                    self.sexpr(100, 0, (sj, 512), (sw, 128))
                    a("s_min_u32 s100, s100, L_codeend-L_pc0-4", "v_mov_b32 v93, s100", "global_load_dword v93, v93, s[98:99]")
                self.leader_fill()
            for kind, k in wl.get(T, []):
                if kind == "o" and T == 31:
                    if k == 0:
                        self.weight_load(kind, 0, None, 18)
                        if self.obar:
                            a("s_barrier")
                    if not self.owait or self.owait[k] < 5:
                        self.weight_issue(kind, k, T, 18)
                else:
                    self.weight_load(kind, k, T, 52 if T < 20 else 18)
            if self.stamps is not True and T > 1:
                self.stamp("T%02d" % T)
            if T == 1:
                self.setup_a()
            if lag <= T < 26 + lag:
                self.tile_consume(T - lag)
            if T == 2:
                self.leader_flag(0, "L_nolead1", self.tok_lead)
            if T == t_dl:
                if self.early and self.estat is None:
                    self.flag_load(vF - 1, 0, False)
                tok_f = self.flag_load(vF, 0, True) if "f0" not in self.off else a.mark()
            if T == t_f1:
                if "f0" not in self.off:
                    self.flag_check(vF, 0, True, tok_f, "L_f0")
                if self.early and self.estat is None:
                    a("v_cmp_ne_u32 vcc, 0, v%d" % (vF - 1), "s_and_b32 s100, vcc_lo, 0xff", "s_bcnt1_i32_b32 s100, s100",
                      "s_cmp_lt_u32 s100, %d" % self.eth, "s_cselect_b32 s%d, 1, 0" % searly)
                    if self.stamps:
                        a("v_writelane_b32 v4, s100, 27")
                elif self.early:
                    a("s_getreg_b32 s100, hwreg(HW_REG_XCC_ID, 0, 3)", "s_lshr_b32 s100, 0x%x, s100" % self.estat, "s_and_b32 s%d, s100, 1" % searly)
                a("s_barrier", "s_getreg_b32 s%d, hwreg(HW_REG_XCC_ID, 0, 4)" % stmp, "s_or_b32 s%d, s%d, s%d" % (stmp, stmp, svote))
                if "f1" not in self.off:
                    self.group_flag(0, "s%d" % stmp)
                a("v_lshlrev_b32 v%d, 16, v%d" % (vRES, vRES))
                self.stats(vX + 4, 8, True)
            if T in (t_l1, t_l2):
                fld = self.ld(vF, vF + 1, 101, 0 if T == t_l1 else 512, n=1)
                a("v_and_b32 v%d, 0x1f0, v%d" % (vF + 1, vA16), G17)
                tok_f = a(fld) if ("f1" if T == t_l1 else "f2") not in self.off else a("s_getreg_b32 s100, hwreg(HW_REG_XCC_ID, 0, 4)", "v_mov_b32 v%d, s100" % vF)
            if T == t_c1:
                self.check_or_poll([fld], [[vF]], 7, "xcc", max(tok_f, self.wtok["q"]), [G17])
                a("s_barrier")
                self.w_tiles([("q", vWQ)], 5, 7)
                a("v_cmp_lt_u32 vcc, 15, v%d" % vF, "v_and_b32 v%d, 15, v%d" % (vF, vF),
                  "s_and_b32 s100, vcc_lo, 0x55555555", "s_and_b32 s101, vcc_lo, 0xaaaaaaaa",
                  "s_bcnt1_i32_b32 s100, s100", "s_bcnt1_i32_b32 s101, s101")
                if self.stamps:
                    a("v_writelane_b32 v4, s100, 28", "v_writelane_b32 v4, s101, 29")
                a("s_getreg_b32 s%d, hwreg(HW_REG_XCC_ID, 0, 4)" % svote, "s_sub_u32 s%d, s100, s101" % stmp, "s_sub_u32 s101, s101, s100",
                  "s_bitcmp1_b32 s%d, 2" % svote, "s_cselect_b32 s101, s101, s%d" % stmp, "s_add_u32 s101, s101, 64")
                self.leader_flag(32, "L_nolead2", val="s101")
                if not self.force_slow:
                    a("v_cmp_ne_u32 vcc, s%d, v%d" % (svote, vF), "s_cmp_eq_u64 vcc, 0",
                      "s_cselect_b32 s%d, 0x%x, 0" % (sWF + 2, WS_SIZE), "s_cselect_b32 s%d, 0, 0x%x" % (sWL + 2, WS_SIZE))
                self.part_off(6, 7, 12)
                a("s_lshr_b32 s%d, s%d, 1" % (stmp, ss), "s_and_b32 s%d, s%d, 1" % (sclr, ss))
                self.colsum_pub(vWQ, 12, 16, 10, 11, OFF_CSQ, (stmp, 2048), (sclr, 512))
                self.mk_ix(8)
                self.gemv_zero(vD)
                self.gemv4(vX, vWQ, vD, 8)
                self.sentinels(20)
                self.gemv4_fin(9, vD)
                self.st_intra("buffer_store_dword", "v9", 6, sEst)
                self.fill_intra(24, 7, 20, LS + OFF_ML, 288)
                tok_q = a.mark()
                self.stamp("arrive")
            if T == t_f2:
                a.wait_vm(max(tok_q, self.wtok.get("g", 0)))
                a("s_barrier")
                self.group_flag(1, "1")
                self.w_tiles([("g", vWQ)], 5, 7)
                a("s_lshr_b32 s%d, s%d, 2" % (stmp, ss), "s_and_b32 s%d, s%d, 3" % (sclr, ss))
                self.colsum_pub(vWQ, 16, 20, 10, 11, OFF_CSG, (sclr, 2048), (stmp, 512))
            if T == t_c2:
                self.check_or_poll([fld], [[vF]], 7, "q1", tok_f, [G17])
                self.colsum_ld(28, OFF_CSQ, sw)
                tok_q = a(self.ld(24, vA16, sEld))
                self.next_region()
                self.stamp("barrier")
            if T == t_c2 + 1:
                self.s_zero()
                self.q_addrs(40, 42, 7)
            if T == tqk:
                a.wait_vm(tok_q)
                self.colsum_fin(28, 36)
                self.sum4_init(38, 36)
                self.sum4(24, 38, 38)
                self.q_assemble(38, 40, 42)
                ls, _ = schedule(self.lines(self.qk))
                qk = [ls[len(ls) * k // 4:len(ls) * (k + 1) // 4] for k in range(4)]
            if T == tqk + 1:
                self.ml_off(22, 23)
                self.sexpr(100, L_WD, (sw, 2048))
                self.lin(16, 23, (2, 2, 6), (4, 2, 4))
                a("v_add_u32 v16, s100, v16", "v_lshl_add_u32 v17, v0, 2, s100")
                self.lds_or_zero(16, 23, 3)
                ls, _ = schedule(self.lines(self.softmax, 17, 22))
                qk = [ls[len(ls) * k // 4:len(ls) * (k + 1) // 4] for k in range(4)]
            if T == tqk + 2:
                self.stamp("softmax1")
            for p in pvat.get(T, ()):
                self.p_read(ORDER.index(p), 16, p & 1)
                a("s_waitcnt lgkmcnt(0)")
                self.pv_dense(p, p & 1)
            if T == self.ipf:
                a("s_getpc_b64 s[4:5]", "L_pc:", "s_add_u32 s4, s4, L_tail-L_pc", "s_addc_u32 s5, s5, 0")
                self.sexpr(100, 0, (sj, 512), (sw, 128))
                a("s_min_u32 s100, s100, L_codeend-L_tail-4", "v_mov_b32 v80, s100", "global_load_dword v80, v80, s[4:5]")
            if T == self.tml:
                ml1 = [self.ld(64, vA16, sMLld)]
                a(*ml1)
                self.sexpr(100, OFF_A, (sg, 1 << 17), (sj, 1024), (sw, 256))
                a("v_lshlrev_b32 v68, 7, v0")
                self.oob_unless(68, 69, "v_cmp_gt_u32 vcc, 2, v0")
                a(self.ld(68, 68, 100, n=1))
                tok_warm = self.flag_load(70, 32, False) if "f3" not in self.off else a("v_mov_b32 v70, 64")
            if T == (self.ttouch or self.tclr + 1) and "touch" not in self.off:
                self.touch_addr(81, 82)
                tok_warm = a("buffer_load_dword v81, v81, %s, 0 offen sc1" % srd(sWS))
            if T == self.clr1 > 1:
                tk = a.mark()
                a("s_cmp_eq_u32 s%d, 1" % sw, "s_cbranch_scc0 L_nof1")
                self.fill_cross(84, 1)
                a("L_nof1:")
                a.uncounted(tk)
            if T == self.tclr:
                self.sentinels(72)
                self.fill_intra(76, 77, 72, OFF_C, 320)
                self.fill_intra(78, 77, 72, LS, 448)
        if "bar" in self.off:
            a.l = [i for i in a.l if i.op != "s_barrier"]
        if "comp" in self.off:
            a.l = [i for i in a.l if not (i.mfma or i.trans or i.dot or i.dpp or i.op.startswith("v_pk"))]
        if "ds" in self.off:
            a.l = [i for i in a.l if not i.ds]
        self.stamp("issued")
        self.flag_check(70, 32, False, tok_warm, "L_f1")
        for k in (1, 2, 4):
            self.dpp("v_add_u32", 70, 70, 70, "row_ror:%d" % k)
        a("v_readfirstlane_b32 s100, v70", "s_cmpk_ge_u32 s100, 512", "s_cselect_b32 s100, 0, 4", "s_xor_b32 s100, s100, s%d" % svote,
          "s_bitcmp1_b32 s100, 2", "s_cselect_b32 s100, %s" % {0: "0, 0", 1: "0x2000, 0", 2: "0, 0x2000"}[self.near],
          "s_add_u32 s%d, s%d, s100" % (sBld, sBld), "s_add_u32 s%d, s%d, s100" % (sB2, sBst), "s_xor_b32 s%d, s%d, 0x2000" % (sBst, sB2))
        self.check_or_poll(ml1, [range(64, 68)], 69, "ml1", tok_warm)
        self.ml_finish(64)
        a("s_mov_b32 s%d, 1" % slayer)
        a(*[x for x in self.lines(self.weight_load, "d", 0, None, 62) if x.startswith("s_")])
        if self.lateg:
            a(*[x for x in self.lines(self.weight_load, "g", 0, None, 60) if x.startswith("s_")])
        for p in (5, 6, 7):
            self.p_read(ORDER.index(p), 16, p & 1)
            keep = len(a.l)
            self.tile_consume(17 + 2 * p)
            for k in range(4):
                if self.owait and self.owait[k] == p:
                    self.weight_issue("o", k, 31, 18)
            if p < 7:
                self.pv_dense(p, p & 1, lgkm=lambda i: 14 - 2 * i)
            else:
                pre = [i.text for i in a.l[keep:] if i.ds]
                self.sched(self.lines(self.pv_dense, p, p & 1) + self.lines(self.o_write, 8, 16, False), pre)
        self.n_after_o = min(a.mark() - self.wtok["o"], 60)
        self.stamp("pv1")

    def touch_addr(self, v, t):
        a = self.a
        self.sexpr(100, OFF_C, (sg, 1 << 17), (sj, 1280))
        a("v_lshl_add_u32 v%d, v0, 7, s100" % v)
        self.sexpr(100, LS - 2048, (sg, 1 << 17), (sj, 2048))
        a("v_lshl_add_u32 v%d, v0, 7, s100" % t, "v_cmp_gt_u32 vcc, 16, v0", "v_cndmask_b32 v%d, v%d, v%d, vcc" % (v, t, v),
          "s_mov_b32 vcc_lo, 0xffff03ff", "s_mov_b32 vcc_hi, 0", "s_cmp_eq_u32 s%d, 3" % sw, "s_cselect_b64 vcc, vcc, 0",
          "v_mov_b32 v%d, 0x%x" % (t, OOB), "v_cndmask_b32 v%d, v%d, v%d, vcc" % (v, t, v))

    def fill_cross(self, d, hop):
        self.sentinels(d)
        self.lin(d + 4, d + 5, (4, 2, 15), (3, 1, 13), (0, 3, 4))
        self.sexpr(100, (hop >> 1) * 0x4000 + (hop & 1) * 0x1000, (ss, 1 << 17), (sg, 512), (sb, 128))
        self.a("buffer_store_dwordx4 %s, v%d, %s, s100 offen sc1" % (q(d), d + 4, srd(sXW)))

    def st_cross(self, v):
        a = self.a
        for so in (sBst, sB2) if self.near else (sB2,):
            a("buffer_store_dword v%d, v95, %s, s%d offen sc1" % (v, srd(sXW), so))

    def red_loads(self, x, soff):
        return [self.ld(x + 4 * i, vA16, soff, i * 1024, rs=sXW) for i in range(4)]

    def prep_split(self, name, work, loads):
        a = self.a
        n = self.at[name][0]
        while n < len(work) and work[n].startswith(("s_cselect", "s_addc", "s_cbranch")):
            n += 1
        a(*work[:n])
        a("s_cmp_eq_u32 s%d, 0" % sw, "s_cbranch_scc0 L_%s_n" % name)
        self.idle(n - len(work))
        a(*loads)
        a("L_%s_n:" % name, *work[n:])
        self.est += (name, len(work))

    def reduce_x(self, name, x, d, soff):
        a = self.a
        self.poll(self.red_loads(x, soff), [range(x + 4 * i, x + 4 * i + 4) for i in range(4)], 7, name,
                  lambda i: self.mfma(d, q(x + 4 * i), q(vSEL), i > 0), issued=1)
        m = "s[%d:%d]" % (sM1, sM1 + 1)
        a("v_cndmask_b32 v%d, v%d, v%d, %s" % (d, d, d + 1, m), "v_cndmask_b32 v%d, v%d, v%d, %s" % (d + 2, d + 2, d + 3, m),
          "v_permlane32_swap_b32 v%d, v%d" % (d, d + 2), "v_add_f32 v%d, v%d, v%d" % (vRES, vRES, d),
          "v_add_f32 v%d, v%d, v%d" % (vRES, vRES, d + 2))
        self.pack_pairs(7, vRES)

    def x_off(self, v, t, bs):
        self.lin(v, t, (5, 1, bs), (4, 1, bs + 1), (0, 4, 1))
        self.even_only(v, t)

    def layer1(self, name):
        self.a("s_cmp_eq_u32 s%d, 1" % slayer, "s_cbranch_scc0 " + name)

    def chain(self):
        a = self.a
        a("L_tail:")
        self.lin(23, 6, (2, 4, 4), (1, 1, 10), (0, 1, 3))
        self.sexpr(sclr, L_SCR, (sw, 256))
        a("v_add_u32 v23, s%d, v23" % sclr, "s_waitcnt lgkmcnt(0)", "s_barrier")
        for src in range(4):
            a("ds_read_b64 %s, v23 offset:%d" % (q(8 + 2 * src, 2), src * 2048))
        self.lin(17, 16, (4, 2, 11), (2, 2, 8), (0, 2, 2))
        self.lin(56, 16, (2, 2, 9), (4, 2, 7), (2, 2, 5), (0, 2, 3))
        a("s_waitcnt lgkmcnt(2)", "v_pk_add_f32 v[8:9], v[8:9], v[10:11]", "s_waitcnt lgkmcnt(0)", "v_pk_add_f32 v[12:13], v[12:13], v[14:15]",
          "v_pk_add_f32 v[8:9], v[8:9], v[12:13]", "v_cvt_pk_bf16_f32 v7, v8, v9")
        self.st_intra("buffer_store_dword", "v7", 17, sAst)
        self.stamp("Apub", True)
        self.sexpr(100, L_WO, (sw, 4096))
        a("v_add_u32 v56, s100, v56")
        for t in range(1, 4):
            a("v_xor_b32 v%d, %d, v56" % (56 + t, t << 5))
        a("s_waitcnt vmcnt(%d)" % (1 + self.n_after_o))
        for t in range(4):
            for h in range(2):
                a("ds_read_b64_tr_b16 %s, v%d offset:%d" % (q(24 + 4 * t + 2 * h, 2), 56 + t, h * 2048))
        lda = [self.ld(8 + 4 * h, vA16, sAld, h * 1024) for h in range(2)]

        def prep_a():
            self.lin(5, 19, (4, 2, 11), (0, 4, 4))
            self.sexpr(100, L_SCR, (sw, 4))
            self.a("v_add_u32 v94, s100, v5", "v_add_u32 v5, s%d, v5" % sclr, "v_lshlrev_b32 v95, 1, v0")
            self.even_only(95, 19)
            self.a(*[x for x in self.lines(self.weight_load, "d", 0, None, 62) if x.startswith("v_")])
            if self.lateg:
                self.a(*[x for x in self.lines(self.weight_load, "g", 0, None, 60) if x.startswith("v_")])
        n = self.with_loads("pollA", self.lines(prep_a), lda)
        a("s_waitcnt lgkmcnt(0)")

        def o_mfma(ts):
            for t in ts:
                self.mfma(40 + 4 * t, q(8), q(24 + 4 * t), False)
                self.mfma(40 + 4 * t, q(12), q(24 + 4 * t), True)
        self.poll(lda, [range(8, 12), range(12, 16)], 7, "pollA", lambda h: o_mfma([0]) if h else None, issued=n)

        def o_rest():
            o_mfma([1, 2, 3])
            for t in range(4):
                d = 40 + 4 * t
                self.a("v_add_f32 v%d, v%d, v%d" % (d, d, d + 1), "v_add_f32 v%d, v%d, v%d" % (d + 2, d + 2, d + 3),
                       "v_add_f32 v%d, v%d, v%d" % (20 + t, d, d + 2))
        ls = self.lines(o_rest)
        a(*ls[:3], ls[6], ls[7], ls[3], ls[8], ls[4], ls[5], *ls[9:12], "ds_write_b64 v5, v[20:21]", *ls[12:])
        a("ds_write_b64 v5, v[22:23] offset:8")
        self.late_loads("L_l1b")
        a("s_waitcnt lgkmcnt(0)", "s_barrier",
          "ds_read2st64_b32 v[16:17], v94 offset0:0 offset1:1", "ds_read2st64_b32 v[22:23], v94 offset0:2 offset1:3",
          "s_waitcnt lgkmcnt(1)")
        fin = self.lines(self.gemv4_fin, 7, 16)
        a(fin[0], "s_waitcnt lgkmcnt(0)", *fin[1:])
        self.st_cross(7)
        self.stamp("Bpub", True)
        if self.two("pollA"):
            a("s_waitcnt vmcnt(%d)" % (2 if self.near else 1))
        self.colsum_ld(80, OFF_CSG, sb)
        self.layer1("L_l1c")
        self.colsum_ld(24, OFF_CSQ, sw)
        if not self.clr2:
            self.sentinels(72)
            self.lin(76, 77, (3, 3, 12), (0, 3, 4))
            a("s_and_b32 s100, s%d, 0xffffdfff" % sBst, "s_add_u32 s100, s100, 0x4000")
            self.oob_unless(76, 77, "v_cmp_gt_u32 vcc, 32, v0")
            a("buffer_store_dwordx4 v[72:75], v76, %s, s100 offen sc1" % srd(sXW))
        a("L_l1c:")
        wt = self.lines(self.w_tiles, [("d", vWD)], 91, 7)

        def prep_b():
            a = self.a
            self.w_tiles([("g", vWG), ("q", vWQ)], 5, 7)
            a("v_and_b32 v5, 1, v0", "v_lshlrev_b32 v5, 4, v5", "v_lshlrev_b32 v5, v5, s%d" % sLO, "v_bfe_u32 v6, v0, 1, 2")
            for r in range(4):
                a("v_cmp_eq_u32 vcc, %d, v6" % r, "v_cndmask_b32 v%d, 0, v5, vcc" % (vSEL + r))
            self.x_off(94, 7, 6)
            self.lin(93, 7, (2, 4, 8), (0, 2, 4))
            a("s_bitcmp1_b32 s%d, 0" % sact, "s_cselect_b32 s%d, 0, -1" % stmp)
            self.part_off(92, 7, 10, "s%d" % stmp)
            self.lin(89, 7, (0, 5, 2), (5, 1, 1))
            self.sexpr(100, L_H, (sw, 128))
            a("v_add_u32 v89, s100, v89")
            self.mk_ix(90)
            self.lin(88, 7, (2, 2, 7), (0, 1, 4), (4, 2, 5))
            a("v_add_u32 v88, 0x%x, v88" % L_H)
            a(*[x for x in wt if not x.startswith("ds_")])
            self.sexpr(stmp, 0, (sRow, 1), (sw, 64))
            a("s_add_u32 s%d, s%d, 0x1000" % (sBst, sBst), "s_add_u32 s%d, s%d, 0x1000" % (sB2, sB2))
        self.prep_split("pollB", self.lines(prep_b), self.red_loads(vX, sBld))
        aux = [self.ld(vX + 4, 93, stmp)]
        a("s_waitcnt lgkmcnt(0)", "s_cmp_eq_u32 s%d, 0" % sw, "s_cbranch_scc0 L_nored1")
        self.cold += ["L_nored1:"]
        if self.clr2:
            self.cold += (["s_lshl2_add_u32 s100, s%d, s%d" % (slayer, sw), "s_cmp_eq_u32 s100, 5", "s_cbranch_scc0 L_nof2"]
                          + self.lines(self.fill_cross, vX, 2) + ["L_nof2:"])
        if self.wb & 4:
            self.cold += ["s_lshl_b32 s100, s%d, 2" % sj, "s_add_u32 s100, s100, s%d" % sw, "s_lshl_b32 s100, s100, 2", "s_add_u32 s100, s100, s%d" % slayer,
                          "s_cmp_eq_u32 s100, 14", "s_cbranch_scc0 L_nowb4", "buffer_wbl2 sc1", "L_nowb4:"]
        self.cold += ["s_waitcnt vmcnt(0)", "s_branch L_red1"]
        self.reduce_x("pollB", vX, vD, sBld)
        self.st_intra("buffer_store_dword", "v7", 94, sXst)
        a("v_lshlrev_b32 v%d, 16, v7" % vRES)
        self.stamp("XBpub", True)
        a("L_red1:", "s_barrier")
        ldx = [self.ld(vX, vA16, sXld)]
        n = self.with_loads("pollXB", self.lines(self.colsum_fin, 24, vCQ) + [x for x in wt if x.startswith("ds_")]
                            + self.lines(self.colsum_fin, 80, vCG) + self.lines(self.gemv_zero, vD), ldx)
        self.poll(ldx, [range(vX, vX + 4)], 7, "pollXB", lambda i: self.gemv4(vX, vWG, vD, 90), issued=n, then=aux)
        self.gemv4_fin(6, vD)
        self.st_intra("buffer_store_dword", "v6", 92, sCst)
        self.stamp("Cpub", True)
        a("v_mov_b32 v5, 0", "s_bitcmp1_b32 s%d, 1" % sact, "s_cbranch_scc0 L_nod")
        ldc = [self.ld(vX, vA16, sCld)]
        self.check_or_poll(aux, [range(vX + 4, vX + 8)], 7, "auxB", a.mark() - 1)
        n = self.with_loads("pollC", self.lines(self.stats, vX + 4, vD, False) + self.lines(self.sum4_init, vD + 2, vCG), ldc)
        self.poll(ldc, [range(vX, vX + 4)], 7, "pollC", lambda i: self.sum4(vX, vD, vD + 2), issued=n)
        a("v_permlane32_swap_b32 v%d, v%d" % (vD, vD + 1), "v_mul_f32 v%d, s%d, v%d" % (vD, sSC, vD),
          "v_mul_f32 v%d, v%d, v%d" % (vD, vD, vD + 1), "v_cvt_pk_bf16_f32 v%d, v%d, v%d" % (vD, vD, vD),
          "ds_write_b16 v89, v%d" % vD, "v_mov_b64 %s, 0" % q(vD + 4, 2), "s_waitcnt lgkmcnt(0)", "s_barrier", "ds_read_b128 %s, v88" % q(vX + 4), "s_waitcnt lgkmcnt(0)")
        self.smf(vD + 4, q(vX + 4), q(vWD, 8), 90)
        a("v_add_f32 v7, v%d, v%d" % (vD + 4, vD + 5))
        self.pack_pairs(5, 7)
        a("L_nod:")
        self.st_cross(5)
        self.stamp("Dpub", True)
        a("s_add_u32 s%d, s%d, 0x1000" % (stmp, sBld))
        self.layer1("L_last")
        a("s_waitcnt vmcnt(%d) lgkmcnt(0)" % (2 if self.near else 1))

        def prep_d():
            a = self.a
            a("v_mov_b32 v28, v94", "v_mov_b32 v30, v93", "s_add_u32 s%d, s%d, 0x3000" % (sBst, sBst),
              "s_add_u32 s%d, s%d, 0x3000" % (sB2, sB2), "s_add_u32 s%d, s%d, 0x4000" % (sBld, sBld))
            self.mk_ai()
            self.s_zero()
            self.part_off(29, 7, 12)
            self.q_addrs(31, 48, 7)
            self.lin(5, 7, (2, 2, 6), (5, 1, 8), (4, 1, 5), (0, 1, 4))
            self.sexpr(100, L_WQ, (sw, QSTR))
            a("v_add_u32 v5, s100, v5")
            self.lds_or_zero(5, 7, 2)
            self.ml_off(6, 7)
            self.sexpr(98, OFF_XD - OFF_XB, (sRow, 1), (sb, 64))
            a("s_add_u32 s%d, s%d, 0x%x" % (sclr, sXst, OFF_XD - OFF_XB), "s_add_u32 s99, s%d, 0x%x" % (sXld, OFF_XD - OFF_XB))
        self.prep_split("pollD", self.lines(prep_d), self.red_loads(8, stmp))
        a("s_waitcnt lgkmcnt(0)", "s_cmp_eq_u32 s%d, 0" % sw, "s_cbranch_scc0 %s" % ("L_fill3" if self.clr2 else "L_nored2"), "L_redd:")
        if self.clr2:
            self.cold += ["L_fill3:", "s_cmp_eq_u32 s%d, 1" % sw, "s_cbranch_scc0 L_nored2"] + self.lines(self.fill_cross, 16, 3) + ["s_branch L_nored2"]
        self.reduce_x("pollD", 8, 24, stmp)
        self.st_intra("buffer_store_dword", "v7", 28, sclr)
        a("s_cmp_eq_u32 s%d, 2" % slayer, "s_cbranch_scc1 L_out")
        a("v_lshlrev_b32 v%d, 16, v7" % vRES)
        self.stamp("XDpub")
        a("L_nored2:", "s_barrier")
        row = [self.ld(24, 30, 98)]
        ldx = [self.ld(52, vA16, 99)]
        n = self.with_loads("pollXD", self.lines(self.gemv_zero, 8), ldx)
        self.poll(ldx, [range(52, 56)], 7, "pollXD", lambda i: self.gemv4(52, vWQ, 8, vIX), issued=n, then=row)
        self.gemv4_fin(10, 8)
        self.st_intra("buffer_store_dword", "v10", 29, sEst)
        self.stamp("Epub")
        lde = [self.ld(52, vA16, sEld)]
        self.check_or_poll(row, [range(24, 28)], 7, "rowD", a.mark() - 1)
        n = self.with_loads("pollE", self.lines(self.stats, 24, 32, True) + self.lines(self.sum4_init, 34, vCQ), lde)
        self.poll(lde, [range(52, 56)], 7, "pollE", lambda i: self.sum4(52, 32, 34), issued=n)
        self.stamp("Eget")
        rd = self.q_assemble(32, 31, 48, self.lines(self.next_region) + ["s_mov_b32 s%d, 2" % slayer])
        for i in range(7):
            a("v_mov_b64 %s, 0" % q(vO + 4 * i, 2))
        if self.stamps is not True:
            self.stamp("qrdy")
        ldm = [self.ld(16, vA16, sMLld)]

        def att():
            a = self.a
            self.qk()
            a("s_waitcnt vmcnt(0) ; guards=v[52:55] after=v%d" % (vS + 20))
            a("v_subrev_u32 v23, 0x%x, v31" % (L_Q - L_WQ))
            a("v_mov_b64 %s, 0" % q(vO + 28, 2))
            self.softmax(23, 6)
            for d in self.mlat:
                a(ldm[0] + " ; lat=%d tail=%d" % (d, self.mltail))
            for h in range(2):
                self.v_reads(5 + h, lambda i, e: q(8 * i + 4 * h + 2 * e, 2, "a"))
            self.v_reads(7)
            for n in range(4):
                self.p_read(2 * n, 5, n & 1)
                for i in range(8):
                    B = q(128 + 64 * n + 8 * i, 8) if n < 2 else q(8 * i, 8, "a") if n == 2 else "vp[%d]" % i
                    self.smf(vO + 4 * i, q(vQ + 4 * (n & 1)), B)
        ls = [x + " prio=%d" % self.p0 if x.endswith("mem=p0") else x for x in self.lines(att)]
        cut = len(ls) - self.mlcut
        out, t1 = schedule(ls[:cut], rd)
        if self.wb & 2:
            k = out.index("s_waitcnt vmcnt(0)") + 1
            out[k:k] = ["s_cmp_eq_u32 s%d, 0" % slead, "s_cbranch_scc0 L_nowb2", "buffer_wbl2 sc1", "L_nowb2:"]
        if self.stamps and self.stamps is not True:
            k = max(i for i, x in enumerate(out) if x.startswith("buffer_store")) + 1
            out[k:k] = self.lines(self.stamp, "mlpub")
            k = min(i for i, x in enumerate(out) if x.startswith("v_pk_fma"))
            out[k:k] = self.lines(self.stamp, "maxed")
        a(*out)
        a("s_waitcnt lgkmcnt(0)")
        if self.stamps is not True:
            self.stamp("pv2a")
        L = a.lab("ml2")
        a(L + "_w:")
        self.check([range(16, 20)], 6, len(self.mlat))
        a("s_cbranch_vccnz " + L)
        if self.stamps is not True:
            self.stamp("mlget")
        fin = self.lines(self.ml_finish, 16)
        fin = ["v_sub_f32 v58, v16, v20", "v_sub_f32 v59, v18, v20", "v_exp_f32 v58, v58", "v_exp_f32 v59, v59",
               "v_mul_f32 v7, v58, v17", "v_fmac_f32 v7, v59, v19"] + fin[6:]
        t2 = self.sched([x + " ; prio=200" for x in fin] + ls[cut:] + self.lines(self.o_write, 8, 60, True))
        a("s_waitcnt vmcnt(0)")
        self.est += (t1, t2)
        self.stamp("pv2")
        a("s_branch L_tail", L + ":", *ldm)
        a(*self.spin_count())
        a("s_branch %s_w" % L)
        a("L_last:", "s_lshr_b32 s100, s%d, 2" % sj, "s_xor_b32 s100, s100, s%d" % sg, "s_or_b32 s100, s100, s%d" % sw,
          "s_cmp_eq_u32 s100, 0", "s_cbranch_scc0 %s" % ("L_wb" if self.wb & 1 else "L_fin"))
        if self.wb & 1:
            self.cold += ["L_wb:", "s_cmp_eq_u32 s%d, 0" % slead, "s_cbranch_scc0 L_fin", "buffer_wbl2 sc1", "s_branch L_fin"]
        self.x_off(28, 7, 10)
        self.mk_srd(sWF, sOUT, "4096")
        a("s_lshl_b32 s%d, s%d, 5" % (sclr, sj))
        self.idle(self.at["last"][0])
        a(*self.red_loads(8, stmp))
        a("s_branch L_redd")
        a("L_out:")
        if self.probe:
            self.stamp("out")
            k = self.stamp_names.index(self.probe)
            a("v_readlane_b32 s100, v4, %d" % k, "v_readlane_b32 s101, v4, 0", "s_sub_u32 s100, s100, s101", "s_lshl_b32 s100, s100, 2",
              "s_min_u32 s100, s100, 100000", "s_memrealtime s[0:1]", "s_waitcnt lgkmcnt(0)", "s_mov_b32 s101, s0",
              "L_probe:", "s_memrealtime s[0:1]", "s_waitcnt lgkmcnt(0)", "s_sub_u32 s0, s0, s101", "s_cmp_lt_u32 s0, s100",
              "s_cbranch_scc1 L_probe")
        a("L_fin:")
        if self.stamps and not self.probe:
            self.stamp("end")
            a("s_lshl_b32 s100, s2, 2", "s_add_u32 s100, s100, s%d" % sw, "s_lshl_b32 s100, s100, 7",
              "s_add_u32 s100, s100, 0x%x" % (STAMP_OFF - 2 * LS), "s_mov_b32 s%d, 0x1000000" % (sWS + 2),
              "v_writelane_b32 v4, s%d, 30" % sspin, "v_writelane_b32 v4, s%d, 31" % (sWF + 2),
              "v_lshlrev_b32 v9, 2, v0", "v_cmp_gt_u32 vcc, 32, v0", "s_and_saveexec_b64 s[98:99], vcc",
              "buffer_store_dword v4, v9, %s, s100 offen sc1" % srd(sWS))
            if self.dbgstamps:
                a("v_readlane_b32 s100, v4, 0", "s_not_b32 s100, s100", "v_writelane_b32 v4, s100, 15",
                  "v_cmp_gt_u32 vcc, 16, v0", "s_and_saveexec_b64 s[98:99], vcc",
                  "buffer_atomic_umax v4, v9, %s, 0 offen sc1" % srd(sDBG))
        a("L_end:", "s_endpgm")
        a(*self.cold)
        a("L_codeend:")

    def build(self):
        self.prologue()
        self.stream()
        self.chain()
        self.a.pad()
        if self.win:
            self.est += align(self.a, self.win, "L_novote")
        head = open("cdna_kernels/" + KNAME[:-7] + ".s.ref").read().split("; Override launch")[0]
        return (head + "; @launch grid=(256,1,1) block=(256,1,1) lds=163840\n"
                '.amdgcn_target "amdgcn-amd-amdhsa--gfx950"\n.text\n.globl %s\n.p2align 8\n.type %s,@function\n%s:\n' % (KNAME, KNAME, KNAME)
                + self.a.text() +
                '.section .rodata,"a"\n.p2align 6\n.amdhsa_kernel %s\n  .amdhsa_next_free_vgpr 512\n  .amdhsa_next_free_sgpr 102\n'
                "  .amdhsa_accum_offset 256\n  .amdhsa_group_segment_fixed_size 0\n  .amdhsa_kernarg_size 96\n"
                "  .amdhsa_user_sgpr_count 2\n  .amdhsa_user_sgpr_kernarg_segment_ptr 1\n  .amdhsa_system_sgpr_workgroup_id_x 1\n"
                ".end_amdhsa_kernel\n" % KNAME)


if __name__ == "__main__":
    out = sys.argv[1]
    kw = eval("dict(%s)" % (sys.argv[2] if len(sys.argv) > 2 else ""))
    g = Gen(**kw)
    s = g.build()
    open(out, "w").write(s)
    if len(sys.argv) > 3:
        print("estimated attention cycles", g.est)
    if g.stamps:
        open(out[:-2] + ".names", "w").write("\n".join(g.stamp_names))
```

```python
import struct
import sys
from asmlib import Asm, align, schedule

KNAME = "interleave_layers__gqa_block_cached__glu_gated_bilinear__decode_kernel"

LS = 1 << 20
OFF_ML, OFF_A, OFF_C, OFF_XB, OFF_XD, OFF_E = 0, 4 << 10, 36 << 10, 52 << 10, 56 << 10, 60 << 10
OFF_CSG, OFF_CSQ = 56 << 10, 64 << 10
WS_SIZE = 3 * LS
T1 = [(OFF_C, 10), (LS + OFF_ML, 1)]
OFF_XW = 5 << 20
STAMP_OFF = 8 << 20
OOB = 0x7FFF0000

RING = 24576
L_WQ = 4 * RING
L_WO = L_WQ + 16384
L_WG = L_WO + 16384
L_WD = L_WG + 16384
L_SCR = L_WD + 8192
L_H = L_SCR + 1024
L_Q, QSTR = L_SCR + 1536, 2112
L_OOB = 0x30000
assert L_SCR + 8192 == 163840

sK, sV, sWS, sWF, sWL, sOUT, sDBG, sXI, sT = 28, 32, 36, 40, 44, 48, 52, 56, 96
sw, sg, sj, sb, ss, su, sring, srot, stmp, slayer = range(60, 70)
(sMLst, sMLld, sAst, sAld, sBst, sBld, sXst, sXld, sCst, sCld, sCS, sS1, sSC, sRow, sEst, sEld) = range(70, 86)
sWo, sWl = 86, 87
sM1, sstep = 88, 90
sspin, scmp = 94, 95
sclr, slead, sact = 3, 14, 15
sLO, sHI = 6, 7
sXW, sB2, svote = 24, 23, 22
searly = 10
sWo2, sWl2 = 8, 9
SPIN_LIMIT = 1 << 18

vL, vA16, vTRV, vRES = 0, 1, 2, 3
vQ, vO, vIX, vAI, vS = 8, 24, 56, 56, 64
vWG, vWD, vWQ, vCG, vCQ, vSEL, vX, vD = 8, 24, 32, 48, 50, 52, 56, 72
vKS, vKR = 240, 244
ORDER = [0, 1, 2, 3, 5, 6, 7, 4]
SLOT = {5: 2, 6: 4, 7: 0}
SCALE = 128 ** -0.5 * 1.4426950408889634
ONES = "0x3f803f80"


def f32(x):
    return "0x%08x" % struct.unpack("<I", struct.pack("<f", x))[0]


def q(r, n=4, k="v"):
    return "%s[%d:%d]" % (k, r, r + n - 1)


def srd(r):
    return "s[%d:%d]" % (r, r + 3)


class Gen:
    def __init__(self, depth=6, burst=4, stamps=False, force_slow=False, skip="", wpol="nt", kvpol="nt",
                 dbgstamps=False, tq=(2, 2, 3, 3), tg=(6, 6, 7, 7), to=(31, 31, 31, 31), lag=2, probe=None, cyc=False,
                 d0={5: 8, 6: 8}, tclr=25, dbl="pollXB,pollC,pollXD,pollE", gap=1, near=1, at={}, ipf=24,
                 sync=(4, 6, 9, 11, 13, 16, 18), wb=False, mlat=(208, 84), mltail=500, mlcut=1, p0=400, win=32, ipf0=False, back={}, outpol='sc1', ubits=(12, 13, 14, 15, 16), rot=(1, 4), tbits=None, off='', bars=(), early=None, eth=7, etill=32, estat=None, stpol='', clr2=1, clr1=4, clrw=None, clrpol='sc1', lateg=0, tml=27, ttouch=None, obar=False, tsplit=3, fstr=4, fstr2=4, tlb='', ttlb=1, owait=(6, 6, 6, 6), dup=False):
        self.__dict__.update(locals())
        self.a = Asm()
        self.nst = 0
        self.cold = []
        self.nslow = 0
        self.est = ()
        self.tbits = tbits or tuple(b for b in range(12, 21) if b not in ubits)
        self.at = dict(pollA=(30, 14), pollB=(94,), pollXB=(8, 19), pollC=(5, 15), pollD=(84,), pollXD=(2, 16), pollE=(6, 14), last=(128,))
        self.at.update(at)
        assert self.two("pollXB") and self.two("pollXD")
        self.stamp_names = []

    def stamp(self, name, per_layer=False):
        if not self.stamps or (self.stamps is not True and name not in self.stamps):
            return
        a = self.a
        k = self.nst
        self.nst += 2 if per_layer else 1
        assert self.nst <= 28
        a("%s s[0:1]" % ("s_memtime" if self.cyc else "s_memrealtime"), "s_waitcnt lgkmcnt(0)")
        if per_layer:
            self.stamp_names += [name + "/1", name + "/2"]
            a("s_add_u32 m0, s%d, %d" % (slayer, k - 1), "v_writelane_b32 v4, s0, m0")
        else:
            self.stamp_names.append(name)
            a("v_writelane_b32 v4, s0, %d" % k)

    def mk_srd(self, d, p, size):
        self.a("s_mov_b32 s%d, s%d" % (d, p), "s_mov_b32 s%d, s%d" % (d + 1, p + 1),
               "s_mov_b32 s%d, %s" % (d + 2, size), "s_mov_b32 s%d, 0x20000" % (d + 3))

    def lin(self, d, t, *terms):
        first = True
        for sh, bits, sc in terms:
            r = d if first else t
            if sh + bits >= 6:
                src = vL
                if sh:
                    self.a("v_lshrrev_b32 v%d, %d, v0" % (r, sh)); src = r
            elif sh == 0:
                self.a("v_and_b32 v%d, %d, v0" % (r, (1 << bits) - 1)); src = r
            else:
                self.a("v_bfe_u32 v%d, v0, %d, %d" % (r, sh, bits)); src = r
            if first:
                if sc or src != d:
                    self.a("v_lshlrev_b32 v%d, %d, v%d" % (d, sc, src))
            else:
                self.a("v_lshl_add_u32 v%d, v%d, %d, v%d" % (d, src, sc, d))
            first = False

    def sexpr(self, d, const, *terms):
        a = self.a
        first = True
        for reg, mult in terms:
            r = d if first else 101
            if mult & (mult - 1) == 0:
                a("s_lshl_b32 s%d, s%d, %d" % (r, reg, mult.bit_length() - 1))
            else:
                a("s_mul_i32 s%d, s%d, %d" % (r, reg, mult))
            if not first:
                a("s_add_u32 s%d, s%d, s101" % (d, d))
            first = False
        if const:
            a("s_add_u32 s%d, s%d, 0x%x" % (d, d, const))

    def oob_unless(self, v, t, cond):
        self.a(cond, "v_mov_b32 v%d, 0x%x" % (t, OOB), "v_cndmask_b32 v%d, v%d, v%d, vcc" % (v, t, v))

    def even_only(self, v, t, cmp="0"):
        self.a("v_and_b32 v%d, 1, v0" % t)
        self.oob_unless(v, t, "v_cmp_eq_u32 vcc, %s, v%d" % (cmp, t))

    def st_intra(self, op, data, voff, soff, both=False):
        a = self.a
        slow = "%s %s, v%d, %s, s%d offen sc1" % (op, data, voff, srd(sWL), soff)
        a("%s %s, v%d, %s, s%d offen %s" % (op, data, voff, srd(sWF), soff, self.stpol))
        if both or self.dup:
            tk = a.mark()
            a(slow)
            a.uncounted(tk)
            return
        self.nslow += 1
        L = "L_slow%d" % self.nslow
        a("s_cmp_eq_u32 s%d, 0" % (sWF + 2), "s_cbranch_scc1 " + L, L + "_b:")
        self.cold += [L + ":", slow, "s_branch %s_b" % L]

    def ld(self, r, voff, soff, off=0, n=4, rs=sWS):
        return "buffer_load_dword%s %s, v%d, %s, s%d offen offset:%d sc1" % (
            "x%d" % n if n > 1 else "", q(r, n) if n > 1 else "v%d" % r, voff, srd(rs), soff, off)

    def spin_count(self):
        return ["s_add_u32 s%d, s%d, 1" % (sspin, sspin), "s_cmp_lt_u32 s%d, 0x%x" % (sspin, SPIN_LIMIT), "s_cselect_b32 s%d, -2, -1" % scmp]

    def two(self, name):
        return name in self.dbl.split(",")

    def rounds(self, name):
        return 1 + self.dbl.split(",").count(name)

    def poll(self, loads, regs, acc, name, spec=None, issued=0, then=()):
        a = self.a
        L = a.lab(name)
        k = self.rounds(name)
        n = len(loads)
        for r in range(issued, k):
            if r:
                a("s_sleep %d" % self.gap)
            a(*loads)
        a("s_branch %s_w" % L, L + ":")
        b = self.back.get(name, self.back.get("*", 0)) if k > 1 or name in self.back else 0
        for _ in range(b // 16):
            a("s_nop 15")
        if b % 16:
            a("s_nop %d" % (b % 16 - 1))
        a(*loads)
        a(*self.spin_count())
        a(L + "_w:")
        self.check(regs, acc, k * n, spec if k == 1 else None)
        a("s_cbranch_vccnz " + L, *then)
        if k > 1 and spec:
            for r in range(n):
                spec(r)
        if self.stamps is not True:
            self.stamp(name, True)

    def idle(self, n):
        if n >= 16:
            self.a("s_sleep %d" % (n // 16))
        if n > 0 and n % 16:
            self.a("s_nop %d" % (n % 16 - 1))

    def with_loads(self, name, work, loads):
        pos = 0
        for d in self.at[name][:self.rounds(name)]:
            self.a(*work[pos:pos + d])
            self.idle(pos + d - max(pos, len(work)))
            self.a(*loads)
            pos += d
        self.a(*work[pos:])
        return self.rounds(name)

    def check(self, regs, acc, n, spec=None):
        a = self.a
        have, rr = None, []
        for i, part in enumerate(regs):
            if n:
                a("s_waitcnt vmcnt(%d)" % (n - 1 - i))
            if spec:
                spec(i)
            rr += list(part)
            last = i == len(regs) - 1
            while rr:
                pool = ([have] if have is not None else []) + rr
                if len(pool) >= 3:
                    a("v_max3_u32 v%d, v%d, v%d, v%d" % (acc, *pool[:3])); rr = pool[3:]; have = acc
                elif not last:
                    break
                elif len(pool) == 2:
                    a("v_max_u32 v%d, v%d, v%d" % (acc, *pool)); rr = []; have = acc
                else:
                    have = pool[0]; rr = []
        a("v_cmp_lt_u32 vcc, s%d, v%d" % (scmp, have))

    def check_or_poll(self, loads, regs, acc, name, wait, pre=()):
        a = self.a
        tk = a.mark()
        a("s_branch L_%s_c" % name, "L_%s_r:" % name, *pre)
        a(*loads)
        a(*self.spin_count())
        a("s_waitcnt vmcnt(0)", "L_%s_c:" % name)
        a.uncounted(tk)
        a.wait_vm(wait)
        self.check(regs, acc, 0)
        a("s_cbranch_vccnz L_%s_r" % name)

    def mfma(self, d, A, B, c):
        self.a("v_mfma_f32_16x16x32_bf16 %s, %s, %s, %s" % (q(d), A, B, q(d) if c else "0"))

    def smf(self, d, A, B, ix=None):
        self.a("v_smfmac_f32_16x16x64_bf16 %s, %s, %s, v%d" % (q(d), A, B, ix or vIX))

    def mk_ix(self, v):
        self.a("v_and_b32 v%d, 1, v0" % v, "v_mul_u32_u24 v%d, 0xaaaa, v%d" % (v, v), "v_add_u32 v%d, 0x4444, v%d" % (v, v))

    def dpp(self, op, d, s0, s1, ctl, rm="0xf"):
        self.a("%s_dpp v%d, v%d, v%d %s row_mask:%s bank_mask:0xf" % (op, d, s0, s1, ctl, rm))

    def pack_pairs(self, d, v):
        self.a("v_mov_b32_dpp v%d, v%d quad_perm:[1,1,3,3] row_mask:0xf bank_mask:0xf" % (d, v),
               "v_cvt_pk_bf16_f32 v%d, v%d, v%d" % (d, v, d))

    def scatter(self, d, src, bits, first):
        a = self.a
        k = 0
        while k < len(bits):
            n = 1
            while k + n < len(bits) and bits[k + n] == bits[k] + n:
                n += 1
            r = d if first else 101
            a("s_and_b32 s%d, s%d, %d" % (r, src, ((1 << n) - 1) << k), "s_lshl_b32 s%d, s%d, %d" % (r, r, bits[k] - k))
            if not first:
                a("s_or_b32 s%d, s%d, s101" % (d, d))
            first = False
            k += n

    def tile_issue(self, T, between=None):
        a = self.a
        mask = sum(1 << b for b in self.tbits)
        if T:
            a("s_or_b32 s%d, s%d, 0x%x" % (srot, srot, ~mask & 0xffffffff), "s_add_u32 s%d, s%d, 1" % (srot, srot),
              "s_and_b32 s%d, s%d, 0x%x" % (srot, srot, mask))
        a("s_or_b32 s%d, s%d, s%d" % (stmp, srot, sstep), "s_add_u32 m0, s%d, %d" % (sring, (T % 6) * 4096))
        if T >= 6:
            a("s_waitcnt lgkmcnt(%d)" % (0 if between else 1))
        for jj in range(4):
            self.throttle(T, 4 * T + jj >= 128 - self.burst)
            va = vKS + jj if T < 16 else 5 + (jj & 1)
            a("buffer_load_dwordx4 v%d, %s, s%d offen offset:%d %s lds" % (va, srd(sK if T < 16 else sV), stmp, jj * 1024, self.kvpol))
            self.ltok.append(a.mark())
            self.tok[T] = a.mark()
            if between:
                between(jj)
        if 16 <= T < 31:
            a("v_xor_b32 v5, 64, v5", "v_xor_b32 v6, 64, v6")

    def throttle(self, T, burst):
        d = self.d0.get(T, self.depth) if self.d0 else self.depth
        if T > 1 and not burst and d < len(self.ltok):
            a = self.a
            e = self.early[T % len(self.early)] if self.early and self.sync[1] < T < self.etill else d
            a.wait_vm(self.ltok[-d])
            if e < d:
                L = a.lab("th")
                a("s_cmp_eq_u32 s%d, 0" % searly, "s_cbranch_scc1 " + L)
                a.wait_vm(self.ltok[-e])
                a(L + ":")

    def vreg(self, p, i):
        return 128 + 64 * (p >> 1) + 8 * i + 4 * (p & 1) if p < 4 else (96 if p == 4 else vS) + 4 * i

    def v_reads(self, p, dst=None):
        slot = (16 + 2 * p) % 6
        for i in range(8):
            for h in range(2):
                d = dst(i, h) if dst else q(self.vreg(p, i) + 2 * h, 2)
                self.a("ds_read_b64_tr_b16 %s, v%d offset:%d ; mem=v" % (d, vAI + i if i else vTRV, slot * 4096 + h * 512))

    def tile_consume(self, T):
        a = self.a
        if T < 16:
            a.wait_vm(self.tok[T])
            for st in range(4):
                a("ds_read_b128 %s, v%d offset:%d" % (q(16 * T + 4 * st, 4, "a"), vKR + st, (T % 6) * 4096))
        elif T & 1:
            a.wait_vm(self.tok[T])
            self.v_reads((T - 16) >> 1)

    def mk_ai(self):
        for i in range(1, 8):
            self.a("v_xor_b32 v%d, %d, v%d" % (vAI + i, i << 5, vTRV))
        self.mk_ix(vIX)

    def weight_load(self, kind, k, T, va=52):
        a = self.a
        t = va + 1
        pitch = {"q": 8192, "g": 3584, "d": 1024, "o": 1024}[kind]
        if k == 0:
            if kind == "o":
                self.lin(va, t, (5, 1, 14), (3, 2, 10), (0, 3, 4))
                self.mk_srd(sT, 12, "0x400000")
                self.sexpr(sWo, 0, (sg, 512 * 1024), (sb, 128 * 1024), (sw, 4096), (ss, 128))
                self.sexpr(sWl, L_WO, (sw, 4096))
            else:
                a("v_lshrrev_b32 v%d, 3, v0" % va, "v_mul_u32_u24 v%d, %d, v%d" % (va, pitch, va), "v_and_b32 v%d, 7, v0" % t,
                  "v_lshl_add_u32 v%d, v%d, 4, v%d" % (va, t, va))
            a("v_and_b32 v%d, 32, v0" % t, "v_xor_b32 v%d, v%d, v%d" % (va, va, t), "v_xor_b32 v%d, 64, v%d" % (t, va))
            if kind == "q":
                self.mk_srd(sT, 10, "0x400000")
                self.sexpr(sWo, 0, (sb, 128 * pitch), (sw, 32 * pitch), (sg, 1024), (ss, 128))
                self.sexpr(sWl, L_WQ, (sw, 4096))
            if kind in "gd":
                a("s_lshr_b32 s100, s%d, 1" % sg, "s_mul_i32 s100, s100, 7", "s_and_b32 s%d, s%d, 1" % (stmp, sg),
                  "s_lshl_b32 s%d, s%d, 2" % (stmp, stmp), "s_add_u32 s100, s100, s%d" % stmp)
            if kind == "g":
                a("s_and_b32 s%d, s%d, 3" % (stmp, ss), "s_add_u32 s100, s100, s%d" % stmp)
                self.sexpr(sWo, 0, (sb, 128 * pitch), (sw, 32 * pitch), (100, 128))
                self.sexpr(sWl, L_WG, (sw, 4096))
                a("s_bitcmp1_b32 s%d, 0" % sact, "s_cselect_b32 s100, 0x%x, 0" % (512 * pitch))
                self.mk_srd(sT, 16, "s100")
                a("s_cmp_ge_u32 s%d, 4" % ss, "s_cselect_b32 s%d, s18, s16" % sT, "s_cselect_b32 s%d, s19, s17" % (sT + 1))
            if kind == "d":
                a("s_add_u32 s100, s100, s%d" % sb)
                self.sexpr(sWo2, 0, (100, 64 * pitch), (sw, 16 * pitch), (ss, 128))
                self.sexpr(sWl2, L_WD, (sw, 2048))
                a("s_bitcmp1_b32 s%d, 1" % sact, "s_cselect_b32 s100, 0x%x, 0" % (1792 * pitch))
                self.mk_srd(sXI, 20, "s100")
            if T is None:
                return
        self.weight_issue(kind, k, T, va)

    def weight_issue(self, kind, k, T, va):
        a = self.a
        pitch = {"q": 8192, "g": 3584, "d": 1024, "o": 1024}[kind]
        so, sl, rs = (sWo2, sWl2, sXI) if kind == "d" else (sWo, sWl, sT)
        a("s_add_u32 s%d, s%d, 0x%x" % (stmp, so, (32 if kind == "o" else 8) * pitch * k), "s_add_u32 m0, s%d, 0x%x" % (sl, 1024 * k))
        if kind not in self.skip:
            if T < 31:
                self.throttle(T, False)
            a("buffer_load_dwordx4 v%d, %s, s%d offen %s lds" % (va + (k & 1), srd(rs), stmp, self.wpol))
            self.ltok.append(a.mark())
        self.wtok[kind] = a.mark()

    def lines(self, fn, *args):
        keep, self.a = self.a, Asm()
        fn(*args)
        out, self.a = [i.text for i in self.a.l], keep
        return out

    def sched(self, lines, pre=()):
        out, t = schedule(lines, pre)
        self.a(*out)
        return t

    def s_zero(self):
        for r in range(vS, vS + 32, 2):
            self.a("v_mov_b64 %s, 0" % q(r, 2))

    def qk(self):
        a = self.a
        for k, p in enumerate(ORDER):
            d = vS + 4 * k
            for sg_ in range(2):
                for hf in range(2):
                    self.smf(d, q(vQ + 8 * sg_ + 4 * hf), q(16 * (2 * p + sg_) + 8 * hf, 8, "a"))
            a("v_add_f32 v%d, v%d, v%d" % (d, d, d + 1), "v_add_f32 v%d, v%d, v%d" % (d + 1, d + 2, d + 3))
            a("v_max3_f32 v7, v7, v%d, v%d" % (d, d + 1) if k else "v_max_f32 v7, v%d, v%d" % (d, d + 1))

    def ml_off(self, v, t):
        self.a("v_mov_b32 v%d, v%d" % (v, vA16), "v_and_b32 v%d, 15, v0" % t)
        self.oob_unless(v, t, "v_cmp_eq_u32 vcc, 0, v%d" % t)

    def softmax(self, vw, voff):
        a = self.a
        for k in (1, 2, 4, 8):
            self.dpp("v_max_f32", 7, 7, 7, "row_ror:%d" % k)
        a("v_mul_f32 v20, s%d, v7" % sSC, "s_mov_b32 s100, %s" % ONES)
        for k in range(8):
            r = q(vS + 4 * k, 2)
            a("v_pk_fma_f32 %s, %s, s[%d:%d], v[20:21] op_sel_hi:[1,0,0] neg_lo:[0,0,1] neg_hi:[0,0,1]" % (r, r, sSC, sSC + 1))
        for k in range(8):
            r = vS + 4 * k
            a("v_exp_f32 v%d, v%d" % (r, r), "v_exp_f32 v%d, v%d" % (r + 1, r + 1), "v_cvt_pk_bf16_f32 v%d, v%d, v%d" % (r + 2, r, r + 1))
            if k & 1:
                a("ds_write2st64_b32 v%d, v%d, v%d offset0:%d offset1:%d ; mem=p%d" % (vw, r - 2, r + 2, k - 1, k, k - 1))
        for k in range(8):
            a("v_dot2_f32_bf16 v21, v%d, s100, %s" % (vS + 4 * k + 2, "v21" if k else "0"))
        for k in (1, 2, 4, 8):
            self.dpp("v_add_f32", 21, 21, 21, "row_ror:%d" % k)
        self.st_intra("buffer_store_dwordx2", "v[20:21]", voff, sMLst, both=True)

    def ml_finish(self, r):
        a = self.a
        a("v_sub_f32 v%d, v%d, v20" % (r, r), "v_sub_f32 v%d, v%d, v20" % (r + 2, r + 2),
          "v_exp_f32 v%d, v%d" % (r, r), "v_exp_f32 v%d, v%d" % (r + 2, r + 2),
          "v_mul_f32 v7, v%d, v%d" % (r, r + 1), "v_fmac_f32 v7, v%d, v%d" % (r + 2, r + 3))
        for k in (1, 2, 4, 8):
            self.dpp("v_add_f32", 7, 7, 7, "row_ror:%d" % k)
        a("v_rcp_f32 v7, v7")

    def lds_or_zero(self, v, t, mask, val=0):
        self.a("v_and_b32 v%d, %d, v0" % (t, mask), "v_cmp_eq_u32 vcc, %d, v%d" % (val, t), "v_mov_b32 v%d, 0x%x" % (t, L_OOB),
               "v_cndmask_b32 v%d, v%d, v%d, vcc" % (v, t, v))

    def p_read(self, k, va, buf):
        self.a("ds_read_b128 %s, v%d offset:%d ; mem=p%d" % (q(vQ + 4 * buf), va, k * 256, k & ~1))

    def pv_dense(self, p, buf, lgkm=None):
        for i in range(8):
            if lgkm is not None:
                self.a("s_waitcnt lgkmcnt(%d)" % lgkm(i))
            self.mfma(vO + 4 * i, q(vQ + 4 * buf), q(self.vreg(p, i)), p > 0)

    def o_write(self, t0, t1, sparse):
        a = self.a
        self.sexpr(100, L_SCR, (sw, 2048))
        a("v_add_u32 v22, s100, v%d" % vA16)
        for h, t in enumerate((t0, t1)):
            for i in range(4):
                o = vO + 16 * h + 4 * i
                a("v_add_f32 v%d, v%d, v%d" % (t + i, o, o + 1) if sparse else "v_mul_f32 v%d, v7, v%d" % (t + i, o))
            if sparse:
                for i in (0, 2):
                    a("v_pk_mul_f32 %s, %s, v[6:7] op_sel:[0,1] op_sel_hi:[1,1]" % (q(t + i, 2), q(t + i, 2)))
            a("ds_write_b128 v22, %s offset:%d" % (q(t), 1024 * h))

    def w_tiles(self, kinds, va, t):
        a = self.a
        last = None
        for kind, dst in kinds:
            qs = 11 if kind == "d" else 12
            if qs != last:
                self.lin(va, t, (4, 1, 5), (3, 1, 6))
                a("s_lshl_b32 s100, s%d, 5" % sw, "v_xor_b32 v%d, s100, v%d" % (va, va), "v_add_u32 v%d, 0x%x, v%d" % (va, L_WQ, va))
                for sh, bits, sc in ((5, 1, qs), (3, 1, 10), (4, 1, 9), (2, 1, 7), (0, 2, 3)):
                    a("v_bfe_u32 v%d, v0, %d, %d" % (t, sh, bits), "v_lshl_add_u32 v%d, v%d, %d, v%d" % (va, t, sc, va))
                last = qs
            base = {"q": L_WQ, "g": L_WG, "d": L_WD}[kind] - L_WQ
            for kb in range(2 if kind == "d" else 4):
                for h in range(2):
                    a("ds_read_b64_tr_b16 %s, v%d offset:%d" % (q(dst + 4 * kb + 2 * h, 2), va,
                                                                  base + (kb & 1) * (2 << qs) + (kb >> 1) * 2048 + h * 256))

    def gemv_zero(self, d):
        self.a("v_mov_b64 %s, 0" % q(d, 2), "v_mov_b64 %s, 0" % q(d + 6, 2))

    def gemv4(self, x, W, d, ix):
        for k in range(2):
            self.smf(d + 4 * k, q(x), q(W + 8 * k, 8), ix)

    def gemv4_fin(self, out, d):
        self.a("v_add_f32 v%d, v%d, v%d" % (d, d, d + 1), "v_add_f32 v%d, v%d, v%d" % (d + 6, d + 6, d + 7),
               "v_add_f32 v%d, v%d, v%d" % (d, d, d + 6))
        self.pack_pairs(out, d)

    def colsum_pub(self, W, ones, d, va, t, off, *terms):
        a = self.a
        for r in range(4):
            a("v_mov_b32 v%d, %s" % (ones + r, ONES))
        self.lin(va, t, (0, 1, 10), (1, 3, 4))
        self.oob_unless(va, t, "v_cmp_gt_u32 vcc, 16, v0")
        self.sexpr(100, off, (sCS, 1), (sb, 4), (sw, 128), *terms)
        a("s_waitcnt lgkmcnt(0)")
        for kb in range(4):
            self.mfma(d, q(ones), q(W + 4 * kb), kb > 0)
        self.st_intra("buffer_store_dword", "v%d" % d, va, 100)

    def colsum_ld(self, r, off, sel):
        self.sexpr(100, off, (sCS, 1), (sel, 2048))
        self.a(self.ld(r, vA16, 100, 0), self.ld(r + 4, vA16, 100, 1024))

    def colsum_fin(self, r, c):
        for k in range(2):
            b = r + 4 * k
            self.a("v_add_f32 v%d, v%d, v%d" % (b, b, b + 1), "v_add_f32 v%d, v%d, v%d" % (b + 2, b + 2, b + 3),
                   "v_add_f32 v%d, v%d, v%d" % (b, b, b + 2), "v_mul_f32 v%d, %s, v%d" % (c + k, f32(-1.0 / 512), b))

    def stats(self, x, t, att):
        a = self.a
        s1, s2 = t, t + 1
        a("s_mov_b32 s100, %s" % ONES)
        for k in range(4):
            a("v_dot2_f32_bf16 v%d, v%d, s100, %s" % (s1, x + k, "v%d" % s1 if k else "0"),
              "v_dot2_f32_bf16 v%d, v%d, v%d, %s" % (s2, x + k, x + k, "v%d" % s2 if k else "0"))
        a("v_permlane32_swap_b32 v%d, v%d" % (s1, s2), "v_add_f32 v%d, v%d, v%d" % (s1, s1, s2))
        for k in (1, 2, 4, 8):
            self.dpp("v_add_f32", s1, s1, s1, "row_ror:%d" % k)
        self.dpp("v_add_f32", s1, s1, s1, "row_bcast:15", "0xa")
        a("v_readlane_b32 s%d, v%d, 31" % (sS1, s1), "v_mul_f32 v%d, %s, v%d" % (s1, f32(1.0 / 512), s1),
          "v_mov_b32 v%d, s%d" % (s2, sS1), "v_mul_f32 v%d, %s, v%d" % (s2, f32(1.0 / 512), s2),
          "v_fma_f32 v%d, -v%d, v%d, v%d" % (s1, s2, s2, s1), "v_max_f32 v%d, 0, v%d" % (s1, s1),
          "v_add_f32 v%d, %s, v%d" % (s1, f32(1e-5), s1))
        if att:
            a("v_rsq_f32 v%d, v%d" % (s1, s1), "v_mul_f32 v%d, %s, v%d" % (s1, f32(SCALE), s1))
        else:
            a("v_rcp_f32 v%d, v%d" % (s1, s1), "s_nop 0")
        a("v_readlane_b32 s%d, v%d, 63" % (sSC, s1))

    def sum4_init(self, acc, c):
        self.a("v_mul_f32 v%d, s%d, v%d" % (acc, sS1, c), "v_mul_f32 v%d, s%d, v%d" % (acc + 1, sS1, c + 1))

    def sum4(self, x, acc, init):
        for k in range(4):
            c = acc if k else init
            self.a("v_dot2_f32_bf16 v%d, v%d, s%d, v%d" % (acc, x + k, sLO, c),
                   "v_dot2_f32_bf16 v%d, v%d, s%d, v%d" % (acc + 1, x + k, sHI, c + 1))

    def q_addrs(self, vw, vr, t):
        a = self.a
        self.lin(vw, t, (3, 3, 5), (0, 1, 4), (1, 2, 2))
        self.sexpr(100, L_Q, (sw, QSTR))
        a("v_add_u32 v%d, s100, v%d" % (vw, vw))
        self.lin(vr, t, (4, 2, 5), (0, 1, 4))
        a("v_bfe_u32 v%d, v0, 2, 2" % t, "v_mul_u32_u24 v%d, %d, v%d" % (t, QSTR, t), "v_add_u32 v%d, v%d, v%d" % (vr, vr, t),
          "v_add_u32 v%d, 0x%x, v%d" % (vr, L_Q, vr), "v_mov_b32 v%d, v%d" % (vr + 1, vr))
        self.lds_or_zero(vr, t, 2, 0)
        self.lds_or_zero(vr + 1, t, 2, 2)

    def q_assemble(self, acc, vw, vr, fill=()):
        a = self.a
        a("v_cvt_pk_bf16_f32 v%d, v%d, v%d" % (acc, acc, acc + 1), "ds_write_b32 v%d, v%d" % (vw, acc), *fill)
        a("s_waitcnt lgkmcnt(0)", "s_barrier")
        rd = ["ds_read_b128 %s, v%d offset:%d" % (q(vQ + 4 * st), vr + (st >> 1), (st & 1) * 128) for st in range(4)]
        a(*rd)
        return rd

    def late_loads(self, name):
        self.layer1(name)
        for k in range(4 - self.lateg, 4):
            self.weight_issue("g", k, 32, 60)
        for k in range(2):
            self.weight_issue("d", k, 32, 62)
        if self.tsplit & 1:
            self.touch(64)
        self.a(name + ":")

    def next_region(self):
        for r in (sWS, sWF, sWL):
            self.a("s_add_u32 s%d, s%d, 0x%x" % (r, r, LS), "s_addc_u32 s%d, s%d, 0" % (r + 1, r + 1))
        self.a("s_sub_u32 s%d, s%d, 0x%x" % (sCS, sCS, LS))

    def leader_fill(self):
        a = self.a
        a("v_mov_b32 v8, -1", "v_mov_b32 v9, -1", "v_mov_b32 v10, -1", "v_mov_b32 v11, -1",
          "s_or_b32 s%d, s%d, s%d" % (slead, sj, sw), "s_cmp_eq_u32 s%d, 0" % slead, "s_cbranch_scc0 L_nolead0")
        tk = a.mark()
        a("s_lshl_b32 s100, s%d, 17" % sg)
        for k in range((512 + 32 * self.fstr + 1023) // 1024):
            a("buffer_store_dwordx4 v[8:11], v%d, %s, s100 offen sc1" % (vA16, srd(sWS)), "s_add_u32 s100, s100, 1024")
        a("L_nolead0:")
        a.uncounted(tk)
        self.tok_lead = tk

    def leader_flag(self, word, name, tok=None, val="1"):
        a = self.a
        a("s_cmp_eq_u32 s%d, 0" % slead, "s_cbranch_scc0 " + name)
        if tok is not None:
            a.wait_vm(tok)
        tk = a.mark()
        a("v_mov_b32 v55, %s" % val, "v_lshlrev_b32 v54, 8, v0", "s_lshl_b32 s100, s%d, 2" % sg,
          "buffer_store_dword v55, v54, %s, s100 offen offset:%d sc1" % (srd(sDBG), word), name + ":")
        a.uncounted(tk)

    def flag_load(self, v, word, own):
        a = self.a
        if own:
            a("s_lshl_b32 s100, s%d, 2" % sg, "v_mov_b32 v%d, s100" % v)
        else:
            a("v_and_b32 v%d, 7, v0" % v, "v_lshlrev_b32 v%d, 2, v%d" % (v, v))
        return a("buffer_load_dword v%d, v%d, %s, 0 offen offset:%d sc1" % (v, v, srd(sDBG), word))

    def flag_check(self, v, word, own, tok, name):
        a = self.a
        a.wait_vm(tok)
        tk = a.mark()
        a("s_branch %s_c" % name, name + "_s:", "s_sleep 8")
        self.flag_load(v, word, own)
        a("s_add_u32 s%d, s%d, 1" % (sspin, sspin), "s_cmp_lt_u32 s%d, 0x%x" % (sspin, SPIN_LIMIT), "s_waitcnt vmcnt(0)",
          "s_cbranch_scc0 %s_d" % name, name + "_c:", "v_cmp_eq_u32 vcc, 0, v%d" % v, "s_cbranch_vccnz %s_s" % name, name + "_d:")
        a.uncounted(tk)

    def fill_intra(self, v, t, d, start, per_wave):
        a = self.a
        self.sexpr(100, start, (sg, 1 << 17), (sj, 4 * per_wave), (sw, per_wave))
        a("v_mov_b32 v%d, v%d" % (v, vA16))
        self.oob_unless(v, t, "v_cmp_gt_u32 vcc, %d, v0" % (per_wave // 16))
        if "fill" not in self.off:
            self.st_intra("buffer_store_dwordx4", q(d), v, 100)

    def sentinels(self, d):
        for r in range(4):
            self.a("v_mov_b32 v%d, -1" % (d + r))

    def prologue(self):
        a = self.a
        if self.stamps:
            a("%s s[92:93]" % ("s_memtime" if self.cyc else "s_memrealtime"))
        a("s_load_dwordx16 s[4:19], s[0:1], 0", "s_load_dwordx8 s[20:27], s[0:1], 64",
          "v_lshrrev_b32 v1, 6, v0", "s_cmpk_ge_u32 s2, 256", "v_readfirstlane_b32 s%d, v1" % sw, "s_cbranch_scc1 L_end")
        a("v_and_b32 v0, 63, v0", "s_and_b32 s%d, s2, 7" % sg, "s_lshr_b32 s%d, s2, 3" % sj, "s_lshr_b32 s%d, s2, 6" % sb,
          "s_and_b32 s%d, s%d, 7" % (ss, sj), "s_lshl2_add_u32 s%d, s%d, s%d" % (su, ss, sw),
          "s_lshl3_add_u32 s100, s%d, s%d" % (sb, sg), "s_lshl_b32 s100, s100, 21", "s_mul_i32 s%d, s%d, %d" % (sring, sw, RING))
        if self.ubits == (12, 13, 14, 15, 16):
            a("s_lshl_b32 s%d, s%d, 12" % (sstep, su))
        else:
            self.scatter(sstep, su, self.ubits, True)
        if self.rot == (1, 4):
            a("s_lshl2_add_u32 s%d, s%d, s%d" % (stmp, sb, sg))
            self.scatter(srot, stmp, self.tbits, True)
        elif any(self.rot):
            self.sexpr(stmp, 0, *[(r, m) for r, m in zip((sg, sb), self.rot) if m])
            self.scatter(srot, stmp, self.tbits, True)
        else:
            a("s_mov_b32 s%d, 0" % srot)
        a("v_lshrrev_b32 v5, 4, v0", "v_and_b32 v6, 15, v0", "v_xor_b32 v7, v5, v6", "v_lshlrev_b32 v7, 4, v7",
          "v_lshl_add_u32 v%d, v5, 8, v7" % vKS)
        a("v_xor_b32 v%d, 64, v%d" % (vKS + 1, vKS), "v_xor_b32 v%d, 128, v%d" % (vKS + 2, vKS), "v_xor_b32 v%d, 64, v%d" % (vKS + 3, vKS + 2),
          "s_lshl_b32 s98, s2, 10", "s_bitset1_b32 s98, 22", "v_mov_b32 v9, s98", "v_xor_b32 v10, 0x2000, v9",
          "s_lshl_b32 s%d, 1, 21" % (sK + 2), "s_mov_b32 s%d, 0x20000" % (sK + 3))
        self.tok, self.ltok, self.wtok = {}, [], {}
        first = self.lines(self.tile_issue, 0)
        self.tok, self.ltok = {}, []
        a(*first[:2])
        a("s_waitcnt lgkmcnt(0)", "global_load_dword v95, v9, s[26:27] sc1" if "cal" not in self.off else "s_nop 0")
        tok_cal = a.mark()
        a("global_load_dword v95, v10, s[26:27] offset:128 sc1" if "cal" not in self.off else "s_nop 0", "s_add_u32 s%d, s6, s100" % sK, "s_addc_u32 s%d, s7, 0" % (sK + 1))
        for x in first[2:]:
            self.ltok.append(a(x))
        self.tok[0] = a.mark()
        a("s_cmp_eq_u32 s%d, 0" % sw, "s_cbranch_scc0 L_novote")
        a.wait_vm(tok_cal)
        a("s_sleep 1", "s_getreg_b32 s99, hwreg(HW_REG_IB_STS, 0, 4)", "L_novote:")
        self.tile_issue(1)
        a("s_lshl_b32 s%d, s%d, 12" % (su, su))
        a("s_add_u32 s%d, s8, s100" % sV, "s_addc_u32 s%d, s9, 0" % (sV + 1),
          "s_mov_b32 s%d, 0x200000" % (sV + 2), "s_mov_b32 s%d, 0x20000" % (sV + 3))
        a("v_lshl_add_u32 v%d, v6, 8, v7" % vKR, "v_add_u32 v%d, s%d, v%d" % (vKR, sring, vKR))
        for st in range(1, 4):
            a("v_xor_b32 v%d, %d, v%d" % (vKR + st, st << 6, vKR))
        a("v_lshlrev_b32 v%d, 4, v0" % vA16)
        self.mk_srd(sDBG, 24, "256")
        self.mk_srd(sWS, 26, "0x%x" % WS_SIZE)
        self.mk_srd(sOUT, 22, "4096")
        a("s_add_u32 s%d, s26, 0x%x" % (sXW, OFF_XW), "s_addc_u32 s%d, s27, 0" % (sXW + 1),
          "s_mov_b32 s%d, 0x100000" % (sXW + 2), "s_mov_b32 s%d, 0x20000" % (sXW + 3))
        if self.stamps:
            a("v_mov_b32 v4, 0", "v_writelane_b32 v4, s92, 0")
            self.nst = 1
            self.stamp_names.append("entry")
        self.stamp("start")
        a("s_cmp_gt_u32 s99, 4", "s_cselect_b32 s%d, 16, 0" % svote)
        self.setup_b()
        self.setup_c()

    def setup_a(self):
        a = self.a
        self.mk_srd(sXI, 4, "4096")
        self.lin(6, 7, (4, 2, 6), (2, 2, 10), (0, 2, 4))
        self.lin(5, 7, (5, 1, 10), (4, 1, 11), (0, 4, 1))
        a("s_lshl_b32 s100, s%d, 8" % sb, "s_lshl_b32 s101, s%d, 10" % sb, "s_lshl_b32 s%d, s%d, 5" % (stmp, sj),
          "buffer_load_dwordx4 %s, v6, %s, s100 offen" % (q(vX), srd(sXI)),
          "buffer_load_dwordx4 %s, v%d, %s, s101 offen" % (q(vX + 4), vA16, srd(sXI)),
          "buffer_load_ushort v%d, v5, %s, s%d offen" % (vRES, srd(sXI), stmp))
        self.tok_pro = a.mark()

    def early_fill(self):
        a = self.a
        if "clr" in self.off:
            return
        if self.clrw is None:
            self.sexpr(100, 0, (sj, 32768), (sg, 2048), (sw, 512))
            a("v_mov_b32 v12, v%d" % vA16)
            self.oob_unless(12, 13, "v_cmp_gt_u32 vcc, 32, v0")
            a("buffer_store_dwordx4 v[8:11], v12, %s, s100 offen %s" % (srd(sXW), self.clrpol))
            return
        tk = a.mark()
        a("s_cmp_eq_u32 s%d, %d" % (sw, self.clrw), "s_cbranch_scc0 L_noclr")
        self.sexpr(100, 0, (sj, 32768), (sg, 2048))
        for k in range(2):
            a("buffer_store_dwordx4 v[8:11], v%d, %s, s100 offen offset:%d %s" % (vA16, srd(sXW), 1024 * k, self.clrpol))
        a("L_noclr:")
        a.uncounted(tk)

    def setup_b(self):
        a = self.a
        self.mk_srd(sWF, sWS, "0")
        self.mk_srd(sWL, sWS, "0x%x" % WS_SIZE)
        G = (sg, 1 << 17)
        self.sexpr(sCS, 2 * LS, G)
        self.sexpr(sEst, OFF_E, G, (ss, 512), (sw, 128), (sb, 4))
        self.sexpr(sEld, OFF_E, G, (sb, 4096), (sw, 1024))
        self.sexpr(sMLld, OFF_ML, G, (sb, 1024))
        a("s_lshr_b32 s%d, s%d, 9" % (sMLst, su), "s_add_u32 s%d, s%d, s%d" % (sMLst, sMLst, sMLld),
          "s_mov_b32 s%d, 0" % slayer, "s_mov_b32 s%d, 0" % sspin, "s_mov_b32 s%d, -2" % scmp,
          "s_mov_b32 s%d, 0x3f80" % sLO, "s_mov_b32 s%d, 0x3f800000" % sHI,
          "s_and_b32 s100, s%d, 3" % ss, "s_cmp_eq_u32 s100, 3", "s_cselect_b32 s%d, 0, 1" % sact,
          "s_cmp_eq_u32 s%d, 3" % sb, "s_cselect_b32 s100, 0, 2", "s_or_b32 s%d, s%d, s100" % (sact, sact),
          "s_bitcmp1_b32 s%d, 0" % sg, "s_cselect_b32 s%d, s%d, 3" % (sact, sact))

    def setup_c(self):
        a = self.a
        G = (sg, 1 << 17)
        a("s_lshr_b32 s%d, s%d, 2" % (stmp, ss), "s_and_b32 s100, s%d, 3" % ss)
        self.sexpr(sAst, OFF_A, G, (sw, 8192), (stmp, 1024), (sb, 64), (100, 16))
        self.sexpr(sCst, OFF_C, G, (100, 4096), (stmp, 512), (sw, 128), (sb, 4))
        self.sexpr(sAld, OFF_A, G, (sb, 8192), (sw, 2048))
        self.sexpr(sCld, OFF_C, G, (sb, 4096), (sw, 1024))
        self.sexpr(sBst, 0, (su, 8), (sg, 512), (sb, 128))
        self.sexpr(sBld, 0, (sj, 32768))
        a("s_lshr_b32 s%d, s%d, 1" % (stmp, sj), "s_and_b32 s100, s%d, 1" % sj)
        self.sexpr(sXst, OFF_XB, G, (stmp, 256), (100, 32))
        self.sexpr(sXld, OFF_XB, G, (sb, 1024))
        self.sexpr(sRow, OFF_XB, G)
        a("s_mov_b32 s%d, 0xff00ff00" % sM1, "s_mov_b32 s%d, 0xff00ff00" % (sM1 + 1))
        self.lin(vTRV, 7, (2, 1, 12), (4, 2, 10), (3, 1, 8), (4, 1, 7), (2, 1, 6), (3, 1, 5), (0, 2, 3))
        a("v_add_u32 v%d, s%d, v%d" % (vTRV, sring, vTRV))

    def part_off(self, v, t, bs, cmp="0"):
        self.lin(v, t, (4, 2, bs), (0, 4, 3))
        self.even_only(v, t, cmp)

    def group_flag(self, k, val):
        a = self.a
        a("v_mov_b32 v14, %s" % val, "v_add_u32 v15, s%d, v0" % sw, "v_lshlrev_b32 v15, 24, v15")
        self.sexpr(100, 0 if k else 512, (sg, 1 << 17), (sj, self.fstr2 if k else self.fstr))
        self.st_intra("buffer_store_dword", "v14", 15, 100)

    def stream(self):
        a = self.a
        lag = self.lag
        t_dl, t_f1, t_l1, t_c1, t_f2, t_l2, t_c2 = self.sync
        wl = {}
        for kind, ts in (("q", self.tq), ("g", self.tg[:4 - self.lateg]), ("o", self.to)):
            for k, T in enumerate(ts):
                wl.setdefault(T, []).append((kind, k))
        tqk = max(t_c2 + 2, 16 + lag)
        assert self.clr1 <= t_dl and self.tq[-1] + 2 <= t_c1 and self.tg[-1] + 2 <= t_f2
        pvat = {}
        for p in range(5):
            pvat.setdefault(max(tqk + 3 + (p >> 1), 17 + 2 * p + lag), []).append(p)
        assert min(self.ipf, self.tml, self.tclr, self.ttouch or 99) >= tqk + 3 and max(pvat) < 32
        vF = 94
        G17 = "s_lshl_b32 s101, s%d, 17" % sg
        qk = None
        for T in range(1, 32):
            if T == 16:
                self.lin(5, 7, (4, 2, 8), (0, 4, 4))
                a("v_and_b32 v7, 16, v0", "v_lshlrev_b32 v7, 1, v7", "v_xor_b32 v5, v5, v7", "v_xor_b32 v6, 128, v5")
                self.mk_ai()
            between = None
            if T in (tqk + 1, tqk + 2):
                def between(jj):
                    a(*qk.pop(0))
            if T in self.bars:
                a("s_barrier")
            if T > 1:
                self.tile_issue(T, between)
            if T == 1:
                if self.ipf0:
                    a("s_getpc_b64 s[98:99]", "L_pc0:")
                    self.sexpr(100, 0, (sj, 512), (sw, 128))
                    a("s_min_u32 s100, s100, L_codeend-L_pc0-4", "v_mov_b32 v93, s100", "global_load_dword v93, v93, s[98:99]")
                self.leader_fill()
            for kind, k in wl.get(T, []):
                if kind == "o" and T == 31:
                    if k == 0:
                        self.weight_load(kind, 0, None, 18)
                        if self.obar:
                            a("s_barrier")
                    if not self.owait or self.owait[k] < 5:
                        self.weight_issue(kind, k, T, 18)
                else:
                    self.weight_load(kind, k, T, 52 if T < 20 else 18)
            if self.stamps is not True and T > 1:
                self.stamp("T%02d" % T)
            if T == 1:
                self.setup_a()
            if T == self.clr1:
                self.early_fill()
            if T == self.ttlb and self.tlb:
                self.page_touch()
            if lag <= T < 26 + lag:
                self.tile_consume(T - lag)
            if T == 2:
                self.leader_flag(0, "L_nolead1", self.tok_lead)
            if T == t_dl:
                if self.early and self.estat is None:
                    self.flag_load(vF - 1, 0, False)
                tok_f = self.flag_load(vF, 0, True) if "f0" not in self.off else a.mark()
            if T == t_f1:
                if "f0" not in self.off:
                    self.flag_check(vF, 0, True, tok_f, "L_f0")
                if self.early and self.estat is None:
                    a("v_cmp_ne_u32 vcc, 0, v%d" % (vF - 1), "s_and_b32 s100, vcc_lo, 0xff", "s_bcnt1_i32_b32 s100, s100",
                      "s_cmp_lt_u32 s100, %d" % self.eth, "s_cselect_b32 s%d, 1, 0" % searly)
                    if self.stamps:
                        a("v_writelane_b32 v4, s100, 27")
                elif self.early:
                    a("s_getreg_b32 s100, hwreg(HW_REG_XCC_ID, 0, 3)", "s_lshr_b32 s100, 0x%x, s100" % self.estat, "s_and_b32 s%d, s100, 1" % searly)
                a("s_barrier", "s_getreg_b32 s%d, hwreg(HW_REG_XCC_ID, 0, 4)" % stmp, "s_or_b32 s%d, s%d, s%d" % (stmp, stmp, svote))
                if "f1" not in self.off:
                    self.group_flag(0, "s%d" % stmp)
                if "byte" in self.off:
                    self.sexpr(100, 0, (sg, 32), (sj, 1))
                    a("v_mov_b32 v14, 64", "v_add_u32 v15, s%d, v0" % sw, "v_lshlrev_b32 v15, 8, v15",
                      "buffer_store_byte v14, v15, %s, s100 offen sc1" % srd(sDBG))
                a("v_lshlrev_b32 v%d, 16, v%d" % (vRES, vRES))
                self.stats(vX + 4, 8, True)
            if T == t_l1 and "byte" in self.off:
                a("v_lshlrev_b32 v93, 2, v0", "buffer_load_dword v93, v93, %s, 0 offen sc1" % srd(sDBG))
            if T in (t_l1, t_l2):
                fld = self.ld(vF, vF + 1, 101, 512 if T == t_l1 else 0, n=1)
                a("v_and_b32 v%d, 31, v0" % (vF + 1), "v_mul_u32_u24 v%d, %d, v%d" % (vF + 1, self.fstr if T == t_l1 else self.fstr2, vF + 1), G17)
                tok_f = a(fld) if ("f1" if T == t_l1 else "f2") not in self.off else a("s_getreg_b32 s100, hwreg(HW_REG_XCC_ID, 0, 4)", "v_mov_b32 v%d, s100" % vF)
            if T == t_c1:
                self.check_or_poll([fld], [[vF]], 7, "xcc", max(tok_f, self.wtok["q"]), [G17])
                a("s_barrier")
                self.w_tiles([("q", vWQ)], 5, 7)
                a("v_cmp_lt_u32 vcc, 15, v%d" % vF, "v_and_b32 v%d, 15, v%d" % (vF, vF),
                  "s_and_b32 s100, vcc_lo, 0x55555555", "s_and_b32 s101, vcc_lo, 0xaaaaaaaa",
                  "s_bcnt1_i32_b32 s100, s100", "s_bcnt1_i32_b32 s101, s101")
                if self.stamps:
                    a("v_writelane_b32 v4, s100, 28", "v_writelane_b32 v4, s101, 29")
                a("s_getreg_b32 s%d, hwreg(HW_REG_XCC_ID, 0, 4)" % svote, "s_sub_u32 s%d, s100, s101" % stmp, "s_sub_u32 s101, s101, s100",
                  "s_bitcmp1_b32 s%d, 2" % svote, "s_cselect_b32 s101, s101, s%d" % stmp, "s_add_u32 s101, s101, 64")
                self.leader_flag(32, "L_nolead2", val="s101")
                if not self.force_slow:
                    a("v_cmp_ne_u32 vcc, s%d, v%d" % (svote, vF), "s_cmp_eq_u64 vcc, 0",
                      "s_cselect_b32 s%d, 0x%x, 0" % (sWF + 2, WS_SIZE), "s_cselect_b32 s%d, 0, 0x%x" % (sWL + 2, WS_SIZE))
                self.part_off(6, 7, 12)
                a("s_lshr_b32 s%d, s%d, 1" % (stmp, ss), "s_and_b32 s%d, s%d, 1" % (sclr, ss))
                self.colsum_pub(vWQ, 12, 16, 10, 11, OFF_CSQ, (stmp, 2048), (sclr, 512))
                self.mk_ix(8)
                self.gemv_zero(vD)
                self.gemv4(vX, vWQ, vD, 8)
                self.sentinels(20)
                self.gemv4_fin(9, vD)
                self.st_intra("buffer_store_dword", "v9", 6, sEst)
                self.fill_intra(24, 7, 20, LS + OFF_ML, 288)
                tok_q = a.mark()
                self.stamp("arrive")
            if T == t_f2:
                a.wait_vm(max(tok_q, self.wtok.get("g", 0)))
                a("s_barrier")
                self.group_flag(1, "1")
                self.w_tiles([("g", vWQ)], 5, 7)
                a("s_lshr_b32 s%d, s%d, 2" % (stmp, ss), "s_and_b32 s%d, s%d, 3" % (sclr, ss))
                self.colsum_pub(vWQ, 16, 20, 10, 11, OFF_CSG, (sclr, 2048), (stmp, 512))
            if T == t_c2:
                self.check_or_poll([fld], [[vF]], 7, "q1", tok_f, [G17])
                if "csq" not in self.off:
                    self.colsum_ld(28, OFF_CSQ, sw)
                tok_q = a(self.ld(24, vA16, sEld))
                self.next_region()
                self.stamp("barrier")
            if T == t_c2 + 1:
                self.s_zero()
                self.q_addrs(40, 42, 7)
            if T == tqk:
                a.wait_vm(tok_q)
                self.colsum_fin(28, 36)
                self.sum4_init(38, 36)
                self.sum4(24, 38, 38)
                self.q_assemble(38, 40, 42)
                ls, _ = schedule(self.lines(self.qk))
                qk = [ls[len(ls) * k // 4:len(ls) * (k + 1) // 4] for k in range(4)]
            if T == tqk + 1:
                self.ml_off(22, 23)
                self.sexpr(100, L_WD, (sw, 2048))
                self.lin(16, 23, (2, 2, 6), (4, 2, 4))
                a("v_add_u32 v16, s100, v16", "v_lshl_add_u32 v17, v0, 2, s100")
                self.lds_or_zero(16, 23, 3)
                ls, _ = schedule(self.lines(self.softmax, 17, 22))
                qk = [ls[len(ls) * k // 4:len(ls) * (k + 1) // 4] for k in range(4)]
            if T == tqk + 2:
                self.stamp("softmax1")
            for p in pvat.get(T, ()):
                self.p_read(ORDER.index(p), 16, p & 1)
                a("s_waitcnt lgkmcnt(0)")
                self.pv_dense(p, p & 1)
            if T == self.ipf:
                a("s_getpc_b64 s[4:5]", "L_pc:", "s_add_u32 s4, s4, L_tail-L_pc", "s_addc_u32 s5, s5, 0")
                self.sexpr(100, 0, (sj, 512), (sw, 128))
                a("s_min_u32 s100, s100, L_codeend-L_tail-4", "v_mov_b32 v80, s100", "global_load_dword v80, v80, s[4:5]")
            if T == self.tml:
                ml1 = [self.ld(64, vA16, sMLld)]
                a(*ml1)
                tok_warm = self.flag_load(70, 32, False) if "f3" not in self.off else a("v_mov_b32 v70, 64")
            if T == (self.ttouch or self.tclr + 1) and self.tsplit < 3:
                self.touch_addr(81, 82, [(OFF_A, 8), (LS + OFF_CSG, 2)] + ([] if self.tsplit & 1 else T1) + ([] if self.tsplit & 2 else [(LS + OFF_A, 13)]))
                tok_warm = self.touch(81)
            if T == self.tclr:
                self.sentinels(72)
                self.fill_intra(76, 77, 72, OFF_C, 320)
                self.fill_intra(78, 77, 72, LS, 448)
        if "bar" in self.off:
            a.l = [i for i in a.l if i.op != "s_barrier"]
        if "comp" in self.off:
            a.l = [i for i in a.l if not (i.mfma or i.trans or i.dot or i.dpp or i.op.startswith("v_pk"))]
        if "ds" in self.off:
            a.l = [i for i in a.l if not i.ds]
        self.stamp("issued")
        self.flag_check(70, 32, False, tok_warm, "L_f1")
        for k in (1, 2, 4):
            self.dpp("v_add_u32", 70, 70, 70, "row_ror:%d" % k)
        a("v_readfirstlane_b32 s100, v70", "s_cmpk_ge_u32 s100, 512", "s_cselect_b32 s100, 0, 4", "s_xor_b32 s100, s100, s%d" % svote,
          "s_bitcmp1_b32 s100, 2", "s_cselect_b32 s100, %s" % {0: "0, 0", 1: "0x2000, 0", 2: "0, 0x2000"}[self.near],
          "s_add_u32 s%d, s%d, s100" % (sBld, sBld), "s_add_u32 s%d, s%d, s100" % (sB2, sBst), "s_xor_b32 s%d, s%d, 0x2000" % (sBst, sB2))
        self.check_or_poll(ml1, [range(64, 68)], 69, "ml1", tok_warm)
        self.ml_finish(64)
        a("s_mov_b32 s%d, 1" % slayer)
        a(*[x for x in self.lines(self.weight_load, "d", 0, None, 62) if x.startswith("s_")])
        if self.lateg:
            a(*[x for x in self.lines(self.weight_load, "g", 0, None, 60) if x.startswith("s_")])
        for p in (5, 6, 7):
            self.p_read(ORDER.index(p), 16, p & 1)
            keep = len(a.l)
            self.tile_consume(17 + 2 * p)
            for k in range(4):
                if self.owait and self.owait[k] == p:
                    self.weight_issue("o", k, 31, 18)
            if p < 7:
                self.pv_dense(p, p & 1, lgkm=lambda i: 14 - 2 * i)
            else:
                pre = [i.text for i in a.l[keep:] if i.ds]
                self.sched(self.lines(self.pv_dense, p, p & 1) + self.lines(self.o_write, 8, 16, False), pre)
        self.n_after_o = min(a.mark() - self.wtok["o"], 60)
        self.stamp("pv1")

    def page_touch(self):
        a = self.a
        tk = a.mark()
        a("s_cmp_eq_u32 s%d, 1" % sw, "s_cbranch_scc0 L_notlb", "v_mov_b32 v92, 0")
        self.sexpr(100, 0, (sg, 512 * 1024), (sb, 128 * 1024))
        a("v_mov_b32 v91, s100", "v_mov_b32 v90, 0x%x" % (2 * LS))
        for k, ins in (("v", "buffer_load_dword v93, v92, %s, 0 offen nt" % srd(sV)), ("o", "global_load_dword v93, v91, s[12:13] nt"),
                       ("g", "global_load_dword v93, v92, s[16:17] nt"), ("g", "global_load_dword v93, v92, s[18:19] nt"),
                       ("d", "global_load_dword v93, v92, s[20:21] nt"), ("x", "buffer_load_dword v93, v92, %s, 0 offen nt" % srd(sOUT)),
                       ("w", "buffer_load_dword v93, v90, %s, 0 offen nt" % srd(sWS))):
            if k in self.tlb:
                a(ins)
        a("L_notlb:")
        a.uncounted(tk)

    def touch_addr(self, v, t, parts):
        a = self.a
        a("v_mov_b32 v%d, 0x%x" % (v, OOB), "v_lshl_add_u32 v%d, v0, 2, s%d" % (t + 1, sw))
        hi = sum(n for _, n in parts)
        for start, n in reversed(parts):
            self.sexpr(100, start - 128 * (hi - n), (sg, 1 << 17), (sj, 128 * n))
            a("v_lshl_add_u32 v%d, v%d, 7, s100" % (t, t + 1), "v_cmp_gt_u32 vcc, %d, v%d" % (hi, t + 1),
              "v_cndmask_b32 v%d, v%d, v%d, vcc" % (v, v, t))
            hi -= n

    def touch(self, v):
        return self.a("buffer_load_dword v%d, v%d, %s, 0 offen sc1" % (v, v, srd(sWS)))

    def fill_cross(self, d, hop):
        self.sentinels(d)
        self.lin(d + 4, d + 5, (4, 2, 15), (3, 1, 13), (0, 3, 4))
        self.sexpr(100, (hop >> 1) * 0x4000 + (hop & 1) * 0x1000, (ss, 1 << 17), (sg, 512), (sb, 128))
        self.a("buffer_store_dwordx4 %s, v%d, %s, s100 offen sc1" % (q(d), d + 4, srd(sXW)))

    def st_cross(self, v):
        a = self.a
        for so in (sBst, sB2) if self.near else (sB2,):
            a("buffer_store_dword v%d, v95, %s, s%d offen sc1" % (v, srd(sXW), so))

    def red_loads(self, x, soff):
        return [self.ld(x + 4 * i, vA16, soff, i * 1024, rs=sXW) for i in range(4)]

    def prep_split(self, name, work, loads):
        a = self.a
        n = self.at[name][0]
        while n < len(work) and work[n].startswith(("s_cselect", "s_addc", "s_cbranch")):
            n += 1
        a(*work[:n])
        a("s_cmp_eq_u32 s%d, 0" % sw, "s_cbranch_scc0 L_%s_n" % name)
        self.idle(n - len(work))
        a(*loads)
        a("L_%s_n:" % name, *work[n:])
        self.est += (name, len(work))

    def reduce_x(self, name, x, d, soff):
        a = self.a
        self.poll(self.red_loads(x, soff), [range(x + 4 * i, x + 4 * i + 4) for i in range(4)], 7, name,
                  lambda i: self.mfma(d, q(x + 4 * i), q(vSEL), i > 0), issued=1)
        m = "s[%d:%d]" % (sM1, sM1 + 1)
        a("v_cndmask_b32 v%d, v%d, v%d, %s" % (d, d, d + 1, m), "v_cndmask_b32 v%d, v%d, v%d, %s" % (d + 2, d + 2, d + 3, m),
          "v_permlane32_swap_b32 v%d, v%d" % (d, d + 2), "v_add_f32 v%d, v%d, v%d" % (vRES, vRES, d),
          "v_add_f32 v%d, v%d, v%d" % (vRES, vRES, d + 2))
        self.pack_pairs(7, vRES)

    def x_off(self, v, t, bs):
        self.lin(v, t, (5, 1, bs), (4, 1, bs + 1), (0, 4, 1))
        self.even_only(v, t)

    def layer1(self, name):
        self.a("s_cmp_eq_u32 s%d, 1" % slayer, "s_cbranch_scc0 " + name)

    def chain(self):
        a = self.a
        a("L_tail:")
        self.lin(23, 6, (2, 4, 4), (1, 1, 10), (0, 1, 3))
        self.sexpr(sclr, L_SCR, (sw, 256))
        a("v_add_u32 v23, s%d, v23" % sclr, "s_waitcnt lgkmcnt(0)", "s_barrier")
        for src in range(4):
            a("ds_read_b64 %s, v23 offset:%d" % (q(8 + 2 * src, 2), src * 2048))
        self.lin(17, 16, (4, 2, 11), (2, 2, 8), (0, 2, 2))
        self.lin(56, 16, (2, 2, 9), (4, 2, 7), (2, 2, 5), (0, 2, 3))
        a("s_waitcnt lgkmcnt(2)", "v_pk_add_f32 v[8:9], v[8:9], v[10:11]", "s_waitcnt lgkmcnt(0)", "v_pk_add_f32 v[12:13], v[12:13], v[14:15]",
          "v_pk_add_f32 v[8:9], v[8:9], v[12:13]", "v_cvt_pk_bf16_f32 v7, v8, v9")
        self.st_intra("buffer_store_dword", "v7", 17, sAst)
        self.stamp("Apub", True)
        self.sexpr(100, L_WO, (sw, 4096))
        a("v_add_u32 v56, s100, v56")
        for t in range(1, 4):
            a("v_xor_b32 v%d, %d, v56" % (56 + t, t << 5))
        a("s_waitcnt vmcnt(%d)" % (1 + self.n_after_o))
        for t in range(4):
            for h in range(2):
                a("ds_read_b64_tr_b16 %s, v%d offset:%d" % (q(24 + 4 * t + 2 * h, 2), 56 + t, h * 2048))
        lda = [self.ld(8 + 4 * h, vA16, sAld, h * 1024) for h in range(2)]

        def prep_a():
            self.lin(5, 19, (4, 2, 11), (0, 4, 4))
            self.sexpr(100, L_SCR, (sw, 4))
            self.a("v_add_u32 v94, s100, v5", "v_add_u32 v5, s%d, v5" % sclr, "v_lshlrev_b32 v95, 1, v0")
            self.even_only(95, 19)
            self.a(*[x for x in self.lines(self.weight_load, "d", 0, None, 62) if x.startswith("v_")])
            if self.tsplit & 1:
                self.touch_addr(64, 65, T1)
            if self.lateg:
                self.a(*[x for x in self.lines(self.weight_load, "g", 0, None, 60) if x.startswith("v_")])
        n = self.with_loads("pollA", self.lines(prep_a), lda)
        a("s_waitcnt lgkmcnt(0)")

        def o_mfma(ts):
            for t in ts:
                self.mfma(40 + 4 * t, q(8), q(24 + 4 * t), False)
                self.mfma(40 + 4 * t, q(12), q(24 + 4 * t), True)
        self.poll(lda, [range(8, 12), range(12, 16)], 7, "pollA", lambda h: o_mfma([0]) if h else None, issued=n)

        def o_rest():
            o_mfma([1, 2, 3])
            for t in range(4):
                d = 40 + 4 * t
                self.a("v_add_f32 v%d, v%d, v%d" % (d, d, d + 1), "v_add_f32 v%d, v%d, v%d" % (d + 2, d + 2, d + 3),
                       "v_add_f32 v%d, v%d, v%d" % (20 + t, d, d + 2))
        ls = self.lines(o_rest)
        a(*ls[:3], ls[6], ls[7], ls[3], ls[8], ls[4], ls[5], *ls[9:12], "ds_write_b64 v5, v[20:21]", *ls[12:])
        a("ds_write_b64 v5, v[22:23] offset:8")
        self.late_loads("L_l1b")
        a("s_waitcnt lgkmcnt(0)", "s_barrier",
          "ds_read2st64_b32 v[16:17], v94 offset0:0 offset1:1", "ds_read2st64_b32 v[22:23], v94 offset0:2 offset1:3",
          "s_waitcnt lgkmcnt(1)")
        fin = self.lines(self.gemv4_fin, 7, 16)
        a(fin[0], "s_waitcnt lgkmcnt(0)", *fin[1:])
        self.st_cross(7)
        self.stamp("Bpub", True)
        if self.two("pollA"):
            a("s_waitcnt vmcnt(%d)" % (2 if self.near else 1))
        self.colsum_ld(80, OFF_CSG, sb)
        self.layer1("L_l1c")
        self.colsum_ld(24, OFF_CSQ, sw)
        if not self.clr2:
            self.sentinels(72)
            self.lin(76, 77, (3, 3, 12), (0, 3, 4))
            a("s_and_b32 s100, s%d, 0xffffdfff" % sBst, "s_add_u32 s100, s100, 0x4000")
            self.oob_unless(76, 77, "v_cmp_gt_u32 vcc, 32, v0")
            a("buffer_store_dwordx4 v[72:75], v76, %s, s100 offen sc1" % srd(sXW))
        a("L_l1c:")
        wt = self.lines(self.w_tiles, [("d", vWD)], 91, 7)

        def prep_b():
            a = self.a
            self.w_tiles([("g", vWG), ("q", vWQ)], 5, 7)
            a("v_and_b32 v5, 1, v0", "v_lshlrev_b32 v5, 4, v5", "v_lshlrev_b32 v5, v5, s%d" % sLO, "v_bfe_u32 v6, v0, 1, 2")
            for r in range(4):
                a("v_cmp_eq_u32 vcc, %d, v6" % r, "v_cndmask_b32 v%d, 0, v5, vcc" % (vSEL + r))
            self.x_off(94, 7, 6)
            self.lin(93, 7, (2, 4, 8), (0, 2, 4))
            a("s_bitcmp1_b32 s%d, 0" % sact, "s_cselect_b32 s%d, 0, -1" % stmp)
            self.part_off(92, 7, 10, "s%d" % stmp)
            self.lin(89, 7, (0, 5, 2), (5, 1, 1))
            self.sexpr(100, L_H, (sw, 128))
            a("v_add_u32 v89, s100, v89")
            self.mk_ix(90)
            self.lin(88, 7, (2, 2, 7), (0, 1, 4), (4, 2, 5))
            a("v_add_u32 v88, 0x%x, v88" % L_H)
            a(*[x for x in wt if not x.startswith("ds_")])
            self.sexpr(stmp, 0, (sRow, 1), (sw, 64))
            a("s_add_u32 s%d, s%d, 0x1000" % (sBst, sBst), "s_add_u32 s%d, s%d, 0x1000" % (sB2, sB2))
        self.prep_split("pollB", self.lines(prep_b), self.red_loads(vX, sBld))
        aux = [self.ld(vX + 4, 93, stmp)]
        a("s_waitcnt lgkmcnt(0)", "s_cmp_eq_u32 s%d, 0" % sw, "s_cbranch_scc0 L_nored1")
        self.cold += ["L_nored1:"]
        if self.clr2:
            self.cold += (["s_lshl2_add_u32 s100, s%d, s%d" % (slayer, sw), "s_cmp_eq_u32 s100, 5", "s_cbranch_scc0 L_nof2"]
                          + self.lines(self.fill_cross, vX, 2) + ["L_nof2:"])
        if self.wb & 4:
            self.cold += ["s_lshl_b32 s100, s%d, 2" % sj, "s_add_u32 s100, s100, s%d" % sw, "s_lshl_b32 s100, s100, 2", "s_add_u32 s100, s100, s%d" % slayer,
                          "s_cmp_eq_u32 s100, 14", "s_cbranch_scc0 L_nowb4", "buffer_wbl2 sc1", "L_nowb4:"]
        self.cold += ["s_waitcnt vmcnt(0)", "s_branch L_red1"]
        self.reduce_x("pollB", vX, vD, sBld)
        self.st_intra("buffer_store_dword", "v7", 94, sXst)
        a("v_lshlrev_b32 v%d, 16, v7" % vRES)
        self.stamp("XBpub", True)
        a("L_red1:", "s_barrier")
        ldx = [self.ld(vX, vA16, sXld)]
        n = self.with_loads("pollXB", self.lines(self.colsum_fin, 24, vCQ) + [x for x in wt if x.startswith("ds_")]
                            + self.lines(self.colsum_fin, 80, vCG) + self.lines(self.gemv_zero, vD), ldx)
        self.poll(ldx, [range(vX, vX + 4)], 7, "pollXB", lambda i: self.gemv4(vX, vWG, vD, 90), issued=n, then=aux)
        self.gemv4_fin(6, vD)
        self.st_intra("buffer_store_dword", "v6", 92, sCst)
        self.stamp("Cpub", True)
        a("v_mov_b32 v5, 0", "s_bitcmp1_b32 s%d, 1" % sact, "s_cbranch_scc0 L_nod")
        ldc = [self.ld(vX, vA16, sCld)]
        self.check_or_poll(aux, [range(vX + 4, vX + 8)], 7, "auxB", a.mark() - 1)
        n = self.with_loads("pollC", self.lines(self.stats, vX + 4, vD, False) + self.lines(self.sum4_init, vD + 2, vCG), ldc)
        self.poll(ldc, [range(vX, vX + 4)], 7, "pollC", lambda i: self.sum4(vX, vD, vD + 2), issued=n)
        a("v_permlane32_swap_b32 v%d, v%d" % (vD, vD + 1), "v_mul_f32 v%d, s%d, v%d" % (vD, sSC, vD),
          "v_mul_f32 v%d, v%d, v%d" % (vD, vD, vD + 1), "v_cvt_pk_bf16_f32 v%d, v%d, v%d" % (vD, vD, vD),
          "ds_write_b16 v89, v%d" % vD, "v_mov_b64 %s, 0" % q(vD + 4, 2), "s_waitcnt lgkmcnt(0)", "s_barrier", "ds_read_b128 %s, v88" % q(vX + 4), "s_waitcnt lgkmcnt(0)")
        self.smf(vD + 4, q(vX + 4), q(vWD, 8), 90)
        a("v_add_f32 v7, v%d, v%d" % (vD + 4, vD + 5))
        self.pack_pairs(5, 7)
        a("L_nod:")
        self.st_cross(5)
        self.stamp("Dpub", True)
        a("s_add_u32 s%d, s%d, 0x1000" % (stmp, sBld))
        self.layer1("L_last")
        a("s_waitcnt vmcnt(%d) lgkmcnt(0)" % (2 if self.near else 1))

        def prep_d():
            a = self.a
            a("v_mov_b32 v28, v94", "v_mov_b32 v30, v93", "s_add_u32 s%d, s%d, 0x3000" % (sBst, sBst),
              "s_add_u32 s%d, s%d, 0x3000" % (sB2, sB2), "s_add_u32 s%d, s%d, 0x4000" % (sBld, sBld))
            self.mk_ai()
            self.s_zero()
            self.part_off(29, 7, 12)
            self.q_addrs(31, 48, 7)
            self.lin(5, 7, (2, 2, 6), (5, 1, 8), (4, 1, 5), (0, 1, 4))
            self.sexpr(100, L_WQ, (sw, QSTR))
            a("v_add_u32 v5, s100, v5")
            self.lds_or_zero(5, 7, 2)
            self.ml_off(6, 7)
            self.sexpr(98, OFF_XD - OFF_XB, (sRow, 1), (sb, 64))
            self.sexpr(sWo, 0, (sg, 1 << 17), (sj, 2048), (sw, 512))
            a("s_add_u32 s%d, s%d, 0x%x" % (sclr, sXst, OFF_XD - OFF_XB), "s_add_u32 s99, s%d, 0x%x" % (sXld, OFF_XD - OFF_XB))
        self.prep_split("pollD", self.lines(prep_d), self.red_loads(8, stmp))
        a("s_waitcnt lgkmcnt(0)", "s_cmp_eq_u32 s%d, 0" % sw, "s_cbranch_scc0 %s" % ("L_fill3" if self.clr2 else "L_nored2"), "L_redd:")
        if self.clr2:
            self.cold += ["L_fill3:", "s_cmp_eq_u32 s%d, 1" % sw, "s_cbranch_scc0 L_nored2"] + self.lines(self.fill_cross, 16, 3) + ["s_branch L_nored2"]
        self.reduce_x("pollD", 8, 24, stmp)
        self.st_intra("buffer_store_dword", "v7", 28, sclr)
        a("s_cmp_eq_u32 s%d, 2" % slayer, "s_cbranch_scc1 L_out")
        a("v_lshlrev_b32 v%d, 16, v7" % vRES)
        self.stamp("XDpub")
        a("L_nored2:", "s_barrier")
        row = [self.ld(24, 30, 98)]
        ldx = [self.ld(52, vA16, 99)]
        n = self.with_loads("pollXD", self.lines(self.gemv_zero, 8), ldx)
        self.poll(ldx, [range(52, 56)], 7, "pollXD", lambda i: self.gemv4(52, vWQ, 8, vIX), issued=n, then=row)
        self.gemv4_fin(10, 8)
        self.st_intra("buffer_store_dword", "v10", 29, sEst)
        self.stamp("Epub")
        lde = [self.ld(52, vA16, sEld)]
        self.check_or_poll(row, [range(24, 28)], 7, "rowD", a.mark() - 1)
        n = self.with_loads("pollE", self.lines(self.stats, 24, 32, True) + self.lines(self.sum4_init, 34, vCQ), lde)
        self.poll(lde, [range(52, 56)], 7, "pollE", lambda i: self.sum4(52, 32, 34), issued=n)
        self.stamp("Eget")
        rd = self.q_assemble(32, 31, 48, self.lines(self.next_region) + ["s_mov_b32 s%d, 2" % slayer]
                             + (["v_min_u32 v38, 3, v0", "v_lshlrev_b32 v38, 7, v38"] if self.tsplit & 2 else []))
        if self.tsplit & 2:
            a(self.ld(38, 38, sWo, n=1))
        for i in range(7):
            a("v_mov_b64 %s, 0" % q(vO + 4 * i, 2))
        if self.stamps is not True:
            self.stamp("qrdy")
        ldm = [self.ld(16, vA16, sMLld)]

        def att():
            a = self.a
            self.qk()
            a("s_waitcnt vmcnt(%d) ; guards=v[52:55] after=v%d" % (self.tsplit >> 1, vS + 20))
            a("v_subrev_u32 v23, 0x%x, v31" % (L_Q - L_WQ))
            a("v_mov_b64 %s, 0" % q(vO + 28, 2))
            self.softmax(23, 6)
            for d in self.mlat:
                a(ldm[0] + " ; lat=%d tail=%d" % (d, self.mltail))
            for h in range(2):
                self.v_reads(5 + h, lambda i, e: q(8 * i + 4 * h + 2 * e, 2, "a"))
            self.v_reads(7)
            for n in range(4):
                self.p_read(2 * n, 5, n & 1)
                for i in range(8):
                    B = q(128 + 64 * n + 8 * i, 8) if n < 2 else q(8 * i, 8, "a") if n == 2 else "vp[%d]" % i
                    self.smf(vO + 4 * i, q(vQ + 4 * (n & 1)), B)
        ls = [x + " prio=%d" % self.p0 if x.endswith("mem=p0") else x for x in self.lines(att)]
        cut = len(ls) - self.mlcut
        out, t1 = schedule(ls[:cut], rd)
        if self.wb & 2:
            k = out.index("s_waitcnt vmcnt(0)") + 1
            out[k:k] = ["s_cmp_eq_u32 s%d, 0" % slead, "s_cbranch_scc0 L_nowb2", "buffer_wbl2 sc1", "L_nowb2:"]
        if self.stamps and self.stamps is not True:
            k = max(i for i, x in enumerate(out) if x.startswith("buffer_store")) + 1
            out[k:k] = self.lines(self.stamp, "mlpub")
            k = min(i for i, x in enumerate(out) if x.startswith("v_pk_fma"))
            out[k:k] = self.lines(self.stamp, "maxed")
        a(*out)
        a("s_waitcnt lgkmcnt(0)")
        if self.stamps is not True:
            self.stamp("pv2a")
        L = a.lab("ml2")
        a(L + "_w:")
        self.check([range(16, 20)], 6, len(self.mlat))
        a("s_cbranch_vccnz " + L)
        if self.stamps is not True:
            self.stamp("mlget")
        fin = self.lines(self.ml_finish, 16)
        fin = ["v_sub_f32 v58, v16, v20", "v_sub_f32 v59, v18, v20", "v_exp_f32 v58, v58", "v_exp_f32 v59, v59",
               "v_mul_f32 v7, v58, v17", "v_fmac_f32 v7, v59, v19"] + fin[6:]
        t2 = self.sched([x + " ; prio=200" for x in fin] + ls[cut:] + self.lines(self.o_write, 8, 60, True))
        a("s_waitcnt vmcnt(0)")
        self.est += (t1, t2)
        self.stamp("pv2")
        a("s_branch L_tail", L + ":", *ldm)
        a(*self.spin_count())
        a("s_branch %s_w" % L)
        a("L_last:", "s_lshr_b32 s100, s%d, 2" % sj, "s_xor_b32 s100, s100, s%d" % sg, "s_or_b32 s100, s100, s%d" % sw,
          "s_cmp_eq_u32 s100, 0", "s_cbranch_scc0 %s" % ("L_wb" if self.wb & 1 else "L_fin"))
        if self.wb & 1:
            self.cold += ["L_wb:", "s_cmp_eq_u32 s%d, 0" % slead, "s_cbranch_scc0 L_fin", "buffer_wbl2 sc1", "s_branch L_fin"]
        self.x_off(28, 7, 10)
        self.mk_srd(sWF, sOUT, "4096")
        a("s_lshl_b32 s%d, s%d, 5" % (sclr, sj))
        self.idle(self.at["last"][0])
        a(*self.red_loads(8, stmp))
        a("s_branch L_redd")
        a("L_out:")
        if self.probe:
            self.stamp("out")
            k = self.stamp_names.index(self.probe)
            a("v_readlane_b32 s100, v4, %d" % k, "v_readlane_b32 s101, v4, 0", "s_sub_u32 s100, s100, s101", "s_lshl_b32 s100, s100, 2",
              "s_min_u32 s100, s100, 100000", "s_memrealtime s[0:1]", "s_waitcnt lgkmcnt(0)", "s_mov_b32 s101, s0",
              "L_probe:", "s_memrealtime s[0:1]", "s_waitcnt lgkmcnt(0)", "s_sub_u32 s0, s0, s101", "s_cmp_lt_u32 s0, s100",
              "s_cbranch_scc1 L_probe")
        a("L_fin:")
        if self.stamps and not self.probe:
            self.stamp("end")
            a("s_lshl_b32 s100, s2, 2", "s_add_u32 s100, s100, s%d" % sw, "s_lshl_b32 s100, s100, 7",
              "s_add_u32 s100, s100, 0x%x" % (STAMP_OFF - 2 * LS), "s_mov_b32 s%d, 0x1000000" % (sWS + 2),
              "v_writelane_b32 v4, s%d, 30" % sspin, "v_writelane_b32 v4, s%d, 31" % (sWF + 2),
              "v_lshlrev_b32 v9, 2, v0", "v_cmp_gt_u32 vcc, 32, v0", "s_and_saveexec_b64 s[98:99], vcc",
              "buffer_store_dword v4, v9, %s, s100 offen sc1" % srd(sWS))
            if self.dbgstamps:
                a("v_readlane_b32 s100, v4, 0", "s_not_b32 s100, s100", "v_writelane_b32 v4, s100, 15",
                  "v_cmp_gt_u32 vcc, 16, v0", "s_and_saveexec_b64 s[98:99], vcc",
                  "buffer_atomic_umax v4, v9, %s, 0 offen sc1" % srd(sDBG))
        a("L_end:", "s_endpgm")
        a(*self.cold)
        a("L_codeend:")

    def build(self):
        self.prologue()
        self.stream()
        self.chain()
        self.a.pad()
        if self.win:
            self.est += align(self.a, self.win, "L_novote")
        head = open("cdna_kernels/" + KNAME[:-7] + ".s.ref").read().split("; Override launch")[0]
        return (head + "; @launch grid=(256,1,1) block=(256,1,1) lds=163840\n"
                '.amdgcn_target "amdgcn-amd-amdhsa--gfx950"\n.text\n.globl %s\n.p2align 8\n.type %s,@function\n%s:\n' % (KNAME, KNAME, KNAME)
                + self.a.text() +
                '.section .rodata,"a"\n.p2align 6\n.amdhsa_kernel %s\n  .amdhsa_next_free_vgpr 512\n  .amdhsa_next_free_sgpr 102\n'
                "  .amdhsa_accum_offset 256\n  .amdhsa_group_segment_fixed_size 0\n  .amdhsa_kernarg_size 96\n"
                "  .amdhsa_user_sgpr_count 2\n  .amdhsa_user_sgpr_kernarg_segment_ptr 1\n  .amdhsa_system_sgpr_workgroup_id_x 1\n"
                ".end_amdhsa_kernel\n" % KNAME)


if __name__ == "__main__":
    out = sys.argv[1]
    kw = eval("dict(%s)" % (sys.argv[2] if len(sys.argv) > 2 else ""))
    g = Gen(**kw)
    s = g.build()
    open(out, "w").write(s)
    if len(sys.argv) > 3:
        print("estimated attention cycles", g.est)
    if g.stamps:
        open(out[:-2] + ".names", "w").write("\n".join(g.stamp_names))
```

```python
import struct
import sys
from asmlib import Asm, align, schedule

KNAME = "interleave_layers__gqa_block_cached__glu_gated_bilinear__decode_kernel"

LS = 1 << 20
OFF_ML, OFF_A, OFF_C, OFF_XB, OFF_XD, OFF_E = 0, 4 << 10, 36 << 10, 52 << 10, 56 << 10, 60 << 10
OFF_CSG, OFF_CSQ = 56 << 10, 64 << 10
WS_SIZE = 3 * LS
T1 = [(OFF_C, 10), (LS + OFF_ML, 1)]
OFF_XW = 5 << 20
STAMP_OFF = 8 << 20
OOB = 0x7FFF0000

RING = 24576
L_WQ = 4 * RING
L_WO = L_WQ + 16384
L_WG = L_WO + 16384
L_WD = L_WG + 16384
L_SCR = L_WD + 8192
L_H = L_SCR + 1024
L_Q, QSTR = L_SCR + 1536, 2112
L_OOB = 0x30000
assert L_SCR + 8192 == 163840

sK, sV, sWS, sWF, sWL, sOUT, sDBG, sXI, sT = 28, 32, 36, 40, 44, 48, 52, 56, 96
sw, sg, sj, sb, ss, su, sring, srot, stmp, slayer = range(60, 70)
(sMLst, sMLld, sAst, sAld, sBst, sBld, sXst, sXld, sCst, sCld, sCS, sS1, sSC, sRow, sEst, sEld) = range(70, 86)
sWo, sWl = 86, 87
sM1, sstep = 88, 90
sspin, scmp = 94, 95
sclr, slead, sact = 3, 14, 15
sLO, sHI = 6, 7
sXW, sB2, svote = 24, 23, 22
searly = 10
sWo2, sWl2 = 8, 9
SPIN_LIMIT = 1 << 18

vL, vA16, vTRV, vRES = 0, 1, 2, 3
vQ, vO, vIX, vAI, vS = 8, 24, 56, 56, 64
vWG, vWD, vWQ, vCG, vCQ, vSEL, vX, vD = 8, 24, 32, 48, 50, 52, 56, 72
vKS, vKR = 240, 244
ORDER = [0, 1, 2, 3, 5, 6, 7, 4]
SLOT = {5: 2, 6: 4, 7: 0}
SCALE = 128 ** -0.5 * 1.4426950408889634
ONES = "0x3f803f80"


def f32(x):
    return "0x%08x" % struct.unpack("<I", struct.pack("<f", x))[0]


def q(r, n=4, k="v"):
    return "%s[%d:%d]" % (k, r, r + n - 1)


def srd(r):
    return "s[%d:%d]" % (r, r + 3)


class Gen:
    def __init__(self, depth=6, burst=4, stamps=False, force_slow=False, skip="", wpol="nt", kvpol="nt",
                 dbgstamps=False, tq=(2, 2, 3, 3), tg=(6, 6, 7, 7), to=(31, 31, 31, 31), lag=2, probe=None, cyc=False,
                 d0={5: 8, 6: 8}, tclr=25, dbl="pollXB,pollC,pollXD,pollE", gap=1, near=1, at={}, ipf=24,
                 sync=(4, 6, 9, 11, 13, 16, 18), wb=False, mlat=(208, 84), mltail=500, mlcut=1, p0=400, win=32, ipf0=False, back={}, outpol='sc1', ubits=(12, 13, 14, 15, 16), rot=(1, 4), tbits=None, off='', bars=(), early=None, eth=7, etill=32, estat=None, stpol='', clr2=1, clr1=4, clrw=None, clrpol='sc1', lateg=0, tml=27, ttouch=None, obar=False, vprobe=False, tsplit=3, fstr=4, fstr2=4, tlb='', ttlb=1, owait=(6, 6, 6, 6), dup=False):
        self.__dict__.update(locals())
        self.a = Asm()
        self.nst = 0
        self.cold = []
        self.nslow = 0
        self.est = ()
        self.tbits = tbits or tuple(b for b in range(12, 21) if b not in ubits)
        self.at = dict(pollA=(30, 14), pollB=(94,), pollXB=(8, 19), pollC=(5, 15), pollD=(84,), pollXD=(2, 16), pollE=(6, 14), last=(128,))
        self.at.update(at)
        assert self.two("pollXB") and self.two("pollXD")
        self.stamp_names = []

    def stamp(self, name, per_layer=False):
        if not self.stamps or (self.stamps is not True and name not in self.stamps):
            return
        a = self.a
        k = self.nst
        self.nst += 2 if per_layer else 1
        assert self.nst <= 28
        a("%s s[0:1]" % ("s_memtime" if self.cyc else "s_memrealtime"), "s_waitcnt lgkmcnt(0)")
        if per_layer:
            self.stamp_names += [name + "/1", name + "/2"]
            a("s_add_u32 m0, s%d, %d" % (slayer, k - 1), "v_writelane_b32 v4, s0, m0")
        else:
            self.stamp_names.append(name)
            a("v_writelane_b32 v4, s0, %d" % k)

    def mk_srd(self, d, p, size):
        self.a("s_mov_b32 s%d, s%d" % (d, p), "s_mov_b32 s%d, s%d" % (d + 1, p + 1),
               "s_mov_b32 s%d, %s" % (d + 2, size), "s_mov_b32 s%d, 0x20000" % (d + 3))

    def lin(self, d, t, *terms):
        first = True
        for sh, bits, sc in terms:
            r = d if first else t
            if sh + bits >= 6:
                src = vL
                if sh:
                    self.a("v_lshrrev_b32 v%d, %d, v0" % (r, sh)); src = r
            elif sh == 0:
                self.a("v_and_b32 v%d, %d, v0" % (r, (1 << bits) - 1)); src = r
            else:
                self.a("v_bfe_u32 v%d, v0, %d, %d" % (r, sh, bits)); src = r
            if first:
                if sc or src != d:
                    self.a("v_lshlrev_b32 v%d, %d, v%d" % (d, sc, src))
            else:
                self.a("v_lshl_add_u32 v%d, v%d, %d, v%d" % (d, src, sc, d))
            first = False

    def sexpr(self, d, const, *terms):
        a = self.a
        first = True
        for reg, mult in terms:
            r = d if first else 101
            if mult & (mult - 1) == 0:
                a("s_lshl_b32 s%d, s%d, %d" % (r, reg, mult.bit_length() - 1))
            else:
                a("s_mul_i32 s%d, s%d, %d" % (r, reg, mult))
            if not first:
                a("s_add_u32 s%d, s%d, s101" % (d, d))
            first = False
        if const:
            a("s_add_u32 s%d, s%d, 0x%x" % (d, d, const))

    def oob_unless(self, v, t, cond):
        self.a(cond, "v_mov_b32 v%d, 0x%x" % (t, OOB), "v_cndmask_b32 v%d, v%d, v%d, vcc" % (v, t, v))

    def even_only(self, v, t, cmp="0"):
        self.a("v_and_b32 v%d, 1, v0" % t)
        self.oob_unless(v, t, "v_cmp_eq_u32 vcc, %s, v%d" % (cmp, t))

    def st_intra(self, op, data, voff, soff, both=False):
        a = self.a
        slow = "%s %s, v%d, %s, s%d offen sc1" % (op, data, voff, srd(sWL), soff)
        a("%s %s, v%d, %s, s%d offen %s" % (op, data, voff, srd(sWF), soff, self.stpol))
        if both or self.dup:
            tk = a.mark()
            a(slow)
            a.uncounted(tk)
            return
        self.nslow += 1
        L = "L_slow%d" % self.nslow
        a("s_cmp_eq_u32 s%d, 0" % (sWF + 2), "s_cbranch_scc1 " + L, L + "_b:")
        self.cold += [L + ":", slow, "s_branch %s_b" % L]

    def ld(self, r, voff, soff, off=0, n=4, rs=sWS):
        return "buffer_load_dword%s %s, v%d, %s, s%d offen offset:%d sc1" % (
            "x%d" % n if n > 1 else "", q(r, n) if n > 1 else "v%d" % r, voff, srd(rs), soff, off)

    def spin_count(self):
        return ["s_add_u32 s%d, s%d, 1" % (sspin, sspin), "s_cmp_lt_u32 s%d, 0x%x" % (sspin, SPIN_LIMIT), "s_cselect_b32 s%d, -2, -1" % scmp]

    def two(self, name):
        return name in self.dbl.split(",")

    def rounds(self, name):
        return 1 + self.dbl.split(",").count(name)

    def poll(self, loads, regs, acc, name, spec=None, issued=0, then=()):
        a = self.a
        L = a.lab(name)
        k = self.rounds(name)
        n = len(loads)
        for r in range(issued, k):
            if r:
                a("s_sleep %d" % self.gap)
            a(*loads)
        a("s_branch %s_w" % L, L + ":")
        b = self.back.get(name, self.back.get("*", 0)) if k > 1 or name in self.back else 0
        for _ in range(b // 16):
            a("s_nop 15")
        if b % 16:
            a("s_nop %d" % (b % 16 - 1))
        a(*loads)
        a(*self.spin_count())
        a(L + "_w:")
        self.check(regs, acc, k * n, spec if k == 1 else None)
        a("s_cbranch_vccnz " + L, *then)
        if k > 1 and spec:
            for r in range(n):
                spec(r)
        if self.stamps is not True:
            self.stamp(name, True)

    def idle(self, n):
        if n >= 16:
            self.a("s_sleep %d" % (n // 16))
        if n > 0 and n % 16:
            self.a("s_nop %d" % (n % 16 - 1))

    def with_loads(self, name, work, loads):
        pos = 0
        for d in self.at[name][:self.rounds(name)]:
            self.a(*work[pos:pos + d])
            self.idle(pos + d - max(pos, len(work)))
            self.a(*loads)
            pos += d
        self.a(*work[pos:])
        return self.rounds(name)

    def check(self, regs, acc, n, spec=None):
        a = self.a
        have, rr = None, []
        for i, part in enumerate(regs):
            if n:
                a("s_waitcnt vmcnt(%d)" % (n - 1 - i))
            if spec:
                spec(i)
            rr += list(part)
            last = i == len(regs) - 1
            while rr:
                pool = ([have] if have is not None else []) + rr
                if len(pool) >= 3:
                    a("v_max3_u32 v%d, v%d, v%d, v%d" % (acc, *pool[:3])); rr = pool[3:]; have = acc
                elif not last:
                    break
                elif len(pool) == 2:
                    a("v_max_u32 v%d, v%d, v%d" % (acc, *pool)); rr = []; have = acc
                else:
                    have = pool[0]; rr = []
        a("v_cmp_lt_u32 vcc, s%d, v%d" % (scmp, have))

    def check_or_poll(self, loads, regs, acc, name, wait, pre=()):
        a = self.a
        tk = a.mark()
        a("s_branch L_%s_c" % name, "L_%s_r:" % name, *pre)
        a(*loads)
        a(*self.spin_count())
        a("s_waitcnt vmcnt(0)", "L_%s_c:" % name)
        a.uncounted(tk)
        a.wait_vm(wait)
        self.check(regs, acc, 0)
        a("s_cbranch_vccnz L_%s_r" % name)

    def mfma(self, d, A, B, c):
        self.a("v_mfma_f32_16x16x32_bf16 %s, %s, %s, %s" % (q(d), A, B, q(d) if c else "0"))

    def smf(self, d, A, B, ix=None):
        self.a("v_smfmac_f32_16x16x64_bf16 %s, %s, %s, v%d" % (q(d), A, B, ix or vIX))

    def mk_ix(self, v):
        self.a("v_and_b32 v%d, 1, v0" % v, "v_mul_u32_u24 v%d, 0xaaaa, v%d" % (v, v), "v_add_u32 v%d, 0x4444, v%d" % (v, v))

    def dpp(self, op, d, s0, s1, ctl, rm="0xf"):
        self.a("%s_dpp v%d, v%d, v%d %s row_mask:%s bank_mask:0xf" % (op, d, s0, s1, ctl, rm))

    def pack_pairs(self, d, v):
        self.a("v_mov_b32_dpp v%d, v%d quad_perm:[1,1,3,3] row_mask:0xf bank_mask:0xf" % (d, v),
               "v_cvt_pk_bf16_f32 v%d, v%d, v%d" % (d, v, d))

    def scatter(self, d, src, bits, first):
        a = self.a
        k = 0
        while k < len(bits):
            n = 1
            while k + n < len(bits) and bits[k + n] == bits[k] + n:
                n += 1
            r = d if first else 101
            a("s_and_b32 s%d, s%d, %d" % (r, src, ((1 << n) - 1) << k), "s_lshl_b32 s%d, s%d, %d" % (r, r, bits[k] - k))
            if not first:
                a("s_or_b32 s%d, s%d, s101" % (d, d))
            first = False
            k += n

    def tile_issue(self, T, between=None):
        a = self.a
        mask = sum(1 << b for b in self.tbits)
        if T:
            a("s_or_b32 s%d, s%d, 0x%x" % (srot, srot, ~mask & 0xffffffff), "s_add_u32 s%d, s%d, 1" % (srot, srot),
              "s_and_b32 s%d, s%d, 0x%x" % (srot, srot, mask))
        a("s_or_b32 s%d, s%d, s%d" % (stmp, srot, sstep), "s_add_u32 m0, s%d, %d" % (sring, (T % 6) * 4096))
        if T >= 6:
            a("s_waitcnt lgkmcnt(%d)" % (0 if between else 1))
        for jj in range(4):
            self.throttle(T, 4 * T + jj >= 128 - self.burst)
            va = vKS + jj if T < 16 else 5 + (jj & 1)
            a("buffer_load_dwordx4 v%d, %s, s%d offen offset:%d %s lds" % (va, srd(sK if T < 16 else sV), stmp, jj * 1024, self.kvpol))
            self.ltok.append(a.mark())
            self.tok[T] = a.mark()
            if between:
                between(jj)
        if 16 <= T < 31:
            a("v_xor_b32 v5, 64, v5", "v_xor_b32 v6, 64, v6")

    def throttle(self, T, burst):
        d = self.d0.get(T, self.depth) if self.d0 else self.depth
        if T > 1 and not burst and d < len(self.ltok):
            a = self.a
            e = self.early[T % len(self.early)] if self.early and self.sync[1] < T < self.etill else d
            a.wait_vm(self.ltok[-d])
            if e < d:
                L = a.lab("th")
                a("s_cmp_eq_u32 s%d, 0" % searly, "s_cbranch_scc1 " + L)
                a.wait_vm(self.ltok[-e])
                a(L + ":")

    def vreg(self, p, i):
        return 128 + 64 * (p >> 1) + 8 * i + 4 * (p & 1) if p < 4 else (96 if p == 4 else vS) + 4 * i

    def v_reads(self, p, dst=None):
        slot = (16 + 2 * p) % 6
        for i in range(8):
            for h in range(2):
                d = dst(i, h) if dst else q(self.vreg(p, i) + 2 * h, 2)
                self.a("ds_read_b64_tr_b16 %s, v%d offset:%d ; mem=v" % (d, vAI + i if i else vTRV, slot * 4096 + h * 512))

    def tile_consume(self, T):
        a = self.a
        if T < 16:
            a.wait_vm(self.tok[T])
            for st in range(4):
                a("ds_read_b128 %s, v%d offset:%d" % (q(16 * T + 4 * st, 4, "a"), vKR + st, (T % 6) * 4096))
        elif T & 1:
            a.wait_vm(self.tok[T])
            self.v_reads((T - 16) >> 1)

    def mk_ai(self):
        for i in range(1, 8):
            self.a("v_xor_b32 v%d, %d, v%d" % (vAI + i, i << 5, vTRV))
        self.mk_ix(vIX)

    def weight_load(self, kind, k, T, va=52):
        a = self.a
        t = va + 1
        pitch = {"q": 8192, "g": 3584, "d": 1024, "o": 1024}[kind]
        if k == 0:
            if kind == "o":
                self.lin(va, t, (5, 1, 14), (3, 2, 10), (0, 3, 4))
                self.mk_srd(sT, 12, "0x400000")
                self.sexpr(sWo, 0, (sg, 512 * 1024), (sb, 128 * 1024), (sw, 4096), (ss, 128))
                self.sexpr(sWl, L_WO, (sw, 4096))
            else:
                a("v_lshrrev_b32 v%d, 3, v0" % va, "v_mul_u32_u24 v%d, %d, v%d" % (va, pitch, va), "v_and_b32 v%d, 7, v0" % t,
                  "v_lshl_add_u32 v%d, v%d, 4, v%d" % (va, t, va))
            a("v_and_b32 v%d, 32, v0" % t, "v_xor_b32 v%d, v%d, v%d" % (va, va, t), "v_xor_b32 v%d, 64, v%d" % (t, va))
            if kind == "q":
                self.mk_srd(sT, 10, "0x400000")
                self.sexpr(sWo, 0, (sb, 128 * pitch), (sw, 32 * pitch), (sg, 1024), (ss, 128))
                self.sexpr(sWl, L_WQ, (sw, 4096))
            if kind in "gd":
                a("s_lshr_b32 s100, s%d, 1" % sg, "s_mul_i32 s100, s100, 7", "s_and_b32 s%d, s%d, 1" % (stmp, sg),
                  "s_lshl_b32 s%d, s%d, 2" % (stmp, stmp), "s_add_u32 s100, s100, s%d" % stmp)
            if kind == "g":
                a("s_and_b32 s%d, s%d, 3" % (stmp, ss), "s_add_u32 s100, s100, s%d" % stmp)
                self.sexpr(sWo, 0, (sb, 128 * pitch), (sw, 32 * pitch), (100, 128))
                self.sexpr(sWl, L_WG, (sw, 4096))
                a("s_bitcmp1_b32 s%d, 0" % sact, "s_cselect_b32 s100, 0x%x, 0" % (512 * pitch))
                self.mk_srd(sT, 16, "s100")
                a("s_cmp_ge_u32 s%d, 4" % ss, "s_cselect_b32 s%d, s18, s16" % sT, "s_cselect_b32 s%d, s19, s17" % (sT + 1))
            if kind == "d":
                a("s_add_u32 s100, s100, s%d" % sb)
                self.sexpr(sWo2, 0, (100, 64 * pitch), (sw, 16 * pitch), (ss, 128))
                self.sexpr(sWl2, L_WD, (sw, 2048))
                a("s_bitcmp1_b32 s%d, 1" % sact, "s_cselect_b32 s100, 0x%x, 0" % (1792 * pitch))
                self.mk_srd(sXI, 20, "s100")
            if T is None:
                return
        self.weight_issue(kind, k, T, va)

    def weight_issue(self, kind, k, T, va):
        a = self.a
        pitch = {"q": 8192, "g": 3584, "d": 1024, "o": 1024}[kind]
        so, sl, rs = (sWo2, sWl2, sXI) if kind == "d" else (sWo, sWl, sT)
        a("s_add_u32 s%d, s%d, 0x%x" % (stmp, so, (32 if kind == "o" else 8) * pitch * k), "s_add_u32 m0, s%d, 0x%x" % (sl, 1024 * k))
        if kind not in self.skip:
            if T < 31:
                self.throttle(T, False)
            a("buffer_load_dwordx4 v%d, %s, s%d offen %s lds" % (va + (k & 1), srd(rs), stmp, self.wpol))
            self.ltok.append(a.mark())
        self.wtok[kind] = a.mark()

    def lines(self, fn, *args):
        keep, self.a = self.a, Asm()
        fn(*args)
        out, self.a = [i.text for i in self.a.l], keep
        return out

    def sched(self, lines, pre=()):
        out, t = schedule(lines, pre)
        self.a(*out)
        return t

    def s_zero(self):
        for r in range(vS, vS + 32, 2):
            self.a("v_mov_b64 %s, 0" % q(r, 2))

    def qk(self):
        a = self.a
        for k, p in enumerate(ORDER):
            d = vS + 4 * k
            for sg_ in range(2):
                for hf in range(2):
                    self.smf(d, q(vQ + 8 * sg_ + 4 * hf), q(16 * (2 * p + sg_) + 8 * hf, 8, "a"))
            a("v_add_f32 v%d, v%d, v%d" % (d, d, d + 1), "v_add_f32 v%d, v%d, v%d" % (d + 1, d + 2, d + 3))
            a("v_max3_f32 v7, v7, v%d, v%d" % (d, d + 1) if k else "v_max_f32 v7, v%d, v%d" % (d, d + 1))

    def ml_off(self, v, t):
        self.a("v_mov_b32 v%d, v%d" % (v, vA16), "v_and_b32 v%d, 15, v0" % t)
        self.oob_unless(v, t, "v_cmp_eq_u32 vcc, 0, v%d" % t)

    def softmax(self, vw, voff):
        a = self.a
        for k in (1, 2, 4, 8):
            self.dpp("v_max_f32", 7, 7, 7, "row_ror:%d" % k)
        a("v_mul_f32 v20, s%d, v7" % sSC, "s_mov_b32 s100, %s" % ONES)
        for k in range(8):
            r = q(vS + 4 * k, 2)
            a("v_pk_fma_f32 %s, %s, s[%d:%d], v[20:21] op_sel_hi:[1,0,0] neg_lo:[0,0,1] neg_hi:[0,0,1]" % (r, r, sSC, sSC + 1))
        for k in range(8):
            r = vS + 4 * k
            a("v_exp_f32 v%d, v%d" % (r, r), "v_exp_f32 v%d, v%d" % (r + 1, r + 1), "v_cvt_pk_bf16_f32 v%d, v%d, v%d" % (r + 2, r, r + 1))
            if k & 1:
                a("ds_write2st64_b32 v%d, v%d, v%d offset0:%d offset1:%d ; mem=p%d" % (vw, r - 2, r + 2, k - 1, k, k - 1))
        for k in range(8):
            a("v_dot2_f32_bf16 v21, v%d, s100, %s" % (vS + 4 * k + 2, "v21" if k else "0"))
        for k in (1, 2, 4, 8):
            self.dpp("v_add_f32", 21, 21, 21, "row_ror:%d" % k)
        self.st_intra("buffer_store_dwordx2", "v[20:21]", voff, sMLst, both=True)

    def ml_finish(self, r):
        a = self.a
        a("v_sub_f32 v%d, v%d, v20" % (r, r), "v_sub_f32 v%d, v%d, v20" % (r + 2, r + 2),
          "v_exp_f32 v%d, v%d" % (r, r), "v_exp_f32 v%d, v%d" % (r + 2, r + 2),
          "v_mul_f32 v7, v%d, v%d" % (r, r + 1), "v_fmac_f32 v7, v%d, v%d" % (r + 2, r + 3))
        for k in (1, 2, 4, 8):
            self.dpp("v_add_f32", 7, 7, 7, "row_ror:%d" % k)
        a("v_rcp_f32 v7, v7")

    def lds_or_zero(self, v, t, mask, val=0):
        self.a("v_and_b32 v%d, %d, v0" % (t, mask), "v_cmp_eq_u32 vcc, %d, v%d" % (val, t), "v_mov_b32 v%d, 0x%x" % (t, L_OOB),
               "v_cndmask_b32 v%d, v%d, v%d, vcc" % (v, t, v))

    def p_read(self, k, va, buf):
        self.a("ds_read_b128 %s, v%d offset:%d ; mem=p%d" % (q(vQ + 4 * buf), va, k * 256, k & ~1))

    def pv_dense(self, p, buf, lgkm=None):
        for i in range(8):
            if lgkm is not None:
                self.a("s_waitcnt lgkmcnt(%d)" % lgkm(i))
            self.mfma(vO + 4 * i, q(vQ + 4 * buf), q(self.vreg(p, i)), p > 0)

    def o_write(self, t0, t1, sparse):
        a = self.a
        self.sexpr(100, L_SCR, (sw, 2048))
        a("v_add_u32 v22, s100, v%d" % vA16)
        for h, t in enumerate((t0, t1)):
            for i in range(4):
                o = vO + 16 * h + 4 * i
                a("v_add_f32 v%d, v%d, v%d" % (t + i, o, o + 1) if sparse else "v_mul_f32 v%d, v7, v%d" % (t + i, o))
            if sparse:
                for i in (0, 2):
                    a("v_pk_mul_f32 %s, %s, v[6:7] op_sel:[0,1] op_sel_hi:[1,1]" % (q(t + i, 2), q(t + i, 2)))
            a("ds_write_b128 v22, %s offset:%d" % (q(t), 1024 * h))

    def w_tiles(self, kinds, va, t):
        a = self.a
        last = None
        for kind, dst in kinds:
            qs = 11 if kind == "d" else 12
            if qs != last:
                self.lin(va, t, (4, 1, 5), (3, 1, 6))
                a("s_lshl_b32 s100, s%d, 5" % sw, "v_xor_b32 v%d, s100, v%d" % (va, va), "v_add_u32 v%d, 0x%x, v%d" % (va, L_WQ, va))
                for sh, bits, sc in ((5, 1, qs), (3, 1, 10), (4, 1, 9), (2, 1, 7), (0, 2, 3)):
                    a("v_bfe_u32 v%d, v0, %d, %d" % (t, sh, bits), "v_lshl_add_u32 v%d, v%d, %d, v%d" % (va, t, sc, va))
                last = qs
            base = {"q": L_WQ, "g": L_WG, "d": L_WD}[kind] - L_WQ
            for kb in range(2 if kind == "d" else 4):
                for h in range(2):
                    a("ds_read_b64_tr_b16 %s, v%d offset:%d" % (q(dst + 4 * kb + 2 * h, 2), va,
                                                                  base + (kb & 1) * (2 << qs) + (kb >> 1) * 2048 + h * 256))

    def gemv_zero(self, d):
        self.a("v_mov_b64 %s, 0" % q(d, 2), "v_mov_b64 %s, 0" % q(d + 6, 2))

    def gemv4(self, x, W, d, ix):
        for k in range(2):
            self.smf(d + 4 * k, q(x), q(W + 8 * k, 8), ix)

    def gemv4_fin(self, out, d):
        self.a("v_add_f32 v%d, v%d, v%d" % (d, d, d + 1), "v_add_f32 v%d, v%d, v%d" % (d + 6, d + 6, d + 7),
               "v_add_f32 v%d, v%d, v%d" % (d, d, d + 6))
        self.pack_pairs(out, d)

    def colsum_pub(self, W, ones, d, va, t, off, *terms):
        a = self.a
        for r in range(4):
            a("v_mov_b32 v%d, %s" % (ones + r, ONES))
        self.lin(va, t, (0, 1, 10), (1, 3, 4))
        self.oob_unless(va, t, "v_cmp_gt_u32 vcc, 16, v0")
        self.sexpr(100, off, (sCS, 1), (sb, 4), (sw, 128), *terms)
        a("s_waitcnt lgkmcnt(0)")
        for kb in range(4):
            self.mfma(d, q(ones), q(W + 4 * kb), kb > 0)
        self.st_intra("buffer_store_dword", "v%d" % d, va, 100)

    def colsum_ld(self, r, off, sel):
        self.sexpr(100, off, (sCS, 1), (sel, 2048))
        self.a(self.ld(r, vA16, 100, 0), self.ld(r + 4, vA16, 100, 1024))

    def colsum_fin(self, r, c):
        for k in range(2):
            b = r + 4 * k
            self.a("v_add_f32 v%d, v%d, v%d" % (b, b, b + 1), "v_add_f32 v%d, v%d, v%d" % (b + 2, b + 2, b + 3),
                   "v_add_f32 v%d, v%d, v%d" % (b, b, b + 2), "v_mul_f32 v%d, %s, v%d" % (c + k, f32(-1.0 / 512), b))

    def stats(self, x, t, att):
        a = self.a
        s1, s2 = t, t + 1
        a("s_mov_b32 s100, %s" % ONES)
        for k in range(4):
            a("v_dot2_f32_bf16 v%d, v%d, s100, %s" % (s1, x + k, "v%d" % s1 if k else "0"),
              "v_dot2_f32_bf16 v%d, v%d, v%d, %s" % (s2, x + k, x + k, "v%d" % s2 if k else "0"))
        a("v_permlane32_swap_b32 v%d, v%d" % (s1, s2), "v_add_f32 v%d, v%d, v%d" % (s1, s1, s2))
        for k in (1, 2, 4, 8):
            self.dpp("v_add_f32", s1, s1, s1, "row_ror:%d" % k)
        self.dpp("v_add_f32", s1, s1, s1, "row_bcast:15", "0xa")
        a("v_readlane_b32 s%d, v%d, 31" % (sS1, s1), "v_mul_f32 v%d, %s, v%d" % (s1, f32(1.0 / 512), s1),
          "v_mov_b32 v%d, s%d" % (s2, sS1), "v_mul_f32 v%d, %s, v%d" % (s2, f32(1.0 / 512), s2),
          "v_fma_f32 v%d, -v%d, v%d, v%d" % (s1, s2, s2, s1), "v_max_f32 v%d, 0, v%d" % (s1, s1),
          "v_add_f32 v%d, %s, v%d" % (s1, f32(1e-5), s1))
        if att:
            a("v_rsq_f32 v%d, v%d" % (s1, s1), "v_mul_f32 v%d, %s, v%d" % (s1, f32(SCALE), s1))
        else:
            a("v_rcp_f32 v%d, v%d" % (s1, s1), "s_nop 0")
        a("v_readlane_b32 s%d, v%d, 63" % (sSC, s1))

    def sum4_init(self, acc, c):
        self.a("v_mul_f32 v%d, s%d, v%d" % (acc, sS1, c), "v_mul_f32 v%d, s%d, v%d" % (acc + 1, sS1, c + 1))

    def sum4(self, x, acc, init):
        for k in range(4):
            c = acc if k else init
            self.a("v_dot2_f32_bf16 v%d, v%d, s%d, v%d" % (acc, x + k, sLO, c),
                   "v_dot2_f32_bf16 v%d, v%d, s%d, v%d" % (acc + 1, x + k, sHI, c + 1))

    def q_addrs(self, vw, vr, t):
        a = self.a
        self.lin(vw, t, (3, 3, 5), (0, 1, 4), (1, 2, 2))
        self.sexpr(100, L_Q, (sw, QSTR))
        a("v_add_u32 v%d, s100, v%d" % (vw, vw))
        self.lin(vr, t, (4, 2, 5), (0, 1, 4))
        a("v_bfe_u32 v%d, v0, 2, 2" % t, "v_mul_u32_u24 v%d, %d, v%d" % (t, QSTR, t), "v_add_u32 v%d, v%d, v%d" % (vr, vr, t),
          "v_add_u32 v%d, 0x%x, v%d" % (vr, L_Q, vr), "v_mov_b32 v%d, v%d" % (vr + 1, vr))
        self.lds_or_zero(vr, t, 2, 0)
        self.lds_or_zero(vr + 1, t, 2, 2)

    def q_assemble(self, acc, vw, vr, fill=()):
        a = self.a
        a("v_cvt_pk_bf16_f32 v%d, v%d, v%d" % (acc, acc, acc + 1), "ds_write_b32 v%d, v%d" % (vw, acc), *fill)
        a("s_waitcnt lgkmcnt(0)", "s_barrier")
        rd = ["ds_read_b128 %s, v%d offset:%d" % (q(vQ + 4 * st), vr + (st >> 1), (st & 1) * 128) for st in range(4)]
        a(*rd)
        return rd

    def late_loads(self, name):
        self.layer1(name)
        for k in range(4 - self.lateg, 4):
            self.weight_issue("g", k, 32, 60)
        for k in range(2):
            self.weight_issue("d", k, 32, 62)
        if self.tsplit & 1:
            self.touch(64)
        self.a(name + ":")

    def next_region(self):
        for r in (sWS, sWF, sWL):
            self.a("s_add_u32 s%d, s%d, 0x%x" % (r, r, LS), "s_addc_u32 s%d, s%d, 0" % (r + 1, r + 1))
        self.a("s_sub_u32 s%d, s%d, 0x%x" % (sCS, sCS, LS))

    def leader_fill(self):
        a = self.a
        a("v_mov_b32 v8, -1", "v_mov_b32 v9, -1", "v_mov_b32 v10, -1", "v_mov_b32 v11, -1",
          "s_or_b32 s%d, s%d, s%d" % (slead, sj, sw), "s_cmp_eq_u32 s%d, 0" % slead, "s_cbranch_scc0 L_nolead0")
        tk = a.mark()
        a("s_lshl_b32 s100, s%d, 17" % sg)
        for k in range((512 + 32 * self.fstr + 1023) // 1024):
            a("buffer_store_dwordx4 v[8:11], v%d, %s, s100 offen sc1" % (vA16, srd(sWS)), "s_add_u32 s100, s100, 1024")
        a("L_nolead0:")
        a.uncounted(tk)
        self.tok_lead = tk

    def leader_flag(self, word, name, tok=None, val="1"):
        a = self.a
        a("s_cmp_eq_u32 s%d, 0" % slead, "s_cbranch_scc0 " + name)
        if tok is not None:
            a.wait_vm(tok)
        tk = a.mark()
        a("v_mov_b32 v55, %s" % val, "v_lshlrev_b32 v54, 8, v0", "s_lshl_b32 s100, s%d, 2" % sg,
          "buffer_store_dword v55, v54, %s, s100 offen offset:%d sc1" % (srd(sDBG), word), name + ":")
        a.uncounted(tk)

    def flag_load(self, v, word, own):
        a = self.a
        if own:
            a("s_lshl_b32 s100, s%d, 2" % sg, "v_mov_b32 v%d, s100" % v)
        else:
            a("v_and_b32 v%d, 7, v0" % v, "v_lshlrev_b32 v%d, 2, v%d" % (v, v))
        return a("buffer_load_dword v%d, v%d, %s, 0 offen offset:%d sc1" % (v, v, srd(sDBG), word))

    def flag_check(self, v, word, own, tok, name):
        a = self.a
        a.wait_vm(tok)
        tk = a.mark()
        a("s_branch %s_c" % name, name + "_s:", "s_sleep 8")
        self.flag_load(v, word, own)
        a("s_add_u32 s%d, s%d, 1" % (sspin, sspin), "s_cmp_lt_u32 s%d, 0x%x" % (sspin, SPIN_LIMIT), "s_waitcnt vmcnt(0)",
          "s_cbranch_scc0 %s_d" % name, name + "_c:", "v_cmp_eq_u32 vcc, 0, v%d" % v, "s_cbranch_vccnz %s_s" % name, name + "_d:")
        a.uncounted(tk)

    def fill_intra(self, v, t, d, start, per_wave):
        a = self.a
        self.sexpr(100, start, (sg, 1 << 17), (sj, 4 * per_wave), (sw, per_wave))
        a("v_mov_b32 v%d, v%d" % (v, vA16))
        self.oob_unless(v, t, "v_cmp_gt_u32 vcc, %d, v0" % (per_wave // 16))
        if "fill" not in self.off:
            self.st_intra("buffer_store_dwordx4", q(d), v, 100)

    def sentinels(self, d):
        for r in range(4):
            self.a("v_mov_b32 v%d, -1" % (d + r))

    def prologue(self):
        a = self.a
        if self.stamps:
            a("%s s[92:93]" % ("s_memtime" if self.cyc else "s_memrealtime"))
        a("s_load_dwordx16 s[4:19], s[0:1], 0", "s_load_dwordx8 s[20:27], s[0:1], 64",
          "v_lshrrev_b32 v1, 6, v0", "s_cmpk_ge_u32 s2, 256", "v_readfirstlane_b32 s%d, v1" % sw, "s_cbranch_scc1 L_end")
        a("v_and_b32 v0, 63, v0", "s_and_b32 s%d, s2, 7" % sg, "s_lshr_b32 s%d, s2, 3" % sj, "s_lshr_b32 s%d, s2, 6" % sb,
          "s_and_b32 s%d, s%d, 7" % (ss, sj), "s_lshl2_add_u32 s%d, s%d, s%d" % (su, ss, sw),
          "s_lshl3_add_u32 s100, s%d, s%d" % (sb, sg), "s_lshl_b32 s100, s100, 21", "s_mul_i32 s%d, s%d, %d" % (sring, sw, RING))
        if self.ubits == (12, 13, 14, 15, 16):
            a("s_lshl_b32 s%d, s%d, 12" % (sstep, su))
        else:
            self.scatter(sstep, su, self.ubits, True)
        if self.rot == (1, 4):
            a("s_lshl2_add_u32 s%d, s%d, s%d" % (stmp, sb, sg))
            self.scatter(srot, stmp, self.tbits, True)
        elif any(self.rot):
            self.sexpr(stmp, 0, *[(r, m) for r, m in zip((sg, sb), self.rot) if m])
            self.scatter(srot, stmp, self.tbits, True)
        else:
            a("s_mov_b32 s%d, 0" % srot)
        a("v_lshrrev_b32 v5, 4, v0", "v_and_b32 v6, 15, v0", "v_xor_b32 v7, v5, v6", "v_lshlrev_b32 v7, 4, v7",
          "v_lshl_add_u32 v%d, v5, 8, v7" % vKS)
        a("v_xor_b32 v%d, 64, v%d" % (vKS + 1, vKS), "v_xor_b32 v%d, 128, v%d" % (vKS + 2, vKS), "v_xor_b32 v%d, 64, v%d" % (vKS + 3, vKS + 2),
          "s_lshl_b32 s98, s2, 10", "s_bitset1_b32 s98, 22", "v_mov_b32 v9, s98", "v_xor_b32 v10, 0x2000, v9",
          "s_lshl_b32 s%d, 1, 21" % (sK + 2), "s_mov_b32 s%d, 0x20000" % (sK + 3))
        self.tok, self.ltok, self.wtok = {}, [], {}
        first = self.lines(self.tile_issue, 0)
        self.tok, self.ltok = {}, []
        a(*first[:2])
        a("s_waitcnt lgkmcnt(0)", "global_load_dword v95, v9, s[26:27] sc1" if "cal" not in self.off else "s_nop 0")
        tok_cal = a.mark()
        a("global_load_dword v95, v10, s[26:27] offset:128 sc1" if "cal" not in self.off else "s_nop 0", "s_add_u32 s%d, s6, s100" % sK, "s_addc_u32 s%d, s7, 0" % (sK + 1))
        for x in first[2:]:
            self.ltok.append(a(x))
        self.tok[0] = a.mark()
        a("s_cmp_eq_u32 s%d, 0" % sw, "s_cbranch_scc0 L_novote")
        a.wait_vm(tok_cal)
        a("s_sleep 1", "s_getreg_b32 s99, hwreg(HW_REG_IB_STS, 0, 4)", "L_novote:")
        self.tile_issue(1)
        a("s_lshl_b32 s%d, s%d, 12" % (su, su))
        a("s_add_u32 s%d, s8, s100" % sV, "s_addc_u32 s%d, s9, 0" % (sV + 1),
          "s_mov_b32 s%d, 0x200000" % (sV + 2), "s_mov_b32 s%d, 0x20000" % (sV + 3))
        a("v_lshl_add_u32 v%d, v6, 8, v7" % vKR, "v_add_u32 v%d, s%d, v%d" % (vKR, sring, vKR))
        for st in range(1, 4):
            a("v_xor_b32 v%d, %d, v%d" % (vKR + st, st << 6, vKR))
        a("v_lshlrev_b32 v%d, 4, v0" % vA16)
        self.mk_srd(sDBG, 24, "256")
        self.mk_srd(sWS, 26, "0x%x" % WS_SIZE)
        self.mk_srd(sOUT, 22, "4096")
        a("s_add_u32 s%d, s26, 0x%x" % (sXW, OFF_XW), "s_addc_u32 s%d, s27, 0" % (sXW + 1),
          "s_mov_b32 s%d, 0x100000" % (sXW + 2), "s_mov_b32 s%d, 0x20000" % (sXW + 3))
        if self.stamps:
            a("v_mov_b32 v4, 0", "v_writelane_b32 v4, s92, 0")
            self.nst = 1
            self.stamp_names.append("entry")
        self.stamp("start")
        a("s_cmp_gt_u32 s99, 4", "s_cselect_b32 s%d, 16, 0" % svote)
        self.setup_b()
        self.setup_c()

    def setup_a(self):
        a = self.a
        self.mk_srd(sXI, 4, "4096")
        self.lin(6, 7, (4, 2, 6), (2, 2, 10), (0, 2, 4))
        self.lin(5, 7, (5, 1, 10), (4, 1, 11), (0, 4, 1))
        a("s_lshl_b32 s100, s%d, 8" % sb, "s_lshl_b32 s101, s%d, 10" % sb, "s_lshl_b32 s%d, s%d, 5" % (stmp, sj),
          "buffer_load_dwordx4 %s, v6, %s, s100 offen" % (q(vX), srd(sXI)),
          "buffer_load_dwordx4 %s, v%d, %s, s101 offen" % (q(vX + 4), vA16, srd(sXI)),
          "buffer_load_ushort v%d, v5, %s, s%d offen" % (vRES, srd(sXI), stmp))
        self.tok_pro = a.mark()

    def early_fill(self):
        a = self.a
        if "clr" in self.off:
            return
        if self.clrw is None:
            self.sexpr(100, 0, (sj, 32768), (sg, 2048), (sw, 512))
            a("v_mov_b32 v12, v%d" % vA16)
            self.oob_unless(12, 13, "v_cmp_gt_u32 vcc, 32, v0")
            a("buffer_store_dwordx4 v[8:11], v12, %s, s100 offen %s" % (srd(sXW), self.clrpol))
            return
        tk = a.mark()
        a("s_cmp_eq_u32 s%d, %d" % (sw, self.clrw), "s_cbranch_scc0 L_noclr")
        self.sexpr(100, 0, (sj, 32768), (sg, 2048))
        for k in range(2):
            a("buffer_store_dwordx4 v[8:11], v%d, %s, s100 offen offset:%d %s" % (vA16, srd(sXW), 1024 * k, self.clrpol))
        a("L_noclr:")
        a.uncounted(tk)

    def setup_b(self):
        a = self.a
        self.mk_srd(sWF, sWS, "0")
        self.mk_srd(sWL, sWS, "0x%x" % WS_SIZE)
        G = (sg, 1 << 17)
        self.sexpr(sCS, 2 * LS, G)
        self.sexpr(sEst, OFF_E, G, (ss, 512), (sw, 128), (sb, 4))
        self.sexpr(sEld, OFF_E, G, (sb, 4096), (sw, 1024))
        self.sexpr(sMLld, OFF_ML, G, (sb, 1024))
        a("s_lshr_b32 s%d, s%d, 9" % (sMLst, su), "s_add_u32 s%d, s%d, s%d" % (sMLst, sMLst, sMLld),
          "s_mov_b32 s%d, 0" % slayer, "s_mov_b32 s%d, 0" % sspin, "s_mov_b32 s%d, -2" % scmp,
          "s_mov_b32 s%d, 0x3f80" % sLO, "s_mov_b32 s%d, 0x3f800000" % sHI,
          "s_and_b32 s100, s%d, 3" % ss, "s_cmp_eq_u32 s100, 3", "s_cselect_b32 s%d, 0, 1" % sact,
          "s_cmp_eq_u32 s%d, 3" % sb, "s_cselect_b32 s100, 0, 2", "s_or_b32 s%d, s%d, s100" % (sact, sact),
          "s_bitcmp1_b32 s%d, 0" % sg, "s_cselect_b32 s%d, s%d, 3" % (sact, sact))

    def setup_c(self):
        a = self.a
        G = (sg, 1 << 17)
        a("s_lshr_b32 s%d, s%d, 2" % (stmp, ss), "s_and_b32 s100, s%d, 3" % ss)
        self.sexpr(sAst, OFF_A, G, (sw, 8192), (stmp, 1024), (sb, 64), (100, 16))
        self.sexpr(sCst, OFF_C, G, (100, 4096), (stmp, 512), (sw, 128), (sb, 4))
        self.sexpr(sAld, OFF_A, G, (sb, 8192), (sw, 2048))
        self.sexpr(sCld, OFF_C, G, (sb, 4096), (sw, 1024))
        self.sexpr(sBst, 0, (su, 8), (sg, 512), (sb, 128))
        self.sexpr(sBld, 0, (sj, 32768))
        a("s_lshr_b32 s%d, s%d, 1" % (stmp, sj), "s_and_b32 s100, s%d, 1" % sj)
        self.sexpr(sXst, OFF_XB, G, (stmp, 256), (100, 32))
        self.sexpr(sXld, OFF_XB, G, (sb, 1024))
        self.sexpr(sRow, OFF_XB, G)
        a("s_mov_b32 s%d, 0xff00ff00" % sM1, "s_mov_b32 s%d, 0xff00ff00" % (sM1 + 1))
        self.lin(vTRV, 7, (2, 1, 12), (4, 2, 10), (3, 1, 8), (4, 1, 7), (2, 1, 6), (3, 1, 5), (0, 2, 3))
        a("v_add_u32 v%d, s%d, v%d" % (vTRV, sring, vTRV))

    def part_off(self, v, t, bs, cmp="0"):
        self.lin(v, t, (4, 2, bs), (0, 4, 3))
        self.even_only(v, t, cmp)

    def group_flag(self, k, val):
        a = self.a
        a("v_mov_b32 v14, %s" % val, "v_add_u32 v15, s%d, v0" % sw, "v_lshlrev_b32 v15, 24, v15")
        self.sexpr(100, 0 if k else 512, (sg, 1 << 17), (sj, self.fstr2 if k else self.fstr))
        self.st_intra("buffer_store_dword", "v14", 15, 100)

    def stream(self):
        a = self.a
        lag = self.lag
        t_dl, t_f1, t_l1, t_c1, t_f2, t_l2, t_c2 = self.sync
        wl = {}
        for kind, ts in (("q", self.tq), ("g", self.tg[:4 - self.lateg]), ("o", self.to)):
            for k, T in enumerate(ts):
                wl.setdefault(T, []).append((kind, k))
        tqk = max(t_c2 + 2, 16 + lag)
        assert self.clr1 <= t_dl and self.tq[-1] + 2 <= t_c1 and self.tg[-1] + 2 <= t_f2
        pvat = {}
        for p in range(5):
            pvat.setdefault(max(tqk + 3 + (p >> 1), 17 + 2 * p + lag), []).append(p)
        assert min(self.ipf, self.tml, self.tclr, self.ttouch or 99) >= tqk + 3 and max(pvat) < 32
        vF = 94
        G17 = "s_lshl_b32 s101, s%d, 17" % sg
        qk = None
        for T in range(1, 32):
            if T == 16:
                self.lin(5, 7, (4, 2, 8), (0, 4, 4))
                a("v_and_b32 v7, 16, v0", "v_lshlrev_b32 v7, 1, v7", "v_xor_b32 v5, v5, v7", "v_xor_b32 v6, 128, v5")
                self.mk_ai()
            between = None
            if T in (tqk + 1, tqk + 2):
                def between(jj):
                    a(*qk.pop(0))
            if T in self.bars:
                a("s_barrier")
            if T > 1:
                self.tile_issue(T, between)
            if T == 1:
                if self.ipf0:
                    a("s_getpc_b64 s[98:99]", "L_pc0:")
                    self.sexpr(100, 0, (sj, 512), (sw, 128))
                    a("s_min_u32 s100, s100, L_codeend-L_pc0-4", "v_mov_b32 v93, s100", "global_load_dword v93, v93, s[98:99]")
                self.leader_fill()
            for kind, k in wl.get(T, []):
                if kind == "o" and T == 31:
                    if k == 0:
                        self.weight_load(kind, 0, None, 18)
                        if self.obar:
                            a("s_barrier")
                    if not self.owait or self.owait[k] < 5:
                        self.weight_issue(kind, k, T, 18)
                else:
                    self.weight_load(kind, k, T, 52 if T < 20 else 18)
            if self.stamps is not True and T > 1:
                self.stamp("T%02d" % T)
            if T == 1:
                self.setup_a()
            if T == self.clr1:
                self.early_fill()
            if T == self.ttlb and self.tlb:
                self.page_touch()
            if lag <= T < 26 + lag:
                self.tile_consume(T - lag)
            if T == 2:
                self.leader_flag(0, "L_nolead1", self.tok_lead)
            if T == t_dl:
                if self.early and self.estat is None:
                    self.flag_load(vF - 1, 0, False)
                tok_f = self.flag_load(vF, 0, True) if "f0" not in self.off else a.mark()
            if T == t_f1:
                if "f0" not in self.off:
                    self.flag_check(vF, 0, True, tok_f, "L_f0")
                if self.early and self.estat is None:
                    a("v_cmp_ne_u32 vcc, 0, v%d" % (vF - 1), "s_and_b32 s100, vcc_lo, 0xff", "s_bcnt1_i32_b32 s100, s100",
                      "s_cmp_lt_u32 s100, %d" % self.eth, "s_cselect_b32 s%d, 1, 0" % searly)
                    if self.stamps:
                        a("v_writelane_b32 v4, s100, 27")
                elif self.early:
                    a("s_getreg_b32 s100, hwreg(HW_REG_XCC_ID, 0, 3)", "s_lshr_b32 s100, 0x%x, s100" % self.estat, "s_and_b32 s%d, s100, 1" % searly)
                a("s_barrier", "s_getreg_b32 s%d, hwreg(HW_REG_XCC_ID, 0, 4)" % stmp, "s_or_b32 s%d, s%d, s%d" % (stmp, stmp, svote))
                if "f1" not in self.off:
                    self.group_flag(0, "s%d" % stmp)
                if "byte" in self.off:
                    self.sexpr(100, 0, (sg, 32), (sj, 1))
                    a("v_mov_b32 v14, 64", "v_add_u32 v15, s%d, v0" % sw, "v_lshlrev_b32 v15, 8, v15",
                      "buffer_store_byte v14, v15, %s, s100 offen sc1" % srd(sDBG))
                a("v_lshlrev_b32 v%d, 16, v%d" % (vRES, vRES))
                self.stats(vX + 4, 8, True)
            if T == t_l1 and "byte" in self.off:
                a("v_lshlrev_b32 v93, 2, v0", "buffer_load_dword v93, v93, %s, 0 offen sc1" % srd(sDBG))
            if T in (t_l1, t_l2):
                fld = self.ld(vF, vF + 1, 101, 512 if T == t_l1 else 0, n=1)
                a("v_and_b32 v%d, 31, v0" % (vF + 1), "v_mul_u32_u24 v%d, %d, v%d" % (vF + 1, self.fstr if T == t_l1 else self.fstr2, vF + 1), G17)
                tok_f = a(fld) if ("f1" if T == t_l1 else "f2") not in self.off else a("s_getreg_b32 s100, hwreg(HW_REG_XCC_ID, 0, 4)", "v_mov_b32 v%d, s100" % vF)
            if T == t_c1:
                self.check_or_poll([fld], [[vF]], 7, "xcc", max(tok_f, self.wtok["q"]), [G17])
                a("s_barrier")
                self.w_tiles([("q", vWQ)], 5, 7)
                a("v_cmp_lt_u32 vcc, 15, v%d" % vF, "v_and_b32 v%d, 15, v%d" % (vF, vF),
                  "s_and_b32 s100, vcc_lo, 0x55555555", "s_and_b32 s101, vcc_lo, 0xaaaaaaaa",
                  "s_bcnt1_i32_b32 s100, s100", "s_bcnt1_i32_b32 s101, s101")
                if self.stamps:
                    a("v_writelane_b32 v4, s100, 28", "v_writelane_b32 v4, s101, 29")
                a("s_getreg_b32 s%d, hwreg(HW_REG_XCC_ID, 0, 4)" % svote, "s_sub_u32 s%d, s100, s101" % stmp, "s_sub_u32 s101, s101, s100",
                  "s_bitcmp1_b32 s%d, 2" % svote, "s_cselect_b32 s101, s101, s%d" % stmp, "s_add_u32 s101, s101, 64")
                self.leader_flag(32, "L_nolead2", val="s101")
                if not self.force_slow:
                    a("v_cmp_ne_u32 vcc, s%d, v%d" % (svote, vF), "s_cmp_eq_u64 vcc, 0",
                      "s_cselect_b32 s%d, 0x%x, 0" % (sWF + 2, WS_SIZE), "s_cselect_b32 s%d, 0, 0x%x" % (sWL + 2, WS_SIZE))
                self.part_off(6, 7, 12)
                a("s_lshr_b32 s%d, s%d, 1" % (stmp, ss), "s_and_b32 s%d, s%d, 1" % (sclr, ss))
                self.colsum_pub(vWQ, 12, 16, 10, 11, OFF_CSQ, (stmp, 2048), (sclr, 512))
                self.mk_ix(8)
                self.gemv_zero(vD)
                self.gemv4(vX, vWQ, vD, 8)
                self.sentinels(20)
                self.gemv4_fin(9, vD)
                self.st_intra("buffer_store_dword", "v9", 6, sEst)
                self.fill_intra(24, 7, 20, LS + OFF_ML, 288)
                tok_q = a.mark()
                self.stamp("arrive")
            if T == t_f2:
                a.wait_vm(max(tok_q, self.wtok.get("g", 0)))
                a("s_barrier")
                self.group_flag(1, "1")
                self.w_tiles([("g", vWQ)], 5, 7)
                a("s_lshr_b32 s%d, s%d, 2" % (stmp, ss), "s_and_b32 s%d, s%d, 3" % (sclr, ss))
                self.colsum_pub(vWQ, 16, 20, 10, 11, OFF_CSG, (sclr, 2048), (stmp, 512))
            if T == t_c2:
                self.check_or_poll([fld], [[vF]], 7, "q1", tok_f, [G17])
                if "csq" not in self.off:
                    self.colsum_ld(28, OFF_CSQ, sw)
                tok_q = a(self.ld(24, vA16, sEld))
                self.next_region()
                self.stamp("barrier")
            if T == t_c2 + 1:
                self.s_zero()
                self.q_addrs(40, 42, 7)
            if T == tqk:
                a.wait_vm(tok_q)
                self.colsum_fin(28, 36)
                self.sum4_init(38, 36)
                self.sum4(24, 38, 38)
                self.q_assemble(38, 40, 42)
                ls, _ = schedule(self.lines(self.qk))
                qk = [ls[len(ls) * k // 4:len(ls) * (k + 1) // 4] for k in range(4)]
            if T == tqk + 1:
                self.ml_off(22, 23)
                self.sexpr(100, L_WD, (sw, 2048))
                self.lin(16, 23, (2, 2, 6), (4, 2, 4))
                a("v_add_u32 v16, s100, v16", "v_lshl_add_u32 v17, v0, 2, s100")
                self.lds_or_zero(16, 23, 3)
                ls, _ = schedule(self.lines(self.softmax, 17, 22))
                qk = [ls[len(ls) * k // 4:len(ls) * (k + 1) // 4] for k in range(4)]
            if T == tqk + 2:
                self.stamp("softmax1")
            for p in pvat.get(T, ()):
                self.p_read(ORDER.index(p), 16, p & 1)
                a("s_waitcnt lgkmcnt(0)")
                self.pv_dense(p, p & 1)
            if T == self.ipf:
                a("s_getpc_b64 s[4:5]", "L_pc:", "s_add_u32 s4, s4, L_tail-L_pc", "s_addc_u32 s5, s5, 0")
                self.sexpr(100, 0, (sj, 512), (sw, 128))
                a("s_min_u32 s100, s100, L_codeend-L_tail-4", "v_mov_b32 v80, s100", "global_load_dword v80, v80, s[4:5]")
            if T == self.tml:
                ml1 = [self.ld(64, vA16, sMLld)]
                a(*ml1)
                tok_warm = self.flag_load(70, 32, False) if "f3" not in self.off else a("v_mov_b32 v70, 64")
            if T == (self.ttouch or self.tclr + 1) and self.tsplit < 3:
                self.touch_addr(81, 82, [(OFF_A, 8), (LS + OFF_CSG, 2)] + ([] if self.tsplit & 1 else T1) + ([] if self.tsplit & 2 else [(LS + OFF_A, 13)]))
                tok_warm = self.touch(81)
            if T == self.tclr:
                self.sentinels(72)
                self.fill_intra(76, 77, 72, OFF_C, 320)
                self.fill_intra(78, 77, 72, LS, 448)
        if "bar" in self.off:
            a.l = [i for i in a.l if i.op != "s_barrier"]
        if "comp" in self.off:
            a.l = [i for i in a.l if not (i.mfma or i.trans or i.dot or i.dpp or i.op.startswith("v_pk"))]
        if "ds" in self.off:
            a.l = [i for i in a.l if not i.ds]
        self.stamp("issued")
        self.flag_check(70, 32, False, tok_warm, "L_f1")
        for k in (1, 2, 4):
            self.dpp("v_add_u32", 70, 70, 70, "row_ror:%d" % k)
        if self.vprobe:
            a("v_readfirstlane_b32 s91, v70")
        a("v_readfirstlane_b32 s100, v70", "s_cmpk_ge_u32 s100, 512", "s_cselect_b32 s100, 0, 4", "s_xor_b32 s100, s100, s%d" % svote,
          "s_bitcmp1_b32 s100, 2", "s_cselect_b32 s100, %s" % {0: "0, 0", 1: "0x2000, 0", 2: "0, 0x2000"}[self.near],
          "s_add_u32 s%d, s%d, s100" % (sBld, sBld), "s_add_u32 s%d, s%d, s100" % (sB2, sBst), "s_xor_b32 s%d, s%d, 0x2000" % (sBst, sB2))
        self.check_or_poll(ml1, [range(64, 68)], 69, "ml1", tok_warm)
        self.ml_finish(64)
        a("s_mov_b32 s%d, 1" % slayer)
        a(*[x for x in self.lines(self.weight_load, "d", 0, None, 62) if x.startswith("s_")])
        if self.lateg:
            a(*[x for x in self.lines(self.weight_load, "g", 0, None, 60) if x.startswith("s_")])
        for p in (5, 6, 7):
            self.p_read(ORDER.index(p), 16, p & 1)
            keep = len(a.l)
            self.tile_consume(17 + 2 * p)
            for k in range(4):
                if self.owait and self.owait[k] == p:
                    self.weight_issue("o", k, 31, 18)
            if p < 7:
                self.pv_dense(p, p & 1, lgkm=lambda i: 14 - 2 * i)
            else:
                pre = [i.text for i in a.l[keep:] if i.ds]
                self.sched(self.lines(self.pv_dense, p, p & 1) + self.lines(self.o_write, 8, 16, False), pre)
        self.n_after_o = min(a.mark() - self.wtok["o"], 60)
        self.stamp("pv1")

    def page_touch(self):
        a = self.a
        tk = a.mark()
        a("s_cmp_eq_u32 s%d, 1" % sw, "s_cbranch_scc0 L_notlb", "v_mov_b32 v92, 0")
        self.sexpr(100, 0, (sg, 512 * 1024), (sb, 128 * 1024))
        a("v_mov_b32 v91, s100", "v_mov_b32 v90, 0x%x" % (2 * LS))
        for k, ins in (("v", "buffer_load_dword v93, v92, %s, 0 offen nt" % srd(sV)), ("o", "global_load_dword v93, v91, s[12:13] nt"),
                       ("g", "global_load_dword v93, v92, s[16:17] nt"), ("g", "global_load_dword v93, v92, s[18:19] nt"),
                       ("d", "global_load_dword v93, v92, s[20:21] nt"), ("x", "buffer_load_dword v93, v92, %s, 0 offen nt" % srd(sOUT)),
                       ("w", "buffer_load_dword v93, v90, %s, 0 offen nt" % srd(sWS))):
            if k in self.tlb:
                a(ins)
        a("L_notlb:")
        a.uncounted(tk)

    def touch_addr(self, v, t, parts):
        a = self.a
        a("v_mov_b32 v%d, 0x%x" % (v, OOB), "v_lshl_add_u32 v%d, v0, 2, s%d" % (t + 1, sw))
        hi = sum(n for _, n in parts)
        for start, n in reversed(parts):
            self.sexpr(100, start - 128 * (hi - n), (sg, 1 << 17), (sj, 128 * n))
            a("v_lshl_add_u32 v%d, v%d, 7, s100" % (t, t + 1), "v_cmp_gt_u32 vcc, %d, v%d" % (hi, t + 1),
              "v_cndmask_b32 v%d, v%d, v%d, vcc" % (v, v, t))
            hi -= n

    def touch(self, v):
        return self.a("buffer_load_dword v%d, v%d, %s, 0 offen sc1" % (v, v, srd(sWS)))

    def fill_cross(self, d, hop):
        self.sentinels(d)
        self.lin(d + 4, d + 5, (4, 2, 15), (3, 1, 13), (0, 3, 4))
        self.sexpr(100, (hop >> 1) * 0x4000 + (hop & 1) * 0x1000, (ss, 1 << 17), (sg, 512), (sb, 128))
        self.a("buffer_store_dwordx4 %s, v%d, %s, s100 offen sc1" % (q(d), d + 4, srd(sXW)))

    def st_cross(self, v):
        a = self.a
        for so in (sBst, sB2) if self.near else (sB2,):
            a("buffer_store_dword v%d, v95, %s, s%d offen sc1" % (v, srd(sXW), so))

    def red_loads(self, x, soff):
        return [self.ld(x + 4 * i, vA16, soff, i * 1024, rs=sXW) for i in range(4)]

    def prep_split(self, name, work, loads):
        a = self.a
        n = self.at[name][0]
        while n < len(work) and work[n].startswith(("s_cselect", "s_addc", "s_cbranch")):
            n += 1
        a(*work[:n])
        a("s_cmp_eq_u32 s%d, 0" % sw, "s_cbranch_scc0 L_%s_n" % name)
        self.idle(n - len(work))
        a(*loads)
        a("L_%s_n:" % name, *work[n:])
        self.est += (name, len(work))

    def reduce_x(self, name, x, d, soff):
        a = self.a
        self.poll(self.red_loads(x, soff), [range(x + 4 * i, x + 4 * i + 4) for i in range(4)], 7, name,
                  lambda i: self.mfma(d, q(x + 4 * i), q(vSEL), i > 0), issued=1)
        m = "s[%d:%d]" % (sM1, sM1 + 1)
        a("v_cndmask_b32 v%d, v%d, v%d, %s" % (d, d, d + 1, m), "v_cndmask_b32 v%d, v%d, v%d, %s" % (d + 2, d + 2, d + 3, m),
          "v_permlane32_swap_b32 v%d, v%d" % (d, d + 2), "v_add_f32 v%d, v%d, v%d" % (vRES, vRES, d),
          "v_add_f32 v%d, v%d, v%d" % (vRES, vRES, d + 2))
        self.pack_pairs(7, vRES)

    def x_off(self, v, t, bs):
        self.lin(v, t, (5, 1, bs), (4, 1, bs + 1), (0, 4, 1))
        self.even_only(v, t)

    def layer1(self, name):
        self.a("s_cmp_eq_u32 s%d, 1" % slayer, "s_cbranch_scc0 " + name)

    def chain(self):
        a = self.a
        a("L_tail:")
        self.lin(23, 6, (2, 4, 4), (1, 1, 10), (0, 1, 3))
        self.sexpr(sclr, L_SCR, (sw, 256))
        a("v_add_u32 v23, s%d, v23" % sclr, "s_waitcnt lgkmcnt(0)", "s_barrier")
        for src in range(4):
            a("ds_read_b64 %s, v23 offset:%d" % (q(8 + 2 * src, 2), src * 2048))
        self.lin(17, 16, (4, 2, 11), (2, 2, 8), (0, 2, 2))
        self.lin(56, 16, (2, 2, 9), (4, 2, 7), (2, 2, 5), (0, 2, 3))
        a("s_waitcnt lgkmcnt(2)", "v_pk_add_f32 v[8:9], v[8:9], v[10:11]", "s_waitcnt lgkmcnt(0)", "v_pk_add_f32 v[12:13], v[12:13], v[14:15]",
          "v_pk_add_f32 v[8:9], v[8:9], v[12:13]", "v_cvt_pk_bf16_f32 v7, v8, v9")
        self.st_intra("buffer_store_dword", "v7", 17, sAst)
        self.stamp("Apub", True)
        self.sexpr(100, L_WO, (sw, 4096))
        a("v_add_u32 v56, s100, v56")
        for t in range(1, 4):
            a("v_xor_b32 v%d, %d, v56" % (56 + t, t << 5))
        a("s_waitcnt vmcnt(%d)" % (1 + self.n_after_o))
        for t in range(4):
            for h in range(2):
                a("ds_read_b64_tr_b16 %s, v%d offset:%d" % (q(24 + 4 * t + 2 * h, 2), 56 + t, h * 2048))
        lda = [self.ld(8 + 4 * h, vA16, sAld, h * 1024) for h in range(2)]

        def prep_a():
            self.lin(5, 19, (4, 2, 11), (0, 4, 4))
            self.sexpr(100, L_SCR, (sw, 4))
            self.a("v_add_u32 v94, s100, v5", "v_add_u32 v5, s%d, v5" % sclr, "v_lshlrev_b32 v95, 1, v0")
            self.even_only(95, 19)
            self.a(*[x for x in self.lines(self.weight_load, "d", 0, None, 62) if x.startswith("v_")])
            if self.tsplit & 1:
                self.touch_addr(64, 65, T1)
            if self.lateg:
                self.a(*[x for x in self.lines(self.weight_load, "g", 0, None, 60) if x.startswith("v_")])
        n = self.with_loads("pollA", self.lines(prep_a), lda)
        a("s_waitcnt lgkmcnt(0)")

        def o_mfma(ts):
            for t in ts:
                self.mfma(40 + 4 * t, q(8), q(24 + 4 * t), False)
                self.mfma(40 + 4 * t, q(12), q(24 + 4 * t), True)
        self.poll(lda, [range(8, 12), range(12, 16)], 7, "pollA", lambda h: o_mfma([0]) if h else None, issued=n)

        def o_rest():
            o_mfma([1, 2, 3])
            for t in range(4):
                d = 40 + 4 * t
                self.a("v_add_f32 v%d, v%d, v%d" % (d, d, d + 1), "v_add_f32 v%d, v%d, v%d" % (d + 2, d + 2, d + 3),
                       "v_add_f32 v%d, v%d, v%d" % (20 + t, d, d + 2))
        ls = self.lines(o_rest)
        a(*ls[:3], ls[6], ls[7], ls[3], ls[8], ls[4], ls[5], *ls[9:12], "ds_write_b64 v5, v[20:21]", *ls[12:])
        a("ds_write_b64 v5, v[22:23] offset:8")
        self.late_loads("L_l1b")
        a("s_waitcnt lgkmcnt(0)", "s_barrier",
          "ds_read2st64_b32 v[16:17], v94 offset0:0 offset1:1", "ds_read2st64_b32 v[22:23], v94 offset0:2 offset1:3",
          "s_waitcnt lgkmcnt(1)")
        fin = self.lines(self.gemv4_fin, 7, 16)
        a(fin[0], "s_waitcnt lgkmcnt(0)", *fin[1:])
        self.st_cross(7)
        self.stamp("Bpub", True)
        if self.two("pollA"):
            a("s_waitcnt vmcnt(%d)" % (2 if self.near else 1))
        self.colsum_ld(80, OFF_CSG, sb)
        self.layer1("L_l1c")
        self.colsum_ld(24, OFF_CSQ, sw)
        if not self.clr2:
            self.sentinels(72)
            self.lin(76, 77, (3, 3, 12), (0, 3, 4))
            a("s_and_b32 s100, s%d, 0xffffdfff" % sBst, "s_add_u32 s100, s100, 0x4000")
            self.oob_unless(76, 77, "v_cmp_gt_u32 vcc, 32, v0")
            a("buffer_store_dwordx4 v[72:75], v76, %s, s100 offen sc1" % srd(sXW))
        a("L_l1c:")
        wt = self.lines(self.w_tiles, [("d", vWD)], 91, 7)

        def prep_b():
            a = self.a
            self.w_tiles([("g", vWG), ("q", vWQ)], 5, 7)
            a("v_and_b32 v5, 1, v0", "v_lshlrev_b32 v5, 4, v5", "v_lshlrev_b32 v5, v5, s%d" % sLO, "v_bfe_u32 v6, v0, 1, 2")
            for r in range(4):
                a("v_cmp_eq_u32 vcc, %d, v6" % r, "v_cndmask_b32 v%d, 0, v5, vcc" % (vSEL + r))
            self.x_off(94, 7, 6)
            self.lin(93, 7, (2, 4, 8), (0, 2, 4))
            a("s_bitcmp1_b32 s%d, 0" % sact, "s_cselect_b32 s%d, 0, -1" % stmp)
            self.part_off(92, 7, 10, "s%d" % stmp)
            self.lin(89, 7, (0, 5, 2), (5, 1, 1))
            self.sexpr(100, L_H, (sw, 128))
            a("v_add_u32 v89, s100, v89")
            self.mk_ix(90)
            self.lin(88, 7, (2, 2, 7), (0, 1, 4), (4, 2, 5))
            a("v_add_u32 v88, 0x%x, v88" % L_H)
            a(*[x for x in wt if not x.startswith("ds_")])
            self.sexpr(stmp, 0, (sRow, 1), (sw, 64))
            a("s_add_u32 s%d, s%d, 0x1000" % (sBst, sBst), "s_add_u32 s%d, s%d, 0x1000" % (sB2, sB2))
        self.prep_split("pollB", self.lines(prep_b), self.red_loads(vX, sBld))
        aux = [self.ld(vX + 4, 93, stmp)]
        a("s_waitcnt lgkmcnt(0)", "s_cmp_eq_u32 s%d, 0" % sw, "s_cbranch_scc0 L_nored1")
        self.cold += ["L_nored1:"]
        if self.clr2:
            self.cold += (["s_lshl2_add_u32 s100, s%d, s%d" % (slayer, sw), "s_cmp_eq_u32 s100, 5", "s_cbranch_scc0 L_nof2"]
                          + self.lines(self.fill_cross, vX, 2) + ["L_nof2:"])
        if self.wb & 4:
            self.cold += ["s_lshl_b32 s100, s%d, 2" % sj, "s_add_u32 s100, s100, s%d" % sw, "s_lshl_b32 s100, s100, 2", "s_add_u32 s100, s100, s%d" % slayer,
                          "s_cmp_eq_u32 s100, 14", "s_cbranch_scc0 L_nowb4", "buffer_wbl2 sc1", "L_nowb4:"]
        self.cold += ["s_waitcnt vmcnt(0)", "s_branch L_red1"]
        self.reduce_x("pollB", vX, vD, sBld)
        self.st_intra("buffer_store_dword", "v7", 94, sXst)
        a("v_lshlrev_b32 v%d, 16, v7" % vRES)
        self.stamp("XBpub", True)
        a("L_red1:", "s_barrier")
        ldx = [self.ld(vX, vA16, sXld)]
        n = self.with_loads("pollXB", self.lines(self.colsum_fin, 24, vCQ) + [x for x in wt if x.startswith("ds_")]
                            + self.lines(self.colsum_fin, 80, vCG) + self.lines(self.gemv_zero, vD), ldx)
        self.poll(ldx, [range(vX, vX + 4)], 7, "pollXB", lambda i: self.gemv4(vX, vWG, vD, 90), issued=n, then=aux)
        self.gemv4_fin(6, vD)
        self.st_intra("buffer_store_dword", "v6", 92, sCst)
        self.stamp("Cpub", True)
        a("v_mov_b32 v5, 0", "s_bitcmp1_b32 s%d, 1" % sact, "s_cbranch_scc0 L_nod")
        ldc = [self.ld(vX, vA16, sCld)]
        self.check_or_poll(aux, [range(vX + 4, vX + 8)], 7, "auxB", a.mark() - 1)
        n = self.with_loads("pollC", self.lines(self.stats, vX + 4, vD, False) + self.lines(self.sum4_init, vD + 2, vCG), ldc)
        self.poll(ldc, [range(vX, vX + 4)], 7, "pollC", lambda i: self.sum4(vX, vD, vD + 2), issued=n)
        a("v_permlane32_swap_b32 v%d, v%d" % (vD, vD + 1), "v_mul_f32 v%d, s%d, v%d" % (vD, sSC, vD),
          "v_mul_f32 v%d, v%d, v%d" % (vD, vD, vD + 1), "v_cvt_pk_bf16_f32 v%d, v%d, v%d" % (vD, vD, vD),
          "ds_write_b16 v89, v%d" % vD, "v_mov_b64 %s, 0" % q(vD + 4, 2), "s_waitcnt lgkmcnt(0)", "s_barrier", "ds_read_b128 %s, v88" % q(vX + 4), "s_waitcnt lgkmcnt(0)")
        self.smf(vD + 4, q(vX + 4), q(vWD, 8), 90)
        a("v_add_f32 v7, v%d, v%d" % (vD + 4, vD + 5))
        self.pack_pairs(5, 7)
        a("L_nod:")
        self.st_cross(5)
        self.stamp("Dpub", True)
        a("s_add_u32 s%d, s%d, 0x1000" % (stmp, sBld))
        self.layer1("L_last")
        a("s_waitcnt vmcnt(%d) lgkmcnt(0)" % (2 if self.near else 1))

        def prep_d():
            a = self.a
            a("v_mov_b32 v28, v94", "v_mov_b32 v30, v93", "s_add_u32 s%d, s%d, 0x3000" % (sBst, sBst),
              "s_add_u32 s%d, s%d, 0x3000" % (sB2, sB2), "s_add_u32 s%d, s%d, 0x4000" % (sBld, sBld))
            self.mk_ai()
            self.s_zero()
            self.part_off(29, 7, 12)
            self.q_addrs(31, 48, 7)
            self.lin(5, 7, (2, 2, 6), (5, 1, 8), (4, 1, 5), (0, 1, 4))
            self.sexpr(100, L_WQ, (sw, QSTR))
            a("v_add_u32 v5, s100, v5")
            self.lds_or_zero(5, 7, 2)
            self.ml_off(6, 7)
            self.sexpr(98, OFF_XD - OFF_XB, (sRow, 1), (sb, 64))
            self.sexpr(sWo, 0, (sg, 1 << 17), (sj, 2048), (sw, 512))
            a("s_add_u32 s%d, s%d, 0x%x" % (sclr, sXst, OFF_XD - OFF_XB), "s_add_u32 s99, s%d, 0x%x" % (sXld, OFF_XD - OFF_XB))
        self.prep_split("pollD", self.lines(prep_d), self.red_loads(8, stmp))
        a("s_waitcnt lgkmcnt(0)", "s_cmp_eq_u32 s%d, 0" % sw, "s_cbranch_scc0 %s" % ("L_fill3" if self.clr2 else "L_nored2"), "L_redd:")
        if self.clr2:
            self.cold += ["L_fill3:", "s_cmp_eq_u32 s%d, 1" % sw, "s_cbranch_scc0 L_nored2"] + self.lines(self.fill_cross, 16, 3) + ["s_branch L_nored2"]
        self.reduce_x("pollD", 8, 24, stmp)
        self.st_intra("buffer_store_dword", "v7", 28, sclr)
        a("s_cmp_eq_u32 s%d, 2" % slayer, "s_cbranch_scc1 L_out")
        a("v_lshlrev_b32 v%d, 16, v7" % vRES)
        self.stamp("XDpub")
        a("L_nored2:", "s_barrier")
        row = [self.ld(24, 30, 98)]
        ldx = [self.ld(52, vA16, 99)]
        n = self.with_loads("pollXD", self.lines(self.gemv_zero, 8), ldx)
        self.poll(ldx, [range(52, 56)], 7, "pollXD", lambda i: self.gemv4(52, vWQ, 8, vIX), issued=n, then=row)
        self.gemv4_fin(10, 8)
        self.st_intra("buffer_store_dword", "v10", 29, sEst)
        self.stamp("Epub")
        lde = [self.ld(52, vA16, sEld)]
        self.check_or_poll(row, [range(24, 28)], 7, "rowD", a.mark() - 1)
        n = self.with_loads("pollE", self.lines(self.stats, 24, 32, True) + self.lines(self.sum4_init, 34, vCQ), lde)
        self.poll(lde, [range(52, 56)], 7, "pollE", lambda i: self.sum4(52, 32, 34), issued=n)
        self.stamp("Eget")
        rd = self.q_assemble(32, 31, 48, self.lines(self.next_region) + ["s_mov_b32 s%d, 2" % slayer]
                             + (["v_min_u32 v38, 3, v0", "v_lshlrev_b32 v38, 7, v38"] if self.tsplit & 2 else []))
        if self.tsplit & 2:
            a(self.ld(38, 38, sWo, n=1))
        for i in range(7):
            a("v_mov_b64 %s, 0" % q(vO + 4 * i, 2))
        if self.stamps is not True:
            self.stamp("qrdy")
        ldm = [self.ld(16, vA16, sMLld)]

        def att():
            a = self.a
            self.qk()
            a("s_waitcnt vmcnt(%d) ; guards=v[52:55] after=v%d" % (self.tsplit >> 1, vS + 20))
            a("v_subrev_u32 v23, 0x%x, v31" % (L_Q - L_WQ))
            a("v_mov_b64 %s, 0" % q(vO + 28, 2))
            self.softmax(23, 6)
            for d in self.mlat:
                a(ldm[0] + " ; lat=%d tail=%d" % (d, self.mltail))
            for h in range(2):
                self.v_reads(5 + h, lambda i, e: q(8 * i + 4 * h + 2 * e, 2, "a"))
            self.v_reads(7)
            for n in range(4):
                self.p_read(2 * n, 5, n & 1)
                for i in range(8):
                    B = q(128 + 64 * n + 8 * i, 8) if n < 2 else q(8 * i, 8, "a") if n == 2 else "vp[%d]" % i
                    self.smf(vO + 4 * i, q(vQ + 4 * (n & 1)), B)
        ls = [x + " prio=%d" % self.p0 if x.endswith("mem=p0") else x for x in self.lines(att)]
        cut = len(ls) - self.mlcut
        out, t1 = schedule(ls[:cut], rd)
        if self.wb & 2:
            k = out.index("s_waitcnt vmcnt(0)") + 1
            out[k:k] = ["s_cmp_eq_u32 s%d, 0" % slead, "s_cbranch_scc0 L_nowb2", "buffer_wbl2 sc1", "L_nowb2:"]
        if self.stamps and self.stamps is not True:
            k = max(i for i, x in enumerate(out) if x.startswith("buffer_store")) + 1
            out[k:k] = self.lines(self.stamp, "mlpub")
            k = min(i for i, x in enumerate(out) if x.startswith("v_pk_fma"))
            out[k:k] = self.lines(self.stamp, "maxed")
        a(*out)
        a("s_waitcnt lgkmcnt(0)")
        if self.stamps is not True:
            self.stamp("pv2a")
        L = a.lab("ml2")
        a(L + "_w:")
        self.check([range(16, 20)], 6, len(self.mlat))
        a("s_cbranch_vccnz " + L)
        if self.stamps is not True:
            self.stamp("mlget")
        fin = self.lines(self.ml_finish, 16)
        fin = ["v_sub_f32 v58, v16, v20", "v_sub_f32 v59, v18, v20", "v_exp_f32 v58, v58", "v_exp_f32 v59, v59",
               "v_mul_f32 v7, v58, v17", "v_fmac_f32 v7, v59, v19"] + fin[6:]
        t2 = self.sched([x + " ; prio=200" for x in fin] + ls[cut:] + self.lines(self.o_write, 8, 60, True))
        a("s_waitcnt vmcnt(0)")
        self.est += (t1, t2)
        self.stamp("pv2")
        a("s_branch L_tail", L + ":", *ldm)
        a(*self.spin_count())
        a("s_branch %s_w" % L)
        a("L_last:", "s_lshr_b32 s100, s%d, 2" % sj, "s_xor_b32 s100, s100, s%d" % sg, "s_or_b32 s100, s100, s%d" % sw,
          "s_cmp_eq_u32 s100, 0", "s_cbranch_scc0 %s" % ("L_wb" if self.wb & 1 else "L_fin"))
        if self.wb & 1:
            self.cold += ["L_wb:", "s_cmp_eq_u32 s%d, 0" % slead, "s_cbranch_scc0 L_fin", "buffer_wbl2 sc1", "s_branch L_fin"]
        self.x_off(28, 7, 10)
        self.mk_srd(sWF, sOUT, "4096")
        a("s_lshl_b32 s%d, s%d, 5" % (sclr, sj))
        self.idle(self.at["last"][0])
        a(*self.red_loads(8, stmp))
        a("s_branch L_redd")
        a("L_out:")
        if self.vprobe:
            a("s_sub_u32 s100, s91, 384", "s_mul_i32 s100, s100, 50", "s_min_u32 s100, s100, 100000", "s_memrealtime s[0:1]", "s_waitcnt lgkmcnt(0)",
              "s_mov_b32 s101, s0", "L_probe:", "s_memrealtime s[0:1]", "s_waitcnt lgkmcnt(0)", "s_sub_u32 s0, s0, s101", "s_cmp_lt_u32 s0, s100",
              "s_cbranch_scc1 L_probe")
        if self.probe:
            self.stamp("out")
            k = self.stamp_names.index(self.probe)
            a("v_readlane_b32 s100, v4, %d" % k, "v_readlane_b32 s101, v4, 0", "s_sub_u32 s100, s100, s101", "s_lshl_b32 s100, s100, 2",
              "s_min_u32 s100, s100, 100000", "s_memrealtime s[0:1]", "s_waitcnt lgkmcnt(0)", "s_mov_b32 s101, s0",
              "L_probe:", "s_memrealtime s[0:1]", "s_waitcnt lgkmcnt(0)", "s_sub_u32 s0, s0, s101", "s_cmp_lt_u32 s0, s100",
              "s_cbranch_scc1 L_probe")
        a("L_fin:")
        if self.stamps and not self.probe:
            self.stamp("end")
            a("s_lshl_b32 s100, s2, 2", "s_add_u32 s100, s100, s%d" % sw, "s_lshl_b32 s100, s100, 7",
              "s_add_u32 s100, s100, 0x%x" % (STAMP_OFF - 2 * LS), "s_mov_b32 s%d, 0x1000000" % (sWS + 2),
              "v_writelane_b32 v4, s%d, 30" % sspin, "v_writelane_b32 v4, s%d, 31" % (sWF + 2),
              "v_lshlrev_b32 v9, 2, v0", "v_cmp_gt_u32 vcc, 32, v0", "s_and_saveexec_b64 s[98:99], vcc",
              "buffer_store_dword v4, v9, %s, s100 offen sc1" % srd(sWS))
            if self.dbgstamps:
                a("v_readlane_b32 s100, v4, 0", "s_not_b32 s100, s100", "v_writelane_b32 v4, s100, 15",
                  "v_cmp_gt_u32 vcc, 16, v0", "s_and_saveexec_b64 s[98:99], vcc",
                  "buffer_atomic_umax v4, v9, %s, 0 offen sc1" % srd(sDBG))
        a("L_end:", "s_endpgm")
        a(*self.cold)
        a("L_codeend:")

    def build(self):
        self.prologue()
        self.stream()
        self.chain()
        self.a.pad()
        if self.win:
            self.est += align(self.a, self.win, "L_novote")
        head = open("cdna_kernels/" + KNAME[:-7] + ".s.ref").read().split("; Override launch")[0]
        return (head + "; @launch grid=(256,1,1) block=(256,1,1) lds=163840\n"
                '.amdgcn_target "amdgcn-amd-amdhsa--gfx950"\n.text\n.globl %s\n.p2align 8\n.type %s,@function\n%s:\n' % (KNAME, KNAME, KNAME)
                + self.a.text() +
                '.section .rodata,"a"\n.p2align 6\n.amdhsa_kernel %s\n  .amdhsa_next_free_vgpr 512\n  .amdhsa_next_free_sgpr 102\n'
                "  .amdhsa_accum_offset 256\n  .amdhsa_group_segment_fixed_size 0\n  .amdhsa_kernarg_size 96\n"
                "  .amdhsa_user_sgpr_count 2\n  .amdhsa_user_sgpr_kernarg_segment_ptr 1\n  .amdhsa_system_sgpr_workgroup_id_x 1\n"
                ".end_amdhsa_kernel\n" % KNAME)


if __name__ == "__main__":
    out = sys.argv[1]
    kw = eval("dict(%s)" % (sys.argv[2] if len(sys.argv) > 2 else ""))
    g = Gen(**kw)
    s = g.build()
    open(out, "w").write(s)
    if len(sys.argv) > 3:
        print("estimated attention cycles", g.est)
    if g.stamps:
        open(out[:-2] + ".names", "w").write("\n".join(g.stamp_names))
```

```python
import struct
import sys
from asmlib import Asm, align, schedule

KNAME = "interleave_layers__gqa_block_cached__glu_gated_bilinear__decode_kernel"

LS = 1 << 20
OFF_ML, OFF_A, OFF_C, OFF_XB, OFF_ST, OFF_XD, OFF_E = 0, 4 << 10, 36 << 10, 52 << 10, 56 << 10, 60 << 10, 64 << 10
OFF_CSG, OFF_CSQ = 60 << 10, 68 << 10
WS_SIZE = 3 * LS
T1 = [(OFF_C, 11), (LS + OFF_ML, 1)]
OFF_XW = 5 << 20
STAMP_OFF = 8 << 20
OOB = 0x7FFF0000

RING = 24576
L_WQ = 4 * RING
L_WO = L_WQ + 16384
L_WG = L_WO + 16384
L_WD = L_WG + 16384
L_SCR = L_WD + 8192
L_H = L_SCR + 1024
L_Q, QSTR = L_SCR + 1536, 2112
L_OOB = 0x30000
assert L_SCR + 8192 == 163840

sK, sV, sWS, sWF, sWL, sOUT, sDBG, sXI, sT = 28, 32, 36, 40, 44, 48, 52, 56, 96
sw, sg, sj, sb, ss, su, sring, srot, stmp, slayer = range(60, 70)
(sMLst, sMLld, sAst, sAld, sBst, sBld, sXst, sXld, sCst, sCld, sCS, sS1, sSC, sRow, sEst, sEld) = range(70, 86)
sWo, sWl = 86, 87
sM1, sstep = 88, 90
sspin, scmp = 94, 95
sclr, slead, sact = 3, 14, 15
sLO, sHI = 6, 7
sXW, sB2, svote = 24, 23, 22
searly = 10
sWo2, sWl2 = 8, 9
SPIN_LIMIT = 1 << 18

vL, vA16, vTRV, vRES = 0, 1, 2, 3
vQ, vO, vIX, vAI, vS = 8, 24, 56, 56, 64
vWG, vWD, vWQ, vCG, vCQ, vSEL, vX, vD = 8, 24, 32, 48, 50, 52, 56, 72
vKS, vKR = 240, 244
ORDER = [0, 1, 2, 3, 5, 6, 7, 4]
SLOT = {5: 2, 6: 4, 7: 0}
SCALE = 128 ** -0.5 * 1.4426950408889634
ONES = "0x3f803f80"


def f32(x):
    return "0x%08x" % struct.unpack("<I", struct.pack("<f", x))[0]


def q(r, n=4, k="v"):
    return "%s[%d:%d]" % (k, r, r + n - 1)


def srd(r):
    return "s[%d:%d]" % (r, r + 3)


class Gen:
    def __init__(self, depth=6, burst=4, stamps=False, force_slow=False, skip="", wpol="nt", kvpol="nt",
                 dbgstamps=False, tq=(2, 2, 3, 3), tg=(6, 6, 7, 7), to=(31, 31, 31, 31), lag=2, probe=None, cyc=False,
                 d0={5: 8, 6: 8}, tclr=25, dbl="pollXB,pollC,pollXD,pollE", gap=1, near=1, at={}, ipf=24,
                 sync=(4, 6, 9, 11, 13, 16, 18), wb=False, mlat=(208, 84), mltail=500, mlcut=1, p0=400, win=32, ipf0=True, back={}, outpol='sc1', ubits=(12, 13, 14, 15, 16), rot=(1, 4), tbits=None, off='', bars=(), early=None, eth=7, etill=32, estat=None, stpol='', clr2=1, clr1=4, clrw=None, clrpol='sc1', lateg=0, tml=27, ttouch=None, obar=False, kx=1, nst_=2, oahead=4, aback=0, latepos=0, pre=None, tsplit=3, fstr=4, fstr2=4, tlb='', ttlb=1, owait=(6, 6, 6, 6), dup=False):
        self.__dict__.update(locals())
        self.a = Asm()
        self.nst = 0
        self.cold = []
        self.nslow = 0
        self.est = ()
        self.tbits = tbits or tuple(b for b in range(12, 21) if b not in ubits)
        self.at = dict(pollA=(10, 34), pollB=(88,), pollXB=(8, 17), pollC=(0, 11), pollD=(84,), pollXD=(2, 10), pollE=(0, 11), last=(128,))
        self.at.update(at)
        self.stamp_names = []

    def stamp(self, name, per_layer=False):
        if not self.stamps or (self.stamps is not True and name not in self.stamps):
            return
        a = self.a
        k = self.nst
        self.nst += 2 if per_layer else 1
        assert self.nst <= 28
        a("%s s[0:1]" % ("s_memtime" if self.cyc else "s_memrealtime"), "s_waitcnt lgkmcnt(0)")
        if per_layer:
            self.stamp_names += [name + "/1", name + "/2"]
            a("s_add_u32 m0, s%d, %d" % (slayer, k - 1), "v_writelane_b32 v4, s0, m0")
        else:
            self.stamp_names.append(name)
            a("v_writelane_b32 v4, s0, %d" % k)

    def mk_srd(self, d, p, size):
        self.a("s_mov_b32 s%d, s%d" % (d, p), "s_mov_b32 s%d, s%d" % (d + 1, p + 1),
               "s_mov_b32 s%d, %s" % (d + 2, size), "s_mov_b32 s%d, 0x20000" % (d + 3))

    def lin(self, d, t, *terms):
        first = True
        for sh, bits, sc in terms:
            r = d if first else t
            if sh + bits >= 6:
                src = vL
                if sh:
                    self.a("v_lshrrev_b32 v%d, %d, v0" % (r, sh)); src = r
            elif sh == 0:
                self.a("v_and_b32 v%d, %d, v0" % (r, (1 << bits) - 1)); src = r
            else:
                self.a("v_bfe_u32 v%d, v0, %d, %d" % (r, sh, bits)); src = r
            if first:
                if sc or src != d:
                    self.a("v_lshlrev_b32 v%d, %d, v%d" % (d, sc, src))
            else:
                self.a("v_lshl_add_u32 v%d, v%d, %d, v%d" % (d, src, sc, d))
            first = False

    def sexpr(self, d, const, *terms):
        a = self.a
        first = True
        for reg, mult in terms:
            r = d if first else 101
            if mult & (mult - 1) == 0:
                a("s_lshl_b32 s%d, s%d, %d" % (r, reg, mult.bit_length() - 1))
            else:
                a("s_mul_i32 s%d, s%d, %d" % (r, reg, mult))
            if not first:
                a("s_add_u32 s%d, s%d, s101" % (d, d))
            first = False
        if const:
            a("s_add_u32 s%d, s%d, 0x%x" % (d, d, const))

    def oob_unless(self, v, t, cond):
        self.a(cond, "v_mov_b32 v%d, 0x%x" % (t, OOB), "v_cndmask_b32 v%d, v%d, v%d, vcc" % (v, t, v))

    def even_only(self, v, t, cmp="0"):
        self.a("v_and_b32 v%d, 1, v0" % t)
        self.oob_unless(v, t, "v_cmp_eq_u32 vcc, %s, v%d" % (cmp, t))

    def st_intra(self, op, data, voff, soff, both=False):
        a = self.a
        slow = "%s %s, v%d, %s, s%d offen sc1" % (op, data, voff, srd(sWL), soff)
        a("%s %s, v%d, %s, s%d offen %s" % (op, data, voff, srd(sWF), soff, self.stpol))
        if both or self.dup:
            tk = a.mark()
            a(slow)
            a.uncounted(tk)
            return
        self.nslow += 1
        L = "L_slow%d" % self.nslow
        a("s_cmp_eq_u32 s%d, 0" % (sWF + 2), "s_cbranch_scc1 " + L, L + "_b:")
        self.cold += [L + ":", slow, "s_branch %s_b" % L]

    def ld(self, r, voff, soff, off=0, n=4, rs=sWS):
        return "buffer_load_dword%s %s, v%d, %s, s%d offen offset:%d sc1" % (
            "x%d" % n if n > 1 else "", q(r, n) if n > 1 else "v%d" % r, voff, srd(rs), soff, off)

    def ld4(self, r, voff, soff):
        return [self.ld(r + k, voff, soff, 256 * k, n=1) for k in range(4)]

    def spin_count(self):
        return ["s_add_u32 s%d, s%d, 1" % (sspin, sspin), "s_cmp_lt_u32 s%d, 0x%x" % (sspin, SPIN_LIMIT), "s_cselect_b32 s%d, -2, -1" % scmp]

    def two(self, name):
        return name in self.dbl.split(",")

    def rounds(self, name):
        return 1 + self.dbl.split(",").count(name)

    def poll(self, loads, regs, acc, name, work=(), reinit=(), spec=None, again=None, extra=0):
        a = self.a
        L = "L_" + name
        k, n = self.rounds(name), len(loads)
        a("s_branch %s_w" % L, L + ":", *loads)
        a(*self.spin_count())
        a(*reinit)
        if again:
            self.check(regs, acc, again * n + len(regs), spec)
            a(*work)
            a("s_cbranch_vccnz " + L, "s_branch %s_d" % L)
        a(L + "_w:")
        self.check(regs, acc, (k - 1) * n + len(regs) + extra, spec)
        a(*work)
        a("s_cbranch_vccnz " + L, L + "_d:")
        if self.stamps is not True:
            self.stamp(name, True)

    def stats_poll(self, name, aux, r, st, loads):
        a = self.a
        tok = a.mark() - 1
        if self.pre is not None:
            self.idle(self.pre)
            a(*loads)
        self.check_or_poll(aux, [[r]], 7, name + "s", tok, work=st[:self.nst_])
        if self.pre is None:
            self.with_loads(name, st[self.nst_:], loads)
        else:
            d = self.nst_ + self.at[name][0]
            a(*st[self.nst_:d])
            a(*loads)
            a(*st[d:])

    def idle(self, n):
        if n >= 16:
            self.a("s_sleep %d" % (n // 16))
        if n > 0 and n % 16:
            self.a("s_nop %d" % (n % 16 - 1))

    def with_loads(self, name, work, loads):
        pos = 0
        for d in self.at[name][:self.rounds(name)]:
            self.a(*work[pos:pos + d])
            self.idle(pos + d - max(pos, len(work)))
            self.a(*loads)
            pos += d
        self.a(*work[pos:])
        return self.rounds(name)

    def check(self, regs, acc, n, spec=None):
        a = self.a
        have = None
        for i, part in enumerate(regs):
            if n:
                a("s_waitcnt vmcnt(%d)" % (n - 1 - i))
            if spec and n == len(regs):
                spec(i)
            pool = ([have] if have is not None else []) + list(part)
            while len(pool) > 1:
                m = min(3, len(pool))
                a(("v_max3_u32 v%d, v%d, v%d, v%d" if m == 3 else "v_max_u32 v%d, v%d, v%d") % (acc, *pool[:m]))
                pool = [acc] + pool[m:]
            have = pool[0]
            if i == len(regs) - 1:
                a("v_cmp_lt_u32 vcc, s%d, v%d" % (scmp, have))
            if spec and n != len(regs):
                spec(i)

    def check_or_poll(self, loads, regs, acc, name, wait, pre=(), work=()):
        a = self.a
        tk = a.mark()
        a("s_branch L_%s_c" % name, "L_%s_r:" % name, *pre)
        a(*loads)
        a(*self.spin_count())
        a("s_waitcnt vmcnt(0)", "L_%s_c:" % name)
        a.uncounted(tk)
        a.wait_vm(wait)
        self.check(regs, acc, 0)
        a(*work)
        a("s_cbranch_vccnz L_%s_r" % name)

    def mfma(self, d, A, B, c):
        self.a("v_mfma_f32_16x16x32_bf16 %s, %s, %s, %s" % (q(d), A, B, q(d) if c else "0"))

    def smf(self, d, A, B, ix=None):
        self.a("v_smfmac_f32_16x16x64_bf16 %s, %s, %s, v%d" % (q(d), A, B, ix or vIX))

    def mk_ix(self, v):
        self.a("v_and_b32 v%d, 1, v0" % v, "v_mul_u32_u24 v%d, 0xaaaa, v%d" % (v, v), "v_add_u32 v%d, 0x4444, v%d" % (v, v))

    def dpp(self, op, d, s0, s1, ctl, rm="0xf"):
        self.a("%s_dpp v%d, v%d, v%d %s row_mask:%s bank_mask:0xf" % (op, d, s0, s1, ctl, rm))

    def pack_pairs(self, d, v):
        self.a("v_mov_b32_dpp v%d, v%d quad_perm:[1,1,3,3] row_mask:0xf bank_mask:0xf" % (d, v),
               "v_cvt_pk_bf16_f32 v%d, v%d, v%d" % (d, v, d))

    def scatter(self, d, src, bits, first):
        a = self.a
        k = 0
        while k < len(bits):
            n = 1
            while k + n < len(bits) and bits[k + n] == bits[k] + n:
                n += 1
            r = d if first else 101
            a("s_and_b32 s%d, s%d, %d" % (r, src, ((1 << n) - 1) << k), "s_lshl_b32 s%d, s%d, %d" % (r, r, bits[k] - k))
            if not first:
                a("s_or_b32 s%d, s%d, s101" % (d, d))
            first = False
            k += n

    def tile_issue(self, T, between=None):
        a = self.a
        mask = sum(1 << b for b in self.tbits)
        if T:
            a("s_or_b32 s%d, s%d, 0x%x" % (srot, srot, ~mask & 0xffffffff), "s_add_u32 s%d, s%d, 1" % (srot, srot),
              "s_and_b32 s%d, s%d, 0x%x" % (srot, srot, mask))
        a("s_or_b32 s%d, s%d, s%d" % (stmp, srot, sstep), "s_add_u32 m0, s%d, %d" % (sring, (T % 6) * 4096))
        if T >= 6:
            a("s_waitcnt lgkmcnt(%d)" % (0 if between else 1))
        for jj in range(4):
            self.throttle(T, 4 * T + jj >= 128 - self.burst)
            va = vKS + jj if T < 16 else 5 + (jj & 1)
            a("buffer_load_dwordx4 v%d, %s, s%d offen offset:%d %s lds" % (va, srd(sK if T < 16 else sV), stmp, jj * 1024, self.kvpol))
            self.ltok.append(a.mark())
            self.tok[T] = a.mark()
            if between:
                between(jj)
        if 16 <= T < 31:
            a("v_xor_b32 v5, 64, v5", "v_xor_b32 v6, 64, v6")

    def throttle(self, T, burst):
        d = self.d0.get(T, self.depth) if self.d0 else self.depth
        if T > 1 and not burst and d < len(self.ltok):
            a = self.a
            e = self.early[T % len(self.early)] if self.early and self.sync[1] < T < self.etill else d
            a.wait_vm(self.ltok[-d])
            if e < d:
                L = a.lab("th")
                a("s_cmp_eq_u32 s%d, 0" % searly, "s_cbranch_scc1 " + L)
                a.wait_vm(self.ltok[-e])
                a(L + ":")

    def vreg(self, p, i):
        return 128 + 64 * (p >> 1) + 8 * i + 4 * (p & 1) if p < 4 else (96 if p == 4 else vS) + 4 * i

    def v_reads(self, p, dst=None):
        slot = (16 + 2 * p) % 6
        for i in range(8):
            for h in range(2):
                d = dst(i, h) if dst else q(self.vreg(p, i) + 2 * h, 2)
                self.a("ds_read_b64_tr_b16 %s, v%d offset:%d ; mem=v" % (d, vAI + i if i else vTRV, slot * 4096 + h * 512))

    def tile_consume(self, T):
        a = self.a
        if T < 16:
            a.wait_vm(self.tok[T])
            for st in range(4):
                a("ds_read_b128 %s, v%d offset:%d" % (q(16 * T + 4 * st, 4, "a"), vKR + st, (T % 6) * 4096))
        elif T & 1:
            a.wait_vm(self.tok[T])
            self.v_reads((T - 16) >> 1)

    def mk_ai(self):
        for i in range(1, 8):
            self.a("v_xor_b32 v%d, %d, v%d" % (vAI + i, i << 5, vTRV))
        self.mk_ix(vIX)

    def weight_load(self, kind, k, T, va=52):
        a = self.a
        t = va + 1
        pitch = {"q": 8192, "g": 3584, "d": 1024, "o": 1024}[kind]
        if k == 0:
            if kind == "o":
                self.lin(va, t, (5, 1, 14), (3, 2, 10), (0, 3, 4))
                self.mk_srd(sT, 12, "0x400000")
                self.sexpr(sWo, 0, (sg, 512 * 1024), (sb, 128 * 1024), (sw, 4096), (ss, 128))
                self.sexpr(sWl, L_WO, (sw, 4096))
            else:
                a("v_lshrrev_b32 v%d, 3, v0" % va, "v_mul_u32_u24 v%d, %d, v%d" % (va, pitch, va), "v_and_b32 v%d, 7, v0" % t,
                  "v_lshl_add_u32 v%d, v%d, 4, v%d" % (va, t, va))
            a("v_and_b32 v%d, 32, v0" % t, "v_xor_b32 v%d, v%d, v%d" % (va, va, t), "v_xor_b32 v%d, 64, v%d" % (t, va))
            if kind == "q":
                self.mk_srd(sT, 10, "0x400000")
                self.sexpr(sWo, 0, (sb, 128 * pitch), (sw, 32 * pitch), (sg, 1024), (ss, 128))
                self.sexpr(sWl, L_WQ, (sw, 4096))
            if kind in "gd":
                a("s_lshr_b32 s100, s%d, 1" % sg, "s_mul_i32 s100, s100, 7", "s_and_b32 s%d, s%d, 1" % (stmp, sg),
                  "s_lshl_b32 s%d, s%d, 2" % (stmp, stmp), "s_add_u32 s100, s100, s%d" % stmp)
            if kind == "g":
                a("s_and_b32 s%d, s%d, 3" % (stmp, ss), "s_add_u32 s100, s100, s%d" % stmp)
                self.sexpr(sWo, 0, (sb, 128 * pitch), (sw, 32 * pitch), (100, 128))
                self.sexpr(sWl, L_WG, (sw, 4096))
                a("s_bitcmp1_b32 s%d, 0" % sact, "s_cselect_b32 s100, 0x%x, 0" % (512 * pitch))
                self.mk_srd(sT, 16, "s100")
                a("s_cmp_ge_u32 s%d, 4" % ss, "s_cselect_b32 s%d, s18, s16" % sT, "s_cselect_b32 s%d, s19, s17" % (sT + 1))
            if kind == "d":
                a("s_add_u32 s100, s100, s%d" % sb)
                self.sexpr(sWo2, 0, (100, 64 * pitch), (sw, 16 * pitch), (ss, 128))
                self.sexpr(sWl2, L_WD, (sw, 2048))
                a("s_bitcmp1_b32 s%d, 1" % sact, "s_cselect_b32 s100, 0x%x, 0" % (1792 * pitch))
                self.mk_srd(sXI, 20, "s100")
            if T is None:
                return
        self.weight_issue(kind, k, T, va)

    def weight_issue(self, kind, k, T, va):
        a = self.a
        pitch = {"q": 8192, "g": 3584, "d": 1024, "o": 1024}[kind]
        so, sl, rs = (sWo2, sWl2, sXI) if kind == "d" else (sWo, sWl, sT)
        a("s_add_u32 s%d, s%d, 0x%x" % (stmp, so, (32 if kind == "o" else 8) * pitch * k), "s_add_u32 m0, s%d, 0x%x" % (sl, 1024 * k))
        if kind not in self.skip:
            if T < 31:
                self.throttle(T, False)
            a("buffer_load_dwordx4 v%d, %s, s%d offen %s lds" % (va + (k & 1), srd(rs), stmp, self.wpol))
            self.ltok.append(a.mark())
        self.wtok[kind] = a.mark()

    def lines(self, fn, *args):
        keep, self.a = self.a, Asm()
        fn(*args)
        out, self.a = [i.text for i in self.a.l], keep
        return out

    def sched(self, lines, pre=()):
        out, t = schedule(lines, pre)
        self.a(*out)
        return t

    def s_zero(self):
        for r in range(vS, vS + 32, 2):
            self.a("v_mov_b64 %s, 0" % q(r, 2))

    def qk(self):
        a = self.a
        for k, p in enumerate(ORDER):
            d = vS + 4 * k
            for sg_ in range(2):
                for hf in range(2):
                    self.smf(d, q(vQ + 8 * sg_ + 4 * hf), q(16 * (2 * p + sg_) + 8 * hf, 8, "a"))
            a("v_add_f32 v%d, v%d, v%d" % (d, d, d + 1), "v_add_f32 v%d, v%d, v%d" % (d + 1, d + 2, d + 3))
            a("v_max3_f32 v7, v7, v%d, v%d" % (d, d + 1) if k else "v_max_f32 v7, v%d, v%d" % (d, d + 1))

    def ml_off(self, v, t):
        self.a("v_mov_b32 v%d, v%d" % (v, vA16), "v_and_b32 v%d, 15, v0" % t)
        self.oob_unless(v, t, "v_cmp_eq_u32 vcc, 0, v%d" % t)

    def softmax(self, vw, voff):
        a = self.a
        for k in (1, 2, 4, 8):
            self.dpp("v_max_f32", 7, 7, 7, "row_ror:%d" % k)
        a("v_mul_f32 v20, s%d, v7" % sSC, "s_mov_b32 s100, %s" % ONES)
        for k in range(8):
            r = q(vS + 4 * k, 2)
            a("v_pk_fma_f32 %s, %s, s[%d:%d], v[20:21] op_sel_hi:[1,0,0] neg_lo:[0,0,1] neg_hi:[0,0,1]" % (r, r, sSC, sSC + 1))
        for k in range(8):
            r = vS + 4 * k
            a("v_exp_f32 v%d, v%d" % (r, r), "v_exp_f32 v%d, v%d" % (r + 1, r + 1), "v_cvt_pk_bf16_f32 v%d, v%d, v%d" % (r + 2, r, r + 1))
            if k & 1:
                a("ds_write2st64_b32 v%d, v%d, v%d offset0:%d offset1:%d ; mem=p%d" % (vw, r - 2, r + 2, k - 1, k, k - 1))
        for k in range(8):
            a("v_dot2_f32_bf16 v21, v%d, s100, %s" % (vS + 4 * k + 2, "v21" if k else "0"))
        for k in (1, 2, 4, 8):
            self.dpp("v_add_f32", 21, 21, 21, "row_ror:%d" % k)
        self.st_intra("buffer_store_dwordx2", "v[20:21]", voff, sMLst, both=True)

    def ml_finish(self, r):
        a = self.a
        a("v_sub_f32 v%d, v%d, v20" % (r, r), "v_sub_f32 v%d, v%d, v20" % (r + 2, r + 2),
          "v_exp_f32 v%d, v%d" % (r, r), "v_exp_f32 v%d, v%d" % (r + 2, r + 2),
          "v_mul_f32 v7, v%d, v%d" % (r, r + 1), "v_fmac_f32 v7, v%d, v%d" % (r + 2, r + 3))
        for k in (1, 2, 4, 8):
            self.dpp("v_add_f32", 7, 7, 7, "row_ror:%d" % k)
        a("v_rcp_f32 v7, v7")

    def lds_or_zero(self, v, t, mask, val=0):
        self.a("v_and_b32 v%d, %d, v0" % (t, mask), "v_cmp_eq_u32 vcc, %d, v%d" % (val, t), "v_mov_b32 v%d, 0x%x" % (t, L_OOB),
               "v_cndmask_b32 v%d, v%d, v%d, vcc" % (v, t, v))

    def p_read(self, k, va, buf):
        self.a("ds_read_b128 %s, v%d offset:%d ; mem=p%d" % (q(vQ + 4 * buf), va, k * 256, k & ~1))

    def pv_dense(self, p, buf, lgkm=None):
        for i in range(8):
            if lgkm is not None:
                self.a("s_waitcnt lgkmcnt(%d)" % lgkm(i))
            self.mfma(vO + 4 * i, q(vQ + 4 * buf), q(self.vreg(p, i)), p > 0)

    def o_addr(self):
        self.sexpr(4, L_SCR, (sw, 512))
        self.a("v_and_b32 v22, 48, v0", "v_mul_u32_u24 v22, 112, v22", "v_add3_u32 v22, v22, v%d, s4" % vA16)

    def o_write(self, t0, t1, sparse):
        a = self.a
        for h, t in enumerate((t0, t1)):
            for i in range(4):
                o = vO + 16 * h + 4 * i
                a("v_add_f32 v%d, v%d, v%d" % (t + i, o, o + 1) if sparse else "v_mul_f32 v%d, v7, v%d" % (t + i, o))
            if sparse:
                for i in (0, 2):
                    a("v_pk_mul_f32 %s, %s, v[6:7] op_sel:[0,1] op_sel_hi:[1,1]" % (q(t + i, 2), q(t + i, 2)))
            a("ds_write_b128 v22, %s offset:%d" % (q(t), 256 * h))

    def w_tiles(self, kinds, va, t):
        a = self.a
        last = None
        for kind, dst in kinds:
            qs = 11 if kind == "d" else 12
            if qs != last:
                self.lin(va, t, (4, 1, 5), (3, 1, 6))
                a("s_lshl_b32 s100, s%d, 5" % sw, "v_xor_b32 v%d, s100, v%d" % (va, va), "v_add_u32 v%d, 0x%x, v%d" % (va, L_WQ, va))
                for sh, bits, sc in ((5, 1, qs), (3, 1, 10), (4, 1, 9), (2, 1, 7), (0, 2, 3)):
                    a("v_bfe_u32 v%d, v0, %d, %d" % (t, sh, bits), "v_lshl_add_u32 v%d, v%d, %d, v%d" % (va, t, sc, va))
                last = qs
            base = {"q": L_WQ, "g": L_WG, "d": L_WD}[kind] - L_WQ
            for kb in range(2 if kind == "d" else 4):
                for h in range(2):
                    a("ds_read_b64_tr_b16 %s, v%d offset:%d" % (q(dst + 4 * kb + 2 * h, 2), va,
                                                                  base + (kb & 1) * (2 << qs) + (kb >> 1) * 2048 + h * 256))

    def gemv_zero(self, d):
        self.a("v_mov_b64 %s, 0" % q(d, 2), "v_mov_b64 %s, 0" % q(d + 6, 2))

    def gemv4(self, x, W, d, ix):
        for k in range(2):
            self.smf(d + 4 * k, q(x), q(W + 8 * k, 8), ix)

    def gemv4_fin(self, out, d):
        self.a("v_add_f32 v%d, v%d, v%d" % (d, d, d + 1), "v_add_f32 v%d, v%d, v%d" % (d + 6, d + 6, d + 7),
               "v_add_f32 v%d, v%d, v%d" % (d, d, d + 6))
        self.pack_pairs(out, d)

    def colsum_pub(self, W, ones, d, va, t, off, *terms):
        a = self.a
        for r in range(4):
            a("v_mov_b32 v%d, %s" % (ones + r, ONES))
        self.lin(va, t, (0, 1, 10), (1, 3, 4))
        self.oob_unless(va, t, "v_cmp_gt_u32 vcc, 16, v0")
        self.sexpr(100, off, (sCS, 1), (sb, 4), (sw, 128), *terms)
        a("s_waitcnt lgkmcnt(0)")
        for kb in range(4):
            self.mfma(d, q(ones), q(W + 4 * kb), kb > 0)
        self.st_intra("buffer_store_dword", "v%d" % d, va, 100)

    def colsum_ld(self, r, off, sel):
        self.sexpr(100, off, (sCS, 1), (sel, 2048))
        self.a(self.ld(r, vA16, 100, 0), self.ld(r + 4, vA16, 100, 1024))

    def colsum_fin(self, r, c):
        for k in range(2):
            b = r + 4 * k
            self.a("v_add_f32 v%d, v%d, v%d" % (b, b, b + 1), "v_add_f32 v%d, v%d, v%d" % (b + 2, b + 2, b + 3),
                   "v_add_f32 v%d, v%d, v%d" % (b, b, b + 2), "v_mul_f32 v%d, %s, v%d" % (c + k, f32(-1.0 / 512), b))

    def stats(self, x, t, att):
        a = self.a
        s1, s2 = t, t + 1
        a("s_mov_b32 s100, %s" % ONES)
        for k in range(4):
            a("v_dot2_f32_bf16 v%d, v%d, s100, %s" % (s1, x + k, "v%d" % s1 if k else "0"),
              "v_dot2_f32_bf16 v%d, v%d, v%d, %s" % (s2, x + k, x + k, "v%d" % s2 if k else "0"))
        a("v_permlane32_swap_b32 v%d, v%d" % (s1, s2), "v_add_f32 v%d, v%d, v%d" % (s1, s1, s2))
        self.stats_fin(s1, t, att)

    def slice_sums(self, t, voff, soff):
        a = self.a
        a("v_mul_f32 v%d, v%d, v%d" % (t + 1, vRES, vRES))
        self.dpp("v_add_f32", t, vRES, vRES, "row_ror:8")
        self.dpp("v_add_f32", t + 1, t + 1, t + 1, "row_ror:8")
        a("v_cndmask_b32 v%d, v%d, v%d, s[%d:%d]" % (t, t, t + 1, sM1, sM1 + 1))
        for ctl in ("quad_perm:[1,0,3,2]", "quad_perm:[2,3,0,1]", "row_half_mirror"):
            self.dpp("v_add_f32", t, t, t, ctl)

    def st_off(self, v, t):
        self.lin(v, t, (5, 1, 8), (4, 1, 9), (3, 1, 7))
        self.a("v_and_b32 v%d, 7, v0" % t, "v_add_u32 v%d, s%d, v%d" % (t, sw, t))
        self.oob_unless(v, t, "v_cmp_eq_u32 vcc, 0, v%d" % t)

    def stats_fin(self, x, t, att):
        a = self.a
        s1, s2 = t, t + 1
        for k in (1, 2, 4, 8):
            self.dpp("v_add_f32", s1, x if k == 1 else s1, x if k == 1 else s1, "row_ror:%d" % k)
        self.dpp("v_add_f32", s1, s1, s1, "row_bcast:15", "0xa")
        a("v_readlane_b32 s%d, v%d, 31" % (sS1, s1), "v_mul_f32 v%d, %s, v%d" % (s1, f32(1.0 / 512), s1),
          "v_mov_b32 v%d, s%d" % (s2, sS1), "v_mul_f32 v%d, %s, v%d" % (s2, f32(1.0 / 512), s2),
          "v_fma_f32 v%d, -v%d, v%d, v%d" % (s1, s2, s2, s1), "v_max_f32 v%d, 0, v%d" % (s1, s1),
          "v_add_f32 v%d, %s, v%d" % (s1, f32(1e-5), s1))
        if att:
            a("v_rsq_f32 v%d, v%d" % (s1, s1), "v_mul_f32 v%d, %s, v%d" % (s1, f32(SCALE), s1))
        else:
            a("v_rcp_f32 v%d, v%d" % (s1, s1), "s_nop 0")
        a("v_readlane_b32 s%d, v%d, 63" % (sSC, s1))

    def sum4_init(self, acc, c):
        self.a("v_mul_f32 v%d, s%d, v%d" % (acc, sS1, c), "v_mul_f32 v%d, s%d, v%d" % (acc + 1, sS1, c + 1))

    def sum4(self, x, acc, init):
        for k in range(4):
            c = acc if k else init
            self.a("v_dot2_f32_bf16 v%d, v%d, s%d, v%d" % (acc, x + k, sLO, c),
                   "v_dot2_f32_bf16 v%d, v%d, s%d, v%d" % (acc + 1, x + k, sHI, c + 1))

    def q_addrs(self, vw, vr, t):
        a = self.a
        self.lin(vw, t, (3, 3, 5), (0, 1, 4), (1, 2, 2))
        self.sexpr(100, L_Q, (sw, QSTR))
        a("v_add_u32 v%d, s100, v%d" % (vw, vw))
        self.lin(vr, t, (4, 2, 5), (0, 1, 4))
        a("v_bfe_u32 v%d, v0, 2, 2" % t, "v_mul_u32_u24 v%d, %d, v%d" % (t, QSTR, t), "v_add_u32 v%d, v%d, v%d" % (vr, vr, t),
          "v_add_u32 v%d, 0x%x, v%d" % (vr, L_Q, vr), "v_mov_b32 v%d, v%d" % (vr + 1, vr))
        self.lds_or_zero(vr, t, 2, 0)
        self.lds_or_zero(vr + 1, t, 2, 2)

    def q_assemble(self, acc, vw, vr, fill=()):
        a = self.a
        a("v_cvt_pk_bf16_f32 v%d, v%d, v%d" % (acc, acc, acc + 1), "ds_write_b32 v%d, v%d" % (vw, acc), *fill)
        a("s_waitcnt lgkmcnt(0)", "s_barrier")
        rd = ["ds_read_b128 %s, v%d offset:%d" % (q(vQ + 4 * st), vr + (st >> 1), (st & 1) * 128) for st in range(4)]
        a(*rd)
        return rd

    def late_loads(self, name):
        self.layer1(name)
        for k in range(4 - self.lateg, 4):
            self.weight_issue("g", k, 32, 60)
        for k in range(2):
            self.weight_issue("d", k, 32, 62)
        self.touch(59)
        self.a(name + ":")

    def next_region(self):
        for r in (sWS, sWF, sWL):
            self.a("s_add_u32 s%d, s%d, 0x%x" % (r, r, LS), "s_addc_u32 s%d, s%d, 0" % (r + 1, r + 1))
        self.a("s_sub_u32 s%d, s%d, 0x%x" % (sCS, sCS, LS))

    def leader_fill(self):
        a = self.a
        a("v_mov_b32 v8, -1", "v_mov_b32 v9, -1", "v_mov_b32 v10, -1", "v_mov_b32 v11, -1",
          "s_or_b32 s%d, s%d, s%d" % (slead, sj, sw), "s_cmp_eq_u32 s%d, 0" % slead, "s_cbranch_scc0 L_nolead0")
        tk = a.mark()
        a("s_lshl_b32 s100, s%d, 17" % sg)
        for k in range((512 + 32 * self.fstr + 1023) // 1024):
            a("buffer_store_dwordx4 v[8:11], v%d, %s, s100 offen sc1" % (vA16, srd(sWS)), "s_add_u32 s100, s100, 1024")
        a("L_nolead0:")
        a.uncounted(tk)
        self.tok_lead = tk

    def leader_flag(self, word, name, tok=None, val="1"):
        a = self.a
        a("s_cmp_eq_u32 s%d, 0" % slead, "s_cbranch_scc0 " + name)
        if tok is not None:
            a.wait_vm(tok)
        tk = a.mark()
        a("v_mov_b32 v55, %s" % val, "v_lshlrev_b32 v54, 8, v0", "s_lshl_b32 s100, s%d, 2" % sg,
          "buffer_store_dword v55, v54, %s, s100 offen offset:%d sc1" % (srd(sDBG), word), name + ":")
        a.uncounted(tk)

    def flag_load(self, v, word, own):
        a = self.a
        if own:
            a("s_lshl_b32 s100, s%d, 2" % sg, "v_mov_b32 v%d, s100" % v)
        else:
            a("v_and_b32 v%d, 7, v0" % v, "v_lshlrev_b32 v%d, 2, v%d" % (v, v))
        return a("buffer_load_dword v%d, v%d, %s, 0 offen offset:%d sc1" % (v, v, srd(sDBG), word))

    def flag_check(self, v, word, own, tok, name):
        a = self.a
        a.wait_vm(tok)
        tk = a.mark()
        a("s_branch %s_c" % name, name + "_s:", "s_sleep 8")
        self.flag_load(v, word, own)
        a("s_add_u32 s%d, s%d, 1" % (sspin, sspin), "s_cmp_lt_u32 s%d, 0x%x" % (sspin, SPIN_LIMIT), "s_waitcnt vmcnt(0)",
          "s_cbranch_scc0 %s_d" % name, name + "_c:", "v_cmp_eq_u32 vcc, 0, v%d" % v, "s_cbranch_vccnz %s_s" % name, name + "_d:")
        a.uncounted(tk)

    def fill_intra(self, v, t, d, start, per_wave):
        a = self.a
        self.sexpr(100, start, (sg, 1 << 17), (sj, 4 * per_wave), (sw, per_wave))
        a("v_mov_b32 v%d, v%d" % (v, vA16))
        self.oob_unless(v, t, "v_cmp_gt_u32 vcc, %d, v0" % (per_wave // 16))
        if "fill" not in self.off:
            self.st_intra("buffer_store_dwordx4", q(d), v, 100)

    def sentinels(self, d):
        for r in range(4):
            self.a("v_mov_b32 v%d, -1" % (d + r))

    def prologue(self):
        a = self.a
        if self.stamps:
            a("%s s[92:93]" % ("s_memtime" if self.cyc else "s_memrealtime"))
        a("s_load_dwordx16 s[4:19], s[0:1], 0", "s_load_dwordx8 s[20:27], s[0:1], 64",
          "v_lshrrev_b32 v1, 6, v0", "s_cmpk_ge_u32 s2, 256", "v_readfirstlane_b32 s%d, v1" % sw, "s_cbranch_scc1 L_end")
        a("v_and_b32 v0, 63, v0", "s_and_b32 s%d, s2, 7" % sg, "s_lshr_b32 s%d, s2, 3" % sj, "s_lshr_b32 s%d, s2, 6" % sb,
          "s_and_b32 s%d, s%d, 7" % (ss, sj), "s_lshl2_add_u32 s%d, s%d, s%d" % (su, ss, sw),
          "s_lshl3_add_u32 s100, s%d, s%d" % (sb, sg), "s_lshl_b32 s100, s100, 21", "s_mul_i32 s%d, s%d, %d" % (sring, sw, RING))
        if self.ubits == (12, 13, 14, 15, 16):
            a("s_lshl_b32 s%d, s%d, 12" % (sstep, su))
        else:
            self.scatter(sstep, su, self.ubits, True)
        if self.rot == (1, 4):
            a("s_lshl2_add_u32 s%d, s%d, s%d" % (stmp, sb, sg))
            self.scatter(srot, stmp, self.tbits, True)
        elif any(self.rot):
            self.sexpr(stmp, 0, *[(r, m) for r, m in zip((sg, sb), self.rot) if m])
            self.scatter(srot, stmp, self.tbits, True)
        else:
            a("s_mov_b32 s%d, 0" % srot)
        a("v_lshrrev_b32 v5, 4, v0", "v_and_b32 v6, 15, v0", "v_xor_b32 v7, v5, v6", "v_lshlrev_b32 v7, 4, v7",
          "v_lshl_add_u32 v%d, v5, 8, v7" % vKS)
        a("v_xor_b32 v%d, 64, v%d" % (vKS + 1, vKS), "v_xor_b32 v%d, 128, v%d" % (vKS + 2, vKS), "v_xor_b32 v%d, 64, v%d" % (vKS + 3, vKS + 2),
          "s_lshl_b32 s98, s2, 10", "s_bitset1_b32 s98, 22", "v_mov_b32 v9, s98", "v_xor_b32 v10, 0x2000, v9",
          "s_lshl_b32 s%d, 1, 21" % (sK + 2), "s_mov_b32 s%d, 0x20000" % (sK + 3))
        self.tok, self.ltok, self.wtok = {}, [], {}
        first = self.lines(self.tile_issue, 0)
        self.tok, self.ltok = {}, []
        a(*first[:2])
        a("s_waitcnt lgkmcnt(0)", "global_load_dword v95, v9, s[26:27] sc1" if "cal" not in self.off else "s_nop 0")
        tok_cal = a.mark()
        a("global_load_dword v95, v10, s[26:27] offset:128 sc1" if "cal" not in self.off else "s_nop 0", "s_add_u32 s%d, s6, s100" % sK, "s_addc_u32 s%d, s7, 0" % (sK + 1))
        for x in first[2:]:
            self.ltok.append(a(x))
        self.tok[0] = a.mark()
        a("s_cmp_eq_u32 s%d, 0" % sw, "s_cbranch_scc0 L_novote")
        a.wait_vm(tok_cal)
        a("s_sleep 1", "s_getreg_b32 s99, hwreg(HW_REG_IB_STS, 0, 4)", "L_novote:")
        self.tile_issue(1)
        a("s_lshl_b32 s%d, s%d, 12" % (su, su))
        a("s_add_u32 s%d, s8, s100" % sV, "s_addc_u32 s%d, s9, 0" % (sV + 1),
          "s_mov_b32 s%d, 0x200000" % (sV + 2), "s_mov_b32 s%d, 0x20000" % (sV + 3))
        a("v_lshl_add_u32 v%d, v6, 8, v7" % vKR, "v_add_u32 v%d, s%d, v%d" % (vKR, sring, vKR))
        for st in range(1, 4):
            a("v_xor_b32 v%d, %d, v%d" % (vKR + st, st << 6, vKR))
        a("v_lshlrev_b32 v%d, 4, v0" % vA16)
        self.mk_srd(sDBG, 24, "256")
        self.mk_srd(sWS, 26, "0x%x" % WS_SIZE)
        self.mk_srd(sOUT, 22, "4096")
        a("s_add_u32 s%d, s26, 0x%x" % (sXW, OFF_XW), "s_addc_u32 s%d, s27, 0" % (sXW + 1),
          "s_mov_b32 s%d, 0x100000" % (sXW + 2), "s_mov_b32 s%d, 0x20000" % (sXW + 3))
        if self.stamps:
            a("v_mov_b32 v4, 0", "v_writelane_b32 v4, s92, 0")
            self.nst = 1
            self.stamp_names.append("entry")
        self.stamp("start")
        a("s_cmp_gt_u32 s99, 4", "s_cselect_b32 s%d, 16, 0" % svote)
        self.setup_b()
        self.setup_c()

    def setup_a(self):
        a = self.a
        self.mk_srd(sXI, 4, "4096")
        self.lin(6, 7, (4, 2, 6), (2, 2, 10), (0, 2, 4))
        self.lin(5, 7, (5, 1, 10), (4, 1, 11), (0, 4, 1))
        a("s_lshl_b32 s100, s%d, 8" % sb, "s_lshl_b32 s101, s%d, 10" % sb, "s_lshl_b32 s%d, s%d, 5" % (stmp, sj),
          "buffer_load_dwordx4 %s, v6, %s, s100 offen" % (q(vX), srd(sXI)),
          "buffer_load_dwordx4 %s, v%d, %s, s101 offen" % (q(vX + 4), vA16, srd(sXI)),
          "buffer_load_ushort v%d, v5, %s, s%d offen" % (vRES, srd(sXI), stmp))
        self.tok_pro = a.mark()

    def early_fill(self):
        a = self.a
        if "clr" in self.off:
            return
        if self.clrw is None:
            self.sexpr(100, 0, (sj, 32768), (sg, 2048), (sw, 512))
            a("v_mov_b32 v12, v%d" % vA16)
            self.oob_unless(12, 13, "v_cmp_gt_u32 vcc, 32, v0")
            a("buffer_store_dwordx4 v[8:11], v12, %s, s100 offen %s" % (srd(sXW), self.clrpol))
            return
        tk = a.mark()
        a("s_cmp_eq_u32 s%d, %d" % (sw, self.clrw), "s_cbranch_scc0 L_noclr")
        self.sexpr(100, 0, (sj, 32768), (sg, 2048))
        for k in range(2):
            a("buffer_store_dwordx4 v[8:11], v%d, %s, s100 offen offset:%d %s" % (vA16, srd(sXW), 1024 * k, self.clrpol))
        a("L_noclr:")
        a.uncounted(tk)

    def setup_b(self):
        a = self.a
        self.mk_srd(sWF, sWS, "0")
        self.mk_srd(sWL, sWS, "0x%x" % WS_SIZE)
        G = (sg, 1 << 17)
        self.sexpr(sCS, 2 * LS, G)
        a("s_lshr_b32 s%d, s%d, 1" % (stmp, ss), "s_and_b32 s100, s%d, 1" % ss)
        self.sexpr(sEst, OFF_E, G, (stmp, 1024), (100, 128), (sw, 32), (sb, 256))
        self.sexpr(sEld, OFF_E, G, (sb, 4096), (sw, 1024))
        self.sexpr(sMLld, OFF_ML, G, (sb, 1024))
        a("s_lshr_b32 s%d, s%d, 9" % (sMLst, su), "s_add_u32 s%d, s%d, s%d" % (sMLst, sMLst, sMLld),
          "s_mov_b32 s%d, 0" % slayer, "s_mov_b32 s%d, 0" % sspin, "s_mov_b32 s%d, -2" % scmp,
          "s_mov_b32 s%d, 0x3f80" % sLO, "s_mov_b32 s%d, 0x3f800000" % sHI,
          "s_and_b32 s100, s%d, 3" % ss, "s_cmp_eq_u32 s100, 3", "s_cselect_b32 s%d, 0, 1" % sact,
          "s_cmp_eq_u32 s%d, 3" % sb, "s_cselect_b32 s100, 0, 2", "s_or_b32 s%d, s%d, s100" % (sact, sact),
          "s_bitcmp1_b32 s%d, 0" % sg, "s_cselect_b32 s%d, s%d, 3" % (sact, sact))

    def setup_c(self):
        a = self.a
        G = (sg, 1 << 17)
        a("s_lshr_b32 s%d, s%d, 2" % (stmp, ss), "s_and_b32 s100, s%d, 3" % ss)
        self.sexpr(sAst, OFF_A, G, (sw, 8192), (stmp, 4096), (sb, 1024), (100, 256))
        self.sexpr(sCst, OFF_C, G, (100, 4096), (stmp, 128), (sw, 32), (sb, 256))
        self.sexpr(sAld, OFF_A, G, (sb, 8192), (sw, 2048))
        self.sexpr(sCld, OFF_C, G, (sb, 4096), (sw, 1024))
        self.sexpr(sBst, 0, (su, 8), (sg, 512), (sb, 128))
        self.sexpr(sBld, 0, (sj, 32768))
        a("s_lshr_b32 s%d, s%d, 1" % (stmp, sj), "s_and_b32 s100, s%d, 1" % sj)
        self.sexpr(sXst, OFF_XB, G, (stmp, 256), (100, 32))
        self.sexpr(sXld, OFF_XB, G, (sb, 1024))
        self.sexpr(sRow, OFF_ST, G)
        a("s_mov_b32 s%d, 0xff00ff00" % sM1, "s_mov_b32 s%d, 0xff00ff00" % (sM1 + 1))
        self.lin(vTRV, 7, (2, 1, 12), (4, 2, 10), (3, 1, 8), (4, 1, 7), (2, 1, 6), (3, 1, 5), (0, 2, 3))
        a("v_add_u32 v%d, s%d, v%d" % (vTRV, sring, vTRV))

    def part_off(self, v, t, bs, cmp="0"):
        self.lin(v, t, (4, 2, bs), (0, 4, 1))
        self.even_only(v, t, cmp)

    def group_flag(self, k, val):
        a = self.a
        a("v_mov_b32 v14, %s" % val, "v_add_u32 v15, s%d, v0" % sw, "v_lshlrev_b32 v15, 24, v15")
        self.sexpr(100, 0 if k else 512, (sg, 1 << 17), (sj, self.fstr2 if k else self.fstr))
        self.st_intra("buffer_store_dword", "v14", 15, 100)

    def stream(self):
        a = self.a
        lag = self.lag
        t_dl, t_f1, t_l1, t_c1, t_f2, t_l2, t_c2 = self.sync
        wl = {}
        for kind, ts in (("q", self.tq), ("g", self.tg[:4 - self.lateg]), ("o", self.to)):
            for k, T in enumerate(ts):
                wl.setdefault(T, []).append((kind, k))
        tqk = max(t_c2 + 2, 16 + lag)
        assert self.clr1 <= t_dl and self.tq[-1] + 2 <= t_c1 and self.tg[-1] + 2 <= t_f2
        pvat = {}
        for p in range(5):
            pvat.setdefault(max(tqk + 3 + (p >> 1), 17 + 2 * p + lag), []).append(p)
        assert min(self.ipf, self.tml, self.tclr, self.ttouch or 99) >= tqk + 3 and max(pvat) < 32
        vF = 94
        G17 = "s_lshl_b32 s101, s%d, 17" % sg
        qk = None
        for T in range(1, 32):
            if T == 16:
                self.lin(5, 7, (4, 2, 8), (0, 4, 4))
                a("v_and_b32 v7, 16, v0", "v_lshlrev_b32 v7, 1, v7", "v_xor_b32 v5, v5, v7", "v_xor_b32 v6, 128, v5")
                self.mk_ai()
            between = None
            if T in (tqk + 1, tqk + 2):
                def between(jj):
                    a(*qk.pop(0))
            if T in self.bars:
                a("s_barrier")
            if T > 1:
                self.tile_issue(T, between)
            if T == 1:
                if self.ipf0:
                    a("s_getpc_b64 s[98:99]", "L_pc0:")
                    self.sexpr(100, 0, (sj, 512), (sw, 128))
                    a("s_min_u32 s100, s100, L_codeend-L_pc0-4", "v_mov_b32 v93, s100", "global_load_dword v93, v93, s[98:99]")
                self.leader_fill()
            for kind, k in wl.get(T, []):
                if kind == "o" and T == 31:
                    if k == 0:
                        self.weight_load(kind, 0, None, 18)
                        if self.obar:
                            a("s_barrier")
                    if not self.owait or self.owait[k] < 5:
                        self.weight_issue(kind, k, T, 18)
                else:
                    self.weight_load(kind, k, T, 52 if T < 20 else 18)
            if self.stamps is not True and T > 1:
                self.stamp("T%02d" % T)
            if T == 1:
                self.setup_a()
            if T == self.clr1:
                self.early_fill()
            if T == self.ttlb and self.tlb:
                self.page_touch()
            if lag <= T < 26 + lag:
                self.tile_consume(T - lag)
            if T == 2:
                self.leader_flag(0, "L_nolead1", self.tok_lead)
            if T == t_dl:
                if self.early and self.estat is None:
                    self.flag_load(vF - 1, 0, False)
                tok_f = self.flag_load(vF, 0, True) if "f0" not in self.off else a.mark()
            if T == t_f1:
                if "f0" not in self.off:
                    self.flag_check(vF, 0, True, tok_f, "L_f0")
                if self.early and self.estat is None:
                    a("v_cmp_ne_u32 vcc, 0, v%d" % (vF - 1), "s_and_b32 s100, vcc_lo, 0xff", "s_bcnt1_i32_b32 s100, s100",
                      "s_cmp_lt_u32 s100, %d" % self.eth, "s_cselect_b32 s%d, 1, 0" % searly)
                    if self.stamps:
                        a("v_writelane_b32 v4, s100, 27")
                elif self.early:
                    a("s_getreg_b32 s100, hwreg(HW_REG_XCC_ID, 0, 3)", "s_lshr_b32 s100, 0x%x, s100" % self.estat, "s_and_b32 s%d, s100, 1" % searly)
                a("s_barrier", "s_getreg_b32 s%d, hwreg(HW_REG_XCC_ID, 0, 4)" % stmp, "s_or_b32 s%d, s%d, s%d" % (stmp, stmp, svote))
                if "f1" not in self.off:
                    self.group_flag(0, "s%d" % stmp)
                if "byte" in self.off:
                    self.sexpr(100, 0, (sg, 32), (sj, 1))
                    a("v_mov_b32 v14, 64", "v_add_u32 v15, s%d, v0" % sw, "v_lshlrev_b32 v15, 8, v15",
                      "buffer_store_byte v14, v15, %s, s100 offen sc1" % srd(sDBG))
                a("v_lshlrev_b32 v%d, 16, v%d" % (vRES, vRES))
                self.stats(vX + 4, 8, True)
            if T == t_l1 and "byte" in self.off:
                a("v_lshlrev_b32 v93, 2, v0", "buffer_load_dword v93, v93, %s, 0 offen sc1" % srd(sDBG))
            if T in (t_l1, t_l2):
                fld = self.ld(vF, vF + 1, 101, 512 if T == t_l1 else 0, n=1)
                a("v_and_b32 v%d, 31, v0" % (vF + 1), "v_mul_u32_u24 v%d, %d, v%d" % (vF + 1, self.fstr if T == t_l1 else self.fstr2, vF + 1), G17)
                tok_f = a(fld) if ("f1" if T == t_l1 else "f2") not in self.off else a("s_getreg_b32 s100, hwreg(HW_REG_XCC_ID, 0, 4)", "v_mov_b32 v%d, s100" % vF)
            if T == t_c1:
                self.check_or_poll([fld], [[vF]], 7, "xcc", max(tok_f, self.wtok["q"]), [G17])
                a("s_barrier")
                self.w_tiles([("q", vWQ)], 5, 7)
                a("v_cmp_lt_u32 vcc, 15, v%d" % vF, "v_and_b32 v%d, 15, v%d" % (vF, vF),
                  "s_and_b32 s100, vcc_lo, 0x55555555", "s_and_b32 s101, vcc_lo, 0xaaaaaaaa",
                  "s_bcnt1_i32_b32 s100, s100", "s_bcnt1_i32_b32 s101, s101")
                if self.stamps:
                    a("v_writelane_b32 v4, s100, 28", "v_writelane_b32 v4, s101, 29")
                a("s_getreg_b32 s%d, hwreg(HW_REG_XCC_ID, 0, 4)" % svote, "s_sub_u32 s%d, s100, s101" % stmp, "s_sub_u32 s101, s101, s100",
                  "s_bitcmp1_b32 s%d, 2" % svote, "s_cselect_b32 s101, s101, s%d" % stmp, "s_add_u32 s101, s101, 64")
                self.leader_flag(32, "L_nolead2", val="s101")
                if not self.force_slow:
                    a("v_cmp_ne_u32 vcc, s%d, v%d" % (svote, vF), "s_cmp_eq_u64 vcc, 0",
                      "s_cselect_b32 s%d, 0x%x, 0" % (sWF + 2, WS_SIZE), "s_cselect_b32 s%d, 0, 0x%x" % (sWL + 2, WS_SIZE))
                self.part_off(6, 7, 12)
                a("s_lshr_b32 s%d, s%d, 1" % (stmp, ss), "s_and_b32 s%d, s%d, 1" % (sclr, ss))
                self.colsum_pub(vWQ, 12, 16, 10, 11, OFF_CSQ, (stmp, 2048), (sclr, 512))
                self.mk_ix(8)
                self.gemv_zero(vD)
                self.gemv4(vX, vWQ, vD, 8)
                self.sentinels(20)
                self.gemv4_fin(9, vD)
                self.st_intra("buffer_store_dword", "v9", 6, sEst)
                self.fill_intra(24, 7, 20, LS + OFF_ML, 288)
                tok_q = a.mark()
                self.stamp("arrive")
            if T == t_f2:
                a.wait_vm(max(tok_q, self.wtok.get("g", 0)))
                a("s_barrier")
                self.group_flag(1, "1")
                self.w_tiles([("g", vWQ)], 5, 7)
                a("s_lshr_b32 s%d, s%d, 2" % (stmp, ss), "s_and_b32 s%d, s%d, 3" % (sclr, ss))
                self.colsum_pub(vWQ, 16, 20, 10, 11, OFF_CSG, (sclr, 2048), (stmp, 512))
            if T == t_c2:
                self.check_or_poll([fld], [[vF]], 7, "q1", tok_f, [G17])
                if "csq" not in self.off:
                    self.colsum_ld(28, OFF_CSQ, sw)
                tok_q = a("v_lshlrev_b32 v7, 2, v0", *self.ld4(24, 7, sEld))
                self.next_region()
                self.stamp("barrier")
            if T == t_c2 + 1:
                self.s_zero()
                self.q_addrs(40, 42, 7)
            if T == tqk:
                a.wait_vm(tok_q)
                self.colsum_fin(28, 36)
                self.sum4_init(38, 36)
                self.sum4(24, 38, 38)
                self.q_assemble(38, 40, 42)
                ls, _ = schedule(self.lines(self.qk))
                qk = [ls[len(ls) * k // 4:len(ls) * (k + 1) // 4] for k in range(4)]
            if T == tqk + 1:
                self.ml_off(22, 23)
                self.sexpr(100, L_WD, (sw, 2048))
                self.lin(16, 23, (2, 2, 6), (4, 2, 4))
                a("v_add_u32 v16, s100, v16", "v_lshl_add_u32 v17, v0, 2, s100")
                self.lds_or_zero(16, 23, 3)
                ls, _ = schedule(self.lines(self.softmax, 17, 22))
                qk = [ls[len(ls) * k // 4:len(ls) * (k + 1) // 4] for k in range(4)]
            if T == tqk + 2:
                self.stamp("softmax1")
            for p in pvat.get(T, ()):
                self.p_read(ORDER.index(p), 16, p & 1)
                a("s_waitcnt lgkmcnt(0)")
                self.pv_dense(p, p & 1)
            if T == self.ipf:
                a("s_getpc_b64 s[4:5]", "L_pc:", "s_add_u32 s4, s4, L_tail-L_pc", "s_addc_u32 s5, s5, 0")
                self.sexpr(100, 0, (sj, 512), (sw, 128))
                a("s_min_u32 s100, s100, L_codeend-L_tail-4", "v_mov_b32 v80, s100", "global_load_dword v80, v80, s[4:5]")
            if T == self.tml:
                ml1 = [self.ld(64, vA16, sMLld)]
                a(*ml1)
                tok_warm = self.flag_load(70, 32, False) if "f3" not in self.off else a("v_mov_b32 v70, 64")
            if T == (self.ttouch or self.tclr + 1) and self.tsplit < 3:
                self.touch_addr(81, 82, [(OFF_A, 8), (LS + OFF_CSG, 2)] + ([] if self.tsplit & 1 else T1) + ([] if self.tsplit & 2 else [(LS + OFF_A, 14)]))
                tok_warm = self.touch(81)
            if T == self.tclr:
                self.sentinels(72)
                self.fill_intra(76, 77, 72, OFF_C, 352)
                self.fill_intra(78, 77, 72, LS, 480)
        if "bar" in self.off:
            a.l = [i for i in a.l if i.op != "s_barrier"]
        if "comp" in self.off:
            a.l = [i for i in a.l if not (i.mfma or i.trans or i.dot or i.dpp or i.op.startswith("v_pk"))]
        if "ds" in self.off:
            a.l = [i for i in a.l if not i.ds]
        self.stamp("issued")
        self.flag_check(70, 32, False, tok_warm, "L_f1")
        for k in (1, 2, 4):
            self.dpp("v_add_u32", 70, 70, 70, "row_ror:%d" % k)
        a("v_readfirstlane_b32 s100, v70", "s_cmpk_ge_u32 s100, 512", "s_cselect_b32 s100, 0, 4", "s_xor_b32 s100, s100, s%d" % svote,
          "s_bitcmp1_b32 s100, 2", "s_cselect_b32 s100, %s" % {0: "0, 0", 1: "0x2000, 0", 2: "0, 0x2000"}[self.near],
          "s_add_u32 s%d, s%d, s100" % (sBld, sBld), "s_add_u32 s%d, s%d, s100" % (sB2, sBst), "s_xor_b32 s%d, s%d, 0x2000" % (sBst, sB2))
        self.check_or_poll(ml1, [range(64, 68)], 69, "ml1", tok_warm)
        self.ml_finish(64)
        self.o_addr()
        a("s_mov_b32 s%d, 1" % slayer)
        a(*[x for x in self.lines(self.weight_load, "d", 0, None, 62) if x.startswith("s_")])
        if self.lateg:
            a(*[x for x in self.lines(self.weight_load, "g", 0, None, 60) if x.startswith("s_")])
        for p in (5, 6, 7):
            self.p_read(ORDER.index(p), 16, p & 1)
            keep = len(a.l)
            self.tile_consume(17 + 2 * p)
            for k in range(4):
                if self.owait and self.owait[k] == p:
                    self.weight_issue("o", k, 31, 18)
            if p < 7:
                self.pv_dense(p, p & 1, lgkm=lambda i: 14 - 2 * i)
            else:
                pre = [i.text for i in a.l[keep:] if i.ds]
                self.sched(self.lines(self.pv_dense, p, p & 1) + self.lines(self.o_write, 8, 16, False), pre)
        self.n_after_o = min(a.mark() - self.wtok["o"], 60)
        self.stamp("pv1")

    def page_touch(self):
        a = self.a
        tk = a.mark()
        a("s_cmp_eq_u32 s%d, 1" % sw, "s_cbranch_scc0 L_notlb", "v_mov_b32 v92, 0")
        self.sexpr(100, 0, (sg, 512 * 1024), (sb, 128 * 1024))
        a("v_mov_b32 v91, s100", "v_mov_b32 v90, 0x%x" % (2 * LS))
        for k, ins in (("v", "buffer_load_dword v93, v92, %s, 0 offen nt" % srd(sV)), ("o", "global_load_dword v93, v91, s[12:13] nt"),
                       ("g", "global_load_dword v93, v92, s[16:17] nt"), ("g", "global_load_dword v93, v92, s[18:19] nt"),
                       ("d", "global_load_dword v93, v92, s[20:21] nt"), ("x", "buffer_load_dword v93, v92, %s, 0 offen nt" % srd(sOUT)),
                       ("w", "buffer_load_dword v93, v90, %s, 0 offen nt" % srd(sWS))):
            if k in self.tlb:
                a(ins)
        a("L_notlb:")
        a.uncounted(tk)

    def touch_addr(self, v, t, parts):
        a = self.a
        a("v_mov_b32 v%d, 0x%x" % (v, OOB), "v_lshl_add_u32 v%d, v0, 2, s%d" % (t + 1, sw))
        hi = sum(n for _, n in parts)
        for start, n in reversed(parts):
            self.sexpr(100, start - 128 * (hi - n), (sg, 1 << 17), (sj, 128 * n))
            a("v_lshl_add_u32 v%d, v%d, 7, s100" % (t, t + 1), "v_cmp_gt_u32 vcc, %d, v%d" % (hi, t + 1),
              "v_cndmask_b32 v%d, v%d, v%d, vcc" % (v, v, t))
            hi -= n

    def touch(self, v):
        return self.a("buffer_load_dword v%d, v%d, %s, 0 offen sc1" % (v, v, srd(sWS)))

    def fill_cross(self, d, hop):
        self.sentinels(d)
        self.lin(d + 4, d + 5, (4, 2, 15), (3, 1, 13), (0, 3, 4))
        self.sexpr(100, (hop >> 1) * 0x4000 + (hop & 1) * 0x1000, (ss, 1 << 17), (sg, 512), (sb, 128))
        self.a("buffer_store_dwordx4 %s, v%d, %s, s100 offen sc1" % (q(d), d + 4, srd(sXW)))

    def st_cross(self, v):
        a = self.a
        for so in (sBst, sB2) if self.near else (sB2,):
            a("buffer_store_dword v%d, v95, %s, s%d offen sc1" % (v, srd(sXW), so))

    def red_loads(self, x, soff):
        return [self.ld(x + 4 * i, vA16, soff, i * 1024, rs=sXW) for i in range(4)]

    def prep_split(self, name, work, loads):
        a = self.a
        n = self.at[name][0]
        while n < len(work) and work[n].startswith(("s_cselect", "s_addc", "s_cbranch")):
            n += 1
        a(*work[:n])
        a("s_cmp_eq_u32 s%d, 0" % sw, "s_cbranch_scc0 L_%s_n" % name)
        self.idle(n - len(work))
        a(*loads)
        a("L_%s_n:" % name, *work[n:])
        self.est += (name, len(work))

    def reduce_x(self, name, x, d, soff):
        a = self.a
        self.poll(self.red_loads(x, soff), [range(x + 4 * i, x + 4 * i + 4) for i in range(4)], 7, name,
                  spec=lambda i: self.mfma(d, q(x + 4 * i), q(vSEL), i > 0), again=self.kx)
        m = "s[%d:%d]" % (sM1, sM1 + 1)
        a("v_cndmask_b32 v%d, v%d, v%d, %s" % (d, d, d + 1, m), "v_cndmask_b32 v%d, v%d, v%d, %s" % (d + 2, d + 2, d + 3, m),
          "v_permlane32_swap_b32 v%d, v%d" % (d, d + 2), "v_add_f32 v%d, v%d, v%d" % (vRES, vRES, d),
          "v_add_f32 v%d, v%d, v%d" % (vRES, vRES, d + 2))
        self.pack_pairs(7, vRES)

    def x_off(self, v, t, bs):
        self.lin(v, t, (5, 1, bs), (4, 1, bs + 1), (0, 4, 1))
        self.even_only(v, t)

    def layer1(self, name):
        self.a("s_cmp_eq_u32 s%d, 1" % slayer, "s_cbranch_scc0 " + name)

    def chain(self):
        a = self.a
        a("L_tail:")
        self.lin(23, 6, (2, 4, 4), (1, 1, 8), (0, 1, 3))
        self.sexpr(sclr, L_SCR, (sw, 2048))
        a("v_add_u32 v23, s%d, v23" % sclr, "s_waitcnt lgkmcnt(0)", "s_barrier")
        for src in range(4):
            a("ds_read_b64 %s, v23 offset:%d" % (q(8 + 2 * src, 2), src * 512))
        a("v_lshlrev_b32 v17, 2, v0", "s_mov_b32 m0, s%d" % sclr)
        self.lin(56, 16, (2, 2, 9), (4, 2, 7), (2, 2, 5), (0, 2, 3))
        a("s_lshl_b32 s100, s%d, 5" % sw, "v_xor_b32 v56, s100, v56", "v_add_u32 v56, 0x%x, v56" % L_WO)
        a("s_waitcnt lgkmcnt(2)", "v_pk_add_f32 v[8:9], v[8:9], v[10:11]", "s_waitcnt lgkmcnt(0)", "v_pk_add_f32 v[12:13], v[12:13], v[14:15]",
          "v_pk_add_f32 v[8:9], v[8:9], v[12:13]", "v_cvt_pk_bf16_f32 v7, v8, v9")
        self.st_intra("buffer_store_dword", "v7", 17, sAst)
        self.stamp("Apub", True)
        if self.stamps:
            a("s_mov_b32 m0, s%d" % sclr)
        a("v_lshrrev_b32 v5, 4, v0", "v_and_b32 v6, 15, v0", "v_xor_b32 v16, v5, v6", "v_lshlrev_b32 v16, 4, v16",
          "v_lshl_add_u32 v18, v5, 8, v16", "s_and_b32 s100, s%d, 1" % sw, "s_lshl_b32 s100, s100, 7", "v_xor_b32 v18, s100, v18",
          "v_xor_b32 v19, 64, v18")
        lda = ["buffer_load_dwordx4 v%d, %s, s%d offen offset:%d sc1 lds" % (18 + h, srd(sWS), sAld, h * 1024) for h in range(2)]

        def prep_a():
            a = self.a
            a("s_waitcnt vmcnt(%d)" % (1 + self.n_after_o), "s_barrier")
            for st in range(4):
                for h in range(2):
                    a("ds_read_b64_tr_b16 %s, v56 offset:%d" % (q(24 + 4 * st + 2 * h, 2), st * 4096 + h * 2048))
            a("v_lshl_add_u32 v20, v6, 8, v16", "v_add_u32 v20, 0x%x, v20" % L_SCR)
            for st in range(1, 4):
                a("v_xor_b32 v%d, %d, v20" % (20 + st, st << 6))
            a("v_add_u32 v5, s%d, v%d" % (sclr, vA16), "v_lshlrev_b32 v95, 1, v0")
            self.even_only(95, 6)
            a(*[x for x in self.lines(self.weight_load, "d", 0, None, 62) if x.startswith("v_")])
            self.touch_addr(59, 60, T1)
        assert self.at["pollA"][0] >= 2
        n = self.with_loads("pollA", self.lines(prep_a), lda)
        a("s_branch L_pollA_w", "L_pollA:")
        self.idle(self.aback)
        a(*lda)
        a(*self.spin_count())
        a("L_pollA_w:", "s_waitcnt vmcnt(%d)" % (2 * n - 1), "ds_read_b128 v[8:11], v5", "s_waitcnt vmcnt(%d)" % (2 * n - 2),
          "ds_read_b128 v[12:15], v5 offset:1024")
        ck = self.lines(self.check, [range(8, 12), range(12, 16)], 7, 0)
        a("s_waitcnt lgkmcnt(1)", *ck[:2], "s_waitcnt lgkmcnt(0)", *ck[2:])
        a("s_cbranch_vccnz L_pollA")
        if self.stamps and self.stamps is not True and "pollA" in self.stamps:
            self.stamp("pollA", True)
        a("s_barrier")
        ops = [40, 44, 48, 52, 64, 68, 72, 76]
        rd = ["ds_read_b128 %s, v%d offset:%d" % (q(ops[k]), 20 + (k >> 1), (k & 1) * 4096) for k in range(8)]
        m = self.oahead
        a(*rd[:m])
        if self.latepos == 0:
            self.late_loads("L_l1b")
        for k in range(8):
            a("s_waitcnt lgkmcnt(%d)" % (min(8, m + k) - k - 1))
            self.mfma(8, q(ops[k]), q(24 + 4 * (k >> 1)), k > 0)
            if m + k < 8:
                a(rd[m + k])
        a("v_add_f32 v8, v8, v9", "v_add_f32 v10, v10, v11", "v_add_f32 v8, v8, v10")
        self.pack_pairs(7, 8)
        self.st_cross(7)
        if self.latepos == 1:
            self.late_loads("L_l1b")
        self.stamp("Bpub", True)
        self.colsum_ld(80, OFF_CSG, sb)
        self.layer1("L_l1c")
        self.colsum_ld(24, OFF_CSQ, sw)
        if not self.clr2:
            self.sentinels(72)
            self.lin(76, 77, (3, 3, 12), (0, 3, 4))
            a("s_and_b32 s100, s%d, 0xffffdfff" % sBst, "s_add_u32 s100, s100, 0x4000")
            self.oob_unless(76, 77, "v_cmp_gt_u32 vcc, 32, v0")
            a("buffer_store_dwordx4 v[72:75], v76, %s, s100 offen sc1" % srd(sXW))
        a("L_l1c:")
        wt = self.lines(self.w_tiles, [("d", vWD)], 91, 7)

        def prep_b():
            a = self.a
            self.w_tiles([("g", vWG), ("q", vWQ)], 5, 7)
            a("v_and_b32 v5, 1, v0", "v_lshlrev_b32 v5, 4, v5", "v_lshlrev_b32 v5, v5, s%d" % sLO, "v_bfe_u32 v6, v0, 1, 2")
            for r in range(4):
                a("v_cmp_eq_u32 vcc, %d, v6" % r, "v_cndmask_b32 v%d, 0, v5, vcc" % (vSEL + r))
            self.x_off(94, 7, 6)
            self.st_off(93, 7)
            a("s_bitcmp1_b32 s%d, 0" % sact, "s_cselect_b32 s%d, 0, -1" % stmp)
            self.part_off(92, 7, 10, "s%d" % stmp)
            self.lin(89, 7, (0, 5, 2), (5, 1, 1))
            self.sexpr(100, L_H, (sw, 128))
            a("v_add_u32 v89, s100, v89")
            self.mk_ix(90)
            self.lin(88, 7, (2, 2, 7), (0, 1, 4), (4, 2, 5))
            a("v_add_u32 v88, 0x%x, v88" % L_H)
            a(*[x for x in wt if not x.startswith("ds_")])
            self.sexpr(stmp, 0, (sRow, 1), (sw, 256))
            self.sexpr(sclr, 0, (sRow, 1), (sj, 4))
            a("s_add_u32 s%d, s%d, 0x1000" % (sBst, sBst), "s_add_u32 s%d, s%d, 0x1000" % (sB2, sB2))
        self.prep_split("pollB", self.lines(prep_b), self.red_loads(vX, sBld))
        aux = [self.ld(vX + 4, 91, stmp, n=1)]
        a("s_waitcnt lgkmcnt(0)", "s_cmp_eq_u32 s%d, 0" % sw, "s_cbranch_scc0 L_nored1")
        self.cold += ["L_nored1:"]
        if self.clr2:
            self.cold += (["s_lshl2_add_u32 s100, s%d, s%d" % (slayer, sw), "s_cmp_eq_u32 s100, 5", "s_cbranch_scc0 L_nof2"]
                          + self.lines(self.fill_cross, vX + 8, 2) + ["L_nof2:"])
        if self.wb & 4:
            self.cold += ["s_lshl_b32 s100, s%d, 2" % sj, "s_add_u32 s100, s100, s%d" % sw, "s_lshl_b32 s100, s100, 2", "s_add_u32 s100, s100, s%d" % slayer,
                          "s_cmp_eq_u32 s100, 14", "s_cbranch_scc0 L_nowb4", "buffer_wbl2 sc1", "L_nowb4:"]
        self.cold += ["s_waitcnt vmcnt(0)", "s_branch L_red1"]
        self.reduce_x("pollB", vX, vD, sBld)
        self.st_intra("buffer_store_dword", "v7", 94, sXst)
        a("v_lshlrev_b32 v%d, 16, v7" % vRES)
        self.stamp("XBpub", True)
        a("L_red1:", "s_barrier")
        ldx = [self.ld(vX, vA16, sXld)]
        work, _ = schedule(self.lines(self.colsum_fin, 24, vCQ) + self.lines(self.colsum_fin, 80, vCG) + self.lines(self.gemv_zero, vD)
                           + [x + " ; prio=100" for x in self.lines(self.slice_sums, 5, 93, sclr)])
        k = max(i for i, x in enumerate(work) if "_dpp" in x) + 1
        ex = int(self.at["pollXB"][0] <= k)
        work[k:k] = self.lines(self.st_intra, "buffer_store_dword", "v5", 93, sclr)
        self.with_loads("pollXB", work, ldx)
        a(*[x for x in wt if x.startswith("ds_")])
        a("v_lshlrev_b32 v91, 2, v0")
        self.poll(ldx, [range(vX, vX + 4)], 7, "pollXB", self.lines(self.gemv4, vX, vWG, vD, 90), self.lines(self.gemv_zero, vD), extra=ex)
        a(*aux)
        self.gemv4_fin(6, vD)
        self.st_intra("buffer_store_dword", "v6", 92, sCst)
        self.stamp("Cpub", True)
        a("v_mov_b32 v5, 0", "s_bitcmp1_b32 s%d, 1" % sact, "s_cbranch_scc0 L_nod")
        ldc = self.ld4(vX, 91, sCld)
        st = self.lines(self.stats_fin, vX + 4, vD, False) + self.lines(self.sum4_init, vD + 2, vCG)
        self.stats_poll("pollC", aux, vX + 4, st, ldc)
        self.poll(ldc, [range(vX, vX + 4)], 7, "pollC", self.lines(self.sum4, vX, vD, vD + 2))
        a("v_permlane32_swap_b32 v%d, v%d" % (vD, vD + 1), "v_mul_f32 v%d, s%d, v%d" % (vD, sSC, vD),
          "v_mul_f32 v%d, v%d, v%d" % (vD, vD, vD + 1), "v_cvt_pk_bf16_f32 v%d, v%d, v%d" % (vD, vD, vD),
          "ds_write_b16 v89, v%d" % vD, "v_mov_b64 %s, 0" % q(vD + 4, 2), "s_waitcnt lgkmcnt(0)", "s_barrier", "ds_read_b128 %s, v88" % q(vX + 4), "s_waitcnt lgkmcnt(0)")
        self.smf(vD + 4, q(vX + 4), q(vWD, 8), 90)
        a("v_add_f32 v7, v%d, v%d" % (vD + 4, vD + 5))
        self.pack_pairs(5, 7)
        a("L_nod:")
        self.st_cross(5)
        self.stamp("Dpub", True)
        a("s_add_u32 s%d, s%d, 0x1000" % (stmp, sBld))
        self.layer1("L_last")
        a("s_waitcnt vmcnt(%d) lgkmcnt(0)" % (2 if self.near else 1))

        def prep_d():
            a = self.a
            a("v_mov_b32 v28, v94", "v_mov_b32 v30, v93", "s_add_u32 s%d, s%d, 0x3000" % (sBst, sBst),
              "s_add_u32 s%d, s%d, 0x3000" % (sB2, sB2), "s_add_u32 s%d, s%d, 0x4000" % (sBld, sBld))
            self.mk_ai()
            self.s_zero()
            self.part_off(29, 7, 12)
            self.q_addrs(31, 48, 7)
            self.lin(5, 7, (2, 2, 6), (5, 1, 8), (4, 1, 5), (0, 1, 4))
            self.sexpr(100, L_WQ, (sw, QSTR))
            a("v_add_u32 v5, s100, v5")
            self.lds_or_zero(5, 7, 2)
            self.ml_off(6, 7)
            self.sexpr(98, 1024, (sRow, 1), (sb, 256))
            self.sexpr(sWl, 1024, (sRow, 1), (sj, 4))
            self.sexpr(sWo, 0, (sg, 1 << 17), (sj, 2048), (sw, 512))
            a("s_add_u32 s%d, s%d, 0x%x" % (sclr, sXst, OFF_XD - OFF_XB), "s_add_u32 s99, s%d, 0x%x" % (sXld, OFF_XD - OFF_XB))
        self.prep_split("pollD", self.lines(prep_d), self.red_loads(8, stmp))
        a("s_waitcnt lgkmcnt(0)", "s_cmp_eq_u32 s%d, 0" % sw, "s_cbranch_scc0 %s" % ("L_fill3" if self.clr2 else "L_nored2"), "L_redd:")
        if self.clr2:
            self.cold += ["L_fill3:", "s_cmp_eq_u32 s%d, 1" % sw, "s_cbranch_scc0 L_nored2"] + self.lines(self.fill_cross, 16, 3) + ["s_branch L_nored2"]
        self.reduce_x("pollD", 8, 24, stmp)
        self.st_intra("buffer_store_dword", "v7", 28, sclr)
        a("s_cmp_eq_u32 s%d, 2" % slayer, "s_cbranch_scc1 L_out")
        a("v_lshlrev_b32 v%d, 16, v7" % vRES)
        self.stamp("XDpub")
        a("L_nored2:", "s_barrier")
        row = [self.ld(24, 28, 98, n=1)]
        ldx = [self.ld(52, vA16, 99)]
        work = self.lines(self.slice_sums, 26, 30, sWl)
        ex = int(self.at["pollXD"][0] <= len(work))
        work += self.lines(self.st_intra, "buffer_store_dword", "v26", 30, sWl) + ["v_lshlrev_b32 v28, 2, v0"]
        n = self.with_loads("pollXD", work, ldx)
        a("s_waitcnt vmcnt(%d)" % (n + 2))
        self.gemv_zero(8)
        self.poll(ldx, [range(52, 56)], 7, "pollXD", self.lines(self.gemv4, 52, vWQ, 8, vIX), self.lines(self.gemv_zero, 8), extra=ex)
        a(*row)
        self.gemv4_fin(10, 8)
        self.st_intra("buffer_store_dword", "v10", 29, sEst)
        self.stamp("Epub")
        lde = self.ld4(52, 28, sEld)
        st = self.lines(self.stats_fin, 24, 32, True) + self.lines(self.sum4_init, 34, vCQ)
        self.stats_poll("pollE", row, 24, st, lde)
        self.poll(lde, [range(52, 56)], 7, "pollE", self.lines(self.sum4, 52, 32, 34))
        self.stamp("Eget")
        rd = self.q_assemble(32, 31, 48, self.lines(self.next_region) + ["s_mov_b32 s%d, 2" % slayer]
                             + (["v_min_u32 v38, 3, v0", "v_lshlrev_b32 v38, 7, v38"] if self.tsplit & 2 else []))
        if self.tsplit & 2:
            a(self.ld(38, 38, sWo, n=1))
        for i in range(7):
            a("v_mov_b64 %s, 0" % q(vO + 4 * i, 2))
        if self.stamps is not True:
            self.stamp("qrdy")
        ldm = [self.ld(16, vA16, sMLld)]

        def att():
            a = self.a
            self.qk()
            a("s_waitcnt vmcnt(%d) ; guards=v[52:55] after=v%d" % (self.tsplit >> 1, vS + 20))
            a("v_subrev_u32 v23, 0x%x, v31" % (L_Q - L_WQ))
            a("v_mov_b64 %s, 0" % q(vO + 28, 2))
            self.softmax(23, 6)
            self.o_addr()
            for d in self.mlat:
                a(ldm[0] + " ; lat=%d tail=%d" % (d, self.mltail))
            for h in range(2):
                self.v_reads(5 + h, lambda i, e: q(8 * i + 4 * h + 2 * e, 2, "a"))
            self.v_reads(7)
            for n in range(4):
                self.p_read(2 * n, 5, n & 1)
                for i in range(8):
                    B = q(128 + 64 * n + 8 * i, 8) if n < 2 else q(8 * i, 8, "a") if n == 2 else "vp[%d]" % i
                    self.smf(vO + 4 * i, q(vQ + 4 * (n & 1)), B)
        ls = [x + " prio=%d" % self.p0 if x.endswith("mem=p0") else x for x in self.lines(att)]
        cut = len(ls) - self.mlcut
        out, t1 = schedule(ls[:cut], rd)
        if self.wb & 2:
            k = out.index("s_waitcnt vmcnt(0)") + 1
            out[k:k] = ["s_cmp_eq_u32 s%d, 0" % slead, "s_cbranch_scc0 L_nowb2", "buffer_wbl2 sc1", "L_nowb2:"]
        if self.stamps and self.stamps is not True:
            k = max(i for i, x in enumerate(out) if x.startswith("buffer_store")) + 1
            out[k:k] = self.lines(self.stamp, "mlpub")
            k = min(i for i, x in enumerate(out) if x.startswith("v_pk_fma"))
            out[k:k] = self.lines(self.stamp, "maxed")
        a(*out)
        a("s_waitcnt lgkmcnt(0)")
        if self.stamps is not True:
            self.stamp("pv2a")
        L = a.lab("ml2")
        a(L + "_w:")
        fin = ["v_sub_f32 v58, v16, v20", "v_sub_f32 v59, v18, v20", "v_exp_f32 v58, v58", "v_exp_f32 v59, v59",
               "v_mul_f32 v7, v58, v17", "v_fmac_f32 v7, v59, v19"] + self.lines(self.ml_finish, 16)[6:]
        self.check([range(16, 20)], 6, len(self.mlat))
        a(*fin[:3])
        a("s_cbranch_vccnz " + L)
        fin = fin[3:]
        if self.stamps is not True:
            self.stamp("mlget")
        t2 = self.sched([x + " ; prio=200" for x in fin] + ls[cut:] + self.lines(self.o_write, 8, 60, True))
        a("s_waitcnt vmcnt(0)")
        self.est += (t1, t2)
        self.stamp("pv2")
        a("s_branch L_tail", L + ":", *ldm)
        a(*self.spin_count())
        a("s_branch %s_w" % L)
        a("L_last:", "s_lshr_b32 s100, s%d, 2" % sj, "s_xor_b32 s100, s100, s%d" % sg, "s_or_b32 s100, s100, s%d" % sw,
          "s_cmp_eq_u32 s100, 0", "s_cbranch_scc0 %s" % ("L_wb" if self.wb & 1 else "L_fin"))
        if self.wb & 1:
            self.cold += ["L_wb:", "s_cmp_eq_u32 s%d, 0" % slead, "s_cbranch_scc0 L_fin", "buffer_wbl2 sc1", "s_branch L_fin"]
        self.x_off(28, 7, 10)
        self.mk_srd(sWF, sOUT, "4096")
        a("s_lshl_b32 s%d, s%d, 5" % (sclr, sj))
        self.idle(self.at["last"][0])
        a(*self.red_loads(8, stmp))
        a("s_branch L_redd")
        a("L_out:")
        if self.probe:
            self.stamp("out")
            k = self.stamp_names.index(self.probe)
            a("v_readlane_b32 s100, v4, %d" % k, "v_readlane_b32 s101, v4, 0", "s_sub_u32 s100, s100, s101", "s_lshl_b32 s100, s100, 2",
              "s_min_u32 s100, s100, 100000", "s_memrealtime s[0:1]", "s_waitcnt lgkmcnt(0)", "s_mov_b32 s101, s0",
              "L_probe:", "s_memrealtime s[0:1]", "s_waitcnt lgkmcnt(0)", "s_sub_u32 s0, s0, s101", "s_cmp_lt_u32 s0, s100",
              "s_cbranch_scc1 L_probe")
        a("L_fin:")
        if self.stamps and not self.probe:
            self.stamp("end")
            a("s_lshl_b32 s100, s2, 2", "s_add_u32 s100, s100, s%d" % sw, "s_lshl_b32 s100, s100, 7",
              "s_add_u32 s100, s100, 0x%x" % (STAMP_OFF - 2 * LS), "s_mov_b32 s%d, 0x1000000" % (sWS + 2),
              "v_writelane_b32 v4, s%d, 30" % sspin, "v_writelane_b32 v4, s%d, 31" % (sWF + 2),
              "v_lshlrev_b32 v9, 2, v0", "v_cmp_gt_u32 vcc, 32, v0", "s_and_saveexec_b64 s[98:99], vcc",
              "buffer_store_dword v4, v9, %s, s100 offen sc1" % srd(sWS))
            if self.dbgstamps:
                a("v_readlane_b32 s100, v4, 0", "s_not_b32 s100, s100", "v_writelane_b32 v4, s100, 15",
                  "v_cmp_gt_u32 vcc, 16, v0", "s_and_saveexec_b64 s[98:99], vcc",
                  "buffer_atomic_umax v4, v9, %s, 0 offen sc1" % srd(sDBG))
        a("L_end:", "s_endpgm")
        a(*self.cold)
        a("L_codeend:")

    def build(self):
        self.prologue()
        self.stream()
        self.chain()
        self.a.pad()
        if self.win:
            self.est += align(self.a, self.win, "L_novote")
        head = open("cdna_kernels/" + KNAME[:-7] + ".s.ref").read().split("; Override launch")[0]
        return (head + "; @launch grid=(256,1,1) block=(256,1,1) lds=163840\n"
                '.amdgcn_target "amdgcn-amd-amdhsa--gfx950"\n.text\n.globl %s\n.p2align 8\n.type %s,@function\n%s:\n' % (KNAME, KNAME, KNAME)
                + self.a.text() +
                '.section .rodata,"a"\n.p2align 6\n.amdhsa_kernel %s\n  .amdhsa_next_free_vgpr 512\n  .amdhsa_next_free_sgpr 102\n'
                "  .amdhsa_accum_offset 256\n  .amdhsa_group_segment_fixed_size 0\n  .amdhsa_kernarg_size 96\n"
                "  .amdhsa_user_sgpr_count 2\n  .amdhsa_user_sgpr_kernarg_segment_ptr 1\n  .amdhsa_system_sgpr_workgroup_id_x 1\n"
                ".end_amdhsa_kernel\n" % KNAME)


if __name__ == "__main__":
    out = sys.argv[1]
    kw = eval("dict(%s)" % (sys.argv[2] if len(sys.argv) > 2 else ""))
    g = Gen(**kw)
    s = g.build()
    open(out, "w").write(s)
    if len(sys.argv) > 3:
        print("estimated attention cycles", g.est)
    if g.stamps:
        open(out[:-2] + ".names", "w").write("\n".join(g.stamp_names))
```

```python
import re

REG = re.compile(r"^(-?)(?:abs\()?([vas])(?:(\d+)|\[(\d+):(\d+)\])\)?$")
TRANS = ("v_exp_f32", "v_log_f32", "v_rcp_f32", "v_rsq_f32", "v_sqrt_f32", "v_sin_f32", "v_cos_f32")


def regs(tok):
    tok = tok.strip()
    if tok == "vcc":
        return {("s", "vcc")}
    if tok == "exec":
        return {("s", "exec")}
    if tok == "m0":
        return {("s", "m0")}
    m = re.match(r"^vp\[(\d+)\]$", tok)
    if m:
        i = int(m.group(1))
        return {("v", b + 4 * i + r) for b in (64, 96) for r in range(4)}
    m = REG.match(tok)
    if not m:
        return set()
    k = m.group(2)
    if m.group(3) is not None:
        return {(k, int(m.group(3)))}
    return {(k, i) for i in range(int(m.group(4)), int(m.group(5)) + 1)}


class Ins:
    def __init__(self, text):
        self.text = text
        t = text.split(";")[0].strip()
        self.label = t[:-1] if t.endswith(":") else None
        self.op = "" if self.label or t.startswith(".") or not t else t.split()[0]
        self.directive = t.startswith(".")
        rest = t[len(self.op):].strip() if self.op else ""
        parts = [p.strip() for p in rest.split(",")] if rest else []
        mods = ""
        if "quad_perm" in rest or "op_sel" in rest:
            i = rest.index("quad_perm" if "quad_perm" in rest else "op_sel")
            mods = rest[i:]
            parts = [p.strip() for p in rest[:i].split(",")]
        ops = []
        for p in parts:
            w = p.split()
            if w:
                ops.append(w[0])
                mods += " " + " ".join(w[1:])
        self.ops, self.mods = ops, mods
        op = self.op
        self.mfma = op.startswith("v_mfma") or op.startswith("v_smfmac")
        self.valu = op.startswith("v_") and not self.mfma
        self.ds = op.startswith("ds_")
        self.vmem = op.startswith("buffer_") or op.startswith("global_")
        self.salu = op.startswith("s_")
        self.dpp = "_dpp" in op or any(k in mods for k in ("quad_perm", "row_", "wave_"))
        self.trans = op.replace("_e32", "").replace("_e64", "") in TRANS
        self.dot = op.startswith("v_dot")
        self.perm = op.startswith("v_permlane")
        self.branch = op.startswith("s_cbranch") or op == "s_branch"
        self.target = ops[0] if self.branch else None
        self.ends = op in ("s_branch", "s_endpgm", "s_setpc_b64")
        self.w, self.r = set(), set()
        self.srcc, self.ab, self.stdata = set(), set(), set()
        R = [regs(o) for o in ops]
        if self.mfma:
            self.w = R[0]
            self.ab = R[1] | R[2]
            if op.startswith("v_smfmac"):
                self.srcc = R[0]
                self.ab |= R[3]
            else:
                self.srcc = R[3]
            self.r = self.ab | self.srcc
            self.passes = 8 if "32x32" in op else 4
        elif self.valu:
            self.w = set(R[0])
            self.r = set().union(*R[1:]) if len(R) > 1 else set()
            if self.perm:
                self.w = R[0] | R[1]
                self.r = R[0] | R[1]
            if op.startswith(("v_fmac", "v_dot2c", "v_writelane")) or self.dpp:
                self.r |= R[0]
            if op.startswith("v_cndmask") and len(ops) == 3:
                self.r |= {("s", "vcc")}
        elif self.ds:
            if op.startswith("ds_read") or "bpermute" in op or "swizzle" in op:
                self.w = R[0]
                self.r = set().union(*R[1:])
            else:
                self.r = set().union(*R)
        elif self.vmem:
            lds = " lds" in (" " + mods) or "_lds_" in op
            self.ldsdma = lds
            if lds:
                self.r = set().union(*R) | {("s", "m0")}
            elif "load" in op:
                self.w = R[0]
                self.r = set().union(*R[1:])
            elif op.startswith("buffer_"):
                if R:
                    self.r = set().union(*R)
                    if "x4" in op or "x3" in op:
                        self.stdata = R[0]
                    if "atomic" in op and "sc0" in mods:
                        self.w = R[0]
            else:
                self.r = set().union(*R) if R else set()
        elif self.salu and ops and not self.branch and not op.startswith(("s_cmp", "s_waitcnt", "s_nop", "s_sleep", "s_setprio", "s_bitcmp")):
            self.w = set(R[0])
            self.r = set().union(*R[1:]) if len(R) > 1 else set()
            if "saveexec" in op:
                self.w |= {("s", "exec")}
        elif self.salu:
            self.r = set().union(*R) if R else set()

    def states(self):
        if self.label or self.directive or not self.op:
            return 0
        if self.op == "s_nop":
            return int(self.ops[0], 0) + 1
        return 1


def vec(s):
    return {x for x in s if x[0] in "va"}


def sca(s):
    return {x for x in s if x[0] == "s"}


def need(p, c):
    n = 0
    if p.valu:
        pw = vec(p.w)
        if c.mfma and pw & c.r:
            n = max(n, 3 if p.dot else 2)
        if c.valu and c.dpp and pw & c.r:
            n = max(n, 2)
        if c.perm and pw & c.r:
            n = max(n, 2)
        if c.op.startswith(("v_readlane", "v_readfirstlane")) and pw & c.r:
            n = max(n, 1)
        if p.trans and c.valu and not c.trans and pw & c.r:
            n = max(n, 1)
        if p.trans and (c.ds or c.vmem) and pw & c.r:
            n = max(n, 1)
        if p.dot and pw & (c.r | c.w):
            same_chain = c.op == p.op and len(c.ops) == 4 and not (pw & (regs(c.ops[1]) | regs(c.ops[2])))
            if not same_chain:
                n = max(n, 3)
        if "sdwa" in p.op and c.valu and pw & (c.r | c.w):
            n = max(n, 1)
        ps = sca(p.w)
        if ps & c.r:
            if c.vmem:
                n = max(n, 5)
            elif c.op.startswith(("v_readlane", "v_writelane")):
                n = max(n, 4)
            elif c.valu:
                n = max(n, 2)
            elif c.salu:
                n = max(n, 1)
    if p.mfma:
        t = {4: (6, 8, 3), 8: (10, 12, 7)}[p.passes]
        if c.mfma:
            if p.w & c.ab:
                n = max(n, t[1])
            if p.w & c.srcc and (p.w != c.srcc or p.passes != c.passes):
                n = max(n, t[0])
            if p.w & c.w and not (p.w & c.srcc):
                n = max(n, t[0])
        elif (c.valu or c.ds or c.vmem) and p.w & (c.r | c.w):
            n = max(n, t[1])
        if c.valu and p.srcc & c.w:
            n = max(n, t[2])
    if p.vmem and p.stdata and p.stdata & c.w:
        n = max(n, 2 if c.valu or c.mfma else 1)
    if p.ds and p.op.startswith("ds_write") and ("b128" in p.op or "b96" in p.op) and c.valu and vec(p.r) & c.w:
        n = max(n, 2)
    if p.salu and ("s", "m0") in p.w and ("s", "m0") in c.r and (c.vmem or c.ds or c.valu):
        n = max(n, 1)
    return n


def physical(text):
    def ph(r):
        if 64 <= r < 128:
            return 64 + 8 * (((r - 64) & 31) >> 2) + (4 if r >= 96 else 0) + (r & 3)
        return r

    def one(m):
        if m.group(1):
            return "v%d" % ph(int(m.group(1)))
        a, b = int(m.group(2)), int(m.group(3))
        assert ph(b) - ph(a) == b - a, text
        return "v[%d:%d]" % (ph(a), ph(b))
    text = re.sub(r"\bv(?:(\d+)\b|\[(\d+):(\d+)\])", one, text)
    return re.sub(r"\bvp\[(\d+)\]", lambda m: "v[%d:%d]" % (64 + 8 * int(m.group(1)), 71 + 8 * int(m.group(1))), text)


class Asm:
    def __init__(self):
        self.l = []
        self.vm = 0
        self.nlab = 0

    def __call__(self, *lines):
        for s in lines:
            for t in s.split("\n"):
                t = t.strip()
                if not t:
                    continue
                i = Ins(t)
                self.l.append(i)
                if i.vmem and i.op not in ("buffer_inv", "buffer_wbl2"):
                    self.vm += 1
        return self.vm

    def mark(self):
        return self.vm

    def wait_vm(self, token, lgkm=None):
        n = min(self.vm - token, 63)
        self("s_waitcnt vmcnt(%d)%s" % (n, "" if lgkm is None else " lgkmcnt(%d)" % lgkm))

    def uncounted(self, token):
        self.vm = token

    def lab(self, name):
        self.nlab += 1
        return "L_%s_%d" % (name, self.nlab)

    def pad(self):
        changed = True
        total = 0
        while changed:
            changed = False
            L = self.l
            src = {}
            for k, i in enumerate(L):
                if i.branch:
                    src.setdefault(i.target, []).append(k)
            for k, c in enumerate(L):
                if not c.op or c.op in ("s_nop", "s_waitcnt", "s_barrier"):
                    continue
                worst = 0
                stack = [(k - 1, 0, True)]
                seen = set()
                while stack:
                    j, dist, fall = stack.pop()
                    while j >= 0 and dist < 13:
                        p = L[j]
                        if (j, dist) in seen:
                            break
                        seen.add((j, dist))
                        if p.label:
                            for b in src.get(p.label, []):
                                stack.append((b, dist, False))
                        elif p.ends and fall:
                            break
                        elif p.op:
                            worst = max(worst, need(p, c) - dist)
                            dist += p.states()
                        fall = True
                        j -= 1
                if worst > 0:
                    L.insert(k, Ins("s_nop %d" % (worst - 1)))
                    total += worst
                    changed = True
                    break
        return total

    def text(self):
        def one(i):
            if i.label:
                return i.text
            return "    " + (physical(i.text.split(";")[0].rstrip()) if i.op else i.text)
        return "\n".join(map(one, self.l)) + "\n"


def schedule(lines, pre=(), slack=8):
    ins = [Ins(t) for t in lines]
    n = len(ins)
    for i in ins:
        m = re.search(r"guards=(\S+)", i.text)
        if m:
            i.w = i.w | regs(m.group(1))
            i.r = i.r | regs(m.group(1))
        m = re.search(r"after=(\S+)", i.text)
        if m:
            i.r = i.r | regs(m.group(1))
        if i.op.startswith("s_") and not i.op.startswith(("s_mov", "s_waitcnt", "s_nop")):
            i.w = i.w | {("s", "scc")}
            if i.op.startswith(("s_addc", "s_cselect", "s_subb")):
                i.r = i.r | {("s", "scc")}
        for o in i.ops[:1]:
            if o in ("vcc_lo", "vcc_hi"):
                i.w = i.w | {("s", "vcc")}
                i.r = i.r | {("s", "vcc")}
        m = re.search(r"prio=(-?\d+)", i.text)
        i.bias = int(m.group(1)) if m else 0
        m = re.search(r"lat=(\d+)", i.text)
        i.minlat = int(m.group(1)) if m else 0
        m = re.search(r"tail=(\d+)", i.text)
        i.tail = int(m.group(1)) if m else 0
        m = re.search(r"mem=(\w+)", i.text)
        i.tag = m.group(1) if m else ""
        i.cost = 8 if i.trans else 4
        i.vblock = 12 if i.op.startswith('v_smfmac') else 8
    pred = [[] for _ in range(n)]
    for b in range(n):
        B = ins[b]
        for a in range(b):
            A = ins[a]
            lat = None
            if A.w & B.r:
                lat = 80 if A.ds else 300 if A.vmem else A.cost
                if A.mfma:
                    lat = 16 if B.mfma and A.w == B.srcc and not (A.w & B.ab) else 40
            elif A.w & B.w:
                lat = 100 if A.ds else 40 if A.mfma else A.cost
            elif A.r & B.w:
                lat = 20 if A.mfma and B.ds else A.cost
            elif A.ds and B.ds and A.tag != B.tag:
                pass
            elif A.ds and B.ds and not A.w and B.w:
                lat = 8
            elif (A.ds and B.ds) or ((A.vmem or A.op == "s_waitcnt") and (B.vmem or B.op == "s_waitcnt")):
                lat = A.cost
            if lat is not None:
                if A.vmem and B.vmem:
                    lat = max(lat, B.minlat)
                pred[b].append((a, lat))
    succ = [[] for _ in range(n)]
    for b in range(n):
        for a, lat in pred[b]:
            succ[a].append((b, lat))
    mf = [k for k in range(n) if ins[k].mfma]
    nxt = dict(zip(mf, mf[1:]))
    crit = [0] * n
    for a in range(n - 1, -1, -1):
        crit[a] = max([lat + crit[b] for b, lat in succ[a]] + [ins[a].cost, ins[a].tail] + ([16 + crit[nxt[a]]] if a in nxt else []))
    done, out, t = {}, [], 0
    pipe = vfree = mfree = lds = 0
    left = set(range(n))

    def short(c):
        dist, worst = 0, 0
        for p in reversed(out[-13:]):
            worst = max(worst, need(ins[p], ins[c]) - dist)
            dist += 1
        return worst

    def pipe_op(i):
        return i.dot or i.op.startswith("v_pk_")

    while left:
        ready = [k for k in left if all(a in done for a, _ in pred[k]) and not (ins[k].mfma and any(m in left for m in mf if m < k))]

        def start(k):
            i = ins[k]
            s = max([t] + [done[a] + lat for a, lat in pred[k]])
            if i.mfma or pipe_op(i):
                s = max(s, pipe)
            if i.valu or i.mfma:
                s = max(s, vfree)
            if i.ds or i.vmem:
                s = max(s, mfree)
            if i.ds:
                s = max(s, lds)
            return max(s, t + 4 * short(k))
        st = {k: start(k) for k in ready}
        pr = {k: crit[k] + ins[k].bias for k in ready}
        m = [k for k in ready if ins[k].mfma]
        top = max(ready, key=lambda k: pr[k] - st[k])
        lead = m[0] if m and pr[m[0]] + 8 >= pr[top] else top
        fit = [k for k in ready if k != lead and st[k] + ins[k].cost <= st[lead]
               and not (ins[k].valu and (ins[lead].ds or ins[lead].vmem) and st[k] + ins[k].cost + 8 > st[lead])
               and not (ins[k].mfma and ins[lead].valu and st[k] + (16 if pipe_op(ins[lead]) else ins[k].vblock - slack) > st[lead])]
        k = min(fit, key=lambda k: (st[k], -pr[k])) if fit else lead
        i = ins[k]
        t = st[k]
        done[k] = t
        if i.mfma:
            pipe, vfree = t + 16, t + i.vblock
        elif i.valu:
            vfree, mfree = t + i.cost, t + i.cost + 8
        if i.ds:
            lds = t + (24 if "write2" in i.op else 52 if "write_b128" in i.op else 16 if "b128" in i.op else 8)
        t += i.cost
        out.append(k)
        left.discard(k)
    res, pend = [], [(set(Ins(p).w), 0) for p in pre]
    for k in out:
        i = ins[k]
        hit = [p for p, (w, _) in enumerate(pend) if w & (i.r | i.w)]
        if hit:
            old = [p for p, (_, ti) in enumerate(pend) if done[k] - ti >= 140]
            pend = pend[max(hit + old) + 1:]
            res.append("s_waitcnt lgkmcnt(%d)" % min(len(pend), 15))
        res.append(i.text.split(";")[0].rstrip())
        if i.ds:
            pend.append((set(i.w), done[k]))
    return res, t


def align(asm, window=32, start=None, nop_cost=1.0):
    import os
    import subprocess
    import tempfile
    llvm = "bin/"
    with tempfile.TemporaryDirectory() as d:
        open(d + "/a.s", "w").write('.amdgcn_target "amdgcn-amd-amdhsa--gfx950"\n.text\n' + asm.text())
        subprocess.run([llvm + "clang", "-x", "assembler", "-target", "amdgcn-amd-amdhsa", "-mcpu=gfx950", "-c", d + "/a.s", "-o", d + "/a.o"], check=True)
        out = subprocess.run([llvm + "llvm-objdump", "-d", "--mcpu=gfx950", d + "/a.o"], capture_output=True, text=True, check=True).stdout
    sizes = [4 * len(m.group(1).split()) for m in re.finditer(r"// [0-9A-F]{12}: ((?:[0-9A-F]{8} ?)+)", out)]
    ins = [i for i in asm.l if i.op]
    assert len(ins) == len(sizes), (len(ins), len(sizes))
    n = window // 4
    INF = 1e18
    cost = [0.0] + [INF] * (n - 1)
    back = []
    first = sum(1 for i in asm.l[:[x.label for x in asm.l].index(start)] if i.op) if start else 0
    for pos, (i, sz) in enumerate(zip(ins, sizes)):
        wide = sz == 4 and i.valu and not i.op.startswith(("v_readfirstlane", "v_permlane", "v_nop"))
        new, arg = [INF] * n, [None] * n
        for o in range(n):
            if cost[o] >= INF:
                continue
            for ch, pre, s_, extra in (("", 0, sz, 0.0), ("w", 0, 8, 0.01), ("n", 1, sz, nop_cost)):
                if (ch == "w" and not wide) or (ch and pos < first):
                    continue
                st = (o + pre) % n
                c = cost[o] + extra + (1.0 if st + s_ // 4 > n else 0.0)
                e = (st + s_ // 4) % n
                if c < new[e]:
                    new[e], arg[e] = c, (o, ch)
        cost = new
        back.append(arg)
    o = min(range(n), key=lambda k: cost[k])
    total = cost[o]
    choice = []
    for arg in reversed(back):
        o, ch = arg[o]
        choice.append(ch)
    choice.reverse()
    res, k = [], 0
    for i in asm.l:
        if i.op:
            if choice[k] == "n":
                res.append(Ins("s_nop 0"))
            if choice[k] == "w":
                i = Ins(i.text.replace(i.op, i.op + "_e64", 1))
            k += 1
        res.append(i)
    asm.l = res
    return total, choice.count("w"), choice.count("n")
```

```python
import struct
import sys
from asmlib import Asm, align, schedule

KNAME = "interleave_layers__gqa_block_cached__glu_gated_bilinear__decode_kernel"

LS = 1 << 20
OFF_ML, OFF_A, OFF_C, OFF_XB, OFF_ST, OFF_XD, OFF_E = 0, 4 << 10, 36 << 10, 52 << 10, 56 << 10, 60 << 10, 64 << 10
OFF_CSG, OFF_CSQ = 60 << 10, 68 << 10
WS_SIZE = 3 * LS
T1 = [(OFF_C, 11), (LS + OFF_ML, 1)]
OFF_XW = 5 << 20
STAMP_OFF = 8 << 20
OOB = 0x7FFF0000

RING = 24576
L_WQ = 4 * RING
L_WO = L_WQ + 16384
L_WG = L_WO + 16384
L_WD = L_WG + 16384
L_SCR = L_WD + 8192
L_H = L_SCR + 1024
L_Q, QSTR = L_SCR + 1536, 2112
L_OOB = 0x30000
assert L_SCR + 8192 == 163840

sK, sV, sWS, sWF, sWL, sOUT, sDBG, sXI, sT = 28, 32, 36, 40, 44, 48, 52, 56, 96
sw, sg, sj, sb, ss, su, sring, srot, stmp, slayer = range(60, 70)
(sMLst, sMLld, sAst, sAld, sBst, sBld, sXst, sXld, sCst, sCld, sCS, sS1, sSC, sRow, sEst, sEld) = range(70, 86)
sWo, sWl = 86, 87
sM1 = 88
sspin, scmp = 94, 95
sclr, slead, sact = 3, 14, 15
sLO, sHI = 6, 7
sXW, sB2, svote = 24, 23, 22
sWo2, sWl2 = 8, 9
SPIN_LIMIT = 1 << 18

vL, vA16, vTRV, vRES = 0, 1, 2, 3
vQ, vO, vIX, vAI, vS = 8, 24, 56, 56, 64
vWG, vWD, vWQ, vCG, vCQ, vSEL, vX, vD = 8, 24, 32, 48, 50, 52, 56, 72
vKS, vKR = 240, 244
ORDER = [0, 1, 2, 3, 5, 6, 7, 4]
SLOT = {5: 2, 6: 4, 7: 0}
SCALE = 128 ** -0.5 * 1.4426950408889634
ONES = "0x3f803f80"


def f32(x):
    return "0x%08x" % struct.unpack("<I", struct.pack("<f", x))[0]


def q(r, n=4, k="v"):
    return "%s[%d:%d]" % (k, r, r + n - 1)


def srd(r):
    return "s[%d:%d]" % (r, r + 3)


ABOUT = """;
"""


class Gen:
    def __init__(self, depth=6, d0={5: 8, 6: 8}, burst=4, lag=2, tq=(2, 2, 3, 3), tg=(6, 6, 7, 7), owait=(6, 6, 6, 6),
                 sync=(4, 6, 9, 11, 13, 16, 18), clr1=4, ipf=24, tclr=25, tml=27,
                 dbl="pollXB,pollC,pollXD,pollE", at={}, kx=1, nst_=2, oahead=4, mlat=(208, 84), mltail=500, mlcut=1, p0=400,
                 win=32, near=1, force_slow=False, stamps=False, cyc=False, probe=None, jitter=None):
        self.__dict__.update(locals())
        self.a = Asm()
        self.nst = 0
        self.cold = []
        self.nslow = 0
        self.est = ()
        self.at = dict(pollA=(10, 34), pollB=(88,), pollXB=(8, 17), pollC=(0, 11), pollD=(84,), pollXD=(2, 10), pollE=(0, 11), last=(128,))
        self.at.update(at)
        self.stamp_names = []

    def stamp(self, name, per_layer=False):
        if self.jitter:
            self.nslow += 1
            L = "L_jit%d" % self.nslow
            self.a("s_memtime s[0:1]", "s_waitcnt lgkmcnt(0)", "s_mul_i32 s0, s0, 0x9e3779b1", "s_lshr_b32 s0, s0, %d" % (32 - self.jitter[0]),
                   "s_cmp_eq_u32 s0, 0", "s_cbranch_scc0 " + L, *["s_sleep %d" % self.jitter[1]] * self.jitter[2], L + ":")
            return
        if not self.stamps or (self.stamps is not True and name not in self.stamps):
            return
        a = self.a
        k = self.nst
        self.nst += 2 if per_layer else 1
        assert self.nst <= 28
        a("%s s[0:1]" % ("s_memtime" if self.cyc else "s_memrealtime"), "s_waitcnt lgkmcnt(0)")
        if per_layer:
            self.stamp_names += [name + "/1", name + "/2"]
            a("s_add_u32 m0, s%d, %d" % (slayer, k - 1), "v_writelane_b32 v4, s0, m0")
        else:
            self.stamp_names.append(name)
            a("v_writelane_b32 v4, s0, %d" % k)

    def mk_srd(self, d, p, size):
        self.a("s_mov_b32 s%d, s%d" % (d, p), "s_mov_b32 s%d, s%d" % (d + 1, p + 1),
               "s_mov_b32 s%d, %s" % (d + 2, size), "s_mov_b32 s%d, 0x20000" % (d + 3))

    def lin(self, d, t, *terms):
        first = True
        for sh, bits, sc in terms:
            r = d if first else t
            if sh + bits >= 6:
                src = vL
                if sh:
                    self.a("v_lshrrev_b32 v%d, %d, v0" % (r, sh)); src = r
            elif sh == 0:
                self.a("v_and_b32 v%d, %d, v0" % (r, (1 << bits) - 1)); src = r
            else:
                self.a("v_bfe_u32 v%d, v0, %d, %d" % (r, sh, bits)); src = r
            if first:
                if sc or src != d:
                    self.a("v_lshlrev_b32 v%d, %d, v%d" % (d, sc, src))
            else:
                self.a("v_lshl_add_u32 v%d, v%d, %d, v%d" % (d, src, sc, d))
            first = False

    def sexpr(self, d, const, *terms):
        a = self.a
        first = True
        for reg, mult in terms:
            r = d if first else 101
            if mult & (mult - 1) == 0:
                a("s_lshl_b32 s%d, s%d, %d" % (r, reg, mult.bit_length() - 1))
            else:
                a("s_mul_i32 s%d, s%d, %d" % (r, reg, mult))
            if not first:
                a("s_add_u32 s%d, s%d, s101" % (d, d))
            first = False
        if const:
            a("s_add_u32 s%d, s%d, 0x%x" % (d, d, const))

    def oob_unless(self, v, t, cond):
        self.a(cond, "v_mov_b32 v%d, 0x%x" % (t, OOB), "v_cndmask_b32 v%d, v%d, v%d, vcc" % (v, t, v))

    def even_only(self, v, t, cmp="0"):
        self.a("v_and_b32 v%d, 1, v0" % t)
        self.oob_unless(v, t, "v_cmp_eq_u32 vcc, %s, v%d" % (cmp, t))

    def st_intra(self, op, data, voff, soff, both=False):
        a = self.a
        slow = "%s %s, v%d, %s, s%d offen sc1" % (op, data, voff, srd(sWL), soff)
        a("%s %s, v%d, %s, s%d offen" % (op, data, voff, srd(sWF), soff))
        if both:
            tk = a.mark()
            a(slow)
            a.uncounted(tk)
            return
        self.nslow += 1
        L = "L_slow%d" % self.nslow
        a("s_cmp_eq_u32 s%d, 0" % (sWF + 2), "s_cbranch_scc1 " + L, L + "_b:")
        self.cold += [L + ":", slow, "s_branch %s_b" % L]

    def ld(self, r, voff, soff, off=0, n=4, rs=sWS):
        return "buffer_load_dword%s %s, v%d, %s, s%d offen offset:%d sc1" % (
            "x%d" % n if n > 1 else "", q(r, n) if n > 1 else "v%d" % r, voff, srd(rs), soff, off)

    def ld4(self, r, voff, soff):
        return [self.ld(r + k, voff, soff, 256 * k, n=1) for k in range(4)]

    def spin_count(self):
        return ["s_add_u32 s%d, s%d, 1" % (sspin, sspin), "s_cmp_lt_u32 s%d, 0x%x" % (sspin, SPIN_LIMIT), "s_cselect_b32 s%d, -2, -1" % scmp]

    def rounds(self, name):
        return 1 + self.dbl.split(",").count(name)

    def poll(self, loads, regs, acc, name, work=(), reinit=(), spec=None, again=None, extra=0):
        a = self.a
        L = "L_" + name
        k, n = self.rounds(name), len(loads)
        if again:
            self.check(regs, acc, len(regs), spec)
            a("s_cbranch_vccz %s_d" % L, L + ":", *loads)
            a(*self.spin_count())
            self.check(regs, acc, again * n + len(regs), spec)
            a("s_cbranch_vccnz " + L, "s_nop 2", L + "_d:")
        else:
            a("s_branch %s_w" % L, L + ":", *loads)
            a(*self.spin_count())
            a(*reinit)
            a(L + "_w:")
            self.check(regs, acc, (k - 1) * n + len(regs) + extra, spec)
            a(*work)
            a("s_cbranch_vccnz " + L, L + "_d:")
        if self.stamps is not True:
            self.stamp(name, True)

    def stats_poll(self, name, aux, r, st, loads):
        a = self.a
        self.check_or_poll(aux, [[r]], 7, name + "s", a.mark() - 1, work=st[:self.nst_])
        self.with_loads(name, st[self.nst_:], loads)

    def idle(self, n):
        if n >= 16:
            self.a("s_sleep %d" % (n // 16))
        if n > 0 and n % 16:
            self.a("s_nop %d" % (n % 16 - 1))

    def with_loads(self, name, work, loads):
        pos = 0
        for d in self.at[name][:self.rounds(name)]:
            self.a(*work[pos:pos + d])
            self.idle(pos + d - max(pos, len(work)))
            self.a(*loads)
            pos += d
        self.a(*work[pos:])
        return self.rounds(name)

    def check(self, regs, acc, n, spec=None):
        a = self.a
        have = None
        for i, part in enumerate(regs):
            if n:
                a("s_waitcnt vmcnt(%d)" % (n - 1 - i))
            if spec and n == len(regs):
                spec(i)
            pool = ([have] if have is not None else []) + list(part)
            while len(pool) > 1:
                m = min(3, len(pool))
                a(("v_max3_u32 v%d, v%d, v%d, v%d" if m == 3 else "v_max_u32 v%d, v%d, v%d") % (acc, *pool[:m]))
                pool = [acc] + pool[m:]
            have = pool[0]
            if i == len(regs) - 1:
                a("v_cmp_lt_u32 vcc, s%d, v%d" % (scmp, have))
            if spec and n != len(regs):
                spec(i)

    def check_or_poll(self, loads, regs, acc, name, wait, pre=(), work=()):
        a = self.a
        tk = a.mark()
        a("s_branch L_%s_c" % name, "L_%s_r:" % name, *pre)
        a(*loads)
        a(*self.spin_count())
        a("s_waitcnt vmcnt(0)", "L_%s_c:" % name)
        a.uncounted(tk)
        a.wait_vm(wait)
        self.check(regs, acc, 0)
        a(*work)
        a("s_cbranch_vccnz L_%s_r" % name)

    def mfma(self, d, A, B, c):
        self.a("v_mfma_f32_16x16x32_bf16 %s, %s, %s, %s" % (q(d), A, B, q(d) if c else "0"))

    def smf(self, d, A, B, ix=None):
        self.a("v_smfmac_f32_16x16x64_bf16 %s, %s, %s, v%d" % (q(d), A, B, ix or vIX))

    def mk_ix(self, v):
        self.a("v_and_b32 v%d, 1, v0" % v, "v_mul_u32_u24 v%d, 0xaaaa, v%d" % (v, v), "v_add_u32 v%d, 0x4444, v%d" % (v, v))

    def dpp(self, op, d, s0, s1, ctl, rm="0xf"):
        self.a("%s_dpp v%d, v%d, v%d %s row_mask:%s bank_mask:0xf" % (op, d, s0, s1, ctl, rm))

    def pack_pairs(self, d, v):
        self.a("v_mov_b32_dpp v%d, v%d quad_perm:[1,1,3,3] row_mask:0xf bank_mask:0xf" % (d, v),
               "v_cvt_pk_bf16_f32 v%d, v%d, v%d" % (d, v, d))

    def tile_issue(self, T, between=None):
        a = self.a
        if T:
            a("s_add_u32 s%d, s%d, 0x20000" % (srot, srot), "s_and_b32 s%d, s%d, 0x1e0000" % (srot, srot))
        a("s_or_b32 s%d, s%d, s%d" % (stmp, srot, su), "s_add_u32 m0, s%d, %d" % (sring, (T % 6) * 4096))
        if T >= 6:
            a("s_waitcnt lgkmcnt(%d)" % (0 if between else 1))
        for jj in range(4):
            self.throttle(T, 4 * T + jj >= 128 - self.burst)
            va = vKS + jj if T < 16 else 5 + (jj & 1)
            a("buffer_load_dwordx4 v%d, %s, s%d offen offset:%d nt lds" % (va, srd(sK if T < 16 else sV), stmp, jj * 1024))
            self.ltok.append(a.mark())
            self.tok[T] = a.mark()
            if between:
                between(jj)
        if 16 <= T < 31:
            a("v_xor_b32 v5, 64, v5", "v_xor_b32 v6, 64, v6")

    def throttle(self, T, burst):
        d = self.d0.get(T, self.depth)
        if T > 1 and not burst and d < len(self.ltok):
            self.a.wait_vm(self.ltok[-d])

    def vreg(self, p, i):
        return 128 + 64 * (p >> 1) + 8 * i + 4 * (p & 1) if p < 4 else (96 if p == 4 else vS) + 4 * i

    def v_reads(self, p, dst=None):
        slot = (16 + 2 * p) % 6
        for i in range(8):
            for h in range(2):
                d = dst(i, h) if dst else q(self.vreg(p, i) + 2 * h, 2)
                self.a("ds_read_b64_tr_b16 %s, v%d offset:%d ; mem=v" % (d, vAI + i if i else vTRV, slot * 4096 + h * 512))

    def tile_consume(self, T):
        a = self.a
        if T < 16:
            a.wait_vm(self.tok[T])
            for st in range(4):
                a("ds_read_b128 %s, v%d offset:%d" % (q(16 * T + 4 * st, 4, "a"), vKR + st, (T % 6) * 4096))
        elif T & 1:
            a.wait_vm(self.tok[T])
            self.v_reads((T - 16) >> 1)

    def mk_ai(self):
        for i in range(1, 8):
            self.a("v_xor_b32 v%d, %d, v%d" % (vAI + i, i << 5, vTRV))
        self.mk_ix(vIX)

    def weight_load(self, kind, k, T, va=52):
        a = self.a
        t = va + 1
        pitch = {"q": 8192, "g": 3584, "d": 1024, "o": 1024}[kind]
        if k == 0:
            if kind == "o":
                self.lin(va, t, (5, 1, 14), (3, 2, 10), (0, 3, 4))
                self.mk_srd(sT, 12, "0x400000")
                self.sexpr(sWo, 0, (sg, 512 * 1024), (sb, 128 * 1024), (sw, 4096), (ss, 128))
                self.sexpr(sWl, L_WO, (sw, 4096))
            else:
                a("v_lshrrev_b32 v%d, 3, v0" % va, "v_mul_u32_u24 v%d, %d, v%d" % (va, pitch, va), "v_and_b32 v%d, 7, v0" % t,
                  "v_lshl_add_u32 v%d, v%d, 4, v%d" % (va, t, va))
            a("v_and_b32 v%d, 32, v0" % t, "v_xor_b32 v%d, v%d, v%d" % (va, va, t), "v_xor_b32 v%d, 64, v%d" % (t, va))
            if kind == "q":
                self.mk_srd(sT, 10, "0x400000")
                self.sexpr(sWo, 0, (sb, 128 * pitch), (sw, 32 * pitch), (sg, 1024), (ss, 128))
                self.sexpr(sWl, L_WQ, (sw, 4096))
            if kind in "gd":
                a("s_lshr_b32 s100, s%d, 1" % sg, "s_mul_i32 s100, s100, 7", "s_and_b32 s%d, s%d, 1" % (stmp, sg),
                  "s_lshl_b32 s%d, s%d, 2" % (stmp, stmp), "s_add_u32 s100, s100, s%d" % stmp)
            if kind == "g":
                a("s_and_b32 s%d, s%d, 3" % (stmp, ss), "s_add_u32 s100, s100, s%d" % stmp)
                self.sexpr(sWo, 0, (sb, 128 * pitch), (sw, 32 * pitch), (100, 128))
                self.sexpr(sWl, L_WG, (sw, 4096))
                a("s_bitcmp1_b32 s%d, 0" % sact, "s_cselect_b32 s100, 0x%x, 0" % (512 * pitch))
                self.mk_srd(sT, 16, "s100")
                a("s_cmp_ge_u32 s%d, 4" % ss, "s_cselect_b32 s%d, s18, s16" % sT, "s_cselect_b32 s%d, s19, s17" % (sT + 1))
            if kind == "d":
                a("s_add_u32 s100, s100, s%d" % sb)
                self.sexpr(sWo2, 0, (100, 64 * pitch), (sw, 16 * pitch), (ss, 128))
                self.sexpr(sWl2, L_WD, (sw, 2048))
                a("s_bitcmp1_b32 s%d, 1" % sact, "s_cselect_b32 s100, 0x%x, 0" % (1792 * pitch))
                self.mk_srd(sXI, 20, "s100")
            if T is None:
                return
        self.weight_issue(kind, k, T, va)

    def weight_issue(self, kind, k, T, va):
        a = self.a
        pitch = {"q": 8192, "g": 3584, "d": 1024, "o": 1024}[kind]
        so, sl, rs = (sWo2, sWl2, sXI) if kind == "d" else (sWo, sWl, sT)
        a("s_add_u32 s%d, s%d, 0x%x" % (stmp, so, (32 if kind == "o" else 8) * pitch * k), "s_add_u32 m0, s%d, 0x%x" % (sl, 1024 * k))
        if T < 31:
            self.throttle(T, False)
        a("buffer_load_dwordx4 v%d, %s, s%d offen nt lds" % (va + (k & 1), srd(rs), stmp))
        self.ltok.append(a.mark())
        self.wtok[kind] = a.mark()

    def lines(self, fn, *args):
        keep, self.a = self.a, Asm()
        fn(*args)
        out, self.a = [i.text for i in self.a.l], keep
        return out

    def sched(self, lines, pre=()):
        out, t = schedule(lines, pre)
        self.a(*out)
        return t

    def s_zero(self):
        for r in range(vS, vS + 32, 2):
            self.a("v_mov_b64 %s, 0" % q(r, 2))

    def qk(self):
        a = self.a
        for k, p in enumerate(ORDER):
            d = vS + 4 * k
            for sg_ in range(2):
                for hf in range(2):
                    self.smf(d, q(vQ + 8 * sg_ + 4 * hf), q(16 * (2 * p + sg_) + 8 * hf, 8, "a"))
            a("v_add_f32 v%d, v%d, v%d" % (d, d, d + 1), "v_add_f32 v%d, v%d, v%d" % (d + 1, d + 2, d + 3))
            a("v_max3_f32 v7, v7, v%d, v%d" % (d, d + 1) if k else "v_max_f32 v7, v%d, v%d" % (d, d + 1))

    def ml_off(self, v, t):
        self.a("v_mov_b32 v%d, v%d" % (v, vA16), "v_and_b32 v%d, 15, v0" % t)
        self.oob_unless(v, t, "v_cmp_eq_u32 vcc, 0, v%d" % t)

    def softmax(self, vw, voff):
        a = self.a
        for k in (1, 2, 4, 8):
            self.dpp("v_max_f32", 7, 7, 7, "row_ror:%d" % k)
        a("v_mul_f32 v20, s%d, v7" % sSC, "s_mov_b32 s100, %s" % ONES)
        for k in range(8):
            r = q(vS + 4 * k, 2)
            a("v_pk_fma_f32 %s, %s, s[%d:%d], v[20:21] op_sel_hi:[1,0,0] neg_lo:[0,0,1] neg_hi:[0,0,1]" % (r, r, sSC, sSC + 1))
        for k in range(8):
            r = vS + 4 * k
            a("v_exp_f32 v%d, v%d" % (r, r), "v_exp_f32 v%d, v%d" % (r + 1, r + 1), "v_cvt_pk_bf16_f32 v%d, v%d, v%d" % (r + 2, r, r + 1))
            if k & 1:
                a("ds_write2st64_b32 v%d, v%d, v%d offset0:%d offset1:%d ; mem=p%d" % (vw, r - 2, r + 2, k - 1, k, k - 1))
        for k in range(8):
            a("v_dot2_f32_bf16 v21, v%d, s100, %s" % (vS + 4 * k + 2, "v21" if k else "0"))
        for k in (1, 2, 4, 8):
            self.dpp("v_add_f32", 21, 21, 21, "row_ror:%d" % k)
        self.st_intra("buffer_store_dwordx2", "v[20:21]", voff, sMLst, both=True)

    def ml_finish(self, r):
        a = self.a
        a("v_sub_f32 v%d, v%d, v20" % (r, r), "v_sub_f32 v%d, v%d, v20" % (r + 2, r + 2),
          "v_exp_f32 v%d, v%d" % (r, r), "v_exp_f32 v%d, v%d" % (r + 2, r + 2),
          "v_mul_f32 v7, v%d, v%d" % (r, r + 1), "v_fmac_f32 v7, v%d, v%d" % (r + 2, r + 3))
        for k in (1, 2, 4, 8):
            self.dpp("v_add_f32", 7, 7, 7, "row_ror:%d" % k)
        a("v_rcp_f32 v7, v7")

    def lds_or_zero(self, v, t, mask, val=0):
        self.a("v_and_b32 v%d, %d, v0" % (t, mask), "v_cmp_eq_u32 vcc, %d, v%d" % (val, t), "v_mov_b32 v%d, 0x%x" % (t, L_OOB),
               "v_cndmask_b32 v%d, v%d, v%d, vcc" % (v, t, v))

    def p_read(self, k, va, buf):
        self.a("ds_read_b128 %s, v%d offset:%d ; mem=p%d" % (q(vQ + 4 * buf), va, k * 256, k & ~1))

    def pv_dense(self, p, buf, lgkm=None):
        for i in range(8):
            if lgkm is not None:
                self.a("s_waitcnt lgkmcnt(%d)" % lgkm(i))
            self.mfma(vO + 4 * i, q(vQ + 4 * buf), q(self.vreg(p, i)), p > 0)

    def o_addr(self):
        self.sexpr(4, L_SCR, (sw, 512))
        self.a("v_and_b32 v22, 48, v0", "v_mul_u32_u24 v22, 112, v22", "v_add3_u32 v22, v22, v%d, s4" % vA16)

    def o_write(self, t0, t1, sparse):
        a = self.a
        for h, t in enumerate((t0, t1)):
            for i in range(4):
                o = vO + 16 * h + 4 * i
                a("v_add_f32 v%d, v%d, v%d" % (t + i, o, o + 1) if sparse else "v_mul_f32 v%d, v7, v%d" % (t + i, o))
            if sparse:
                for i in (0, 2):
                    a("v_pk_mul_f32 %s, %s, v[6:7] op_sel:[0,1] op_sel_hi:[1,1]" % (q(t + i, 2), q(t + i, 2)))
            a("ds_write_b128 v22, %s offset:%d" % (q(t), 256 * h))

    def w_tiles(self, kinds, va, t):
        a = self.a
        last = None
        for kind, dst in kinds:
            qs = 11 if kind == "d" else 12
            if qs != last:
                self.lin(va, t, (4, 1, 5), (3, 1, 6))
                a("s_lshl_b32 s100, s%d, 5" % sw, "v_xor_b32 v%d, s100, v%d" % (va, va), "v_add_u32 v%d, 0x%x, v%d" % (va, L_WQ, va))
                for sh, bits, sc in ((5, 1, qs), (3, 1, 10), (4, 1, 9), (2, 1, 7), (0, 2, 3)):
                    a("v_bfe_u32 v%d, v0, %d, %d" % (t, sh, bits), "v_lshl_add_u32 v%d, v%d, %d, v%d" % (va, t, sc, va))
                last = qs
            base = {"q": L_WQ, "g": L_WG, "d": L_WD}[kind] - L_WQ
            for kb in range(2 if kind == "d" else 4):
                for h in range(2):
                    a("ds_read_b64_tr_b16 %s, v%d offset:%d" % (q(dst + 4 * kb + 2 * h, 2), va,
                                                                  base + (kb & 1) * (2 << qs) + (kb >> 1) * 2048 + h * 256))

    def gemv_zero(self, d):
        self.a("v_mov_b64 %s, 0" % q(d, 2), "v_mov_b64 %s, 0" % q(d + 6, 2))

    def gemv4(self, x, W, d, ix):
        for k in range(2):
            self.smf(d + 4 * k, q(x), q(W + 8 * k, 8), ix)

    def gemv4_fin(self, out, d):
        self.a("v_add_f32 v%d, v%d, v%d" % (d, d, d + 1), "v_add_f32 v%d, v%d, v%d" % (d + 6, d + 6, d + 7),
               "v_add_f32 v%d, v%d, v%d" % (d, d, d + 6))
        self.pack_pairs(out, d)

    def colsum_pub(self, W, ones, d, va, t, off, *terms):
        a = self.a
        for r in range(4):
            a("v_mov_b32 v%d, %s" % (ones + r, ONES))
        self.lin(va, t, (0, 1, 10), (1, 3, 4))
        self.oob_unless(va, t, "v_cmp_gt_u32 vcc, 16, v0")
        self.sexpr(100, off, (sCS, 1), (sb, 4), (sw, 128), *terms)
        a("s_waitcnt lgkmcnt(0)")
        for kb in range(4):
            self.mfma(d, q(ones), q(W + 4 * kb), kb > 0)
        self.st_intra("buffer_store_dword", "v%d" % d, va, 100)

    def colsum_ld(self, r, off, sel):
        self.sexpr(100, off, (sCS, 1), (sel, 2048))
        self.a(self.ld(r, vA16, 100, 0), self.ld(r + 4, vA16, 100, 1024))

    def colsum_fin(self, r, c):
        for k in range(2):
            b = r + 4 * k
            self.a("v_add_f32 v%d, v%d, v%d" % (b, b, b + 1), "v_add_f32 v%d, v%d, v%d" % (b + 2, b + 2, b + 3),
                   "v_add_f32 v%d, v%d, v%d" % (b, b, b + 2), "v_mul_f32 v%d, %s, v%d" % (c + k, f32(-1.0 / 512), b))

    def stats(self, x, t, att):
        a = self.a
        s1, s2 = t, t + 1
        a("s_mov_b32 s100, %s" % ONES)
        for k in range(4):
            a("v_dot2_f32_bf16 v%d, v%d, s100, %s" % (s1, x + k, "v%d" % s1 if k else "0"),
              "v_dot2_f32_bf16 v%d, v%d, v%d, %s" % (s2, x + k, x + k, "v%d" % s2 if k else "0"))
        a("v_permlane32_swap_b32 v%d, v%d" % (s1, s2), "v_add_f32 v%d, v%d, v%d" % (s1, s1, s2))
        self.stats_fin(s1, t, att)

    def slice_sums(self, t, voff, soff):
        a = self.a
        a("v_mul_f32 v%d, v%d, v%d" % (t + 1, vRES, vRES))
        self.dpp("v_add_f32", t, vRES, vRES, "row_ror:8")
        self.dpp("v_add_f32", t + 1, t + 1, t + 1, "row_ror:8")
        a("v_cndmask_b32 v%d, v%d, v%d, s[%d:%d]" % (t, t, t + 1, sM1, sM1 + 1))
        for ctl in ("quad_perm:[1,0,3,2]", "quad_perm:[2,3,0,1]", "row_half_mirror"):
            self.dpp("v_add_f32", t, t, t, ctl)

    def st_off(self, v, t):
        self.lin(v, t, (5, 1, 8), (4, 1, 9), (3, 1, 7))
        self.a("v_and_b32 v%d, 7, v0" % t, "v_add_u32 v%d, s%d, v%d" % (t, sw, t))
        self.oob_unless(v, t, "v_cmp_eq_u32 vcc, 0, v%d" % t)

    def stats_fin(self, x, t, att):
        a = self.a
        s1, s2 = t, t + 1
        for k in (1, 2, 4, 8):
            self.dpp("v_add_f32", s1, x if k == 1 else s1, x if k == 1 else s1, "row_ror:%d" % k)
        self.dpp("v_add_f32", s1, s1, s1, "row_bcast:15", "0xa")
        a("v_readlane_b32 s%d, v%d, 31" % (sS1, s1), "v_mul_f32 v%d, %s, v%d" % (s1, f32(1.0 / 512), s1),
          "v_mov_b32 v%d, s%d" % (s2, sS1), "v_mul_f32 v%d, %s, v%d" % (s2, f32(1.0 / 512), s2),
          "v_fma_f32 v%d, -v%d, v%d, v%d" % (s1, s2, s2, s1), "v_max_f32 v%d, 0, v%d" % (s1, s1),
          "v_add_f32 v%d, %s, v%d" % (s1, f32(1e-5), s1))
        if att:
            a("v_rsq_f32 v%d, v%d" % (s1, s1), "v_mul_f32 v%d, %s, v%d" % (s1, f32(SCALE), s1))
        else:
            a("v_rcp_f32 v%d, v%d" % (s1, s1), "s_nop 0")
        a("v_readlane_b32 s%d, v%d, 63" % (sSC, s1))

    def sum4_init(self, acc, c):
        self.a("v_mul_f32 v%d, s%d, v%d" % (acc, sS1, c), "v_mul_f32 v%d, s%d, v%d" % (acc + 1, sS1, c + 1))

    def sum4(self, x, acc, init):
        for k in range(4):
            c = acc if k else init
            self.a("v_dot2_f32_bf16 v%d, v%d, s%d, v%d" % (acc, x + k, sLO, c),
                   "v_dot2_f32_bf16 v%d, v%d, s%d, v%d" % (acc + 1, x + k, sHI, c + 1))

    def q_addrs(self, vw, vr, t):
        a = self.a
        self.lin(vw, t, (3, 3, 5), (0, 1, 4), (1, 2, 2))
        self.sexpr(100, L_Q, (sw, QSTR))
        a("v_add_u32 v%d, s100, v%d" % (vw, vw))
        self.lin(vr, t, (4, 2, 5), (0, 1, 4))
        a("v_bfe_u32 v%d, v0, 2, 2" % t, "v_mul_u32_u24 v%d, %d, v%d" % (t, QSTR, t), "v_add_u32 v%d, v%d, v%d" % (vr, vr, t),
          "v_add_u32 v%d, 0x%x, v%d" % (vr, L_Q, vr), "v_mov_b32 v%d, v%d" % (vr + 1, vr))
        self.lds_or_zero(vr, t, 2, 0)
        self.lds_or_zero(vr + 1, t, 2, 2)

    def q_assemble(self, acc, vw, vr, fill=()):
        a = self.a
        a("v_cvt_pk_bf16_f32 v%d, v%d, v%d" % (acc, acc, acc + 1), "ds_write_b32 v%d, v%d" % (vw, acc), *fill)
        a("s_waitcnt lgkmcnt(0)", "s_barrier")
        rd = ["ds_read_b128 %s, v%d offset:%d" % (q(vQ + 4 * st), vr + (st >> 1), (st & 1) * 128) for st in range(4)]
        a(*rd)
        return rd

    def late_loads(self, name):
        self.layer1(name)
        for k in range(2):
            self.weight_issue("d", k, 32, 62)
        self.touch(59)
        self.a(name + ":")

    def next_region(self):
        for r in (sWS, sWF, sWL):
            self.a("s_add_u32 s%d, s%d, 0x%x" % (r, r, LS), "s_addc_u32 s%d, s%d, 0" % (r + 1, r + 1))
        self.a("s_sub_u32 s%d, s%d, 0x%x" % (sCS, sCS, LS))

    def leader_fill(self):
        a = self.a
        a("v_mov_b32 v8, -1", "v_mov_b32 v9, -1", "v_mov_b32 v10, -1", "v_mov_b32 v11, -1", "v_lshlrev_b32 v12, 2, v0",
          "s_or_b32 s%d, s%d, s%d" % (slead, sj, sw), "s_cmp_eq_u32 s%d, 0" % slead, "s_cbranch_scc0 L_nolead0")
        tk = a.mark()
        a("s_lshl_b32 s100, s%d, 17" % sg, "buffer_store_dword v8, v12, %s, s100 offen sc1" % srd(sWS), "L_nolead0:")
        a.uncounted(tk)
        self.tok_lead = tk

    def leader_flag(self, word, name, tok=None, val="1"):
        a = self.a
        a("s_cmp_eq_u32 s%d, 0" % slead, "s_cbranch_scc0 " + name)
        if tok is not None:
            a.wait_vm(tok)
        tk = a.mark()
        a("v_mov_b32 v55, %s" % val, "v_lshlrev_b32 v54, 8, v0", "s_lshl_b32 s100, s%d, 2" % sg,
          "buffer_store_dword v55, v54, %s, s100 offen offset:%d sc1" % (srd(sDBG), word), name + ":")
        a.uncounted(tk)

    def flag_load(self, v, word, own):
        a = self.a
        if own:
            a("s_lshl_b32 s100, s%d, 2" % sg, "v_mov_b32 v%d, s100" % v)
        else:
            a("v_and_b32 v%d, 7, v0" % v, "v_lshlrev_b32 v%d, 2, v%d" % (v, v))
        return a("buffer_load_dword v%d, v%d, %s, 0 offen offset:%d sc1" % (v, v, srd(sDBG), word))

    def flag_check(self, v, word, own, tok, name):
        a = self.a
        a.wait_vm(tok)
        tk = a.mark()
        a("s_branch %s_c" % name, name + "_s:", "s_sleep 8")
        self.flag_load(v, word, own)
        a("s_add_u32 s%d, s%d, 1" % (sspin, sspin), "s_cmp_lt_u32 s%d, 0x%x" % (sspin, SPIN_LIMIT), "s_waitcnt vmcnt(0)",
          "s_cbranch_scc0 %s_d" % name, name + "_c:", "v_cmp_eq_u32 vcc, 0, v%d" % v, "s_cbranch_vccnz %s_s" % name, name + "_d:")
        a.uncounted(tk)

    def fill_intra(self, v, t, d, start, per_wave):
        a = self.a
        self.sexpr(100, start, (sg, 1 << 17), (sj, 4 * per_wave), (sw, per_wave))
        a("v_mov_b32 v%d, v%d" % (v, vA16))
        self.oob_unless(v, t, "v_cmp_gt_u32 vcc, %d, v0" % (per_wave // 16))
        self.st_intra("buffer_store_dwordx4", q(d), v, 100)

    def sentinels(self, d):
        for r in range(4):
            self.a("v_mov_b32 v%d, -1" % (d + r))

    def prologue(self):
        a = self.a
        if self.stamps:
            a("%s s[92:93]" % ("s_memtime" if self.cyc else "s_memrealtime"))
        a("s_load_dwordx16 s[4:19], s[0:1], 0", "s_load_dwordx8 s[20:27], s[0:1], 64",
          "v_lshrrev_b32 v1, 6, v0", "s_cmpk_ge_u32 s2, 256", "v_readfirstlane_b32 s%d, v1" % sw, "s_cbranch_scc1 L_end")
        a("v_and_b32 v0, 63, v0", "s_and_b32 s%d, s2, 7" % sg, "s_lshr_b32 s%d, s2, 3" % sj, "s_lshr_b32 s%d, s2, 6" % sb,
          "s_and_b32 s%d, s%d, 7" % (ss, sj), "s_lshl2_add_u32 s%d, s%d, s%d" % (su, ss, sw),
          "s_lshl3_add_u32 s100, s%d, s%d" % (sb, sg), "s_lshl_b32 s100, s100, 21", "s_mul_i32 s%d, s%d, %d" % (sring, sw, RING))
        a("s_lshl_b32 s%d, s%d, 12" % (su, su), "s_lshl2_add_u32 s%d, s%d, s%d" % (srot, sb, sg),
          "s_and_b32 s%d, s%d, 15" % (srot, srot), "s_lshl_b32 s%d, s%d, 17" % (srot, srot))
        a("v_lshrrev_b32 v5, 4, v0", "v_and_b32 v6, 15, v0", "v_xor_b32 v7, v5, v6", "v_lshlrev_b32 v7, 4, v7",
          "v_lshl_add_u32 v%d, v5, 8, v7" % vKS)
        a("v_xor_b32 v%d, 64, v%d" % (vKS + 1, vKS), "v_xor_b32 v%d, 128, v%d" % (vKS + 2, vKS), "v_xor_b32 v%d, 64, v%d" % (vKS + 3, vKS + 2),
          "s_lshl_b32 s98, s2, 10", "s_bitset1_b32 s98, 22", "v_mov_b32 v9, s98", "v_xor_b32 v10, 0x2000, v9",
          "s_lshl_b32 s%d, 1, 21" % (sK + 2), "s_mov_b32 s%d, 0x20000" % (sK + 3))
        self.tok, self.ltok, self.wtok = {}, [], {}
        first = self.lines(self.tile_issue, 0)
        self.tok, self.ltok = {}, []
        a(*first[:2])
        a("s_waitcnt lgkmcnt(0)", "global_load_dword v95, v9, s[26:27] sc1")
        tok_cal = a.mark()
        a("global_load_dword v95, v10, s[26:27] offset:128 sc1", "s_add_u32 s%d, s6, s100" % sK, "s_addc_u32 s%d, s7, 0" % (sK + 1))
        for x in first[2:]:
            self.ltok.append(a(x))
        self.tok[0] = a.mark()
        a("s_cmp_eq_u32 s%d, 0" % sw, "s_cbranch_scc0 L_novote")
        a.wait_vm(tok_cal)
        a("s_sleep 1", "s_getreg_b32 s99, hwreg(HW_REG_IB_STS, 0, 4)", "L_novote:")
        self.tile_issue(1)
        a("s_add_u32 s%d, s8, s100" % sV, "s_addc_u32 s%d, s9, 0" % (sV + 1),
          "s_mov_b32 s%d, 0x200000" % (sV + 2), "s_mov_b32 s%d, 0x20000" % (sV + 3))
        a("v_lshl_add_u32 v%d, v6, 8, v7" % vKR, "v_add_u32 v%d, s%d, v%d" % (vKR, sring, vKR))
        for st in range(1, 4):
            a("v_xor_b32 v%d, %d, v%d" % (vKR + st, st << 6, vKR))
        a("v_lshlrev_b32 v%d, 4, v0" % vA16)
        self.mk_srd(sDBG, 24, "256")
        self.mk_srd(sWS, 26, "0x%x" % WS_SIZE)
        self.mk_srd(sOUT, 22, "4096")
        a("s_add_u32 s%d, s26, 0x%x" % (sXW, OFF_XW), "s_addc_u32 s%d, s27, 0" % (sXW + 1),
          "s_mov_b32 s%d, 0x100000" % (sXW + 2), "s_mov_b32 s%d, 0x20000" % (sXW + 3))
        if self.stamps:
            a("v_mov_b32 v4, 0", "v_writelane_b32 v4, s92, 0")
            self.nst = 1
            self.stamp_names.append("entry")
        self.stamp("start")
        a("s_cmp_gt_u32 s99, 4", "s_cselect_b32 s%d, 16, 0" % svote)
        self.setup_b()
        self.setup_c()

    def setup_a(self):
        a = self.a
        self.mk_srd(sXI, 4, "4096")
        self.lin(6, 7, (4, 2, 6), (2, 2, 10), (0, 2, 4))
        self.lin(5, 7, (5, 1, 10), (4, 1, 11), (0, 4, 1))
        a("s_lshl_b32 s100, s%d, 8" % sb, "s_lshl_b32 s101, s%d, 10" % sb, "s_lshl_b32 s%d, s%d, 5" % (stmp, sj),
          "buffer_load_dwordx4 %s, v6, %s, s100 offen" % (q(vX), srd(sXI)),
          "buffer_load_dwordx4 %s, v%d, %s, s101 offen" % (q(vX + 4), vA16, srd(sXI)),
          "buffer_load_ushort v%d, v5, %s, s%d offen" % (vRES, srd(sXI), stmp))

    def early_fill(self):
        a = self.a
        self.sexpr(100, 0, (sj, 32768), (sg, 2048), (sw, 512))
        a("v_mov_b32 v12, v%d" % vA16)
        self.oob_unless(12, 13, "v_cmp_gt_u32 vcc, 32, v0")
        a("buffer_store_dwordx4 v[8:11], v12, %s, s100 offen sc1" % srd(sXW))

    def setup_b(self):
        a = self.a
        self.mk_srd(sWF, sWS, "0")
        self.mk_srd(sWL, sWS, "0x%x" % WS_SIZE)
        G = (sg, 1 << 17)
        self.sexpr(sCS, 2 * LS, G)
        a("s_lshr_b32 s%d, s%d, 1" % (stmp, ss), "s_and_b32 s100, s%d, 1" % ss)
        self.sexpr(sEst, OFF_E, G, (stmp, 1024), (100, 128), (sw, 32), (sb, 256))
        self.sexpr(sEld, OFF_E, G, (sb, 4096), (sw, 1024))
        self.sexpr(sMLld, OFF_ML, G, (sb, 1024))
        a("s_lshr_b32 s%d, s%d, 9" % (sMLst, su), "s_add_u32 s%d, s%d, s%d" % (sMLst, sMLst, sMLld),
          "s_mov_b32 s%d, 0" % slayer, "s_mov_b32 s%d, 0" % sspin, "s_mov_b32 s%d, -2" % scmp,
          "s_mov_b32 s%d, 0x3f80" % sLO, "s_mov_b32 s%d, 0x3f800000" % sHI,
          "s_and_b32 s100, s%d, 3" % ss, "s_cmp_eq_u32 s100, 3", "s_cselect_b32 s%d, 0, 1" % sact,
          "s_cmp_eq_u32 s%d, 3" % sb, "s_cselect_b32 s100, 0, 2", "s_or_b32 s%d, s%d, s100" % (sact, sact),
          "s_bitcmp1_b32 s%d, 0" % sg, "s_cselect_b32 s%d, s%d, 3" % (sact, sact))

    def setup_c(self):
        a = self.a
        G = (sg, 1 << 17)
        a("s_lshr_b32 s%d, s%d, 2" % (stmp, ss), "s_and_b32 s100, s%d, 3" % ss)
        self.sexpr(sAst, OFF_A, G, (sw, 8192), (stmp, 4096), (sb, 1024), (100, 256))
        self.sexpr(sCst, OFF_C, G, (100, 4096), (stmp, 128), (sw, 32), (sb, 256))
        self.sexpr(sAld, OFF_A, G, (sb, 8192), (sw, 2048))
        self.sexpr(sCld, OFF_C, G, (sb, 4096), (sw, 1024))
        self.sexpr(sBst, 0, (su, 8), (sg, 512), (sb, 128))
        self.sexpr(sBld, 0, (sj, 32768))
        a("s_lshr_b32 s%d, s%d, 1" % (stmp, sj), "s_and_b32 s100, s%d, 1" % sj)
        self.sexpr(sXst, OFF_XB, G, (stmp, 256), (100, 32))
        self.sexpr(sXld, OFF_XB, G, (sb, 1024))
        self.sexpr(sRow, OFF_ST, G)
        a("s_mov_b32 s%d, 0xff00ff00" % sM1, "s_mov_b32 s%d, 0xff00ff00" % (sM1 + 1))
        self.lin(vTRV, 7, (2, 1, 12), (4, 2, 10), (3, 1, 8), (4, 1, 7), (2, 1, 6), (3, 1, 5), (0, 2, 3))
        a("v_add_u32 v%d, s%d, v%d" % (vTRV, sring, vTRV))

    def part_off(self, v, t, bs, cmp="0"):
        self.lin(v, t, (4, 2, bs), (0, 4, 1))
        self.even_only(v, t, cmp)

    def group_flag(self, k, val):
        a = self.a
        a("v_mov_b32 v14, %s" % val, "v_add_u32 v15, s%d, v0" % sw, "v_lshlrev_b32 v15, 24, v15")
        self.sexpr(100, 128 * k, (sg, 1 << 17), (sj, 4))
        self.st_intra("buffer_store_dword", "v14", 15, 100)

    def stream(self):
        a = self.a
        lag = self.lag
        t_dl, t_f1, t_l1, t_c1, t_f2, t_l2, t_c2 = self.sync
        wl = {}
        for kind, ts in (("q", self.tq), ("g", self.tg)):
            for k, T in enumerate(ts):
                wl.setdefault(T, []).append((kind, k))
        tqk = max(t_c2 + 2, 16 + lag)
        assert self.clr1 <= t_dl and self.tq[-1] + 2 <= t_c1 and self.tg[-1] + 2 <= t_f2
        pvat = {}
        for p in range(5):
            pvat.setdefault(max(tqk + 3 + (p >> 1), 17 + 2 * p + lag), []).append(p)
        assert min(self.ipf, self.tml, self.tclr) >= tqk + 3 and max(pvat) < 32
        vF = 94
        G17 = "s_lshl_b32 s101, s%d, 17" % sg
        qk = None
        for T in range(1, 32):
            if T == 16:
                self.lin(5, 7, (4, 2, 8), (0, 4, 4))
                a("v_and_b32 v7, 16, v0", "v_lshlrev_b32 v7, 1, v7", "v_xor_b32 v5, v5, v7", "v_xor_b32 v6, 128, v5")
                self.mk_ai()
            between = None
            if T in (tqk + 1, tqk + 2):
                def between(jj):
                    a(*qk.pop(0))
            if T > 1:
                a("; tile %d (%s)" % (T, "K" if T < 16 else "V"))
            if T > 1:
                self.tile_issue(T, between)
            if T == 1:
                a("; code into L2; wave 0 of workgroup j = 0 resets the kv head's two flag arrays; x quarter, x row and residual slice")
                self.code_prefetch(93, 98, "L_pc0", "L_pc0")
                self.leader_fill()
            for kind, k in wl.get(T, []):
                self.weight_load(kind, k, T)
            if T == 31:
                self.weight_load("o", 0, None, 18)
            if self.stamps is not True and T > 1:
                self.stamp("T%02d" % T)
            if T == 1:
                self.setup_a()
            if T == self.clr1:
                a('; sentinel fill of the first two cross-die slots')
                self.early_fill()
            if lag <= T < 26 + lag:
                self.tile_consume(T - lag)
            if T == 2:
                a('; d_debug[g] = 1: flag arrays are reset')
                self.leader_flag(0, "L_nolead1", self.tok_lead)
            if T == t_dl:
                tok_f = self.flag_load(vF, 0, True)
            if T == t_f1:
                a('; flag 1 = die id + probe vote, set after the fills of all four waves; LayerNorm statistics of x[b]')
                self.flag_check(vF, 0, True, tok_f, "L_f0")
                a("s_barrier", "s_getreg_b32 s%d, hwreg(HW_REG_XCC_ID, 0, 4)" % stmp, "s_or_b32 s%d, s%d, s%d" % (stmp, stmp, svote))
                self.group_flag(0, "s%d" % stmp)
                a("v_lshlrev_b32 v%d, 16, v%d" % (vRES, vRES))
                self.stats(vX + 4, 8, True)
            if T in (t_l1, t_l2):
                fld = self.ld(vF, vF + 1, 101, 0 if T == t_l1 else 128, n=1)
                a("v_and_b32 v%d, 31, v0" % (vF + 1), "v_lshlrev_b32 v%d, 2, v%d" % (vF + 1, vF + 1), G17)
                tok_f = a(fld)
            if T == t_c1:
                a('; all 32 flags: same die -> plain stores through L2, else write-through; q partials and Wq column sums; fill of ML / A')
                self.check_or_poll([fld], [[vF]], 7, "xcc", max(tok_f, self.wtok["q"]), [G17])
                a("s_barrier")
                self.w_tiles([("q", vWQ)], 5, 7)
                a("v_cmp_lt_u32 vcc, 15, v%d" % vF, "v_and_b32 v%d, 15, v%d" % (vF, vF),
                  "s_and_b32 s100, vcc_lo, 0x55555555", "s_and_b32 s101, vcc_lo, 0xaaaaaaaa",
                  "s_bcnt1_i32_b32 s100, s100", "s_bcnt1_i32_b32 s101, s101")
                if self.stamps:
                    a("v_writelane_b32 v4, s100, 28", "v_writelane_b32 v4, s101, 29")
                a("s_getreg_b32 s%d, hwreg(HW_REG_XCC_ID, 0, 4)" % svote, "s_sub_u32 s%d, s100, s101" % stmp, "s_sub_u32 s101, s101, s100",
                  "s_bitcmp1_b32 s%d, 2" % svote, "s_cselect_b32 s101, s101, s%d" % stmp, "s_add_u32 s101, s101, 64")
                self.leader_flag(32, "L_nolead2", val="s101")
                if not self.force_slow:
                    a("v_cmp_ne_u32 vcc, s%d, v%d" % (svote, vF), "s_cmp_eq_u64 vcc, 0",
                      "s_cselect_b32 s%d, 0x%x, 0" % (sWF + 2, WS_SIZE), "s_cselect_b32 s%d, 0, 0x%x" % (sWL + 2, WS_SIZE))
                self.part_off(6, 7, 12)
                a("s_lshr_b32 s%d, s%d, 1" % (stmp, ss), "s_and_b32 s%d, s%d, 1" % (sclr, ss))
                self.colsum_pub(vWQ, 12, 16, 10, 11, OFF_CSQ, (stmp, 2048), (sclr, 512))
                self.mk_ix(8)
                self.gemv_zero(vD)
                self.gemv4(vX, vWQ, vD, 8)
                self.sentinels(20)
                self.gemv4_fin(9, vD)
                self.st_intra("buffer_store_dword", "v9", 6, sEst)
                self.fill_intra(24, 7, 20, LS + OFF_ML, 288)
                tok_q = a.mark()
                self.stamp("arrive")
            if T == t_f2:
                a('; flag 2: q partials and fills are visible; gate / up column sums')
                a.wait_vm(max(tok_q, self.wtok["g"]))
                a("s_barrier")
                self.group_flag(1, "1")
                self.w_tiles([("g", vWQ)], 5, 7)
                a("s_lshr_b32 s%d, s%d, 2" % (stmp, ss), "s_and_b32 s%d, s%d, 3" % (sclr, ss))
                self.colsum_pub(vWQ, 16, 20, 10, 11, OFF_CSG, (sclr, 2048), (stmp, 512))
            if T == t_c2:
                a('; fetch the q partials')
                self.check_or_poll([fld], [[vF]], 7, "q1", tok_f, [G17])
                self.colsum_ld(28, OFF_CSQ, sw)
                tok_q = a("v_lshlrev_b32 v7, 2, v0", *self.ld4(24, 7, sEld))
                self.next_region()
                self.stamp("barrier")
            if T == t_c2 + 1:
                self.s_zero()
                self.q_addrs(40, 42, 7)
            if T == tqk:
                a('; q = sum of partials - mean * column sum; QK^T and softmax run between the next loads')
                a.wait_vm(tok_q)
                self.colsum_fin(28, 36)
                self.sum4_init(38, 36)
                self.sum4(24, 38, 38)
                self.q_assemble(38, 40, 42)
                ls, _ = schedule(self.lines(self.qk))
                qk = [ls[len(ls) * k // 4:len(ls) * (k + 1) // 4] for k in range(4)]
            if T == tqk + 1:
                self.ml_off(22, 23)
                self.sexpr(100, L_WD, (sw, 2048))
                self.lin(16, 23, (2, 2, 6), (4, 2, 4))
                a("v_add_u32 v16, s100, v16", "v_lshl_add_u32 v17, v0, 2, s100")
                self.lds_or_zero(16, 23, 3)
                ls, _ = schedule(self.lines(self.softmax, 17, 22))
                qk = [ls[len(ls) * k // 4:len(ls) * (k + 1) // 4] for k in range(4)]
            if T == tqk + 2:
                self.stamp("softmax1")
            for p in pvat.get(T, ()):
                a('; PV of one 32-key group')
                self.p_read(ORDER.index(p), 16, p & 1)
                a("s_waitcnt lgkmcnt(0)")
                self.pv_dense(p, p & 1)
            if T == self.ipf:
                self.code_prefetch(80, 4, "L_pc1", "L_tail")
            if T == self.tml:
                ml1 = [self.ld(64, vA16, sMLld)]
                a(*ml1)
                tok_warm = self.flag_load(70, 32, False)
            if T == self.tclr:
                a('; sentinel fill of the remaining per-head slots')
                self.sentinels(72)
                self.fill_intra(76, 77, 72, OFF_C, 352)
                self.fill_intra(78, 77, 72, LS, 480)
        self.stamp("issued")
        self.flag_check(70, 32, False, tok_warm, "L_f1")
        for k in (1, 2, 4):
            self.dpp("v_add_u32", 70, 70, 70, "row_ror:%d" % k)
        a("v_readfirstlane_b32 s100, v70", "s_cmpk_ge_u32 s100, 512", "s_cselect_b32 s100, 0, 4", "s_xor_b32 s100, s100, s%d" % svote,
          "s_bitcmp1_b32 s100, 2", "s_cselect_b32 s100, %s" % {1: "0x2000, 0", 2: "0, 0x2000"}[self.near],
          "s_add_u32 s%d, s%d, s100" % (sBld, sBld), "s_add_u32 s%d, s%d, s100" % (sB2, sBst), "s_xor_b32 s%d, s%d, 0x2000" % (sBst, sB2))
        self.check_or_poll(ml1, [range(64, 68)], 69, "ml1", tok_warm)
        self.ml_finish(64)
        self.o_addr()
        a("s_mov_b32 s%d, 1" % slayer)
        a(*[x for x in self.lines(self.weight_load, "d", 0, None, 62) if x.startswith("s_")])
        for p in (5, 6, 7):
            self.p_read(ORDER.index(p), 16, p & 1)
            keep = len(a.l)
            self.tile_consume(17 + 2 * p)
            for k in range(4):
                if self.owait[k] == p:
                    self.weight_issue("o", k, 31, 18)
            if p < 7:
                self.pv_dense(p, p & 1, lgkm=lambda i: 14 - 2 * i)
            else:
                pre = [i.text for i in a.l[keep:] if i.ds]
                self.sched(self.lines(self.pv_dense, p, p & 1) + self.lines(self.o_write, 8, 16, False), pre)
        self.n_after_o = min(a.mark() - self.wtok["o"], 60)
        self.stamp("pv1")

    def code_prefetch(self, v, sp, here, start):
        a = self.a
        a("s_getpc_b64 s[%d:%d]" % (sp, sp + 1), here + ":")
        if start != here:
            a("s_add_u32 s%d, s%d, %s-%s" % (sp, sp, start, here), "s_addc_u32 s%d, s%d, 0" % (sp + 1, sp + 1))
        self.sexpr(100, 0, (sj, 512), (sw, 128))
        a("s_min_u32 s100, s100, L_codeend-%s-4" % start, "v_mov_b32 v%d, s100" % v, "global_load_dword v%d, v%d, s[%d:%d]" % (v, v, sp, sp + 1))

    def touch_addr(self, v, t, parts):
        a = self.a
        a("v_mov_b32 v%d, 0x%x" % (v, OOB), "v_lshl_add_u32 v%d, v0, 2, s%d" % (t + 1, sw))
        hi = sum(n for _, n in parts)
        for start, n in reversed(parts):
            self.sexpr(100, start - 128 * (hi - n), (sg, 1 << 17), (sj, 128 * n))
            a("v_lshl_add_u32 v%d, v%d, 7, s100" % (t, t + 1), "v_cmp_gt_u32 vcc, %d, v%d" % (hi, t + 1),
              "v_cndmask_b32 v%d, v%d, v%d, vcc" % (v, v, t))
            hi -= n

    def touch(self, v):
        return self.a("buffer_load_dword v%d, v%d, %s, 0 offen sc1" % (v, v, srd(sWS)))

    def fill_cross(self, d, hop):
        self.sentinels(d)
        self.lin(d + 4, d + 5, (4, 2, 15), (3, 1, 13), (0, 3, 4))
        self.sexpr(100, (hop >> 1) * 0x4000 + (hop & 1) * 0x1000, (ss, 1 << 17), (sg, 512), (sb, 128))
        self.a("buffer_store_dwordx4 %s, v%d, %s, s100 offen sc1" % (q(d), d + 4, srd(sXW)))

    def st_cross(self, v):
        a = self.a
        for so in (sBst, sB2):
            a("buffer_store_dword v%d, v95, %s, s%d offen sc1" % (v, srd(sXW), so))

    def red_loads(self, x, soff):
        return [self.ld(x + 4 * i, vA16, soff, i * 1024, rs=sXW) for i in range(4)]

    def prep_split(self, name, work, loads):
        a = self.a
        n = self.at[name][0]
        while n < len(work) and work[n].startswith(("s_cselect", "s_addc", "s_cbranch")):
            n += 1
        a(*work[:n])
        a("s_cmp_eq_u32 s%d, 0" % sw, "s_cbranch_scc0 L_%s_n" % name)
        self.idle(n - len(work))
        a(*loads)
        a("L_%s_n:" % name, *work[n:])
        self.est += (name, len(work))

    def reduce_x(self, name, x, d, soff):
        a = self.a
        self.poll(self.red_loads(x, soff), [range(x + 4 * i, x + 4 * i + 4) for i in range(4)], 7, name,
                  spec=lambda i: self.mfma(d, q(x + 4 * i), q(vSEL), i > 0), again=self.kx)
        m = "s[%d:%d]" % (sM1, sM1 + 1)
        a("v_cndmask_b32 v%d, v%d, v%d, %s" % (d, d, d + 1, m), "v_cndmask_b32 v%d, v%d, v%d, %s" % (d + 2, d + 2, d + 3, m),
          "v_permlane32_swap_b32 v%d, v%d" % (d, d + 2), "v_add_f32 v%d, v%d, v%d" % (vRES, vRES, d),
          "v_add_f32 v%d, v%d, v%d" % (vRES, vRES, d + 2))
        self.pack_pairs(7, vRES)

    def x_off(self, v, t, bs):
        self.lin(v, t, (5, 1, bs), (4, 1, bs + 1), (0, 4, 1))
        self.even_only(v, t)

    def layer1(self, name):
        self.a("s_cmp_eq_u32 s%d, 1" % slayer, "s_cbranch_scc0 " + name)

    def chain(self):
        a = self.a
        a("L_tail:")
        self.lin(23, 6, (2, 4, 4), (1, 1, 8), (0, 1, 3))
        self.sexpr(sclr, L_SCR, (sw, 2048))
        a("v_add_u32 v23, s%d, v23" % sclr, "s_waitcnt lgkmcnt(0)", "s_barrier")
        for src in range(4):
            a("ds_read_b64 %s, v23 offset:%d" % (q(8 + 2 * src, 2), src * 512))
        a("v_lshlrev_b32 v17, 2, v0", "s_mov_b32 m0, s%d" % sclr)
        self.lin(56, 16, (2, 2, 9), (4, 2, 7), (2, 2, 5), (0, 2, 3))
        a("s_lshl_b32 s100, s%d, 5" % sw, "v_xor_b32 v56, s100, v56", "v_add_u32 v56, 0x%x, v56" % L_WO)
        a("s_waitcnt lgkmcnt(2)", "v_pk_add_f32 v[8:9], v[8:9], v[10:11]", "s_waitcnt lgkmcnt(0)", "v_pk_add_f32 v[12:13], v[12:13], v[14:15]",
          "v_pk_add_f32 v[8:9], v[8:9], v[12:13]", "v_cvt_pk_bf16_f32 v7, v8, v9")
        self.st_intra("buffer_store_dword", "v7", 17, sAst)
        self.stamp("Apub", True)
        if self.stamps:
            a("s_mov_b32 m0, s%d" % sclr)
        a("v_lshrrev_b32 v5, 4, v0", "v_and_b32 v6, 15, v0", "v_xor_b32 v16, v5, v6", "v_lshlrev_b32 v16, 4, v16",
          "v_lshl_add_u32 v18, v5, 8, v16", "s_and_b32 s100, s%d, 1" % sw, "s_lshl_b32 s100, s100, 7", "v_xor_b32 v18, s100, v18",
          "v_xor_b32 v19, 64, v18")
        lda = ["buffer_load_dwordx4 v%d, %s, s%d offen offset:%d sc1 lds" % (18 + h, srd(sWS), sAld, h * 1024) for h in range(2)]

        def prep_a():
            a = self.a
            a("s_waitcnt vmcnt(%d)" % (1 + self.n_after_o), "s_barrier")
            for st in range(4):
                for h in range(2):
                    a("ds_read_b64_tr_b16 %s, v56 offset:%d" % (q(24 + 4 * st + 2 * h, 2), st * 4096 + h * 2048))
            a("v_lshl_add_u32 v20, v6, 8, v16", "v_add_u32 v20, 0x%x, v20" % L_SCR)
            for st in range(1, 4):
                a("v_xor_b32 v%d, %d, v20" % (20 + st, st << 6))
            a("v_add_u32 v5, s%d, v%d" % (sclr, vA16), "v_lshlrev_b32 v95, 1, v0")
            self.even_only(95, 6)
            a(*[x for x in self.lines(self.weight_load, "d", 0, None, 62) if x.startswith("v_")])
            self.touch_addr(59, 60, T1)
        assert self.at["pollA"][0] >= 2
        n = self.with_loads("pollA", self.lines(prep_a), lda)
        a("s_branch L_pollA_w", "L_pollA:", *lda)
        a(*self.spin_count())
        a("L_pollA_w:", "s_waitcnt vmcnt(%d)" % (2 * n - 1), "ds_read_b128 v[8:11], v5", "s_waitcnt vmcnt(%d)" % (2 * n - 2),
          "ds_read_b128 v[12:15], v5 offset:1024")
        ck = self.lines(self.check, [range(8, 12), range(12, 16)], 7, 0)
        a("s_waitcnt lgkmcnt(1)", *ck[:2], "s_waitcnt lgkmcnt(0)", *ck[2:])
        a("s_cbranch_vccnz L_pollA")
        if self.stamps is not True:
            self.stamp("pollA", True)
        a("s_barrier")
        ops = [40, 44, 48, 52, 64, 68, 72, 76]
        rd = ["ds_read_b128 %s, v%d offset:%d" % (q(ops[k]), 20 + (k >> 1), (k & 1) * 4096) for k in range(8)]
        m = self.oahead
        a(*rd[:m])
        self.late_loads("L_l1b")
        for k in range(8):
            a("s_waitcnt lgkmcnt(%d)" % (min(8, m + k) - k - 1))
            self.mfma(8, q(ops[k]), q(24 + 4 * (k >> 1)), k > 0)
            if m + k < 8:
                a(rd[m + k])
        a("v_add_f32 v8, v8, v9", "v_add_f32 v10, v10, v11", "v_add_f32 v8, v8, v10")
        self.pack_pairs(7, 8)
        self.st_cross(7)
        self.stamp("Bpub", True)
        self.colsum_ld(80, OFF_CSG, sb)
        self.layer1("L_l1c")
        self.colsum_ld(24, OFF_CSQ, sw)
        a("L_l1c:")
        wt = self.lines(self.w_tiles, [("d", vWD)], 91, 7)

        def prep_b():
            a = self.a
            self.w_tiles([("g", vWG), ("q", vWQ)], 5, 7)
            a("v_and_b32 v5, 1, v0", "v_lshlrev_b32 v5, 4, v5", "v_lshlrev_b32 v5, v5, s%d" % sLO, "v_bfe_u32 v6, v0, 1, 2")
            for r in range(4):
                a("v_cmp_eq_u32 vcc, %d, v6" % r, "v_cndmask_b32 v%d, 0, v5, vcc" % (vSEL + r))
            self.x_off(94, 7, 6)
            self.st_off(93, 7)
            a("s_bitcmp1_b32 s%d, 0" % sact, "s_cselect_b32 s%d, 0, -1" % stmp)
            self.part_off(92, 7, 10, "s%d" % stmp)
            self.lin(89, 7, (0, 5, 2), (5, 1, 1))
            self.sexpr(100, L_H, (sw, 128))
            a("v_add_u32 v89, s100, v89")
            self.mk_ix(90)
            self.lin(88, 7, (2, 2, 7), (0, 1, 4), (4, 2, 5))
            a("v_add_u32 v88, 0x%x, v88" % L_H)
            a(*[x for x in wt if not x.startswith("ds_")])
            self.sexpr(stmp, 0, (sRow, 1), (sw, 256))
            self.sexpr(sclr, 0, (sRow, 1), (sj, 4))
            a("s_add_u32 s%d, s%d, 0x1000" % (sBst, sBst), "s_add_u32 s%d, s%d, 0x1000" % (sB2, sB2))
        self.prep_split("pollB", self.lines(prep_b), self.red_loads(vX, sBld))
        aux = [self.ld(vX + 4, 91, stmp, n=1)]
        a("s_waitcnt lgkmcnt(0)", "s_cmp_eq_u32 s%d, 0" % sw, "s_cbranch_scc0 L_nored1")
        self.cold += (["L_nored1:", "s_lshl2_add_u32 s100, s%d, s%d" % (slayer, sw), "s_cmp_eq_u32 s100, 5", "s_cbranch_scc0 L_nof2"]
                      + self.lines(self.fill_cross, vX + 8, 2) + ["L_nof2:", "s_waitcnt vmcnt(0)", "s_branch L_red1"])
        self.reduce_x("pollB", vX, vD, sBld)
        self.st_intra("buffer_store_dword", "v7", 94, sXst)
        a("v_lshlrev_b32 v%d, 16, v7" % vRES)
        self.stamp("XBpub", True)
        a("L_red1:", "s_barrier")
        ldx = [self.ld(vX, vA16, sXld)]
        work, _ = schedule(self.lines(self.colsum_fin, 24, vCQ) + self.lines(self.colsum_fin, 80, vCG) + self.lines(self.gemv_zero, vD)
                           + [x + " ; prio=100" for x in self.lines(self.slice_sums, 5, 93, sclr)])
        k = max(i for i, x in enumerate(work) if "_dpp" in x) + 1
        ex = int(self.at["pollXB"][0] <= k)
        work[k:k] = self.lines(self.st_intra, "buffer_store_dword", "v5", 93, sclr)
        self.with_loads("pollXB", work, ldx)
        a(*[x for x in wt if x.startswith("ds_")])
        a("v_lshlrev_b32 v91, 2, v0")
        self.poll(ldx, [range(vX, vX + 4)], 7, "pollXB", self.lines(self.gemv4, vX, vWG, vD, 90), self.lines(self.gemv_zero, vD), extra=ex)
        a(*aux)
        self.gemv4_fin(6, vD)
        self.st_intra("buffer_store_dword", "v6", 92, sCst)
        self.stamp("Cpub", True)
        a("v_mov_b32 v5, 0", "s_bitcmp1_b32 s%d, 1" % sact, "s_cbranch_scc0 L_nod")
        ldc = self.ld4(vX, 91, sCld)
        st = self.lines(self.stats_fin, vX + 4, vD, False) + self.lines(self.sum4_init, vD + 2, vCG)
        self.stats_poll("pollC", aux, vX + 4, st, ldc)
        self.poll(ldc, [range(vX, vX + 4)], 7, "pollC", self.lines(self.sum4, vX, vD, vD + 2))
        a("v_permlane32_swap_b32 v%d, v%d" % (vD, vD + 1), "v_mul_f32 v%d, s%d, v%d" % (vD, sSC, vD),
          "v_mul_f32 v%d, v%d, v%d" % (vD, vD, vD + 1), "v_cvt_pk_bf16_f32 v%d, v%d, v%d" % (vD, vD, vD),
          "ds_write_b16 v89, v%d" % vD, "v_mov_b64 %s, 0" % q(vD + 4, 2), "s_waitcnt lgkmcnt(0)", "s_barrier", "ds_read_b128 %s, v88" % q(vX + 4), "s_waitcnt lgkmcnt(0)")
        self.smf(vD + 4, q(vX + 4), q(vWD, 8), 90)
        a("v_add_f32 v7, v%d, v%d" % (vD + 4, vD + 5))
        self.pack_pairs(5, 7)
        a("L_nod:")
        self.st_cross(5)
        self.stamp("Dpub", True)
        a("s_add_u32 s%d, s%d, 0x1000" % (stmp, sBld))
        self.layer1("L_last")
        a("s_waitcnt vmcnt(2) lgkmcnt(0)")

        def prep_d():
            a = self.a
            a("v_mov_b32 v28, v94", "v_mov_b32 v30, v93", "s_add_u32 s%d, s%d, 0x3000" % (sBst, sBst),
              "s_add_u32 s%d, s%d, 0x3000" % (sB2, sB2), "s_add_u32 s%d, s%d, 0x4000" % (sBld, sBld))
            self.mk_ai()
            self.s_zero()
            self.part_off(29, 7, 12)
            self.q_addrs(31, 48, 7)
            self.lin(5, 7, (2, 2, 6), (5, 1, 8), (4, 1, 5), (0, 1, 4))
            self.sexpr(100, L_WQ, (sw, QSTR))
            a("v_add_u32 v5, s100, v5")
            self.lds_or_zero(5, 7, 2)
            self.ml_off(6, 7)
            self.sexpr(98, 1024, (sRow, 1), (sb, 256))
            self.sexpr(sWl, 1024, (sRow, 1), (sj, 4))
            self.sexpr(sWo, 0, (sg, 1 << 17), (sj, 2048), (sw, 512))
            a("s_add_u32 s%d, s%d, 0x%x" % (sclr, sXst, OFF_XD - OFF_XB), "s_add_u32 s99, s%d, 0x%x" % (sXld, OFF_XD - OFF_XB))
        self.prep_split("pollD", self.lines(prep_d), self.red_loads(8, stmp))
        a("s_waitcnt lgkmcnt(0)", "s_cmp_eq_u32 s%d, 0" % sw, "s_cbranch_scc0 L_fill3", "L_redd:")
        self.cold += ["L_fill3:", "s_cmp_eq_u32 s%d, 1" % sw, "s_cbranch_scc0 L_nored2"] + self.lines(self.fill_cross, 16, 3) + ["s_branch L_nored2"]
        self.reduce_x("pollD", 8, 24, stmp)
        self.st_intra("buffer_store_dword", "v7", 28, sclr)
        a("s_cmp_eq_u32 s%d, 2" % slayer, "s_cbranch_scc1 L_out")
        a("v_lshlrev_b32 v%d, 16, v7" % vRES)
        self.stamp("XDpub")
        a("L_nored2:", "s_barrier")
        row = [self.ld(24, 28, 98, n=1)]
        ldx = [self.ld(52, vA16, 99)]
        work = self.lines(self.slice_sums, 26, 30, sWl)
        ex = int(self.at["pollXD"][0] <= len(work))
        work += self.lines(self.st_intra, "buffer_store_dword", "v26", 30, sWl) + ["v_lshlrev_b32 v28, 2, v0"]
        n = self.with_loads("pollXD", work, ldx)
        a("s_waitcnt vmcnt(%d)" % (n + 2))
        self.gemv_zero(8)
        self.poll(ldx, [range(52, 56)], 7, "pollXD", self.lines(self.gemv4, 52, vWQ, 8, vIX), self.lines(self.gemv_zero, 8), extra=ex)
        a(*row)
        self.gemv4_fin(10, 8)
        self.st_intra("buffer_store_dword", "v10", 29, sEst)
        self.stamp("Epub")
        lde = self.ld4(52, 28, sEld)
        st = self.lines(self.stats_fin, 24, 32, True) + self.lines(self.sum4_init, 34, vCQ)
        self.stats_poll("pollE", row, 24, st, lde)
        self.poll(lde, [range(52, 56)], 7, "pollE", self.lines(self.sum4, 52, 32, 34))
        self.stamp("Eget")
        rd = self.q_assemble(32, 31, 48, self.lines(self.next_region) + ["s_mov_b32 s%d, 2" % slayer]
                             + ["v_min_u32 v38, 3, v0", "v_lshlrev_b32 v38, 7, v38"])
        a(self.ld(38, 38, sWo, n=1))
        for i in range(7):
            a("v_mov_b64 %s, 0" % q(vO + 4 * i, 2))
        if self.stamps is not True:
            self.stamp("qrdy")
        x = 128
        ldm = [self.ld(x, vA16, sMLld)]

        def att():
            a = self.a
            self.qk()
            a("s_waitcnt vmcnt(1) ; guards=v[52:55] after=v%d" % (vS + 20))
            a("v_subrev_u32 v23, 0x%x, v31" % (L_Q - L_WQ))
            a("v_mov_b64 %s, 0" % q(vO + 28, 2))
            self.softmax(23, 6)
            self.o_addr()
            for h in range(2):
                self.v_reads(5 + h, lambda i, e: q(8 * i + 4 * h + 2 * e, 2, "a"))
            self.v_reads(7)
            for n in range(4):
                self.p_read(2 * n, 5, n & 1)
                for i in range(8):
                    B = q(128 + 64 * n + 8 * i, 8) if n < 2 else q(8 * i, 8, "a") if n == 2 else "vp[%d]" % i
                    self.smf(vO + 4 * i, q(vQ + 4 * (n & 1)), B)
                    if n == i == 0:
                        for d in self.mlat:
                            a(ldm[0] + " ; lat=%d tail=%d" % (d, self.mltail))
        ls = [x + " prio=%d" % self.p0 if x.endswith("mem=p0") else x for x in self.lines(att)]
        cut = len(ls) - self.mlcut
        out, t1 = schedule(ls[:cut], rd)
        if self.stamps and self.stamps is not True:
            k = max(i for i, x in enumerate(out) if x.startswith("buffer_store")) + 1
            out[k:k] = self.lines(self.stamp, "mlpub")
            k = min(i for i, x in enumerate(out) if x.startswith("v_pk_fma"))
            out[k:k] = self.lines(self.stamp, "maxed")
        a(*out)
        a("s_waitcnt lgkmcnt(0)")
        if self.stamps is not True:
            self.stamp("pv2a")
        L = a.lab("ml2")
        a(L + "_w:")
        fin = ["v_sub_f32 v58, v%d, v20" % x, "v_sub_f32 v59, v%d, v20" % (x + 2), "v_exp_f32 v58, v58", "v_exp_f32 v59, v59",
               "v_mul_f32 v7, v58, v%d" % (x + 1), "v_fmac_f32 v7, v59, v%d" % (x + 3)] + self.lines(self.ml_finish, x)[6:]
        self.check([range(x, x + 4)], 6, len(self.mlat))
        a(*fin[:3])
        a("s_cbranch_vccnz " + L)
        fin = fin[3:]
        if self.stamps is not True:
            self.stamp("mlget")
        t2 = self.sched([x + " ; prio=200" for x in fin] + ls[cut:] + self.lines(self.o_write, 8, 60, True))
        self.est += (t1, t2)
        self.stamp("pv2")
        a("s_branch L_tail", L + ":", *ldm)
        a(*self.spin_count())
        a("s_branch %s_w" % L)
        a("L_last:", "s_lshr_b32 s100, s%d, 2" % sj, "s_xor_b32 s100, s100, s%d" % sg, "s_or_b32 s100, s100, s%d" % sw,
          "s_cmp_eq_u32 s100, 0", "s_cbranch_scc0 L_fin")
        self.x_off(28, 7, 10)
        self.mk_srd(sWF, sOUT, "4096")
        a("s_lshl_b32 s%d, s%d, 5" % (sclr, sj))
        self.idle(self.at["last"][0])
        a(*self.red_loads(8, stmp))
        a("s_branch L_redd")
        a("L_out:")
        if self.probe:
            self.stamp("out")
            k = self.stamp_names.index(self.probe)
            a("v_readlane_b32 s100, v4, %d" % k, "v_readlane_b32 s101, v4, 0", "s_sub_u32 s100, s100, s101", "s_lshl_b32 s100, s100, 2",
              "s_min_u32 s100, s100, 100000", "s_memrealtime s[0:1]", "s_waitcnt lgkmcnt(0)", "s_mov_b32 s101, s0",
              "L_probe:", "s_memrealtime s[0:1]", "s_waitcnt lgkmcnt(0)", "s_sub_u32 s0, s0, s101", "s_cmp_lt_u32 s0, s100",
              "s_cbranch_scc1 L_probe")
        a("L_fin:")
        if self.stamps and not self.probe:
            self.stamp("end")
            a("s_lshl_b32 s100, s2, 2", "s_add_u32 s100, s100, s%d" % sw, "s_lshl_b32 s100, s100, 7",
              "s_add_u32 s100, s100, 0x%x" % (STAMP_OFF - 2 * LS), "s_mov_b32 s%d, 0x1000000" % (sWS + 2),
              "v_writelane_b32 v4, s%d, 30" % sspin, "v_writelane_b32 v4, s%d, 31" % (sWF + 2),
              "v_lshlrev_b32 v9, 2, v0", "v_cmp_gt_u32 vcc, 32, v0", "s_and_saveexec_b64 s[98:99], vcc",
              "buffer_store_dword v4, v9, %s, s100 offen sc1" % srd(sWS))
        a("L_end:", "s_endpgm")
        a(*self.cold)
        a("L_codeend:")

    def build(self):
        self.prologue()
        self.stream()
        self.chain()
        self.a.pad()
        if self.win:
            self.est += align(self.a, self.win, "L_novote")
        head = open("cdna_kernels/" + KNAME[:-7] + ".s.ref").read().split("; Override launch")[0]
        return (head + "; @launch grid=(256,1,1) block=(256,1,1) lds=163840\n" + ABOUT +
                '.amdgcn_target "amdgcn-amd-amdhsa--gfx950"\n.text\n.globl %s\n.p2align 8\n.type %s,@function\n%s:\n' % (KNAME, KNAME, KNAME)
                + self.a.text() +
                '.section .rodata,"a"\n.p2align 6\n.amdhsa_kernel %s\n  .amdhsa_next_free_vgpr 512\n  .amdhsa_next_free_sgpr 102\n'
                "  .amdhsa_accum_offset 256\n  .amdhsa_group_segment_fixed_size 0\n  .amdhsa_kernarg_size 96\n"
                "  .amdhsa_user_sgpr_count 2\n  .amdhsa_user_sgpr_kernarg_segment_ptr 1\n  .amdhsa_system_sgpr_workgroup_id_x 1\n"
                ".end_amdhsa_kernel\n" % KNAME)


if __name__ == "__main__":
    out = sys.argv[1]
    kw = eval("dict(%s)" % (sys.argv[2] if len(sys.argv) > 2 else ""))
    g = Gen(**kw)
    s = g.build()
    open(out, "w").write(s)
    if len(sys.argv) > 3:
        print("estimated attention cycles", g.est)
    if g.stamps:
        open(out[:-2] + ".names", "w").write("\n".join(g.stamp_names))
```

```python
import struct
import sys
from asmlib import Asm, align, schedule

KNAME = "interleave_layers__gqa_block_cached__glu_gated_bilinear__decode_kernel"

LS = 1 << 20
OFF_ML, OFF_A, OFF_C, OFF_XB, OFF_ST, OFF_XD, OFF_E = 0, 4 << 10, 36 << 10, 52 << 10, 56 << 10, 60 << 10, 64 << 10
OFF_CSG, OFF_CSQ = 60 << 10, 68 << 10
WS_SIZE = 3 * LS
T1 = [(OFF_C, 11), (LS + OFF_ML, 1)]
OFF_XW = 5 << 20
STAMP_OFF = 8 << 20
OOB = 0x7FFF0000

RING = 24576
L_WQ = 4 * RING
L_WO = L_WQ + 16384
L_WG = L_WO + 16384
L_WD = L_WG + 16384
L_SCR = L_WD + 8192
L_H = L_SCR + 1024
L_Q, QSTR = L_SCR + 1536, 2112
L_OOB = 0x30000
assert L_SCR + 8192 == 163840

sK, sV, sWS, sWF, sWL, sOUT, sDBG, sXI, sT = 28, 32, 36, 40, 44, 48, 52, 56, 96
sw, sg, sj, sb, ss, su, sring, srot, stmp, slayer = range(60, 70)
(sMLst, sMLld, sAst, sAld, sBst, sBld, sXst, sXld, sCst, sCld, sCS, sS1, sSC, sRow, sEst, sEld) = range(70, 86)
sWo, sWl = 86, 87
sM1 = 88
sspin, scmp = 94, 95
sclr, slead, sact = 3, 14, 15
sLO, sHI = 6, 7
sXW, sB2, svote = 24, 23, 22
sWo2, sWl2 = 8, 9
SPIN_LIMIT = 1 << 18

vL, vA16, vTRV, vRES = 0, 1, 2, 3
vQ, vO, vIX, vAI, vS = 8, 24, 56, 56, 64
vWG, vWD, vWQ, vCG, vCQ, vSEL, vX, vD = 8, 24, 32, 48, 50, 52, 56, 72
vKS, vKR = 240, 244
ORDER = [0, 1, 2, 3, 5, 6, 7, 4]
SLOT = {5: 2, 6: 4, 7: 0}
SCALE = 128 ** -0.5 * 1.4426950408889634
ONES = "0x3f803f80"


def f32(x):
    return "0x%08x" % struct.unpack("<I", struct.pack("<f", x))[0]


def q(r, n=4, k="v"):
    return "%s[%d:%d]" % (k, r, r + n - 1)


def srd(r):
    return "s[%d:%d]" % (r, r + 3)


ABOUT = """;
"""


class Gen:
    def __init__(self, depth=6, d0={5: 8, 6: 8}, burst=4, lag=2, tq=(2, 2, 3, 3), tg=(6, 6, 7, 7), ogate=(7, 3, 3, 3, 3),
                 sync=(4, 6, 9, 11, 13, 16, 18), clr1=4, ipf=24, tclr=25, tml=27, tfin=29, tp5=30,
                 dbl="pollXB,pollC,pollXD,pollE", at={}, kx=1, nst_=2, oahead=4, mlat=(208, 84), mltail=500, mlcut=1, p0=400,
                 win=32, near=1, force_slow=False, stamps=False, cyc=False, probe=None, jitter=None):
        self.__dict__.update(locals())
        self.a = Asm()
        self.nst = 0
        self.cold = []
        self.nslow = 0
        self.est = ()
        self.at = dict(pollA=(18, 34), pollB=(88,), pollXB=(8, 17), pollC=(0, 11), pollD=(84,), pollXD=(2, 10), pollE=(0, 11))
        self.at.update(at)
        self.stamp_names = []

    def stamp(self, name, per_layer=False):
        if self.jitter:
            self.nslow += 1
            L = "L_jit%d" % self.nslow
            self.a("s_memtime s[0:1]", "s_waitcnt lgkmcnt(0)", "s_mul_i32 s0, s0, 0x9e3779b1", "s_lshr_b32 s0, s0, %d" % (32 - self.jitter[0]),
                   "s_cmp_eq_u32 s0, 0", "s_cbranch_scc0 " + L, *["s_sleep %d" % self.jitter[1]] * self.jitter[2], L + ":")
            return
        if not self.stamps or (self.stamps is not True and name not in self.stamps):
            return
        a = self.a
        k = self.nst
        self.nst += 2 if per_layer else 1
        assert self.nst <= 28
        a("%s s[0:1]" % ("s_memtime" if self.cyc else "s_memrealtime"), "s_waitcnt lgkmcnt(0)")
        if per_layer:
            self.stamp_names += [name + "/1", name + "/2"]
            a("s_add_u32 m0, s%d, %d" % (slayer, k - 1), "v_writelane_b32 v4, s0, m0")
        else:
            self.stamp_names.append(name)
            a("v_writelane_b32 v4, s0, %d" % k)

    def mk_srd(self, d, p, size):
        self.a("s_mov_b32 s%d, s%d" % (d, p), "s_mov_b32 s%d, s%d" % (d + 1, p + 1),
               "s_mov_b32 s%d, %s" % (d + 2, size), "s_mov_b32 s%d, 0x20000" % (d + 3))

    def lin(self, d, t, *terms):
        first = True
        for sh, bits, sc in terms:
            r = d if first else t
            if sh + bits >= 6:
                src = vL
                if sh:
                    self.a("v_lshrrev_b32 v%d, %d, v0" % (r, sh)); src = r
            elif sh == 0:
                self.a("v_and_b32 v%d, %d, v0" % (r, (1 << bits) - 1)); src = r
            else:
                self.a("v_bfe_u32 v%d, v0, %d, %d" % (r, sh, bits)); src = r
            if first:
                if sc or src != d:
                    self.a("v_lshlrev_b32 v%d, %d, v%d" % (d, sc, src))
            else:
                self.a("v_lshl_add_u32 v%d, v%d, %d, v%d" % (d, src, sc, d))
            first = False

    def sexpr(self, d, const, *terms):
        a = self.a
        first = True
        for reg, mult in terms:
            r = d if first else 101
            if mult & (mult - 1) == 0:
                a("s_lshl_b32 s%d, s%d, %d" % (r, reg, mult.bit_length() - 1))
            else:
                a("s_mul_i32 s%d, s%d, %d" % (r, reg, mult))
            if not first:
                a("s_add_u32 s%d, s%d, s101" % (d, d))
            first = False
        if const:
            a("s_add_u32 s%d, s%d, 0x%x" % (d, d, const))

    def oob_unless(self, v, t, cond):
        self.a(cond, "v_mov_b32 v%d, 0x%x" % (t, OOB), "v_cndmask_b32 v%d, v%d, v%d, vcc" % (v, t, v))

    def even_only(self, v, t, cmp="0"):
        self.a("v_and_b32 v%d, 1, v0" % t)
        self.oob_unless(v, t, "v_cmp_eq_u32 vcc, %s, v%d" % (cmp, t))

    def st_intra(self, op, data, voff, soff, both=False):
        a = self.a
        slow = "%s %s, v%d, %s, s%d offen sc1" % (op, data, voff, srd(sWL), soff)
        a("%s %s, v%d, %s, s%d offen" % (op, data, voff, srd(sWF), soff))
        if both:
            tk = a.mark()
            a(slow)
            a.uncounted(tk)
            return
        self.nslow += 1
        L = "L_slow%d" % self.nslow
        a("s_cmp_eq_u32 s%d, 0" % (sWF + 2), "s_cbranch_scc1 " + L, L + "_b:")
        self.cold += [L + ":", slow, "s_branch %s_b" % L]

    def ld(self, r, voff, soff, off=0, n=4, rs=sWS):
        return "buffer_load_dword%s %s, v%d, %s, s%d offen offset:%d sc1" % (
            "x%d" % n if n > 1 else "", q(r, n) if n > 1 else "v%d" % r, voff, srd(rs), soff, off)

    def ld4(self, r, voff, soff):
        return [self.ld(r + k, voff, soff, 256 * k, n=1) for k in range(4)]

    def spin_count(self):
        return ["s_add_u32 s%d, s%d, 1" % (sspin, sspin), "s_cmp_lt_u32 s%d, 0x%x" % (sspin, SPIN_LIMIT), "s_cselect_b32 s%d, -2, -1" % scmp]

    def rounds(self, name):
        return 1 + self.dbl.split(",").count(name)

    def poll(self, loads, regs, acc, name, work=(), reinit=(), spec=None, again=None, extra=0):
        a = self.a
        L = "L_" + name
        k, n = self.rounds(name), len(loads)
        if again:
            self.check(regs, acc, len(regs), spec)
            a("s_cbranch_vccz %s_d" % L, L + ":", *loads)
            a(*self.spin_count())
            self.check(regs, acc, again * n + len(regs), spec)
            a("s_cbranch_vccnz " + L, "s_nop 2", L + "_d:")
        else:
            a("s_branch %s_w" % L, L + ":", *loads)
            a(*self.spin_count())
            a(*reinit)
            a(L + "_w:")
            self.check(regs, acc, (k - 1) * n + len(regs) + extra, spec)
            a(*work)
            a("s_cbranch_vccnz " + L, L + "_d:")
        if self.stamps is not True:
            self.stamp(name, True)

    def stats_poll(self, name, aux, r, st, loads):
        a = self.a
        self.check_or_poll(aux, [[r]], 7, name + "s", a.mark() - 1, work=st[:self.nst_])
        self.with_loads(name, st[self.nst_:], loads)

    def idle(self, n):
        if n >= 16:
            self.a("s_sleep %d" % (n // 16))
        if n > 0 and n % 16:
            self.a("s_nop %d" % (n % 16 - 1))

    def with_loads(self, name, work, loads):
        pos = 0
        for d in self.at[name][:self.rounds(name)]:
            self.a(*work[pos:pos + d])
            self.idle(pos + d - max(pos, len(work)))
            self.a(*loads)
            pos += d
        self.a(*work[pos:])
        return self.rounds(name)

    def check(self, regs, acc, n, spec=None):
        a = self.a
        have = None
        for i, part in enumerate(regs):
            if n:
                a("s_waitcnt vmcnt(%d)" % (n - 1 - i))
            if spec and n == len(regs):
                spec(i)
            pool = ([have] if have is not None else []) + list(part)
            while len(pool) > 1:
                m = min(3, len(pool))
                a(("v_max3_u32 v%d, v%d, v%d, v%d" if m == 3 else "v_max_u32 v%d, v%d, v%d") % (acc, *pool[:m]))
                pool = [acc] + pool[m:]
            have = pool[0]
            if i == len(regs) - 1:
                a("v_cmp_lt_u32 vcc, s%d, v%d" % (scmp, have))
            if spec and n != len(regs):
                spec(i)

    def check_or_poll(self, loads, regs, acc, name, wait, pre=(), work=()):
        a = self.a
        tk = a.mark()
        a("s_branch L_%s_c" % name, "L_%s_r:" % name, *pre)
        a(*loads)
        a(*self.spin_count())
        a("s_waitcnt vmcnt(0)", "L_%s_c:" % name)
        a.uncounted(tk)
        a.wait_vm(wait)
        self.check(regs, acc, 0)
        a(*work)
        a("s_cbranch_vccnz L_%s_r" % name)

    def mfma(self, d, A, B, c):
        self.a("v_mfma_f32_16x16x32_bf16 %s, %s, %s, %s" % (q(d), A, B, q(d) if c else "0"))

    def smf(self, d, A, B, ix=None):
        self.a("v_smfmac_f32_16x16x64_bf16 %s, %s, %s, v%d" % (q(d), A, B, ix or vIX))

    def mk_ix(self, v):
        self.a("v_and_b32 v%d, 1, v0" % v, "v_mul_u32_u24 v%d, 0xaaaa, v%d" % (v, v), "v_add_u32 v%d, 0x4444, v%d" % (v, v))

    def dpp(self, op, d, s0, s1, ctl, rm="0xf"):
        self.a("%s_dpp v%d, v%d, v%d %s row_mask:%s bank_mask:0xf" % (op, d, s0, s1, ctl, rm))

    def pack_pairs(self, d, v):
        self.a("v_mov_b32_dpp v%d, v%d quad_perm:[1,1,3,3] row_mask:0xf bank_mask:0xf" % (d, v),
               "v_cvt_pk_bf16_f32 v%d, v%d, v%d" % (d, v, d))

    def tile_issue(self, T, between=None):
        a = self.a
        if T:
            a("s_add_u32 s%d, s%d, 0x20000" % (srot, srot), "s_and_b32 s%d, s%d, 0x1e0000" % (srot, srot))
        a("s_or_b32 s%d, s%d, s%d" % (stmp, srot, su), "s_add_u32 m0, s%d, %d" % (sring, (T % 6) * 4096))
        if T >= 6:
            a("s_waitcnt lgkmcnt(%d)" % (0 if between else 1))
        for jj in range(4):
            self.throttle(T, 4 * T + jj >= 128 - self.burst)
            va = vKS + jj if T < 16 else 5 + (jj & 1)
            a("buffer_load_dwordx4 v%d, %s, s%d offen offset:%d nt lds" % (va, srd(sK if T < 16 else sV), stmp, jj * 1024))
            self.ltok.append(a.mark())
            self.tok[T] = a.mark()
            if between:
                between(jj)
        if 16 <= T < 31:
            a("v_xor_b32 v5, 64, v5", "v_xor_b32 v6, 64, v6")

    def throttle(self, T, burst):
        d = self.d0.get(T, self.depth)
        if T > 1 and not burst and d < len(self.ltok):
            self.a.wait_vm(self.ltok[-d])

    def vreg(self, p, i):
        return 128 + 64 * (p >> 1) + 8 * i + 4 * (p & 1) if p < 4 else (96 if p == 4 else vS) + 4 * i

    def v_reads(self, p, dst=None):
        slot = (16 + 2 * p) % 6
        for i in range(8):
            for h in range(2):
                d = dst(i, h) if dst else q(self.vreg(p, i) + 2 * h, 2)
                self.a("ds_read_b64_tr_b16 %s, v%d offset:%d ; mem=v" % (d, vAI + i if i else vTRV, slot * 4096 + h * 512))

    def tile_consume(self, T):
        a = self.a
        if T < 16:
            a.wait_vm(self.tok[T])
            for st in range(4):
                a("ds_read_b128 %s, v%d offset:%d" % (q(16 * T + 4 * st, 4, "a"), vKR + st, (T % 6) * 4096))
        elif T & 1:
            a.wait_vm(self.tok[T])
            self.v_reads((T - 16) >> 1)

    def mk_ai(self):
        for i in range(1, 8):
            self.a("v_xor_b32 v%d, %d, v%d" % (vAI + i, i << 5, vTRV))
        self.mk_ix(vIX)

    def weight_load(self, kind, k, T, va=52):
        a = self.a
        t = va + 1
        pitch = {"q": 8192, "g": 3584, "d": 1024, "o": 1024}[kind]
        if k == 0:
            if kind == "o":
                self.lin(va, t, (5, 1, 14), (3, 2, 10), (0, 3, 4))
                self.mk_srd(sT, 12, "0x400000")
                self.sexpr(sWo, 0, (sg, 512 * 1024), (sb, 128 * 1024), (sw, 4096), (ss, 128))
                self.sexpr(sWl, L_WO, (sw, 4096))
            else:
                a("v_lshrrev_b32 v%d, 3, v0" % va, "v_mul_u32_u24 v%d, %d, v%d" % (va, pitch, va), "v_and_b32 v%d, 7, v0" % t,
                  "v_lshl_add_u32 v%d, v%d, 4, v%d" % (va, t, va))
            a("v_and_b32 v%d, 32, v0" % t, "v_xor_b32 v%d, v%d, v%d" % (va, va, t), "v_xor_b32 v%d, 64, v%d" % (t, va))
            if kind == "q":
                self.mk_srd(sT, 10, "0x400000")
                self.sexpr(sWo, 0, (sb, 128 * pitch), (sw, 32 * pitch), (sg, 1024), (ss, 128))
                self.sexpr(sWl, L_WQ, (sw, 4096))
            if kind in "gd":
                a("s_lshr_b32 s100, s%d, 1" % sg, "s_mul_i32 s100, s100, 7", "s_and_b32 s%d, s%d, 1" % (stmp, sg),
                  "s_lshl_b32 s%d, s%d, 2" % (stmp, stmp), "s_add_u32 s100, s100, s%d" % stmp)
            if kind == "g":
                a("s_and_b32 s%d, s%d, 3" % (stmp, ss), "s_add_u32 s100, s100, s%d" % stmp)
                self.sexpr(sWo, 0, (sb, 128 * pitch), (sw, 32 * pitch), (100, 128))
                self.sexpr(sWl, L_WG, (sw, 4096))
                a("s_bitcmp1_b32 s%d, 0" % sact, "s_cselect_b32 s100, 0x%x, 0" % (512 * pitch))
                self.mk_srd(sT, 16, "s100")
                a("s_cmp_ge_u32 s%d, 4" % ss, "s_cselect_b32 s%d, s18, s16" % sT, "s_cselect_b32 s%d, s19, s17" % (sT + 1))
            if kind == "d":
                a("s_add_u32 s100, s100, s%d" % sb)
                self.sexpr(sWo2, 0, (100, 64 * pitch), (sw, 16 * pitch), (ss, 128))
                self.sexpr(sWl2, L_WD, (sw, 2048))
                a("s_bitcmp1_b32 s%d, 1" % sact, "s_cselect_b32 s100, 0x%x, 0" % (1792 * pitch))
                self.mk_srd(sXI, 20, "s100")
            if T is None:
                return
        self.weight_issue(kind, k, T, va)

    def weight_issue(self, kind, k, T, va):
        a = self.a
        pitch = {"q": 8192, "g": 3584, "d": 1024, "o": 1024}[kind]
        so, sl, rs = (sWo2, sWl2, sXI) if kind == "d" else (sWo, sWl, sT)
        a("s_add_u32 s%d, s%d, 0x%x" % (stmp, so, (32 if kind == "o" else 8) * pitch * k), "s_add_u32 m0, s%d, 0x%x" % (sl, 1024 * k))
        if T < 31:
            self.throttle(T, False)
        a("buffer_load_dwordx4 v%d, %s, s%d offen nt lds" % (va + (k & 1), srd(rs), stmp))
        self.ltok.append(a.mark())
        self.wtok[kind] = a.mark()

    def lines(self, fn, *args):
        keep, self.a = self.a, Asm()
        fn(*args)
        out, self.a = [i.text for i in self.a.l], keep
        return out

    def sched(self, lines, pre=()):
        out, t = schedule(lines, pre)
        self.a(*out)
        return t

    def s_zero(self):
        for r in range(vS, vS + 32, 2):
            self.a("v_mov_b64 %s, 0" % q(r, 2))

    def qk(self):
        a = self.a
        for k, p in enumerate(ORDER):
            d = vS + 4 * k
            for sg_ in range(2):
                for hf in range(2):
                    self.smf(d, q(vQ + 8 * sg_ + 4 * hf), q(16 * (2 * p + sg_) + 8 * hf, 8, "a"))
            a("v_add_f32 v%d, v%d, v%d" % (d, d, d + 1), "v_add_f32 v%d, v%d, v%d" % (d + 1, d + 2, d + 3))
            a("v_max3_f32 v7, v7, v%d, v%d" % (d, d + 1) if k else "v_max_f32 v7, v%d, v%d" % (d, d + 1))

    def ml_off(self, v, t):
        self.a("v_mov_b32 v%d, v%d" % (v, vA16), "v_and_b32 v%d, 15, v0" % t)
        self.oob_unless(v, t, "v_cmp_eq_u32 vcc, 0, v%d" % t)

    def softmax(self, vw, voff):
        a = self.a
        for k in (1, 2, 4, 8):
            self.dpp("v_max_f32", 7, 7, 7, "row_ror:%d" % k)
        a("v_mul_f32 v20, s%d, v7" % sSC, "s_mov_b32 s100, %s" % ONES)
        for k in range(8):
            r = q(vS + 4 * k, 2)
            a("v_pk_fma_f32 %s, %s, s[%d:%d], v[20:21] op_sel_hi:[1,0,0] neg_lo:[0,0,1] neg_hi:[0,0,1]" % (r, r, sSC, sSC + 1))
        for k in range(8):
            r = vS + 4 * k
            a("v_exp_f32 v%d, v%d" % (r, r), "v_exp_f32 v%d, v%d" % (r + 1, r + 1), "v_cvt_pk_bf16_f32 v%d, v%d, v%d" % (r + 2, r, r + 1))
            if k & 1:
                a("ds_write2st64_b32 v%d, v%d, v%d offset0:%d offset1:%d ; mem=p%d" % (vw, r - 2, r + 2, k - 1, k, k - 1))
        for k in range(8):
            a("v_dot2_f32_bf16 v21, v%d, s100, %s" % (vS + 4 * k + 2, "v21" if k else "0"))
        for k in (1, 2, 4, 8):
            self.dpp("v_add_f32", 21, 21, 21, "row_ror:%d" % k)
        self.st_intra("buffer_store_dwordx2", "v[20:21]", voff, sMLst, both=True)

    def ml_finish(self, r):
        a = self.a
        a("v_sub_f32 v%d, v%d, v20" % (r, r), "v_sub_f32 v%d, v%d, v20" % (r + 2, r + 2),
          "v_exp_f32 v%d, v%d" % (r, r), "v_exp_f32 v%d, v%d" % (r + 2, r + 2),
          "v_mul_f32 v7, v%d, v%d" % (r, r + 1), "v_fmac_f32 v7, v%d, v%d" % (r + 2, r + 3))
        for k in (1, 2, 4, 8):
            self.dpp("v_add_f32", 7, 7, 7, "row_ror:%d" % k)
        a("v_rcp_f32 v7, v7")

    def lds_or_zero(self, v, t, mask, val=0):
        self.a("v_and_b32 v%d, %d, v0" % (t, mask), "v_cmp_eq_u32 vcc, %d, v%d" % (val, t), "v_mov_b32 v%d, 0x%x" % (t, L_OOB),
               "v_cndmask_b32 v%d, v%d, v%d, vcc" % (v, t, v))

    def p_read(self, k, va, buf):
        self.a("ds_read_b128 %s, v%d offset:%d ; mem=p%d" % (q(vQ + 4 * buf), va, k * 256, k & ~1))

    def pv_dense(self, p, buf, lgkm=None):
        for i in range(8):
            if lgkm is not None:
                self.a("s_waitcnt lgkmcnt(%d)" % lgkm(i))
            self.mfma(vO + 4 * i, q(vQ + 4 * buf), q(self.vreg(p, i)), p > 0)

    def o_addr(self):
        self.sexpr(4, L_SCR, (sw, 512))
        self.a("v_and_b32 v22, 48, v0", "v_mul_u32_u24 v22, 112, v22", "v_add3_u32 v22, v22, v%d, s4" % vA16)

    def o_write(self, t0, t1, sparse):
        a = self.a
        for h, t in enumerate((t0, t1)):
            for i in range(4):
                o = vO + 16 * h + 4 * i
                a("v_add_f32 v%d, v%d, v%d" % (t + i, o, o + 1) if sparse else "v_mul_f32 v%d, v7, v%d" % (t + i, o))
            if sparse:
                for i in (0, 2):
                    a("v_pk_mul_f32 %s, %s, v[6:7] op_sel:[0,1] op_sel_hi:[1,1]" % (q(t + i, 2), q(t + i, 2)))
            a("ds_write_b128 v22, %s offset:%d" % (q(t), 256 * h))

    def w_tiles(self, kinds, va, t):
        a = self.a
        last = None
        for kind, dst in kinds:
            qs = 11 if kind == "d" else 12
            if qs != last:
                self.lin(va, t, (4, 1, 5), (3, 1, 6))
                a("s_lshl_b32 s100, s%d, 5" % sw, "v_xor_b32 v%d, s100, v%d" % (va, va), "v_add_u32 v%d, 0x%x, v%d" % (va, L_WQ, va))
                for sh, bits, sc in ((5, 1, qs), (3, 1, 10), (4, 1, 9), (2, 1, 7), (0, 2, 3)):
                    a("v_bfe_u32 v%d, v0, %d, %d" % (t, sh, bits), "v_lshl_add_u32 v%d, v%d, %d, v%d" % (va, t, sc, va))
                last = qs
            base = {"q": L_WQ, "g": L_WG, "d": L_WD}[kind] - L_WQ
            for kb in range(2 if kind == "d" else 4):
                for h in range(2):
                    a("ds_read_b64_tr_b16 %s, v%d offset:%d" % (q(dst + 4 * kb + 2 * h, 2), va,
                                                                  base + (kb & 1) * (2 << qs) + (kb >> 1) * 2048 + h * 256))

    def gemv_zero(self, d):
        self.a("v_mov_b64 %s, 0" % q(d, 2), "v_mov_b64 %s, 0" % q(d + 6, 2))

    def gemv4(self, x, W, d, ix):
        for k in range(2):
            self.smf(d + 4 * k, q(x), q(W + 8 * k, 8), ix)

    def gemv4_fin(self, out, d):
        self.a("v_add_f32 v%d, v%d, v%d" % (d, d, d + 1), "v_add_f32 v%d, v%d, v%d" % (d + 6, d + 6, d + 7),
               "v_add_f32 v%d, v%d, v%d" % (d, d, d + 6))
        self.pack_pairs(out, d)

    def colsum_pub(self, W, ones, d, va, t, off, *terms):
        a = self.a
        for r in range(4):
            a("v_mov_b32 v%d, %s" % (ones + r, ONES))
        self.lin(va, t, (0, 1, 10), (1, 3, 4))
        self.oob_unless(va, t, "v_cmp_gt_u32 vcc, 16, v0")
        self.sexpr(100, off, (sCS, 1), (sb, 4), (sw, 128), *terms)
        a("s_waitcnt lgkmcnt(0)")
        for kb in range(4):
            self.mfma(d, q(ones), q(W + 4 * kb), kb > 0)
        self.st_intra("buffer_store_dword", "v%d" % d, va, 100)

    def colsum_ld(self, r, off, sel):
        self.sexpr(100, off, (sCS, 1), (sel, 2048))
        self.a(self.ld(r, vA16, 100, 0), self.ld(r + 4, vA16, 100, 1024))

    def colsum_fin(self, r, c):
        for k in range(2):
            b = r + 4 * k
            self.a("v_add_f32 v%d, v%d, v%d" % (b, b, b + 1), "v_add_f32 v%d, v%d, v%d" % (b + 2, b + 2, b + 3),
                   "v_add_f32 v%d, v%d, v%d" % (b, b, b + 2), "v_mul_f32 v%d, %s, v%d" % (c + k, f32(-1.0 / 512), b))

    def stats(self, x, t, att):
        a = self.a
        s1, s2 = t, t + 1
        a("s_mov_b32 s100, %s" % ONES)
        for k in range(4):
            a("v_dot2_f32_bf16 v%d, v%d, s100, %s" % (s1, x + k, "v%d" % s1 if k else "0"),
              "v_dot2_f32_bf16 v%d, v%d, v%d, %s" % (s2, x + k, x + k, "v%d" % s2 if k else "0"))
        a("v_permlane32_swap_b32 v%d, v%d" % (s1, s2), "v_add_f32 v%d, v%d, v%d" % (s1, s1, s2))
        self.stats_fin(s1, t, att)

    def slice_sums(self, t, voff, soff):
        a = self.a
        a("v_mul_f32 v%d, v%d, v%d" % (t + 1, vRES, vRES))
        self.dpp("v_add_f32", t, vRES, vRES, "row_ror:8")
        self.dpp("v_add_f32", t + 1, t + 1, t + 1, "row_ror:8")
        a("v_cndmask_b32 v%d, v%d, v%d, s[%d:%d]" % (t, t, t + 1, sM1, sM1 + 1))
        for ctl in ("quad_perm:[1,0,3,2]", "quad_perm:[2,3,0,1]", "row_half_mirror"):
            self.dpp("v_add_f32", t, t, t, ctl)

    def st_off(self, v, t):
        self.lin(v, t, (5, 1, 8), (4, 1, 9), (3, 1, 7))
        self.a("v_and_b32 v%d, 7, v0" % t, "v_add_u32 v%d, s%d, v%d" % (t, sw, t))
        self.oob_unless(v, t, "v_cmp_eq_u32 vcc, 0, v%d" % t)

    def stats_fin(self, x, t, att):
        a = self.a
        s1, s2 = t, t + 1
        for k in (1, 2, 4, 8):
            self.dpp("v_add_f32", s1, x if k == 1 else s1, x if k == 1 else s1, "row_ror:%d" % k)
        self.dpp("v_add_f32", s1, s1, s1, "row_bcast:15", "0xa")
        a("v_readlane_b32 s%d, v%d, 31" % (sS1, s1), "v_mul_f32 v%d, %s, v%d" % (s1, f32(1.0 / 512), s1),
          "v_mov_b32 v%d, s%d" % (s2, sS1), "v_mul_f32 v%d, %s, v%d" % (s2, f32(1.0 / 512), s2),
          "v_fma_f32 v%d, -v%d, v%d, v%d" % (s1, s2, s2, s1), "v_max_f32 v%d, 0, v%d" % (s1, s1),
          "v_add_f32 v%d, %s, v%d" % (s1, f32(1e-5), s1))
        if att:
            a("v_rsq_f32 v%d, v%d" % (s1, s1), "v_mul_f32 v%d, %s, v%d" % (s1, f32(SCALE), s1))
        else:
            a("v_rcp_f32 v%d, v%d" % (s1, s1), "s_nop 0")
        a("v_readlane_b32 s%d, v%d, 63" % (sSC, s1))

    def sum4_init(self, acc, c):
        self.a("v_mul_f32 v%d, s%d, v%d" % (acc, sS1, c), "v_mul_f32 v%d, s%d, v%d" % (acc + 1, sS1, c + 1))

    def sum4(self, x, acc, init):
        for k in range(4):
            c = acc if k else init
            self.a("v_dot2_f32_bf16 v%d, v%d, s%d, v%d" % (acc, x + k, sLO, c),
                   "v_dot2_f32_bf16 v%d, v%d, s%d, v%d" % (acc + 1, x + k, sHI, c + 1))

    def q_addrs(self, vw, vr, t):
        a = self.a
        self.lin(vw, t, (3, 3, 5), (0, 1, 4), (1, 2, 2))
        self.sexpr(100, L_Q, (sw, QSTR))
        a("v_add_u32 v%d, s100, v%d" % (vw, vw))
        self.lin(vr, t, (4, 2, 5), (0, 1, 4))
        a("v_bfe_u32 v%d, v0, 2, 2" % t, "v_mul_u32_u24 v%d, %d, v%d" % (t, QSTR, t), "v_add_u32 v%d, v%d, v%d" % (vr, vr, t),
          "v_add_u32 v%d, 0x%x, v%d" % (vr, L_Q, vr), "v_mov_b32 v%d, v%d" % (vr + 1, vr))
        self.lds_or_zero(vr, t, 2, 0)
        self.lds_or_zero(vr + 1, t, 2, 2)

    def q_assemble(self, acc, vw, vr, fill=()):
        a = self.a
        a("v_cvt_pk_bf16_f32 v%d, v%d, v%d" % (acc, acc, acc + 1), "ds_write_b32 v%d, v%d" % (vw, acc), *fill)
        a("s_waitcnt lgkmcnt(0)", "s_barrier")
        rd = ["ds_read_b128 %s, v%d offset:%d" % (q(vQ + 4 * st), vr + (st >> 1), (st & 1) * 128) for st in range(4)]
        a(*rd)
        return rd

    def late_loads(self, name):
        self.layer1(name)
        for k in range(2):
            self.weight_issue("d", k, 32, 62)
        self.touch(59)
        self.a(name + ":")

    def next_region(self):
        for r in (sWS, sWF, sWL):
            self.a("s_add_u32 s%d, s%d, 0x%x" % (r, r, LS), "s_addc_u32 s%d, s%d, 0" % (r + 1, r + 1))
        self.a("s_sub_u32 s%d, s%d, 0x%x" % (sCS, sCS, LS))

    def leader_fill(self):
        a = self.a
        a("v_mov_b32 v8, -1", "v_mov_b32 v9, -1", "v_mov_b32 v10, -1", "v_mov_b32 v11, -1", "v_lshlrev_b32 v12, 2, v0",
          "s_or_b32 s%d, s%d, s%d" % (slead, sj, sw), "s_cmp_eq_u32 s%d, 0" % slead, "s_cbranch_scc0 L_nolead0")
        tk = a.mark()
        a("s_lshl_b32 s100, s%d, 17" % sg, "buffer_store_dword v8, v12, %s, s100 offen sc1" % srd(sWS), "L_nolead0:")
        a.uncounted(tk)
        self.tok_lead = tk

    def leader_flag(self, word, name, tok=None, val="1"):
        a = self.a
        a("s_cmp_eq_u32 s%d, 0" % slead, "s_cbranch_scc0 " + name)
        if tok is not None:
            a.wait_vm(tok)
        tk = a.mark()
        a("v_mov_b32 v55, %s" % val, "v_lshlrev_b32 v54, 8, v0", "s_lshl_b32 s100, s%d, 2" % sg,
          "buffer_store_dword v55, v54, %s, s100 offen offset:%d sc1" % (srd(sDBG), word), name + ":")
        a.uncounted(tk)

    def flag_load(self, v, word, own):
        a = self.a
        if own:
            a("s_lshl_b32 s100, s%d, 2" % sg, "v_mov_b32 v%d, s100" % v)
        else:
            a("v_and_b32 v%d, 7, v0" % v, "v_lshlrev_b32 v%d, 2, v%d" % (v, v))
        return a("buffer_load_dword v%d, v%d, %s, 0 offen offset:%d sc1" % (v, v, srd(sDBG), word))

    def flag_check(self, v, word, own, tok, name):
        a = self.a
        a.wait_vm(tok)
        tk = a.mark()
        a("s_branch %s_c" % name, name + "_s:", "s_sleep 8")
        self.flag_load(v, word, own)
        a("s_add_u32 s%d, s%d, 1" % (sspin, sspin), "s_cmp_lt_u32 s%d, 0x%x" % (sspin, SPIN_LIMIT), "s_waitcnt vmcnt(0)",
          "s_cbranch_scc0 %s_d" % name, name + "_c:", "v_cmp_eq_u32 vcc, 0, v%d" % v, "s_cbranch_vccnz %s_s" % name, name + "_d:")
        a.uncounted(tk)

    def fill_intra(self, v, t, d, start, per_wave):
        a = self.a
        self.sexpr(100, start, (sg, 1 << 17), (sj, 4 * per_wave), (sw, per_wave))
        a("v_mov_b32 v%d, v%d" % (v, vA16))
        self.oob_unless(v, t, "v_cmp_gt_u32 vcc, %d, v0" % (per_wave // 16))
        self.st_intra("buffer_store_dwordx4", q(d), v, 100)

    def sentinels(self, d):
        for r in range(4):
            self.a("v_mov_b32 v%d, -1" % (d + r))

    def prologue(self):
        a = self.a
        if self.stamps:
            a("%s s[92:93]" % ("s_memtime" if self.cyc else "s_memrealtime"))
        a("s_load_dwordx16 s[4:19], s[0:1], 0", "s_load_dwordx8 s[20:27], s[0:1], 64",
          "v_lshrrev_b32 v1, 6, v0", "s_cmpk_ge_u32 s2, 256", "v_readfirstlane_b32 s%d, v1" % sw, "s_cbranch_scc1 L_end")
        a("v_and_b32 v0, 63, v0", "s_and_b32 s%d, s2, 7" % sg, "s_lshr_b32 s%d, s2, 3" % sj, "s_lshr_b32 s%d, s2, 6" % sb,
          "s_and_b32 s%d, s%d, 7" % (ss, sj), "s_lshl2_add_u32 s%d, s%d, s%d" % (su, ss, sw),
          "s_lshl3_add_u32 s100, s%d, s%d" % (sb, sg), "s_lshl_b32 s100, s100, 21", "s_mul_i32 s%d, s%d, %d" % (sring, sw, RING))
        a("s_lshl_b32 s%d, s%d, 12" % (su, su), "s_lshl2_add_u32 s%d, s%d, s%d" % (srot, sb, sg),
          "s_and_b32 s%d, s%d, 15" % (srot, srot), "s_lshl_b32 s%d, s%d, 17" % (srot, srot))
        a("v_lshrrev_b32 v5, 4, v0", "v_and_b32 v6, 15, v0", "v_xor_b32 v7, v5, v6", "v_lshlrev_b32 v7, 4, v7",
          "v_lshl_add_u32 v%d, v5, 8, v7" % vKS)
        a("v_xor_b32 v%d, 64, v%d" % (vKS + 1, vKS), "v_xor_b32 v%d, 128, v%d" % (vKS + 2, vKS), "v_xor_b32 v%d, 64, v%d" % (vKS + 3, vKS + 2),
          "s_lshl_b32 s98, s2, 10", "s_bitset1_b32 s98, 22", "v_mov_b32 v9, s98", "v_xor_b32 v10, 0x2000, v9",
          "s_lshl_b32 s%d, 1, 21" % (sK + 2), "s_mov_b32 s%d, 0x20000" % (sK + 3))
        self.tok, self.ltok, self.wtok = {}, [], {}
        first = self.lines(self.tile_issue, 0)
        self.tok, self.ltok = {}, []
        a(*first[:2])
        a("s_waitcnt lgkmcnt(0)", "global_load_dword v95, v9, s[26:27] sc1")
        tok_cal = a.mark()
        a("global_load_dword v95, v10, s[26:27] offset:128 sc1", "s_add_u32 s%d, s6, s100" % sK, "s_addc_u32 s%d, s7, 0" % (sK + 1))
        for x in first[2:]:
            self.ltok.append(a(x))
        self.tok[0] = a.mark()
        a("s_cmp_eq_u32 s%d, 0" % sw, "s_cbranch_scc0 L_novote")
        a.wait_vm(tok_cal)
        a("s_sleep 1", "s_getreg_b32 s99, hwreg(HW_REG_IB_STS, 0, 4)", "L_novote:")
        self.tile_issue(1)
        a("s_add_u32 s%d, s8, s100" % sV, "s_addc_u32 s%d, s9, 0" % (sV + 1),
          "s_mov_b32 s%d, 0x200000" % (sV + 2), "s_mov_b32 s%d, 0x20000" % (sV + 3))
        a("v_lshl_add_u32 v%d, v6, 8, v7" % vKR, "v_add_u32 v%d, s%d, v%d" % (vKR, sring, vKR))
        for st in range(1, 4):
            a("v_xor_b32 v%d, %d, v%d" % (vKR + st, st << 6, vKR))
        a("v_lshlrev_b32 v%d, 4, v0" % vA16)
        self.mk_srd(sDBG, 24, "256")
        self.mk_srd(sWS, 26, "0x%x" % WS_SIZE)
        self.mk_srd(sOUT, 22, "4096")
        a("s_add_u32 s%d, s26, 0x%x" % (sXW, OFF_XW), "s_addc_u32 s%d, s27, 0" % (sXW + 1),
          "s_mov_b32 s%d, 0x100000" % (sXW + 2), "s_mov_b32 s%d, 0x20000" % (sXW + 3))
        if self.stamps:
            a("v_mov_b32 v4, 0", "v_writelane_b32 v4, s92, 0")
            self.nst = 1
            self.stamp_names.append("entry")
        self.stamp("start")
        a("s_cmp_gt_u32 s99, 4", "s_cselect_b32 s%d, 16, 0" % svote)
        self.setup_b()
        self.setup_c()

    def setup_a(self):
        a = self.a
        self.mk_srd(sXI, 4, "4096")
        self.lin(6, 7, (4, 2, 6), (2, 2, 10), (0, 2, 4))
        self.lin(5, 7, (5, 1, 10), (4, 1, 11), (0, 4, 1))
        a("s_lshl_b32 s100, s%d, 8" % sb, "s_lshl_b32 s101, s%d, 10" % sb, "s_lshl_b32 s%d, s%d, 5" % (stmp, sj),
          "buffer_load_dwordx4 %s, v6, %s, s100 offen" % (q(vX), srd(sXI)),
          "buffer_load_dwordx4 %s, v%d, %s, s101 offen" % (q(vX + 4), vA16, srd(sXI)),
          "buffer_load_ushort v%d, v5, %s, s%d offen" % (vRES, srd(sXI), stmp))

    def early_fill(self):
        a = self.a
        self.sexpr(100, 0, (sj, 32768), (sg, 2048), (sw, 512))
        a("v_mov_b32 v12, v%d" % vA16)
        self.oob_unless(12, 13, "v_cmp_gt_u32 vcc, 32, v0")
        a("buffer_store_dwordx4 v[8:11], v12, %s, s100 offen sc1" % srd(sXW))

    def setup_b(self):
        a = self.a
        self.mk_srd(sWF, sWS, "0")
        self.mk_srd(sWL, sWS, "0x%x" % WS_SIZE)
        G = (sg, 1 << 17)
        self.sexpr(sCS, 2 * LS, G)
        a("s_lshr_b32 s%d, s%d, 1" % (stmp, ss), "s_and_b32 s100, s%d, 1" % ss)
        self.sexpr(sEst, OFF_E, G, (stmp, 1024), (100, 128), (sw, 32), (sb, 256))
        self.sexpr(sEld, OFF_E, G, (sb, 4096), (sw, 1024))
        self.sexpr(sMLld, OFF_ML, G, (sb, 1024))
        a("s_lshr_b32 s%d, s%d, 9" % (sMLst, su), "s_add_u32 s%d, s%d, s%d" % (sMLst, sMLst, sMLld),
          "s_mov_b32 s%d, 0" % slayer, "s_mov_b32 s%d, 0" % sspin, "s_mov_b32 s%d, -2" % scmp,
          "s_mov_b32 s%d, 0x3f80" % sLO, "s_mov_b32 s%d, 0x3f800000" % sHI,
          "s_and_b32 s100, s%d, 3" % ss, "s_cmp_eq_u32 s100, 3", "s_cselect_b32 s%d, 0, 1" % sact,
          "s_cmp_eq_u32 s%d, 3" % sb, "s_cselect_b32 s100, 0, 2", "s_or_b32 s%d, s%d, s100" % (sact, sact),
          "s_bitcmp1_b32 s%d, 0" % sg, "s_cselect_b32 s%d, s%d, 3" % (sact, sact))

    def setup_c(self):
        a = self.a
        G = (sg, 1 << 17)
        a("s_lshr_b32 s%d, s%d, 2" % (stmp, ss), "s_and_b32 s100, s%d, 3" % ss)
        self.sexpr(sAst, OFF_A, G, (sw, 8192), (stmp, 4096), (sb, 1024), (100, 256))
        self.sexpr(sCst, OFF_C, G, (100, 4096), (stmp, 128), (sw, 32), (sb, 256))
        self.sexpr(sAld, OFF_A, G, (sb, 8192), (sw, 2048))
        self.sexpr(sCld, OFF_C, G, (sb, 4096), (sw, 1024))
        self.sexpr(sBst, 0, (su, 8), (sg, 512), (sb, 128))
        self.sexpr(sBld, 0, (sj, 32768))
        a("s_lshr_b32 s%d, s%d, 1" % (stmp, sj), "s_and_b32 s100, s%d, 1" % sj)
        self.sexpr(sXst, OFF_XB, G, (stmp, 256), (100, 32))
        self.sexpr(sXld, OFF_XB, G, (sb, 1024))
        self.sexpr(sRow, OFF_ST, G)
        a("s_mov_b32 s%d, 0xff00ff00" % sM1, "s_mov_b32 s%d, 0xff00ff00" % (sM1 + 1))
        self.lin(vTRV, 7, (2, 1, 12), (4, 2, 10), (3, 1, 8), (4, 1, 7), (2, 1, 6), (3, 1, 5), (0, 2, 3))
        a("v_add_u32 v%d, s%d, v%d" % (vTRV, sring, vTRV))

    def part_off(self, v, t, bs, cmp="0"):
        self.lin(v, t, (4, 2, bs), (0, 4, 1))
        self.even_only(v, t, cmp)

    def group_flag(self, k, val):
        a = self.a
        a("v_mov_b32 v14, %s" % val, "v_add_u32 v15, s%d, v0" % sw, "v_lshlrev_b32 v15, 24, v15")
        self.sexpr(100, 128 * k, (sg, 1 << 17), (sj, 4))
        self.st_intra("buffer_store_dword", "v14", 15, 100)

    def stream(self):
        a = self.a
        lag = self.lag
        t_dl, t_f1, t_l1, t_c1, t_f2, t_l2, t_c2 = self.sync
        wl = {}
        for kind, ts in (("q", self.tq), ("g", self.tg)):
            for k, T in enumerate(ts):
                wl.setdefault(T, []).append((kind, k))
        tqk = max(t_c2 + 2, 16 + lag)
        assert self.clr1 <= t_dl and self.tq[-1] + 2 <= t_c1 and self.tg[-1] + 2 <= t_f2
        pvat = {}
        for p in range(5):
            pvat.setdefault(max(tqk + 3 + (p >> 1), 17 + 2 * p + lag), []).append(p)
        assert min(self.ipf, self.tml, self.tclr) >= tqk + 3 and max(pvat) < 32
        vF = 94
        G17 = "s_lshl_b32 s101, s%d, 17" % sg
        qk = None
        assert self.tml + 2 <= self.tfin <= self.tp5 and max(pvat) <= self.tp5

        def lds_pv(p):
            a("; PV of a group that stays in LDS")
            self.p_read(ORDER.index(p), 16, p & 1)
            if p == self.ogate[0]:
                a("; Wo follows once most of V has landed")
                for k in range(4):
                    a.wait_vm(self.tok[31] - self.ogate[1 + k])
                    self.weight_issue("o", k, 31, 18)
            a.wait_vm(self.tok[17 + 2 * p])
            self.sched(self.lines(self.v_reads, p) + self.lines(self.pv_dense, p, p & 1)
                       + (self.lines(self.o_write, 8, 16, False) if p == 7 else []))
        for T in range(1, 32):
            if T == 16:
                self.lin(5, 7, (4, 2, 8), (0, 4, 4))
                a("v_and_b32 v7, 16, v0", "v_lshlrev_b32 v7, 1, v7", "v_xor_b32 v5, v5, v7", "v_xor_b32 v6, 128, v5")
                self.mk_ai()
            between = None
            if T in (tqk + 1, tqk + 2):
                def between(jj):
                    a(*qk.pop(0))
            if T > 1:
                a("; tile %d (%s)" % (T, "K" if T < 16 else "V"))
            if T > 1:
                self.tile_issue(T, between)
            if T == 1:
                a("; code into L2; wave 0 of workgroup j = 0 resets the kv head's two flag arrays; x quarter, x row and residual slice")
                self.code_prefetch(93, 98, "L_pc0", "L_pc0")
                self.leader_fill()
            for kind, k in wl.get(T, []):
                self.weight_load(kind, k, T)
            if T == self.tfin - 1:
                self.weight_load("o", 0, None, 18)
            if self.stamps is not True and T > 1:
                self.stamp("T%02d" % T)
            if T == 1:
                self.setup_a()
            if T == self.clr1:
                a('; sentinel fill of the first two cross-die slots')
                self.early_fill()
            if lag <= T < 26 + lag:
                self.tile_consume(T - lag)
            if T == 2:
                a('; d_debug[g] = 1: flag arrays are reset')
                self.leader_flag(0, "L_nolead1", self.tok_lead)
            if T == t_dl:
                tok_f = self.flag_load(vF, 0, True)
            if T == t_f1:
                a('; flag 1 = die id + probe vote, set after the fills of all four waves; LayerNorm statistics of x[b]')
                self.flag_check(vF, 0, True, tok_f, "L_f0")
                a("s_barrier", "s_getreg_b32 s%d, hwreg(HW_REG_XCC_ID, 0, 4)" % stmp, "s_or_b32 s%d, s%d, s%d" % (stmp, stmp, svote))
                self.group_flag(0, "s%d" % stmp)
                a("v_lshlrev_b32 v%d, 16, v%d" % (vRES, vRES))
                self.stats(vX + 4, 8, True)
            if T in (t_l1, t_l2):
                fld = self.ld(vF, vF + 1, 101, 0 if T == t_l1 else 128, n=1)
                a("v_and_b32 v%d, 31, v0" % (vF + 1), "v_lshlrev_b32 v%d, 2, v%d" % (vF + 1, vF + 1), G17)
                tok_f = a(fld)
            if T == t_c1:
                a('; all 32 flags: same die -> plain stores through L2, else write-through; q partials and Wq column sums; fill of ML / A')
                self.check_or_poll([fld], [[vF]], 7, "xcc", max(tok_f, self.wtok["q"]), [G17])
                a("s_barrier")
                self.w_tiles([("q", vWQ)], 5, 7)
                a("v_cmp_lt_u32 vcc, 15, v%d" % vF, "v_and_b32 v%d, 15, v%d" % (vF, vF),
                  "s_and_b32 s100, vcc_lo, 0x55555555", "s_and_b32 s101, vcc_lo, 0xaaaaaaaa",
                  "s_bcnt1_i32_b32 s100, s100", "s_bcnt1_i32_b32 s101, s101")
                if self.stamps:
                    a("v_writelane_b32 v4, s100, 28", "v_writelane_b32 v4, s101, 29")
                a("s_getreg_b32 s%d, hwreg(HW_REG_XCC_ID, 0, 4)" % svote, "s_sub_u32 s%d, s100, s101" % stmp, "s_sub_u32 s101, s101, s100",
                  "s_bitcmp1_b32 s%d, 2" % svote, "s_cselect_b32 s101, s101, s%d" % stmp, "s_add_u32 s101, s101, 64")
                self.leader_flag(32, "L_nolead2", val="s101")
                if not self.force_slow:
                    a("v_cmp_ne_u32 vcc, s%d, v%d" % (svote, vF), "s_cmp_eq_u64 vcc, 0",
                      "s_cselect_b32 s%d, 0x%x, 0" % (sWF + 2, WS_SIZE), "s_cselect_b32 s%d, 0, 0x%x" % (sWL + 2, WS_SIZE))
                self.part_off(6, 7, 12)
                a("s_lshr_b32 s%d, s%d, 1" % (stmp, ss), "s_and_b32 s%d, s%d, 1" % (sclr, ss))
                self.colsum_pub(vWQ, 12, 16, 10, 11, OFF_CSQ, (stmp, 2048), (sclr, 512))
                self.mk_ix(8)
                self.gemv_zero(vD)
                self.gemv4(vX, vWQ, vD, 8)
                self.sentinels(20)
                self.gemv4_fin(9, vD)
                self.st_intra("buffer_store_dword", "v9", 6, sEst)
                self.fill_intra(24, 7, 20, LS + OFF_ML, 288)
                tok_q = a.mark()
                self.stamp("arrive")
            if T == t_f2:
                a('; flag 2: q partials and fills are visible; gate / up column sums')
                a.wait_vm(max(tok_q, self.wtok["g"]))
                a("s_barrier")
                self.group_flag(1, "1")
                self.w_tiles([("g", vWQ)], 5, 7)
                a("s_lshr_b32 s%d, s%d, 2" % (stmp, ss), "s_and_b32 s%d, s%d, 3" % (sclr, ss))
                self.colsum_pub(vWQ, 16, 20, 10, 11, OFF_CSG, (sclr, 2048), (stmp, 512))
            if T == t_c2:
                a('; fetch the q partials')
                self.check_or_poll([fld], [[vF]], 7, "q1", tok_f, [G17])
                self.colsum_ld(28, OFF_CSQ, sw)
                tok_q = a("v_lshlrev_b32 v7, 2, v0", *self.ld4(24, 7, sEld))
                self.next_region()
                self.stamp("barrier")
            if T == t_c2 + 1:
                self.s_zero()
                self.q_addrs(40, 42, 7)
            if T == tqk:
                a('; q = sum of partials - mean * column sum; QK^T and softmax run between the next loads')
                a.wait_vm(tok_q)
                self.colsum_fin(28, 36)
                self.sum4_init(38, 36)
                self.sum4(24, 38, 38)
                self.q_assemble(38, 40, 42)
                ls, _ = schedule(self.lines(self.qk))
                qk = [ls[len(ls) * k // 4:len(ls) * (k + 1) // 4] for k in range(4)]
            if T == tqk + 1:
                self.ml_off(22, 23)
                self.sexpr(100, L_WD, (sw, 2048))
                self.lin(16, 23, (2, 2, 6), (4, 2, 4))
                a("v_add_u32 v16, s100, v16", "v_lshl_add_u32 v17, v0, 2, s100")
                self.lds_or_zero(16, 23, 3)
                ls, _ = schedule(self.lines(self.softmax, 17, 22))
                qk = [ls[len(ls) * k // 4:len(ls) * (k + 1) // 4] for k in range(4)]
            if T == tqk + 2:
                self.stamp("softmax1")
            for p in pvat.get(T, ()):
                a('; PV of one 32-key group')
                self.p_read(ORDER.index(p), 16, p & 1)
                a("s_waitcnt lgkmcnt(0)")
                self.pv_dense(p, p & 1)
            if T == self.ipf:
                self.code_prefetch(80, 4, "L_pc1", "L_tail")
            if T == self.tml:
                ml1 = [self.ld(64, vA16, sMLld)]
                a(*ml1)
                tok_warm = self.flag_load(70, 32, False)
            if T == self.tclr:
                a('; sentinel fill of the remaining per-head slots')
                self.sentinels(72)
                self.fill_intra(76, 77, 72, OFF_C, 352)
                self.fill_intra(78, 77, 72, LS, 480)
            if T == self.tfin:
                a('; all eight heads have filled their cross-die slots; summed votes pick the near copy')
                self.flag_check(70, 32, False, tok_warm, "L_f1")
                for k in (1, 2, 4):
                    self.dpp("v_add_u32", 70, 70, 70, "row_ror:%d" % k)
                a("v_readfirstlane_b32 s100, v70", "s_cmpk_ge_u32 s100, 512", "s_cselect_b32 s100, 0, 4", "s_xor_b32 s100, s100, s%d" % svote,
                  "s_bitcmp1_b32 s100, 2", "s_cselect_b32 s100, %s" % {1: "0x2000, 0", 2: "0, 0x2000"}[self.near],
                  "s_add_u32 s%d, s%d, s100" % (sBld, sBld), "s_add_u32 s%d, s%d, s100" % (sB2, sBst), "s_xor_b32 s%d, s%d, 0x2000" % (sBst, sB2))
                self.check_or_poll(ml1, [range(64, 68)], 69, "ml1", tok_warm)
                self.ml_finish(64)
                self.o_addr()
                a("s_mov_b32 s%d, 1" % slayer)
                a(*[x for x in self.lines(self.weight_load, "d", 0, None, 62) if x.startswith("s_")])
            if T == self.tp5:
                lds_pv(5)
        self.stamp("issued")
        for p in (5, 6, 7):
            if p > 5 or self.tp5 > 31:
                lds_pv(p)
        self.n_after_o = min(a.mark() - self.wtok["o"], 60)
        self.stamp("pv1")

    def code_prefetch(self, v, sp, here, start):
        a = self.a
        a("s_getpc_b64 s[%d:%d]" % (sp, sp + 1), here + ":")
        if start != here:
            a("s_add_u32 s%d, s%d, %s-%s" % (sp, sp, start, here), "s_addc_u32 s%d, s%d, 0" % (sp + 1, sp + 1))
        self.sexpr(100, 0, (sj, 512), (sw, 128))
        a("s_min_u32 s100, s100, L_codeend-%s-4" % start, "v_mov_b32 v%d, s100" % v, "global_load_dword v%d, v%d, s[%d:%d]" % (v, v, sp, sp + 1))

    def touch_addr(self, v, t, parts):
        a = self.a
        a("v_mov_b32 v%d, 0x%x" % (v, OOB), "v_lshl_add_u32 v%d, v0, 2, s%d" % (t + 1, sw))
        hi = sum(n for _, n in parts)
        for start, n in reversed(parts):
            self.sexpr(100, start - 128 * (hi - n), (sg, 1 << 17), (sj, 128 * n))
            a("v_lshl_add_u32 v%d, v%d, 7, s100" % (t, t + 1), "v_cmp_gt_u32 vcc, %d, v%d" % (hi, t + 1),
              "v_cndmask_b32 v%d, v%d, v%d, vcc" % (v, v, t))
            hi -= n

    def touch(self, v):
        return self.a("buffer_load_dword v%d, v%d, %s, 0 offen sc1" % (v, v, srd(sWS)))

    def fill_cross(self, d, hop):
        self.sentinels(d)
        self.lin(d + 4, d + 5, (4, 2, 15), (3, 1, 13), (0, 3, 4))
        self.sexpr(100, (hop >> 1) * 0x4000 + (hop & 1) * 0x1000, (ss, 1 << 17), (sg, 512), (sb, 128))
        self.a("buffer_store_dwordx4 %s, v%d, %s, s100 offen sc1" % (q(d), d + 4, srd(sXW)))

    def st_cross(self, v):
        a = self.a
        for so in (sBst, sB2):
            a("buffer_store_dword v%d, v95, %s, s%d offen sc1" % (v, srd(sXW), so))

    def red_loads(self, x, soff):
        return [self.ld(x + 4 * i, vA16, soff, i * 1024, rs=sXW) for i in range(4)]

    def prep_split(self, name, work, loads):
        a = self.a
        n = self.at[name][0]
        while n < len(work) and work[n].startswith(("s_cselect", "s_addc", "s_cbranch")):
            n += 1
        a(*work[:n])
        a("s_cmp_eq_u32 s%d, 0" % sw, "s_cbranch_scc0 L_%s_n" % name)
        self.idle(n - len(work))
        a(*loads)
        a("L_%s_n:" % name, *work[n:])
        self.est += (name, len(work))

    def reduce_x(self, name, x, d, soff):
        a = self.a
        self.poll(self.red_loads(x, soff), [range(x + 4 * i, x + 4 * i + 4) for i in range(4)], 7, name,
                  spec=lambda i: self.mfma(d, q(x + 4 * i), q(vSEL), i > 0), again=self.kx)
        m = "s[%d:%d]" % (sM1, sM1 + 1)
        a("v_cndmask_b32 v%d, v%d, v%d, %s" % (d, d, d + 1, m), "v_cndmask_b32 v%d, v%d, v%d, %s" % (d + 2, d + 2, d + 3, m),
          "v_permlane32_swap_b32 v%d, v%d" % (d, d + 2), "v_add_f32 v%d, v%d, v%d" % (vRES, vRES, d),
          "v_add_f32 v%d, v%d, v%d" % (vRES, vRES, d + 2))
        self.pack_pairs(7, vRES)

    def x_off(self, v, t, bs):
        self.lin(v, t, (5, 1, bs), (4, 1, bs + 1), (0, 4, 1))
        self.even_only(v, t)

    def layer1(self, name):
        self.a("s_cmp_eq_u32 s%d, 1" % slayer, "s_cbranch_scc0 " + name)

    def chain(self):
        a = self.a
        a("L_tail:")
        self.lin(23, 6, (2, 4, 4), (1, 1, 8), (0, 1, 3))
        self.sexpr(sclr, L_SCR, (sw, 2048))
        a("v_add_u32 v23, s%d, v23" % sclr, "s_waitcnt lgkmcnt(0)", "s_barrier")
        for src in range(4):
            a("ds_read_b64 %s, v23 offset:%d" % (q(8 + 2 * src, 2), src * 512))
        a("v_lshlrev_b32 v17, 2, v0", "s_mov_b32 m0, s%d" % sclr)
        self.lin(56, 16, (2, 2, 9), (4, 2, 7), (2, 2, 5), (0, 2, 3))
        a("s_lshl_b32 s100, s%d, 5" % sw, "v_xor_b32 v56, s100, v56", "v_add_u32 v56, 0x%x, v56" % L_WO)
        a("s_waitcnt lgkmcnt(2)", "v_pk_add_f32 v[8:9], v[8:9], v[10:11]", "s_waitcnt lgkmcnt(0)", "v_pk_add_f32 v[12:13], v[12:13], v[14:15]",
          "v_pk_add_f32 v[8:9], v[8:9], v[12:13]", "v_cvt_pk_bf16_f32 v7, v8, v9")
        self.st_intra("buffer_store_dword", "v7", 17, sAst)
        self.stamp("Apub", True)
        if self.stamps:
            a("s_mov_b32 m0, s%d" % sclr)
        a("v_lshrrev_b32 v5, 4, v0", "v_and_b32 v6, 15, v0", "v_xor_b32 v16, v5, v6", "v_lshlrev_b32 v16, 4, v16",
          "v_lshl_add_u32 v18, v5, 8, v16", "s_and_b32 s100, s%d, 1" % sw, "s_lshl_b32 s100, s100, 7", "v_xor_b32 v18, s100, v18",
          "v_xor_b32 v19, 64, v18")
        lda = ["buffer_load_dwordx4 v%d, %s, s%d offen offset:%d sc1 lds" % (18 + h, srd(sWS), sAld, h * 1024) for h in range(2)]

        def prep_a():
            a = self.a
            a("v_lshl_add_u32 v20, v6, 8, v16", "v_add_u32 v20, 0x%x, v20" % L_SCR)
            for st in range(1, 4):
                a("v_xor_b32 v%d, %d, v20" % (20 + st, st << 6))
            a("v_add_u32 v5, s%d, v%d" % (sclr, vA16), "v_lshlrev_b32 v95, 1, v0")
            self.even_only(95, 6)
            a(*[x for x in self.lines(self.weight_load, "d", 0, None, 62) if x.startswith("v_")])
            self.touch_addr(59, 60, T1)
        n = self.with_loads("pollA", self.lines(prep_a), lda)
        a("s_waitcnt vmcnt(%d)" % (1 + 2 * n + self.n_after_o), "s_barrier")
        for st in range(4):
            for h in range(2):
                a("ds_read_b64_tr_b16 %s, v56 offset:%d" % (q(24 + 4 * st + 2 * h, 2), st * 4096 + h * 2048))
        a("s_branch L_pollA_w", "L_pollA:", *lda)
        a(*self.spin_count())
        a("L_pollA_w:", "s_waitcnt vmcnt(%d)" % (2 * n - 1), "ds_read_b128 v[8:11], v5", "s_waitcnt vmcnt(%d)" % (2 * n - 2),
          "ds_read_b128 v[12:15], v5 offset:1024")
        ck = self.lines(self.check, [range(8, 12), range(12, 16)], 7, 0)
        a("s_waitcnt lgkmcnt(1)", *ck[:2], "s_waitcnt lgkmcnt(0)", *ck[2:])
        a("s_cbranch_vccnz L_pollA")
        if self.stamps is not True:
            self.stamp("pollA", True)
        a("s_barrier")
        ops = [40, 44, 48, 52, 64, 68, 72, 76]
        rd = ["ds_read_b128 %s, v%d offset:%d" % (q(ops[k]), 20 + (k >> 1), (k & 1) * 4096) for k in range(8)]
        m = self.oahead
        a(*rd[:m])
        self.late_loads("L_l1b")
        for k in range(8):
            a("s_waitcnt lgkmcnt(%d)" % (min(8, m + k) - k - 1))
            self.mfma(8, q(ops[k]), q(24 + 4 * (k >> 1)), k > 0)
            if m + k < 8:
                a(rd[m + k])
        a("v_add_f32 v8, v8, v9", "v_add_f32 v10, v10, v11", "v_add_f32 v8, v8, v10")
        self.pack_pairs(7, 8)
        self.st_cross(7)
        self.stamp("Bpub", True)
        self.colsum_ld(80, OFF_CSG, sb)
        self.layer1("L_l1c")
        self.colsum_ld(24, OFF_CSQ, sw)
        a("L_l1c:")
        wt = self.lines(self.w_tiles, [("d", vWD)], 91, 7)

        def prep_b():
            a = self.a
            self.w_tiles([("g", vWG), ("q", vWQ)], 5, 7)
            a("v_and_b32 v5, 1, v0", "v_lshlrev_b32 v5, 4, v5", "v_lshlrev_b32 v5, v5, s%d" % sLO, "v_bfe_u32 v6, v0, 1, 2")
            for r in range(4):
                a("v_cmp_eq_u32 vcc, %d, v6" % r, "v_cndmask_b32 v%d, 0, v5, vcc" % (vSEL + r))
            self.x_off(94, 7, 6)
            self.st_off(93, 7)
            a("s_bitcmp1_b32 s%d, 0" % sact, "s_cselect_b32 s%d, 0, -1" % stmp)
            self.part_off(92, 7, 10, "s%d" % stmp)
            self.lin(89, 7, (0, 5, 2), (5, 1, 1))
            self.sexpr(100, L_H, (sw, 128))
            a("v_add_u32 v89, s100, v89")
            self.mk_ix(90)
            self.lin(88, 7, (2, 2, 7), (0, 1, 4), (4, 2, 5))
            a("v_add_u32 v88, 0x%x, v88" % L_H)
            a(*[x for x in wt if not x.startswith("ds_")])
            self.sexpr(stmp, 0, (sRow, 1), (sw, 256))
            self.sexpr(sclr, 0, (sRow, 1), (sj, 4))
            a("s_add_u32 s%d, s%d, 0x1000" % (sBst, sBst), "s_add_u32 s%d, s%d, 0x1000" % (sB2, sB2))
        self.prep_split("pollB", self.lines(prep_b), self.red_loads(vX, sBld))
        aux = [self.ld(vX + 4, 91, stmp, n=1)]
        a("s_waitcnt lgkmcnt(0)", "s_cmp_eq_u32 s%d, 0" % sw, "s_cbranch_scc0 L_nored1")
        self.cold += (["L_nored1:", "s_lshl2_add_u32 s100, s%d, s%d" % (slayer, sw), "s_cmp_eq_u32 s100, 5", "s_cbranch_scc0 L_nof2"]
                      + self.lines(self.fill_cross, vX + 8, 2) + ["L_nof2:", "s_waitcnt vmcnt(0)", "s_branch L_red1"])
        self.reduce_x("pollB", vX, vD, sBld)
        self.st_intra("buffer_store_dword", "v7", 94, sXst)
        a("v_lshlrev_b32 v%d, 16, v7" % vRES)
        self.stamp("XBpub", True)
        a("L_red1:", "s_barrier")
        ldx = [self.ld(vX, vA16, sXld)]
        work, _ = schedule(self.lines(self.colsum_fin, 24, vCQ) + self.lines(self.colsum_fin, 80, vCG) + self.lines(self.gemv_zero, vD)
                           + [x + " ; prio=100" for x in self.lines(self.slice_sums, 5, 93, sclr)])
        k = max(i for i, x in enumerate(work) if "_dpp" in x) + 1
        ex = int(self.at["pollXB"][0] <= k)
        work[k:k] = self.lines(self.st_intra, "buffer_store_dword", "v5", 93, sclr)
        self.with_loads("pollXB", work, ldx)
        a(*[x for x in wt if x.startswith("ds_")])
        a("v_lshlrev_b32 v91, 2, v0")
        self.poll(ldx, [range(vX, vX + 4)], 7, "pollXB", self.lines(self.gemv4, vX, vWG, vD, 90), self.lines(self.gemv_zero, vD), extra=ex)
        a(*aux)
        self.gemv4_fin(6, vD)
        self.st_intra("buffer_store_dword", "v6", 92, sCst)
        self.stamp("Cpub", True)
        a("v_mov_b32 v5, 0", "s_bitcmp1_b32 s%d, 1" % sact, "s_cbranch_scc0 L_nod")
        ldc = self.ld4(vX, 91, sCld)
        st = self.lines(self.stats_fin, vX + 4, vD, False) + self.lines(self.sum4_init, vD + 2, vCG)
        self.stats_poll("pollC", aux, vX + 4, st, ldc)
        self.poll(ldc, [range(vX, vX + 4)], 7, "pollC", self.lines(self.sum4, vX, vD, vD + 2))
        a("v_permlane32_swap_b32 v%d, v%d" % (vD, vD + 1), "v_mul_f32 v%d, s%d, v%d" % (vD, sSC, vD),
          "v_mul_f32 v%d, v%d, v%d" % (vD, vD, vD + 1), "v_cvt_pk_bf16_f32 v%d, v%d, v%d" % (vD, vD, vD),
          "ds_write_b16 v89, v%d" % vD, "v_mov_b64 %s, 0" % q(vD + 4, 2), "s_waitcnt lgkmcnt(0)", "s_barrier", "ds_read_b128 %s, v88" % q(vX + 4), "s_waitcnt lgkmcnt(0)")
        self.smf(vD + 4, q(vX + 4), q(vWD, 8), 90)
        a("v_add_f32 v7, v%d, v%d" % (vD + 4, vD + 5))
        self.pack_pairs(5, 7)
        a("L_nod:")
        self.st_cross(5)
        self.stamp("Dpub", True)
        a("s_add_u32 s%d, s%d, 0x1000" % (stmp, sBld))
        self.layer1("L_last")
        a("s_waitcnt vmcnt(2) lgkmcnt(0)")

        def prep_d():
            a = self.a
            a("v_mov_b32 v28, v94", "v_mov_b32 v30, v93", "s_add_u32 s%d, s%d, 0x3000" % (sBst, sBst),
              "s_add_u32 s%d, s%d, 0x3000" % (sB2, sB2), "s_add_u32 s%d, s%d, 0x4000" % (sBld, sBld))
            self.mk_ai()
            self.s_zero()
            self.part_off(29, 7, 12)
            self.q_addrs(31, 48, 7)
            self.lin(5, 7, (2, 2, 6), (5, 1, 8), (4, 1, 5), (0, 1, 4))
            self.sexpr(100, L_WQ, (sw, QSTR))
            a("v_add_u32 v5, s100, v5")
            self.lds_or_zero(5, 7, 2)
            self.ml_off(6, 7)
            self.sexpr(98, 1024, (sRow, 1), (sb, 256))
            self.sexpr(sWl, 1024, (sRow, 1), (sj, 4))
            self.sexpr(sWo, 0, (sg, 1 << 17), (sj, 2048), (sw, 512))
            a("s_add_u32 s%d, s%d, 0x%x" % (sclr, sXst, OFF_XD - OFF_XB), "s_add_u32 s99, s%d, 0x%x" % (sXld, OFF_XD - OFF_XB))
        self.prep_split("pollD", self.lines(prep_d), self.red_loads(8, stmp))
        a("s_waitcnt lgkmcnt(0)", "s_cmp_eq_u32 s%d, 0" % sw, "s_cbranch_scc0 L_fill3", "L_redd:")
        self.cold += ["L_fill3:", "s_cmp_eq_u32 s%d, 1" % sw, "s_cbranch_scc0 L_nored2"] + self.lines(self.fill_cross, 16, 3) + ["s_branch L_nored2"]
        self.reduce_x("pollD", 8, 24, stmp)
        self.st_intra("buffer_store_dword", "v7", 28, sclr)
        a("s_cmp_eq_u32 s%d, 2" % slayer, "s_cbranch_scc1 L_out")
        a("v_lshlrev_b32 v%d, 16, v7" % vRES)
        self.stamp("XDpub")
        a("L_nored2:", "s_barrier")
        row = [self.ld(24, 28, 98, n=1)]
        ldx = [self.ld(52, vA16, 99)]
        work = self.lines(self.slice_sums, 26, 30, sWl)
        ex = int(self.at["pollXD"][0] <= len(work))
        work += self.lines(self.st_intra, "buffer_store_dword", "v26", 30, sWl) + ["v_lshlrev_b32 v28, 2, v0"]
        n = self.with_loads("pollXD", work, ldx)
        a("s_waitcnt vmcnt(%d)" % (n + 2))
        self.gemv_zero(8)
        self.poll(ldx, [range(52, 56)], 7, "pollXD", self.lines(self.gemv4, 52, vWQ, 8, vIX), self.lines(self.gemv_zero, 8), extra=ex)
        a(*row)
        self.gemv4_fin(10, 8)
        self.st_intra("buffer_store_dword", "v10", 29, sEst)
        self.stamp("Epub")
        lde = self.ld4(52, 28, sEld)
        st = self.lines(self.stats_fin, 24, 32, True) + self.lines(self.sum4_init, 34, vCQ)
        self.stats_poll("pollE", row, 24, st, lde)
        self.poll(lde, [range(52, 56)], 7, "pollE", self.lines(self.sum4, 52, 32, 34))
        self.stamp("Eget")
        rd = self.q_assemble(32, 31, 48, self.lines(self.next_region) + ["s_mov_b32 s%d, 2" % slayer]
                             + ["v_min_u32 v38, 3, v0", "v_lshlrev_b32 v38, 7, v38"])
        a(self.ld(38, 38, sWo, n=1))
        for i in range(7):
            a("v_mov_b64 %s, 0" % q(vO + 4 * i, 2))
        if self.stamps is not True:
            self.stamp("qrdy")
        x = 128
        ldm = [self.ld(x, vA16, sMLld)]

        def att():
            a = self.a
            self.qk()
            a("s_waitcnt vmcnt(1) ; guards=v[52:55] after=v%d" % (vS + 20))
            a("v_subrev_u32 v23, 0x%x, v31" % (L_Q - L_WQ))
            a("v_mov_b64 %s, 0" % q(vO + 28, 2))
            self.softmax(23, 6)
            self.o_addr()
            for h in range(2):
                self.v_reads(5 + h, lambda i, e: q(8 * i + 4 * h + 2 * e, 2, "a"))
            self.v_reads(7)
            for n in range(4):
                self.p_read(2 * n, 5, n & 1)
                for i in range(8):
                    B = q(128 + 64 * n + 8 * i, 8) if n < 2 else q(8 * i, 8, "a") if n == 2 else "vp[%d]" % i
                    self.smf(vO + 4 * i, q(vQ + 4 * (n & 1)), B)
                    if n == i == 0:
                        for d in self.mlat:
                            a(ldm[0] + " ; lat=%d tail=%d" % (d, self.mltail))
        ls = [x + " prio=%d" % self.p0 if x.endswith("mem=p0") else x for x in self.lines(att)]
        cut = len(ls) - self.mlcut
        out, t1 = schedule(ls[:cut], rd)
        if self.stamps and self.stamps is not True:
            k = max(i for i, x in enumerate(out) if x.startswith("buffer_store")) + 1
            out[k:k] = self.lines(self.stamp, "mlpub")
            k = min(i for i, x in enumerate(out) if x.startswith("v_pk_fma"))
            out[k:k] = self.lines(self.stamp, "maxed")
        a(*out)
        a("s_waitcnt lgkmcnt(0)")
        if self.stamps is not True:
            self.stamp("pv2a")
        L = a.lab("ml2")
        a(L + "_w:")
        fin = ["v_sub_f32 v58, v%d, v20" % x, "v_sub_f32 v59, v%d, v20" % (x + 2), "v_exp_f32 v58, v58", "v_exp_f32 v59, v59",
               "v_mul_f32 v7, v58, v%d" % (x + 1), "v_fmac_f32 v7, v59, v%d" % (x + 3)] + self.lines(self.ml_finish, x)[6:]
        self.check([range(x, x + 4)], 6, len(self.mlat))
        a(*fin[:3])
        a("s_cbranch_vccnz " + L)
        fin = fin[3:]
        if self.stamps is not True:
            self.stamp("mlget")
        t2 = self.sched([x + " ; prio=200" for x in fin] + ls[cut:] + self.lines(self.o_write, 8, 60, True))
        self.est += (t1, t2)
        self.stamp("pv2")
        a("s_branch L_tail", L + ":", *ldm)
        a(*self.spin_count())
        a("s_branch %s_w" % L)
        a("L_last:", "s_lshr_b32 s100, s%d, 2" % sj, "s_xor_b32 s100, s100, s%d" % sg, "s_or_b32 s100, s100, s%d" % sw,
          "s_cmp_eq_u32 s100, 0", "s_cbranch_scc0 L_fin")
        self.x_off(28, 7, 10)
        self.mk_srd(sWF, sOUT, "4096")
        a("s_lshl_b32 s%d, s%d, 5" % (sclr, sj))
        a("s_waitcnt vmcnt(0)")
        a(*self.red_loads(8, stmp))
        a("s_branch L_redd")
        a("L_out:")
        if self.probe:
            self.stamp("out")
            k = self.stamp_names.index(self.probe)
            a("v_readlane_b32 s100, v4, %d" % k, "v_readlane_b32 s101, v4, 0", "s_sub_u32 s100, s100, s101", "s_lshl_b32 s100, s100, 2",
              "s_min_u32 s100, s100, 100000", "s_memrealtime s[0:1]", "s_waitcnt lgkmcnt(0)", "s_mov_b32 s101, s0",
              "L_probe:", "s_memrealtime s[0:1]", "s_waitcnt lgkmcnt(0)", "s_sub_u32 s0, s0, s101", "s_cmp_lt_u32 s0, s100",
              "s_cbranch_scc1 L_probe")
        a("L_fin:")
        if self.stamps and not self.probe:
            self.stamp("end")
            a("s_lshl_b32 s100, s2, 2", "s_add_u32 s100, s100, s%d" % sw, "s_lshl_b32 s100, s100, 7",
              "s_add_u32 s100, s100, 0x%x" % (STAMP_OFF - 2 * LS), "s_mov_b32 s%d, 0x1000000" % (sWS + 2),
              "v_writelane_b32 v4, s%d, 30" % sspin, "v_writelane_b32 v4, s%d, 31" % (sWF + 2),
              "v_lshlrev_b32 v9, 2, v0", "v_cmp_gt_u32 vcc, 32, v0", "s_and_saveexec_b64 s[98:99], vcc",
              "buffer_store_dword v4, v9, %s, s100 offen sc1" % srd(sWS))
        a("L_end:", "s_endpgm")
        a(*self.cold)
        a("L_codeend:")

    def build(self):
        self.prologue()
        self.stream()
        self.chain()
        self.a.pad()
        if self.win:
            self.est += align(self.a, self.win, "L_novote")
        head = open("cdna_kernels/" + KNAME[:-7] + ".s.ref").read().split("; Override launch")[0]
        return (head + "; @launch grid=(256,1,1) block=(256,1,1) lds=163840\n" + ABOUT +
                '.amdgcn_target "amdgcn-amd-amdhsa--gfx950"\n.text\n.globl %s\n.p2align 8\n.type %s,@function\n%s:\n' % (KNAME, KNAME, KNAME)
                + self.a.text() +
                '.section .rodata,"a"\n.p2align 6\n.amdhsa_kernel %s\n  .amdhsa_next_free_vgpr 512\n  .amdhsa_next_free_sgpr 102\n'
                "  .amdhsa_accum_offset 256\n  .amdhsa_group_segment_fixed_size 0\n  .amdhsa_kernarg_size 96\n"
                "  .amdhsa_user_sgpr_count 2\n  .amdhsa_user_sgpr_kernarg_segment_ptr 1\n  .amdhsa_system_sgpr_workgroup_id_x 1\n"
                ".end_amdhsa_kernel\n" % KNAME)


if __name__ == "__main__":
    out = sys.argv[1]
    kw = eval("dict(%s)" % (sys.argv[2] if len(sys.argv) > 2 else ""))
    g = Gen(**kw)
    s = g.build()
    open(out, "w").write(s)
    if len(sys.argv) > 3:
        print("estimated attention cycles", g.est)
    if g.stamps:
        open(out[:-2] + ".names", "w").write("\n".join(g.stamp_names))
```

```python
import struct
import sys
from asmlib import Asm, align, schedule

KNAME = "interleave_layers__gqa_block_cached__glu_gated_bilinear__decode_kernel"

LS = 1 << 20
OFF_ML, OFF_A, OFF_C, OFF_XB, OFF_ST, OFF_XD, OFF_E = 0, 4 << 10, 36 << 10, 52 << 10, 56 << 10, 60 << 10, 64 << 10
OFF_CSG, OFF_CSQ = 60 << 10, 68 << 10
WS_SIZE = 3 * LS
T1 = [(OFF_C, 11), (LS + OFF_ML, 1)]
OFF_TK = 1 << 20
OFF_XW = 5 << 20
STAMP_OFF = 8 << 20
OOB = 0x7FFF0000

RING = 24576
L_WQ = 4 * RING
L_WO = L_WQ + 16384
L_WG = L_WO + 16384
L_WD = L_WG + 16384
L_SCR = L_WD + 8192
L_H = L_SCR + 1024
L_Q, QSTR = L_SCR + 1536, 2112
L_OOB = 0x30000
assert L_SCR + 8192 == 163840

sK, sV, sWS, sWF, sWL, sOUT, sDBG, sXI, sT = 28, 32, 36, 40, 44, 48, 52, 56, 96
sw, sg, sj, sb, ss, su, sring, srot, stmp, slayer = range(60, 70)
(sMLst, sMLld, sAst, sAld, sBst, sBld, sXst, sXld, sCst, sCld, sCS, sS1, sSC, sRow, sEst, sEld) = range(70, 86)
sWo, sWl = 86, 87
sM1, smode = 88, 90
sspin, scmp = 94, 95
sclr, slead, sact = 3, 14, 15
sLO, sHI = 6, 7
sXW, sB2, svote = 24, 23, 22
sWo2, sWl2 = 8, 9
SPIN_LIMIT = 1 << 18

vL, vA16, vTRV, vRES = 0, 1, 2, 3
vQ, vO, vIX, vAI, vS = 8, 24, 56, 56, 64
vWG, vWD, vWQ, vCG, vCQ, vSEL, vX, vD = 8, 24, 32, 48, 50, 52, 56, 72
vKS, vKR = 240, 244
ORDER = [0, 1, 2, 3, 5, 6, 7, 4]
SLOT = {5: 2, 6: 4, 7: 0}
SCALE = 128 ** -0.5 * 1.4426950408889634
ONES = "0x3f803f80"


def f32(x):
    return "0x%08x" % struct.unpack("<I", struct.pack("<f", x))[0]


def q(r, n=4, k="v"):
    return "%s[%d:%d]" % (k, r, r + n - 1)


def srd(r):
    return "s[%d:%d]" % (r, r + 3)


ABOUT = """;
"""


class Gen:
    def __init__(self, depth=6, d0={5: 8, 6: 8}, burst=4, lag=2, tq=(2, 2, 3, 3), tg=(6, 6, 7, 7), ogate=(7, 3, 3, 3, 3),
                 sync=(4, 6, 9, 11, 13, 16, 18), clr1=4, ipf=24, tclr=25, tml=27, tfin=29, tp5=30,
                 dbl="pollXB,pollC,pollXD,pollE", at={}, kx=1, nst_=2, oahead=4, mlat=(208, 84), mltail=500, mlcut=1, p0=400,
                 win=32, near=1, force_slow=False, stamps=False, cyc=False, probe=None, jitter=None, tk=(14, 22), tkn=8, tkw=1, th=(3, 6), lv=((5, 6, 7),)):
        self.__dict__.update(locals())
        self.a = Asm()
        self.nst = 0
        self.cold = []
        self.nslow = 0
        self.est = ()
        self.at = dict(pollA=(18, 34), pollB=(88,), pollXB=(8, 17), pollC=(0, 11), pollD=(84,), pollXD=(2, 10), pollE=(0, 11))
        self.at.update(at)
        self.stamp_names = []

    def stamp(self, name, per_layer=False):
        if self.jitter:
            self.nslow += 1
            L = "L_jit%d" % self.nslow
            self.a("s_memtime s[0:1]", "s_waitcnt lgkmcnt(0)", "s_mul_i32 s0, s0, 0x9e3779b1", "s_lshr_b32 s0, s0, %d" % (32 - self.jitter[0]),
                   "s_cmp_eq_u32 s0, 0", "s_cbranch_scc0 " + L, *["s_sleep %d" % self.jitter[1]] * self.jitter[2], L + ":")
            return
        if not self.stamps or (self.stamps is not True and name not in self.stamps):
            return
        a = self.a
        k = self.nst
        self.nst += 2 if per_layer else 1
        assert self.nst <= 28
        a("%s s[0:1]" % ("s_memtime" if self.cyc else "s_memrealtime"), "s_waitcnt lgkmcnt(0)")
        if per_layer:
            self.stamp_names += [name + "/1", name + "/2"]
            a("s_add_u32 m0, s%d, %d" % (slayer, k - 1), "v_writelane_b32 v4, s0, m0")
        else:
            self.stamp_names.append(name)
            a("v_writelane_b32 v4, s0, %d" % k)

    def mk_srd(self, d, p, size):
        self.a("s_mov_b32 s%d, s%d" % (d, p), "s_mov_b32 s%d, s%d" % (d + 1, p + 1),
               "s_mov_b32 s%d, %s" % (d + 2, size), "s_mov_b32 s%d, 0x20000" % (d + 3))

    def lin(self, d, t, *terms):
        first = True
        for sh, bits, sc in terms:
            r = d if first else t
            if sh + bits >= 6:
                src = vL
                if sh:
                    self.a("v_lshrrev_b32 v%d, %d, v0" % (r, sh)); src = r
            elif sh == 0:
                self.a("v_and_b32 v%d, %d, v0" % (r, (1 << bits) - 1)); src = r
            else:
                self.a("v_bfe_u32 v%d, v0, %d, %d" % (r, sh, bits)); src = r
            if first:
                if sc or src != d:
                    self.a("v_lshlrev_b32 v%d, %d, v%d" % (d, sc, src))
            else:
                self.a("v_lshl_add_u32 v%d, v%d, %d, v%d" % (d, src, sc, d))
            first = False

    def sexpr(self, d, const, *terms):
        a = self.a
        first = True
        for reg, mult in terms:
            r = d if first else 101
            if mult & (mult - 1) == 0:
                a("s_lshl_b32 s%d, s%d, %d" % (r, reg, mult.bit_length() - 1))
            else:
                a("s_mul_i32 s%d, s%d, %d" % (r, reg, mult))
            if not first:
                a("s_add_u32 s%d, s%d, s101" % (d, d))
            first = False
        if const:
            a("s_add_u32 s%d, s%d, 0x%x" % (d, d, const))

    def oob_unless(self, v, t, cond):
        self.a(cond, "v_mov_b32 v%d, 0x%x" % (t, OOB), "v_cndmask_b32 v%d, v%d, v%d, vcc" % (v, t, v))

    def even_only(self, v, t, cmp="0"):
        self.a("v_and_b32 v%d, 1, v0" % t)
        self.oob_unless(v, t, "v_cmp_eq_u32 vcc, %s, v%d" % (cmp, t))

    def st_intra(self, op, data, voff, soff, both=False):
        a = self.a
        slow = "%s %s, v%d, %s, s%d offen sc1" % (op, data, voff, srd(sWL), soff)
        a("%s %s, v%d, %s, s%d offen" % (op, data, voff, srd(sWF), soff))
        if both:
            tk = a.mark()
            a(slow)
            a.uncounted(tk)
            return
        self.nslow += 1
        L = "L_slow%d" % self.nslow
        a("s_cmp_eq_u32 s%d, 0" % (sWF + 2), "s_cbranch_scc1 " + L, L + "_b:")
        self.cold += [L + ":", slow, "s_branch %s_b" % L]

    def ld(self, r, voff, soff, off=0, n=4, rs=sWS):
        return "buffer_load_dword%s %s, v%d, %s, s%d offen offset:%d sc1" % (
            "x%d" % n if n > 1 else "", q(r, n) if n > 1 else "v%d" % r, voff, srd(rs), soff, off)

    def ld4(self, r, voff, soff):
        return [self.ld(r + k, voff, soff, 256 * k, n=1) for k in range(4)]

    def spin_count(self):
        return ["s_add_u32 s%d, s%d, 1" % (sspin, sspin), "s_cmp_lt_u32 s%d, 0x%x" % (sspin, SPIN_LIMIT), "s_cselect_b32 s%d, -2, -1" % scmp]

    def rounds(self, name):
        return 1 + self.dbl.split(",").count(name)

    def poll(self, loads, regs, acc, name, work=(), reinit=(), spec=None, again=None, extra=0):
        a = self.a
        L = "L_" + name
        k, n = self.rounds(name), len(loads)
        if again:
            self.check(regs, acc, len(regs), spec)
            a("s_cbranch_vccz %s_d" % L, L + ":", *loads)
            a(*self.spin_count())
            self.check(regs, acc, again * n + len(regs), spec)
            a("s_cbranch_vccnz " + L, "s_nop 2", L + "_d:")
        else:
            a("s_branch %s_w" % L, L + ":", *loads)
            a(*self.spin_count())
            a(*reinit)
            a(L + "_w:")
            self.check(regs, acc, (k - 1) * n + len(regs) + extra, spec)
            a(*work)
            a("s_cbranch_vccnz " + L, L + "_d:")
        if self.stamps is not True:
            self.stamp(name, True)

    def stats_poll(self, name, aux, r, st, loads):
        a = self.a
        self.check_or_poll(aux, [[r]], 7, name + "s", a.mark() - 1, work=st[:self.nst_])
        self.with_loads(name, st[self.nst_:], loads)

    def idle(self, n):
        if n >= 16:
            self.a("s_sleep %d" % (n // 16))
        if n > 0 and n % 16:
            self.a("s_nop %d" % (n % 16 - 1))

    def with_loads(self, name, work, loads):
        pos = 0
        for d in self.at[name][:self.rounds(name)]:
            self.a(*work[pos:pos + d])
            self.idle(pos + d - max(pos, len(work)))
            self.a(*loads)
            pos += d
        self.a(*work[pos:])
        return self.rounds(name)

    def check(self, regs, acc, n, spec=None):
        a = self.a
        have = None
        for i, part in enumerate(regs):
            if n:
                a("s_waitcnt vmcnt(%d)" % (n - 1 - i))
            if spec and n == len(regs):
                spec(i)
            pool = ([have] if have is not None else []) + list(part)
            while len(pool) > 1:
                m = min(3, len(pool))
                a(("v_max3_u32 v%d, v%d, v%d, v%d" if m == 3 else "v_max_u32 v%d, v%d, v%d") % (acc, *pool[:m]))
                pool = [acc] + pool[m:]
            have = pool[0]
            if i == len(regs) - 1:
                a("v_cmp_lt_u32 vcc, s%d, v%d" % (scmp, have))
            if spec and n != len(regs):
                spec(i)

    def check_or_poll(self, loads, regs, acc, name, wait, pre=(), work=()):
        a = self.a
        tk = a.mark()
        a("s_branch L_%s_c" % name, "L_%s_r:" % name, *pre)
        a(*loads)
        a(*self.spin_count())
        a("s_waitcnt vmcnt(0)", "L_%s_c:" % name)
        a.uncounted(tk)
        a.wait_vm(wait)
        self.check(regs, acc, 0)
        a(*work)
        a("s_cbranch_vccnz L_%s_r" % name)

    def mfma(self, d, A, B, c):
        self.a("v_mfma_f32_16x16x32_bf16 %s, %s, %s, %s" % (q(d), A, B, q(d) if c else "0"))

    def smf(self, d, A, B, ix=None):
        self.a("v_smfmac_f32_16x16x64_bf16 %s, %s, %s, v%d" % (q(d), A, B, ix or vIX))

    def mk_ix(self, v):
        self.a("v_and_b32 v%d, 1, v0" % v, "v_mul_u32_u24 v%d, 0xaaaa, v%d" % (v, v), "v_add_u32 v%d, 0x4444, v%d" % (v, v))

    def dpp(self, op, d, s0, s1, ctl, rm="0xf"):
        self.a("%s_dpp v%d, v%d, v%d %s row_mask:%s bank_mask:0xf" % (op, d, s0, s1, ctl, rm))

    def pack_pairs(self, d, v):
        self.a("v_mov_b32_dpp v%d, v%d quad_perm:[1,1,3,3] row_mask:0xf bank_mask:0xf" % (d, v),
               "v_cvt_pk_bf16_f32 v%d, v%d, v%d" % (d, v, d))

    def tile_issue(self, T, between=None):
        a = self.a
        if T:
            a("s_add_u32 s%d, s%d, 0x20000" % (srot, srot), "s_and_b32 s%d, s%d, 0x1e0000" % (srot, srot))
        a("s_or_b32 s%d, s%d, s%d" % (stmp, srot, su), "s_add_u32 m0, s%d, %d" % (sring, (T % 6) * 4096))
        if T >= 6:
            a("s_waitcnt lgkmcnt(%d)" % (0 if between else 1))
        for jj in range(4):
            self.throttle(T, 4 * T + jj >= 128 - self.burst)
            va = vKS + jj if T < 16 else 5 + (jj & 1)
            a("buffer_load_dwordx4 v%d, %s, s%d offen offset:%d nt lds" % (va, srd(sK if T < 16 else sV), stmp, jj * 1024))
            self.ltok.append(a.mark())
            self.tok[T] = a.mark()
            if between:
                between(jj)
        if 16 <= T < 31:
            a("v_xor_b32 v5, 64, v5", "v_xor_b32 v6, 64, v6")

    def throttle(self, T, burst):
        a = self.a
        if self.tk and T > self.tk[0] + 3 and not burst:
            lv = self.lv[T % len(self.lv)]
            L = a.lab("th")
            for m in (2, 1, 0):
                if m == 2 or lv[m] != lv[m + 1]:
                    if m < 2:
                        a("s_cmp_gt_u32 s%d, %d" % (smode, m), "s_cbranch_scc1 " + L)
                    a.wait_vm(self.ltok[-lv[m]])
            a(L + ":")
            return
        d = self.d0.get(T, self.depth)
        if T > 1 and not burst and d < len(self.ltok):
            a.wait_vm(self.ltok[-d])

    def vreg(self, p, i):
        return 128 + 64 * (p >> 1) + 8 * i + 4 * (p & 1) if p < 4 else (96 if p == 4 else vS) + 4 * i

    def v_reads(self, p, dst=None):
        slot = (16 + 2 * p) % 6
        for i in range(8):
            for h in range(2):
                d = dst(i, h) if dst else q(self.vreg(p, i) + 2 * h, 2)
                self.a("ds_read_b64_tr_b16 %s, v%d offset:%d ; mem=v" % (d, vAI + i if i else vTRV, slot * 4096 + h * 512))

    def tile_consume(self, T):
        a = self.a
        if T < 16:
            a.wait_vm(self.tok[T])
            for st in range(4):
                a("ds_read_b128 %s, v%d offset:%d" % (q(16 * T + 4 * st, 4, "a"), vKR + st, (T % 6) * 4096))
        elif T & 1:
            a.wait_vm(self.tok[T])
            self.v_reads((T - 16) >> 1)

    def mk_ai(self):
        for i in range(1, 8):
            self.a("v_xor_b32 v%d, %d, v%d" % (vAI + i, i << 5, vTRV))
        self.mk_ix(vIX)

    def weight_load(self, kind, k, T, va=52):
        a = self.a
        t = va + 1
        pitch = {"q": 8192, "g": 3584, "d": 1024, "o": 1024}[kind]
        if k == 0:
            if kind == "o":
                self.lin(va, t, (5, 1, 14), (3, 2, 10), (0, 3, 4))
                self.mk_srd(sT, 12, "0x400000")
                self.sexpr(sWo, 0, (sg, 512 * 1024), (sb, 128 * 1024), (sw, 4096), (ss, 128))
                self.sexpr(sWl, L_WO, (sw, 4096))
            else:
                a("v_lshrrev_b32 v%d, 3, v0" % va, "v_mul_u32_u24 v%d, %d, v%d" % (va, pitch, va), "v_and_b32 v%d, 7, v0" % t,
                  "v_lshl_add_u32 v%d, v%d, 4, v%d" % (va, t, va))
            a("v_and_b32 v%d, 32, v0" % t, "v_xor_b32 v%d, v%d, v%d" % (va, va, t), "v_xor_b32 v%d, 64, v%d" % (t, va))
            if kind == "q":
                self.mk_srd(sT, 10, "0x400000")
                self.sexpr(sWo, 0, (sb, 128 * pitch), (sw, 32 * pitch), (sg, 1024), (ss, 128))
                self.sexpr(sWl, L_WQ, (sw, 4096))
            if kind in "gd":
                a("s_lshr_b32 s100, s%d, 1" % sg, "s_mul_i32 s100, s100, 7", "s_and_b32 s%d, s%d, 1" % (stmp, sg),
                  "s_lshl_b32 s%d, s%d, 2" % (stmp, stmp), "s_add_u32 s100, s100, s%d" % stmp)
            if kind == "g":
                a("s_and_b32 s%d, s%d, 3" % (stmp, ss), "s_add_u32 s100, s100, s%d" % stmp)
                self.sexpr(sWo, 0, (sb, 128 * pitch), (sw, 32 * pitch), (100, 128))
                self.sexpr(sWl, L_WG, (sw, 4096))
                a("s_bitcmp1_b32 s%d, 0" % sact, "s_cselect_b32 s100, 0x%x, 0" % (512 * pitch))
                self.mk_srd(sT, 16, "s100")
                a("s_cmp_ge_u32 s%d, 4" % ss, "s_cselect_b32 s%d, s18, s16" % sT, "s_cselect_b32 s%d, s19, s17" % (sT + 1))
            if kind == "d":
                a("s_add_u32 s100, s100, s%d" % sb)
                self.sexpr(sWo2, 0, (100, 64 * pitch), (sw, 16 * pitch), (ss, 128))
                self.sexpr(sWl2, L_WD, (sw, 2048))
                a("s_bitcmp1_b32 s%d, 1" % sact, "s_cselect_b32 s100, 0x%x, 0" % (1792 * pitch))
                self.mk_srd(sXI, 20, "s100")
            if T is None:
                return
        self.weight_issue(kind, k, T, va)

    def weight_issue(self, kind, k, T, va):
        a = self.a
        pitch = {"q": 8192, "g": 3584, "d": 1024, "o": 1024}[kind]
        so, sl, rs = (sWo2, sWl2, sXI) if kind == "d" else (sWo, sWl, sT)
        a("s_add_u32 s%d, s%d, 0x%x" % (stmp, so, (32 if kind == "o" else 8) * pitch * k), "s_add_u32 m0, s%d, 0x%x" % (sl, 1024 * k))
        if T < 31:
            self.throttle(T, False)
        a("buffer_load_dwordx4 v%d, %s, s%d offen nt lds" % (va + (k & 1), srd(rs), stmp))
        self.ltok.append(a.mark())
        self.wtok[kind] = a.mark()

    def lines(self, fn, *args):
        keep, self.a = self.a, Asm()
        fn(*args)
        out, self.a = [i.text for i in self.a.l], keep
        return out

    def sched(self, lines, pre=()):
        out, t = schedule(lines, pre)
        self.a(*out)
        return t

    def s_zero(self):
        for r in range(vS, vS + 32, 2):
            self.a("v_mov_b64 %s, 0" % q(r, 2))

    def qk(self):
        a = self.a
        for k, p in enumerate(ORDER):
            d = vS + 4 * k
            for sg_ in range(2):
                for hf in range(2):
                    self.smf(d, q(vQ + 8 * sg_ + 4 * hf), q(16 * (2 * p + sg_) + 8 * hf, 8, "a"))
            a("v_add_f32 v%d, v%d, v%d" % (d, d, d + 1), "v_add_f32 v%d, v%d, v%d" % (d + 1, d + 2, d + 3))
            a("v_max3_f32 v7, v7, v%d, v%d" % (d, d + 1) if k else "v_max_f32 v7, v%d, v%d" % (d, d + 1))

    def ml_off(self, v, t):
        self.a("v_mov_b32 v%d, v%d" % (v, vA16), "v_and_b32 v%d, 15, v0" % t)
        self.oob_unless(v, t, "v_cmp_eq_u32 vcc, 0, v%d" % t)

    def softmax(self, vw, voff):
        a = self.a
        for k in (1, 2, 4, 8):
            self.dpp("v_max_f32", 7, 7, 7, "row_ror:%d" % k)
        a("v_mul_f32 v20, s%d, v7" % sSC, "s_mov_b32 s100, %s" % ONES)
        for k in range(8):
            r = q(vS + 4 * k, 2)
            a("v_pk_fma_f32 %s, %s, s[%d:%d], v[20:21] op_sel_hi:[1,0,0] neg_lo:[0,0,1] neg_hi:[0,0,1]" % (r, r, sSC, sSC + 1))
        for k in range(8):
            r = vS + 4 * k
            a("v_exp_f32 v%d, v%d" % (r, r), "v_exp_f32 v%d, v%d" % (r + 1, r + 1), "v_cvt_pk_bf16_f32 v%d, v%d, v%d" % (r + 2, r, r + 1))
            if k & 1:
                a("ds_write2st64_b32 v%d, v%d, v%d offset0:%d offset1:%d ; mem=p%d" % (vw, r - 2, r + 2, k - 1, k, k - 1))
        for k in range(8):
            a("v_dot2_f32_bf16 v21, v%d, s100, %s" % (vS + 4 * k + 2, "v21" if k else "0"))
        for k in (1, 2, 4, 8):
            self.dpp("v_add_f32", 21, 21, 21, "row_ror:%d" % k)
        self.st_intra("buffer_store_dwordx2", "v[20:21]", voff, sMLst, both=True)

    def ml_finish(self, r):
        a = self.a
        a("v_sub_f32 v%d, v%d, v20" % (r, r), "v_sub_f32 v%d, v%d, v20" % (r + 2, r + 2),
          "v_exp_f32 v%d, v%d" % (r, r), "v_exp_f32 v%d, v%d" % (r + 2, r + 2),
          "v_mul_f32 v7, v%d, v%d" % (r, r + 1), "v_fmac_f32 v7, v%d, v%d" % (r + 2, r + 3))
        for k in (1, 2, 4, 8):
            self.dpp("v_add_f32", 7, 7, 7, "row_ror:%d" % k)
        a("v_rcp_f32 v7, v7")

    def lds_or_zero(self, v, t, mask, val=0):
        self.a("v_and_b32 v%d, %d, v0" % (t, mask), "v_cmp_eq_u32 vcc, %d, v%d" % (val, t), "v_mov_b32 v%d, 0x%x" % (t, L_OOB),
               "v_cndmask_b32 v%d, v%d, v%d, vcc" % (v, t, v))

    def p_read(self, k, va, buf):
        self.a("ds_read_b128 %s, v%d offset:%d ; mem=p%d" % (q(vQ + 4 * buf), va, k * 256, k & ~1))

    def pv_dense(self, p, buf, lgkm=None):
        for i in range(8):
            if lgkm is not None:
                self.a("s_waitcnt lgkmcnt(%d)" % lgkm(i))
            self.mfma(vO + 4 * i, q(vQ + 4 * buf), q(self.vreg(p, i)), p > 0)

    def o_addr(self):
        self.sexpr(4, L_SCR, (sw, 512))
        self.a("v_and_b32 v22, 48, v0", "v_mul_u32_u24 v22, 112, v22", "v_add3_u32 v22, v22, v%d, s4" % vA16)

    def o_write(self, t0, t1, sparse):
        a = self.a
        for h, t in enumerate((t0, t1)):
            for i in range(4):
                o = vO + 16 * h + 4 * i
                a("v_add_f32 v%d, v%d, v%d" % (t + i, o, o + 1) if sparse else "v_mul_f32 v%d, v7, v%d" % (t + i, o))
            if sparse:
                for i in (0, 2):
                    a("v_pk_mul_f32 %s, %s, v[6:7] op_sel:[0,1] op_sel_hi:[1,1]" % (q(t + i, 2), q(t + i, 2)))
            a("ds_write_b128 v22, %s offset:%d" % (q(t), 256 * h))

    def w_tiles(self, kinds, va, t):
        a = self.a
        last = None
        for kind, dst in kinds:
            qs = 11 if kind == "d" else 12
            if qs != last:
                self.lin(va, t, (4, 1, 5), (3, 1, 6))
                a("s_lshl_b32 s100, s%d, 5" % sw, "v_xor_b32 v%d, s100, v%d" % (va, va), "v_add_u32 v%d, 0x%x, v%d" % (va, L_WQ, va))
                for sh, bits, sc in ((5, 1, qs), (3, 1, 10), (4, 1, 9), (2, 1, 7), (0, 2, 3)):
                    a("v_bfe_u32 v%d, v0, %d, %d" % (t, sh, bits), "v_lshl_add_u32 v%d, v%d, %d, v%d" % (va, t, sc, va))
                last = qs
            base = {"q": L_WQ, "g": L_WG, "d": L_WD}[kind] - L_WQ
            for kb in range(2 if kind == "d" else 4):
                for h in range(2):
                    a("ds_read_b64_tr_b16 %s, v%d offset:%d" % (q(dst + 4 * kb + 2 * h, 2), va,
                                                                  base + (kb & 1) * (2 << qs) + (kb >> 1) * 2048 + h * 256))

    def gemv_zero(self, d):
        self.a("v_mov_b64 %s, 0" % q(d, 2), "v_mov_b64 %s, 0" % q(d + 6, 2))

    def gemv4(self, x, W, d, ix):
        for k in range(2):
            self.smf(d + 4 * k, q(x), q(W + 8 * k, 8), ix)

    def gemv4_fin(self, out, d):
        self.a("v_add_f32 v%d, v%d, v%d" % (d, d, d + 1), "v_add_f32 v%d, v%d, v%d" % (d + 6, d + 6, d + 7),
               "v_add_f32 v%d, v%d, v%d" % (d, d, d + 6))
        self.pack_pairs(out, d)

    def colsum_pub(self, W, ones, d, va, t, off, *terms):
        a = self.a
        for r in range(4):
            a("v_mov_b32 v%d, %s" % (ones + r, ONES))
        self.lin(va, t, (0, 1, 10), (1, 3, 4))
        self.oob_unless(va, t, "v_cmp_gt_u32 vcc, 16, v0")
        self.sexpr(100, off, (sCS, 1), (sb, 4), (sw, 128), *terms)
        a("s_waitcnt lgkmcnt(0)")
        for kb in range(4):
            self.mfma(d, q(ones), q(W + 4 * kb), kb > 0)
        self.st_intra("buffer_store_dword", "v%d" % d, va, 100)

    def colsum_ld(self, r, off, sel):
        self.sexpr(100, off, (sCS, 1), (sel, 2048))
        self.a(self.ld(r, vA16, 100, 0), self.ld(r + 4, vA16, 100, 1024))

    def colsum_fin(self, r, c):
        for k in range(2):
            b = r + 4 * k
            self.a("v_add_f32 v%d, v%d, v%d" % (b, b, b + 1), "v_add_f32 v%d, v%d, v%d" % (b + 2, b + 2, b + 3),
                   "v_add_f32 v%d, v%d, v%d" % (b, b, b + 2), "v_mul_f32 v%d, %s, v%d" % (c + k, f32(-1.0 / 512), b))

    def stats(self, x, t, att):
        a = self.a
        s1, s2 = t, t + 1
        a("s_mov_b32 s100, %s" % ONES)
        for k in range(4):
            a("v_dot2_f32_bf16 v%d, v%d, s100, %s" % (s1, x + k, "v%d" % s1 if k else "0"),
              "v_dot2_f32_bf16 v%d, v%d, v%d, %s" % (s2, x + k, x + k, "v%d" % s2 if k else "0"))
        a("v_permlane32_swap_b32 v%d, v%d" % (s1, s2), "v_add_f32 v%d, v%d, v%d" % (s1, s1, s2))
        self.stats_fin(s1, t, att)

    def slice_sums(self, t, voff, soff):
        a = self.a
        a("v_mul_f32 v%d, v%d, v%d" % (t + 1, vRES, vRES))
        self.dpp("v_add_f32", t, vRES, vRES, "row_ror:8")
        self.dpp("v_add_f32", t + 1, t + 1, t + 1, "row_ror:8")
        a("v_cndmask_b32 v%d, v%d, v%d, s[%d:%d]" % (t, t, t + 1, sM1, sM1 + 1))
        for ctl in ("quad_perm:[1,0,3,2]", "quad_perm:[2,3,0,1]", "row_half_mirror"):
            self.dpp("v_add_f32", t, t, t, ctl)

    def st_off(self, v, t):
        self.lin(v, t, (5, 1, 8), (4, 1, 9), (3, 1, 7))
        self.a("v_and_b32 v%d, 7, v0" % t, "v_add_u32 v%d, s%d, v%d" % (t, sw, t))
        self.oob_unless(v, t, "v_cmp_eq_u32 vcc, 0, v%d" % t)

    def stats_fin(self, x, t, att):
        a = self.a
        s1, s2 = t, t + 1
        for k in (1, 2, 4, 8):
            self.dpp("v_add_f32", s1, x if k == 1 else s1, x if k == 1 else s1, "row_ror:%d" % k)
        self.dpp("v_add_f32", s1, s1, s1, "row_bcast:15", "0xa")
        a("v_readlane_b32 s%d, v%d, 31" % (sS1, s1), "v_mul_f32 v%d, %s, v%d" % (s1, f32(1.0 / 512), s1),
          "v_mov_b32 v%d, s%d" % (s2, sS1), "v_mul_f32 v%d, %s, v%d" % (s2, f32(1.0 / 512), s2),
          "v_fma_f32 v%d, -v%d, v%d, v%d" % (s1, s2, s2, s1), "v_max_f32 v%d, 0, v%d" % (s1, s1),
          "v_add_f32 v%d, %s, v%d" % (s1, f32(1e-5), s1))
        if att:
            a("v_rsq_f32 v%d, v%d" % (s1, s1), "v_mul_f32 v%d, %s, v%d" % (s1, f32(SCALE), s1))
        else:
            a("v_rcp_f32 v%d, v%d" % (s1, s1), "s_nop 0")
        a("v_readlane_b32 s%d, v%d, 63" % (sSC, s1))

    def sum4_init(self, acc, c):
        self.a("v_mul_f32 v%d, s%d, v%d" % (acc, sS1, c), "v_mul_f32 v%d, s%d, v%d" % (acc + 1, sS1, c + 1))

    def sum4(self, x, acc, init):
        for k in range(4):
            c = acc if k else init
            self.a("v_dot2_f32_bf16 v%d, v%d, s%d, v%d" % (acc, x + k, sLO, c),
                   "v_dot2_f32_bf16 v%d, v%d, s%d, v%d" % (acc + 1, x + k, sHI, c + 1))

    def q_addrs(self, vw, vr, t):
        a = self.a
        self.lin(vw, t, (3, 3, 5), (0, 1, 4), (1, 2, 2))
        self.sexpr(100, L_Q, (sw, QSTR))
        a("v_add_u32 v%d, s100, v%d" % (vw, vw))
        self.lin(vr, t, (4, 2, 5), (0, 1, 4))
        a("v_bfe_u32 v%d, v0, 2, 2" % t, "v_mul_u32_u24 v%d, %d, v%d" % (t, QSTR, t), "v_add_u32 v%d, v%d, v%d" % (vr, vr, t),
          "v_add_u32 v%d, 0x%x, v%d" % (vr, L_Q, vr), "v_mov_b32 v%d, v%d" % (vr + 1, vr))
        self.lds_or_zero(vr, t, 2, 0)
        self.lds_or_zero(vr + 1, t, 2, 2)

    def q_assemble(self, acc, vw, vr, fill=()):
        a = self.a
        a("v_cvt_pk_bf16_f32 v%d, v%d, v%d" % (acc, acc, acc + 1), "ds_write_b32 v%d, v%d" % (vw, acc), *fill)
        a("s_waitcnt lgkmcnt(0)", "s_barrier")
        rd = ["ds_read_b128 %s, v%d offset:%d" % (q(vQ + 4 * st), vr + (st >> 1), (st & 1) * 128) for st in range(4)]
        a(*rd)
        return rd

    def late_loads(self, name):
        self.layer1(name)
        for k in range(2):
            self.weight_issue("d", k, 32, 62)
        self.touch(59)
        self.a(name + ":")

    def next_region(self):
        for r in (sWS, sWF, sWL):
            self.a("s_add_u32 s%d, s%d, 0x%x" % (r, r, LS), "s_addc_u32 s%d, s%d, 0" % (r + 1, r + 1))
        self.a("s_sub_u32 s%d, s%d, 0x%x" % (sCS, sCS, LS))

    def leader_fill(self):
        a = self.a
        a("v_mov_b32 v8, -1", "v_mov_b32 v9, -1", "v_mov_b32 v10, -1", "v_mov_b32 v11, -1", "v_lshlrev_b32 v12, 2, v0",
          "s_or_b32 s%d, s%d, s%d" % (slead, sj, sw), "s_cmp_eq_u32 s%d, 0" % slead, "s_cbranch_scc0 L_nolead0")
        tk = a.mark()
        a("s_lshl_b32 s100, s%d, 17" % sg, "buffer_store_dword v8, v12, %s, s100 offen sc1" % srd(sWS), "L_nolead0:")
        a.uncounted(tk)
        self.tok_lead = tk

    def leader_flag(self, word, name, tok=None, val="1", v=54):
        a = self.a
        a("s_cmp_eq_u32 s%d, 0" % slead, "s_cbranch_scc0 " + name)
        if tok is not None:
            a.wait_vm(tok)
        tk = a.mark()
        a("v_mov_b32 v%d, %s" % (v + 1, val), "v_lshlrev_b32 v%d, 8, v0" % v, "s_lshl_b32 s100, s%d, 2" % sg,
          "buffer_store_dword v%d, v%d, %s, s100 offen offset:%d sc1" % (v + 1, v, srd(sDBG), word), name + ":")
        a.uncounted(tk)

    def flag_load(self, v, word, own):
        a = self.a
        if own:
            a("s_lshl_b32 s100, s%d, 2" % sg, "v_mov_b32 v%d, s100" % v)
        else:
            a("v_and_b32 v%d, 7, v0" % v, "v_lshlrev_b32 v%d, 2, v%d" % (v, v))
        return a("buffer_load_dword v%d, v%d, %s, 0 offen offset:%d sc1" % (v, v, srd(sDBG), word))

    def flag_check(self, v, word, own, tok, name):
        a = self.a
        a.wait_vm(tok)
        tk = a.mark()
        a("s_branch %s_c" % name, name + "_s:", "s_sleep 8")
        self.flag_load(v, word, own)
        a("s_add_u32 s%d, s%d, 1" % (sspin, sspin), "s_cmp_lt_u32 s%d, 0x%x" % (sspin, SPIN_LIMIT), "s_waitcnt vmcnt(0)",
          "s_cbranch_scc0 %s_d" % name, name + "_c:", "v_cmp_eq_u32 vcc, 0, v%d" % v, "s_cbranch_vccnz %s_s" % name, name + "_d:")
        a.uncounted(tk)

    def fill_intra(self, v, t, d, start, per_wave):
        a = self.a
        self.sexpr(100, start, (sg, 1 << 17), (sj, 4 * per_wave), (sw, per_wave))
        a("v_mov_b32 v%d, v%d" % (v, vA16))
        self.oob_unless(v, t, "v_cmp_gt_u32 vcc, %d, v0" % (per_wave // 16))
        self.st_intra("buffer_store_dwordx4", q(d), v, 100)

    def sentinels(self, d):
        for r in range(4):
            self.a("v_mov_b32 v%d, -1" % (d + r))

    def prologue(self):
        a = self.a
        if self.stamps:
            a("%s s[92:93]" % ("s_memtime" if self.cyc else "s_memrealtime"))
        a("s_load_dwordx16 s[4:19], s[0:1], 0", "s_load_dwordx8 s[20:27], s[0:1], 64",
          "v_lshrrev_b32 v1, 6, v0", "s_cmpk_ge_u32 s2, 256", "v_readfirstlane_b32 s%d, v1" % sw, "s_cbranch_scc1 L_end")
        a("v_and_b32 v0, 63, v0", "s_and_b32 s%d, s2, 7" % sg, "s_lshr_b32 s%d, s2, 3" % sj, "s_lshr_b32 s%d, s2, 6" % sb,
          "s_and_b32 s%d, s%d, 7" % (ss, sj), "s_lshl2_add_u32 s%d, s%d, s%d" % (su, ss, sw),
          "s_lshl3_add_u32 s100, s%d, s%d" % (sb, sg), "s_lshl_b32 s100, s100, 21", "s_mul_i32 s%d, s%d, %d" % (sring, sw, RING))
        a("s_lshl_b32 s%d, s%d, 12" % (su, su), "s_lshl2_add_u32 s%d, s%d, s%d" % (srot, sb, sg),
          "s_and_b32 s%d, s%d, 15" % (srot, srot), "s_lshl_b32 s%d, s%d, 17" % (srot, srot))
        a("v_lshrrev_b32 v5, 4, v0", "v_and_b32 v6, 15, v0", "v_xor_b32 v7, v5, v6", "v_lshlrev_b32 v7, 4, v7",
          "v_lshl_add_u32 v%d, v5, 8, v7" % vKS)
        a("v_xor_b32 v%d, 64, v%d" % (vKS + 1, vKS), "v_xor_b32 v%d, 128, v%d" % (vKS + 2, vKS), "v_xor_b32 v%d, 64, v%d" % (vKS + 3, vKS + 2),
          "s_lshl_b32 s98, s2, 10", "s_bitset1_b32 s98, 22", "v_mov_b32 v9, s98", "v_xor_b32 v10, 0x2000, v9",
          "s_lshl_b32 s%d, 1, 21" % (sK + 2), "s_mov_b32 s%d, 0x20000" % (sK + 3))
        self.tok, self.ltok, self.wtok = {}, [], {}
        first = self.lines(self.tile_issue, 0)
        self.tok, self.ltok = {}, []
        a(*first[:2])
        a("s_waitcnt lgkmcnt(0)", "global_load_dword v95, v9, s[26:27] sc1")
        tok_cal = a.mark()
        a("global_load_dword v95, v10, s[26:27] offset:128 sc1", "s_add_u32 s%d, s6, s100" % sK, "s_addc_u32 s%d, s7, 0" % (sK + 1))
        for x in first[2:]:
            self.ltok.append(a(x))
        self.tok[0] = a.mark()
        a("s_cmp_eq_u32 s%d, 0" % sw, "s_cbranch_scc0 L_novote")
        a.wait_vm(tok_cal)
        a("L_novote:", "s_add_u32 s%d, s8, s100" % sV, "s_addc_u32 s%d, s9, 0" % (sV + 1), "s_mov_b32 s%d, s%d" % (sV + 2, sK + 2),
          "s_getreg_b32 s99, hwreg(HW_REG_IB_STS, 0, 4)", "L_entered:")
        self.tile_issue(1)
        a("s_mov_b32 s%d, 0x20000" % (sV + 3))
        a("v_lshl_add_u32 v%d, v6, 8, v7" % vKR, "v_add_u32 v%d, s%d, v%d" % (vKR, sring, vKR))
        for st in range(1, 4):
            a("v_xor_b32 v%d, %d, v%d" % (vKR + st, st << 6, vKR))
        a("v_lshlrev_b32 v%d, 4, v0" % vA16)
        self.mk_srd(sDBG, 24, "256")
        self.mk_srd(sWS, 26, "0x%x" % WS_SIZE)
        self.mk_srd(sOUT, 22, "4096")
        a("s_add_u32 s%d, s26, 0x%x" % (sXW, OFF_XW), "s_addc_u32 s%d, s27, 0" % (sXW + 1),
          "s_mov_b32 s%d, 0x%x" % (sXW + 2, OFF_TK + len(self.tk) * 4096), "s_mov_b32 s%d, 0x20000" % (sXW + 3))
        if self.stamps:
            a("v_mov_b32 v4, 0", "v_writelane_b32 v4, s92, 0")
            self.nst = 1
            self.stamp_names.append("entry")
        self.stamp("start")
        a("s_cmp_gt_u32 s99, 4", "s_cselect_b32 s%d, 16, 0" % svote)
        self.setup_b()
        self.setup_c()

    def setup_a(self):
        a = self.a
        self.mk_srd(sXI, 4, "4096")
        self.lin(6, 7, (4, 2, 6), (2, 2, 10), (0, 2, 4))
        self.lin(5, 7, (5, 1, 10), (4, 1, 11), (0, 4, 1))
        a("s_lshl_b32 s100, s%d, 8" % sb, "s_lshl_b32 s101, s%d, 10" % sb, "s_lshl_b32 s%d, s%d, 5" % (stmp, sj),
          "buffer_load_dwordx4 %s, v6, %s, s100 offen" % (q(vX), srd(sXI)),
          "buffer_load_dwordx4 %s, v%d, %s, s101 offen" % (q(vX + 4), vA16, srd(sXI)),
          "buffer_load_ushort v%d, v5, %s, s%d offen" % (vRES, srd(sXI), stmp))

    def early_fill(self):
        a = self.a
        self.sexpr(100, 0, (sj, 32768), (sg, 2048), (sw, 512))
        if not self.tk:
            a("v_mov_b32 v12, v%d" % vA16)
            self.oob_unless(12, 13, "v_cmp_gt_u32 vcc, 32, v0")
            a("buffer_store_dwordx4 v[8:11], v12, %s, s100 offen sc1" % srd(sXW))
            return
        a("v_add_u32 v12, s100, v%d" % vA16)
        self.sexpr(100, OFF_TK - 512, (2, 128))
        a("v_add_u32 v13, s100, v%d" % vA16, "v_cmp_gt_u32 vcc, 32, v0", "v_cndmask_b32 v12, v13, v12, vcc",
          "s_cmp_eq_u32 s%d, 3" % sw, "s_cselect_b32 s100, 40, 32")
        self.oob_unless(12, 13, "v_cmp_gt_u32 vcc, s100, v0")
        a("buffer_store_dwordx4 v[8:11], v12, %s, 0 offen sc1" % srd(sXW),
          "v_mov_b32 v98, 0x%x" % (L_SCR + 1024), "v_mov_b32 v99, %d" % self.th[0], "ds_write_b32 v98, v99", "v_lshlrev_b32 v101, 24, v0")
        self.sexpr(91, 0, (sj, 1), (sg, 3))
        a("s_and_b32 s91, s91, %d" % (256 // self.tkn - 1), "s_lshl_b32 s91, s91, 7", "s_add_u32 s91, s91, 0x%x" % OFF_TK)

    def setup_b(self):
        a = self.a
        self.mk_srd(sWF, sWS, "0")
        self.mk_srd(sWL, sWS, "0x%x" % WS_SIZE)
        G = (sg, 1 << 17)
        self.sexpr(sCS, 2 * LS, G)
        a("s_lshr_b32 s%d, s%d, 1" % (stmp, ss), "s_and_b32 s100, s%d, 1" % ss)
        self.sexpr(sEst, OFF_E, G, (stmp, 1024), (100, 128), (sw, 32), (sb, 256))
        self.sexpr(sEld, OFF_E, G, (sb, 4096), (sw, 1024))
        self.sexpr(sMLld, OFF_ML, G, (sb, 1024))
        a("s_lshr_b32 s%d, s%d, 9" % (sMLst, su), "s_add_u32 s%d, s%d, s%d" % (sMLst, sMLst, sMLld),
          "s_mov_b32 s%d, 0" % slayer, "s_mov_b32 s%d, 0" % sspin, "s_mov_b32 s%d, -2" % scmp,
          "s_mov_b32 s%d, 0x3f80" % sLO, "s_mov_b32 s%d, 0x3f800000" % sHI,
          "s_and_b32 s100, s%d, 3" % ss, "s_cmp_eq_u32 s100, 3", "s_cselect_b32 s%d, 0, 1" % sact,
          "s_cmp_eq_u32 s%d, 3" % sb, "s_cselect_b32 s100, 0, 2", "s_or_b32 s%d, s%d, s100" % (sact, sact),
          "s_bitcmp1_b32 s%d, 0" % sg, "s_cselect_b32 s%d, s%d, 3" % (sact, sact))

    def setup_c(self):
        a = self.a
        G = (sg, 1 << 17)
        a("s_lshr_b32 s%d, s%d, 2" % (stmp, ss), "s_and_b32 s100, s%d, 3" % ss)
        self.sexpr(sAst, OFF_A, G, (sw, 8192), (stmp, 4096), (sb, 1024), (100, 256))
        self.sexpr(sCst, OFF_C, G, (100, 4096), (stmp, 128), (sw, 32), (sb, 256))
        self.sexpr(sAld, OFF_A, G, (sb, 8192), (sw, 2048))
        self.sexpr(sCld, OFF_C, G, (sb, 4096), (sw, 1024))
        self.sexpr(sBst, 0, (su, 8), (sg, 512), (sb, 128))
        self.sexpr(sBld, 0, (sj, 32768))
        a("s_lshr_b32 s%d, s%d, 1" % (stmp, sj), "s_and_b32 s100, s%d, 1" % sj)
        self.sexpr(sXst, OFF_XB, G, (stmp, 256), (100, 32))
        self.sexpr(sXld, OFF_XB, G, (sb, 1024))
        self.sexpr(sRow, OFF_ST, G)
        a("s_mov_b32 s%d, 0xff00ff00" % sM1, "s_mov_b32 s%d, 0xff00ff00" % (sM1 + 1))
        self.lin(vTRV, 7, (2, 1, 12), (4, 2, 10), (3, 1, 8), (4, 1, 7), (2, 1, 6), (3, 1, 5), (0, 2, 3))
        a("v_add_u32 v%d, s%d, v%d" % (vTRV, sring, vTRV))

    def part_off(self, v, t, bs, cmp="0"):
        self.lin(v, t, (4, 2, bs), (0, 4, 1))
        self.even_only(v, t, cmp)

    def group_flag(self, k, val):
        a = self.a
        a("v_mov_b32 v14, %s" % val, "v_add_u32 v15, s%d, v0" % sw, "v_lshlrev_b32 v15, 24, v15")
        self.sexpr(100, 128 * k, (sg, 1 << 17), (sj, 4))
        self.st_intra("buffer_store_dword", "v14", 15, 100)

    def stream(self):
        a = self.a
        lag = self.lag
        t_dl, t_f1, t_l1, t_c1, t_f2, t_l2, t_c2 = self.sync
        wl = {}
        for kind, ts in (("q", self.tq), ("g", self.tg)):
            for k, T in enumerate(ts):
                wl.setdefault(T, []).append((kind, k))
        tqk = max(t_c2 + 2, 16 + lag)
        assert self.clr1 <= t_dl and self.tq[-1] + 2 <= t_c1 and self.tg[-1] + 2 <= t_f2
        pvat = {}
        for p in range(5):
            pvat.setdefault(max(tqk + 3 + (p >> 1), 17 + 2 * p + lag), []).append(p)
        assert min(self.ipf, self.tml, self.tclr) >= tqk + 3 and max(pvat) < 32
        vF = 94
        G17 = "s_lshl_b32 s101, s%d, 17" % sg
        qk = None
        assert self.tml + 2 <= self.tfin <= self.tp5 and max(pvat) <= self.tp5

        def lds_pv(p):
            a("; PV of a group that stays in LDS")
            self.p_read(ORDER.index(p), 16, p & 1)
            if p == self.ogate[0]:
                a("; Wo follows once most of V has landed")
                for k in range(4):
                    a.wait_vm(self.tok[31] - self.ogate[1 + k])
                    self.weight_issue("o", k, 31, 18)
            a.wait_vm(self.tok[17 + 2 * p])
            self.sched(self.lines(self.v_reads, p) + self.lines(self.pv_dense, p, p & 1)
                       + (self.lines(self.o_write, 8, 16, False) if p == 7 else []))
        for T in range(1, 32):
            if T == 16:
                self.lin(5, 7, (4, 2, 8), (0, 4, 4))
                a("v_and_b32 v7, 16, v0", "v_lshlrev_b32 v7, 1, v7", "v_xor_b32 v5, v5, v7", "v_xor_b32 v6, 128, v5")
                self.mk_ai()
            between = None
            if T in (tqk + 1, tqk + 2):
                def between(jj):
                    a(*qk.pop(0))
            if T > 1:
                a("; tile %d (%s)" % (T, "K" if T < 16 else "V"))
            if T > 1:
                self.tile_issue(T, between)
            if T == 1:
                a("; code into L2; wave 0 of workgroup j = 0 resets the kv head's two flag arrays; x quarter, x row and residual slice")
                self.code_prefetch(93, 98, "L_pc0", "L_pc0")
                self.leader_fill()
            for kind, k in wl.get(T, []):
                self.weight_load(kind, k, T)
            if T == self.tfin - 1:
                self.weight_load("o", 0, None, 18)
            if self.stamps is not True and T > 1:
                self.stamp("T%02d" % T)
            if T == 1:
                self.setup_a()
            if T == self.clr1:
                a('; sentinel fill of the first two cross-die slots and of the arrival counters')
                self.early_fill()
            if T - 3 in self.tk:
                a("; early workgroups keep fewer loads in flight, late ones more, so that all finish the stream together")
                assert T < 25 + lag
                a("ds_read_b32 v100, v98", "s_waitcnt lgkmcnt(0)", "v_readfirstlane_b32 s4, v100",
                  "s_cmp_ge_u32 s4, %d" % self.th[0], "s_cselect_b32 s%d, 1, 0" % smode, "s_cmp_ge_u32 s4, %d" % self.th[1],
                  "s_addc_u32 s%d, s%d, 0" % (smode, smode))
            if lag <= T < 26 + lag:
                self.tile_consume(T - lag)
            if T == 2:
                a('; d_debug[g] = 1: flag arrays are reset')
                self.leader_flag(0, "L_nolead1", self.tok_lead)
            if T == t_dl:
                tok_f = self.flag_load(vF, 0, True)
            if T == t_f1:
                a('; flag 1 = die id + probe vote, set after the fills of all four waves; LayerNorm statistics of x[b]')
                self.flag_check(vF, 0, True, tok_f, "L_f0")
                a("s_barrier", "s_getreg_b32 s%d, hwreg(HW_REG_XCC_ID, 0, 4)" % stmp, "s_or_b32 s%d, s%d, s%d" % (stmp, stmp, svote))
                self.group_flag(0, "s%d" % stmp)
                a("v_lshlrev_b32 v%d, 16, v%d" % (vRES, vRES))
                self.stats(vX + 4, 8, True)
            if T in (t_l1, t_l2):
                fld = self.ld(vF, vF + 1, 101, 0 if T == t_l1 else 128, n=1)
                a("v_and_b32 v%d, 31, v0" % (vF + 1), "v_lshlrev_b32 v%d, 2, v%d" % (vF + 1, vF + 1), G17)
                tok_f = a(fld)
            if T == t_c1:
                a('; all 32 flags: same die -> plain stores through L2, else write-through; q partials and Wq column sums; fill of ML / A')
                self.check_or_poll([fld], [[vF]], 7, "xcc", max(tok_f, self.wtok["q"]), [G17])
                a("s_barrier")
                self.w_tiles([("q", vWQ)], 5, 7)
                a("v_cmp_lt_u32 vcc, 15, v%d" % vF, "v_and_b32 v%d, 15, v%d" % (vF, vF),
                  "s_and_b32 s100, vcc_lo, 0x55555555", "s_and_b32 s101, vcc_lo, 0xaaaaaaaa",
                  "s_bcnt1_i32_b32 s100, s100", "s_bcnt1_i32_b32 s101, s101")
                if self.stamps:
                    a("v_writelane_b32 v4, s100, 28", "v_writelane_b32 v4, s101, 29")
                a("s_getreg_b32 s%d, hwreg(HW_REG_XCC_ID, 0, 4)" % svote, "s_sub_u32 s%d, s100, s101" % stmp, "s_sub_u32 s101, s101, s100",
                  "s_bitcmp1_b32 s%d, 2" % svote, "s_cselect_b32 s101, s101, s%d" % stmp, "s_add_u32 s101, s101, 64")
                self.leader_flag(32, "L_nolead2", val="s101")
                if not self.force_slow:
                    a("v_cmp_ne_u32 vcc, s%d, v%d" % (svote, vF), "s_cmp_eq_u64 vcc, 0",
                      "s_cselect_b32 s%d, 0x%x, 0" % (sWF + 2, WS_SIZE), "s_cselect_b32 s%d, 0, 0x%x" % (sWL + 2, WS_SIZE))
                self.part_off(6, 7, 12)
                a("s_lshr_b32 s%d, s%d, 1" % (stmp, ss), "s_and_b32 s%d, s%d, 1" % (sclr, ss))
                self.colsum_pub(vWQ, 12, 16, 10, 11, OFF_CSQ, (stmp, 2048), (sclr, 512))
                self.mk_ix(8)
                self.gemv_zero(vD)
                self.gemv4(vX, vWQ, vD, 8)
                self.sentinels(20)
                self.gemv4_fin(9, vD)
                self.st_intra("buffer_store_dword", "v9", 6, sEst)
                self.fill_intra(24, 7, 20, LS + OFF_ML, 288)
                tok_q = a.mark()
                self.stamp("arrive")
            if T == t_f2:
                a('; flag 2: q partials and fills are visible; gate / up column sums')
                a.wait_vm(max(tok_q, self.wtok["g"]))
                a("s_barrier")
                self.group_flag(1, "1")
                self.w_tiles([("g", vWQ)], 5, 7)
                a("s_lshr_b32 s%d, s%d, 2" % (stmp, ss), "s_and_b32 s%d, s%d, 3" % (sclr, ss))
                self.colsum_pub(vWQ, 16, 20, 10, 11, OFF_CSG, (sclr, 2048), (stmp, 512))
            if T == t_c2:
                a('; fetch the q partials')
                self.check_or_poll([fld], [[vF]], 7, "q1", tok_f, [G17])
                self.colsum_ld(28, OFF_CSQ, sw)
                tok_q = a("v_lshlrev_b32 v7, 2, v0", *self.ld4(24, 7, sEld))
                self.next_region()
                self.stamp("barrier")
            if T == t_c2 + 1:
                self.s_zero()
                self.q_addrs(40, 42, 7)
            if T == tqk:
                a('; q = sum of partials - mean * column sum; QK^T and softmax run between the next loads')
                a.wait_vm(tok_q)
                self.colsum_fin(28, 36)
                self.sum4_init(38, 36)
                self.sum4(24, 38, 38)
                self.q_assemble(38, 40, 42)
                ls, _ = schedule(self.lines(self.qk))
                qk = [ls[len(ls) * k // 4:len(ls) * (k + 1) // 4] for k in range(4)]
            if T == tqk + 1:
                self.ml_off(22, 23)
                self.sexpr(100, L_WD, (sw, 2048))
                self.lin(16, 23, (2, 2, 6), (4, 2, 4))
                a("v_add_u32 v16, s100, v16", "v_lshl_add_u32 v17, v0, 2, s100")
                self.lds_or_zero(16, 23, 3)
                ls, _ = schedule(self.lines(self.softmax, 17, 22))
                qk = [ls[len(ls) * k // 4:len(ls) * (k + 1) // 4] for k in range(4)]
            if T == tqk + 2:
                self.stamp("softmax1")
            for p in pvat.get(T, ()):
                a('; PV of one 32-key group')
                self.p_read(ORDER.index(p), 16, p & 1)
                a("s_waitcnt lgkmcnt(0)")
                self.pv_dense(p, p & 1)
            for c, tw in enumerate(self.tk):
                if T == tw + 2:
                    a("s_cmp_eq_u32 s%d, %d" % (sw, self.tkw), "s_cbranch_scc0 L_tkb%d" % c)
                    a.wait_vm(tok_tk)
                    a("v_readfirstlane_b32 s4, v99", "s_add_u32 s4, s4, 1", "v_mov_b32 v99, s4", "ds_write_b32 v98, v99", "L_tkb%d:" % c)
                if T == tw:
                    a("; arrival rank among eight workgroups, one per kv head")
                    tok_tk = a.mark()
                    a("s_cmp_eq_u32 s%d, %d" % (sw, self.tkw), "s_cbranch_scc0 L_tka%d" % c, "v_mov_b32 v99, 1",
                      "buffer_atomic_add v99, v101, %s, s91 offen sc0 sc1" % srd(sXW), "s_add_u32 s91, s91, 4096", "L_tka%d:" % c)
                    a.uncounted(tok_tk)
            if T == self.ipf:
                self.code_prefetch(80, 4, "L_pc1", "L_tail")
            if T == self.tml:
                ml1 = [self.ld(64, vA16, sMLld)]
                a(*ml1)
                tok_warm = self.flag_load(70, 32, False)
            if T == self.tclr:
                a('; sentinel fill of the remaining per-head slots')
                self.sentinels(72)
                self.fill_intra(76, 77, 72, OFF_C, 352)
                self.fill_intra(78, 77, 72, LS, 480)
            if T == self.tfin:
                a('; all eight heads have filled their cross-die slots; summed votes pick the near copy')
                self.flag_check(70, 32, False, tok_warm, "L_f1")
                for k in (1, 2, 4):
                    self.dpp("v_add_u32", 70, 70, 70, "row_ror:%d" % k)
                a("v_readfirstlane_b32 s100, v70", "s_cmpk_ge_u32 s100, 512", "s_cselect_b32 s100, 0, 4", "s_xor_b32 s100, s100, s%d" % svote,
                  "s_bitcmp1_b32 s100, 2", "s_cselect_b32 s100, %s" % {1: "0x2000, 0", 2: "0, 0x2000"}[self.near],
                  "s_add_u32 s%d, s%d, s100" % (sBld, sBld), "s_add_u32 s%d, s%d, s100" % (sB2, sBst), "s_xor_b32 s%d, s%d, 0x2000" % (sBst, sB2))
                self.check_or_poll(ml1, [range(64, 68)], 69, "ml1", tok_warm)
                self.ml_finish(64)
                self.o_addr()
                a("s_mov_b32 s%d, 1" % slayer)
                a(*[x for x in self.lines(self.weight_load, "d", 0, None, 62) if x.startswith("s_")])
            if T == self.tp5:
                lds_pv(5)
        self.stamp("issued")
        for p in (5, 6, 7):
            if p > 5 or self.tp5 > 31:
                lds_pv(p)
        self.n_after_o = min(a.mark() - self.wtok["o"], 60)
        self.stamp("pv1")

    def code_prefetch(self, v, sp, here, start):
        a = self.a
        a("s_getpc_b64 s[%d:%d]" % (sp, sp + 1), here + ":")
        if start != here:
            a("s_add_u32 s%d, s%d, %s-%s" % (sp, sp, start, here), "s_addc_u32 s%d, s%d, 0" % (sp + 1, sp + 1))
        self.sexpr(100, 0, (sj, 512), (sw, 128))
        a("s_min_u32 s100, s100, L_codeend-%s-4" % start, "v_mov_b32 v%d, s100" % v, "global_load_dword v%d, v%d, s[%d:%d]" % (v, v, sp, sp + 1))

    def touch_addr(self, v, t, parts):
        a = self.a
        a("v_mov_b32 v%d, 0x%x" % (v, OOB), "v_lshl_add_u32 v%d, v0, 2, s%d" % (t + 1, sw))
        hi = sum(n for _, n in parts)
        for start, n in reversed(parts):
            self.sexpr(100, start - 128 * (hi - n), (sg, 1 << 17), (sj, 128 * n))
            a("v_lshl_add_u32 v%d, v%d, 7, s100" % (t, t + 1), "v_cmp_gt_u32 vcc, %d, v%d" % (hi, t + 1),
              "v_cndmask_b32 v%d, v%d, v%d, vcc" % (v, v, t))
            hi -= n

    def touch(self, v):
        return self.a("buffer_load_dword v%d, v%d, %s, 0 offen sc1" % (v, v, srd(sWS)))

    def fill_cross(self, d, hop):
        self.sentinels(d)
        self.lin(d + 4, d + 5, (4, 2, 15), (3, 1, 13), (0, 3, 4))
        self.sexpr(100, (hop >> 1) * 0x4000 + (hop & 1) * 0x1000, (ss, 1 << 17), (sg, 512), (sb, 128))
        self.a("buffer_store_dwordx4 %s, v%d, %s, s100 offen sc1" % (q(d), d + 4, srd(sXW)))

    def st_cross(self, v):
        a = self.a
        for so in (sBst, sB2):
            a("buffer_store_dword v%d, v95, %s, s%d offen sc1" % (v, srd(sXW), so))

    def red_loads(self, x, soff):
        return [self.ld(x + 4 * i, vA16, soff, i * 1024, rs=sXW) for i in range(4)]

    def prep_split(self, name, work, loads):
        a = self.a
        n = self.at[name][0]
        while n < len(work) and work[n].startswith(("s_cselect", "s_addc", "s_cbranch")):
            n += 1
        a(*work[:n])
        a("s_cmp_eq_u32 s%d, 0" % sw, "s_cbranch_scc0 L_%s_n" % name)
        self.idle(n - len(work))
        a(*loads)
        a("L_%s_n:" % name, *work[n:])
        self.est += (name, len(work))

    def reduce_x(self, name, x, d, soff):
        a = self.a
        self.poll(self.red_loads(x, soff), [range(x + 4 * i, x + 4 * i + 4) for i in range(4)], 7, name,
                  spec=lambda i: self.mfma(d, q(x + 4 * i), q(vSEL), i > 0), again=self.kx)
        m = "s[%d:%d]" % (sM1, sM1 + 1)
        a("v_cndmask_b32 v%d, v%d, v%d, %s" % (d, d, d + 1, m), "v_cndmask_b32 v%d, v%d, v%d, %s" % (d + 2, d + 2, d + 3, m),
          "v_permlane32_swap_b32 v%d, v%d" % (d, d + 2), "v_add_f32 v%d, v%d, v%d" % (vRES, vRES, d),
          "v_add_f32 v%d, v%d, v%d" % (vRES, vRES, d + 2))
        self.pack_pairs(7, vRES)

    def x_off(self, v, t, bs):
        self.lin(v, t, (5, 1, bs), (4, 1, bs + 1), (0, 4, 1))
        self.even_only(v, t)

    def layer1(self, name):
        self.a("s_cmp_eq_u32 s%d, 1" % slayer, "s_cbranch_scc0 " + name)

    def chain(self):
        a = self.a
        a("L_tail:")
        self.lin(23, 6, (2, 4, 4), (1, 1, 8), (0, 1, 3))
        self.sexpr(sclr, L_SCR, (sw, 2048))
        a("v_add_u32 v23, s%d, v23" % sclr, "s_waitcnt lgkmcnt(0)", "s_barrier")
        for src in range(4):
            a("ds_read_b64 %s, v23 offset:%d" % (q(8 + 2 * src, 2), src * 512))
        a("v_lshlrev_b32 v17, 2, v0", "s_mov_b32 m0, s%d" % sclr)
        self.lin(56, 16, (2, 2, 9), (4, 2, 7), (2, 2, 5), (0, 2, 3))
        a("s_lshl_b32 s100, s%d, 5" % sw, "v_xor_b32 v56, s100, v56", "v_add_u32 v56, 0x%x, v56" % L_WO)
        a("s_waitcnt lgkmcnt(2)", "v_pk_add_f32 v[8:9], v[8:9], v[10:11]", "s_waitcnt lgkmcnt(0)", "v_pk_add_f32 v[12:13], v[12:13], v[14:15]",
          "v_pk_add_f32 v[8:9], v[8:9], v[12:13]", "v_cvt_pk_bf16_f32 v7, v8, v9")
        self.st_intra("buffer_store_dword", "v7", 17, sAst)
        self.stamp("Apub", True)
        if self.stamps:
            a("s_mov_b32 m0, s%d" % sclr)
        a("v_lshrrev_b32 v5, 4, v0", "v_and_b32 v6, 15, v0", "v_xor_b32 v16, v5, v6", "v_lshlrev_b32 v16, 4, v16",
          "v_lshl_add_u32 v18, v5, 8, v16", "s_and_b32 s100, s%d, 1" % sw, "s_lshl_b32 s100, s100, 7", "v_xor_b32 v18, s100, v18",
          "v_xor_b32 v19, 64, v18")
        lda = ["buffer_load_dwordx4 v%d, %s, s%d offen offset:%d sc1 lds" % (18 + h, srd(sWS), sAld, h * 1024) for h in range(2)]

        def prep_a():
            a = self.a
            a("v_lshl_add_u32 v20, v6, 8, v16", "v_add_u32 v20, 0x%x, v20" % L_SCR)
            for st in range(1, 4):
                a("v_xor_b32 v%d, %d, v20" % (20 + st, st << 6))
            a("v_add_u32 v5, s%d, v%d" % (sclr, vA16), "v_lshlrev_b32 v95, 1, v0")
            self.even_only(95, 6)
            a(*[x for x in self.lines(self.weight_load, "d", 0, None, 62) if x.startswith("v_")])
            self.touch_addr(59, 60, T1)
        n = self.with_loads("pollA", self.lines(prep_a), lda)
        a("s_waitcnt vmcnt(%d)" % (1 + 2 * n + self.n_after_o), "s_barrier")
        for st in range(4):
            for h in range(2):
                a("ds_read_b64_tr_b16 %s, v56 offset:%d" % (q(24 + 4 * st + 2 * h, 2), st * 4096 + h * 2048))
        a("s_branch L_pollA_w", "L_pollA:", *lda)
        a(*self.spin_count())
        a("L_pollA_w:", "s_waitcnt vmcnt(%d)" % (2 * n - 1), "ds_read_b128 v[8:11], v5", "s_waitcnt vmcnt(%d)" % (2 * n - 2),
          "ds_read_b128 v[12:15], v5 offset:1024")
        ck = self.lines(self.check, [range(8, 12), range(12, 16)], 7, 0)
        a("s_waitcnt lgkmcnt(1)", *ck[:2], "s_waitcnt lgkmcnt(0)", *ck[2:])
        a("s_cbranch_vccnz L_pollA")
        if self.stamps is not True:
            self.stamp("pollA", True)
        a("s_barrier")
        ops = [40, 44, 48, 52, 64, 68, 72, 76]
        rd = ["ds_read_b128 %s, v%d offset:%d" % (q(ops[k]), 20 + (k >> 1), (k & 1) * 4096) for k in range(8)]
        m = self.oahead
        a(*rd[:m])
        self.late_loads("L_l1b")
        for k in range(8):
            a("s_waitcnt lgkmcnt(%d)" % (min(8, m + k) - k - 1))
            self.mfma(8, q(ops[k]), q(24 + 4 * (k >> 1)), k > 0)
            if m + k < 8:
                a(rd[m + k])
        a("v_add_f32 v8, v8, v9", "v_add_f32 v10, v10, v11", "v_add_f32 v8, v8, v10")
        self.pack_pairs(7, 8)
        self.st_cross(7)
        self.stamp("Bpub", True)
        self.colsum_ld(80, OFF_CSG, sb)
        self.layer1("L_l1c")
        self.colsum_ld(24, OFF_CSQ, sw)
        a("L_l1c:")
        wt = self.lines(self.w_tiles, [("d", vWD)], 91, 7)

        def prep_b():
            a = self.a
            self.w_tiles([("g", vWG), ("q", vWQ)], 5, 7)
            a("v_and_b32 v5, 1, v0", "v_lshlrev_b32 v5, 4, v5", "v_lshlrev_b32 v5, v5, s%d" % sLO, "v_bfe_u32 v6, v0, 1, 2")
            for r in range(4):
                a("v_cmp_eq_u32 vcc, %d, v6" % r, "v_cndmask_b32 v%d, 0, v5, vcc" % (vSEL + r))
            self.x_off(94, 7, 6)
            self.st_off(93, 7)
            a("s_bitcmp1_b32 s%d, 0" % sact, "s_cselect_b32 s%d, 0, -1" % stmp)
            self.part_off(92, 7, 10, "s%d" % stmp)
            self.lin(89, 7, (0, 5, 2), (5, 1, 1))
            self.sexpr(100, L_H, (sw, 128))
            a("v_add_u32 v89, s100, v89")
            self.mk_ix(90)
            self.lin(88, 7, (2, 2, 7), (0, 1, 4), (4, 2, 5))
            a("v_add_u32 v88, 0x%x, v88" % L_H)
            a(*[x for x in wt if not x.startswith("ds_")])
            self.sexpr(stmp, 0, (sRow, 1), (sw, 256))
            self.sexpr(sclr, 0, (sRow, 1), (sj, 4))
            a("s_add_u32 s%d, s%d, 0x1000" % (sBst, sBst), "s_add_u32 s%d, s%d, 0x1000" % (sB2, sB2))
        self.prep_split("pollB", self.lines(prep_b), self.red_loads(vX, sBld))
        aux = [self.ld(vX + 4, 91, stmp, n=1)]
        a("s_waitcnt lgkmcnt(0)", "s_cmp_eq_u32 s%d, 0" % sw, "s_cbranch_scc0 L_nored1")
        self.cold += (["L_nored1:", "s_lshl2_add_u32 s100, s%d, s%d" % (slayer, sw), "s_cmp_eq_u32 s100, 5", "s_cbranch_scc0 L_nof2"]
                      + self.lines(self.fill_cross, vX + 8, 2) + ["L_nof2:", "s_waitcnt vmcnt(0)", "s_branch L_red1"])
        self.reduce_x("pollB", vX, vD, sBld)
        self.st_intra("buffer_store_dword", "v7", 94, sXst)
        a("v_lshlrev_b32 v%d, 16, v7" % vRES)
        self.stamp("XBpub", True)
        a("L_red1:", "s_barrier")
        ldx = [self.ld(vX, vA16, sXld)]
        work, _ = schedule(self.lines(self.colsum_fin, 24, vCQ) + self.lines(self.colsum_fin, 80, vCG) + self.lines(self.gemv_zero, vD)
                           + [x + " ; prio=100" for x in self.lines(self.slice_sums, 5, 93, sclr)])
        k = max(i for i, x in enumerate(work) if "_dpp" in x) + 1
        ex = int(self.at["pollXB"][0] <= k)
        work[k:k] = self.lines(self.st_intra, "buffer_store_dword", "v5", 93, sclr)
        self.with_loads("pollXB", work, ldx)
        a(*[x for x in wt if x.startswith("ds_")])
        a("v_lshlrev_b32 v91, 2, v0")
        self.poll(ldx, [range(vX, vX + 4)], 7, "pollXB", self.lines(self.gemv4, vX, vWG, vD, 90), self.lines(self.gemv_zero, vD), extra=ex)
        a(*aux)
        self.gemv4_fin(6, vD)
        self.st_intra("buffer_store_dword", "v6", 92, sCst)
        self.stamp("Cpub", True)
        a("v_mov_b32 v5, 0", "s_bitcmp1_b32 s%d, 1" % sact, "s_cbranch_scc0 L_nod")
        ldc = self.ld4(vX, 91, sCld)
        st = self.lines(self.stats_fin, vX + 4, vD, False) + self.lines(self.sum4_init, vD + 2, vCG)
        self.stats_poll("pollC", aux, vX + 4, st, ldc)
        self.poll(ldc, [range(vX, vX + 4)], 7, "pollC", self.lines(self.sum4, vX, vD, vD + 2))
        a("v_permlane32_swap_b32 v%d, v%d" % (vD, vD + 1), "v_mul_f32 v%d, s%d, v%d" % (vD, sSC, vD),
          "v_mul_f32 v%d, v%d, v%d" % (vD, vD, vD + 1), "v_cvt_pk_bf16_f32 v%d, v%d, v%d" % (vD, vD, vD),
          "ds_write_b16 v89, v%d" % vD, "v_mov_b64 %s, 0" % q(vD + 4, 2), "s_waitcnt lgkmcnt(0)", "s_barrier", "ds_read_b128 %s, v88" % q(vX + 4), "s_waitcnt lgkmcnt(0)")
        self.smf(vD + 4, q(vX + 4), q(vWD, 8), 90)
        a("v_add_f32 v7, v%d, v%d" % (vD + 4, vD + 5))
        self.pack_pairs(5, 7)
        a("L_nod:")
        self.st_cross(5)
        self.stamp("Dpub", True)
        a("s_add_u32 s%d, s%d, 0x1000" % (stmp, sBld))
        self.layer1("L_last")
        a("s_waitcnt vmcnt(2) lgkmcnt(0)")

        def prep_d():
            a = self.a
            a("v_mov_b32 v28, v94", "v_mov_b32 v30, v93", "s_add_u32 s%d, s%d, 0x3000" % (sBst, sBst),
              "s_add_u32 s%d, s%d, 0x3000" % (sB2, sB2), "s_add_u32 s%d, s%d, 0x4000" % (sBld, sBld))
            self.mk_ai()
            self.s_zero()
            self.part_off(29, 7, 12)
            self.q_addrs(31, 48, 7)
            self.lin(5, 7, (2, 2, 6), (5, 1, 8), (4, 1, 5), (0, 1, 4))
            self.sexpr(100, L_WQ, (sw, QSTR))
            a("v_add_u32 v5, s100, v5")
            self.lds_or_zero(5, 7, 2)
            self.ml_off(6, 7)
            self.sexpr(98, 1024, (sRow, 1), (sb, 256))
            self.sexpr(sWl, 1024, (sRow, 1), (sj, 4))
            self.sexpr(sWo, 0, (sg, 1 << 17), (sj, 2048), (sw, 512))
            a("s_add_u32 s%d, s%d, 0x%x" % (sclr, sXst, OFF_XD - OFF_XB), "s_add_u32 s99, s%d, 0x%x" % (sXld, OFF_XD - OFF_XB))
        self.prep_split("pollD", self.lines(prep_d), self.red_loads(8, stmp))
        a("s_waitcnt lgkmcnt(0)", "s_cmp_eq_u32 s%d, 0" % sw, "s_cbranch_scc0 L_fill3", "L_redd:")
        self.cold += ["L_fill3:", "s_cmp_eq_u32 s%d, 1" % sw, "s_cbranch_scc0 L_nored2"] + self.lines(self.fill_cross, 16, 3) + ["s_branch L_nored2"]
        self.reduce_x("pollD", 8, 24, stmp)
        self.st_intra("buffer_store_dword", "v7", 28, sclr)
        a("s_cmp_eq_u32 s%d, 2" % slayer, "s_cbranch_scc1 L_out")
        a("v_lshlrev_b32 v%d, 16, v7" % vRES)
        self.stamp("XDpub")
        a("L_nored2:", "s_barrier")
        row = [self.ld(24, 28, 98, n=1)]
        ldx = [self.ld(52, vA16, 99)]
        work = self.lines(self.slice_sums, 26, 30, sWl)
        ex = int(self.at["pollXD"][0] <= len(work))
        work += self.lines(self.st_intra, "buffer_store_dword", "v26", 30, sWl) + ["v_lshlrev_b32 v28, 2, v0"]
        n = self.with_loads("pollXD", work, ldx)
        a("s_waitcnt vmcnt(%d)" % (n + 2))
        self.gemv_zero(8)
        self.poll(ldx, [range(52, 56)], 7, "pollXD", self.lines(self.gemv4, 52, vWQ, 8, vIX), self.lines(self.gemv_zero, 8), extra=ex)
        a(*row)
        self.gemv4_fin(10, 8)
        self.st_intra("buffer_store_dword", "v10", 29, sEst)
        self.stamp("Epub")
        lde = self.ld4(52, 28, sEld)
        st = self.lines(self.stats_fin, 24, 32, True) + self.lines(self.sum4_init, 34, vCQ)
        self.stats_poll("pollE", row, 24, st, lde)
        self.poll(lde, [range(52, 56)], 7, "pollE", self.lines(self.sum4, 52, 32, 34))
        self.stamp("Eget")
        rd = self.q_assemble(32, 31, 48, self.lines(self.next_region) + ["s_mov_b32 s%d, 2" % slayer]
                             + ["v_min_u32 v38, 3, v0", "v_lshlrev_b32 v38, 7, v38"])
        a(self.ld(38, 38, sWo, n=1))
        for i in range(7):
            a("v_mov_b64 %s, 0" % q(vO + 4 * i, 2))
        if self.stamps is not True:
            self.stamp("qrdy")
        x = 128
        ldm = [self.ld(x, vA16, sMLld)]

        def att():
            a = self.a
            self.qk()
            a("s_waitcnt vmcnt(1) ; guards=v[52:55] after=v%d" % (vS + 20))
            a("v_subrev_u32 v23, 0x%x, v31" % (L_Q - L_WQ))
            a("v_mov_b64 %s, 0" % q(vO + 28, 2))
            self.softmax(23, 6)
            self.o_addr()
            for h in range(2):
                self.v_reads(5 + h, lambda i, e: q(8 * i + 4 * h + 2 * e, 2, "a"))
            self.v_reads(7)
            for n in range(4):
                self.p_read(2 * n, 5, n & 1)
                for i in range(8):
                    B = q(128 + 64 * n + 8 * i, 8) if n < 2 else q(8 * i, 8, "a") if n == 2 else "vp[%d]" % i
                    self.smf(vO + 4 * i, q(vQ + 4 * (n & 1)), B)
                    if n == i == 0:
                        for d in self.mlat:
                            a(ldm[0] + " ; lat=%d tail=%d" % (d, self.mltail))
        ls = [x + " prio=%d" % self.p0 if x.endswith("mem=p0") else x for x in self.lines(att)]
        cut = len(ls) - self.mlcut
        out, t1 = schedule(ls[:cut], rd)
        if self.stamps and self.stamps is not True:
            k = max(i for i, x in enumerate(out) if x.startswith("buffer_store")) + 1
            out[k:k] = self.lines(self.stamp, "mlpub")
            k = min(i for i, x in enumerate(out) if x.startswith("v_pk_fma"))
            out[k:k] = self.lines(self.stamp, "maxed")
        a(*out)
        a("s_waitcnt lgkmcnt(0)")
        if self.stamps is not True:
            self.stamp("pv2a")
        L = a.lab("ml2")
        a(L + "_w:")
        fin = ["v_sub_f32 v58, v%d, v20" % x, "v_sub_f32 v59, v%d, v20" % (x + 2), "v_exp_f32 v58, v58", "v_exp_f32 v59, v59",
               "v_mul_f32 v7, v58, v%d" % (x + 1), "v_fmac_f32 v7, v59, v%d" % (x + 3)] + self.lines(self.ml_finish, x)[6:]
        self.check([range(x, x + 4)], 6, len(self.mlat))
        a(*fin[:3])
        a("s_cbranch_vccnz " + L)
        fin = fin[3:]
        if self.stamps is not True:
            self.stamp("mlget")
        t2 = self.sched([x + " ; prio=200" for x in fin] + ls[cut:] + self.lines(self.o_write, 8, 60, True))
        self.est += (t1, t2)
        self.stamp("pv2")
        a("s_branch L_tail", L + ":", *ldm)
        a(*self.spin_count())
        a("s_branch %s_w" % L)
        a("L_last:", "s_lshr_b32 s100, s%d, 2" % sj, "s_xor_b32 s100, s100, s%d" % sg, "s_or_b32 s100, s100, s%d" % sw,
          "s_cmp_eq_u32 s100, 0", "s_cbranch_scc0 L_fin")
        self.x_off(28, 7, 10)
        self.mk_srd(sWF, sOUT, "4096")
        a("s_lshl_b32 s%d, s%d, 5" % (sclr, sj))
        a("s_waitcnt vmcnt(0)")
        a(*self.red_loads(8, stmp))
        a("s_branch L_redd")
        a("L_out:")
        if self.probe:
            self.stamp("out")
            k0, k = map(self.stamp_names.index, self.probe[:2])
            a("v_readlane_b32 s100, v4, %d" % k, "v_readlane_b32 s101, v4, %d" % k0, "s_sub_u32 s100, s100, s101", "s_mul_i32 s100, s100, %d" % self.probe[2],
              "s_min_u32 s100, s100, 100000", "s_memrealtime s[0:1]", "s_waitcnt lgkmcnt(0)", "s_mov_b32 s101, s0",
              "L_probe:", "s_memrealtime s[0:1]", "s_waitcnt lgkmcnt(0)", "s_sub_u32 s0, s0, s101", "s_cmp_lt_u32 s0, s100",
              "s_cbranch_scc1 L_probe")
        a("L_fin:")
        if self.stamps and not self.probe:
            self.stamp("end")
            a("s_lshl_b32 s100, s2, 2", "s_add_u32 s100, s100, s%d" % sw, "s_lshl_b32 s100, s100, 7",
              "s_add_u32 s100, s100, 0x%x" % (STAMP_OFF - 2 * LS), "s_mov_b32 s%d, 0x1000000" % (sWS + 2),
              "v_writelane_b32 v4, s%d, 30" % sspin, "v_writelane_b32 v4, s%d, 31" % (sWF + 2),
              "v_lshlrev_b32 v9, 2, v0", "v_cmp_gt_u32 vcc, 32, v0", "s_and_saveexec_b64 s[98:99], vcc",
              "buffer_store_dword v4, v9, %s, s100 offen sc1" % srd(sWS))
        a("L_end:", "s_endpgm")
        a(*self.cold)
        a("L_codeend:")

    def build(self):
        self.prologue()
        self.stream()
        self.chain()
        self.a.pad()
        if self.win:
            self.est += align(self.a, self.win, "L_entered")
        head = open("cdna_kernels/" + KNAME[:-7] + ".s.ref").read().split("; Override launch")[0]
        return (head + "; @launch grid=(256,1,1) block=(256,1,1) lds=163840\n" + ABOUT +
                '.amdgcn_target "amdgcn-amd-amdhsa--gfx950"\n.text\n.globl %s\n.p2align 8\n.type %s,@function\n%s:\n' % (KNAME, KNAME, KNAME)
                + self.a.text() +
                '.section .rodata,"a"\n.p2align 6\n.amdhsa_kernel %s\n  .amdhsa_next_free_vgpr 512\n  .amdhsa_next_free_sgpr 102\n'
                "  .amdhsa_accum_offset 256\n  .amdhsa_group_segment_fixed_size 0\n  .amdhsa_kernarg_size 96\n"
                "  .amdhsa_user_sgpr_count 2\n  .amdhsa_user_sgpr_kernarg_segment_ptr 1\n  .amdhsa_system_sgpr_workgroup_id_x 1\n"
                ".end_amdhsa_kernel\n" % KNAME)


if __name__ == "__main__":
    out = sys.argv[1]
    kw = eval("dict(%s)" % (sys.argv[2] if len(sys.argv) > 2 else ""))
    g = Gen(**kw)
    s = g.build()
    open(out, "w").write(s)
    if len(sys.argv) > 3:
        print("estimated attention cycles", g.est)
    if g.stamps:
        open(out[:-2] + ".names", "w").write("\n".join(g.stamp_names))
```

```python
import struct
import sys
from asmlib import Asm, align, schedule

KNAME = "interleave_layers__gqa_block_cached__glu_gated_bilinear__decode_kernel"

LS = 1 << 20
OFF_ML, OFF_A, OFF_C, OFF_XB, OFF_ST, OFF_XD, OFF_E = 0, 4 << 10, 36 << 10, 52 << 10, 56 << 10, 60 << 10, 64 << 10
OFF_CSG, OFF_CSQ = 60 << 10, 68 << 10
WS_SIZE = 3 * LS
T1 = [(OFF_C, 11), (LS + OFF_ML, 1)]
OFF_TK = 1 << 20
OFF_XW = 5 << 20
STAMP_OFF = 8 << 20
OOB = 0x7FFF0000

RING = 24576
L_WQ = 4 * RING
L_WO = L_WQ + 16384
L_WG = L_WO + 16384
L_WD = L_WG + 16384
L_SCR = L_WD + 8192
L_H = L_SCR + 1024
L_Q, QSTR = L_SCR + 1536, 2112
L_OOB = 0x30000
assert L_SCR + 8192 == 163840

sK, sV, sWS, sWF, sWL, sOUT, sDBG, sXI, sT = 28, 32, 36, 40, 44, 48, 52, 56, 96
sw, sg, sj, sb, ss, su, sring, srot, stmp, slayer = range(60, 70)
(sMLst, sMLld, sAst, sAld, sBst, sBld, sXst, sXld, sCst, sCld, sCS, sS1, sSC, sRow, sEst, sEld) = range(70, 86)
sWo, sWl = 86, 87
sM1, smode = 88, 90
sspin, scmp = 94, 95
sclr, slead, sact = 3, 14, 15
sLO, sHI = 6, 7
sXW, sB2, svote = 24, 23, 22
sWo2, sWl2 = 8, 9
SPIN_LIMIT = 1 << 18

vL, vA16, vTRV, vRES = 0, 1, 2, 3
vQ, vO, vIX, vAI, vS = 8, 24, 56, 56, 64
vWG, vWD, vWQ, vCG, vCQ, vSEL, vX, vD = 8, 24, 32, 48, 50, 52, 56, 72
vKS, vKR = 240, 244
ORDER = [0, 1, 2, 3, 5, 6, 7, 4]
SLOT = {5: 2, 6: 4, 7: 0}
SCALE = 128 ** -0.5 * 1.4426950408889634
ONES = "0x3f803f80"


def f32(x):
    return "0x%08x" % struct.unpack("<I", struct.pack("<f", x))[0]


def q(r, n=4, k="v"):
    return "%s[%d:%d]" % (k, r, r + n - 1)


def srd(r):
    return "s[%d:%d]" % (r, r + 3)


ABOUT = """;
; One persistent workgroup per CU: workgroup i owns kv head g = i & 7, batch b = i >> 6 and key split s = (i >> 3) & 7.
; Hand-offs go through d_ws slots that are first filled with 0xFFFFFFFF inside this launch and then read until no such word
; Two choices affect speed only: which of the two copies is read (probe reads at entry) and how many stream loads a
; workgroup keeps in flight (arrival rank at two points of the stream).
"""


class Gen:
    def __init__(self, depth=6, d0={5: 8, 6: 8}, burst=4, lag=2, tq=(2, 2, 3, 3), tg=(6, 6, 7, 7), ogate=(7, 3, 3, 3, 3),
                 sync=(4, 6, 9, 11, 13, 16, 18), clr1=4, ipf=24, tclr=25, tml=27, tfin=29, tp5=30,
                 dbl="pollXB,pollC,pollXD,pollE", at={}, kx=1, nst_=2, oahead=4, mlat=(208, 84), mltail=500, mlcut=1, p0=400,
                 win=32, near=1, force_slow=False, stamps=False, cyc=False, probe=None, jitter=None, jall=None, tk=(14, 22), tkn=8, tkw=1, th=(3, 6), lv=((5, 6, 7),)):
        self.__dict__.update(locals())
        self.a = Asm()
        self.nst = 0
        self.cold = []
        self.nslow = 0
        self.est = ()
        self.at = dict(pollA=(18, 34), pollB=(88,), pollXB=(8, 17), pollC=(0, 11), pollD=(84,), pollXD=(2, 10), pollE=(0, 11))
        self.at.update(at)
        self.stamp_names = []

    def stamp(self, name, per_layer=False):
        if self.jitter:
            self.nslow += 1
            L = "L_jit%d" % self.nslow
            self.a("s_memtime s[0:1]", "s_waitcnt lgkmcnt(0)", "s_mul_i32 s0, s0, 0x9e3779b1", "s_lshr_b32 s0, s0, %d" % (32 - self.jitter[0]),
                   "s_cmp_eq_u32 s0, 0", "s_cbranch_scc0 " + L, *["s_sleep %d" % self.jitter[1]] * self.jitter[2], L + ":")
            return
        if not self.stamps or (self.stamps is not True and name not in self.stamps):
            return
        a = self.a
        k = self.nst
        self.nst += 2 if per_layer else 1
        assert self.nst <= 28
        a("%s s[0:1]" % ("s_memtime" if self.cyc else "s_memrealtime"), "s_waitcnt lgkmcnt(0)")
        if per_layer:
            self.stamp_names += [name + "/1", name + "/2"]
            a("s_add_u32 m0, s%d, %d" % (slayer, k - 1), "v_writelane_b32 v4, s0, m0")
        else:
            self.stamp_names.append(name)
            a("v_writelane_b32 v4, s0, %d" % k)

    def mk_srd(self, d, p, size):
        self.a("s_mov_b32 s%d, s%d" % (d, p), "s_mov_b32 s%d, s%d" % (d + 1, p + 1),
               "s_mov_b32 s%d, %s" % (d + 2, size), "s_mov_b32 s%d, 0x20000" % (d + 3))

    def lin(self, d, t, *terms):
        first = True
        for sh, bits, sc in terms:
            r = d if first else t
            if sh + bits >= 6:
                src = vL
                if sh:
                    self.a("v_lshrrev_b32 v%d, %d, v0" % (r, sh)); src = r
            elif sh == 0:
                self.a("v_and_b32 v%d, %d, v0" % (r, (1 << bits) - 1)); src = r
            else:
                self.a("v_bfe_u32 v%d, v0, %d, %d" % (r, sh, bits)); src = r
            if first:
                if sc or src != d:
                    self.a("v_lshlrev_b32 v%d, %d, v%d" % (d, sc, src))
            else:
                self.a("v_lshl_add_u32 v%d, v%d, %d, v%d" % (d, src, sc, d))
            first = False

    def sexpr(self, d, const, *terms):
        a = self.a
        first = True
        for reg, mult in terms:
            r = d if first else 101
            if mult & (mult - 1) == 0:
                a("s_lshl_b32 s%d, s%d, %d" % (r, reg, mult.bit_length() - 1))
            else:
                a("s_mul_i32 s%d, s%d, %d" % (r, reg, mult))
            if not first:
                a("s_add_u32 s%d, s%d, s101" % (d, d))
            first = False
        if const:
            a("s_add_u32 s%d, s%d, 0x%x" % (d, d, const))

    def oob_unless(self, v, t, cond):
        self.a(cond, "v_mov_b32 v%d, 0x%x" % (t, OOB), "v_cndmask_b32 v%d, v%d, v%d, vcc" % (v, t, v))

    def even_only(self, v, t, cmp="0"):
        self.a("v_and_b32 v%d, 1, v0" % t)
        self.oob_unless(v, t, "v_cmp_eq_u32 vcc, %s, v%d" % (cmp, t))

    def st_intra(self, op, data, voff, soff, both=False):
        a = self.a
        slow = "%s %s, v%d, %s, s%d offen sc1" % (op, data, voff, srd(sWL), soff)
        a("%s %s, v%d, %s, s%d offen" % (op, data, voff, srd(sWF), soff))
        if both:
            tk = a.mark()
            a(slow)
            a.uncounted(tk)
            return
        self.nslow += 1
        L = "L_slow%d" % self.nslow
        a("s_cmp_eq_u32 s%d, 0" % (sWF + 2), "s_cbranch_scc1 " + L, L + "_b:")
        self.cold += [L + ":", slow, "s_branch %s_b" % L]

    def ld(self, r, voff, soff, off=0, n=4, rs=sWS):
        return "buffer_load_dword%s %s, v%d, %s, s%d offen offset:%d sc1" % (
            "x%d" % n if n > 1 else "", q(r, n) if n > 1 else "v%d" % r, voff, srd(rs), soff, off)

    def ld4(self, r, voff, soff):
        return [self.ld(r + k, voff, soff, 256 * k, n=1) for k in range(4)]

    def spin_count(self):
        return ["s_add_u32 s%d, s%d, 1" % (sspin, sspin), "s_cmp_lt_u32 s%d, 0x%x" % (sspin, SPIN_LIMIT), "s_cselect_b32 s%d, -2, -1" % scmp]

    def rounds(self, name):
        return 1 + self.dbl.split(",").count(name)

    def poll(self, loads, regs, acc, name, work=(), reinit=(), spec=None, again=None, extra=0):
        a = self.a
        L = "L_" + name
        k, n = self.rounds(name), len(loads)
        if again:
            self.check(regs, acc, len(regs), spec)
            a("s_cbranch_vccz %s_d" % L, L + ":", *loads)
            a(*self.spin_count())
            self.check(regs, acc, again * n + len(regs), spec)
            a("s_cbranch_vccnz " + L, "s_nop 2", L + "_d:")
        else:
            a("s_branch %s_w" % L, L + ":", *loads)
            a(*self.spin_count())
            a(*reinit)
            a(L + "_w:")
            self.check(regs, acc, (k - 1) * n + len(regs) + extra, spec)
            a(*work)
            a("s_cbranch_vccnz " + L, L + "_d:")
        if self.stamps is not True:
            self.stamp(name, True)

    def stats_poll(self, name, aux, r, st, loads):
        a = self.a
        self.check_or_poll(aux, [[r]], 7, name + "s", a.mark() - 1, work=st[:self.nst_])
        self.with_loads(name, st[self.nst_:], loads)

    def idle(self, n):
        if n >= 16:
            self.a("s_sleep %d" % (n // 16))
        if n > 0 and n % 16:
            self.a("s_nop %d" % (n % 16 - 1))

    def with_loads(self, name, work, loads):
        pos = 0
        for d in self.at[name][:self.rounds(name)]:
            self.a(*work[pos:pos + d])
            self.idle(pos + d - max(pos, len(work)))
            self.a(*loads)
            pos += d
        self.a(*work[pos:])
        return self.rounds(name)

    def check(self, regs, acc, n, spec=None):
        a = self.a
        have = None
        for i, part in enumerate(regs):
            if n:
                a("s_waitcnt vmcnt(%d)" % (n - 1 - i))
            if spec and n == len(regs):
                spec(i)
            pool = ([have] if have is not None else []) + list(part)
            while len(pool) > 1:
                m = min(3, len(pool))
                a(("v_max3_u32 v%d, v%d, v%d, v%d" if m == 3 else "v_max_u32 v%d, v%d, v%d") % (acc, *pool[:m]))
                pool = [acc] + pool[m:]
            have = pool[0]
            if i == len(regs) - 1:
                a("v_cmp_lt_u32 vcc, s%d, v%d" % (scmp, have))
            if spec and n != len(regs):
                spec(i)

    def check_or_poll(self, loads, regs, acc, name, wait, pre=(), work=()):
        a = self.a
        tk = a.mark()
        a("s_branch L_%s_c" % name, "L_%s_r:" % name, *pre)
        a(*loads)
        a(*self.spin_count())
        a("s_waitcnt vmcnt(0)", "L_%s_c:" % name)
        a.uncounted(tk)
        a.wait_vm(wait)
        self.check(regs, acc, 0)
        a(*work)
        a("s_cbranch_vccnz L_%s_r" % name)

    def mfma(self, d, A, B, c):
        self.a("v_mfma_f32_16x16x32_bf16 %s, %s, %s, %s" % (q(d), A, B, q(d) if c else "0"))

    def smf(self, d, A, B, ix=None):
        self.a("v_smfmac_f32_16x16x64_bf16 %s, %s, %s, v%d" % (q(d), A, B, ix or vIX))

    def mk_ix(self, v):
        self.a("v_and_b32 v%d, 1, v0" % v, "v_mul_u32_u24 v%d, 0xaaaa, v%d" % (v, v), "v_add_u32 v%d, 0x4444, v%d" % (v, v))

    def dpp(self, op, d, s0, s1, ctl, rm="0xf"):
        self.a("%s_dpp v%d, v%d, v%d %s row_mask:%s bank_mask:0xf" % (op, d, s0, s1, ctl, rm))

    def pack_pairs(self, d, v):
        self.a("v_mov_b32_dpp v%d, v%d quad_perm:[1,1,3,3] row_mask:0xf bank_mask:0xf" % (d, v),
               "v_cvt_pk_bf16_f32 v%d, v%d, v%d" % (d, v, d))

    def tile_issue(self, T, between=None):
        a = self.a
        if T:
            a("s_add_u32 s%d, s%d, 0x20000" % (srot, srot), "s_and_b32 s%d, s%d, 0x1e0000" % (srot, srot))
        a("s_or_b32 s%d, s%d, s%d" % (stmp, srot, su), "s_add_u32 m0, s%d, %d" % (sring, (T % 6) * 4096))
        if T >= 6:
            a("s_waitcnt lgkmcnt(%d)" % (0 if between else 1))
        for jj in range(4):
            self.throttle(T, 4 * T + jj >= 128 - self.burst)
            va = vKS + jj if T < 16 else 5 + (jj & 1)
            a("buffer_load_dwordx4 v%d, %s, s%d offen offset:%d nt lds" % (va, srd(sK if T < 16 else sV), stmp, jj * 1024))
            self.ltok.append(a.mark())
            self.tok[T] = a.mark()
            if between:
                between(jj)
        if 16 <= T < 31:
            a("v_xor_b32 v5, 64, v5", "v_xor_b32 v6, 64, v6")

    def throttle(self, T, burst):
        a = self.a
        if self.tk and T > self.tk[0] + 3 and not burst:
            lv = self.lv[T % len(self.lv)]
            L = a.lab("th")
            for m in (2, 1, 0):
                if m == 2 or lv[m] != lv[m + 1]:
                    if m < 2:
                        a("s_cmp_gt_u32 s%d, %d" % (smode, m), "s_cbranch_scc1 " + L)
                    a.wait_vm(self.ltok[-lv[m]])
            a(L + ":")
            return
        d = self.d0.get(T, self.depth)
        if T > 1 and not burst and d < len(self.ltok):
            a.wait_vm(self.ltok[-d])

    def vreg(self, p, i):
        return 128 + 64 * (p >> 1) + 8 * i + 4 * (p & 1) if p < 4 else (96 if p == 4 else vS) + 4 * i

    def v_reads(self, p, dst=None):
        slot = (16 + 2 * p) % 6
        for i in range(8):
            for h in range(2):
                d = dst(i, h) if dst else q(self.vreg(p, i) + 2 * h, 2)
                self.a("ds_read_b64_tr_b16 %s, v%d offset:%d ; mem=v" % (d, vAI + i if i else vTRV, slot * 4096 + h * 512))

    def tile_consume(self, T):
        a = self.a
        if T < 16:
            a.wait_vm(self.tok[T])
            for st in range(4):
                a("ds_read_b128 %s, v%d offset:%d" % (q(16 * T + 4 * st, 4, "a"), vKR + st, (T % 6) * 4096))
        elif T & 1:
            a.wait_vm(self.tok[T])
            self.v_reads((T - 16) >> 1)

    def mk_ai(self):
        for i in range(1, 8):
            self.a("v_xor_b32 v%d, %d, v%d" % (vAI + i, i << 5, vTRV))
        self.mk_ix(vIX)

    def weight_load(self, kind, k, T, va=52):
        a = self.a
        t = va + 1
        pitch = {"q": 8192, "g": 3584, "d": 1024, "o": 1024}[kind]
        if k == 0:
            if kind == "o":
                self.lin(va, t, (5, 1, 14), (3, 2, 10), (0, 3, 4))
                self.mk_srd(sT, 12, "0x400000")
                self.sexpr(sWo, 0, (sg, 512 * 1024), (sb, 128 * 1024), (sw, 4096), (ss, 128))
                self.sexpr(sWl, L_WO, (sw, 4096))
            else:
                a("v_lshrrev_b32 v%d, 3, v0" % va, "v_mul_u32_u24 v%d, %d, v%d" % (va, pitch, va), "v_and_b32 v%d, 7, v0" % t,
                  "v_lshl_add_u32 v%d, v%d, 4, v%d" % (va, t, va))
            a("v_and_b32 v%d, 32, v0" % t, "v_xor_b32 v%d, v%d, v%d" % (va, va, t), "v_xor_b32 v%d, 64, v%d" % (t, va))
            if kind == "q":
                self.mk_srd(sT, 10, "0x400000")
                self.sexpr(sWo, 0, (sb, 128 * pitch), (sw, 32 * pitch), (sg, 1024), (ss, 128))
                self.sexpr(sWl, L_WQ, (sw, 4096))
            if kind in "gd":
                a("s_lshr_b32 s100, s%d, 1" % sg, "s_mul_i32 s100, s100, 7", "s_and_b32 s%d, s%d, 1" % (stmp, sg),
                  "s_lshl_b32 s%d, s%d, 2" % (stmp, stmp), "s_add_u32 s100, s100, s%d" % stmp)
            if kind == "g":
                a("s_and_b32 s%d, s%d, 3" % (stmp, ss), "s_add_u32 s100, s100, s%d" % stmp)
                self.sexpr(sWo, 0, (sb, 128 * pitch), (sw, 32 * pitch), (100, 128))
                self.sexpr(sWl, L_WG, (sw, 4096))
                a("s_bitcmp1_b32 s%d, 0" % sact, "s_cselect_b32 s100, 0x%x, 0" % (512 * pitch))
                self.mk_srd(sT, 16, "s100")
                a("s_cmp_ge_u32 s%d, 4" % ss, "s_cselect_b32 s%d, s18, s16" % sT, "s_cselect_b32 s%d, s19, s17" % (sT + 1))
            if kind == "d":
                a("s_add_u32 s100, s100, s%d" % sb)
                self.sexpr(sWo2, 0, (100, 64 * pitch), (sw, 16 * pitch), (ss, 128))
                self.sexpr(sWl2, L_WD, (sw, 2048))
                a("s_bitcmp1_b32 s%d, 1" % sact, "s_cselect_b32 s100, 0x%x, 0" % (1792 * pitch))
                self.mk_srd(sXI, 20, "s100")
            if T is None:
                return
        self.weight_issue(kind, k, T, va)

    def weight_issue(self, kind, k, T, va):
        a = self.a
        pitch = {"q": 8192, "g": 3584, "d": 1024, "o": 1024}[kind]
        so, sl, rs = (sWo2, sWl2, sXI) if kind == "d" else (sWo, sWl, sT)
        a("s_add_u32 s%d, s%d, 0x%x" % (stmp, so, (32 if kind == "o" else 8) * pitch * k), "s_add_u32 m0, s%d, 0x%x" % (sl, 1024 * k))
        if T < 31:
            self.throttle(T, False)
        a("buffer_load_dwordx4 v%d, %s, s%d offen nt lds" % (va + (k & 1), srd(rs), stmp))
        self.ltok.append(a.mark())
        self.wtok[kind] = a.mark()

    def lines(self, fn, *args):
        keep, self.a = self.a, Asm()
        fn(*args)
        out, self.a = [i.text for i in self.a.l], keep
        return out

    def sched(self, lines, pre=()):
        out, t = schedule(lines, pre)
        self.a(*out)
        return t

    def s_zero(self):
        for r in range(vS, vS + 32, 2):
            self.a("v_mov_b64 %s, 0" % q(r, 2))

    def qk(self):
        a = self.a
        for k, p in enumerate(ORDER):
            d = vS + 4 * k
            for sg_ in range(2):
                for hf in range(2):
                    self.smf(d, q(vQ + 8 * sg_ + 4 * hf), q(16 * (2 * p + sg_) + 8 * hf, 8, "a"))
            a("v_add_f32 v%d, v%d, v%d" % (d, d, d + 1), "v_add_f32 v%d, v%d, v%d" % (d + 1, d + 2, d + 3))
            a("v_max3_f32 v7, v7, v%d, v%d" % (d, d + 1) if k else "v_max_f32 v7, v%d, v%d" % (d, d + 1))

    def ml_off(self, v, t):
        self.a("v_mov_b32 v%d, v%d" % (v, vA16), "v_and_b32 v%d, 15, v0" % t)
        self.oob_unless(v, t, "v_cmp_eq_u32 vcc, 0, v%d" % t)

    def softmax(self, vw, voff):
        a = self.a
        for k in (1, 2, 4, 8):
            self.dpp("v_max_f32", 7, 7, 7, "row_ror:%d" % k)
        a("v_mul_f32 v20, s%d, v7" % sSC, "s_mov_b32 s100, %s" % ONES)
        for k in range(8):
            r = q(vS + 4 * k, 2)
            a("v_pk_fma_f32 %s, %s, s[%d:%d], v[20:21] op_sel_hi:[1,0,0] neg_lo:[0,0,1] neg_hi:[0,0,1]" % (r, r, sSC, sSC + 1))
        for k in range(8):
            r = vS + 4 * k
            a("v_exp_f32 v%d, v%d" % (r, r), "v_exp_f32 v%d, v%d" % (r + 1, r + 1), "v_cvt_pk_bf16_f32 v%d, v%d, v%d" % (r + 2, r, r + 1))
            if k & 1:
                a("ds_write2st64_b32 v%d, v%d, v%d offset0:%d offset1:%d ; mem=p%d" % (vw, r - 2, r + 2, k - 1, k, k - 1))
        for k in range(8):
            a("v_dot2_f32_bf16 v21, v%d, s100, %s" % (vS + 4 * k + 2, "v21" if k else "0"))
        for k in (1, 2, 4, 8):
            self.dpp("v_add_f32", 21, 21, 21, "row_ror:%d" % k)
        self.st_intra("buffer_store_dwordx2", "v[20:21]", voff, sMLst, both=True)

    def ml_finish(self, r):
        a = self.a
        a("v_sub_f32 v%d, v%d, v20" % (r, r), "v_sub_f32 v%d, v%d, v20" % (r + 2, r + 2),
          "v_exp_f32 v%d, v%d" % (r, r), "v_exp_f32 v%d, v%d" % (r + 2, r + 2),
          "v_mul_f32 v7, v%d, v%d" % (r, r + 1), "v_fmac_f32 v7, v%d, v%d" % (r + 2, r + 3))
        for k in (1, 2, 4, 8):
            self.dpp("v_add_f32", 7, 7, 7, "row_ror:%d" % k)
        a("v_rcp_f32 v7, v7")

    def lds_or_zero(self, v, t, mask, val=0):
        self.a("v_and_b32 v%d, %d, v0" % (t, mask), "v_cmp_eq_u32 vcc, %d, v%d" % (val, t), "v_mov_b32 v%d, 0x%x" % (t, L_OOB),
               "v_cndmask_b32 v%d, v%d, v%d, vcc" % (v, t, v))

    def p_read(self, k, va, buf):
        self.a("ds_read_b128 %s, v%d offset:%d ; mem=p%d" % (q(vQ + 4 * buf), va, k * 256, k & ~1))

    def pv_dense(self, p, buf, lgkm=None):
        for i in range(8):
            if lgkm is not None:
                self.a("s_waitcnt lgkmcnt(%d)" % lgkm(i))
            self.mfma(vO + 4 * i, q(vQ + 4 * buf), q(self.vreg(p, i)), p > 0)

    def o_addr(self):
        self.sexpr(4, L_SCR, (sw, 512))
        self.a("v_and_b32 v22, 48, v0", "v_mul_u32_u24 v22, 112, v22", "v_add3_u32 v22, v22, v%d, s4" % vA16)

    def o_write(self, t0, t1, sparse):
        a = self.a
        for h, t in enumerate((t0, t1)):
            for i in range(4):
                o = vO + 16 * h + 4 * i
                a("v_add_f32 v%d, v%d, v%d" % (t + i, o, o + 1) if sparse else "v_mul_f32 v%d, v7, v%d" % (t + i, o))
            if sparse:
                for i in (0, 2):
                    a("v_pk_mul_f32 %s, %s, v[6:7] op_sel:[0,1] op_sel_hi:[1,1]" % (q(t + i, 2), q(t + i, 2)))
            a("ds_write_b128 v22, %s offset:%d" % (q(t), 256 * h))

    def w_tiles(self, kinds, va, t):
        a = self.a
        last = None
        for kind, dst in kinds:
            qs = 11 if kind == "d" else 12
            if qs != last:
                self.lin(va, t, (4, 1, 5), (3, 1, 6))
                a("s_lshl_b32 s100, s%d, 5" % sw, "v_xor_b32 v%d, s100, v%d" % (va, va), "v_add_u32 v%d, 0x%x, v%d" % (va, L_WQ, va))
                for sh, bits, sc in ((5, 1, qs), (3, 1, 10), (4, 1, 9), (2, 1, 7), (0, 2, 3)):
                    a("v_bfe_u32 v%d, v0, %d, %d" % (t, sh, bits), "v_lshl_add_u32 v%d, v%d, %d, v%d" % (va, t, sc, va))
                last = qs
            base = {"q": L_WQ, "g": L_WG, "d": L_WD}[kind] - L_WQ
            for kb in range(2 if kind == "d" else 4):
                for h in range(2):
                    a("ds_read_b64_tr_b16 %s, v%d offset:%d" % (q(dst + 4 * kb + 2 * h, 2), va,
                                                                  base + (kb & 1) * (2 << qs) + (kb >> 1) * 2048 + h * 256))

    def gemv_zero(self, d):
        self.a("v_mov_b64 %s, 0" % q(d, 2), "v_mov_b64 %s, 0" % q(d + 6, 2))

    def gemv4(self, x, W, d, ix):
        for k in range(2):
            self.smf(d + 4 * k, q(x), q(W + 8 * k, 8), ix)

    def gemv4_fin(self, out, d):
        self.a("v_add_f32 v%d, v%d, v%d" % (d, d, d + 1), "v_add_f32 v%d, v%d, v%d" % (d + 6, d + 6, d + 7),
               "v_add_f32 v%d, v%d, v%d" % (d, d, d + 6))
        self.pack_pairs(out, d)

    def colsum_pub(self, W, ones, d, va, t, off, *terms):
        a = self.a
        for r in range(4):
            a("v_mov_b32 v%d, %s" % (ones + r, ONES))
        self.lin(va, t, (0, 1, 10), (1, 3, 4))
        self.oob_unless(va, t, "v_cmp_gt_u32 vcc, 16, v0")
        self.sexpr(100, off, (sCS, 1), (sb, 4), (sw, 128), *terms)
        a("s_waitcnt lgkmcnt(0)")
        for kb in range(4):
            self.mfma(d, q(ones), q(W + 4 * kb), kb > 0)
        self.st_intra("buffer_store_dword", "v%d" % d, va, 100)

    def colsum_ld(self, r, off, sel):
        self.sexpr(100, off, (sCS, 1), (sel, 2048))
        self.a(self.ld(r, vA16, 100, 0), self.ld(r + 4, vA16, 100, 1024))

    def colsum_fin(self, r, c):
        for k in range(2):
            b = r + 4 * k
            self.a("v_add_f32 v%d, v%d, v%d" % (b, b, b + 1), "v_add_f32 v%d, v%d, v%d" % (b + 2, b + 2, b + 3),
                   "v_add_f32 v%d, v%d, v%d" % (b, b, b + 2), "v_mul_f32 v%d, %s, v%d" % (c + k, f32(-1.0 / 512), b))

    def stats(self, x, t, att):
        a = self.a
        s1, s2 = t, t + 1
        a("s_mov_b32 s100, %s" % ONES)
        for k in range(4):
            a("v_dot2_f32_bf16 v%d, v%d, s100, %s" % (s1, x + k, "v%d" % s1 if k else "0"),
              "v_dot2_f32_bf16 v%d, v%d, v%d, %s" % (s2, x + k, x + k, "v%d" % s2 if k else "0"))
        a("v_permlane32_swap_b32 v%d, v%d" % (s1, s2), "v_add_f32 v%d, v%d, v%d" % (s1, s1, s2))
        self.stats_fin(s1, t, att)

    def slice_sums(self, t, voff, soff):
        a = self.a
        a("v_mul_f32 v%d, v%d, v%d" % (t + 1, vRES, vRES))
        self.dpp("v_add_f32", t, vRES, vRES, "row_ror:8")
        self.dpp("v_add_f32", t + 1, t + 1, t + 1, "row_ror:8")
        a("v_cndmask_b32 v%d, v%d, v%d, s[%d:%d]" % (t, t, t + 1, sM1, sM1 + 1))
        for ctl in ("quad_perm:[1,0,3,2]", "quad_perm:[2,3,0,1]", "row_half_mirror"):
            self.dpp("v_add_f32", t, t, t, ctl)

    def st_off(self, v, t):
        self.lin(v, t, (5, 1, 8), (4, 1, 9), (3, 1, 7))
        self.a("v_and_b32 v%d, 7, v0" % t, "v_add_u32 v%d, s%d, v%d" % (t, sw, t))
        self.oob_unless(v, t, "v_cmp_eq_u32 vcc, 0, v%d" % t)

    def stats_fin(self, x, t, att):
        a = self.a
        s1, s2 = t, t + 1
        for k in (1, 2, 4, 8):
            self.dpp("v_add_f32", s1, x if k == 1 else s1, x if k == 1 else s1, "row_ror:%d" % k)
        self.dpp("v_add_f32", s1, s1, s1, "row_bcast:15", "0xa")
        a("v_readlane_b32 s%d, v%d, 31" % (sS1, s1), "v_mul_f32 v%d, %s, v%d" % (s1, f32(1.0 / 512), s1),
          "v_mov_b32 v%d, s%d" % (s2, sS1), "v_mul_f32 v%d, %s, v%d" % (s2, f32(1.0 / 512), s2),
          "v_fma_f32 v%d, -v%d, v%d, v%d" % (s1, s2, s2, s1), "v_max_f32 v%d, 0, v%d" % (s1, s1),
          "v_add_f32 v%d, %s, v%d" % (s1, f32(1e-5), s1))
        if att:
            a("v_rsq_f32 v%d, v%d" % (s1, s1), "v_mul_f32 v%d, %s, v%d" % (s1, f32(SCALE), s1))
        else:
            a("v_rcp_f32 v%d, v%d" % (s1, s1), "s_nop 0")
        a("v_readlane_b32 s%d, v%d, 63" % (sSC, s1))

    def sum4_init(self, acc, c):
        self.a("v_mul_f32 v%d, s%d, v%d" % (acc, sS1, c), "v_mul_f32 v%d, s%d, v%d" % (acc + 1, sS1, c + 1))

    def sum4(self, x, acc, init):
        for k in range(4):
            c = acc if k else init
            self.a("v_dot2_f32_bf16 v%d, v%d, s%d, v%d" % (acc, x + k, sLO, c),
                   "v_dot2_f32_bf16 v%d, v%d, s%d, v%d" % (acc + 1, x + k, sHI, c + 1))

    def q_addrs(self, vw, vr, t):
        a = self.a
        self.lin(vw, t, (3, 3, 5), (0, 1, 4), (1, 2, 2))
        self.sexpr(100, L_Q, (sw, QSTR))
        a("v_add_u32 v%d, s100, v%d" % (vw, vw))
        self.lin(vr, t, (4, 2, 5), (0, 1, 4))
        a("v_bfe_u32 v%d, v0, 2, 2" % t, "v_mul_u32_u24 v%d, %d, v%d" % (t, QSTR, t), "v_add_u32 v%d, v%d, v%d" % (vr, vr, t),
          "v_add_u32 v%d, 0x%x, v%d" % (vr, L_Q, vr), "v_mov_b32 v%d, v%d" % (vr + 1, vr))
        self.lds_or_zero(vr, t, 2, 0)
        self.lds_or_zero(vr + 1, t, 2, 2)

    def q_assemble(self, acc, vw, vr, fill=()):
        a = self.a
        a("v_cvt_pk_bf16_f32 v%d, v%d, v%d" % (acc, acc, acc + 1), "ds_write_b32 v%d, v%d" % (vw, acc), *fill)
        a("s_waitcnt lgkmcnt(0)", "s_barrier")
        rd = ["ds_read_b128 %s, v%d offset:%d" % (q(vQ + 4 * st), vr + (st >> 1), (st & 1) * 128) for st in range(4)]
        a(*rd)
        return rd

    def late_loads(self, name):
        self.layer1(name)
        for k in range(2):
            self.weight_issue("d", k, 32, 62)
        self.touch(59)
        self.a(name + ":")

    def next_region(self):
        for r in (sWS, sWF, sWL):
            self.a("s_add_u32 s%d, s%d, 0x%x" % (r, r, LS), "s_addc_u32 s%d, s%d, 0" % (r + 1, r + 1))
        self.a("s_sub_u32 s%d, s%d, 0x%x" % (sCS, sCS, LS))

    def leader_fill(self):
        a = self.a
        a("v_mov_b32 v8, -1", "v_mov_b32 v9, -1", "v_mov_b32 v10, -1", "v_mov_b32 v11, -1", "v_lshlrev_b32 v12, 2, v0",
          "s_or_b32 s%d, s%d, s%d" % (slead, sj, sw), "s_cmp_eq_u32 s%d, 0" % slead, "s_cbranch_scc0 L_nolead0")
        tk = a.mark()
        a("s_lshl_b32 s100, s%d, 17" % sg, "buffer_store_dword v8, v12, %s, s100 offen sc1" % srd(sWS), "L_nolead0:")
        a.uncounted(tk)
        self.tok_lead = tk

    def leader_flag(self, word, name, tok=None, val="1", v=54):
        a = self.a
        a("s_cmp_eq_u32 s%d, 0" % slead, "s_cbranch_scc0 " + name)
        if tok is not None:
            a.wait_vm(tok)
        tk = a.mark()
        a("v_mov_b32 v%d, %s" % (v + 1, val), "v_lshlrev_b32 v%d, 8, v0" % v, "s_lshl_b32 s100, s%d, 2" % sg,
          "buffer_store_dword v%d, v%d, %s, s100 offen offset:%d sc1" % (v + 1, v, srd(sDBG), word), name + ":")
        a.uncounted(tk)

    def flag_load(self, v, word, own):
        a = self.a
        if own:
            a("s_lshl_b32 s100, s%d, 2" % sg, "v_mov_b32 v%d, s100" % v)
        else:
            a("v_and_b32 v%d, 7, v0" % v, "v_lshlrev_b32 v%d, 2, v%d" % (v, v))
        return a("buffer_load_dword v%d, v%d, %s, 0 offen offset:%d sc1" % (v, v, srd(sDBG), word))

    def flag_check(self, v, word, own, tok, name):
        a = self.a
        a.wait_vm(tok)
        tk = a.mark()
        a("s_branch %s_c" % name, name + "_s:", "s_sleep 8")
        self.flag_load(v, word, own)
        a("s_add_u32 s%d, s%d, 1" % (sspin, sspin), "s_cmp_lt_u32 s%d, 0x%x" % (sspin, SPIN_LIMIT), "s_waitcnt vmcnt(0)",
          "s_cbranch_scc0 %s_d" % name, name + "_c:", "v_cmp_eq_u32 vcc, 0, v%d" % v, "s_cbranch_vccnz %s_s" % name, name + "_d:")
        a.uncounted(tk)

    def fill_intra(self, v, t, d, start, per_wave):
        a = self.a
        self.sexpr(100, start, (sg, 1 << 17), (sj, 4 * per_wave), (sw, per_wave))
        a("v_mov_b32 v%d, v%d" % (v, vA16))
        self.oob_unless(v, t, "v_cmp_gt_u32 vcc, %d, v0" % (per_wave // 16))
        self.st_intra("buffer_store_dwordx4", q(d), v, 100)

    def sentinels(self, d):
        for r in range(4):
            self.a("v_mov_b32 v%d, -1" % (d + r))

    def prologue(self):
        a = self.a
        if self.stamps:
            a("%s s[92:93]" % ("s_memtime" if self.cyc else "s_memrealtime"))
        a('; ---- entry: everything up to the first K tile fits the 256 bytes that are fetched before the wave starts')
        a("s_load_dwordx16 s[4:19], s[0:1], 0", "s_load_dwordx8 s[20:27], s[0:1], 64",
          "v_lshrrev_b32 v1, 6, v0", "s_cmpk_ge_u32 s2, 256", "v_readfirstlane_b32 s%d, v1" % sw, "s_cbranch_scc1 L_end")
        a("v_and_b32 v0, 63, v0", "s_and_b32 s%d, s2, 7" % sg, "s_lshr_b32 s%d, s2, 3" % sj, "s_lshr_b32 s%d, s2, 6" % sb,
          "s_and_b32 s%d, s%d, 7" % (ss, sj), "s_lshl2_add_u32 s%d, s%d, s%d" % (su, ss, sw),
          "s_lshl3_add_u32 s100, s%d, s%d" % (sb, sg), "s_lshl_b32 s100, s100, 21", "s_mul_i32 s%d, s%d, %d" % (sring, sw, RING))
        a("s_lshl_b32 s%d, s%d, 12" % (su, su), "s_lshl2_add_u32 s%d, s%d, s%d" % (srot, sb, sg),
          "s_and_b32 s%d, s%d, 15" % (srot, srot), "s_lshl_b32 s%d, s%d, 17" % (srot, srot))
        a("v_lshrrev_b32 v5, 4, v0", "v_and_b32 v6, 15, v0", "v_xor_b32 v7, v5, v6", "v_lshlrev_b32 v7, 4, v7",
          "v_lshl_add_u32 v%d, v5, 8, v7" % vKS)
        a("v_xor_b32 v%d, 64, v%d" % (vKS + 1, vKS), "v_xor_b32 v%d, 128, v%d" % (vKS + 2, vKS), "v_xor_b32 v%d, 64, v%d" % (vKS + 3, vKS + 2),
          "s_lshl_b32 s98, s2, 10", "s_bitset1_b32 s98, 22", "v_mov_b32 v9, s98", "v_xor_b32 v10, 0x2000, v9",
          "s_lshl_b32 s%d, 1, 21" % (sK + 2), "s_mov_b32 s%d, 0x20000" % (sK + 3))
        self.tok, self.ltok, self.wtok = {}, [], {}
        first = self.lines(self.tile_issue, 0)
        self.tok, self.ltok = {}, []
        a(*first[:2])
        a("s_waitcnt lgkmcnt(0)", "global_load_dword v95, v9, s[26:27] sc1")
        tok_cal = a.mark()
        a("global_load_dword v95, v10, s[26:27] offset:128 sc1", "s_add_u32 s%d, s6, s100" % sK, "s_addc_u32 s%d, s7, 0" % (sK + 1))
        for x in first[2:]:
            self.ltok.append(a(x))
        self.tok[0] = a.mark()
        a("s_cmp_eq_u32 s%d, 0" % sw, "s_cbranch_scc0 L_novote")
        a.wait_vm(tok_cal)
        a("L_novote:", "s_add_u32 s%d, s8, s100" % sV, "s_addc_u32 s%d, s9, 0" % (sV + 1), "s_mov_b32 s%d, s%d" % (sV + 2, sK + 2),
          "s_getreg_b32 s99, hwreg(HW_REG_IB_STS, 0, 4)", "L_entered:")
        a('; ---- K / V stream: tile T = 16 rows, LDS-DMA into a 6-slot ring per wave, a bounded number of loads in flight')
        self.tile_issue(1)
        a("s_mov_b32 s%d, 0x20000" % (sV + 3))
        a("v_lshl_add_u32 v%d, v6, 8, v7" % vKR, "v_add_u32 v%d, s%d, v%d" % (vKR, sring, vKR))
        for st in range(1, 4):
            a("v_xor_b32 v%d, %d, v%d" % (vKR + st, st << 6, vKR))
        a("v_lshlrev_b32 v%d, 4, v0" % vA16)
        self.mk_srd(sDBG, 24, "256")
        self.mk_srd(sWS, 26, "0x%x" % WS_SIZE)
        self.mk_srd(sOUT, 22, "4096")
        a("s_add_u32 s%d, s26, 0x%x" % (sXW, OFF_XW), "s_addc_u32 s%d, s27, 0" % (sXW + 1),
          "s_mov_b32 s%d, 0x%x" % (sXW + 2, OFF_TK + len(self.tk) * 4096), "s_mov_b32 s%d, 0x20000" % (sXW + 3))
        if self.stamps:
            a("v_mov_b32 v4, 0", "v_writelane_b32 v4, s92, 0")
            self.nst = 1
            self.stamp_names.append("entry")
        self.stamp("start")
        a("s_cmp_gt_u32 s99, 4", "s_cselect_b32 s%d, 16, 0" % svote)
        self.setup_b()
        self.setup_c()

    def setup_a(self):
        a = self.a
        self.mk_srd(sXI, 4, "4096")
        self.lin(6, 7, (4, 2, 6), (2, 2, 10), (0, 2, 4))
        self.lin(5, 7, (5, 1, 10), (4, 1, 11), (0, 4, 1))
        a("s_lshl_b32 s100, s%d, 8" % sb, "s_lshl_b32 s101, s%d, 10" % sb, "s_lshl_b32 s%d, s%d, 5" % (stmp, sj),
          "buffer_load_dwordx4 %s, v6, %s, s100 offen" % (q(vX), srd(sXI)),
          "buffer_load_dwordx4 %s, v%d, %s, s101 offen" % (q(vX + 4), vA16, srd(sXI)),
          "buffer_load_ushort v%d, v5, %s, s%d offen" % (vRES, srd(sXI), stmp))

    def early_fill(self):
        a = self.a
        self.sexpr(100, 0, (sj, 32768), (sg, 2048), (sw, 512))
        if not self.tk:
            a("v_mov_b32 v12, v%d" % vA16)
            self.oob_unless(12, 13, "v_cmp_gt_u32 vcc, 32, v0")
            a("buffer_store_dwordx4 v[8:11], v12, %s, s100 offen sc1" % srd(sXW))
            return
        a("v_add_u32 v12, s100, v%d" % vA16)
        self.sexpr(100, OFF_TK - 512, (2, 128))
        a("v_add_u32 v13, s100, v%d" % vA16, "v_cmp_gt_u32 vcc, 32, v0", "v_cndmask_b32 v12, v13, v12, vcc",
          "s_cmp_eq_u32 s%d, 3" % sw, "s_cselect_b32 s100, 40, 32")
        self.oob_unless(12, 13, "v_cmp_gt_u32 vcc, s100, v0")
        a("buffer_store_dwordx4 v[8:11], v12, %s, 0 offen sc1" % srd(sXW),
          "v_mov_b32 v98, 0x%x" % (L_SCR + 512 * self.tkw), "v_mov_b32 v99, %d" % self.th[0], "ds_write_b32 v98, v99", "v_lshlrev_b32 v101, 24, v0")
        self.sexpr(91, 0, (sj, 1), (sg, 3))
        a("s_and_b32 s91, s91, %d" % (256 // self.tkn - 1), "s_lshl_b32 s91, s91, 7", "s_add_u32 s91, s91, 0x%x" % OFF_TK)

    def setup_b(self):
        a = self.a
        self.mk_srd(sWF, sWS, "0")
        self.mk_srd(sWL, sWS, "0x%x" % WS_SIZE)
        G = (sg, 1 << 17)
        self.sexpr(sCS, 2 * LS, G)
        a("s_lshr_b32 s%d, s%d, 1" % (stmp, ss), "s_and_b32 s100, s%d, 1" % ss)
        self.sexpr(sEst, OFF_E, G, (stmp, 1024), (100, 128), (sw, 32), (sb, 256))
        self.sexpr(sEld, OFF_E, G, (sb, 4096), (sw, 1024))
        self.sexpr(sMLld, OFF_ML, G, (sb, 1024))
        a("s_lshr_b32 s%d, s%d, 9" % (sMLst, su), "s_add_u32 s%d, s%d, s%d" % (sMLst, sMLst, sMLld),
          "s_mov_b32 s%d, 0" % slayer, "s_mov_b32 s%d, 0" % sspin, "s_mov_b32 s%d, -2" % scmp,
          "s_mov_b32 s%d, 0x3f80" % sLO, "s_mov_b32 s%d, 0x3f800000" % sHI,
          "s_and_b32 s100, s%d, 3" % ss, "s_cmp_eq_u32 s100, 3", "s_cselect_b32 s%d, 0, 1" % sact,
          "s_cmp_eq_u32 s%d, 3" % sb, "s_cselect_b32 s100, 0, 2", "s_or_b32 s%d, s%d, s100" % (sact, sact),
          "s_bitcmp1_b32 s%d, 0" % sg, "s_cselect_b32 s%d, s%d, 3" % (sact, sact))

    def setup_c(self):
        a = self.a
        G = (sg, 1 << 17)
        a("s_lshr_b32 s%d, s%d, 2" % (stmp, ss), "s_and_b32 s100, s%d, 3" % ss)
        self.sexpr(sAst, OFF_A, G, (sw, 8192), (stmp, 4096), (sb, 1024), (100, 256))
        self.sexpr(sCst, OFF_C, G, (100, 4096), (stmp, 128), (sw, 32), (sb, 256))
        self.sexpr(sAld, OFF_A, G, (sb, 8192), (sw, 2048))
        self.sexpr(sCld, OFF_C, G, (sb, 4096), (sw, 1024))
        self.sexpr(sBst, 0, (su, 8), (sg, 512), (sb, 128))
        self.sexpr(sBld, 0, (sj, 32768))
        a("s_lshr_b32 s%d, s%d, 1" % (stmp, sj), "s_and_b32 s100, s%d, 1" % sj)
        self.sexpr(sXst, OFF_XB, G, (stmp, 256), (100, 32))
        self.sexpr(sXld, OFF_XB, G, (sb, 1024))
        self.sexpr(sRow, OFF_ST, G)
        a("s_mov_b32 s%d, 0xff00ff00" % sM1, "s_mov_b32 s%d, 0xff00ff00" % (sM1 + 1))
        self.lin(vTRV, 7, (2, 1, 12), (4, 2, 10), (3, 1, 8), (4, 1, 7), (2, 1, 6), (3, 1, 5), (0, 2, 3))
        a("v_add_u32 v%d, s%d, v%d" % (vTRV, sring, vTRV))

    def part_off(self, v, t, bs, cmp="0"):
        self.lin(v, t, (4, 2, bs), (0, 4, 1))
        self.even_only(v, t, cmp)

    def group_flag(self, k, val):
        a = self.a
        a("v_mov_b32 v14, %s" % val, "v_add_u32 v15, s%d, v0" % sw, "v_lshlrev_b32 v15, 24, v15")
        self.sexpr(100, 128 * k, (sg, 1 << 17), (sj, 4))
        self.st_intra("buffer_store_dword", "v14", 15, 100)

    def stream(self):
        a = self.a
        lag = self.lag
        t_dl, t_f1, t_l1, t_c1, t_f2, t_l2, t_c2 = self.sync
        wl = {}
        for kind, ts in (("q", self.tq), ("g", self.tg)):
            for k, T in enumerate(ts):
                wl.setdefault(T, []).append((kind, k))
        tqk = max(t_c2 + 2, 16 + lag)
        assert self.clr1 <= t_dl and self.tq[-1] + 2 <= t_c1 and self.tg[-1] + 2 <= t_f2
        pvat = {}
        for p in range(5):
            pvat.setdefault(max(tqk + 3 + (p >> 1), 17 + 2 * p + lag), []).append(p)
        assert min(self.ipf, self.tml, self.tclr) >= tqk + 3 and max(pvat) < 32
        vF = 94
        G17 = "s_lshl_b32 s101, s%d, 17" % sg
        qk = None
        assert self.tml + 2 <= self.tfin <= self.tp5 and max(pvat) <= self.tp5

        def lds_pv(p):
            a("; PV of a group that stays in LDS")
            self.p_read(ORDER.index(p), 16, p & 1)
            if p == self.ogate[0]:
                a("; Wo follows once most of V has landed")
                for k in range(4):
                    a.wait_vm(self.tok[31] - self.ogate[1 + k])
                    self.weight_issue("o", k, 31, 18)
            a.wait_vm(self.tok[17 + 2 * p])
            self.sched(self.lines(self.v_reads, p) + self.lines(self.pv_dense, p, p & 1)
                       + (self.lines(self.o_write, 8, 16, False) if p == 7 else []))
        for T in range(1, 32):
            if T == 16:
                self.lin(5, 7, (4, 2, 8), (0, 4, 4))
                a("v_and_b32 v7, 16, v0", "v_lshlrev_b32 v7, 1, v7", "v_xor_b32 v5, v5, v7", "v_xor_b32 v6, 128, v5")
                self.mk_ai()
            between = None
            if T in (tqk + 1, tqk + 2):
                def between(jj):
                    a(*qk.pop(0))
            if T > 1:
                a("; tile %d (%s)" % (T, "K" if T < 16 else "V"))
            if T > 1:
                self.tile_issue(T, between)
            if T == 1:
                a("; code into L2; wave 0 of workgroup j = 0 resets the kv head's two flag arrays; x quarter, x row and residual slice")
                self.code_prefetch(93, 98, "L_pc0", "L_pc0")
                self.leader_fill()
            for kind, k in wl.get(T, []):
                self.weight_load(kind, k, T)
            if T == self.tfin - 1:
                self.weight_load("o", 0, None, 18)
            if self.stamps is not True and T > 1:
                self.stamp("T%02d" % T)
            if T == 1:
                self.setup_a()
            if T == self.clr1:
                a('; sentinel fill of the first two cross-die slots and of the arrival counters')
                self.early_fill()
            if T - 3 in self.tk:
                a("; early workgroups keep fewer loads in flight, late ones more, so that all finish the stream together")
                assert T < 25 + lag
                a("ds_read_b32 v100, v98", "s_waitcnt lgkmcnt(0)", "v_readfirstlane_b32 s4, v100",
                  "s_cmp_ge_u32 s4, %d" % self.th[0], "s_cselect_b32 s%d, 1, 0" % smode, "s_cmp_ge_u32 s4, %d" % self.th[1],
                  "s_addc_u32 s%d, s%d, 0" % (smode, smode))
            if lag <= T < 26 + lag:
                self.tile_consume(T - lag)
            if T == 2:
                a('; d_debug[g] = 1: flag arrays are reset')
                self.leader_flag(0, "L_nolead1", self.tok_lead)
            if T == t_dl:
                tok_f = self.flag_load(vF, 0, True)
            if T == t_f1:
                a('; flag 1 = die id + probe vote, set after the fills of all four waves; LayerNorm statistics of x[b]')
                self.flag_check(vF, 0, True, tok_f, "L_f0")
                a("s_barrier", "s_getreg_b32 s%d, hwreg(HW_REG_XCC_ID, 0, 4)" % stmp, "s_or_b32 s%d, s%d, s%d" % (stmp, stmp, svote))
                self.group_flag(0, "s%d" % stmp)
                a("v_lshlrev_b32 v%d, 16, v%d" % (vRES, vRES))
                self.stats(vX + 4, 8, True)
            if T in (t_l1, t_l2):
                fld = self.ld(vF, vF + 1, 101, 0 if T == t_l1 else 128, n=1)
                a("v_and_b32 v%d, 31, v0" % (vF + 1), "v_lshlrev_b32 v%d, 2, v%d" % (vF + 1, vF + 1), G17)
                tok_f = a(fld)
            if T == t_c1:
                a('; all 32 flags: same die -> plain stores through L2, else write-through; q partials and Wq column sums; fill of ML / A')
                self.check_or_poll([fld], [[vF]], 7, "xcc", max(tok_f, self.wtok["q"]), [G17])
                a("s_barrier")
                self.w_tiles([("q", vWQ)], 5, 7)
                a("v_cmp_lt_u32 vcc, 15, v%d" % vF, "v_and_b32 v%d, 15, v%d" % (vF, vF),
                  "s_and_b32 s100, vcc_lo, 0x55555555", "s_and_b32 s101, vcc_lo, 0xaaaaaaaa",
                  "s_bcnt1_i32_b32 s100, s100", "s_bcnt1_i32_b32 s101, s101")
                if self.stamps:
                    a("v_writelane_b32 v4, s100, 28", "v_writelane_b32 v4, s101, 29")
                a("s_getreg_b32 s%d, hwreg(HW_REG_XCC_ID, 0, 4)" % svote, "s_sub_u32 s%d, s100, s101" % stmp, "s_sub_u32 s101, s101, s100",
                  "s_bitcmp1_b32 s%d, 2" % svote, "s_cselect_b32 s101, s101, s%d" % stmp, "s_add_u32 s101, s101, 64")
                self.leader_flag(32, "L_nolead2", val="s101")
                if not self.force_slow:
                    a("v_cmp_ne_u32 vcc, s%d, v%d" % (svote, vF), "s_cmp_eq_u64 vcc, 0",
                      "s_cselect_b32 s%d, 0x%x, 0" % (sWF + 2, WS_SIZE), "s_cselect_b32 s%d, 0, 0x%x" % (sWL + 2, WS_SIZE))
                self.part_off(6, 7, 12)
                a("s_lshr_b32 s%d, s%d, 1" % (stmp, ss), "s_and_b32 s%d, s%d, 1" % (sclr, ss))
                self.colsum_pub(vWQ, 12, 16, 10, 11, OFF_CSQ, (stmp, 2048), (sclr, 512))
                self.mk_ix(8)
                self.gemv_zero(vD)
                self.gemv4(vX, vWQ, vD, 8)
                self.sentinels(20)
                self.gemv4_fin(9, vD)
                self.st_intra("buffer_store_dword", "v9", 6, sEst)
                self.fill_intra(24, 7, 20, LS + OFF_ML, 288)
                tok_q = a.mark()
                self.stamp("arrive")
            if T == t_f2:
                a('; flag 2: q partials and fills are visible; gate / up column sums')
                a.wait_vm(max(tok_q, self.wtok["g"]))
                a("s_barrier")
                self.group_flag(1, "1")
                self.w_tiles([("g", vWQ)], 5, 7)
                a("s_lshr_b32 s%d, s%d, 2" % (stmp, ss), "s_and_b32 s%d, s%d, 3" % (sclr, ss))
                self.colsum_pub(vWQ, 16, 20, 10, 11, OFF_CSG, (sclr, 2048), (stmp, 512))
            if T == t_c2:
                a('; fetch the q partials')
                self.check_or_poll([fld], [[vF]], 7, "q1", tok_f, [G17])
                self.colsum_ld(28, OFF_CSQ, sw)
                tok_q = a("v_lshlrev_b32 v7, 2, v0", *self.ld4(24, 7, sEld))
                self.next_region()
                self.stamp("barrier")
            if T == t_c2 + 1:
                self.s_zero()
                self.q_addrs(40, 42, 7)
            if T == tqk:
                a('; q = sum of partials - mean * column sum; QK^T and softmax run between the next loads')
                a.wait_vm(tok_q)
                self.colsum_fin(28, 36)
                self.sum4_init(38, 36)
                self.sum4(24, 38, 38)
                self.q_assemble(38, 40, 42)
                ls, _ = schedule(self.lines(self.qk))
                qk = [ls[len(ls) * k // 4:len(ls) * (k + 1) // 4] for k in range(4)]
            if T == tqk + 1:
                self.ml_off(22, 23)
                self.sexpr(100, L_WD, (sw, 2048))
                self.lin(16, 23, (2, 2, 6), (4, 2, 4))
                a("v_add_u32 v16, s100, v16", "v_lshl_add_u32 v17, v0, 2, s100")
                self.lds_or_zero(16, 23, 3)
                ls, _ = schedule(self.lines(self.softmax, 17, 22))
                qk = [ls[len(ls) * k // 4:len(ls) * (k + 1) // 4] for k in range(4)]
            if T == tqk + 2:
                self.stamp("softmax1")
            for p in pvat.get(T, ()):
                a('; PV of one 32-key group')
                self.p_read(ORDER.index(p), 16, p & 1)
                a("s_waitcnt lgkmcnt(0)")
                self.pv_dense(p, p & 1)
            for c, tw in enumerate(self.tk):
                if T == tw + 2:
                    a("s_cmp_eq_u32 s%d, %d" % (sw, self.tkw), "s_cbranch_scc0 L_tkb%d" % c)
                    a.wait_vm(tok_tk)
                    a("v_readfirstlane_b32 s4, v99", "s_add_u32 s4, s4, 1", "v_mov_b32 v99, s4", "ds_write_b32 v98, v99", "L_tkb%d:" % c)
                if T == tw:
                    a("; arrival rank among eight workgroups, one per kv head")
                    tok_tk = a.mark()
                    a("s_cmp_eq_u32 s%d, %d" % (sw, self.tkw), "s_cbranch_scc0 L_tka%d" % c, "v_mov_b32 v99, 1",
                      "buffer_atomic_add v99, v101, %s, s91 offen sc0 sc1" % srd(sXW), "s_add_u32 s91, s91, 4096", "L_tka%d:" % c)
                    a.uncounted(tok_tk)
            if T == self.ipf:
                self.code_prefetch(80, 4, "L_pc1", "L_tail")
            if T == self.tml:
                ml1 = [self.ld(64, vA16, sMLld)]
                a(*ml1)
                tok_warm = self.flag_load(70, 32, False)
            if T == self.tclr:
                a('; sentinel fill of the remaining per-head slots')
                self.sentinels(72)
                self.fill_intra(76, 77, 72, OFF_C, 352)
                self.fill_intra(78, 77, 72, LS, 480)
            if T == self.tfin:
                a('; all eight heads have filled their cross-die slots; summed votes pick the near copy')
                self.flag_check(70, 32, False, tok_warm, "L_f1")
                for k in (1, 2, 4):
                    self.dpp("v_add_u32", 70, 70, 70, "row_ror:%d" % k)
                a("v_readfirstlane_b32 s100, v70", "s_cmpk_ge_u32 s100, 512", "s_cselect_b32 s100, 0, 4", "s_xor_b32 s100, s100, s%d" % svote,
                  "s_bitcmp1_b32 s100, 2", "s_cselect_b32 s100, %s" % {1: "0x2000, 0", 2: "0, 0x2000"}[self.near],
                  "s_add_u32 s%d, s%d, s100" % (sBld, sBld), "s_add_u32 s%d, s%d, s100" % (sB2, sBst), "s_xor_b32 s%d, s%d, 0x2000" % (sBst, sB2))
                self.check_or_poll(ml1, [range(64, 68)], 69, "ml1", tok_warm)
                self.ml_finish(64)
                self.o_addr()
                a("s_mov_b32 s%d, 1" % slayer)
                a(*[x for x in self.lines(self.weight_load, "d", 0, None, 62) if x.startswith("s_")])
            if T == self.tp5:
                lds_pv(5)
        self.stamp("issued")
        for p in (5, 6, 7):
            if p > 5 or self.tp5 > 31:
                lds_pv(p)
        self.n_after_o = min(a.mark() - self.wtok["o"], 60)
        self.stamp("pv1")

    def code_prefetch(self, v, sp, here, start):
        a = self.a
        a("s_getpc_b64 s[%d:%d]" % (sp, sp + 1), here + ":")
        if start != here:
            a("s_add_u32 s%d, s%d, %s-%s" % (sp, sp, start, here), "s_addc_u32 s%d, s%d, 0" % (sp + 1, sp + 1))
        self.sexpr(100, 0, (sj, 512), (sw, 128))
        a("s_min_u32 s100, s100, L_codeend-%s-4" % start, "v_mov_b32 v%d, s100" % v, "global_load_dword v%d, v%d, s[%d:%d]" % (v, v, sp, sp + 1))

    def touch_addr(self, v, t, parts):
        a = self.a
        a("v_mov_b32 v%d, 0x%x" % (v, OOB), "v_lshl_add_u32 v%d, v0, 2, s%d" % (t + 1, sw))
        hi = sum(n for _, n in parts)
        for start, n in reversed(parts):
            self.sexpr(100, start - 128 * (hi - n), (sg, 1 << 17), (sj, 128 * n))
            a("v_lshl_add_u32 v%d, v%d, 7, s100" % (t, t + 1), "v_cmp_gt_u32 vcc, %d, v%d" % (hi, t + 1),
              "v_cndmask_b32 v%d, v%d, v%d, vcc" % (v, v, t))
            hi -= n

    def touch(self, v):
        return self.a("buffer_load_dword v%d, v%d, %s, 0 offen sc1" % (v, v, srd(sWS)))

    def fill_cross(self, d, hop):
        self.sentinels(d)
        self.lin(d + 4, d + 5, (4, 2, 15), (3, 1, 13), (0, 3, 4))
        self.sexpr(100, (hop >> 1) * 0x4000 + (hop & 1) * 0x1000, (ss, 1 << 17), (sg, 512), (sb, 128))
        self.a("buffer_store_dwordx4 %s, v%d, %s, s100 offen sc1" % (q(d), d + 4, srd(sXW)))

    def st_cross(self, v):
        a = self.a
        for so in (sBst, sB2):
            a("buffer_store_dword v%d, v95, %s, s%d offen sc1" % (v, srd(sXW), so))

    def red_loads(self, x, soff):
        return [self.ld(x + 4 * i, vA16, soff, i * 1024, rs=sXW) for i in range(4)]

    def prep_split(self, name, work, loads):
        a = self.a
        n = self.at[name][0]
        while n < len(work) and work[n].startswith(("s_cselect", "s_addc", "s_cbranch")):
            n += 1
        a(*work[:n])
        a("s_cmp_eq_u32 s%d, 0" % sw, "s_cbranch_scc0 L_%s_n" % name)
        self.idle(n - len(work))
        a(*loads)
        a("L_%s_n:" % name, *work[n:])
        self.est += (name, len(work))

    def reduce_x(self, name, x, d, soff):
        a = self.a
        self.poll(self.red_loads(x, soff), [range(x + 4 * i, x + 4 * i + 4) for i in range(4)], 7, name,
                  spec=lambda i: self.mfma(d, q(x + 4 * i), q(vSEL), i > 0), again=self.kx)
        m = "s[%d:%d]" % (sM1, sM1 + 1)
        a("v_cndmask_b32 v%d, v%d, v%d, %s" % (d, d, d + 1, m), "v_cndmask_b32 v%d, v%d, v%d, %s" % (d + 2, d + 2, d + 3, m),
          "v_permlane32_swap_b32 v%d, v%d" % (d, d + 2), "v_add_f32 v%d, v%d, v%d" % (vRES, vRES, d),
          "v_add_f32 v%d, v%d, v%d" % (vRES, vRES, d + 2))
        self.pack_pairs(7, vRES)

    def x_off(self, v, t, bs):
        self.lin(v, t, (5, 1, bs), (4, 1, bs + 1), (0, 4, 1))
        self.even_only(v, t)

    def layer1(self, name):
        self.a("s_cmp_eq_u32 s%d, 1" % slayer, "s_cbranch_scc0 " + name)

    def chain(self):
        a = self.a
        a("L_tail:")
        a('; ---- attention output: sum over the four waves, publish per head')
        self.lin(23, 6, (2, 4, 4), (1, 1, 8), (0, 1, 3))
        self.sexpr(sclr, L_SCR, (sw, 2048))
        a("v_add_u32 v23, s%d, v23" % sclr, "s_waitcnt lgkmcnt(0)", "s_barrier")
        for src in range(4):
            a("ds_read_b64 %s, v23 offset:%d" % (q(8 + 2 * src, 2), src * 512))
        a("v_lshlrev_b32 v17, 2, v0", "s_mov_b32 m0, s%d" % sclr)
        self.lin(56, 16, (2, 2, 9), (4, 2, 7), (2, 2, 5), (0, 2, 3))
        a("s_lshl_b32 s100, s%d, 5" % sw, "v_xor_b32 v56, s100, v56", "v_add_u32 v56, 0x%x, v56" % L_WO)
        a("s_waitcnt lgkmcnt(2)", "v_pk_add_f32 v[8:9], v[8:9], v[10:11]", "s_waitcnt lgkmcnt(0)", "v_pk_add_f32 v[12:13], v[12:13], v[14:15]",
          "v_pk_add_f32 v[8:9], v[8:9], v[12:13]", "v_cvt_pk_bf16_f32 v7, v8, v9")
        self.st_intra("buffer_store_dword", "v7", 17, sAst)
        self.stamp("Apub", True)
        if self.stamps:
            a("s_mov_b32 m0, s%d" % sclr)
        a("v_lshrrev_b32 v5, 4, v0", "v_and_b32 v6, 15, v0", "v_xor_b32 v16, v5, v6", "v_lshlrev_b32 v16, 4, v16",
          "v_lshl_add_u32 v18, v5, 8, v16", "s_and_b32 s100, s%d, 1" % sw, "s_lshl_b32 s100, s100, 7", "v_xor_b32 v18, s100, v18",
          "v_xor_b32 v19, 64, v18")
        lda = ["buffer_load_dwordx4 v%d, %s, s%d offen offset:%d sc1 lds" % (18 + h, srd(sWS), sAld, h * 1024) for h in range(2)]

        def prep_a():
            a = self.a
            a("v_lshl_add_u32 v20, v6, 8, v16", "v_add_u32 v20, 0x%x, v20" % L_SCR)
            for st in range(1, 4):
                a("v_xor_b32 v%d, %d, v20" % (20 + st, st << 6))
            a("v_add_u32 v5, s%d, v%d" % (sclr, vA16), "v_lshlrev_b32 v95, 1, v0")
            self.even_only(95, 6)
            a(*[x for x in self.lines(self.weight_load, "d", 0, None, 62) if x.startswith("v_")])
            self.touch_addr(59, 60, T1)
        n = self.with_loads("pollA", self.lines(prep_a), lda)
        a("s_waitcnt vmcnt(%d)" % (1 + 2 * n + self.n_after_o), "s_barrier")
        for st in range(4):
            for h in range(2):
                a("ds_read_b64_tr_b16 %s, v56 offset:%d" % (q(24 + 4 * st + 2 * h, 2), st * 4096 + h * 2048))
        a("s_branch L_pollA_w", "L_pollA:", *lda)
        a(*self.spin_count())
        a("L_pollA_w:", "s_waitcnt vmcnt(%d)" % (2 * n - 1), "ds_read_b128 v[8:11], v5", "s_waitcnt vmcnt(%d)" % (2 * n - 2),
          "ds_read_b128 v[12:15], v5 offset:1024")
        ck = self.lines(self.check, [range(8, 12), range(12, 16)], 7, 0)
        a("s_waitcnt lgkmcnt(1)", *ck[:2], "s_waitcnt lgkmcnt(0)", *ck[2:])
        a("s_cbranch_vccnz L_pollA")
        if self.stamps is not True:
            self.stamp("pollA", True)
        a("s_barrier")
        ops = [40, 44, 48, 52, 64, 68, 72, 76]
        rd = ["ds_read_b128 %s, v%d offset:%d" % (q(ops[k]), 20 + (k >> 1), (k & 1) * 4096) for k in range(8)]
        m = self.oahead
        a(*rd[:m])
        self.late_loads("L_l1b")
        for k in range(8):
            a("s_waitcnt lgkmcnt(%d)" % (min(8, m + k) - k - 1))
            self.mfma(8, q(ops[k]), q(24 + 4 * (k >> 1)), k > 0)
            if m + k < 8:
                a(rd[m + k])
        a("v_add_f32 v8, v8, v9", "v_add_f32 v10, v10, v11", "v_add_f32 v8, v8, v10")
        self.pack_pairs(7, 8)
        self.st_cross(7)
        self.stamp("Bpub", True)
        self.colsum_ld(80, OFF_CSG, sb)
        self.layer1("L_l1c")
        self.colsum_ld(24, OFF_CSQ, sw)
        a("L_l1c:")
        wt = self.lines(self.w_tiles, [("d", vWD)], 91, 7)

        def prep_b():
            a = self.a
            self.w_tiles([("g", vWG), ("q", vWQ)], 5, 7)
            a("v_and_b32 v5, 1, v0", "v_lshlrev_b32 v5, 4, v5", "v_lshlrev_b32 v5, v5, s%d" % sLO, "v_bfe_u32 v6, v0, 1, 2")
            for r in range(4):
                a("v_cmp_eq_u32 vcc, %d, v6" % r, "v_cndmask_b32 v%d, 0, v5, vcc" % (vSEL + r))
            self.x_off(94, 7, 6)
            self.st_off(93, 7)
            a("s_bitcmp1_b32 s%d, 0" % sact, "s_cselect_b32 s%d, 0, -1" % stmp)
            self.part_off(92, 7, 10, "s%d" % stmp)
            self.lin(89, 7, (0, 5, 2), (5, 1, 1))
            self.sexpr(100, L_H, (sw, 128))
            a("v_add_u32 v89, s100, v89")
            self.mk_ix(90)
            self.lin(88, 7, (2, 2, 7), (0, 1, 4), (4, 2, 5))
            a("v_add_u32 v88, 0x%x, v88" % L_H)
            a(*[x for x in wt if not x.startswith("ds_")])
            self.sexpr(stmp, 0, (sRow, 1), (sw, 256))
            self.sexpr(sclr, 0, (sRow, 1), (sj, 4))
            a("s_add_u32 s%d, s%d, 0x1000" % (sBst, sBst), "s_add_u32 s%d, s%d, 0x1000" % (sB2, sB2))
        self.prep_split("pollB", self.lines(prep_b), self.red_loads(vX, sBld))
        aux = [self.ld(vX + 4, 91, stmp, n=1)]
        a("s_waitcnt lgkmcnt(0)", "s_cmp_eq_u32 s%d, 0" % sw, "s_cbranch_scc0 L_nored1")
        self.cold += (["L_nored1:", "s_lshl2_add_u32 s100, s%d, s%d" % (slayer, sw), "s_cmp_eq_u32 s100, 5", "s_cbranch_scc0 L_nof2"]
                      + self.lines(self.fill_cross, vX + 8, 2) + ["L_nof2:", "s_waitcnt vmcnt(0)", "s_branch L_red1"])
        self.reduce_x("pollB", vX, vD, sBld)
        self.st_intra("buffer_store_dword", "v7", 94, sXst)
        a("v_lshlrev_b32 v%d, 16, v7" % vRES)
        self.stamp("XBpub", True)
        a("L_red1:", "s_barrier")
        ldx = [self.ld(vX, vA16, sXld)]
        work, _ = schedule(self.lines(self.colsum_fin, 24, vCQ) + self.lines(self.colsum_fin, 80, vCG) + self.lines(self.gemv_zero, vD)
                           + [x + " ; prio=100" for x in self.lines(self.slice_sums, 5, 93, sclr)])
        k = max(i for i, x in enumerate(work) if "_dpp" in x) + 1
        ex = int(self.at["pollXB"][0] <= k)
        work[k:k] = self.lines(self.st_intra, "buffer_store_dword", "v5", 93, sclr)
        self.with_loads("pollXB", work, ldx)
        a(*[x for x in wt if x.startswith("ds_")])
        a("v_lshlrev_b32 v91, 2, v0")
        self.poll(ldx, [range(vX, vX + 4)], 7, "pollXB", self.lines(self.gemv4, vX, vWG, vD, 90), self.lines(self.gemv_zero, vD), extra=ex)
        a(*aux)
        self.gemv4_fin(6, vD)
        self.st_intra("buffer_store_dword", "v6", 92, sCst)
        self.stamp("Cpub", True)
        a("v_mov_b32 v5, 0", "s_bitcmp1_b32 s%d, 1" % sact, "s_cbranch_scc0 L_nod")
        ldc = self.ld4(vX, 91, sCld)
        st = self.lines(self.stats_fin, vX + 4, vD, False) + self.lines(self.sum4_init, vD + 2, vCG)
        self.stats_poll("pollC", aux, vX + 4, st, ldc)
        self.poll(ldc, [range(vX, vX + 4)], 7, "pollC", self.lines(self.sum4, vX, vD, vD + 2))
        a("v_permlane32_swap_b32 v%d, v%d" % (vD, vD + 1), "v_mul_f32 v%d, s%d, v%d" % (vD, sSC, vD),
          "v_mul_f32 v%d, v%d, v%d" % (vD, vD, vD + 1), "v_cvt_pk_bf16_f32 v%d, v%d, v%d" % (vD, vD, vD),
          "ds_write_b16 v89, v%d" % vD, "v_mov_b64 %s, 0" % q(vD + 4, 2), "s_waitcnt lgkmcnt(0)", "s_barrier", "ds_read_b128 %s, v88" % q(vX + 4), "s_waitcnt lgkmcnt(0)")
        self.smf(vD + 4, q(vX + 4), q(vWD, 8), 90)
        a("v_add_f32 v7, v%d, v%d" % (vD + 4, vD + 5))
        self.pack_pairs(5, 7)
        a("L_nod:")
        self.st_cross(5)
        self.stamp("Dpub", True)
        a("s_add_u32 s%d, s%d, 0x1000" % (stmp, sBld))
        self.layer1("L_last")
        a('; ---- operands of the second attention while the cross-die partials travel')
        a("s_waitcnt vmcnt(2) lgkmcnt(0)")

        def prep_d():
            a = self.a
            a("v_mov_b32 v28, v94", "v_mov_b32 v30, v93", "s_add_u32 s%d, s%d, 0x3000" % (sBst, sBst),
              "s_add_u32 s%d, s%d, 0x3000" % (sB2, sB2), "s_add_u32 s%d, s%d, 0x4000" % (sBld, sBld))
            self.mk_ai()
            self.s_zero()
            self.part_off(29, 7, 12)
            self.q_addrs(31, 48, 7)
            self.lin(5, 7, (2, 2, 6), (5, 1, 8), (4, 1, 5), (0, 1, 4))
            self.sexpr(100, L_WQ, (sw, QSTR))
            a("v_add_u32 v5, s100, v5")
            self.lds_or_zero(5, 7, 2)
            self.ml_off(6, 7)
            self.sexpr(98, 1024, (sRow, 1), (sb, 256))
            self.sexpr(sWl, 1024, (sRow, 1), (sj, 4))
            self.sexpr(sWo, 0, (sg, 1 << 17), (sj, 2048), (sw, 512))
            a("s_add_u32 s%d, s%d, 0x%x" % (sclr, sXst, OFF_XD - OFF_XB), "s_add_u32 s99, s%d, 0x%x" % (sXld, OFF_XD - OFF_XB))
        self.prep_split("pollD", self.lines(prep_d), self.red_loads(8, stmp))
        a("s_waitcnt lgkmcnt(0)", "s_cmp_eq_u32 s%d, 0" % sw, "s_cbranch_scc0 L_fill3", "L_redd:")
        self.cold += ["L_fill3:", "s_cmp_eq_u32 s%d, 1" % sw, "s_cbranch_scc0 L_nored2"] + self.lines(self.fill_cross, 16, 3) + ["s_branch L_nored2"]
        self.reduce_x("pollD", 8, 24, stmp)
        self.st_intra("buffer_store_dword", "v7", 28, sclr)
        a("s_cmp_eq_u32 s%d, 2" % slayer, "s_cbranch_scc1 L_out")
        a("v_lshlrev_b32 v%d, 16, v7" % vRES)
        self.stamp("XDpub")
        a("L_nored2:", "s_barrier")
        row = [self.ld(24, 28, 98, n=1)]
        ldx = [self.ld(52, vA16, 99)]
        work = self.lines(self.slice_sums, 26, 30, sWl)
        ex = int(self.at["pollXD"][0] <= len(work))
        work += self.lines(self.st_intra, "buffer_store_dword", "v26", 30, sWl) + ["v_lshlrev_b32 v28, 2, v0"]
        n = self.with_loads("pollXD", work, ldx)
        a("s_waitcnt vmcnt(%d)" % (n + 2))
        self.gemv_zero(8)
        self.poll(ldx, [range(52, 56)], 7, "pollXD", self.lines(self.gemv4, 52, vWQ, 8, vIX), self.lines(self.gemv_zero, 8), extra=ex)
        a(*row)
        self.gemv4_fin(10, 8)
        self.st_intra("buffer_store_dword", "v10", 29, sEst)
        self.stamp("Epub")
        lde = self.ld4(52, 28, sEld)
        st = self.lines(self.stats_fin, 24, 32, True) + self.lines(self.sum4_init, 34, vCQ)
        self.stats_poll("pollE", row, 24, st, lde)
        self.poll(lde, [range(52, 56)], 7, "pollE", self.lines(self.sum4, 52, 32, 34))
        self.stamp("Eget")
        rd = self.q_assemble(32, 31, 48, self.lines(self.next_region) + ["s_mov_b32 s%d, 2" % slayer]
                             + ["v_min_u32 v38, 3, v0", "v_lshlrev_b32 v38, 7, v38"])
        a(self.ld(38, 38, sWo, n=1))
        for i in range(7):
            a("v_mov_b64 %s, 0" % q(vO + 4 * i, 2))
        if self.stamps is not True:
            self.stamp("qrdy")
        a('; ---- second attention, keys and values already on chip')
        x = 128
        ldm = [self.ld(x, vA16, sMLld)]

        def att():
            a = self.a
            self.qk()
            a("s_waitcnt vmcnt(1) ; guards=v[52:55] after=v%d" % (vS + 20))
            a("v_subrev_u32 v23, 0x%x, v31" % (L_Q - L_WQ))
            a("v_mov_b64 %s, 0" % q(vO + 28, 2))
            self.softmax(23, 6)
            self.o_addr()
            for h in range(2):
                self.v_reads(5 + h, lambda i, e: q(8 * i + 4 * h + 2 * e, 2, "a"))
            self.v_reads(7)
            for n in range(4):
                self.p_read(2 * n, 5, n & 1)
                for i in range(8):
                    B = q(128 + 64 * n + 8 * i, 8) if n < 2 else q(8 * i, 8, "a") if n == 2 else "vp[%d]" % i
                    self.smf(vO + 4 * i, q(vQ + 4 * (n & 1)), B)
                    if n == i == 0:
                        for d in self.mlat:
                            a(ldm[0] + " ; lat=%d tail=%d" % (d, self.mltail))
        ls = [x + " prio=%d" % self.p0 if x.endswith("mem=p0") else x for x in self.lines(att)]
        cut = len(ls) - self.mlcut
        out, t1 = schedule(ls[:cut], rd)
        if self.stamps and self.stamps is not True:
            k = max(i for i, x in enumerate(out) if x.startswith("buffer_store")) + 1
            out[k:k] = self.lines(self.stamp, "mlpub")
            k = min(i for i, x in enumerate(out) if x.startswith("v_pk_fma"))
            out[k:k] = self.lines(self.stamp, "maxed")
        a(*out)
        a("s_waitcnt lgkmcnt(0)")
        if self.stamps is not True:
            self.stamp("pv2a")
        L = a.lab("ml2")
        a(L + "_w:")
        fin = ["v_sub_f32 v58, v%d, v20" % x, "v_sub_f32 v59, v%d, v20" % (x + 2), "v_exp_f32 v58, v58", "v_exp_f32 v59, v59",
               "v_mul_f32 v7, v58, v%d" % (x + 1), "v_fmac_f32 v7, v59, v%d" % (x + 3)] + self.lines(self.ml_finish, x)[6:]
        self.check([range(x, x + 4)], 6, len(self.mlat))
        a(*fin[:3])
        a("s_cbranch_vccnz " + L)
        fin = fin[3:]
        if self.stamps is not True:
            self.stamp("mlget")
        t2 = self.sched([x + " ; prio=200" for x in fin] + ls[cut:] + self.lines(self.o_write, 8, 60, True))
        self.est += (t1, t2)
        self.stamp("pv2")
        a("s_branch L_tail", L + ":", *ldm)
        a(*self.spin_count())
        a("s_branch %s_w" % L)
        a('; ---- last layer: one workgroup per slice reduces the partials and writes d_out; the first read follows the acknowledgement of its own stores')
        a("L_last:", "s_lshr_b32 s100, s%d, 2" % sj, "s_xor_b32 s100, s100, s%d" % sg, "s_or_b32 s100, s100, s%d" % sw,
          "s_cmp_eq_u32 s100, 0", "s_cbranch_scc0 L_fin")
        self.x_off(28, 7, 10)
        self.mk_srd(sWF, sOUT, "4096")
        a("s_lshl_b32 s%d, s%d, 5" % (sclr, sj))
        a("s_waitcnt vmcnt(0)")
        a(*self.red_loads(8, stmp))
        a("s_branch L_redd")
        a("L_out:")
        if self.probe:
            self.stamp("out")
            k0, k = map(self.stamp_names.index, self.probe[:2])
            a("v_readlane_b32 s100, v4, %d" % k, "v_readlane_b32 s101, v4, %d" % k0, "s_sub_u32 s100, s100, s101", "s_mul_i32 s100, s100, %d" % self.probe[2],
              "s_min_u32 s100, s100, 100000", "s_memrealtime s[0:1]", "s_waitcnt lgkmcnt(0)", "s_mov_b32 s101, s0",
              "L_probe:", "s_memrealtime s[0:1]", "s_waitcnt lgkmcnt(0)", "s_sub_u32 s0, s0, s101", "s_cmp_lt_u32 s0, s100",
              "s_cbranch_scc1 L_probe")
        a("L_fin:")
        if self.stamps and not self.probe:
            self.stamp("end")
            a("s_lshl_b32 s100, s2, 2", "s_add_u32 s100, s100, s%d" % sw, "s_lshl_b32 s100, s100, 7",
              "s_add_u32 s100, s100, 0x%x" % (STAMP_OFF - 2 * LS), "s_mov_b32 s%d, 0x1000000" % (sWS + 2),
              "v_writelane_b32 v4, s%d, 30" % sspin, "v_writelane_b32 v4, s%d, 31" % (sWF + 2),
              "v_lshlrev_b32 v9, 2, v0", "v_cmp_gt_u32 vcc, 32, v0", "s_and_saveexec_b64 s[98:99], vcc",
              "buffer_store_dword v4, v9, %s, s100 offen sc1" % srd(sWS))
        a("L_end:", "s_endpgm")
        a(*self.cold)
        a("L_codeend:")

    def build(self):
        self.prologue()
        self.stream()
        self.chain()
        if self.jall:
            old, self.a = self.a.l, Asm()
            on = False
            for k, i in enumerate(old):
                on = on or i.label == "L_entered"
                hit = i.op == "s_barrier" or old[k - 1].op == "s_barrier" or (i.vmem and " nt" not in i.text) or i.op.startswith("ds_write") \
                    or (i.ds and not old[k - 1].ds and not old[k - 1].mfma)
                if on and hit and i.op:
                    L = "L_ja%d" % k
                    self.a("s_cselect_b32 s92, 1, 0", "s_memtime s[0:1]", "s_waitcnt lgkmcnt(0)", "s_mul_i32 s0, s0, 0x9e3779b1",
                           "s_lshr_b32 s0, s0, %d" % (32 - self.jall[0]), "s_cmp_eq_u32 s0, 0", "s_cbranch_scc0 " + L,
                           *["s_sleep %d" % self.jall[1]] * self.jall[2], L + ":", "s_cmp_eq_u32 s92, 1")
                self.a.l.append(i)
        self.a.pad()
        if self.win:
            self.est += align(self.a, self.win, "L_entered")
        head = open("cdna_kernels/" + KNAME[:-7] + ".s.ref").read().split("; Override launch")[0]
        return (head + "; @launch grid=(256,1,1) block=(256,1,1) lds=163840\n" + ABOUT +
                '.amdgcn_target "amdgcn-amd-amdhsa--gfx950"\n.text\n.globl %s\n.p2align 8\n.type %s,@function\n%s:\n' % (KNAME, KNAME, KNAME)
                + self.a.text() +
                '.section .rodata,"a"\n.p2align 6\n.amdhsa_kernel %s\n  .amdhsa_next_free_vgpr 512\n  .amdhsa_next_free_sgpr 102\n'
                "  .amdhsa_accum_offset 256\n  .amdhsa_group_segment_fixed_size 0\n  .amdhsa_kernarg_size 96\n"
                "  .amdhsa_user_sgpr_count 2\n  .amdhsa_user_sgpr_kernarg_segment_ptr 1\n  .amdhsa_system_sgpr_workgroup_id_x 1\n"
                ".end_amdhsa_kernel\n" % KNAME)


if __name__ == "__main__":
    out = sys.argv[1]
    kw = eval("dict(%s)" % (sys.argv[2] if len(sys.argv) > 2 else ""))
    g = Gen(**kw)
    s = g.build()
    open(out, "w").write(s)
    if len(sys.argv) > 3:
        print("estimated attention cycles", g.est)
    if g.stamps:
        open(out[:-2] + ".names", "w").write("\n".join(g.stamp_names))
```

```python
import struct
import sys
from asmlib import Asm, align, schedule

KNAME = "interleave_layers__gqa_block_cached__glu_gated_bilinear__decode_kernel"

LS = 1 << 20
OFF_ML, OFF_A, OFF_C, OFF_XB, OFF_ST, OFF_XD, OFF_E = 0, 4 << 10, 36 << 10, 52 << 10, 56 << 10, 60 << 10, 64 << 10
OFF_CSG, OFF_CSQ = 60 << 10, 68 << 10
WS_SIZE = 3 * LS
T1 = [(OFF_C, 11), (LS + OFF_ML, 1)]
OFF_TK = 1 << 20
OFF_XW = 5 << 20
STAMP_OFF = 8 << 20
OOB = 0x7FFF0000

RING = 24576
L_WQ = 4 * RING
L_WO = L_WQ + 16384
L_WG = L_WO + 16384
L_WD = L_WG + 16384
L_SCR = L_WD + 8192
L_H = L_SCR + 1024
L_Q, QSTR = L_SCR + 1536, 2112
L_OOB = 0x30000
assert L_SCR + 8192 == 163840

sK, sV, sWS, sWF, sWL, sOUT, sDBG, sXI, sT = 28, 32, 36, 40, 44, 48, 52, 56, 96
sw, sg, sj, sb, ss, su, sring, srot, stmp, slayer = range(60, 70)
(sMLst, sMLld, sAst, sAld, sBst, sBld, sXst, sXld, sCst, sCld, sCS, sS1, sSC, sRow, sEst, sEld) = range(70, 86)
sWo, sWl = 86, 87
sM1, smode = 88, 90
sspin, scmp = 94, 95
sclr, slead, sact = 3, 14, 15
sLO, sHI = 6, 7
sXW, sB2, svote = 24, 23, 22
sWo2, sWl2 = 8, 9
SPIN_LIMIT = 1 << 18

vL, vA16, vTRV, vRES = 0, 1, 2, 3
vQ, vO, vIX, vAI, vS = 8, 24, 56, 56, 64
vWG, vWD, vWQ, vCG, vCQ, vSEL, vX, vD = 8, 24, 32, 48, 50, 52, 56, 72
vKS, vKR = 240, 244
ORDER = [0, 1, 2, 3, 5, 6, 7, 4]
SLOT = {5: 2, 6: 4, 7: 0}
SCALE = 128 ** -0.5 * 1.4426950408889634
ONES = "0x3f803f80"


def f32(x):
    return "0x%08x" % struct.unpack("<I", struct.pack("<f", x))[0]


def q(r, n=4, k="v"):
    return "%s[%d:%d]" % (k, r, r + n - 1)


def srd(r):
    return "s[%d:%d]" % (r, r + 3)


ABOUT = """;
; One persistent workgroup per CU: workgroup i owns kv head g = i & 7, batch b = i >> 6 and key split s = (i >> 3) & 7.
; Hand-offs go through d_ws slots that are first filled with 0xFFFFFFFF inside this launch and then read until no such word
; Two choices affect speed only: which of the two copies is read (probe reads at entry) and how many stream loads a
; workgroup keeps in flight (arrival rank at two points of the stream).
"""


class Gen:
    def __init__(self, depth=6, d0={5: 8, 6: 8}, burst=4, lag=2, tq=(2, 2, 3, 3), tg=(6, 6, 7, 7), ogate=(7, 3, 3, 3, 3),
                 sync=(4, 6, 9, 11, 13, 16, 18), clr1=4, ipf=24, tclr=25, tml=27, tfin=29, tp5=30,
                 dbl="pollXB,pollC,pollXD,pollE", at={}, kx=1, nst_=2, oahead=4, mlat=(208, 84), mltail=500, mlcut=1, p0=400,
                 win=32, near=1, force_slow=False, stamps=False, cyc=False, probe=None, jitter=None, jall=None, tlb='', tlbw=2, tk=(14, 22), tkn=8, tkw=1, th=(3, 6), lv=((5, 6, 7),)):
        self.__dict__.update(locals())
        self.a = Asm()
        self.nst = 0
        self.cold = []
        self.nslow = 0
        self.est = ()
        self.at = dict(pollA=(18, 34), pollB=(88,), pollXB=(8, 17), pollC=(0, 11), pollD=(84,), pollXD=(2, 10), pollE=(0, 11))
        self.at.update(at)
        self.stamp_names = []

    def stamp(self, name, per_layer=False):
        if self.jitter:
            self.nslow += 1
            L = "L_jit%d" % self.nslow
            self.a("s_memtime s[0:1]", "s_waitcnt lgkmcnt(0)", "s_mul_i32 s0, s0, 0x9e3779b1", "s_lshr_b32 s0, s0, %d" % (32 - self.jitter[0]),
                   "s_cmp_eq_u32 s0, 0", "s_cbranch_scc0 " + L, *["s_sleep %d" % self.jitter[1]] * self.jitter[2], L + ":")
            return
        if not self.stamps or (self.stamps is not True and name not in self.stamps):
            return
        a = self.a
        k = self.nst
        self.nst += 2 if per_layer else 1
        assert self.nst <= 28
        a("%s s[0:1]" % ("s_memtime" if self.cyc else "s_memrealtime"), "s_waitcnt lgkmcnt(0)")
        if per_layer:
            self.stamp_names += [name + "/1", name + "/2"]
            a("s_add_u32 m0, s%d, %d" % (slayer, k - 1), "v_writelane_b32 v4, s0, m0")
        else:
            self.stamp_names.append(name)
            a("v_writelane_b32 v4, s0, %d" % k)

    def mk_srd(self, d, p, size):
        self.a("s_mov_b32 s%d, s%d" % (d, p), "s_mov_b32 s%d, s%d" % (d + 1, p + 1),
               "s_mov_b32 s%d, %s" % (d + 2, size), "s_mov_b32 s%d, 0x20000" % (d + 3))

    def lin(self, d, t, *terms):
        first = True
        for sh, bits, sc in terms:
            r = d if first else t
            if sh + bits >= 6:
                src = vL
                if sh:
                    self.a("v_lshrrev_b32 v%d, %d, v0" % (r, sh)); src = r
            elif sh == 0:
                self.a("v_and_b32 v%d, %d, v0" % (r, (1 << bits) - 1)); src = r
            else:
                self.a("v_bfe_u32 v%d, v0, %d, %d" % (r, sh, bits)); src = r
            if first:
                if sc or src != d:
                    self.a("v_lshlrev_b32 v%d, %d, v%d" % (d, sc, src))
            else:
                self.a("v_lshl_add_u32 v%d, v%d, %d, v%d" % (d, src, sc, d))
            first = False

    def sexpr(self, d, const, *terms):
        a = self.a
        first = True
        for reg, mult in terms:
            r = d if first else 101
            if mult & (mult - 1) == 0:
                a("s_lshl_b32 s%d, s%d, %d" % (r, reg, mult.bit_length() - 1))
            else:
                a("s_mul_i32 s%d, s%d, %d" % (r, reg, mult))
            if not first:
                a("s_add_u32 s%d, s%d, s101" % (d, d))
            first = False
        if const:
            a("s_add_u32 s%d, s%d, 0x%x" % (d, d, const))

    def oob_unless(self, v, t, cond):
        self.a(cond, "v_mov_b32 v%d, 0x%x" % (t, OOB), "v_cndmask_b32 v%d, v%d, v%d, vcc" % (v, t, v))

    def even_only(self, v, t, cmp="0"):
        self.a("v_and_b32 v%d, 1, v0" % t)
        self.oob_unless(v, t, "v_cmp_eq_u32 vcc, %s, v%d" % (cmp, t))

    def st_intra(self, op, data, voff, soff, both=False):
        a = self.a
        slow = "%s %s, v%d, %s, s%d offen sc1" % (op, data, voff, srd(sWL), soff)
        a("%s %s, v%d, %s, s%d offen" % (op, data, voff, srd(sWF), soff))
        if both:
            tk = a.mark()
            a(slow)
            a.uncounted(tk)
            return
        self.nslow += 1
        L = "L_slow%d" % self.nslow
        a("s_cmp_eq_u32 s%d, 0" % (sWF + 2), "s_cbranch_scc1 " + L, L + "_b:")
        self.cold += [L + ":", slow, "s_branch %s_b" % L]

    def ld(self, r, voff, soff, off=0, n=4, rs=sWS):
        return "buffer_load_dword%s %s, v%d, %s, s%d offen offset:%d sc1" % (
            "x%d" % n if n > 1 else "", q(r, n) if n > 1 else "v%d" % r, voff, srd(rs), soff, off)

    def ld4(self, r, voff, soff):
        return [self.ld(r + k, voff, soff, 256 * k, n=1) for k in range(4)]

    def spin_count(self):
        return ["s_add_u32 s%d, s%d, 1" % (sspin, sspin), "s_cmp_lt_u32 s%d, 0x%x" % (sspin, SPIN_LIMIT), "s_cselect_b32 s%d, -2, -1" % scmp]

    def rounds(self, name):
        return 1 + self.dbl.split(",").count(name)

    def poll(self, loads, regs, acc, name, work=(), reinit=(), spec=None, again=None, extra=0):
        a = self.a
        L = "L_" + name
        k, n = self.rounds(name), len(loads)
        if again:
            self.check(regs, acc, len(regs), spec)
            a("s_cbranch_vccz %s_d" % L, L + ":", *loads)
            a(*self.spin_count())
            self.check(regs, acc, again * n + len(regs), spec)
            a("s_cbranch_vccnz " + L, "s_nop 2", L + "_d:")
        else:
            a("s_branch %s_w" % L, L + ":", *loads)
            a(*self.spin_count())
            a(*reinit)
            a(L + "_w:")
            self.check(regs, acc, (k - 1) * n + len(regs) + extra, spec)
            a(*work)
            a("s_cbranch_vccnz " + L, L + "_d:")
        if self.stamps is not True:
            self.stamp(name, True)

    def stats_poll(self, name, aux, r, st, loads):
        a = self.a
        self.check_or_poll(aux, [[r]], 7, name + "s", a.mark() - 1, work=st[:self.nst_])
        self.with_loads(name, st[self.nst_:], loads)

    def idle(self, n):
        if n >= 16:
            self.a("s_sleep %d" % (n // 16))
        if n > 0 and n % 16:
            self.a("s_nop %d" % (n % 16 - 1))

    def with_loads(self, name, work, loads):
        pos = 0
        for d in self.at[name][:self.rounds(name)]:
            self.a(*work[pos:pos + d])
            self.idle(pos + d - max(pos, len(work)))
            self.a(*loads)
            pos += d
        self.a(*work[pos:])
        return self.rounds(name)

    def check(self, regs, acc, n, spec=None):
        a = self.a
        have = None
        for i, part in enumerate(regs):
            if n:
                a("s_waitcnt vmcnt(%d)" % (n - 1 - i))
            if spec and n == len(regs):
                spec(i)
            pool = ([have] if have is not None else []) + list(part)
            while len(pool) > 1:
                m = min(3, len(pool))
                a(("v_max3_u32 v%d, v%d, v%d, v%d" if m == 3 else "v_max_u32 v%d, v%d, v%d") % (acc, *pool[:m]))
                pool = [acc] + pool[m:]
            have = pool[0]
            if i == len(regs) - 1:
                a("v_cmp_lt_u32 vcc, s%d, v%d" % (scmp, have))
            if spec and n != len(regs):
                spec(i)

    def check_or_poll(self, loads, regs, acc, name, wait, pre=(), work=()):
        a = self.a
        tk = a.mark()
        a("s_branch L_%s_c" % name, "L_%s_r:" % name, *pre)
        a(*loads)
        a(*self.spin_count())
        a("s_waitcnt vmcnt(0)", "L_%s_c:" % name)
        a.uncounted(tk)
        a.wait_vm(wait)
        self.check(regs, acc, 0)
        a(*work)
        a("s_cbranch_vccnz L_%s_r" % name)

    def mfma(self, d, A, B, c):
        self.a("v_mfma_f32_16x16x32_bf16 %s, %s, %s, %s" % (q(d), A, B, q(d) if c else "0"))

    def smf(self, d, A, B, ix=None):
        self.a("v_smfmac_f32_16x16x64_bf16 %s, %s, %s, v%d" % (q(d), A, B, ix or vIX))

    def mk_ix(self, v):
        self.a("v_and_b32 v%d, 1, v0" % v, "v_mul_u32_u24 v%d, 0xaaaa, v%d" % (v, v), "v_add_u32 v%d, 0x4444, v%d" % (v, v))

    def dpp(self, op, d, s0, s1, ctl, rm="0xf"):
        self.a("%s_dpp v%d, v%d, v%d %s row_mask:%s bank_mask:0xf" % (op, d, s0, s1, ctl, rm))

    def pack_pairs(self, d, v):
        self.a("v_mov_b32_dpp v%d, v%d quad_perm:[1,1,3,3] row_mask:0xf bank_mask:0xf" % (d, v),
               "v_cvt_pk_bf16_f32 v%d, v%d, v%d" % (d, v, d))

    def tile_issue(self, T, between=None):
        a = self.a
        if T:
            a("s_add_u32 s%d, s%d, 0x20000" % (srot, srot), "s_and_b32 s%d, s%d, 0x1e0000" % (srot, srot))
        a("s_or_b32 s%d, s%d, s%d" % (stmp, srot, su), "s_add_u32 m0, s%d, %d" % (sring, (T % 6) * 4096))
        if T >= 6:
            a("s_waitcnt lgkmcnt(%d)" % (0 if between or (T == 6 and self.tlb) else 1))
        for jj in range(4):
            self.throttle(T, 4 * T + jj >= 128 - self.burst)
            va = vKS + jj if T < 16 else 5 + (jj & 1)
            a("buffer_load_dwordx4 v%d, %s, s%d offen offset:%d nt lds" % (va, srd(sK if T < 16 else sV), stmp, jj * 1024))
            self.ltok.append(a.mark())
            self.tok[T] = a.mark()
            if between:
                between(jj)
        if 16 <= T < 31:
            a("v_xor_b32 v5, 64, v5", "v_xor_b32 v6, 64, v6")

    def throttle(self, T, burst):
        a = self.a
        if self.tk and T > self.tk[0] + 3 and not burst:
            lv = self.lv[T % len(self.lv)]
            L = a.lab("th")
            for m in (2, 1, 0):
                if m == 2 or lv[m] != lv[m + 1]:
                    if m < 2:
                        a("s_cmp_gt_u32 s%d, %d" % (smode, m), "s_cbranch_scc1 " + L)
                    a.wait_vm(self.ltok[-lv[m]])
            a(L + ":")
            return
        d = self.d0.get(T, self.depth)
        if T > 1 and not burst and d < len(self.ltok):
            a.wait_vm(self.ltok[-d])

    def vreg(self, p, i):
        return 128 + 64 * (p >> 1) + 8 * i + 4 * (p & 1) if p < 4 else (96 if p == 4 else vS) + 4 * i

    def v_reads(self, p, dst=None):
        slot = (16 + 2 * p) % 6
        for i in range(8):
            for h in range(2):
                d = dst(i, h) if dst else q(self.vreg(p, i) + 2 * h, 2)
                self.a("ds_read_b64_tr_b16 %s, v%d offset:%d ; mem=v" % (d, vAI + i if i else vTRV, slot * 4096 + h * 512))

    def tile_consume(self, T):
        a = self.a
        if T < 16:
            a.wait_vm(self.tok[T])
            for st in range(4):
                a("ds_read_b128 %s, v%d offset:%d" % (q(16 * T + 4 * st, 4, "a"), vKR + st, (T % 6) * 4096))
        elif T & 1:
            a.wait_vm(self.tok[T])
            self.v_reads((T - 16) >> 1)

    def mk_ai(self):
        for i in range(1, 8):
            self.a("v_xor_b32 v%d, %d, v%d" % (vAI + i, i << 5, vTRV))
        self.mk_ix(vIX)

    def weight_load(self, kind, k, T, va=52):
        a = self.a
        t = va + 1
        pitch = {"q": 8192, "g": 3584, "d": 1024, "o": 1024}[kind]
        if k == 0:
            if kind == "o":
                self.lin(va, t, (5, 1, 14), (3, 2, 10), (0, 3, 4))
                self.mk_srd(sT, 12, "0x400000")
                self.sexpr(sWo, 0, (sg, 512 * 1024), (sb, 128 * 1024), (sw, 4096), (ss, 128))
                self.sexpr(sWl, L_WO, (sw, 4096))
            else:
                a("v_lshrrev_b32 v%d, 3, v0" % va, "v_mul_u32_u24 v%d, %d, v%d" % (va, pitch, va), "v_and_b32 v%d, 7, v0" % t,
                  "v_lshl_add_u32 v%d, v%d, 4, v%d" % (va, t, va))
            a("v_and_b32 v%d, 32, v0" % t, "v_xor_b32 v%d, v%d, v%d" % (va, va, t), "v_xor_b32 v%d, 64, v%d" % (t, va))
            if kind == "q":
                self.mk_srd(sT, 10, "0x400000")
                self.sexpr(sWo, 0, (sb, 128 * pitch), (sw, 32 * pitch), (sg, 1024), (ss, 128))
                self.sexpr(sWl, L_WQ, (sw, 4096))
            if kind in "gd":
                a("s_lshr_b32 s100, s%d, 1" % sg, "s_mul_i32 s100, s100, 7", "s_and_b32 s%d, s%d, 1" % (stmp, sg),
                  "s_lshl_b32 s%d, s%d, 2" % (stmp, stmp), "s_add_u32 s100, s100, s%d" % stmp)
            if kind == "g":
                a("s_and_b32 s%d, s%d, 3" % (stmp, ss), "s_add_u32 s100, s100, s%d" % stmp)
                self.sexpr(sWo, 0, (sb, 128 * pitch), (sw, 32 * pitch), (100, 128))
                self.sexpr(sWl, L_WG, (sw, 4096))
                a("s_bitcmp1_b32 s%d, 0" % sact, "s_cselect_b32 s100, 0x%x, 0" % (512 * pitch))
                self.mk_srd(sT, 16, "s100")
                a("s_cmp_ge_u32 s%d, 4" % ss, "s_cselect_b32 s%d, s18, s16" % sT, "s_cselect_b32 s%d, s19, s17" % (sT + 1))
            if kind == "d":
                a("s_add_u32 s100, s100, s%d" % sb)
                self.sexpr(sWo2, 0, (100, 64 * pitch), (sw, 16 * pitch), (ss, 128))
                self.sexpr(sWl2, L_WD, (sw, 2048))
                a("s_bitcmp1_b32 s%d, 1" % sact, "s_cselect_b32 s100, 0x%x, 0" % (1792 * pitch))
                self.mk_srd(sXI, 20, "s100")
            if T is None:
                return
        self.weight_issue(kind, k, T, va)

    def weight_issue(self, kind, k, T, va):
        a = self.a
        pitch = {"q": 8192, "g": 3584, "d": 1024, "o": 1024}[kind]
        so, sl, rs = (sWo2, sWl2, sXI) if kind == "d" else (sWo, sWl, sT)
        a("s_add_u32 s%d, s%d, 0x%x" % (stmp, so, (32 if kind == "o" else 8) * pitch * k), "s_add_u32 m0, s%d, 0x%x" % (sl, 1024 * k))
        if T < 31:
            self.throttle(T, False)
        a("buffer_load_dwordx4 v%d, %s, s%d offen nt lds" % (va + (k & 1), srd(rs), stmp))
        self.ltok.append(a.mark())
        self.wtok[kind] = a.mark()

    def lines(self, fn, *args):
        keep, self.a = self.a, Asm()
        fn(*args)
        out, self.a = [i.text for i in self.a.l], keep
        return out

    def sched(self, lines, pre=()):
        out, t = schedule(lines, pre)
        self.a(*out)
        return t

    def s_zero(self):
        for r in range(vS, vS + 32, 2):
            self.a("v_mov_b64 %s, 0" % q(r, 2))

    def qk(self):
        a = self.a
        for k, p in enumerate(ORDER):
            d = vS + 4 * k
            for sg_ in range(2):
                for hf in range(2):
                    self.smf(d, q(vQ + 8 * sg_ + 4 * hf), q(16 * (2 * p + sg_) + 8 * hf, 8, "a"))
            a("v_add_f32 v%d, v%d, v%d" % (d, d, d + 1), "v_add_f32 v%d, v%d, v%d" % (d + 1, d + 2, d + 3))
            a("v_max3_f32 v7, v7, v%d, v%d" % (d, d + 1) if k else "v_max_f32 v7, v%d, v%d" % (d, d + 1))

    def ml_off(self, v, t):
        self.a("v_mov_b32 v%d, v%d" % (v, vA16), "v_and_b32 v%d, 15, v0" % t)
        self.oob_unless(v, t, "v_cmp_eq_u32 vcc, 0, v%d" % t)

    def softmax(self, vw, voff):
        a = self.a
        for k in (1, 2, 4, 8):
            self.dpp("v_max_f32", 7, 7, 7, "row_ror:%d" % k)
        a("v_mul_f32 v20, s%d, v7" % sSC, "s_mov_b32 s100, %s" % ONES)
        for k in range(8):
            r = q(vS + 4 * k, 2)
            a("v_pk_fma_f32 %s, %s, s[%d:%d], v[20:21] op_sel_hi:[1,0,0] neg_lo:[0,0,1] neg_hi:[0,0,1]" % (r, r, sSC, sSC + 1))
        for k in range(8):
            r = vS + 4 * k
            a("v_exp_f32 v%d, v%d" % (r, r), "v_exp_f32 v%d, v%d" % (r + 1, r + 1), "v_cvt_pk_bf16_f32 v%d, v%d, v%d" % (r + 2, r, r + 1))
            if k & 1:
                a("ds_write2st64_b32 v%d, v%d, v%d offset0:%d offset1:%d ; mem=p%d" % (vw, r - 2, r + 2, k - 1, k, k - 1))
        for k in range(8):
            a("v_dot2_f32_bf16 v21, v%d, s100, %s" % (vS + 4 * k + 2, "v21" if k else "0"))
        for k in (1, 2, 4, 8):
            self.dpp("v_add_f32", 21, 21, 21, "row_ror:%d" % k)
        self.st_intra("buffer_store_dwordx2", "v[20:21]", voff, sMLst, both=True)

    def ml_finish(self, r):
        a = self.a
        a("v_sub_f32 v%d, v%d, v20" % (r, r), "v_sub_f32 v%d, v%d, v20" % (r + 2, r + 2),
          "v_exp_f32 v%d, v%d" % (r, r), "v_exp_f32 v%d, v%d" % (r + 2, r + 2),
          "v_mul_f32 v7, v%d, v%d" % (r, r + 1), "v_fmac_f32 v7, v%d, v%d" % (r + 2, r + 3))
        for k in (1, 2, 4, 8):
            self.dpp("v_add_f32", 7, 7, 7, "row_ror:%d" % k)
        a("v_rcp_f32 v7, v7")

    def lds_or_zero(self, v, t, mask, val=0):
        self.a("v_and_b32 v%d, %d, v0" % (t, mask), "v_cmp_eq_u32 vcc, %d, v%d" % (val, t), "v_mov_b32 v%d, 0x%x" % (t, L_OOB),
               "v_cndmask_b32 v%d, v%d, v%d, vcc" % (v, t, v))

    def p_read(self, k, va, buf):
        self.a("ds_read_b128 %s, v%d offset:%d ; mem=p%d" % (q(vQ + 4 * buf), va, k * 256, k & ~1))

    def pv_dense(self, p, buf, lgkm=None):
        for i in range(8):
            if lgkm is not None:
                self.a("s_waitcnt lgkmcnt(%d)" % lgkm(i))
            self.mfma(vO + 4 * i, q(vQ + 4 * buf), q(self.vreg(p, i)), p > 0)

    def o_addr(self):
        self.sexpr(4, L_SCR, (sw, 512))
        self.a("v_and_b32 v22, 48, v0", "v_mul_u32_u24 v22, 112, v22", "v_add3_u32 v22, v22, v%d, s4" % vA16)

    def o_write(self, t0, t1, sparse):
        a = self.a
        for h, t in enumerate((t0, t1)):
            for i in range(4):
                o = vO + 16 * h + 4 * i
                a("v_add_f32 v%d, v%d, v%d" % (t + i, o, o + 1) if sparse else "v_mul_f32 v%d, v7, v%d" % (t + i, o))
            if sparse:
                for i in (0, 2):
                    a("v_pk_mul_f32 %s, %s, v[6:7] op_sel:[0,1] op_sel_hi:[1,1]" % (q(t + i, 2), q(t + i, 2)))
            a("ds_write_b128 v22, %s offset:%d" % (q(t), 256 * h))

    def w_tiles(self, kinds, va, t):
        a = self.a
        last = None
        for kind, dst in kinds:
            qs = 11 if kind == "d" else 12
            if qs != last:
                self.lin(va, t, (4, 1, 5), (3, 1, 6))
                a("s_lshl_b32 s100, s%d, 5" % sw, "v_xor_b32 v%d, s100, v%d" % (va, va), "v_add_u32 v%d, 0x%x, v%d" % (va, L_WQ, va))
                for sh, bits, sc in ((5, 1, qs), (3, 1, 10), (4, 1, 9), (2, 1, 7), (0, 2, 3)):
                    a("v_bfe_u32 v%d, v0, %d, %d" % (t, sh, bits), "v_lshl_add_u32 v%d, v%d, %d, v%d" % (va, t, sc, va))
                last = qs
            base = {"q": L_WQ, "g": L_WG, "d": L_WD}[kind] - L_WQ
            for kb in range(2 if kind == "d" else 4):
                for h in range(2):
                    a("ds_read_b64_tr_b16 %s, v%d offset:%d" % (q(dst + 4 * kb + 2 * h, 2), va,
                                                                  base + (kb & 1) * (2 << qs) + (kb >> 1) * 2048 + h * 256))

    def gemv_zero(self, d):
        self.a("v_mov_b64 %s, 0" % q(d, 2), "v_mov_b64 %s, 0" % q(d + 6, 2))

    def gemv4(self, x, W, d, ix):
        for k in range(2):
            self.smf(d + 4 * k, q(x), q(W + 8 * k, 8), ix)

    def gemv4_fin(self, out, d):
        self.a("v_add_f32 v%d, v%d, v%d" % (d, d, d + 1), "v_add_f32 v%d, v%d, v%d" % (d + 6, d + 6, d + 7),
               "v_add_f32 v%d, v%d, v%d" % (d, d, d + 6))
        self.pack_pairs(out, d)

    def colsum_pub(self, W, ones, d, va, t, off, *terms):
        a = self.a
        for r in range(4):
            a("v_mov_b32 v%d, %s" % (ones + r, ONES))
        self.lin(va, t, (0, 1, 10), (1, 3, 4))
        self.oob_unless(va, t, "v_cmp_gt_u32 vcc, 16, v0")
        self.sexpr(100, off, (sCS, 1), (sb, 4), (sw, 128), *terms)
        a("s_waitcnt lgkmcnt(0)")
        for kb in range(4):
            self.mfma(d, q(ones), q(W + 4 * kb), kb > 0)
        self.st_intra("buffer_store_dword", "v%d" % d, va, 100)

    def colsum_ld(self, r, off, sel):
        self.sexpr(100, off, (sCS, 1), (sel, 2048))
        self.a(self.ld(r, vA16, 100, 0), self.ld(r + 4, vA16, 100, 1024))

    def colsum_fin(self, r, c):
        for k in range(2):
            b = r + 4 * k
            self.a("v_add_f32 v%d, v%d, v%d" % (b, b, b + 1), "v_add_f32 v%d, v%d, v%d" % (b + 2, b + 2, b + 3),
                   "v_add_f32 v%d, v%d, v%d" % (b, b, b + 2), "v_mul_f32 v%d, %s, v%d" % (c + k, f32(-1.0 / 512), b))

    def stats(self, x, t, att):
        a = self.a
        s1, s2 = t, t + 1
        a("s_mov_b32 s100, %s" % ONES)
        for k in range(4):
            a("v_dot2_f32_bf16 v%d, v%d, s100, %s" % (s1, x + k, "v%d" % s1 if k else "0"),
              "v_dot2_f32_bf16 v%d, v%d, v%d, %s" % (s2, x + k, x + k, "v%d" % s2 if k else "0"))
        a("v_permlane32_swap_b32 v%d, v%d" % (s1, s2), "v_add_f32 v%d, v%d, v%d" % (s1, s1, s2))
        self.stats_fin(s1, t, att)

    def slice_sums(self, t, voff, soff):
        a = self.a
        a("v_mul_f32 v%d, v%d, v%d" % (t + 1, vRES, vRES))
        self.dpp("v_add_f32", t, vRES, vRES, "row_ror:8")
        self.dpp("v_add_f32", t + 1, t + 1, t + 1, "row_ror:8")
        a("v_cndmask_b32 v%d, v%d, v%d, s[%d:%d]" % (t, t, t + 1, sM1, sM1 + 1))
        for ctl in ("quad_perm:[1,0,3,2]", "quad_perm:[2,3,0,1]", "row_half_mirror"):
            self.dpp("v_add_f32", t, t, t, ctl)

    def st_off(self, v, t):
        self.lin(v, t, (5, 1, 8), (4, 1, 9), (3, 1, 7))
        self.a("v_and_b32 v%d, 7, v0" % t, "v_add_u32 v%d, s%d, v%d" % (t, sw, t))
        self.oob_unless(v, t, "v_cmp_eq_u32 vcc, 0, v%d" % t)

    def stats_fin(self, x, t, att):
        a = self.a
        s1, s2 = t, t + 1
        for k in (1, 2, 4, 8):
            self.dpp("v_add_f32", s1, x if k == 1 else s1, x if k == 1 else s1, "row_ror:%d" % k)
        self.dpp("v_add_f32", s1, s1, s1, "row_bcast:15", "0xa")
        a("v_readlane_b32 s%d, v%d, 31" % (sS1, s1), "v_mul_f32 v%d, %s, v%d" % (s1, f32(1.0 / 512), s1),
          "v_mov_b32 v%d, s%d" % (s2, sS1), "v_mul_f32 v%d, %s, v%d" % (s2, f32(1.0 / 512), s2),
          "v_fma_f32 v%d, -v%d, v%d, v%d" % (s1, s2, s2, s1), "v_max_f32 v%d, 0, v%d" % (s1, s1),
          "v_add_f32 v%d, %s, v%d" % (s1, f32(1e-5), s1))
        if att:
            a("v_rsq_f32 v%d, v%d" % (s1, s1), "v_mul_f32 v%d, %s, v%d" % (s1, f32(SCALE), s1))
        else:
            a("v_rcp_f32 v%d, v%d" % (s1, s1), "s_nop 0")
        a("v_readlane_b32 s%d, v%d, 63" % (sSC, s1))

    def sum4_init(self, acc, c):
        self.a("v_mul_f32 v%d, s%d, v%d" % (acc, sS1, c), "v_mul_f32 v%d, s%d, v%d" % (acc + 1, sS1, c + 1))

    def sum4(self, x, acc, init):
        for k in range(4):
            c = acc if k else init
            self.a("v_dot2_f32_bf16 v%d, v%d, s%d, v%d" % (acc, x + k, sLO, c),
                   "v_dot2_f32_bf16 v%d, v%d, s%d, v%d" % (acc + 1, x + k, sHI, c + 1))

    def q_addrs(self, vw, vr, t):
        a = self.a
        self.lin(vw, t, (3, 3, 5), (0, 1, 4), (1, 2, 2))
        self.sexpr(100, L_Q, (sw, QSTR))
        a("v_add_u32 v%d, s100, v%d" % (vw, vw))
        self.lin(vr, t, (4, 2, 5), (0, 1, 4))
        a("v_bfe_u32 v%d, v0, 2, 2" % t, "v_mul_u32_u24 v%d, %d, v%d" % (t, QSTR, t), "v_add_u32 v%d, v%d, v%d" % (vr, vr, t),
          "v_add_u32 v%d, 0x%x, v%d" % (vr, L_Q, vr), "v_mov_b32 v%d, v%d" % (vr + 1, vr))
        self.lds_or_zero(vr, t, 2, 0)
        self.lds_or_zero(vr + 1, t, 2, 2)

    def q_assemble(self, acc, vw, vr, fill=()):
        a = self.a
        a("v_cvt_pk_bf16_f32 v%d, v%d, v%d" % (acc, acc, acc + 1), "ds_write_b32 v%d, v%d" % (vw, acc), *fill)
        a("s_waitcnt lgkmcnt(0)", "s_barrier")
        rd = ["ds_read_b128 %s, v%d offset:%d" % (q(vQ + 4 * st), vr + (st >> 1), (st & 1) * 128) for st in range(4)]
        a(*rd)
        return rd

    def late_loads(self, name):
        self.layer1(name)
        for k in range(2):
            self.weight_issue("d", k, 32, 62)
        self.touch(59)
        self.a(name + ":")

    def next_region(self):
        for r in (sWS, sWF, sWL):
            self.a("s_add_u32 s%d, s%d, 0x%x" % (r, r, LS), "s_addc_u32 s%d, s%d, 0" % (r + 1, r + 1))
        self.a("s_sub_u32 s%d, s%d, 0x%x" % (sCS, sCS, LS))

    def leader_fill(self):
        a = self.a
        a("v_mov_b32 v8, -1", "v_mov_b32 v9, -1", "v_mov_b32 v10, -1", "v_mov_b32 v11, -1", "v_lshlrev_b32 v12, 2, v0",
          "s_or_b32 s%d, s%d, s%d" % (slead, sj, sw), "s_cmp_eq_u32 s%d, 0" % slead, "s_cbranch_scc0 L_nolead0")
        tk = a.mark()
        a("s_lshl_b32 s100, s%d, 17" % sg, "buffer_store_dword v8, v12, %s, s100 offen sc1" % srd(sWS), "L_nolead0:")
        a.uncounted(tk)
        self.tok_lead = tk

    def leader_flag(self, word, name, tok=None, val="1", v=54):
        a = self.a
        a("s_cmp_eq_u32 s%d, 0" % slead, "s_cbranch_scc0 " + name)
        if tok is not None:
            a.wait_vm(tok)
        tk = a.mark()
        a("v_mov_b32 v%d, %s" % (v + 1, val), "v_lshlrev_b32 v%d, 8, v0" % v, "s_lshl_b32 s100, s%d, 2" % sg,
          "buffer_store_dword v%d, v%d, %s, s100 offen offset:%d sc1" % (v + 1, v, srd(sDBG), word), name + ":")
        a.uncounted(tk)

    def flag_load(self, v, word, own):
        a = self.a
        if own:
            a("s_lshl_b32 s100, s%d, 2" % sg, "v_mov_b32 v%d, s100" % v)
        else:
            a("v_and_b32 v%d, 7, v0" % v, "v_lshlrev_b32 v%d, 2, v%d" % (v, v))
        return a("buffer_load_dword v%d, v%d, %s, 0 offen offset:%d sc1" % (v, v, srd(sDBG), word))

    def flag_check(self, v, word, own, tok, name):
        a = self.a
        a.wait_vm(tok)
        tk = a.mark()
        a("s_branch %s_c" % name, name + "_s:", "s_sleep 8")
        self.flag_load(v, word, own)
        a("s_add_u32 s%d, s%d, 1" % (sspin, sspin), "s_cmp_lt_u32 s%d, 0x%x" % (sspin, SPIN_LIMIT), "s_waitcnt vmcnt(0)",
          "s_cbranch_scc0 %s_d" % name, name + "_c:", "v_cmp_eq_u32 vcc, 0, v%d" % v, "s_cbranch_vccnz %s_s" % name, name + "_d:")
        a.uncounted(tk)

    def fill_intra(self, v, t, d, start, per_wave):
        a = self.a
        self.sexpr(100, start, (sg, 1 << 17), (sj, 4 * per_wave), (sw, per_wave))
        a("v_mov_b32 v%d, v%d" % (v, vA16))
        self.oob_unless(v, t, "v_cmp_gt_u32 vcc, %d, v0" % (per_wave // 16))
        self.st_intra("buffer_store_dwordx4", q(d), v, 100)

    def sentinels(self, d):
        for r in range(4):
            self.a("v_mov_b32 v%d, -1" % (d + r))

    def prologue(self):
        a = self.a
        if self.stamps:
            a("%s s[92:93]" % ("s_memtime" if self.cyc else "s_memrealtime"))
        a('; ---- entry: everything up to the first K tile fits the 256 bytes that are fetched before the wave starts')
        a("s_load_dwordx16 s[4:19], s[0:1], 0", "s_load_dwordx8 s[20:27], s[0:1], 64",
          "v_lshrrev_b32 v1, 6, v0", "s_cmpk_ge_u32 s2, 256", "v_readfirstlane_b32 s%d, v1" % sw, "s_cbranch_scc1 L_end")
        a("v_and_b32 v0, 63, v0", "s_and_b32 s%d, s2, 7" % sg, "s_lshr_b32 s%d, s2, 3" % sj, "s_lshr_b32 s%d, s2, 6" % sb,
          "s_and_b32 s%d, s%d, 7" % (ss, sj), "s_lshl2_add_u32 s%d, s%d, s%d" % (su, ss, sw),
          "s_lshl3_add_u32 s100, s%d, s%d" % (sb, sg), "s_lshl_b32 s100, s100, 21", "s_mul_i32 s%d, s%d, %d" % (sring, sw, RING))
        a("s_lshl_b32 s%d, s%d, 12" % (su, su), "s_lshl2_add_u32 s%d, s%d, s%d" % (srot, sb, sg),
          "s_and_b32 s%d, s%d, 15" % (srot, srot), "s_lshl_b32 s%d, s%d, 17" % (srot, srot))
        a("v_lshrrev_b32 v5, 4, v0", "v_and_b32 v6, 15, v0", "v_xor_b32 v7, v5, v6", "v_lshlrev_b32 v7, 4, v7",
          "v_lshl_add_u32 v%d, v5, 8, v7" % vKS)
        a("v_xor_b32 v%d, 64, v%d" % (vKS + 1, vKS), "v_xor_b32 v%d, 128, v%d" % (vKS + 2, vKS), "v_xor_b32 v%d, 64, v%d" % (vKS + 3, vKS + 2),
          "s_lshl_b32 s98, s2, 10", "s_bitset1_b32 s98, 22", "v_mov_b32 v9, s98", "v_xor_b32 v10, 0x2000, v9",
          "s_lshl_b32 s%d, 1, 21" % (sK + 2), "s_mov_b32 s%d, 0x20000" % (sK + 3))
        self.tok, self.ltok, self.wtok = {}, [], {}
        first = self.lines(self.tile_issue, 0)
        self.tok, self.ltok = {}, []
        a(*first[:2])
        a("s_waitcnt lgkmcnt(0)", "global_load_dword v95, v9, s[26:27] sc1")
        tok_cal = a.mark()
        a("global_load_dword v95, v10, s[26:27] offset:128 sc1", "s_add_u32 s%d, s6, s100" % sK, "s_addc_u32 s%d, s7, 0" % (sK + 1))
        for x in first[2:]:
            self.ltok.append(a(x))
        self.tok[0] = a.mark()
        a("s_cmp_eq_u32 s%d, 0" % sw, "s_cbranch_scc0 L_novote")
        a.wait_vm(tok_cal)
        a("L_novote:", "s_add_u32 s%d, s8, s100" % sV, "s_addc_u32 s%d, s9, 0" % (sV + 1), "s_mov_b32 s%d, s%d" % (sV + 2, sK + 2),
          "s_getreg_b32 s99, hwreg(HW_REG_IB_STS, 0, 4)", "L_entered:")
        a('; ---- K / V stream: tile T = 16 rows, LDS-DMA into a 6-slot ring per wave, a bounded number of loads in flight')
        self.tile_issue(1)
        a("s_mov_b32 s%d, 0x20000" % (sV + 3))
        a("v_lshl_add_u32 v%d, v6, 8, v7" % vKR, "v_add_u32 v%d, s%d, v%d" % (vKR, sring, vKR))
        for st in range(1, 4):
            a("v_xor_b32 v%d, %d, v%d" % (vKR + st, st << 6, vKR))
        a("v_lshlrev_b32 v%d, 4, v0" % vA16)
        self.mk_srd(sDBG, 24, "256")
        self.mk_srd(sWS, 26, "0x%x" % WS_SIZE)
        self.mk_srd(sOUT, 22, "4096")
        a("s_add_u32 s%d, s26, 0x%x" % (sXW, OFF_XW), "s_addc_u32 s%d, s27, 0" % (sXW + 1),
          "s_mov_b32 s%d, 0x%x" % (sXW + 2, OFF_TK + len(self.tk) * 4096), "s_mov_b32 s%d, 0x20000" % (sXW + 3))
        if self.stamps:
            a("v_mov_b32 v4, 0", "v_writelane_b32 v4, s92, 0")
            self.nst = 1
            self.stamp_names.append("entry")
        self.stamp("start")
        a("s_cmp_gt_u32 s99, 4", "s_cselect_b32 s%d, 16, 0" % svote)
        self.setup_b()
        self.setup_c()

    def setup_a(self):
        a = self.a
        self.mk_srd(sXI, 4, "4096")
        self.lin(6, 7, (4, 2, 6), (2, 2, 10), (0, 2, 4))
        self.lin(5, 7, (5, 1, 10), (4, 1, 11), (0, 4, 1))
        a("s_lshl_b32 s100, s%d, 8" % sb, "s_lshl_b32 s101, s%d, 10" % sb, "s_lshl_b32 s%d, s%d, 5" % (stmp, sj),
          "buffer_load_dwordx4 %s, v6, %s, s100 offen" % (q(vX), srd(sXI)),
          "buffer_load_dwordx4 %s, v%d, %s, s101 offen" % (q(vX + 4), vA16, srd(sXI)),
          "buffer_load_ushort v%d, v5, %s, s%d offen" % (vRES, srd(sXI), stmp))

    def early_fill(self):
        a = self.a
        self.sexpr(100, 0, (sj, 32768), (sg, 2048), (sw, 512))
        if not self.tk:
            a("v_mov_b32 v12, v%d" % vA16)
            self.oob_unless(12, 13, "v_cmp_gt_u32 vcc, 32, v0")
            a("buffer_store_dwordx4 v[8:11], v12, %s, s100 offen sc1" % srd(sXW))
            return
        a("v_add_u32 v12, s100, v%d" % vA16)
        self.sexpr(100, OFF_TK - 512, (2, 128))
        a("v_add_u32 v13, s100, v%d" % vA16, "v_cmp_gt_u32 vcc, 32, v0", "v_cndmask_b32 v12, v13, v12, vcc",
          "s_cmp_eq_u32 s%d, 3" % sw, "s_cselect_b32 s100, 40, 32")
        self.oob_unless(12, 13, "v_cmp_gt_u32 vcc, s100, v0")
        a("buffer_store_dwordx4 v[8:11], v12, %s, 0 offen sc1" % srd(sXW),
          "v_mov_b32 v98, 0x%x" % (L_SCR + 512 * self.tkw), "v_mov_b32 v99, %d" % self.th[0], "ds_write_b32 v98, v99", "v_lshlrev_b32 v101, 24, v0")
        self.sexpr(91, 0, (sj, 1), (sg, 3))
        a("s_and_b32 s91, s91, %d" % (256 // self.tkn - 1), "s_lshl_b32 s91, s91, 7", "s_add_u32 s91, s91, 0x%x" % OFF_TK)

    def setup_b(self):
        a = self.a
        self.mk_srd(sWF, sWS, "0")
        self.mk_srd(sWL, sWS, "0x%x" % WS_SIZE)
        G = (sg, 1 << 17)
        self.sexpr(sCS, 2 * LS, G)
        a("s_lshr_b32 s%d, s%d, 1" % (stmp, ss), "s_and_b32 s100, s%d, 1" % ss)
        self.sexpr(sEst, OFF_E, G, (stmp, 1024), (100, 128), (sw, 32), (sb, 256))
        self.sexpr(sEld, OFF_E, G, (sb, 4096), (sw, 1024))
        self.sexpr(sMLld, OFF_ML, G, (sb, 1024))
        a("s_lshr_b32 s%d, s%d, 9" % (sMLst, su), "s_add_u32 s%d, s%d, s%d" % (sMLst, sMLst, sMLld),
          "s_mov_b32 s%d, 0" % slayer, "s_mov_b32 s%d, 0" % sspin, "s_mov_b32 s%d, -2" % scmp,
          "s_mov_b32 s%d, 0x3f80" % sLO, "s_mov_b32 s%d, 0x3f800000" % sHI,
          "s_and_b32 s100, s%d, 3" % ss, "s_cmp_eq_u32 s100, 3", "s_cselect_b32 s%d, 0, 1" % sact,
          "s_cmp_eq_u32 s%d, 3" % sb, "s_cselect_b32 s100, 0, 2", "s_or_b32 s%d, s%d, s100" % (sact, sact),
          "s_bitcmp1_b32 s%d, 0" % sg, "s_cselect_b32 s%d, s%d, 3" % (sact, sact))

    def setup_c(self):
        a = self.a
        G = (sg, 1 << 17)
        a("s_lshr_b32 s%d, s%d, 2" % (stmp, ss), "s_and_b32 s100, s%d, 3" % ss)
        self.sexpr(sAst, OFF_A, G, (sw, 8192), (stmp, 4096), (sb, 1024), (100, 256))
        self.sexpr(sCst, OFF_C, G, (100, 4096), (stmp, 128), (sw, 32), (sb, 256))
        self.sexpr(sAld, OFF_A, G, (sb, 8192), (sw, 2048))
        self.sexpr(sCld, OFF_C, G, (sb, 4096), (sw, 1024))
        self.sexpr(sBst, 0, (su, 8), (sg, 512), (sb, 128))
        self.sexpr(sBld, 0, (sj, 32768))
        a("s_lshr_b32 s%d, s%d, 1" % (stmp, sj), "s_and_b32 s100, s%d, 1" % sj)
        self.sexpr(sXst, OFF_XB, G, (stmp, 256), (100, 32))
        self.sexpr(sXld, OFF_XB, G, (sb, 1024))
        self.sexpr(sRow, OFF_ST, G)
        a("s_mov_b32 s%d, 0xff00ff00" % sM1, "s_mov_b32 s%d, 0xff00ff00" % (sM1 + 1))
        self.lin(vTRV, 7, (2, 1, 12), (4, 2, 10), (3, 1, 8), (4, 1, 7), (2, 1, 6), (3, 1, 5), (0, 2, 3))
        a("v_add_u32 v%d, s%d, v%d" % (vTRV, sring, vTRV))

    def part_off(self, v, t, bs, cmp="0"):
        self.lin(v, t, (4, 2, bs), (0, 4, 1))
        self.even_only(v, t, cmp)

    def group_flag(self, k, val):
        a = self.a
        a("v_mov_b32 v14, %s" % val, "v_add_u32 v15, s%d, v0" % sw, "v_lshlrev_b32 v15, 24, v15")
        self.sexpr(100, 128 * k, (sg, 1 << 17), (sj, 4))
        self.st_intra("buffer_store_dword", "v14", 15, 100)

    def stream(self):
        a = self.a
        lag = self.lag
        t_dl, t_f1, t_l1, t_c1, t_f2, t_l2, t_c2 = self.sync
        wl = {}
        for kind, ts in (("q", self.tq), ("g", self.tg)):
            for k, T in enumerate(ts):
                wl.setdefault(T, []).append((kind, k))
        tqk = max(t_c2 + 2, 16 + lag)
        assert self.clr1 <= t_dl and self.tq[-1] + 2 <= t_c1 and self.tg[-1] + 2 <= t_f2
        pvat = {}
        for p in range(5):
            pvat.setdefault(max(tqk + 3 + (p >> 1), 17 + 2 * p + lag), []).append(p)
        assert min(self.ipf, self.tml, self.tclr) >= tqk + 3 and max(pvat) < 32
        vF = 94
        G17 = "s_lshl_b32 s101, s%d, 17" % sg
        qk = None
        assert self.tml + 2 <= self.tfin <= self.tp5 and max(pvat) <= self.tp5

        def lds_pv(p):
            a("; PV of a group that stays in LDS")
            self.p_read(ORDER.index(p), 16, p & 1)
            if p == self.ogate[0]:
                a("; Wo follows once most of V has landed")
                for k in range(4):
                    a.wait_vm(self.tok[31] - self.ogate[1 + k])
                    self.weight_issue("o", k, 31, 18)
            a.wait_vm(self.tok[17 + 2 * p])
            self.sched(self.lines(self.v_reads, p) + self.lines(self.pv_dense, p, p & 1)
                       + (self.lines(self.o_write, 8, 16, False) if p == 7 else []))
        for T in range(1, 32):
            if T == 16:
                self.lin(5, 7, (4, 2, 8), (0, 4, 4))
                a("v_and_b32 v7, 16, v0", "v_lshlrev_b32 v7, 1, v7", "v_xor_b32 v5, v5, v7", "v_xor_b32 v6, 128, v5")
                self.mk_ai()
            between = None
            if T in (tqk + 1, tqk + 2):
                def between(jj):
                    a(*qk.pop(0))
            if T > 1:
                a("; tile %d (%s)" % (T, "K" if T < 16 else "V"))
            if T > 1:
                self.tile_issue(T, between)
            if T == 1:
                a("; code into L2; wave 0 of workgroup j = 0 resets the kv head's two flag arrays; x quarter, x row and residual slice")
                self.code_prefetch(93, 98, "L_pc0", "L_pc0")
                self.leader_fill()
                if self.tlb:
                    a("; scalar reads of pages that are first used later: their translations are walked now, off the vector path")
                    a("s_cmp_eq_u32 s%d, %d" % (sw, self.tlbw), "s_cbranch_scc0 L_notlb")
                    self.sexpr(100, 0, (sg, 512 * 1024))
                    a("s_lshl_b32 s101, s%d, 20" % sb)
                    for k, base, off in (("v", sV, "0"), ("q", 10, "s101"), ("o", 12, "s100"), ("g", 16, "0"), ("g", 18, "0"), ("d", 20, "0"),
                                         ("x", sOUT, "0"), ("b", sDBG, "128")):
                        if k in self.tlb:
                            a("s_load_dword s93, s[%d:%d], %s" % (base, base + 1, off))
                    if "w" in self.tlb:
                        a("s_mov_b32 s100, 0x%x" % (2 * LS), "s_load_dword s93, s[%d:%d], s100" % (sWS, sWS + 1),
                          "s_mov_b32 s101, 0x%x" % (OFF_TK + 0x8000), "s_load_dword s93, s[%d:%d], s101" % (sXW, sXW + 1))
                    a("L_notlb:")
            for kind, k in wl.get(T, []):
                self.weight_load(kind, k, T)
            if T == self.tfin - 1:
                self.weight_load("o", 0, None, 18)
            if self.stamps is not True and T > 1:
                self.stamp("T%02d" % T)
            if T == 1:
                self.setup_a()
            if T == self.clr1:
                a('; sentinel fill of the first two cross-die slots and of the arrival counters')
                self.early_fill()
            if T - 3 in self.tk:
                a("; early workgroups keep fewer loads in flight, late ones more, so that all finish the stream together")
                assert T < 25 + lag
                a("ds_read_b32 v100, v98", "s_waitcnt lgkmcnt(0)", "v_readfirstlane_b32 s4, v100",
                  "s_cmp_ge_u32 s4, %d" % self.th[0], "s_cselect_b32 s%d, 1, 0" % smode, "s_cmp_ge_u32 s4, %d" % self.th[1],
                  "s_addc_u32 s%d, s%d, 0" % (smode, smode))
            if lag <= T < 26 + lag:
                self.tile_consume(T - lag)
            if T == 2:
                a('; d_debug[g] = 1: flag arrays are reset')
                self.leader_flag(0, "L_nolead1", self.tok_lead)
            if T == t_dl:
                tok_f = self.flag_load(vF, 0, True)
            if T == t_f1:
                a('; flag 1 = die id + probe vote, set after the fills of all four waves; LayerNorm statistics of x[b]')
                self.flag_check(vF, 0, True, tok_f, "L_f0")
                a("s_barrier", "s_getreg_b32 s%d, hwreg(HW_REG_XCC_ID, 0, 4)" % stmp, "s_or_b32 s%d, s%d, s%d" % (stmp, stmp, svote))
                self.group_flag(0, "s%d" % stmp)
                a("v_lshlrev_b32 v%d, 16, v%d" % (vRES, vRES))
                self.stats(vX + 4, 8, True)
            if T in (t_l1, t_l2):
                fld = self.ld(vF, vF + 1, 101, 0 if T == t_l1 else 128, n=1)
                a("v_and_b32 v%d, 31, v0" % (vF + 1), "v_lshlrev_b32 v%d, 2, v%d" % (vF + 1, vF + 1), G17)
                tok_f = a(fld)
            if T == t_c1:
                a('; all 32 flags: same die -> plain stores through L2, else write-through; q partials and Wq column sums; fill of ML / A')
                self.check_or_poll([fld], [[vF]], 7, "xcc", max(tok_f, self.wtok["q"]), [G17])
                a("s_barrier")
                self.w_tiles([("q", vWQ)], 5, 7)
                a("v_cmp_lt_u32 vcc, 15, v%d" % vF, "v_and_b32 v%d, 15, v%d" % (vF, vF),
                  "s_and_b32 s100, vcc_lo, 0x55555555", "s_and_b32 s101, vcc_lo, 0xaaaaaaaa",
                  "s_bcnt1_i32_b32 s100, s100", "s_bcnt1_i32_b32 s101, s101")
                if self.stamps:
                    a("v_writelane_b32 v4, s100, 28", "v_writelane_b32 v4, s101, 29")
                a("s_getreg_b32 s%d, hwreg(HW_REG_XCC_ID, 0, 4)" % svote, "s_sub_u32 s%d, s100, s101" % stmp, "s_sub_u32 s101, s101, s100",
                  "s_bitcmp1_b32 s%d, 2" % svote, "s_cselect_b32 s101, s101, s%d" % stmp, "s_add_u32 s101, s101, 64")
                self.leader_flag(32, "L_nolead2", val="s101")
                if not self.force_slow:
                    a("v_cmp_ne_u32 vcc, s%d, v%d" % (svote, vF), "s_cmp_eq_u64 vcc, 0",
                      "s_cselect_b32 s%d, 0x%x, 0" % (sWF + 2, WS_SIZE), "s_cselect_b32 s%d, 0, 0x%x" % (sWL + 2, WS_SIZE))
                self.part_off(6, 7, 12)
                a("s_lshr_b32 s%d, s%d, 1" % (stmp, ss), "s_and_b32 s%d, s%d, 1" % (sclr, ss))
                self.colsum_pub(vWQ, 12, 16, 10, 11, OFF_CSQ, (stmp, 2048), (sclr, 512))
                self.mk_ix(8)
                self.gemv_zero(vD)
                self.gemv4(vX, vWQ, vD, 8)
                self.sentinels(20)
                self.gemv4_fin(9, vD)
                self.st_intra("buffer_store_dword", "v9", 6, sEst)
                self.fill_intra(24, 7, 20, LS + OFF_ML, 288)
                tok_q = a.mark()
                self.stamp("arrive")
            if T == t_f2:
                a('; flag 2: q partials and fills are visible; gate / up column sums')
                a.wait_vm(max(tok_q, self.wtok["g"]))
                a("s_barrier")
                self.group_flag(1, "1")
                self.w_tiles([("g", vWQ)], 5, 7)
                a("s_lshr_b32 s%d, s%d, 2" % (stmp, ss), "s_and_b32 s%d, s%d, 3" % (sclr, ss))
                self.colsum_pub(vWQ, 16, 20, 10, 11, OFF_CSG, (sclr, 2048), (stmp, 512))
            if T == t_c2:
                a('; fetch the q partials')
                self.check_or_poll([fld], [[vF]], 7, "q1", tok_f, [G17])
                self.colsum_ld(28, OFF_CSQ, sw)
                tok_q = a("v_lshlrev_b32 v7, 2, v0", *self.ld4(24, 7, sEld))
                self.next_region()
                self.stamp("barrier")
            if T == t_c2 + 1:
                self.s_zero()
                self.q_addrs(40, 42, 7)
            if T == tqk:
                a('; q = sum of partials - mean * column sum; QK^T and softmax run between the next loads')
                a.wait_vm(tok_q)
                self.colsum_fin(28, 36)
                self.sum4_init(38, 36)
                self.sum4(24, 38, 38)
                self.q_assemble(38, 40, 42)
                ls, _ = schedule(self.lines(self.qk))
                qk = [ls[len(ls) * k // 4:len(ls) * (k + 1) // 4] for k in range(4)]
            if T == tqk + 1:
                self.ml_off(22, 23)
                self.sexpr(100, L_WD, (sw, 2048))
                self.lin(16, 23, (2, 2, 6), (4, 2, 4))
                a("v_add_u32 v16, s100, v16", "v_lshl_add_u32 v17, v0, 2, s100")
                self.lds_or_zero(16, 23, 3)
                ls, _ = schedule(self.lines(self.softmax, 17, 22))
                qk = [ls[len(ls) * k // 4:len(ls) * (k + 1) // 4] for k in range(4)]
            if T == tqk + 2:
                self.stamp("softmax1")
            for p in pvat.get(T, ()):
                a('; PV of one 32-key group')
                self.p_read(ORDER.index(p), 16, p & 1)
                a("s_waitcnt lgkmcnt(0)")
                self.pv_dense(p, p & 1)
            for c, tw in enumerate(self.tk):
                if T == tw + 2:
                    a("s_cmp_eq_u32 s%d, %d" % (sw, self.tkw), "s_cbranch_scc0 L_tkb%d" % c)
                    a.wait_vm(tok_tk)
                    a("v_readfirstlane_b32 s4, v99", "s_add_u32 s4, s4, 1", "v_mov_b32 v99, s4", "ds_write_b32 v98, v99", "L_tkb%d:" % c)
                if T == tw:
                    a("; arrival rank among eight workgroups, one per kv head")
                    tok_tk = a.mark()
                    a("s_cmp_eq_u32 s%d, %d" % (sw, self.tkw), "s_cbranch_scc0 L_tka%d" % c, "v_mov_b32 v99, 1",
                      "buffer_atomic_add v99, v101, %s, s91 offen sc0 sc1" % srd(sXW), "s_add_u32 s91, s91, 4096", "L_tka%d:" % c)
                    a.uncounted(tok_tk)
            if T == self.ipf:
                self.code_prefetch(80, 4, "L_pc1", "L_tail")
            if T == self.tml:
                ml1 = [self.ld(64, vA16, sMLld)]
                a(*ml1)
                tok_warm = self.flag_load(70, 32, False)
            if T == self.tclr:
                a('; sentinel fill of the remaining per-head slots')
                self.sentinels(72)
                self.fill_intra(76, 77, 72, OFF_C, 352)
                self.fill_intra(78, 77, 72, LS, 480)
            if T == self.tfin:
                a('; all eight heads have filled their cross-die slots; summed votes pick the near copy')
                self.flag_check(70, 32, False, tok_warm, "L_f1")
                for k in (1, 2, 4):
                    self.dpp("v_add_u32", 70, 70, 70, "row_ror:%d" % k)
                a("v_readfirstlane_b32 s100, v70", "s_cmpk_ge_u32 s100, 512", "s_cselect_b32 s100, 0, 4", "s_xor_b32 s100, s100, s%d" % svote,
                  "s_bitcmp1_b32 s100, 2", "s_cselect_b32 s100, %s" % {1: "0x2000, 0", 2: "0, 0x2000"}[self.near],
                  "s_add_u32 s%d, s%d, s100" % (sBld, sBld), "s_add_u32 s%d, s%d, s100" % (sB2, sBst), "s_xor_b32 s%d, s%d, 0x2000" % (sBst, sB2))
                self.check_or_poll(ml1, [range(64, 68)], 69, "ml1", tok_warm)
                self.ml_finish(64)
                self.o_addr()
                a("s_mov_b32 s%d, 1" % slayer)
                a(*[x for x in self.lines(self.weight_load, "d", 0, None, 62) if x.startswith("s_")])
            if T == self.tp5:
                lds_pv(5)
        self.stamp("issued")
        for p in (5, 6, 7):
            if p > 5 or self.tp5 > 31:
                lds_pv(p)
        self.n_after_o = min(a.mark() - self.wtok["o"], 60)
        self.stamp("pv1")

    def code_prefetch(self, v, sp, here, start):
        a = self.a
        a("s_getpc_b64 s[%d:%d]" % (sp, sp + 1), here + ":")
        if start != here:
            a("s_add_u32 s%d, s%d, %s-%s" % (sp, sp, start, here), "s_addc_u32 s%d, s%d, 0" % (sp + 1, sp + 1))
        self.sexpr(100, 0, (sj, 512), (sw, 128))
        a("s_min_u32 s100, s100, L_codeend-%s-4" % start, "v_mov_b32 v%d, s100" % v, "global_load_dword v%d, v%d, s[%d:%d]" % (v, v, sp, sp + 1))

    def touch_addr(self, v, t, parts):
        a = self.a
        a("v_mov_b32 v%d, 0x%x" % (v, OOB), "v_lshl_add_u32 v%d, v0, 2, s%d" % (t + 1, sw))
        hi = sum(n for _, n in parts)
        for start, n in reversed(parts):
            self.sexpr(100, start - 128 * (hi - n), (sg, 1 << 17), (sj, 128 * n))
            a("v_lshl_add_u32 v%d, v%d, 7, s100" % (t, t + 1), "v_cmp_gt_u32 vcc, %d, v%d" % (hi, t + 1),
              "v_cndmask_b32 v%d, v%d, v%d, vcc" % (v, v, t))
            hi -= n

    def touch(self, v):
        return self.a("buffer_load_dword v%d, v%d, %s, 0 offen sc1" % (v, v, srd(sWS)))

    def fill_cross(self, d, hop):
        self.sentinels(d)
        self.lin(d + 4, d + 5, (4, 2, 15), (3, 1, 13), (0, 3, 4))
        self.sexpr(100, (hop >> 1) * 0x4000 + (hop & 1) * 0x1000, (ss, 1 << 17), (sg, 512), (sb, 128))
        self.a("buffer_store_dwordx4 %s, v%d, %s, s100 offen sc1" % (q(d), d + 4, srd(sXW)))

    def st_cross(self, v):
        a = self.a
        for so in (sBst, sB2):
            a("buffer_store_dword v%d, v95, %s, s%d offen sc1" % (v, srd(sXW), so))

    def red_loads(self, x, soff):
        return [self.ld(x + 4 * i, vA16, soff, i * 1024, rs=sXW) for i in range(4)]

    def prep_split(self, name, work, loads):
        a = self.a
        n = self.at[name][0]
        while n < len(work) and work[n].startswith(("s_cselect", "s_addc", "s_cbranch")):
            n += 1
        a(*work[:n])
        a("s_cmp_eq_u32 s%d, 0" % sw, "s_cbranch_scc0 L_%s_n" % name)
        self.idle(n - len(work))
        a(*loads)
        a("L_%s_n:" % name, *work[n:])
        self.est += (name, len(work))

    def reduce_x(self, name, x, d, soff):
        a = self.a
        self.poll(self.red_loads(x, soff), [range(x + 4 * i, x + 4 * i + 4) for i in range(4)], 7, name,
                  spec=lambda i: self.mfma(d, q(x + 4 * i), q(vSEL), i > 0), again=self.kx)
        m = "s[%d:%d]" % (sM1, sM1 + 1)
        a("v_cndmask_b32 v%d, v%d, v%d, %s" % (d, d, d + 1, m), "v_cndmask_b32 v%d, v%d, v%d, %s" % (d + 2, d + 2, d + 3, m),
          "v_permlane32_swap_b32 v%d, v%d" % (d, d + 2), "v_add_f32 v%d, v%d, v%d" % (vRES, vRES, d),
          "v_add_f32 v%d, v%d, v%d" % (vRES, vRES, d + 2))
        self.pack_pairs(7, vRES)

    def x_off(self, v, t, bs):
        self.lin(v, t, (5, 1, bs), (4, 1, bs + 1), (0, 4, 1))
        self.even_only(v, t)

    def layer1(self, name):
        self.a("s_cmp_eq_u32 s%d, 1" % slayer, "s_cbranch_scc0 " + name)

    def chain(self):
        a = self.a
        a("L_tail:")
        a('; ---- attention output: sum over the four waves, publish per head')
        self.lin(23, 6, (2, 4, 4), (1, 1, 8), (0, 1, 3))
        self.sexpr(sclr, L_SCR, (sw, 2048))
        a("v_add_u32 v23, s%d, v23" % sclr, "s_waitcnt lgkmcnt(0)", "s_barrier")
        for src in range(4):
            a("ds_read_b64 %s, v23 offset:%d" % (q(8 + 2 * src, 2), src * 512))
        a("v_lshlrev_b32 v17, 2, v0", "s_mov_b32 m0, s%d" % sclr)
        self.lin(56, 16, (2, 2, 9), (4, 2, 7), (2, 2, 5), (0, 2, 3))
        a("s_lshl_b32 s100, s%d, 5" % sw, "v_xor_b32 v56, s100, v56", "v_add_u32 v56, 0x%x, v56" % L_WO)
        a("s_waitcnt lgkmcnt(2)", "v_pk_add_f32 v[8:9], v[8:9], v[10:11]", "s_waitcnt lgkmcnt(0)", "v_pk_add_f32 v[12:13], v[12:13], v[14:15]",
          "v_pk_add_f32 v[8:9], v[8:9], v[12:13]", "v_cvt_pk_bf16_f32 v7, v8, v9")
        self.st_intra("buffer_store_dword", "v7", 17, sAst)
        self.stamp("Apub", True)
        if self.stamps:
            a("s_mov_b32 m0, s%d" % sclr)
        a("v_lshrrev_b32 v5, 4, v0", "v_and_b32 v6, 15, v0", "v_xor_b32 v16, v5, v6", "v_lshlrev_b32 v16, 4, v16",
          "v_lshl_add_u32 v18, v5, 8, v16", "s_and_b32 s100, s%d, 1" % sw, "s_lshl_b32 s100, s100, 7", "v_xor_b32 v18, s100, v18",
          "v_xor_b32 v19, 64, v18")
        lda = ["buffer_load_dwordx4 v%d, %s, s%d offen offset:%d sc1 lds" % (18 + h, srd(sWS), sAld, h * 1024) for h in range(2)]

        def prep_a():
            a = self.a
            a("v_lshl_add_u32 v20, v6, 8, v16", "v_add_u32 v20, 0x%x, v20" % L_SCR)
            for st in range(1, 4):
                a("v_xor_b32 v%d, %d, v20" % (20 + st, st << 6))
            a("v_add_u32 v5, s%d, v%d" % (sclr, vA16), "v_lshlrev_b32 v95, 1, v0")
            self.even_only(95, 6)
            a(*[x for x in self.lines(self.weight_load, "d", 0, None, 62) if x.startswith("v_")])
            self.touch_addr(59, 60, T1)
        n = self.with_loads("pollA", self.lines(prep_a), lda)
        a("s_waitcnt vmcnt(%d)" % (1 + 2 * n + self.n_after_o), "s_barrier")
        for st in range(4):
            for h in range(2):
                a("ds_read_b64_tr_b16 %s, v56 offset:%d" % (q(24 + 4 * st + 2 * h, 2), st * 4096 + h * 2048))
        a("s_branch L_pollA_w", "L_pollA:", *lda)
        a(*self.spin_count())
        a("L_pollA_w:", "s_waitcnt vmcnt(%d)" % (2 * n - 1), "ds_read_b128 v[8:11], v5", "s_waitcnt vmcnt(%d)" % (2 * n - 2),
          "ds_read_b128 v[12:15], v5 offset:1024")
        ck = self.lines(self.check, [range(8, 12), range(12, 16)], 7, 0)
        a("s_waitcnt lgkmcnt(1)", *ck[:2], "s_waitcnt lgkmcnt(0)", *ck[2:])
        a("s_cbranch_vccnz L_pollA")
        if self.stamps is not True:
            self.stamp("pollA", True)
        a("s_barrier")
        ops = [40, 44, 48, 52, 64, 68, 72, 76]
        rd = ["ds_read_b128 %s, v%d offset:%d" % (q(ops[k]), 20 + (k >> 1), (k & 1) * 4096) for k in range(8)]
        m = self.oahead
        a(*rd[:m])
        self.late_loads("L_l1b")
        for k in range(8):
            a("s_waitcnt lgkmcnt(%d)" % (min(8, m + k) - k - 1))
            self.mfma(8, q(ops[k]), q(24 + 4 * (k >> 1)), k > 0)
            if m + k < 8:
                a(rd[m + k])
        a("v_add_f32 v8, v8, v9", "v_add_f32 v10, v10, v11", "v_add_f32 v8, v8, v10")
        self.pack_pairs(7, 8)
        self.st_cross(7)
        self.stamp("Bpub", True)
        self.colsum_ld(80, OFF_CSG, sb)
        self.layer1("L_l1c")
        self.colsum_ld(24, OFF_CSQ, sw)
        a("L_l1c:")
        wt = self.lines(self.w_tiles, [("d", vWD)], 91, 7)

        def prep_b():
            a = self.a
            self.w_tiles([("g", vWG), ("q", vWQ)], 5, 7)
            a("v_and_b32 v5, 1, v0", "v_lshlrev_b32 v5, 4, v5", "v_lshlrev_b32 v5, v5, s%d" % sLO, "v_bfe_u32 v6, v0, 1, 2")
            for r in range(4):
                a("v_cmp_eq_u32 vcc, %d, v6" % r, "v_cndmask_b32 v%d, 0, v5, vcc" % (vSEL + r))
            self.x_off(94, 7, 6)
            self.st_off(93, 7)
            a("s_bitcmp1_b32 s%d, 0" % sact, "s_cselect_b32 s%d, 0, -1" % stmp)
            self.part_off(92, 7, 10, "s%d" % stmp)
            self.lin(89, 7, (0, 5, 2), (5, 1, 1))
            self.sexpr(100, L_H, (sw, 128))
            a("v_add_u32 v89, s100, v89")
            self.mk_ix(90)
            self.lin(88, 7, (2, 2, 7), (0, 1, 4), (4, 2, 5))
            a("v_add_u32 v88, 0x%x, v88" % L_H)
            a(*[x for x in wt if not x.startswith("ds_")])
            self.sexpr(stmp, 0, (sRow, 1), (sw, 256))
            self.sexpr(sclr, 0, (sRow, 1), (sj, 4))
            a("s_add_u32 s%d, s%d, 0x1000" % (sBst, sBst), "s_add_u32 s%d, s%d, 0x1000" % (sB2, sB2))
        self.prep_split("pollB", self.lines(prep_b), self.red_loads(vX, sBld))
        aux = [self.ld(vX + 4, 91, stmp, n=1)]
        a("s_waitcnt lgkmcnt(0)", "s_cmp_eq_u32 s%d, 0" % sw, "s_cbranch_scc0 L_nored1")
        self.cold += (["L_nored1:", "s_lshl2_add_u32 s100, s%d, s%d" % (slayer, sw), "s_cmp_eq_u32 s100, 5", "s_cbranch_scc0 L_nof2"]
                      + self.lines(self.fill_cross, vX + 8, 2) + ["L_nof2:", "s_waitcnt vmcnt(0)", "s_branch L_red1"])
        self.reduce_x("pollB", vX, vD, sBld)
        self.st_intra("buffer_store_dword", "v7", 94, sXst)
        a("v_lshlrev_b32 v%d, 16, v7" % vRES)
        self.stamp("XBpub", True)
        a("L_red1:", "s_barrier")
        ldx = [self.ld(vX, vA16, sXld)]
        work, _ = schedule(self.lines(self.colsum_fin, 24, vCQ) + self.lines(self.colsum_fin, 80, vCG) + self.lines(self.gemv_zero, vD)
                           + [x + " ; prio=100" for x in self.lines(self.slice_sums, 5, 93, sclr)])
        k = max(i for i, x in enumerate(work) if "_dpp" in x) + 1
        ex = int(self.at["pollXB"][0] <= k)
        work[k:k] = self.lines(self.st_intra, "buffer_store_dword", "v5", 93, sclr)
        self.with_loads("pollXB", work, ldx)
        a(*[x for x in wt if x.startswith("ds_")])
        a("v_lshlrev_b32 v91, 2, v0")
        self.poll(ldx, [range(vX, vX + 4)], 7, "pollXB", self.lines(self.gemv4, vX, vWG, vD, 90), self.lines(self.gemv_zero, vD), extra=ex)
        a(*aux)
        self.gemv4_fin(6, vD)
        self.st_intra("buffer_store_dword", "v6", 92, sCst)
        self.stamp("Cpub", True)
        a("v_mov_b32 v5, 0", "s_bitcmp1_b32 s%d, 1" % sact, "s_cbranch_scc0 L_nod")
        ldc = self.ld4(vX, 91, sCld)
        st = self.lines(self.stats_fin, vX + 4, vD, False) + self.lines(self.sum4_init, vD + 2, vCG)
        self.stats_poll("pollC", aux, vX + 4, st, ldc)
        self.poll(ldc, [range(vX, vX + 4)], 7, "pollC", self.lines(self.sum4, vX, vD, vD + 2))
        a("v_permlane32_swap_b32 v%d, v%d" % (vD, vD + 1), "v_mul_f32 v%d, s%d, v%d" % (vD, sSC, vD),
          "v_mul_f32 v%d, v%d, v%d" % (vD, vD, vD + 1), "v_cvt_pk_bf16_f32 v%d, v%d, v%d" % (vD, vD, vD),
          "ds_write_b16 v89, v%d" % vD, "v_mov_b64 %s, 0" % q(vD + 4, 2), "s_waitcnt lgkmcnt(0)", "s_barrier", "ds_read_b128 %s, v88" % q(vX + 4), "s_waitcnt lgkmcnt(0)")
        self.smf(vD + 4, q(vX + 4), q(vWD, 8), 90)
        a("v_add_f32 v7, v%d, v%d" % (vD + 4, vD + 5))
        self.pack_pairs(5, 7)
        a("L_nod:")
        self.st_cross(5)
        self.stamp("Dpub", True)
        a("s_add_u32 s%d, s%d, 0x1000" % (stmp, sBld))
        self.layer1("L_last")
        a('; ---- operands of the second attention while the cross-die partials travel')
        a("s_waitcnt vmcnt(2) lgkmcnt(0)")

        def prep_d():
            a = self.a
            a("v_mov_b32 v28, v94", "v_mov_b32 v30, v93", "s_add_u32 s%d, s%d, 0x3000" % (sBst, sBst),
              "s_add_u32 s%d, s%d, 0x3000" % (sB2, sB2), "s_add_u32 s%d, s%d, 0x4000" % (sBld, sBld))
            self.mk_ai()
            self.s_zero()
            self.part_off(29, 7, 12)
            self.q_addrs(31, 48, 7)
            self.lin(5, 7, (2, 2, 6), (5, 1, 8), (4, 1, 5), (0, 1, 4))
            self.sexpr(100, L_WQ, (sw, QSTR))
            a("v_add_u32 v5, s100, v5")
            self.lds_or_zero(5, 7, 2)
            self.ml_off(6, 7)
            self.sexpr(98, 1024, (sRow, 1), (sb, 256))
            self.sexpr(sWl, 1024, (sRow, 1), (sj, 4))
            self.sexpr(sWo, 0, (sg, 1 << 17), (sj, 2048), (sw, 512))
            a("s_add_u32 s%d, s%d, 0x%x" % (sclr, sXst, OFF_XD - OFF_XB), "s_add_u32 s99, s%d, 0x%x" % (sXld, OFF_XD - OFF_XB))
        self.prep_split("pollD", self.lines(prep_d), self.red_loads(8, stmp))
        a("s_waitcnt lgkmcnt(0)", "s_cmp_eq_u32 s%d, 0" % sw, "s_cbranch_scc0 L_fill3", "L_redd:")
        self.cold += ["L_fill3:", "s_cmp_eq_u32 s%d, 1" % sw, "s_cbranch_scc0 L_nored2"] + self.lines(self.fill_cross, 16, 3) + ["s_branch L_nored2"]
        self.reduce_x("pollD", 8, 24, stmp)
        self.st_intra("buffer_store_dword", "v7", 28, sclr)
        a("s_cmp_eq_u32 s%d, 2" % slayer, "s_cbranch_scc1 L_out")
        a("v_lshlrev_b32 v%d, 16, v7" % vRES)
        self.stamp("XDpub")
        a("L_nored2:", "s_barrier")
        row = [self.ld(24, 28, 98, n=1)]
        ldx = [self.ld(52, vA16, 99)]
        work = self.lines(self.slice_sums, 26, 30, sWl)
        ex = int(self.at["pollXD"][0] <= len(work))
        work += self.lines(self.st_intra, "buffer_store_dword", "v26", 30, sWl) + ["v_lshlrev_b32 v28, 2, v0"]
        n = self.with_loads("pollXD", work, ldx)
        a("s_waitcnt vmcnt(%d)" % (n + 2))
        self.gemv_zero(8)
        self.poll(ldx, [range(52, 56)], 7, "pollXD", self.lines(self.gemv4, 52, vWQ, 8, vIX), self.lines(self.gemv_zero, 8), extra=ex)
        a(*row)
        self.gemv4_fin(10, 8)
        self.st_intra("buffer_store_dword", "v10", 29, sEst)
        self.stamp("Epub")
        lde = self.ld4(52, 28, sEld)
        st = self.lines(self.stats_fin, 24, 32, True) + self.lines(self.sum4_init, 34, vCQ)
        self.stats_poll("pollE", row, 24, st, lde)
        self.poll(lde, [range(52, 56)], 7, "pollE", self.lines(self.sum4, 52, 32, 34))
        self.stamp("Eget")
        rd = self.q_assemble(32, 31, 48, self.lines(self.next_region) + ["s_mov_b32 s%d, 2" % slayer]
                             + ["v_min_u32 v38, 3, v0", "v_lshlrev_b32 v38, 7, v38"])
        a(self.ld(38, 38, sWo, n=1))
        for i in range(7):
            a("v_mov_b64 %s, 0" % q(vO + 4 * i, 2))
        if self.stamps is not True:
            self.stamp("qrdy")
        a('; ---- second attention, keys and values already on chip')
        x = 128
        ldm = [self.ld(x, vA16, sMLld)]

        def att():
            a = self.a
            self.qk()
            a("s_waitcnt vmcnt(1) ; guards=v[52:55] after=v%d" % (vS + 20))
            a("v_subrev_u32 v23, 0x%x, v31" % (L_Q - L_WQ))
            a("v_mov_b64 %s, 0" % q(vO + 28, 2))
            self.softmax(23, 6)
            self.o_addr()
            for h in range(2):
                self.v_reads(5 + h, lambda i, e: q(8 * i + 4 * h + 2 * e, 2, "a"))
            self.v_reads(7)
            for n in range(4):
                self.p_read(2 * n, 5, n & 1)
                for i in range(8):
                    B = q(128 + 64 * n + 8 * i, 8) if n < 2 else q(8 * i, 8, "a") if n == 2 else "vp[%d]" % i
                    self.smf(vO + 4 * i, q(vQ + 4 * (n & 1)), B)
                    if n == i == 0:
                        for d in self.mlat:
                            a(ldm[0] + " ; lat=%d tail=%d" % (d, self.mltail))
        ls = [x + " prio=%d" % self.p0 if x.endswith("mem=p0") else x for x in self.lines(att)]
        cut = len(ls) - self.mlcut
        out, t1 = schedule(ls[:cut], rd)
        if self.stamps and self.stamps is not True:
            k = max(i for i, x in enumerate(out) if x.startswith("buffer_store")) + 1
            out[k:k] = self.lines(self.stamp, "mlpub")
            k = min(i for i, x in enumerate(out) if x.startswith("v_pk_fma"))
            out[k:k] = self.lines(self.stamp, "maxed")
        a(*out)
        a("s_waitcnt lgkmcnt(0)")
        if self.stamps is not True:
            self.stamp("pv2a")
        L = a.lab("ml2")
        a(L + "_w:")
        fin = ["v_sub_f32 v58, v%d, v20" % x, "v_sub_f32 v59, v%d, v20" % (x + 2), "v_exp_f32 v58, v58", "v_exp_f32 v59, v59",
               "v_mul_f32 v7, v58, v%d" % (x + 1), "v_fmac_f32 v7, v59, v%d" % (x + 3)] + self.lines(self.ml_finish, x)[6:]
        self.check([range(x, x + 4)], 6, len(self.mlat))
        a(*fin[:3])
        a("s_cbranch_vccnz " + L)
        fin = fin[3:]
        if self.stamps is not True:
            self.stamp("mlget")
        t2 = self.sched([x + " ; prio=200" for x in fin] + ls[cut:] + self.lines(self.o_write, 8, 60, True))
        self.est += (t1, t2)
        self.stamp("pv2")
        a("s_branch L_tail", L + ":", *ldm)
        a(*self.spin_count())
        a("s_branch %s_w" % L)
        a('; ---- last layer: one workgroup per slice reduces the partials and writes d_out; the first read follows the acknowledgement of its own stores')
        a("L_last:", "s_lshr_b32 s100, s%d, 2" % sj, "s_xor_b32 s100, s100, s%d" % sg, "s_or_b32 s100, s100, s%d" % sw,
          "s_cmp_eq_u32 s100, 0", "s_cbranch_scc0 L_fin")
        self.x_off(28, 7, 10)
        self.mk_srd(sWF, sOUT, "4096")
        a("s_lshl_b32 s%d, s%d, 5" % (sclr, sj))
        a("s_waitcnt vmcnt(0)")
        a(*self.red_loads(8, stmp))
        a("s_branch L_redd")
        a("L_out:")
        if self.probe:
            self.stamp("out")
            k0, k = map(self.stamp_names.index, self.probe[:2])
            a("v_readlane_b32 s100, v4, %d" % k, "v_readlane_b32 s101, v4, %d" % k0, "s_sub_u32 s100, s100, s101", "s_mul_i32 s100, s100, %d" % self.probe[2],
              "s_min_u32 s100, s100, 100000", "s_memrealtime s[0:1]", "s_waitcnt lgkmcnt(0)", "s_mov_b32 s101, s0",
              "L_probe:", "s_memrealtime s[0:1]", "s_waitcnt lgkmcnt(0)", "s_sub_u32 s0, s0, s101", "s_cmp_lt_u32 s0, s100",
              "s_cbranch_scc1 L_probe")
        a("L_fin:")
        if self.stamps and not self.probe:
            self.stamp("end")
            a("s_lshl_b32 s100, s2, 2", "s_add_u32 s100, s100, s%d" % sw, "s_lshl_b32 s100, s100, 7",
              "s_add_u32 s100, s100, 0x%x" % (STAMP_OFF - 2 * LS), "s_mov_b32 s%d, 0x1000000" % (sWS + 2),
              "v_writelane_b32 v4, s%d, 30" % sspin, "v_writelane_b32 v4, s%d, 31" % (sWF + 2),
              "v_lshlrev_b32 v9, 2, v0", "v_cmp_gt_u32 vcc, 32, v0", "s_and_saveexec_b64 s[98:99], vcc",
              "buffer_store_dword v4, v9, %s, s100 offen sc1" % srd(sWS))
        a("L_end:", "s_endpgm")
        a(*self.cold)
        a("L_codeend:")

    def build(self):
        self.prologue()
        self.stream()
        self.chain()
        if self.jall:
            old, self.a = self.a.l, Asm()
            on = False
            for k, i in enumerate(old):
                on = on or i.label == "L_entered"
                hit = i.op == "s_barrier" or old[k - 1].op == "s_barrier" or (i.vmem and " nt" not in i.text) or i.op.startswith("ds_write") \
                    or (i.ds and not old[k - 1].ds and not old[k - 1].mfma)
                if on and hit and i.op:
                    L = "L_ja%d" % k
                    self.a("s_cselect_b32 s92, 1, 0", "s_memtime s[0:1]", "s_waitcnt lgkmcnt(0)", "s_mul_i32 s0, s0, 0x9e3779b1",
                           "s_lshr_b32 s0, s0, %d" % (32 - self.jall[0]), "s_cmp_eq_u32 s0, 0", "s_cbranch_scc0 " + L,
                           *["s_sleep %d" % self.jall[1]] * self.jall[2], L + ":", "s_cmp_eq_u32 s92, 1")
                self.a.l.append(i)
        self.a.pad()
        if self.win:
            self.est += align(self.a, self.win, "L_entered")
        head = open("cdna_kernels/" + KNAME[:-7] + ".s.ref").read().split("; Override launch")[0]
        return (head + "; @launch grid=(256,1,1) block=(256,1,1) lds=163840\n" + ABOUT +
                '.amdgcn_target "amdgcn-amd-amdhsa--gfx950"\n.text\n.globl %s\n.p2align 8\n.type %s,@function\n%s:\n' % (KNAME, KNAME, KNAME)
                + self.a.text() +
                '.section .rodata,"a"\n.p2align 6\n.amdhsa_kernel %s\n  .amdhsa_next_free_vgpr 512\n  .amdhsa_next_free_sgpr 102\n'
                "  .amdhsa_accum_offset 256\n  .amdhsa_group_segment_fixed_size 0\n  .amdhsa_kernarg_size 96\n"
                "  .amdhsa_user_sgpr_count 2\n  .amdhsa_user_sgpr_kernarg_segment_ptr 1\n  .amdhsa_system_sgpr_workgroup_id_x 1\n"
                ".end_amdhsa_kernel\n" % KNAME)


if __name__ == "__main__":
    out = sys.argv[1]
    kw = eval("dict(%s)" % (sys.argv[2] if len(sys.argv) > 2 else ""))
    g = Gen(**kw)
    s = g.build()
    open(out, "w").write(s)
    if len(sys.argv) > 3:
        print("estimated attention cycles", g.est)
    if g.stamps:
        open(out[:-2] + ".names", "w").write("\n".join(g.stamp_names))
```

```python
import struct
import sys
from asmlib import Asm, align, schedule

KNAME = "interleave_layers__gqa_block_cached__glu_gated_bilinear__decode_kernel"

LS = 1 << 20
OFF_ML, OFF_A, OFF_C, OFF_XB, OFF_ST, OFF_XD, OFF_E = 0, 4 << 10, 36 << 10, 52 << 10, 56 << 10, 60 << 10, 64 << 10
OFF_CSG, OFF_CSQ = 60 << 10, 68 << 10
WS_SIZE = 3 * LS
T1 = [(OFF_C, 11), (LS + OFF_ML, 1)]
OFF_TK = 1 << 20
OFF_XW = 5 << 20
STAMP_OFF = 8 << 20
OOB = 0x7FFF0000

RING = 24576
L_WQ = 4 * RING
L_WO = L_WQ + 16384
L_WG = L_WO + 16384
L_WD = L_WG + 16384
L_SCR = L_WD + 8192
L_H = L_SCR + 1024
L_Q, QSTR = L_SCR + 1536, 2112
L_OOB = 0x30000
assert L_SCR + 8192 == 163840

sK, sV, sWS, sWF, sWL, sOUT, sDBG, sXI, sT = 28, 32, 36, 40, 44, 48, 52, 56, 96
sw, sg, sj, sb, ss, su, sring, srot, stmp, slayer = range(60, 70)
(sMLst, sMLld, sAst, sAld, sBst, sBld, sXst, sXld, sCst, sCld, sCS, sS1, sSC, sRow, sEst, sEld) = range(70, 86)
sWo, sWl = 86, 87
sM1, smode = 88, 90
sspin, scmp = 94, 95
sclr, slead, sact = 3, 14, 15
sLO, sHI = 6, 7
sXW, sB2, svote = 24, 23, 22
sWo2, sWl2 = 8, 9
SPIN_LIMIT = 1 << 18

vL, vA16, vTRV, vRES = 0, 1, 2, 3
vQ, vO, vIX, vAI, vS = 8, 24, 56, 56, 64
vWG, vWD, vWQ, vCG, vCQ, vSEL, vX, vD = 8, 24, 32, 48, 50, 52, 56, 72
vKS, vKR = 240, 244
ORDER = [0, 1, 2, 3, 5, 6, 7, 4]
SLOT = {5: 2, 6: 4, 7: 0}
SCALE = 128 ** -0.5 * 1.4426950408889634
ONES = "0x3f803f80"


def f32(x):
    return "0x%08x" % struct.unpack("<I", struct.pack("<f", x))[0]


def q(r, n=4, k="v"):
    return "%s[%d:%d]" % (k, r, r + n - 1)


def srd(r):
    return "s[%d:%d]" % (r, r + 3)


ABOUT = """;
; One persistent workgroup per CU: workgroup i owns kv head g = i & 7, batch b = i >> 6 and key split s = (i >> 3) & 7.
; Hand-offs go through d_ws slots that are first filled with 0xFFFFFFFF inside this launch and then read until no such word
; Two choices affect speed only: which of the two copies is read (probe reads at entry) and how many stream loads a
; workgroup keeps in flight (arrival rank at two points of the stream).
"""


class Gen:
    def __init__(self, depth=6, d0={5: 8, 6: 8}, burst=4, lag=2, tq=(2, 2, 3, 3), tg=(6, 6, 7, 7), ogate=(7, 3, 3, 3, 3),
                 sync=(4, 6, 9, 11, 13, 16, 18), clr1=4, ipf=24, tclr=25, tml=27, tfin=29, tp5=30,
                 dbl="pollXB,pollC,pollXD,pollE", at={}, kx=1, nst_=2, oahead=4, mlat=(208, 84), mltail=500, mlcut=1, p0=400,
                 win=32, near=1, force_slow=False, stamps=False, cyc=False, probe=None, jitter=None, jall=None, tlb='', tlbw=2, tk=(14, 22), tkn=8, tkw=1, th=(3, 6), lv=((5, 6, 7),)):
        self.__dict__.update(locals())
        self.a = Asm()
        self.nst = 0
        self.cold = []
        self.nslow = 0
        self.est = ()
        self.at = dict(pollA=(18, 34), pollB=(88,), pollXB=(8, 17), pollC=(0, 11), pollD=(84,), pollXD=(2, 10), pollE=(0, 11))
        self.at.update(at)
        self.stamp_names = []

    def stamp(self, name, per_layer=False):
        if self.jitter:
            self.nslow += 1
            L = "L_jit%d" % self.nslow
            self.a("s_memtime s[0:1]", "s_waitcnt lgkmcnt(0)", "s_mul_i32 s0, s0, 0x9e3779b1", "s_lshr_b32 s0, s0, %d" % (32 - self.jitter[0]),
                   "s_cmp_eq_u32 s0, 0", "s_cbranch_scc0 " + L, *["s_sleep %d" % self.jitter[1]] * self.jitter[2], L + ":")
            return
        if not self.stamps or (self.stamps is not True and name not in self.stamps):
            return
        a = self.a
        k = self.nst
        self.nst += 2 if per_layer else 1
        assert self.nst <= 28
        a("%s s[0:1]" % ("s_memtime" if self.cyc else "s_memrealtime"), "s_waitcnt lgkmcnt(0)")
        if per_layer:
            self.stamp_names += [name + "/1", name + "/2"]
            a("s_add_u32 m0, s%d, %d" % (slayer, k - 1), "v_writelane_b32 v4, s0, m0")
        else:
            self.stamp_names.append(name)
            a("v_writelane_b32 v4, s0, %d" % k)

    def mk_srd(self, d, p, size):
        self.a("s_mov_b32 s%d, s%d" % (d, p), "s_mov_b32 s%d, s%d" % (d + 1, p + 1),
               "s_mov_b32 s%d, %s" % (d + 2, size), "s_mov_b32 s%d, 0x20000" % (d + 3))

    def lin(self, d, t, *terms):
        first = True
        for sh, bits, sc in terms:
            r = d if first else t
            if sh + bits >= 6:
                src = vL
                if sh:
                    self.a("v_lshrrev_b32 v%d, %d, v0" % (r, sh)); src = r
            elif sh == 0:
                self.a("v_and_b32 v%d, %d, v0" % (r, (1 << bits) - 1)); src = r
            else:
                self.a("v_bfe_u32 v%d, v0, %d, %d" % (r, sh, bits)); src = r
            if first:
                if sc or src != d:
                    self.a("v_lshlrev_b32 v%d, %d, v%d" % (d, sc, src))
            else:
                self.a("v_lshl_add_u32 v%d, v%d, %d, v%d" % (d, src, sc, d))
            first = False

    def sexpr(self, d, const, *terms):
        a = self.a
        first = True
        for reg, mult in terms:
            r = d if first else 101
            if mult & (mult - 1) == 0:
                a("s_lshl_b32 s%d, s%d, %d" % (r, reg, mult.bit_length() - 1))
            else:
                a("s_mul_i32 s%d, s%d, %d" % (r, reg, mult))
            if not first:
                a("s_add_u32 s%d, s%d, s101" % (d, d))
            first = False
        if const:
            a("s_add_u32 s%d, s%d, 0x%x" % (d, d, const))

    def oob_unless(self, v, t, cond):
        self.a(cond, "v_mov_b32 v%d, 0x%x" % (t, OOB), "v_cndmask_b32 v%d, v%d, v%d, vcc" % (v, t, v))

    def even_only(self, v, t, cmp="0"):
        self.a("v_and_b32 v%d, 1, v0" % t)
        self.oob_unless(v, t, "v_cmp_eq_u32 vcc, %s, v%d" % (cmp, t))

    def st_intra(self, op, data, voff, soff, both=False):
        a = self.a
        slow = "%s %s, v%d, %s, s%d offen sc1" % (op, data, voff, srd(sWL), soff)
        a("%s %s, v%d, %s, s%d offen" % (op, data, voff, srd(sWF), soff))
        if both:
            tk = a.mark()
            a(slow)
            a.uncounted(tk)
            return
        self.nslow += 1
        L = "L_slow%d" % self.nslow
        a("s_cmp_eq_u32 s%d, 0" % (sWF + 2), "s_cbranch_scc1 " + L, L + "_b:")
        self.cold += [L + ":", slow, "s_branch %s_b" % L]

    def ld(self, r, voff, soff, off=0, n=4, rs=sWS):
        return "buffer_load_dword%s %s, v%d, %s, s%d offen offset:%d sc1" % (
            "x%d" % n if n > 1 else "", q(r, n) if n > 1 else "v%d" % r, voff, srd(rs), soff, off)

    def ld4(self, r, voff, soff):
        return [self.ld(r + k, voff, soff, 256 * k, n=1) for k in range(4)]

    def spin_count(self):
        return ["s_add_u32 s%d, s%d, 1" % (sspin, sspin), "s_cmp_lt_u32 s%d, 0x%x" % (sspin, SPIN_LIMIT), "s_cselect_b32 s%d, -2, -1" % scmp]

    def rounds(self, name):
        return 1 + self.dbl.split(",").count(name)

    def poll(self, loads, regs, acc, name, work=(), reinit=(), spec=None, again=None, extra=0):
        a = self.a
        L = "L_" + name
        k, n = self.rounds(name), len(loads)
        if again:
            self.check(regs, acc, len(regs), spec)
            a("s_cbranch_vccz %s_d" % L, L + ":", *loads)
            a(*self.spin_count())
            self.check(regs, acc, again * n + len(regs), spec)
            a("s_cbranch_vccnz " + L, "s_nop 2", L + "_d:")
        else:
            a("s_branch %s_w" % L, L + ":", *loads)
            a(*self.spin_count())
            a(*reinit)
            a(L + "_w:")
            self.check(regs, acc, (k - 1) * n + len(regs) + extra, spec)
            a(*work)
            a("s_cbranch_vccnz " + L, L + "_d:")
        if self.stamps is not True:
            self.stamp(name, True)

    def stats_poll(self, name, aux, r, st, loads):
        a = self.a
        self.check_or_poll(aux, [[r]], 7, name + "s", a.mark() - 1, work=st[:self.nst_])
        self.with_loads(name, st[self.nst_:], loads)

    def idle(self, n):
        if n >= 16:
            self.a("s_sleep %d" % (n // 16))
        if n > 0 and n % 16:
            self.a("s_nop %d" % (n % 16 - 1))

    def with_loads(self, name, work, loads):
        pos = 0
        for d in self.at[name][:self.rounds(name)]:
            self.a(*work[pos:pos + d])
            self.idle(pos + d - max(pos, len(work)))
            self.a(*loads)
            pos += d
        self.a(*work[pos:])
        return self.rounds(name)

    def check(self, regs, acc, n, spec=None):
        a = self.a
        have = None
        for i, part in enumerate(regs):
            if n:
                a("s_waitcnt vmcnt(%d)" % (n - 1 - i))
            if spec and n == len(regs):
                spec(i)
            pool = ([have] if have is not None else []) + list(part)
            while len(pool) > 1:
                m = min(3, len(pool))
                a(("v_max3_u32 v%d, v%d, v%d, v%d" if m == 3 else "v_max_u32 v%d, v%d, v%d") % (acc, *pool[:m]))
                pool = [acc] + pool[m:]
            have = pool[0]
            if i == len(regs) - 1:
                a("v_cmp_lt_u32 vcc, s%d, v%d" % (scmp, have))
            if spec and n != len(regs):
                spec(i)

    def check_or_poll(self, loads, regs, acc, name, wait, pre=(), work=()):
        a = self.a
        tk = a.mark()
        a("s_branch L_%s_c" % name, "L_%s_r:" % name, *pre)
        a(*loads)
        a(*self.spin_count())
        a("s_waitcnt vmcnt(0)", "L_%s_c:" % name)
        a.uncounted(tk)
        a.wait_vm(wait)
        self.check(regs, acc, 0)
        a(*work)
        a("s_cbranch_vccnz L_%s_r" % name)

    def mfma(self, d, A, B, c):
        self.a("v_mfma_f32_16x16x32_bf16 %s, %s, %s, %s" % (q(d), A, B, q(d) if c else "0"))

    def smf(self, d, A, B, ix=None):
        self.a("v_smfmac_f32_16x16x64_bf16 %s, %s, %s, v%d" % (q(d), A, B, ix or vIX))

    def mk_ix(self, v):
        self.a("v_and_b32 v%d, 1, v0" % v, "v_mul_u32_u24 v%d, 0xaaaa, v%d" % (v, v), "v_add_u32 v%d, 0x4444, v%d" % (v, v))

    def dpp(self, op, d, s0, s1, ctl, rm="0xf"):
        self.a("%s_dpp v%d, v%d, v%d %s row_mask:%s bank_mask:0xf" % (op, d, s0, s1, ctl, rm))

    def pack_pairs(self, d, v):
        self.a("v_mov_b32_dpp v%d, v%d quad_perm:[1,1,3,3] row_mask:0xf bank_mask:0xf" % (d, v),
               "v_cvt_pk_bf16_f32 v%d, v%d, v%d" % (d, v, d))

    def tile_issue(self, T, between=None):
        a = self.a
        if T:
            a("s_add_u32 s%d, s%d, 0x20000" % (srot, srot), "s_and_b32 s%d, s%d, 0x1e0000" % (srot, srot))
        a("s_or_b32 s%d, s%d, s%d" % (stmp, srot, su), "s_add_u32 m0, s%d, %d" % (sring, (T % 6) * 4096))
        if T >= 6:
            a("s_waitcnt lgkmcnt(%d)" % (0 if between or (T == 6 and self.tlb) else 1))
        for jj in range(4):
            self.throttle(T, 4 * T + jj >= 128 - self.burst)
            va = vKS + jj if T < 16 else 5 + (jj & 1)
            a("buffer_load_dwordx4 v%d, %s, s%d offen offset:%d nt lds" % (va, srd(sK if T < 16 else sV), stmp, jj * 1024))
            self.ltok.append(a.mark())
            self.tok[T] = a.mark()
            if between:
                between(jj)
        if 16 <= T < 31:
            a("v_xor_b32 v5, 64, v5", "v_xor_b32 v6, 64, v6")

    def throttle(self, T, burst):
        a = self.a
        if self.tk and T > self.tk[0] + 3 and not burst:
            lv = self.lv[T % len(self.lv)]
            L = a.lab("th")
            for m in (2, 1, 0):
                if m == 2 or lv[m] != lv[m + 1]:
                    if m < 2:
                        a("s_cmp_gt_u32 s%d, %d" % (smode, m), "s_cbranch_scc1 " + L)
                    a.wait_vm(self.ltok[-lv[m]])
            a(L + ":")
            return
        d = self.d0.get(T, self.depth)
        if T > 1 and not burst and d < len(self.ltok):
            a.wait_vm(self.ltok[-d])

    def vreg(self, p, i):
        return 128 + 64 * (p >> 1) + 8 * i + 4 * (p & 1) if p < 4 else (96 if p == 4 else vS) + 4 * i

    def v_reads(self, p, dst=None):
        slot = (16 + 2 * p) % 6
        for i in range(8):
            for h in range(2):
                d = dst(i, h) if dst else q(self.vreg(p, i) + 2 * h, 2)
                self.a("ds_read_b64_tr_b16 %s, v%d offset:%d ; mem=v" % (d, vAI + i if i else vTRV, slot * 4096 + h * 512))

    def tile_consume(self, T):
        a = self.a
        if T < 16:
            a.wait_vm(self.tok[T])
            for st in range(4):
                a("ds_read_b128 %s, v%d offset:%d" % (q(16 * T + 4 * st, 4, "a"), vKR + st, (T % 6) * 4096))
        elif T & 1:
            a.wait_vm(self.tok[T])
            self.v_reads((T - 16) >> 1)

    def mk_ai(self):
        for i in range(1, 8):
            self.a("v_xor_b32 v%d, %d, v%d" % (vAI + i, i << 5, vTRV))
        self.mk_ix(vIX)

    def weight_load(self, kind, k, T, va=52):
        a = self.a
        t = va + 1
        pitch = {"q": 8192, "g": 3584, "d": 1024, "o": 1024}[kind]
        if k == 0:
            if kind == "o":
                self.lin(va, t, (5, 1, 14), (3, 2, 10), (0, 3, 4))
                self.mk_srd(sT, 12, "0x400000")
                self.sexpr(sWo, 0, (sg, 512 * 1024), (sb, 128 * 1024), (sw, 4096), (ss, 128))
                self.sexpr(sWl, L_WO, (sw, 4096))
            else:
                a("v_lshrrev_b32 v%d, 3, v0" % va, "v_mul_u32_u24 v%d, %d, v%d" % (va, pitch, va), "v_and_b32 v%d, 7, v0" % t,
                  "v_lshl_add_u32 v%d, v%d, 4, v%d" % (va, t, va))
            a("v_and_b32 v%d, 32, v0" % t, "v_xor_b32 v%d, v%d, v%d" % (va, va, t), "v_xor_b32 v%d, 64, v%d" % (t, va))
            if kind == "q":
                self.mk_srd(sT, 10, "0x400000")
                self.sexpr(sWo, 0, (sb, 128 * pitch), (sw, 32 * pitch), (sg, 1024), (ss, 128))
                self.sexpr(sWl, L_WQ, (sw, 4096))
            if kind in "gd":
                a("s_lshr_b32 s100, s%d, 1" % sg, "s_mul_i32 s100, s100, 7", "s_and_b32 s%d, s%d, 1" % (stmp, sg),
                  "s_lshl_b32 s%d, s%d, 2" % (stmp, stmp), "s_add_u32 s100, s100, s%d" % stmp)
            if kind == "g":
                a("s_and_b32 s%d, s%d, 3" % (stmp, ss), "s_add_u32 s100, s100, s%d" % stmp)
                self.sexpr(sWo, 0, (sb, 128 * pitch), (sw, 32 * pitch), (100, 128))
                self.sexpr(sWl, L_WG, (sw, 4096))
                a("s_bitcmp1_b32 s%d, 0" % sact, "s_cselect_b32 s100, 0x%x, 0" % (512 * pitch))
                self.mk_srd(sT, 16, "s100")
                a("s_cmp_ge_u32 s%d, 4" % ss, "s_cselect_b32 s%d, s18, s16" % sT, "s_cselect_b32 s%d, s19, s17" % (sT + 1))
            if kind == "d":
                a("s_add_u32 s100, s100, s%d" % sb)
                self.sexpr(sWo2, 0, (100, 64 * pitch), (sw, 16 * pitch), (ss, 128))
                self.sexpr(sWl2, L_WD, (sw, 2048))
                a("s_bitcmp1_b32 s%d, 1" % sact, "s_cselect_b32 s100, 0x%x, 0" % (1792 * pitch))
                self.mk_srd(sXI, 20, "s100")
            if T is None:
                return
        self.weight_issue(kind, k, T, va)

    def weight_issue(self, kind, k, T, va):
        a = self.a
        pitch = {"q": 8192, "g": 3584, "d": 1024, "o": 1024}[kind]
        so, sl, rs = (sWo2, sWl2, sXI) if kind == "d" else (sWo, sWl, sT)
        a("s_add_u32 s%d, s%d, 0x%x" % (stmp, so, (32 if kind == "o" else 8) * pitch * k), "s_add_u32 m0, s%d, 0x%x" % (sl, 1024 * k))
        if T < 31:
            self.throttle(T, False)
        a("buffer_load_dwordx4 v%d, %s, s%d offen nt lds" % (va + (k & 1), srd(rs), stmp))
        self.ltok.append(a.mark())
        self.wtok[kind] = a.mark()

    def lines(self, fn, *args):
        keep, self.a = self.a, Asm()
        fn(*args)
        out, self.a = [i.text for i in self.a.l], keep
        return out

    def sched(self, lines, pre=()):
        out, t = schedule(lines, pre)
        self.a(*out)
        return t

    def s_zero(self):
        for r in range(vS, vS + 32, 2):
            self.a("v_mov_b64 %s, 0" % q(r, 2))

    def qk(self):
        a = self.a
        for k, p in enumerate(ORDER):
            d = vS + 4 * k
            for sg_ in range(2):
                for hf in range(2):
                    self.smf(d, q(vQ + 8 * sg_ + 4 * hf), q(16 * (2 * p + sg_) + 8 * hf, 8, "a"))
            a("v_add_f32 v%d, v%d, v%d" % (d, d, d + 1), "v_add_f32 v%d, v%d, v%d" % (d + 1, d + 2, d + 3))
            a("v_max3_f32 v7, v7, v%d, v%d" % (d, d + 1) if k else "v_max_f32 v7, v%d, v%d" % (d, d + 1))

    def ml_off(self, v, t):
        self.a("v_mov_b32 v%d, v%d" % (v, vA16), "v_and_b32 v%d, 15, v0" % t)
        self.oob_unless(v, t, "v_cmp_eq_u32 vcc, 0, v%d" % t)

    def softmax(self, vw, voff):
        a = self.a
        for k in (1, 2, 4, 8):
            self.dpp("v_max_f32", 7, 7, 7, "row_ror:%d" % k)
        a("v_mul_f32 v20, s%d, v7" % sSC, "s_mov_b32 s100, %s" % ONES)
        for k in range(8):
            r = q(vS + 4 * k, 2)
            a("v_pk_fma_f32 %s, %s, s[%d:%d], v[20:21] op_sel_hi:[1,0,0] neg_lo:[0,0,1] neg_hi:[0,0,1]" % (r, r, sSC, sSC + 1))
        for k in range(8):
            r = vS + 4 * k
            a("v_exp_f32 v%d, v%d" % (r, r), "v_exp_f32 v%d, v%d" % (r + 1, r + 1), "v_cvt_pk_bf16_f32 v%d, v%d, v%d" % (r + 2, r, r + 1))
            if k & 1:
                a("ds_write2st64_b32 v%d, v%d, v%d offset0:%d offset1:%d ; mem=p%d" % (vw, r - 2, r + 2, k - 1, k, k - 1))
        for k in range(8):
            a("v_dot2_f32_bf16 v21, v%d, s100, %s" % (vS + 4 * k + 2, "v21" if k else "0"))
        for k in (1, 2, 4, 8):
            self.dpp("v_add_f32", 21, 21, 21, "row_ror:%d" % k)
        self.st_intra("buffer_store_dwordx2", "v[20:21]", voff, sMLst, both=True)

    def ml_finish(self, r):
        a = self.a
        a("v_sub_f32 v%d, v%d, v20" % (r, r), "v_sub_f32 v%d, v%d, v20" % (r + 2, r + 2),
          "v_exp_f32 v%d, v%d" % (r, r), "v_exp_f32 v%d, v%d" % (r + 2, r + 2),
          "v_mul_f32 v7, v%d, v%d" % (r, r + 1), "v_fmac_f32 v7, v%d, v%d" % (r + 2, r + 3))
        for k in (1, 2, 4, 8):
            self.dpp("v_add_f32", 7, 7, 7, "row_ror:%d" % k)
        a("v_rcp_f32 v7, v7")

    def lds_or_zero(self, v, t, mask, val=0):
        self.a("v_and_b32 v%d, %d, v0" % (t, mask), "v_cmp_eq_u32 vcc, %d, v%d" % (val, t), "v_mov_b32 v%d, 0x%x" % (t, L_OOB),
               "v_cndmask_b32 v%d, v%d, v%d, vcc" % (v, t, v))

    def p_read(self, k, va, buf):
        self.a("ds_read_b128 %s, v%d offset:%d ; mem=p%d" % (q(vQ + 4 * buf), va, k * 256, k & ~1))

    def pv_dense(self, p, buf, lgkm=None):
        for i in range(8):
            if lgkm is not None:
                self.a("s_waitcnt lgkmcnt(%d)" % lgkm(i))
            self.mfma(vO + 4 * i, q(vQ + 4 * buf), q(self.vreg(p, i)), p > 0)

    def o_addr(self):
        self.sexpr(4, L_SCR, (sw, 512))
        self.a("v_and_b32 v22, 48, v0", "v_mul_u32_u24 v22, 112, v22", "v_add3_u32 v22, v22, v%d, s4" % vA16)

    def o_write(self, t0, t1, sparse):
        a = self.a
        for h, t in enumerate((t0, t1)):
            for i in range(4):
                o = vO + 16 * h + 4 * i
                a("v_add_f32 v%d, v%d, v%d" % (t + i, o, o + 1) if sparse else "v_mul_f32 v%d, v7, v%d" % (t + i, o))
            if sparse:
                for i in (0, 2):
                    a("v_pk_mul_f32 %s, %s, v[6:7] op_sel:[0,1] op_sel_hi:[1,1]" % (q(t + i, 2), q(t + i, 2)))
            a("ds_write_b128 v22, %s offset:%d" % (q(t), 256 * h))

    def w_tiles(self, kinds, va, t):
        a = self.a
        last = None
        for kind, dst in kinds:
            qs = 11 if kind == "d" else 12
            if qs != last:
                self.lin(va, t, (4, 1, 5), (3, 1, 6))
                a("s_lshl_b32 s100, s%d, 5" % sw, "v_xor_b32 v%d, s100, v%d" % (va, va), "v_add_u32 v%d, 0x%x, v%d" % (va, L_WQ, va))
                for sh, bits, sc in ((5, 1, qs), (3, 1, 10), (4, 1, 9), (2, 1, 7), (0, 2, 3)):
                    a("v_bfe_u32 v%d, v0, %d, %d" % (t, sh, bits), "v_lshl_add_u32 v%d, v%d, %d, v%d" % (va, t, sc, va))
                last = qs
            base = {"q": L_WQ, "g": L_WG, "d": L_WD}[kind] - L_WQ
            for kb in range(2 if kind == "d" else 4):
                for h in range(2):
                    a("ds_read_b64_tr_b16 %s, v%d offset:%d" % (q(dst + 4 * kb + 2 * h, 2), va,
                                                                  base + (kb & 1) * (2 << qs) + (kb >> 1) * 2048 + h * 256))

    def gemv_zero(self, d):
        self.a("v_mov_b64 %s, 0" % q(d, 2), "v_mov_b64 %s, 0" % q(d + 6, 2))

    def gemv4(self, x, W, d, ix):
        for k in range(2):
            self.smf(d + 4 * k, q(x), q(W + 8 * k, 8), ix)

    def gemv4_fin(self, out, d):
        self.a("v_add_f32 v%d, v%d, v%d" % (d, d, d + 1), "v_add_f32 v%d, v%d, v%d" % (d + 6, d + 6, d + 7),
               "v_add_f32 v%d, v%d, v%d" % (d, d, d + 6))
        self.pack_pairs(out, d)

    def colsum_pub(self, W, ones, d, va, t, off, *terms):
        a = self.a
        for r in range(4):
            a("v_mov_b32 v%d, %s" % (ones + r, ONES))
        self.lin(va, t, (0, 1, 10), (1, 3, 4))
        self.oob_unless(va, t, "v_cmp_gt_u32 vcc, 16, v0")
        self.sexpr(100, off, (sCS, 1), (sb, 4), (sw, 128), *terms)
        a("s_waitcnt lgkmcnt(0)")
        for kb in range(4):
            self.mfma(d, q(ones), q(W + 4 * kb), kb > 0)
        self.st_intra("buffer_store_dword", "v%d" % d, va, 100)

    def colsum_ld(self, r, off, sel):
        self.sexpr(100, off, (sCS, 1), (sel, 2048))
        self.a(self.ld(r, vA16, 100, 0), self.ld(r + 4, vA16, 100, 1024))

    def colsum_fin(self, r, c):
        for k in range(2):
            b = r + 4 * k
            self.a("v_add_f32 v%d, v%d, v%d" % (b, b, b + 1), "v_add_f32 v%d, v%d, v%d" % (b + 2, b + 2, b + 3),
                   "v_add_f32 v%d, v%d, v%d" % (b, b, b + 2), "v_mul_f32 v%d, %s, v%d" % (c + k, f32(-1.0 / 512), b))

    def stats(self, x, t, att):
        a = self.a
        s1, s2 = t, t + 1
        a("s_mov_b32 s100, %s" % ONES)
        for k in range(4):
            a("v_dot2_f32_bf16 v%d, v%d, s100, %s" % (s1, x + k, "v%d" % s1 if k else "0"),
              "v_dot2_f32_bf16 v%d, v%d, v%d, %s" % (s2, x + k, x + k, "v%d" % s2 if k else "0"))
        a("v_permlane32_swap_b32 v%d, v%d" % (s1, s2), "v_add_f32 v%d, v%d, v%d" % (s1, s1, s2))
        self.stats_fin(s1, t, att)

    def slice_sums(self, t, voff, soff):
        a = self.a
        a("v_mul_f32 v%d, v%d, v%d" % (t + 1, vRES, vRES))
        self.dpp("v_add_f32", t, vRES, vRES, "row_ror:8")
        self.dpp("v_add_f32", t + 1, t + 1, t + 1, "row_ror:8")
        a("v_cndmask_b32 v%d, v%d, v%d, s[%d:%d]" % (t, t, t + 1, sM1, sM1 + 1))
        for ctl in ("quad_perm:[1,0,3,2]", "quad_perm:[2,3,0,1]", "row_half_mirror"):
            self.dpp("v_add_f32", t, t, t, ctl)

    def st_off(self, v, t):
        self.lin(v, t, (5, 1, 8), (4, 1, 9), (3, 1, 7))
        self.a("v_and_b32 v%d, 7, v0" % t, "v_add_u32 v%d, s%d, v%d" % (t, sw, t))
        self.oob_unless(v, t, "v_cmp_eq_u32 vcc, 0, v%d" % t)

    def stats_fin(self, x, t, att):
        a = self.a
        s1, s2 = t, t + 1
        for k in (1, 2, 4, 8):
            self.dpp("v_add_f32", s1, x if k == 1 else s1, x if k == 1 else s1, "row_ror:%d" % k)
        self.dpp("v_add_f32", s1, s1, s1, "row_bcast:15", "0xa")
        a("v_readlane_b32 s%d, v%d, 31" % (sS1, s1), "v_mul_f32 v%d, %s, v%d" % (s1, f32(1.0 / 512), s1),
          "v_mov_b32 v%d, s%d" % (s2, sS1), "v_mul_f32 v%d, %s, v%d" % (s2, f32(1.0 / 512), s2),
          "v_fma_f32 v%d, -v%d, v%d, v%d" % (s1, s2, s2, s1), "v_max_f32 v%d, 0, v%d" % (s1, s1),
          "v_add_f32 v%d, %s, v%d" % (s1, f32(1e-5), s1))
        if att:
            a("v_rsq_f32 v%d, v%d" % (s1, s1), "v_mul_f32 v%d, %s, v%d" % (s1, f32(SCALE), s1))
        else:
            a("v_rcp_f32 v%d, v%d" % (s1, s1), "s_nop 0")
        a("v_readlane_b32 s%d, v%d, 63" % (sSC, s1))

    def sum4_init(self, acc, c):
        self.a("v_mul_f32 v%d, s%d, v%d" % (acc, sS1, c), "v_mul_f32 v%d, s%d, v%d" % (acc + 1, sS1, c + 1))

    def sum4(self, x, acc, init):
        for k in range(4):
            c = acc if k else init
            self.a("v_dot2_f32_bf16 v%d, v%d, s%d, v%d" % (acc, x + k, sLO, c),
                   "v_dot2_f32_bf16 v%d, v%d, s%d, v%d" % (acc + 1, x + k, sHI, c + 1))

    def q_addrs(self, vw, vr, t):
        a = self.a
        self.lin(vw, t, (3, 3, 5), (0, 1, 4), (1, 2, 2))
        self.sexpr(100, L_Q, (sw, QSTR))
        a("v_add_u32 v%d, s100, v%d" % (vw, vw))
        self.lin(vr, t, (4, 2, 5), (0, 1, 4))
        a("v_bfe_u32 v%d, v0, 2, 2" % t, "v_mul_u32_u24 v%d, %d, v%d" % (t, QSTR, t), "v_add_u32 v%d, v%d, v%d" % (vr, vr, t),
          "v_add_u32 v%d, 0x%x, v%d" % (vr, L_Q, vr), "v_mov_b32 v%d, v%d" % (vr + 1, vr))
        self.lds_or_zero(vr, t, 2, 0)
        self.lds_or_zero(vr + 1, t, 2, 2)

    def q_assemble(self, acc, vw, vr, fill=()):
        a = self.a
        a("v_cvt_pk_bf16_f32 v%d, v%d, v%d" % (acc, acc, acc + 1), "ds_write_b32 v%d, v%d" % (vw, acc), *fill)
        a("s_waitcnt lgkmcnt(0)", "s_barrier")
        rd = ["ds_read_b128 %s, v%d offset:%d" % (q(vQ + 4 * st), vr + (st >> 1), (st & 1) * 128) for st in range(4)]
        a(*rd)
        return rd

    def late_loads(self, name):
        self.layer1(name)
        for k in range(2):
            self.weight_issue("d", k, 32, 62)
        self.touch(59)
        self.a(name + ":")

    def next_region(self):
        for r in (sWS, sWF, sWL):
            self.a("s_add_u32 s%d, s%d, 0x%x" % (r, r, LS), "s_addc_u32 s%d, s%d, 0" % (r + 1, r + 1))
        self.a("s_sub_u32 s%d, s%d, 0x%x" % (sCS, sCS, LS))

    def leader_fill(self):
        a = self.a
        a("v_mov_b32 v8, -1", "v_mov_b32 v9, -1", "v_mov_b32 v10, -1", "v_mov_b32 v11, -1", "v_lshlrev_b32 v12, 2, v0",
          "s_or_b32 s%d, s%d, s%d" % (slead, sj, sw), "s_cmp_eq_u32 s%d, 0" % slead, "s_cbranch_scc0 L_nolead0")
        tk = a.mark()
        a("s_lshl_b32 s100, s%d, 17" % sg, "buffer_store_dword v8, v12, %s, s100 offen sc1" % srd(sWS), "L_nolead0:")
        a.uncounted(tk)
        self.tok_lead = tk

    def leader_flag(self, word, name, tok=None, val="1", v=54):
        a = self.a
        a("s_cmp_eq_u32 s%d, 0" % slead, "s_cbranch_scc0 " + name)
        if tok is not None:
            a.wait_vm(tok)
        tk = a.mark()
        a("v_mov_b32 v%d, %s" % (v + 1, val), "v_lshlrev_b32 v%d, 8, v0" % v, "s_lshl_b32 s100, s%d, 2" % sg,
          "buffer_store_dword v%d, v%d, %s, s100 offen offset:%d sc1" % (v + 1, v, srd(sDBG), word), name + ":")
        a.uncounted(tk)

    def flag_load(self, v, word, own):
        a = self.a
        if own:
            a("s_lshl_b32 s100, s%d, 2" % sg, "v_mov_b32 v%d, s100" % v)
        else:
            a("v_and_b32 v%d, 7, v0" % v, "v_lshlrev_b32 v%d, 2, v%d" % (v, v))
        return a("buffer_load_dword v%d, v%d, %s, 0 offen offset:%d sc1" % (v, v, srd(sDBG), word))

    def flag_check(self, v, word, own, tok, name):
        a = self.a
        a.wait_vm(tok)
        tk = a.mark()
        a("s_branch %s_c" % name, name + "_s:", "s_sleep 8")
        self.flag_load(v, word, own)
        a("s_add_u32 s%d, s%d, 1" % (sspin, sspin), "s_cmp_lt_u32 s%d, 0x%x" % (sspin, SPIN_LIMIT), "s_waitcnt vmcnt(0)",
          "s_cbranch_scc0 %s_d" % name, name + "_c:", "v_cmp_eq_u32 vcc, 0, v%d" % v, "s_cbranch_vccnz %s_s" % name, name + "_d:")
        a.uncounted(tk)

    def fill_intra(self, v, t, d, start, per_wave):
        a = self.a
        self.sexpr(100, start, (sg, 1 << 17), (sj, 4 * per_wave), (sw, per_wave))
        a("v_mov_b32 v%d, v%d" % (v, vA16))
        self.oob_unless(v, t, "v_cmp_gt_u32 vcc, %d, v0" % (per_wave // 16))
        self.st_intra("buffer_store_dwordx4", q(d), v, 100)

    def sentinels(self, d):
        for r in range(4):
            self.a("v_mov_b32 v%d, -1" % (d + r))

    def prologue(self):
        a = self.a
        if self.stamps and not self.probe:
            a("%s s[92:93]" % ("s_memtime" if self.cyc else "s_memrealtime"))
        a('; ---- entry: everything up to the first K tile fits the 256 bytes that are fetched before the wave starts')
        a("s_load_dwordx16 s[4:19], s[0:1], 0", "s_load_dwordx8 s[20:27], s[0:1], 64",
          "v_lshrrev_b32 v1, 6, v0", "s_cmpk_ge_u32 s2, 256", "v_readfirstlane_b32 s%d, v1" % sw, "s_cbranch_scc1 L_end")
        a("v_and_b32 v0, 63, v0", "s_and_b32 s%d, s2, 7" % sg, "s_lshr_b32 s%d, s2, 3" % sj, "s_lshr_b32 s%d, s2, 6" % sb,
          "s_and_b32 s%d, s%d, 7" % (ss, sj), "s_lshl2_add_u32 s%d, s%d, s%d" % (su, ss, sw),
          "s_lshl3_add_u32 s100, s%d, s%d" % (sb, sg), "s_lshl_b32 s100, s100, 21", "s_mul_i32 s%d, s%d, %d" % (sring, sw, RING))
        a("s_lshl_b32 s%d, s%d, 12" % (su, su), "s_lshl2_add_u32 s%d, s%d, s%d" % (srot, sb, sg),
          "s_and_b32 s%d, s%d, 15" % (srot, srot), "s_lshl_b32 s%d, s%d, 17" % (srot, srot))
        a("v_lshrrev_b32 v5, 4, v0", "v_and_b32 v6, 15, v0", "v_xor_b32 v7, v5, v6", "v_lshlrev_b32 v7, 4, v7",
          "v_lshl_add_u32 v%d, v5, 8, v7" % vKS)
        a("v_xor_b32 v%d, 64, v%d" % (vKS + 1, vKS), "v_xor_b32 v%d, 128, v%d" % (vKS + 2, vKS), "v_xor_b32 v%d, 64, v%d" % (vKS + 3, vKS + 2),
          "s_lshl_b32 s98, s2, 10", "s_bitset1_b32 s98, 22", "v_mov_b32 v9, s98", "v_xor_b32 v10, 0x2000, v9",
          "s_lshl_b32 s%d, 1, 21" % (sK + 2), "s_mov_b32 s%d, 0x20000" % (sK + 3))
        self.tok, self.ltok, self.wtok = {}, [], {}
        first = self.lines(self.tile_issue, 0)
        self.tok, self.ltok = {}, []
        a(*first[:2])
        a("s_waitcnt lgkmcnt(0)", "global_load_dword v95, v9, s[26:27] sc1")
        tok_cal = a.mark()
        a("global_load_dword v95, v10, s[26:27] offset:128 sc1", "s_add_u32 s%d, s6, s100" % sK, "s_addc_u32 s%d, s7, 0" % (sK + 1))
        for x in first[2:]:
            self.ltok.append(a(x))
        self.tok[0] = a.mark()
        a("s_cmp_eq_u32 s%d, 0" % sw, "s_cbranch_scc0 L_novote")
        a.wait_vm(tok_cal)
        a("L_novote:", "s_add_u32 s%d, s8, s100" % sV, "s_addc_u32 s%d, s9, 0" % (sV + 1), "s_mov_b32 s%d, s%d" % (sV + 2, sK + 2),
          "s_getreg_b32 s99, hwreg(HW_REG_IB_STS, 0, 4)", "L_entered:")
        if self.probe:
            a("s_memrealtime s[92:93]")
        a('; ---- K / V stream: tile T = 16 rows, LDS-DMA into a 6-slot ring per wave, a bounded number of loads in flight')
        self.tile_issue(1)
        a("s_mov_b32 s%d, 0x20000" % (sV + 3))
        a("v_lshl_add_u32 v%d, v6, 8, v7" % vKR, "v_add_u32 v%d, s%d, v%d" % (vKR, sring, vKR))
        for st in range(1, 4):
            a("v_xor_b32 v%d, %d, v%d" % (vKR + st, st << 6, vKR))
        a("v_lshlrev_b32 v%d, 4, v0" % vA16)
        self.mk_srd(sDBG, 24, "256")
        self.mk_srd(sWS, 26, "0x%x" % WS_SIZE)
        self.mk_srd(sOUT, 22, "4096")
        a("s_add_u32 s%d, s26, 0x%x" % (sXW, OFF_XW), "s_addc_u32 s%d, s27, 0" % (sXW + 1),
          "s_mov_b32 s%d, 0x%x" % (sXW + 2, OFF_TK + len(self.tk) * 4096), "s_mov_b32 s%d, 0x20000" % (sXW + 3))
        if self.stamps:
            a("s_waitcnt lgkmcnt(0)", "v_mov_b32 v4, 0", "v_writelane_b32 v4, s92, 0")
            self.nst = 1
            self.stamp_names.append("entry")
        self.stamp("start")
        a("s_cmp_gt_u32 s99, 4", "s_cselect_b32 s%d, 16, 0" % svote)
        self.setup_b()
        self.setup_c()

    def setup_a(self):
        a = self.a
        self.mk_srd(sXI, 4, "4096")
        self.lin(6, 7, (4, 2, 6), (2, 2, 10), (0, 2, 4))
        self.lin(5, 7, (5, 1, 10), (4, 1, 11), (0, 4, 1))
        a("s_lshl_b32 s100, s%d, 8" % sb, "s_lshl_b32 s101, s%d, 10" % sb, "s_lshl_b32 s%d, s%d, 5" % (stmp, sj),
          "buffer_load_dwordx4 %s, v6, %s, s100 offen" % (q(vX), srd(sXI)),
          "buffer_load_dwordx4 %s, v%d, %s, s101 offen" % (q(vX + 4), vA16, srd(sXI)),
          "buffer_load_ushort v%d, v5, %s, s%d offen" % (vRES, srd(sXI), stmp))

    def early_fill(self):
        a = self.a
        self.sexpr(100, 0, (sj, 32768), (sg, 2048), (sw, 512))
        if not self.tk:
            a("v_mov_b32 v12, v%d" % vA16)
            self.oob_unless(12, 13, "v_cmp_gt_u32 vcc, 32, v0")
            a("buffer_store_dwordx4 v[8:11], v12, %s, s100 offen sc1" % srd(sXW))
            return
        a("v_add_u32 v12, s100, v%d" % vA16)
        self.sexpr(100, OFF_TK - 512, (2, 128))
        a("v_add_u32 v13, s100, v%d" % vA16, "v_cmp_gt_u32 vcc, 32, v0", "v_cndmask_b32 v12, v13, v12, vcc",
          "s_cmp_eq_u32 s%d, 3" % sw, "s_cselect_b32 s100, 40, 32")
        self.oob_unless(12, 13, "v_cmp_gt_u32 vcc, s100, v0")
        a("buffer_store_dwordx4 v[8:11], v12, %s, 0 offen sc1" % srd(sXW),
          "v_mov_b32 v98, 0x%x" % (L_SCR + 512 * self.tkw), "v_mov_b32 v99, %d" % self.th[0], "ds_write_b32 v98, v99", "v_lshlrev_b32 v101, 24, v0")
        self.sexpr(91, 0, (sj, 1), (sg, 3))
        a("s_and_b32 s91, s91, %d" % (256 // self.tkn - 1), "s_lshl_b32 s91, s91, 7", "s_add_u32 s91, s91, 0x%x" % OFF_TK)

    def setup_b(self):
        a = self.a
        self.mk_srd(sWF, sWS, "0")
        self.mk_srd(sWL, sWS, "0x%x" % WS_SIZE)
        G = (sg, 1 << 17)
        self.sexpr(sCS, 2 * LS, G)
        a("s_lshr_b32 s%d, s%d, 1" % (stmp, ss), "s_and_b32 s100, s%d, 1" % ss)
        self.sexpr(sEst, OFF_E, G, (stmp, 1024), (100, 128), (sw, 32), (sb, 256))
        self.sexpr(sEld, OFF_E, G, (sb, 4096), (sw, 1024))
        self.sexpr(sMLld, OFF_ML, G, (sb, 1024))
        a("s_lshr_b32 s%d, s%d, 9" % (sMLst, su), "s_add_u32 s%d, s%d, s%d" % (sMLst, sMLst, sMLld),
          "s_mov_b32 s%d, 0" % slayer, "s_mov_b32 s%d, 0" % sspin, "s_mov_b32 s%d, -2" % scmp,
          "s_mov_b32 s%d, 0x3f80" % sLO, "s_mov_b32 s%d, 0x3f800000" % sHI,
          "s_and_b32 s100, s%d, 3" % ss, "s_cmp_eq_u32 s100, 3", "s_cselect_b32 s%d, 0, 1" % sact,
          "s_cmp_eq_u32 s%d, 3" % sb, "s_cselect_b32 s100, 0, 2", "s_or_b32 s%d, s%d, s100" % (sact, sact),
          "s_bitcmp1_b32 s%d, 0" % sg, "s_cselect_b32 s%d, s%d, 3" % (sact, sact))

    def setup_c(self):
        a = self.a
        G = (sg, 1 << 17)
        a("s_lshr_b32 s%d, s%d, 2" % (stmp, ss), "s_and_b32 s100, s%d, 3" % ss)
        self.sexpr(sAst, OFF_A, G, (sw, 8192), (stmp, 4096), (sb, 1024), (100, 256))
        self.sexpr(sCst, OFF_C, G, (100, 4096), (stmp, 128), (sw, 32), (sb, 256))
        self.sexpr(sAld, OFF_A, G, (sb, 8192), (sw, 2048))
        self.sexpr(sCld, OFF_C, G, (sb, 4096), (sw, 1024))
        self.sexpr(sBst, 0, (su, 8), (sg, 512), (sb, 128))
        self.sexpr(sBld, 0, (sj, 32768))
        a("s_lshr_b32 s%d, s%d, 1" % (stmp, sj), "s_and_b32 s100, s%d, 1" % sj)
        self.sexpr(sXst, OFF_XB, G, (stmp, 256), (100, 32))
        self.sexpr(sXld, OFF_XB, G, (sb, 1024))
        self.sexpr(sRow, OFF_ST, G)
        a("s_mov_b32 s%d, 0xff00ff00" % sM1, "s_mov_b32 s%d, 0xff00ff00" % (sM1 + 1))
        self.lin(vTRV, 7, (2, 1, 12), (4, 2, 10), (3, 1, 8), (4, 1, 7), (2, 1, 6), (3, 1, 5), (0, 2, 3))
        a("v_add_u32 v%d, s%d, v%d" % (vTRV, sring, vTRV))

    def part_off(self, v, t, bs, cmp="0"):
        self.lin(v, t, (4, 2, bs), (0, 4, 1))
        self.even_only(v, t, cmp)

    def group_flag(self, k, val):
        a = self.a
        a("v_mov_b32 v14, %s" % val, "v_add_u32 v15, s%d, v0" % sw, "v_lshlrev_b32 v15, 24, v15")
        self.sexpr(100, 128 * k, (sg, 1 << 17), (sj, 4))
        self.st_intra("buffer_store_dword", "v14", 15, 100)

    def stream(self):
        a = self.a
        lag = self.lag
        t_dl, t_f1, t_l1, t_c1, t_f2, t_l2, t_c2 = self.sync
        wl = {}
        for kind, ts in (("q", self.tq), ("g", self.tg)):
            for k, T in enumerate(ts):
                wl.setdefault(T, []).append((kind, k))
        tqk = max(t_c2 + 2, 16 + lag)
        assert self.clr1 <= t_dl and self.tq[-1] + 2 <= t_c1 and self.tg[-1] + 2 <= t_f2
        pvat = {}
        for p in range(5):
            pvat.setdefault(max(tqk + 3 + (p >> 1), 17 + 2 * p + lag), []).append(p)
        assert min(self.ipf, self.tml, self.tclr) >= tqk + 3 and max(pvat) < 32
        vF = 94
        G17 = "s_lshl_b32 s101, s%d, 17" % sg
        qk = None
        assert self.tml + 2 <= self.tfin <= self.tp5 and max(pvat) <= self.tp5

        def lds_pv(p):
            a("; PV of a group that stays in LDS")
            self.p_read(ORDER.index(p), 16, p & 1)
            if p == self.ogate[0]:
                a("; Wo follows once most of V has landed")
                for k in range(4):
                    a.wait_vm(self.tok[31] - self.ogate[1 + k])
                    self.weight_issue("o", k, 31, 18)
            a.wait_vm(self.tok[17 + 2 * p])
            self.sched(self.lines(self.v_reads, p) + self.lines(self.pv_dense, p, p & 1)
                       + (self.lines(self.o_write, 8, 16, False) if p == 7 else []))
        for T in range(1, 32):
            if T == 16:
                self.lin(5, 7, (4, 2, 8), (0, 4, 4))
                a("v_and_b32 v7, 16, v0", "v_lshlrev_b32 v7, 1, v7", "v_xor_b32 v5, v5, v7", "v_xor_b32 v6, 128, v5")
                self.mk_ai()
            between = None
            if T in (tqk + 1, tqk + 2):
                def between(jj):
                    a(*qk.pop(0))
            if T > 1:
                a("; tile %d (%s)" % (T, "K" if T < 16 else "V"))
            if T > 1:
                self.tile_issue(T, between)
            if T == 1:
                a("; code into L2; wave 0 of workgroup j = 0 resets the kv head's two flag arrays; x quarter, x row and residual slice")
                self.code_prefetch(93, 98, "L_pc0", "L_pc0")
                self.leader_fill()
                if self.tlb:
                    a("; scalar reads of pages that are first used later: their translations are walked now, off the vector path")
                    a("s_cmp_eq_u32 s%d, %d" % (sw, self.tlbw), "s_cbranch_scc0 L_notlb")
                    self.sexpr(100, 0, (sg, 512 * 1024))
                    a("s_lshl_b32 s101, s%d, 20" % sb)
                    for k, base, off in (("v", sV, "0"), ("q", 10, "s101"), ("o", 12, "s100"), ("g", 16, "0"), ("g", 18, "0"), ("d", 20, "0"),
                                         ("x", sOUT, "0"), ("b", sDBG, "128")):
                        if k in self.tlb:
                            a("s_load_dword s93, s[%d:%d], %s" % (base, base + 1, off))
                    if "w" in self.tlb:
                        a("s_mov_b32 s100, 0x%x" % (2 * LS), "s_load_dword s93, s[%d:%d], s100" % (sWS, sWS + 1),
                          "s_mov_b32 s101, 0x%x" % (OFF_TK + 0x8000), "s_load_dword s93, s[%d:%d], s101" % (sXW, sXW + 1))
                    a("L_notlb:")
            for kind, k in wl.get(T, []):
                self.weight_load(kind, k, T)
            if T == self.tfin - 1:
                self.weight_load("o", 0, None, 18)
            if self.stamps is not True and T > 1:
                self.stamp("T%02d" % T)
            if T == 1:
                self.setup_a()
            if T == self.clr1:
                a('; sentinel fill of the first two cross-die slots and of the arrival counters')
                self.early_fill()
            if T - 3 in self.tk:
                a("; early workgroups keep fewer loads in flight, late ones more, so that all finish the stream together")
                assert T < 25 + lag
                a("ds_read_b32 v100, v98", "s_waitcnt lgkmcnt(0)", "v_readfirstlane_b32 s4, v100",
                  "s_cmp_ge_u32 s4, %d" % self.th[0], "s_cselect_b32 s%d, 1, 0" % smode, "s_cmp_ge_u32 s4, %d" % self.th[1],
                  "s_addc_u32 s%d, s%d, 0" % (smode, smode))
            if lag <= T < 26 + lag:
                self.tile_consume(T - lag)
            if T == 2:
                a('; d_debug[g] = 1: flag arrays are reset')
                self.leader_flag(0, "L_nolead1", self.tok_lead)
            if T == t_dl:
                tok_f = self.flag_load(vF, 0, True)
            if T == t_f1:
                a('; flag 1 = die id + probe vote, set after the fills of all four waves; LayerNorm statistics of x[b]')
                self.flag_check(vF, 0, True, tok_f, "L_f0")
                a("s_barrier", "s_getreg_b32 s%d, hwreg(HW_REG_XCC_ID, 0, 4)" % stmp, "s_or_b32 s%d, s%d, s%d" % (stmp, stmp, svote))
                self.group_flag(0, "s%d" % stmp)
                a("v_lshlrev_b32 v%d, 16, v%d" % (vRES, vRES))
                self.stats(vX + 4, 8, True)
            if T in (t_l1, t_l2):
                fld = self.ld(vF, vF + 1, 101, 0 if T == t_l1 else 128, n=1)
                a("v_and_b32 v%d, 31, v0" % (vF + 1), "v_lshlrev_b32 v%d, 2, v%d" % (vF + 1, vF + 1), G17)
                tok_f = a(fld)
            if T == t_c1:
                a('; all 32 flags: same die -> plain stores through L2, else write-through; q partials and Wq column sums; fill of ML / A')
                self.check_or_poll([fld], [[vF]], 7, "xcc", max(tok_f, self.wtok["q"]), [G17])
                a("s_barrier")
                self.w_tiles([("q", vWQ)], 5, 7)
                a("v_cmp_lt_u32 vcc, 15, v%d" % vF, "v_and_b32 v%d, 15, v%d" % (vF, vF),
                  "s_and_b32 s100, vcc_lo, 0x55555555", "s_and_b32 s101, vcc_lo, 0xaaaaaaaa",
                  "s_bcnt1_i32_b32 s100, s100", "s_bcnt1_i32_b32 s101, s101")
                if self.stamps:
                    a("v_writelane_b32 v4, s100, 28", "v_writelane_b32 v4, s101, 29")
                a("s_getreg_b32 s%d, hwreg(HW_REG_XCC_ID, 0, 4)" % svote, "s_sub_u32 s%d, s100, s101" % stmp, "s_sub_u32 s101, s101, s100",
                  "s_bitcmp1_b32 s%d, 2" % svote, "s_cselect_b32 s101, s101, s%d" % stmp, "s_add_u32 s101, s101, 64")
                self.leader_flag(32, "L_nolead2", val="s101")
                if not self.force_slow:
                    a("v_cmp_ne_u32 vcc, s%d, v%d" % (svote, vF), "s_cmp_eq_u64 vcc, 0",
                      "s_cselect_b32 s%d, 0x%x, 0" % (sWF + 2, WS_SIZE), "s_cselect_b32 s%d, 0, 0x%x" % (sWL + 2, WS_SIZE))
                self.part_off(6, 7, 12)
                a("s_lshr_b32 s%d, s%d, 1" % (stmp, ss), "s_and_b32 s%d, s%d, 1" % (sclr, ss))
                self.colsum_pub(vWQ, 12, 16, 10, 11, OFF_CSQ, (stmp, 2048), (sclr, 512))
                self.mk_ix(8)
                self.gemv_zero(vD)
                self.gemv4(vX, vWQ, vD, 8)
                self.sentinels(20)
                self.gemv4_fin(9, vD)
                self.st_intra("buffer_store_dword", "v9", 6, sEst)
                self.fill_intra(24, 7, 20, LS + OFF_ML, 288)
                tok_q = a.mark()
                self.stamp("arrive")
            if T == t_f2:
                a('; flag 2: q partials and fills are visible; gate / up column sums')
                a.wait_vm(max(tok_q, self.wtok["g"]))
                a("s_barrier")
                self.group_flag(1, "1")
                self.w_tiles([("g", vWQ)], 5, 7)
                a("s_lshr_b32 s%d, s%d, 2" % (stmp, ss), "s_and_b32 s%d, s%d, 3" % (sclr, ss))
                self.colsum_pub(vWQ, 16, 20, 10, 11, OFF_CSG, (sclr, 2048), (stmp, 512))
            if T == t_c2:
                a('; fetch the q partials')
                self.check_or_poll([fld], [[vF]], 7, "q1", tok_f, [G17])
                self.colsum_ld(28, OFF_CSQ, sw)
                tok_q = a("v_lshlrev_b32 v7, 2, v0", *self.ld4(24, 7, sEld))
                self.next_region()
                self.stamp("barrier")
            if T == t_c2 + 1:
                self.s_zero()
                self.q_addrs(40, 42, 7)
            if T == tqk:
                a('; q = sum of partials - mean * column sum; QK^T and softmax run between the next loads')
                a.wait_vm(tok_q)
                self.colsum_fin(28, 36)
                self.sum4_init(38, 36)
                self.sum4(24, 38, 38)
                self.q_assemble(38, 40, 42)
                ls, _ = schedule(self.lines(self.qk))
                qk = [ls[len(ls) * k // 4:len(ls) * (k + 1) // 4] for k in range(4)]
            if T == tqk + 1:
                self.ml_off(22, 23)
                self.sexpr(100, L_WD, (sw, 2048))
                self.lin(16, 23, (2, 2, 6), (4, 2, 4))
                a("v_add_u32 v16, s100, v16", "v_lshl_add_u32 v17, v0, 2, s100")
                self.lds_or_zero(16, 23, 3)
                ls, _ = schedule(self.lines(self.softmax, 17, 22))
                qk = [ls[len(ls) * k // 4:len(ls) * (k + 1) // 4] for k in range(4)]
            if T == tqk + 2:
                self.stamp("softmax1")
            for p in pvat.get(T, ()):
                a('; PV of one 32-key group')
                self.p_read(ORDER.index(p), 16, p & 1)
                a("s_waitcnt lgkmcnt(0)")
                self.pv_dense(p, p & 1)
            for c, tw in enumerate(self.tk):
                if T == tw + 2:
                    a("s_cmp_eq_u32 s%d, %d" % (sw, self.tkw), "s_cbranch_scc0 L_tkb%d" % c)
                    a.wait_vm(tok_tk)
                    a("v_readfirstlane_b32 s4, v99", "s_add_u32 s4, s4, 1", "v_mov_b32 v99, s4", "ds_write_b32 v98, v99", "L_tkb%d:" % c)
                if T == tw:
                    a("; arrival rank among eight workgroups, one per kv head")
                    tok_tk = a.mark()
                    a("s_cmp_eq_u32 s%d, %d" % (sw, self.tkw), "s_cbranch_scc0 L_tka%d" % c, "v_mov_b32 v99, 1",
                      "buffer_atomic_add v99, v101, %s, s91 offen sc0 sc1" % srd(sXW), "s_add_u32 s91, s91, 4096", "L_tka%d:" % c)
                    a.uncounted(tok_tk)
            if T == self.ipf:
                self.code_prefetch(80, 4, "L_pc1", "L_tail")
            if T == self.tml:
                ml1 = [self.ld(64, vA16, sMLld)]
                a(*ml1)
                tok_warm = self.flag_load(70, 32, False)
            if T == self.tclr:
                a('; sentinel fill of the remaining per-head slots')
                self.sentinels(72)
                self.fill_intra(76, 77, 72, OFF_C, 352)
                self.fill_intra(78, 77, 72, LS, 480)
            if T == self.tfin:
                a('; all eight heads have filled their cross-die slots; summed votes pick the near copy')
                self.flag_check(70, 32, False, tok_warm, "L_f1")
                for k in (1, 2, 4):
                    self.dpp("v_add_u32", 70, 70, 70, "row_ror:%d" % k)
                a("v_readfirstlane_b32 s100, v70", "s_cmpk_ge_u32 s100, 512", "s_cselect_b32 s100, 0, 4", "s_xor_b32 s100, s100, s%d" % svote,
                  "s_bitcmp1_b32 s100, 2", "s_cselect_b32 s100, %s" % {1: "0x2000, 0", 2: "0, 0x2000"}[self.near],
                  "s_add_u32 s%d, s%d, s100" % (sBld, sBld), "s_add_u32 s%d, s%d, s100" % (sB2, sBst), "s_xor_b32 s%d, s%d, 0x2000" % (sBst, sB2))
                self.check_or_poll(ml1, [range(64, 68)], 69, "ml1", tok_warm)
                self.ml_finish(64)
                self.o_addr()
                a("s_mov_b32 s%d, 1" % slayer)
                a(*[x for x in self.lines(self.weight_load, "d", 0, None, 62) if x.startswith("s_")])
            if T == self.tp5:
                lds_pv(5)
        self.stamp("issued")
        for p in (5, 6, 7):
            if p > 5 or self.tp5 > 31:
                lds_pv(p)
        self.n_after_o = min(a.mark() - self.wtok["o"], 60)
        self.stamp("pv1")

    def code_prefetch(self, v, sp, here, start):
        a = self.a
        a("s_getpc_b64 s[%d:%d]" % (sp, sp + 1), here + ":")
        if start != here:
            a("s_add_u32 s%d, s%d, %s-%s" % (sp, sp, start, here), "s_addc_u32 s%d, s%d, 0" % (sp + 1, sp + 1))
        self.sexpr(100, 0, (sj, 512), (sw, 128))
        a("s_min_u32 s100, s100, L_codeend-%s-4" % start, "v_mov_b32 v%d, s100" % v, "global_load_dword v%d, v%d, s[%d:%d]" % (v, v, sp, sp + 1))

    def touch_addr(self, v, t, parts):
        a = self.a
        a("v_mov_b32 v%d, 0x%x" % (v, OOB), "v_lshl_add_u32 v%d, v0, 2, s%d" % (t + 1, sw))
        hi = sum(n for _, n in parts)
        for start, n in reversed(parts):
            self.sexpr(100, start - 128 * (hi - n), (sg, 1 << 17), (sj, 128 * n))
            a("v_lshl_add_u32 v%d, v%d, 7, s100" % (t, t + 1), "v_cmp_gt_u32 vcc, %d, v%d" % (hi, t + 1),
              "v_cndmask_b32 v%d, v%d, v%d, vcc" % (v, v, t))
            hi -= n

    def touch(self, v):
        return self.a("buffer_load_dword v%d, v%d, %s, 0 offen sc1" % (v, v, srd(sWS)))

    def fill_cross(self, d, hop):
        self.sentinels(d)
        self.lin(d + 4, d + 5, (4, 2, 15), (3, 1, 13), (0, 3, 4))
        self.sexpr(100, (hop >> 1) * 0x4000 + (hop & 1) * 0x1000, (ss, 1 << 17), (sg, 512), (sb, 128))
        self.a("buffer_store_dwordx4 %s, v%d, %s, s100 offen sc1" % (q(d), d + 4, srd(sXW)))

    def st_cross(self, v):
        a = self.a
        for so in (sBst, sB2):
            a("buffer_store_dword v%d, v95, %s, s%d offen sc1" % (v, srd(sXW), so))

    def red_loads(self, x, soff):
        return [self.ld(x + 4 * i, vA16, soff, i * 1024, rs=sXW) for i in range(4)]

    def prep_split(self, name, work, loads):
        a = self.a
        n = self.at[name][0]
        while n < len(work) and work[n].startswith(("s_cselect", "s_addc", "s_cbranch")):
            n += 1
        a(*work[:n])
        a("s_cmp_eq_u32 s%d, 0" % sw, "s_cbranch_scc0 L_%s_n" % name)
        self.idle(n - len(work))
        a(*loads)
        a("L_%s_n:" % name, *work[n:])
        self.est += (name, len(work))

    def reduce_x(self, name, x, d, soff):
        a = self.a
        self.poll(self.red_loads(x, soff), [range(x + 4 * i, x + 4 * i + 4) for i in range(4)], 7, name,
                  spec=lambda i: self.mfma(d, q(x + 4 * i), q(vSEL), i > 0), again=self.kx)
        m = "s[%d:%d]" % (sM1, sM1 + 1)
        a("v_cndmask_b32 v%d, v%d, v%d, %s" % (d, d, d + 1, m), "v_cndmask_b32 v%d, v%d, v%d, %s" % (d + 2, d + 2, d + 3, m),
          "v_permlane32_swap_b32 v%d, v%d" % (d, d + 2), "v_add_f32 v%d, v%d, v%d" % (vRES, vRES, d),
          "v_add_f32 v%d, v%d, v%d" % (vRES, vRES, d + 2))
        self.pack_pairs(7, vRES)

    def x_off(self, v, t, bs):
        self.lin(v, t, (5, 1, bs), (4, 1, bs + 1), (0, 4, 1))
        self.even_only(v, t)

    def layer1(self, name):
        self.a("s_cmp_eq_u32 s%d, 1" % slayer, "s_cbranch_scc0 " + name)

    def chain(self):
        a = self.a
        a("L_tail:")
        a('; ---- attention output: sum over the four waves, publish per head')
        self.lin(23, 6, (2, 4, 4), (1, 1, 8), (0, 1, 3))
        self.sexpr(sclr, L_SCR, (sw, 2048))
        a("v_add_u32 v23, s%d, v23" % sclr, "s_waitcnt lgkmcnt(0)", "s_barrier")
        for src in range(4):
            a("ds_read_b64 %s, v23 offset:%d" % (q(8 + 2 * src, 2), src * 512))
        a("v_lshlrev_b32 v17, 2, v0", "s_mov_b32 m0, s%d" % sclr)
        self.lin(56, 16, (2, 2, 9), (4, 2, 7), (2, 2, 5), (0, 2, 3))
        a("s_lshl_b32 s100, s%d, 5" % sw, "v_xor_b32 v56, s100, v56", "v_add_u32 v56, 0x%x, v56" % L_WO)
        a("s_waitcnt lgkmcnt(2)", "v_pk_add_f32 v[8:9], v[8:9], v[10:11]", "s_waitcnt lgkmcnt(0)", "v_pk_add_f32 v[12:13], v[12:13], v[14:15]",
          "v_pk_add_f32 v[8:9], v[8:9], v[12:13]", "v_cvt_pk_bf16_f32 v7, v8, v9")
        self.st_intra("buffer_store_dword", "v7", 17, sAst)
        self.stamp("Apub", True)
        if self.stamps:
            a("s_mov_b32 m0, s%d" % sclr)
        a("v_lshrrev_b32 v5, 4, v0", "v_and_b32 v6, 15, v0", "v_xor_b32 v16, v5, v6", "v_lshlrev_b32 v16, 4, v16",
          "v_lshl_add_u32 v18, v5, 8, v16", "s_and_b32 s100, s%d, 1" % sw, "s_lshl_b32 s100, s100, 7", "v_xor_b32 v18, s100, v18",
          "v_xor_b32 v19, 64, v18")
        lda = ["buffer_load_dwordx4 v%d, %s, s%d offen offset:%d sc1 lds" % (18 + h, srd(sWS), sAld, h * 1024) for h in range(2)]

        def prep_a():
            a = self.a
            a("v_lshl_add_u32 v20, v6, 8, v16", "v_add_u32 v20, 0x%x, v20" % L_SCR)
            for st in range(1, 4):
                a("v_xor_b32 v%d, %d, v20" % (20 + st, st << 6))
            a("v_add_u32 v5, s%d, v%d" % (sclr, vA16), "v_lshlrev_b32 v95, 1, v0")
            self.even_only(95, 6)
            a(*[x for x in self.lines(self.weight_load, "d", 0, None, 62) if x.startswith("v_")])
            self.touch_addr(59, 60, T1)
        n = self.with_loads("pollA", self.lines(prep_a), lda)
        a("s_waitcnt vmcnt(%d)" % (1 + 2 * n + self.n_after_o), "s_barrier")
        for st in range(4):
            for h in range(2):
                a("ds_read_b64_tr_b16 %s, v56 offset:%d" % (q(24 + 4 * st + 2 * h, 2), st * 4096 + h * 2048))
        a("s_branch L_pollA_w", "L_pollA:", *lda)
        a(*self.spin_count())
        a("L_pollA_w:", "s_waitcnt vmcnt(%d)" % (2 * n - 1), "ds_read_b128 v[8:11], v5", "s_waitcnt vmcnt(%d)" % (2 * n - 2),
          "ds_read_b128 v[12:15], v5 offset:1024")
        ck = self.lines(self.check, [range(8, 12), range(12, 16)], 7, 0)
        a("s_waitcnt lgkmcnt(1)", *ck[:2], "s_waitcnt lgkmcnt(0)", *ck[2:])
        a("s_cbranch_vccnz L_pollA")
        if self.stamps is not True:
            self.stamp("pollA", True)
        a("s_barrier")
        ops = [40, 44, 48, 52, 64, 68, 72, 76]
        rd = ["ds_read_b128 %s, v%d offset:%d" % (q(ops[k]), 20 + (k >> 1), (k & 1) * 4096) for k in range(8)]
        m = self.oahead
        a(*rd[:m])
        self.late_loads("L_l1b")
        for k in range(8):
            a("s_waitcnt lgkmcnt(%d)" % (min(8, m + k) - k - 1))
            self.mfma(8, q(ops[k]), q(24 + 4 * (k >> 1)), k > 0)
            if m + k < 8:
                a(rd[m + k])
        a("v_add_f32 v8, v8, v9", "v_add_f32 v10, v10, v11", "v_add_f32 v8, v8, v10")
        self.pack_pairs(7, 8)
        self.st_cross(7)
        self.stamp("Bpub", True)
        self.colsum_ld(80, OFF_CSG, sb)
        self.layer1("L_l1c")
        self.colsum_ld(24, OFF_CSQ, sw)
        a("L_l1c:")
        wt = self.lines(self.w_tiles, [("d", vWD)], 91, 7)

        def prep_b():
            a = self.a
            self.w_tiles([("g", vWG), ("q", vWQ)], 5, 7)
            a("v_and_b32 v5, 1, v0", "v_lshlrev_b32 v5, 4, v5", "v_lshlrev_b32 v5, v5, s%d" % sLO, "v_bfe_u32 v6, v0, 1, 2")
            for r in range(4):
                a("v_cmp_eq_u32 vcc, %d, v6" % r, "v_cndmask_b32 v%d, 0, v5, vcc" % (vSEL + r))
            self.x_off(94, 7, 6)
            self.st_off(93, 7)
            a("s_bitcmp1_b32 s%d, 0" % sact, "s_cselect_b32 s%d, 0, -1" % stmp)
            self.part_off(92, 7, 10, "s%d" % stmp)
            self.lin(89, 7, (0, 5, 2), (5, 1, 1))
            self.sexpr(100, L_H, (sw, 128))
            a("v_add_u32 v89, s100, v89")
            self.mk_ix(90)
            self.lin(88, 7, (2, 2, 7), (0, 1, 4), (4, 2, 5))
            a("v_add_u32 v88, 0x%x, v88" % L_H)
            a(*[x for x in wt if not x.startswith("ds_")])
            self.sexpr(stmp, 0, (sRow, 1), (sw, 256))
            self.sexpr(sclr, 0, (sRow, 1), (sj, 4))
            a("s_add_u32 s%d, s%d, 0x1000" % (sBst, sBst), "s_add_u32 s%d, s%d, 0x1000" % (sB2, sB2))
        self.prep_split("pollB", self.lines(prep_b), self.red_loads(vX, sBld))
        aux = [self.ld(vX + 4, 91, stmp, n=1)]
        a("s_waitcnt lgkmcnt(0)", "s_cmp_eq_u32 s%d, 0" % sw, "s_cbranch_scc0 L_nored1")
        self.cold += (["L_nored1:", "s_lshl2_add_u32 s100, s%d, s%d" % (slayer, sw), "s_cmp_eq_u32 s100, 5", "s_cbranch_scc0 L_nof2"]
                      + self.lines(self.fill_cross, vX + 8, 2) + ["L_nof2:", "s_waitcnt vmcnt(0)", "s_branch L_red1"])
        self.reduce_x("pollB", vX, vD, sBld)
        self.st_intra("buffer_store_dword", "v7", 94, sXst)
        a("v_lshlrev_b32 v%d, 16, v7" % vRES)
        self.stamp("XBpub", True)
        a("L_red1:", "s_barrier")
        ldx = [self.ld(vX, vA16, sXld)]
        work, _ = schedule(self.lines(self.colsum_fin, 24, vCQ) + self.lines(self.colsum_fin, 80, vCG) + self.lines(self.gemv_zero, vD)
                           + [x + " ; prio=100" for x in self.lines(self.slice_sums, 5, 93, sclr)])
        k = max(i for i, x in enumerate(work) if "_dpp" in x) + 1
        ex = int(self.at["pollXB"][0] <= k)
        work[k:k] = self.lines(self.st_intra, "buffer_store_dword", "v5", 93, sclr)
        self.with_loads("pollXB", work, ldx)
        a(*[x for x in wt if x.startswith("ds_")])
        a("v_lshlrev_b32 v91, 2, v0")
        self.poll(ldx, [range(vX, vX + 4)], 7, "pollXB", self.lines(self.gemv4, vX, vWG, vD, 90), self.lines(self.gemv_zero, vD), extra=ex)
        a(*aux)
        self.gemv4_fin(6, vD)
        self.st_intra("buffer_store_dword", "v6", 92, sCst)
        self.stamp("Cpub", True)
        a("v_mov_b32 v5, 0", "s_bitcmp1_b32 s%d, 1" % sact, "s_cbranch_scc0 L_nod")
        ldc = self.ld4(vX, 91, sCld)
        st = self.lines(self.stats_fin, vX + 4, vD, False) + self.lines(self.sum4_init, vD + 2, vCG)
        self.stats_poll("pollC", aux, vX + 4, st, ldc)
        self.poll(ldc, [range(vX, vX + 4)], 7, "pollC", self.lines(self.sum4, vX, vD, vD + 2))
        a("v_permlane32_swap_b32 v%d, v%d" % (vD, vD + 1), "v_mul_f32 v%d, s%d, v%d" % (vD, sSC, vD),
          "v_mul_f32 v%d, v%d, v%d" % (vD, vD, vD + 1), "v_cvt_pk_bf16_f32 v%d, v%d, v%d" % (vD, vD, vD),
          "ds_write_b16 v89, v%d" % vD, "v_mov_b64 %s, 0" % q(vD + 4, 2), "s_waitcnt lgkmcnt(0)", "s_barrier", "ds_read_b128 %s, v88" % q(vX + 4), "s_waitcnt lgkmcnt(0)")
        self.smf(vD + 4, q(vX + 4), q(vWD, 8), 90)
        a("v_add_f32 v7, v%d, v%d" % (vD + 4, vD + 5))
        self.pack_pairs(5, 7)
        a("L_nod:")
        self.st_cross(5)
        self.stamp("Dpub", True)
        a("s_add_u32 s%d, s%d, 0x1000" % (stmp, sBld))
        self.layer1("L_last")
        a('; ---- operands of the second attention while the cross-die partials travel')
        a("s_waitcnt vmcnt(2) lgkmcnt(0)")

        def prep_d():
            a = self.a
            a("v_mov_b32 v28, v94", "v_mov_b32 v30, v93", "s_add_u32 s%d, s%d, 0x3000" % (sBst, sBst),
              "s_add_u32 s%d, s%d, 0x3000" % (sB2, sB2), "s_add_u32 s%d, s%d, 0x4000" % (sBld, sBld))
            self.mk_ai()
            self.s_zero()
            self.part_off(29, 7, 12)
            self.q_addrs(31, 48, 7)
            self.lin(5, 7, (2, 2, 6), (5, 1, 8), (4, 1, 5), (0, 1, 4))
            self.sexpr(100, L_WQ, (sw, QSTR))
            a("v_add_u32 v5, s100, v5")
            self.lds_or_zero(5, 7, 2)
            self.ml_off(6, 7)
            self.sexpr(98, 1024, (sRow, 1), (sb, 256))
            self.sexpr(sWl, 1024, (sRow, 1), (sj, 4))
            self.sexpr(sWo, 0, (sg, 1 << 17), (sj, 2048), (sw, 512))
            a("s_add_u32 s%d, s%d, 0x%x" % (sclr, sXst, OFF_XD - OFF_XB), "s_add_u32 s99, s%d, 0x%x" % (sXld, OFF_XD - OFF_XB))
        self.prep_split("pollD", self.lines(prep_d), self.red_loads(8, stmp))
        a("s_waitcnt lgkmcnt(0)", "s_cmp_eq_u32 s%d, 0" % sw, "s_cbranch_scc0 L_fill3", "L_redd:")
        self.cold += ["L_fill3:", "s_cmp_eq_u32 s%d, 1" % sw, "s_cbranch_scc0 L_nored2"] + self.lines(self.fill_cross, 16, 3) + ["s_branch L_nored2"]
        self.reduce_x("pollD", 8, 24, stmp)
        self.st_intra("buffer_store_dword", "v7", 28, sclr)
        a("s_cmp_eq_u32 s%d, 2" % slayer, "s_cbranch_scc1 L_out")
        a("v_lshlrev_b32 v%d, 16, v7" % vRES)
        self.stamp("XDpub")
        a("L_nored2:", "s_barrier")
        row = [self.ld(24, 28, 98, n=1)]
        ldx = [self.ld(52, vA16, 99)]
        work = self.lines(self.slice_sums, 26, 30, sWl)
        ex = int(self.at["pollXD"][0] <= len(work))
        work += self.lines(self.st_intra, "buffer_store_dword", "v26", 30, sWl) + ["v_lshlrev_b32 v28, 2, v0"]
        n = self.with_loads("pollXD", work, ldx)
        a("s_waitcnt vmcnt(%d)" % (n + 2))
        self.gemv_zero(8)
        self.poll(ldx, [range(52, 56)], 7, "pollXD", self.lines(self.gemv4, 52, vWQ, 8, vIX), self.lines(self.gemv_zero, 8), extra=ex)
        a(*row)
        self.gemv4_fin(10, 8)
        self.st_intra("buffer_store_dword", "v10", 29, sEst)
        self.stamp("Epub")
        lde = self.ld4(52, 28, sEld)
        st = self.lines(self.stats_fin, 24, 32, True) + self.lines(self.sum4_init, 34, vCQ)
        self.stats_poll("pollE", row, 24, st, lde)
        self.poll(lde, [range(52, 56)], 7, "pollE", self.lines(self.sum4, 52, 32, 34))
        self.stamp("Eget")
        rd = self.q_assemble(32, 31, 48, self.lines(self.next_region) + ["s_mov_b32 s%d, 2" % slayer]
                             + ["v_min_u32 v38, 3, v0", "v_lshlrev_b32 v38, 7, v38"])
        a(self.ld(38, 38, sWo, n=1))
        for i in range(7):
            a("v_mov_b64 %s, 0" % q(vO + 4 * i, 2))
        if self.stamps is not True:
            self.stamp("qrdy")
        a('; ---- second attention, keys and values already on chip')
        x = 128
        ldm = [self.ld(x, vA16, sMLld)]

        def att():
            a = self.a
            self.qk()
            a("s_waitcnt vmcnt(1) ; guards=v[52:55] after=v%d" % (vS + 20))
            a("v_subrev_u32 v23, 0x%x, v31" % (L_Q - L_WQ))
            a("v_mov_b64 %s, 0" % q(vO + 28, 2))
            self.softmax(23, 6)
            self.o_addr()
            for h in range(2):
                self.v_reads(5 + h, lambda i, e: q(8 * i + 4 * h + 2 * e, 2, "a"))
            self.v_reads(7)
            for n in range(4):
                self.p_read(2 * n, 5, n & 1)
                for i in range(8):
                    B = q(128 + 64 * n + 8 * i, 8) if n < 2 else q(8 * i, 8, "a") if n == 2 else "vp[%d]" % i
                    self.smf(vO + 4 * i, q(vQ + 4 * (n & 1)), B)
                    if n == i == 0:
                        for d in self.mlat:
                            a(ldm[0] + " ; lat=%d tail=%d" % (d, self.mltail))
        ls = [x + " prio=%d" % self.p0 if x.endswith("mem=p0") else x for x in self.lines(att)]
        cut = len(ls) - self.mlcut
        out, t1 = schedule(ls[:cut], rd)
        if self.stamps and self.stamps is not True:
            k = max(i for i, x in enumerate(out) if x.startswith("buffer_store")) + 1
            out[k:k] = self.lines(self.stamp, "mlpub")
            k = min(i for i, x in enumerate(out) if x.startswith("v_pk_fma"))
            out[k:k] = self.lines(self.stamp, "maxed")
        a(*out)
        a("s_waitcnt lgkmcnt(0)")
        if self.stamps is not True:
            self.stamp("pv2a")
        L = a.lab("ml2")
        a(L + "_w:")
        fin = ["v_sub_f32 v58, v%d, v20" % x, "v_sub_f32 v59, v%d, v20" % (x + 2), "v_exp_f32 v58, v58", "v_exp_f32 v59, v59",
               "v_mul_f32 v7, v58, v%d" % (x + 1), "v_fmac_f32 v7, v59, v%d" % (x + 3)] + self.lines(self.ml_finish, x)[6:]
        self.check([range(x, x + 4)], 6, len(self.mlat))
        a(*fin[:3])
        a("s_cbranch_vccnz " + L)
        fin = fin[3:]
        if self.stamps is not True:
            self.stamp("mlget")
        t2 = self.sched([x + " ; prio=200" for x in fin] + ls[cut:] + self.lines(self.o_write, 8, 60, True))
        self.est += (t1, t2)
        self.stamp("pv2")
        a("s_branch L_tail", L + ":", *ldm)
        a(*self.spin_count())
        a("s_branch %s_w" % L)
        a('; ---- last layer: one workgroup per slice reduces the partials and writes d_out; the first read follows the acknowledgement of its own stores')
        a("L_last:", "s_lshr_b32 s100, s%d, 2" % sj, "s_xor_b32 s100, s100, s%d" % sg, "s_or_b32 s100, s100, s%d" % sw,
          "s_cmp_eq_u32 s100, 0", "s_cbranch_scc0 L_fin")
        self.x_off(28, 7, 10)
        self.mk_srd(sWF, sOUT, "4096")
        a("s_lshl_b32 s%d, s%d, 5" % (sclr, sj))
        a("s_waitcnt vmcnt(0)")
        a(*self.red_loads(8, stmp))
        a("s_branch L_redd")
        a("L_out:")
        if self.probe:
            self.stamp("out")
            k0, k = map(self.stamp_names.index, self.probe[:2])
            a("v_readlane_b32 s100, v4, %d" % k, "v_readlane_b32 s101, v4, %d" % k0, "s_sub_u32 s100, s100, s101", "s_mul_i32 s100, s100, %d" % self.probe[2],
              "s_min_u32 s100, s100, 100000", "s_memrealtime s[0:1]", "s_waitcnt lgkmcnt(0)", "s_mov_b32 s101, s0",
              "L_probe:", "s_memrealtime s[0:1]", "s_waitcnt lgkmcnt(0)", "s_sub_u32 s0, s0, s101", "s_cmp_lt_u32 s0, s100",
              "s_cbranch_scc1 L_probe")
        a("L_fin:")
        if self.stamps and not self.probe:
            self.stamp("end")
            a("s_lshl_b32 s100, s2, 2", "s_add_u32 s100, s100, s%d" % sw, "s_lshl_b32 s100, s100, 7",
              "s_add_u32 s100, s100, 0x%x" % (STAMP_OFF - 2 * LS), "s_mov_b32 s%d, 0x1000000" % (sWS + 2),
              "v_writelane_b32 v4, s%d, 30" % sspin, "v_writelane_b32 v4, s%d, 31" % (sWF + 2),
              "v_lshlrev_b32 v9, 2, v0", "v_cmp_gt_u32 vcc, 32, v0", "s_and_saveexec_b64 s[98:99], vcc",
              "buffer_store_dword v4, v9, %s, s100 offen sc1" % srd(sWS))
        a("L_end:", "s_endpgm")
        a(*self.cold)
        a("L_codeend:")

    def build(self):
        self.prologue()
        self.stream()
        self.chain()
        if self.jall:
            old, self.a = self.a.l, Asm()
            on = False
            for k, i in enumerate(old):
                on = on or i.label == "L_entered"
                hit = i.op == "s_barrier" or old[k - 1].op == "s_barrier" or (i.vmem and " nt" not in i.text) or i.op.startswith("ds_write") \
                    or (i.ds and not old[k - 1].ds and not old[k - 1].mfma)
                if on and hit and i.op:
                    L = "L_ja%d" % k
                    self.a("s_cselect_b32 s92, 1, 0", "s_memtime s[0:1]", "s_waitcnt lgkmcnt(0)", "s_mul_i32 s0, s0, 0x9e3779b1",
                           "s_lshr_b32 s0, s0, %d" % (32 - self.jall[0]), "s_cmp_eq_u32 s0, 0", "s_cbranch_scc0 " + L,
                           *["s_sleep %d" % self.jall[1]] * self.jall[2], L + ":", "s_cmp_eq_u32 s92, 1")
                self.a.l.append(i)
        self.a.pad()
        if self.win:
            self.est += align(self.a, self.win, "L_entered")
        head = open("cdna_kernels/" + KNAME[:-7] + ".s.ref").read().split("; Override launch")[0]
        return (head + "; @launch grid=(256,1,1) block=(256,1,1) lds=163840\n" + ABOUT +
                '.amdgcn_target "amdgcn-amd-amdhsa--gfx950"\n.text\n.globl %s\n.p2align 8\n.type %s,@function\n%s:\n' % (KNAME, KNAME, KNAME)
                + self.a.text() +
                '.section .rodata,"a"\n.p2align 6\n.amdhsa_kernel %s\n  .amdhsa_next_free_vgpr 512\n  .amdhsa_next_free_sgpr 102\n'
                "  .amdhsa_accum_offset 256\n  .amdhsa_group_segment_fixed_size 0\n  .amdhsa_kernarg_size 96\n"
                "  .amdhsa_user_sgpr_count 2\n  .amdhsa_user_sgpr_kernarg_segment_ptr 1\n  .amdhsa_system_sgpr_workgroup_id_x 1\n"
                ".end_amdhsa_kernel\n" % KNAME)


if __name__ == "__main__":
    out = sys.argv[1]
    kw = eval("dict(%s)" % (sys.argv[2] if len(sys.argv) > 2 else ""))
    g = Gen(**kw)
    s = g.build()
    open(out, "w").write(s)
    if len(sys.argv) > 3:
        print("estimated attention cycles", g.est)
    if g.stamps:
        open(out[:-2] + ".names", "w").write("\n".join(g.stamp_names))
```

```python
import struct
import sys
from asmlib import Asm, align, schedule

KNAME = "interleave_layers__gqa_block_cached__glu_gated_bilinear__decode_kernel"

LS = 1 << 20
OFF_ML, OFF_A, OFF_C, OFF_XB, OFF_ST, OFF_XD, OFF_E = 0, 4 << 10, 36 << 10, 52 << 10, 56 << 10, 60 << 10, 64 << 10
OFF_CSG, OFF_CSQ = 60 << 10, 68 << 10
WS_SIZE = 3 * LS
T1 = [(OFF_C, 11), (LS + OFF_ML, 1)]
OFF_TK = 1 << 20
OFF_XW = 5 << 20
STAMP_OFF = 8 << 20
OOB = 0x7FFF0000

RING = 24576
L_WQ = 4 * RING
L_WO = L_WQ + 16384
L_WG = L_WO + 16384
L_WD = L_WG + 16384
L_SCR = L_WD + 8192
L_H = L_SCR + 1024
L_Q, QSTR = L_SCR + 1536, 2112
L_OOB = 0x30000
assert L_SCR + 8192 == 163840

sK, sV, sWS, sWF, sWL, sOUT, sDBG, sXI, sT = 28, 32, 36, 40, 44, 48, 52, 56, 96
sw, sg, sj, sb, ss, su, sring, srot, stmp, slayer = range(60, 70)
(sMLst, sMLld, sAst, sAld, sBst, sBld, sXst, sXld, sCst, sCld, sCS, sS1, sSC, sRow, sEst, sEld) = range(70, 86)
sWo, sWl = 86, 87
sM1, smode = 88, 90
sspin, scmp = 94, 95
sclr, slead, sact = 3, 14, 15
sLO, sHI = 6, 7
sXW, sB2, svote = 24, 23, 22
sWo2, sWl2 = 8, 9
SPIN_LIMIT = 1 << 18

vL, vA16, vTRV, vRES = 0, 1, 2, 3
vQ, vO, vIX, vAI, vS = 8, 24, 56, 56, 64
vWG, vWD, vWQ, vCG, vCQ, vSEL, vX, vD = 8, 24, 32, 48, 50, 52, 56, 72
vKS, vKR = 240, 244
ORDER = [0, 1, 2, 3, 5, 6, 7, 4]
SLOT = {5: 2, 6: 4, 7: 0}
SCALE = 128 ** -0.5 * 1.4426950408889634
ONES = "0x3f803f80"


def f32(x):
    return "0x%08x" % struct.unpack("<I", struct.pack("<f", x))[0]


def q(r, n=4, k="v"):
    return "%s[%d:%d]" % (k, r, r + n - 1)


def srd(r):
    return "s[%d:%d]" % (r, r + 3)


ABOUT = """;
; One persistent workgroup per CU: workgroup i owns kv head g = i & 7, batch b = i >> 6 and key split s = (i >> 3) & 7.
; Hand-offs go through d_ws slots that are first filled with 0xFFFFFFFF inside this launch and then read until no such word
; Two choices affect speed only: which of the two copies is read (probe reads at entry) and how many stream loads a
; workgroup keeps in flight (arrival rank at two points of the stream).
"""


class Gen:
    def __init__(self, depth=6, d0={5: 8, 6: 8}, burst=4, lag=2, tq=(2, 2, 3, 3), tg=(6, 6, 7, 7), ogate=(7, 3, 3, 3, 3),
                 sync=(4, 6, 9, 11, 13, 16, 18), clr1=4, ipf=24, tclr=25, tml=27, tfin=29, tp5=30,
                 dbl="pollXB,pollC,pollXD,pollE", at={}, kx=1, nst_=2, oahead=4, mlat=(208, 84), mltail=500, mlcut=1, p0=400,
                 win=32, near=1, force_slow=False, stamps=False, cyc=False, probe=None, jitter=None, jall=None, tk=(14, 22), tkn=8, tkw=1, th=(3, 6), lv=((5, 6, 7),)):
        self.__dict__.update(locals())
        self.a = Asm()
        self.nst = 0
        self.cold = []
        self.nslow = 0
        self.est = ()
        self.at = dict(pollA=(18, 34), pollB=(88,), pollXB=(8, 17), pollC=(0, 11), pollD=(84,), pollXD=(2, 10), pollE=(0, 11))
        self.at.update(at)
        self.stamp_names = []

    def stamp(self, name, per_layer=False):
        if self.jitter:
            self.nslow += 1
            L = "L_jit%d" % self.nslow
            self.a("s_memtime s[0:1]", "s_waitcnt lgkmcnt(0)", "s_mul_i32 s0, s0, 0x9e3779b1", "s_lshr_b32 s0, s0, %d" % (32 - self.jitter[0]),
                   "s_cmp_eq_u32 s0, 0", "s_cbranch_scc0 " + L, *["s_sleep %d" % self.jitter[1]] * self.jitter[2], L + ":")
            return
        if not self.stamps or (self.stamps is not True and name not in self.stamps):
            return
        a = self.a
        k = self.nst
        self.nst += 2 if per_layer else 1
        assert self.nst <= 28
        a("%s s[0:1]" % ("s_memtime" if self.cyc else "s_memrealtime"), "s_waitcnt lgkmcnt(0)")
        if per_layer:
            self.stamp_names += [name + "/1", name + "/2"]
            a("s_add_u32 m0, s%d, %d" % (slayer, k - 1), "v_writelane_b32 v4, s0, m0")
        else:
            self.stamp_names.append(name)
            a("v_writelane_b32 v4, s0, %d" % k)

    def mk_srd(self, d, p, size):
        self.a("s_mov_b32 s%d, s%d" % (d, p), "s_mov_b32 s%d, s%d" % (d + 1, p + 1),
               "s_mov_b32 s%d, %s" % (d + 2, size), "s_mov_b32 s%d, 0x20000" % (d + 3))

    def lin(self, d, t, *terms):
        first = True
        for sh, bits, sc in terms:
            r = d if first else t
            if sh + bits >= 6:
                src = vL
                if sh:
                    self.a("v_lshrrev_b32 v%d, %d, v0" % (r, sh)); src = r
            elif sh == 0:
                self.a("v_and_b32 v%d, %d, v0" % (r, (1 << bits) - 1)); src = r
            else:
                self.a("v_bfe_u32 v%d, v0, %d, %d" % (r, sh, bits)); src = r
            if first:
                if sc or src != d:
                    self.a("v_lshlrev_b32 v%d, %d, v%d" % (d, sc, src))
            else:
                self.a("v_lshl_add_u32 v%d, v%d, %d, v%d" % (d, src, sc, d))
            first = False

    def sexpr(self, d, const, *terms):
        a = self.a
        first = True
        for reg, mult in terms:
            r = d if first else 101
            if mult & (mult - 1) == 0:
                a("s_lshl_b32 s%d, s%d, %d" % (r, reg, mult.bit_length() - 1))
            else:
                a("s_mul_i32 s%d, s%d, %d" % (r, reg, mult))
            if not first:
                a("s_add_u32 s%d, s%d, s101" % (d, d))
            first = False
        if const:
            a("s_add_u32 s%d, s%d, 0x%x" % (d, d, const))

    def oob_unless(self, v, t, cond):
        self.a(cond, "v_mov_b32 v%d, 0x%x" % (t, OOB), "v_cndmask_b32 v%d, v%d, v%d, vcc" % (v, t, v))

    def even_only(self, v, t, cmp="0"):
        self.a("v_and_b32 v%d, 1, v0" % t)
        self.oob_unless(v, t, "v_cmp_eq_u32 vcc, %s, v%d" % (cmp, t))

    def st_intra(self, op, data, voff, soff, both=False):
        a = self.a
        slow = "%s %s, v%d, %s, s%d offen sc1" % (op, data, voff, srd(sWL), soff)
        a("%s %s, v%d, %s, s%d offen" % (op, data, voff, srd(sWF), soff))
        if both:
            tk = a.mark()
            a(slow)
            a.uncounted(tk)
            return
        self.nslow += 1
        L = "L_slow%d" % self.nslow
        a("s_cmp_eq_u32 s%d, 0" % (sWF + 2), "s_cbranch_scc1 " + L, L + "_b:")
        self.cold += [L + ":", slow, "s_branch %s_b" % L]

    def ld(self, r, voff, soff, off=0, n=4, rs=sWS):
        return "buffer_load_dword%s %s, v%d, %s, s%d offen offset:%d sc1" % (
            "x%d" % n if n > 1 else "", q(r, n) if n > 1 else "v%d" % r, voff, srd(rs), soff, off)

    def ld4(self, r, voff, soff):
        return [self.ld(r + k, voff, soff, 256 * k, n=1) for k in range(4)]

    def spin_count(self):
        return ["s_add_u32 s%d, s%d, 1" % (sspin, sspin), "s_cmp_lt_u32 s%d, 0x%x" % (sspin, SPIN_LIMIT), "s_cselect_b32 s%d, -2, -1" % scmp]

    def rounds(self, name):
        return 1 + self.dbl.split(",").count(name)

    def poll(self, loads, regs, acc, name, work=(), reinit=(), spec=None, again=None, extra=0):
        a = self.a
        L = "L_" + name
        k, n = self.rounds(name), len(loads)
        if again:
            self.check(regs, acc, len(regs), spec)
            a("s_cbranch_vccz %s_d" % L, L + ":", *loads)
            a(*self.spin_count())
            self.check(regs, acc, again * n + len(regs), spec)
            a("s_cbranch_vccnz " + L, "s_nop 2", L + "_d:")
        else:
            a("s_branch %s_w" % L, L + ":", *loads)
            a(*self.spin_count())
            a(*reinit)
            a(L + "_w:")
            self.check(regs, acc, (k - 1) * n + len(regs) + extra, spec)
            a(*work)
            a("s_cbranch_vccnz " + L, L + "_d:")
        if self.stamps is not True:
            self.stamp(name, True)

    def stats_poll(self, name, aux, r, st, loads):
        a = self.a
        self.check_or_poll(aux, [[r]], 7, name + "s", a.mark() - 1, work=st[:self.nst_])
        self.with_loads(name, st[self.nst_:], loads)

    def idle(self, n):
        if n >= 16:
            self.a("s_sleep %d" % (n // 16))
        if n > 0 and n % 16:
            self.a("s_nop %d" % (n % 16 - 1))

    def with_loads(self, name, work, loads):
        pos = 0
        for d in self.at[name][:self.rounds(name)]:
            self.a(*work[pos:pos + d])
            self.idle(pos + d - max(pos, len(work)))
            self.a(*loads)
            pos += d
        self.a(*work[pos:])
        return self.rounds(name)

    def check(self, regs, acc, n, spec=None):
        a = self.a
        have = None
        for i, part in enumerate(regs):
            if n:
                a("s_waitcnt vmcnt(%d)" % (n - 1 - i))
            if spec and n == len(regs):
                spec(i)
            pool = ([have] if have is not None else []) + list(part)
            while len(pool) > 1:
                m = min(3, len(pool))
                a(("v_max3_u32 v%d, v%d, v%d, v%d" if m == 3 else "v_max_u32 v%d, v%d, v%d") % (acc, *pool[:m]))
                pool = [acc] + pool[m:]
            have = pool[0]
            if i == len(regs) - 1:
                a("v_cmp_lt_u32 vcc, s%d, v%d" % (scmp, have))
            if spec and n != len(regs):
                spec(i)

    def check_or_poll(self, loads, regs, acc, name, wait, pre=(), work=()):
        a = self.a
        tk = a.mark()
        a("s_branch L_%s_c" % name, "L_%s_r:" % name, *pre)
        a(*loads)
        a(*self.spin_count())
        a("s_waitcnt vmcnt(0)", "L_%s_c:" % name)
        a.uncounted(tk)
        a.wait_vm(wait)
        self.check(regs, acc, 0)
        a(*work)
        a("s_cbranch_vccnz L_%s_r" % name)

    def mfma(self, d, A, B, c):
        self.a("v_mfma_f32_16x16x32_bf16 %s, %s, %s, %s" % (q(d), A, B, q(d) if c else "0"))

    def smf(self, d, A, B, ix=None):
        self.a("v_smfmac_f32_16x16x64_bf16 %s, %s, %s, v%d" % (q(d), A, B, ix or vIX))

    def mk_ix(self, v):
        self.a("v_and_b32 v%d, 1, v0" % v, "v_mul_u32_u24 v%d, 0xaaaa, v%d" % (v, v), "v_add_u32 v%d, 0x4444, v%d" % (v, v))

    def dpp(self, op, d, s0, s1, ctl, rm="0xf"):
        self.a("%s_dpp v%d, v%d, v%d %s row_mask:%s bank_mask:0xf" % (op, d, s0, s1, ctl, rm))

    def pack_pairs(self, d, v):
        self.a("v_mov_b32_dpp v%d, v%d quad_perm:[1,1,3,3] row_mask:0xf bank_mask:0xf" % (d, v),
               "v_cvt_pk_bf16_f32 v%d, v%d, v%d" % (d, v, d))

    def tile_issue(self, T, between=None):
        a = self.a
        if T:
            a("s_add_u32 s%d, s%d, 0x20000" % (srot, srot), "s_and_b32 s%d, s%d, 0x1e0000" % (srot, srot))
        a("s_or_b32 s%d, s%d, s%d" % (stmp, srot, su), "s_add_u32 m0, s%d, %d" % (sring, (T % 6) * 4096))
        if T >= 6:
            a("s_waitcnt lgkmcnt(%d)" % (0 if between else 1))
        for jj in range(4):
            self.throttle(T, 4 * T + jj >= 128 - self.burst)
            va = vKS + jj if T < 16 else 5 + (jj & 1)
            a("buffer_load_dwordx4 v%d, %s, s%d offen offset:%d nt lds" % (va, srd(sK if T < 16 else sV), stmp, jj * 1024))
            self.ltok.append(a.mark())
            self.tok[T] = a.mark()
            if between:
                between(jj)
        if 16 <= T < 31:
            a("v_xor_b32 v5, 64, v5", "v_xor_b32 v6, 64, v6")

    def throttle(self, T, burst):
        a = self.a
        if self.tk and T > self.tk[0] + 3 and not burst:
            lv = self.lv[T % len(self.lv)]
            L = a.lab("th")
            for m in (2, 1, 0):
                if m == 2 or lv[m] != lv[m + 1]:
                    if m < 2:
                        a("s_cmp_gt_u32 s%d, %d" % (smode, m), "s_cbranch_scc1 " + L)
                    a.wait_vm(self.ltok[-lv[m]])
            a(L + ":")
            return
        d = self.d0.get(T, self.depth)
        if T > 1 and not burst and d < len(self.ltok):
            a.wait_vm(self.ltok[-d])

    def vreg(self, p, i):
        return 128 + 64 * (p >> 1) + 8 * i + 4 * (p & 1) if p < 4 else (96 if p == 4 else vS) + 4 * i

    def v_reads(self, p, dst=None):
        slot = (16 + 2 * p) % 6
        for i in range(8):
            for h in range(2):
                d = dst(i, h) if dst else q(self.vreg(p, i) + 2 * h, 2)
                self.a("ds_read_b64_tr_b16 %s, v%d offset:%d ; mem=v" % (d, vAI + i if i else vTRV, slot * 4096 + h * 512))

    def tile_consume(self, T):
        a = self.a
        if T < 16:
            a.wait_vm(self.tok[T])
            for st in range(4):
                a("ds_read_b128 %s, v%d offset:%d" % (q(16 * T + 4 * st, 4, "a"), vKR + st, (T % 6) * 4096))
        elif T & 1:
            a.wait_vm(self.tok[T])
            self.v_reads((T - 16) >> 1)

    def mk_ai(self):
        for i in range(1, 8):
            self.a("v_xor_b32 v%d, %d, v%d" % (vAI + i, i << 5, vTRV))
        self.mk_ix(vIX)

    def weight_load(self, kind, k, T, va=52):
        a = self.a
        t = va + 1
        pitch = {"q": 8192, "g": 3584, "d": 1024, "o": 1024}[kind]
        if k == 0:
            if kind == "o":
                self.lin(va, t, (5, 1, 14), (3, 2, 10), (0, 3, 4))
                self.mk_srd(sT, 12, "0x400000")
                self.sexpr(sWo, 0, (sg, 512 * 1024), (sb, 128 * 1024), (sw, 4096), (ss, 128))
                self.sexpr(sWl, L_WO, (sw, 4096))
            else:
                a("v_lshrrev_b32 v%d, 3, v0" % va, "v_mul_u32_u24 v%d, %d, v%d" % (va, pitch, va), "v_and_b32 v%d, 7, v0" % t,
                  "v_lshl_add_u32 v%d, v%d, 4, v%d" % (va, t, va))
            a("v_and_b32 v%d, 32, v0" % t, "v_xor_b32 v%d, v%d, v%d" % (va, va, t), "v_xor_b32 v%d, 64, v%d" % (t, va))
            if kind == "q":
                self.mk_srd(sT, 10, "0x400000")
                self.sexpr(sWo, 0, (sb, 128 * pitch), (sw, 32 * pitch), (sg, 1024), (ss, 128))
                self.sexpr(sWl, L_WQ, (sw, 4096))
            if kind in "gd":
                a("s_lshr_b32 s100, s%d, 1" % sg, "s_mul_i32 s100, s100, 7", "s_and_b32 s%d, s%d, 1" % (stmp, sg),
                  "s_lshl_b32 s%d, s%d, 2" % (stmp, stmp), "s_add_u32 s100, s100, s%d" % stmp)
            if kind == "g":
                a("s_and_b32 s%d, s%d, 3" % (stmp, ss), "s_add_u32 s100, s100, s%d" % stmp)
                self.sexpr(sWo, 0, (sb, 128 * pitch), (sw, 32 * pitch), (100, 128))
                self.sexpr(sWl, L_WG, (sw, 4096))
                a("s_bitcmp1_b32 s%d, 0" % sact, "s_cselect_b32 s100, 0x%x, 0" % (512 * pitch))
                self.mk_srd(sT, 16, "s100")
                a("s_cmp_ge_u32 s%d, 4" % ss, "s_cselect_b32 s%d, s18, s16" % sT, "s_cselect_b32 s%d, s19, s17" % (sT + 1))
            if kind == "d":
                a("s_add_u32 s100, s100, s%d" % sb)
                self.sexpr(sWo2, 0, (100, 64 * pitch), (sw, 16 * pitch), (ss, 128))
                self.sexpr(sWl2, L_WD, (sw, 2048))
                a("s_bitcmp1_b32 s%d, 1" % sact, "s_cselect_b32 s100, 0x%x, 0" % (1792 * pitch))
                self.mk_srd(sXI, 20, "s100")
            if T is None:
                return
        self.weight_issue(kind, k, T, va)

    def weight_issue(self, kind, k, T, va):
        a = self.a
        pitch = {"q": 8192, "g": 3584, "d": 1024, "o": 1024}[kind]
        so, sl, rs = (sWo2, sWl2, sXI) if kind == "d" else (sWo, sWl, sT)
        a("s_add_u32 s%d, s%d, 0x%x" % (stmp, so, (32 if kind == "o" else 8) * pitch * k), "s_add_u32 m0, s%d, 0x%x" % (sl, 1024 * k))
        if T < 31:
            self.throttle(T, False)
        a("buffer_load_dwordx4 v%d, %s, s%d offen nt lds" % (va + (k & 1), srd(rs), stmp))
        self.ltok.append(a.mark())
        self.wtok[kind] = a.mark()

    def lines(self, fn, *args):
        keep, self.a = self.a, Asm()
        fn(*args)
        out, self.a = [i.text for i in self.a.l], keep
        return out

    def sched(self, lines, pre=()):
        out, t = schedule(lines, pre)
        self.a(*out)
        return t

    def s_zero(self):
        for r in range(vS, vS + 32, 2):
            self.a("v_mov_b64 %s, 0" % q(r, 2))

    def qk(self):
        a = self.a
        for k, p in enumerate(ORDER):
            d = vS + 4 * k
            for sg_ in range(2):
                for hf in range(2):
                    self.smf(d, q(vQ + 8 * sg_ + 4 * hf), q(16 * (2 * p + sg_) + 8 * hf, 8, "a"))
            a("v_add_f32 v%d, v%d, v%d" % (d, d, d + 1), "v_add_f32 v%d, v%d, v%d" % (d + 1, d + 2, d + 3))
            a("v_max3_f32 v7, v7, v%d, v%d" % (d, d + 1) if k else "v_max_f32 v7, v%d, v%d" % (d, d + 1))

    def ml_off(self, v, t):
        self.a("v_mov_b32 v%d, v%d" % (v, vA16), "v_and_b32 v%d, 15, v0" % t)
        self.oob_unless(v, t, "v_cmp_eq_u32 vcc, 0, v%d" % t)

    def softmax(self, vw, voff):
        a = self.a
        for k in (1, 2, 4, 8):
            self.dpp("v_max_f32", 7, 7, 7, "row_ror:%d" % k)
        a("v_mul_f32 v20, s%d, v7" % sSC, "s_mov_b32 s100, %s" % ONES)
        for k in range(8):
            r = q(vS + 4 * k, 2)
            a("v_pk_fma_f32 %s, %s, s[%d:%d], v[20:21] op_sel_hi:[1,0,0] neg_lo:[0,0,1] neg_hi:[0,0,1]" % (r, r, sSC, sSC + 1))
        for k in range(8):
            r = vS + 4 * k
            a("v_exp_f32 v%d, v%d" % (r, r), "v_exp_f32 v%d, v%d" % (r + 1, r + 1), "v_cvt_pk_bf16_f32 v%d, v%d, v%d" % (r + 2, r, r + 1))
            if k & 1:
                a("ds_write2st64_b32 v%d, v%d, v%d offset0:%d offset1:%d ; mem=p%d" % (vw, r - 2, r + 2, k - 1, k, k - 1))
        for k in range(8):
            a("v_dot2_f32_bf16 v21, v%d, s100, %s" % (vS + 4 * k + 2, "v21" if k else "0"))
        for k in (1, 2, 4, 8):
            self.dpp("v_add_f32", 21, 21, 21, "row_ror:%d" % k)
        self.st_intra("buffer_store_dwordx2", "v[20:21]", voff, sMLst, both=True)

    def ml_finish(self, r):
        a = self.a
        a("v_sub_f32 v%d, v%d, v20" % (r, r), "v_sub_f32 v%d, v%d, v20" % (r + 2, r + 2),
          "v_exp_f32 v%d, v%d" % (r, r), "v_exp_f32 v%d, v%d" % (r + 2, r + 2),
          "v_mul_f32 v7, v%d, v%d" % (r, r + 1), "v_fmac_f32 v7, v%d, v%d" % (r + 2, r + 3))
        for k in (1, 2, 4, 8):
            self.dpp("v_add_f32", 7, 7, 7, "row_ror:%d" % k)
        a("v_rcp_f32 v7, v7")

    def lds_or_zero(self, v, t, mask, val=0):
        self.a("v_and_b32 v%d, %d, v0" % (t, mask), "v_cmp_eq_u32 vcc, %d, v%d" % (val, t), "v_mov_b32 v%d, 0x%x" % (t, L_OOB),
               "v_cndmask_b32 v%d, v%d, v%d, vcc" % (v, t, v))

    def p_read(self, k, va, buf):
        self.a("ds_read_b128 %s, v%d offset:%d ; mem=p%d" % (q(vQ + 4 * buf), va, k * 256, k & ~1))

    def pv_dense(self, p, buf, lgkm=None):
        for i in range(8):
            if lgkm is not None:
                self.a("s_waitcnt lgkmcnt(%d)" % lgkm(i))
            self.mfma(vO + 4 * i, q(vQ + 4 * buf), q(self.vreg(p, i)), p > 0)

    def o_addr(self):
        self.sexpr(4, L_SCR, (sw, 512))
        self.a("v_and_b32 v22, 48, v0", "v_mul_u32_u24 v22, 112, v22", "v_add3_u32 v22, v22, v%d, s4" % vA16)

    def o_write(self, t0, t1, sparse):
        a = self.a
        for h, t in enumerate((t0, t1)):
            for i in range(4):
                o = vO + 16 * h + 4 * i
                a("v_add_f32 v%d, v%d, v%d" % (t + i, o, o + 1) if sparse else "v_mul_f32 v%d, v7, v%d" % (t + i, o))
            if sparse:
                for i in (0, 2):
                    a("v_pk_mul_f32 %s, %s, v[6:7] op_sel:[0,1] op_sel_hi:[1,1]" % (q(t + i, 2), q(t + i, 2)))
            a("ds_write_b128 v22, %s offset:%d" % (q(t), 256 * h))

    def w_tiles(self, kinds, va, t):
        a = self.a
        last = None
        for kind, dst in kinds:
            qs = 11 if kind == "d" else 12
            if qs != last:
                self.lin(va, t, (4, 1, 5), (3, 1, 6))
                a("s_lshl_b32 s100, s%d, 5" % sw, "v_xor_b32 v%d, s100, v%d" % (va, va), "v_add_u32 v%d, 0x%x, v%d" % (va, L_WQ, va))
                for sh, bits, sc in ((5, 1, qs), (3, 1, 10), (4, 1, 9), (2, 1, 7), (0, 2, 3)):
                    a("v_bfe_u32 v%d, v0, %d, %d" % (t, sh, bits), "v_lshl_add_u32 v%d, v%d, %d, v%d" % (va, t, sc, va))
                last = qs
            base = {"q": L_WQ, "g": L_WG, "d": L_WD}[kind] - L_WQ
            for kb in range(2 if kind == "d" else 4):
                for h in range(2):
                    a("ds_read_b64_tr_b16 %s, v%d offset:%d" % (q(dst + 4 * kb + 2 * h, 2), va,
                                                                  base + (kb & 1) * (2 << qs) + (kb >> 1) * 2048 + h * 256))

    def gemv_zero(self, d):
        self.a("v_mov_b64 %s, 0" % q(d, 2), "v_mov_b64 %s, 0" % q(d + 6, 2))

    def gemv4(self, x, W, d, ix):
        for k in range(2):
            self.smf(d + 4 * k, q(x), q(W + 8 * k, 8), ix)

    def gemv4_fin(self, out, d):
        self.a("v_add_f32 v%d, v%d, v%d" % (d, d, d + 1), "v_add_f32 v%d, v%d, v%d" % (d + 6, d + 6, d + 7),
               "v_add_f32 v%d, v%d, v%d" % (d, d, d + 6))
        self.pack_pairs(out, d)

    def colsum_pub(self, W, ones, d, va, t, off, *terms):
        a = self.a
        for r in range(4):
            a("v_mov_b32 v%d, %s" % (ones + r, ONES))
        self.lin(va, t, (0, 1, 10), (1, 3, 4))
        self.oob_unless(va, t, "v_cmp_gt_u32 vcc, 16, v0")
        self.sexpr(100, off, (sCS, 1), (sb, 4), (sw, 128), *terms)
        a("s_waitcnt lgkmcnt(0)")
        for kb in range(4):
            self.mfma(d, q(ones), q(W + 4 * kb), kb > 0)
        self.st_intra("buffer_store_dword", "v%d" % d, va, 100)

    def colsum_ld(self, r, off, sel):
        self.sexpr(100, off, (sCS, 1), (sel, 2048))
        self.a(self.ld(r, vA16, 100, 0), self.ld(r + 4, vA16, 100, 1024))

    def colsum_fin(self, r, c):
        for k in range(2):
            b = r + 4 * k
            self.a("v_add_f32 v%d, v%d, v%d" % (b, b, b + 1), "v_add_f32 v%d, v%d, v%d" % (b + 2, b + 2, b + 3),
                   "v_add_f32 v%d, v%d, v%d" % (b, b, b + 2), "v_mul_f32 v%d, %s, v%d" % (c + k, f32(-1.0 / 512), b))

    def stats(self, x, t, att):
        a = self.a
        s1, s2 = t, t + 1
        a("s_mov_b32 s100, %s" % ONES)
        for k in range(4):
            a("v_dot2_f32_bf16 v%d, v%d, s100, %s" % (s1, x + k, "v%d" % s1 if k else "0"),
              "v_dot2_f32_bf16 v%d, v%d, v%d, %s" % (s2, x + k, x + k, "v%d" % s2 if k else "0"))
        a("v_permlane32_swap_b32 v%d, v%d" % (s1, s2), "v_add_f32 v%d, v%d, v%d" % (s1, s1, s2))
        self.stats_fin(s1, t, att)

    def slice_sums(self, t, voff, soff):
        a = self.a
        a("v_mul_f32 v%d, v%d, v%d" % (t + 1, vRES, vRES))
        self.dpp("v_add_f32", t, vRES, vRES, "row_ror:8")
        self.dpp("v_add_f32", t + 1, t + 1, t + 1, "row_ror:8")
        a("v_cndmask_b32 v%d, v%d, v%d, s[%d:%d]" % (t, t, t + 1, sM1, sM1 + 1))
        for ctl in ("quad_perm:[1,0,3,2]", "quad_perm:[2,3,0,1]", "row_half_mirror"):
            self.dpp("v_add_f32", t, t, t, ctl)

    def st_off(self, v, t):
        self.lin(v, t, (5, 1, 8), (4, 1, 9), (3, 1, 7))
        self.a("v_and_b32 v%d, 7, v0" % t, "v_add_u32 v%d, s%d, v%d" % (t, sw, t))
        self.oob_unless(v, t, "v_cmp_eq_u32 vcc, 0, v%d" % t)

    def stats_fin(self, x, t, att):
        a = self.a
        s1, s2 = t, t + 1
        for k in (1, 2, 4, 8):
            self.dpp("v_add_f32", s1, x if k == 1 else s1, x if k == 1 else s1, "row_ror:%d" % k)
        self.dpp("v_add_f32", s1, s1, s1, "row_bcast:15", "0xa")
        a("v_readlane_b32 s%d, v%d, 31" % (sS1, s1), "v_mul_f32 v%d, %s, v%d" % (s1, f32(1.0 / 512), s1),
          "v_mov_b32 v%d, s%d" % (s2, sS1), "v_mul_f32 v%d, %s, v%d" % (s2, f32(1.0 / 512), s2),
          "v_fma_f32 v%d, -v%d, v%d, v%d" % (s1, s2, s2, s1), "v_max_f32 v%d, 0, v%d" % (s1, s1),
          "v_add_f32 v%d, %s, v%d" % (s1, f32(1e-5), s1))
        if att:
            a("v_rsq_f32 v%d, v%d" % (s1, s1), "v_mul_f32 v%d, %s, v%d" % (s1, f32(SCALE), s1))
        else:
            a("v_rcp_f32 v%d, v%d" % (s1, s1), "s_nop 0")
        a("v_readlane_b32 s%d, v%d, 63" % (sSC, s1))

    def sum4_init(self, acc, c):
        self.a("v_mul_f32 v%d, s%d, v%d" % (acc, sS1, c), "v_mul_f32 v%d, s%d, v%d" % (acc + 1, sS1, c + 1))

    def sum4(self, x, acc, init):
        for k in range(4):
            c = acc if k else init
            self.a("v_dot2_f32_bf16 v%d, v%d, s%d, v%d" % (acc, x + k, sLO, c),
                   "v_dot2_f32_bf16 v%d, v%d, s%d, v%d" % (acc + 1, x + k, sHI, c + 1))

    def q_addrs(self, vw, vr, t):
        a = self.a
        self.lin(vw, t, (3, 3, 5), (0, 1, 4), (1, 2, 2))
        self.sexpr(100, L_Q, (sw, QSTR))
        a("v_add_u32 v%d, s100, v%d" % (vw, vw))
        self.lin(vr, t, (4, 2, 5), (0, 1, 4))
        a("v_bfe_u32 v%d, v0, 2, 2" % t, "v_mul_u32_u24 v%d, %d, v%d" % (t, QSTR, t), "v_add_u32 v%d, v%d, v%d" % (vr, vr, t),
          "v_add_u32 v%d, 0x%x, v%d" % (vr, L_Q, vr), "v_mov_b32 v%d, v%d" % (vr + 1, vr))
        self.lds_or_zero(vr, t, 2, 0)
        self.lds_or_zero(vr + 1, t, 2, 2)

    def q_assemble(self, acc, vw, vr, fill=()):
        a = self.a
        a("v_cvt_pk_bf16_f32 v%d, v%d, v%d" % (acc, acc, acc + 1), "ds_write_b32 v%d, v%d" % (vw, acc), *fill)
        a("s_waitcnt lgkmcnt(0)", "s_barrier")
        rd = ["ds_read_b128 %s, v%d offset:%d" % (q(vQ + 4 * st), vr + (st >> 1), (st & 1) * 128) for st in range(4)]
        a(*rd)
        return rd

    def late_loads(self, name):
        self.layer1(name)
        for k in range(2):
            self.weight_issue("d", k, 32, 62)
        self.touch(59)
        self.a(name + ":")

    def next_region(self):
        for r in (sWS, sWF, sWL):
            self.a("s_add_u32 s%d, s%d, 0x%x" % (r, r, LS), "s_addc_u32 s%d, s%d, 0" % (r + 1, r + 1))
        self.a("s_sub_u32 s%d, s%d, 0x%x" % (sCS, sCS, LS))

    def leader_fill(self):
        a = self.a
        a("v_mov_b32 v8, -1", "v_mov_b32 v9, -1", "v_mov_b32 v10, -1", "v_mov_b32 v11, -1", "v_lshlrev_b32 v12, 2, v0",
          "s_or_b32 s%d, s%d, s%d" % (slead, sj, sw), "s_cmp_eq_u32 s%d, 0" % slead, "s_cbranch_scc0 L_nolead0")
        tk = a.mark()
        a("s_lshl_b32 s100, s%d, 17" % sg, "buffer_store_dword v8, v12, %s, s100 offen sc1" % srd(sWS), "L_nolead0:")
        a.uncounted(tk)
        self.tok_lead = tk

    def leader_flag(self, word, name, tok=None, val="1", v=54):
        a = self.a
        a("s_cmp_eq_u32 s%d, 0" % slead, "s_cbranch_scc0 " + name)
        if tok is not None:
            a.wait_vm(tok)
        tk = a.mark()
        a("v_mov_b32 v%d, %s" % (v + 1, val), "v_lshlrev_b32 v%d, 8, v0" % v, "s_lshl_b32 s100, s%d, 2" % sg,
          "buffer_store_dword v%d, v%d, %s, s100 offen offset:%d sc1" % (v + 1, v, srd(sDBG), word), name + ":")
        a.uncounted(tk)

    def flag_load(self, v, word, own):
        a = self.a
        if own:
            a("s_lshl_b32 s100, s%d, 2" % sg, "v_mov_b32 v%d, s100" % v)
        else:
            a("v_and_b32 v%d, 7, v0" % v, "v_lshlrev_b32 v%d, 2, v%d" % (v, v))
        return a("buffer_load_dword v%d, v%d, %s, 0 offen offset:%d sc1" % (v, v, srd(sDBG), word))

    def flag_check(self, v, word, own, tok, name):
        a = self.a
        a.wait_vm(tok)
        tk = a.mark()
        a("s_branch %s_c" % name, name + "_s:", "s_sleep 8")
        self.flag_load(v, word, own)
        a("s_add_u32 s%d, s%d, 1" % (sspin, sspin), "s_cmp_lt_u32 s%d, 0x%x" % (sspin, SPIN_LIMIT), "s_waitcnt vmcnt(0)",
          "s_cbranch_scc0 %s_d" % name, name + "_c:", "v_cmp_eq_u32 vcc, 0, v%d" % v, "s_cbranch_vccnz %s_s" % name, name + "_d:")
        a.uncounted(tk)

    def fill_intra(self, v, t, d, start, per_wave):
        a = self.a
        self.sexpr(100, start, (sg, 1 << 17), (sj, 4 * per_wave), (sw, per_wave))
        a("v_mov_b32 v%d, v%d" % (v, vA16))
        self.oob_unless(v, t, "v_cmp_gt_u32 vcc, %d, v0" % (per_wave // 16))
        self.st_intra("buffer_store_dwordx4", q(d), v, 100)

    def sentinels(self, d):
        for r in range(4):
            self.a("v_mov_b32 v%d, -1" % (d + r))

    def prologue(self):
        a = self.a
        if self.stamps and not self.probe:
            a("%s s[92:93]" % ("s_memtime" if self.cyc else "s_memrealtime"))
        a('; ---- entry: everything up to the first K tile fits the 256 bytes that are fetched before the wave starts')
        a("s_load_dwordx16 s[4:19], s[0:1], 0", "s_load_dwordx8 s[20:27], s[0:1], 64",
          "v_lshrrev_b32 v1, 6, v0", "s_cmpk_ge_u32 s2, 256", "v_readfirstlane_b32 s%d, v1" % sw, "s_cbranch_scc1 L_end")
        a("v_and_b32 v0, 63, v0", "s_and_b32 s%d, s2, 7" % sg, "s_lshr_b32 s%d, s2, 3" % sj, "s_lshr_b32 s%d, s2, 6" % sb,
          "s_and_b32 s%d, s%d, 7" % (ss, sj), "s_lshl2_add_u32 s%d, s%d, s%d" % (su, ss, sw),
          "s_lshl3_add_u32 s100, s%d, s%d" % (sb, sg), "s_lshl_b32 s100, s100, 21", "s_mul_i32 s%d, s%d, %d" % (sring, sw, RING))
        a("s_lshl_b32 s%d, s%d, 12" % (su, su), "s_lshl2_add_u32 s%d, s%d, s%d" % (srot, sb, sg),
          "s_and_b32 s%d, s%d, 15" % (srot, srot), "s_lshl_b32 s%d, s%d, 17" % (srot, srot))
        a("v_lshrrev_b32 v5, 4, v0", "v_and_b32 v6, 15, v0", "v_xor_b32 v7, v5, v6", "v_lshlrev_b32 v7, 4, v7",
          "v_lshl_add_u32 v%d, v5, 8, v7" % vKS)
        a("v_xor_b32 v%d, 64, v%d" % (vKS + 1, vKS), "v_xor_b32 v%d, 128, v%d" % (vKS + 2, vKS), "v_xor_b32 v%d, 64, v%d" % (vKS + 3, vKS + 2),
          "s_lshl_b32 s98, s2, 10", "s_bitset1_b32 s98, 22", "v_mov_b32 v9, s98", "v_xor_b32 v10, 0x2000, v9",
          "s_lshl_b32 s%d, 1, 21" % (sK + 2), "s_mov_b32 s%d, 0x20000" % (sK + 3))
        self.tok, self.ltok, self.wtok = {}, [], {}
        first = self.lines(self.tile_issue, 0)
        self.tok, self.ltok = {}, []
        a(*first[:2])
        a("s_waitcnt lgkmcnt(0)", "global_load_dword v95, v9, s[26:27] sc1")
        tok_cal = a.mark()
        a("global_load_dword v95, v10, s[26:27] offset:128 sc1", "s_add_u32 s%d, s6, s100" % sK, "s_addc_u32 s%d, s7, 0" % (sK + 1))
        for x in first[2:]:
            self.ltok.append(a(x))
        self.tok[0] = a.mark()
        a("s_cmp_eq_u32 s%d, 0" % sw, "s_cbranch_scc0 L_novote")
        a.wait_vm(tok_cal)
        a("L_novote:", "s_add_u32 s%d, s8, s100" % sV, "s_addc_u32 s%d, s9, 0" % (sV + 1), "s_mov_b32 s%d, s%d" % (sV + 2, sK + 2),
          "s_getreg_b32 s99, hwreg(HW_REG_IB_STS, 0, 4)", "L_entered:")
        if self.probe:
            a("s_memrealtime s[92:93]")
        a('; ---- K / V stream: tile T = 16 rows, LDS-DMA into a 6-slot ring per wave, a bounded number of loads in flight')
        self.tile_issue(1)
        a("s_mov_b32 s%d, 0x20000" % (sV + 3))
        a("v_lshl_add_u32 v%d, v6, 8, v7" % vKR, "v_add_u32 v%d, s%d, v%d" % (vKR, sring, vKR))
        for st in range(1, 4):
            a("v_xor_b32 v%d, %d, v%d" % (vKR + st, st << 6, vKR))
        a("v_lshlrev_b32 v%d, 4, v0" % vA16)
        self.mk_srd(sDBG, 24, "256")
        self.mk_srd(sWS, 26, "0x%x" % WS_SIZE)
        self.mk_srd(sOUT, 22, "4096")
        a("s_add_u32 s%d, s26, 0x%x" % (sXW, OFF_XW), "s_addc_u32 s%d, s27, 0" % (sXW + 1),
          "s_mov_b32 s%d, 0x%x" % (sXW + 2, OFF_TK + len(self.tk) * 4096), "s_mov_b32 s%d, 0x20000" % (sXW + 3))
        if self.stamps:
            a("s_waitcnt lgkmcnt(0)", "v_mov_b32 v4, 0", "v_writelane_b32 v4, s92, 0")
            self.nst = 1
            self.stamp_names.append("entry")
        self.stamp("start")
        a("s_cmp_gt_u32 s99, 4", "s_cselect_b32 s%d, 16, 0" % svote)
        self.setup_b()
        self.setup_c()

    def setup_a(self):
        a = self.a
        self.mk_srd(sXI, 4, "4096")
        self.lin(6, 7, (4, 2, 6), (2, 2, 10), (0, 2, 4))
        self.lin(5, 7, (5, 1, 10), (4, 1, 11), (0, 4, 1))
        a("s_lshl_b32 s100, s%d, 8" % sb, "s_lshl_b32 s101, s%d, 10" % sb, "s_lshl_b32 s%d, s%d, 5" % (stmp, sj),
          "buffer_load_dwordx4 %s, v6, %s, s100 offen" % (q(vX), srd(sXI)),
          "buffer_load_dwordx4 %s, v%d, %s, s101 offen" % (q(vX + 4), vA16, srd(sXI)),
          "buffer_load_ushort v%d, v5, %s, s%d offen" % (vRES, srd(sXI), stmp))

    def early_fill(self):
        a = self.a
        self.sexpr(100, 0, (sj, 32768), (sg, 2048), (sw, 512))
        if not self.tk:
            a("v_mov_b32 v12, v%d" % vA16)
            self.oob_unless(12, 13, "v_cmp_gt_u32 vcc, 32, v0")
            a("buffer_store_dwordx4 v[8:11], v12, %s, s100 offen sc1" % srd(sXW))
            return
        a("v_add_u32 v12, s100, v%d" % vA16)
        self.sexpr(100, OFF_TK - 512, (2, 128))
        a("v_add_u32 v13, s100, v%d" % vA16, "v_cmp_gt_u32 vcc, 32, v0", "v_cndmask_b32 v12, v13, v12, vcc",
          "s_cmp_eq_u32 s%d, 3" % sw, "s_cselect_b32 s100, 40, 32")
        self.oob_unless(12, 13, "v_cmp_gt_u32 vcc, s100, v0")
        a("buffer_store_dwordx4 v[8:11], v12, %s, 0 offen sc1" % srd(sXW),
          "v_mov_b32 v98, 0x%x" % (L_SCR + 512 * self.tkw), "v_mov_b32 v99, %d" % self.th[0], "ds_write_b32 v98, v99", "v_lshlrev_b32 v101, 24, v0")
        self.sexpr(91, 0, (sj, 1), (sg, 3))
        a("s_and_b32 s91, s91, %d" % (256 // self.tkn - 1), "s_lshl_b32 s91, s91, 7", "s_add_u32 s91, s91, 0x%x" % OFF_TK)

    def setup_b(self):
        a = self.a
        self.mk_srd(sWF, sWS, "0")
        self.mk_srd(sWL, sWS, "0x%x" % WS_SIZE)
        G = (sg, 1 << 17)
        self.sexpr(sCS, 2 * LS, G)
        a("s_lshr_b32 s%d, s%d, 1" % (stmp, ss), "s_and_b32 s100, s%d, 1" % ss)
        self.sexpr(sEst, OFF_E, G, (stmp, 1024), (100, 128), (sw, 32), (sb, 256))
        self.sexpr(sEld, OFF_E, G, (sb, 4096), (sw, 1024))
        self.sexpr(sMLld, OFF_ML, G, (sb, 1024))
        a("s_lshr_b32 s%d, s%d, 9" % (sMLst, su), "s_add_u32 s%d, s%d, s%d" % (sMLst, sMLst, sMLld),
          "s_mov_b32 s%d, 0" % slayer, "s_mov_b32 s%d, 0" % sspin, "s_mov_b32 s%d, -2" % scmp,
          "s_mov_b32 s%d, 0x3f80" % sLO, "s_mov_b32 s%d, 0x3f800000" % sHI,
          "s_and_b32 s100, s%d, 3" % ss, "s_cmp_eq_u32 s100, 3", "s_cselect_b32 s%d, 0, 1" % sact,
          "s_cmp_eq_u32 s%d, 3" % sb, "s_cselect_b32 s100, 0, 2", "s_or_b32 s%d, s%d, s100" % (sact, sact),
          "s_bitcmp1_b32 s%d, 0" % sg, "s_cselect_b32 s%d, s%d, 3" % (sact, sact))

    def setup_c(self):
        a = self.a
        G = (sg, 1 << 17)
        a("s_lshr_b32 s%d, s%d, 2" % (stmp, ss), "s_and_b32 s100, s%d, 3" % ss)
        self.sexpr(sAst, OFF_A, G, (sw, 8192), (stmp, 4096), (sb, 1024), (100, 256))
        self.sexpr(sCst, OFF_C, G, (100, 4096), (stmp, 128), (sw, 32), (sb, 256))
        self.sexpr(sAld, OFF_A, G, (sb, 8192), (sw, 2048))
        self.sexpr(sCld, OFF_C, G, (sb, 4096), (sw, 1024))
        self.sexpr(sBst, 0, (su, 8), (sg, 512), (sb, 128))
        self.sexpr(sBld, 0, (sj, 32768))
        a("s_lshr_b32 s%d, s%d, 1" % (stmp, sj), "s_and_b32 s100, s%d, 1" % sj)
        self.sexpr(sXst, OFF_XB, G, (stmp, 256), (100, 32))
        self.sexpr(sXld, OFF_XB, G, (sb, 1024))
        self.sexpr(sRow, OFF_ST, G)
        a("s_mov_b32 s%d, 0xff00ff00" % sM1, "s_mov_b32 s%d, 0xff00ff00" % (sM1 + 1))
        self.lin(vTRV, 7, (2, 1, 12), (4, 2, 10), (3, 1, 8), (4, 1, 7), (2, 1, 6), (3, 1, 5), (0, 2, 3))
        a("v_add_u32 v%d, s%d, v%d" % (vTRV, sring, vTRV))

    def part_off(self, v, t, bs, cmp="0"):
        self.lin(v, t, (4, 2, bs), (0, 4, 1))
        self.even_only(v, t, cmp)

    def group_flag(self, k, val):
        a = self.a
        a("v_mov_b32 v14, %s" % val, "v_add_u32 v15, s%d, v0" % sw, "v_lshlrev_b32 v15, 24, v15")
        self.sexpr(100, 128 * k, (sg, 1 << 17), (sj, 4))
        self.st_intra("buffer_store_dword", "v14", 15, 100)

    def stream(self):
        a = self.a
        lag = self.lag
        t_dl, t_f1, t_l1, t_c1, t_f2, t_l2, t_c2 = self.sync
        wl = {}
        for kind, ts in (("q", self.tq), ("g", self.tg)):
            for k, T in enumerate(ts):
                wl.setdefault(T, []).append((kind, k))
        tqk = max(t_c2 + 2, 16 + lag)
        assert self.clr1 <= t_dl and self.tq[-1] + 2 <= t_c1 and self.tg[-1] + 2 <= t_f2
        pvat = {}
        for p in range(5):
            pvat.setdefault(max(tqk + 3 + (p >> 1), 17 + 2 * p + lag), []).append(p)
        assert min(self.ipf, self.tml, self.tclr) >= tqk + 3 and max(pvat) < 32
        vF = 94
        G17 = "s_lshl_b32 s101, s%d, 17" % sg
        qk = None
        assert self.tml + 2 <= self.tfin <= self.tp5 and max(pvat) <= self.tp5

        def lds_pv(p):
            a("; PV of a group that stays in LDS")
            self.p_read(ORDER.index(p), 16, p & 1)
            if p == self.ogate[0]:
                a("; Wo follows once most of V has landed")
                for k in range(4):
                    a.wait_vm(self.tok[31] - self.ogate[1 + k])
                    self.weight_issue("o", k, 31, 18)
            a.wait_vm(self.tok[17 + 2 * p])
            self.sched(self.lines(self.v_reads, p) + self.lines(self.pv_dense, p, p & 1)
                       + (self.lines(self.o_write, 8, 16, False) if p == 7 else []))
        for T in range(1, 32):
            if T == 16:
                self.lin(5, 7, (4, 2, 8), (0, 4, 4))
                a("v_and_b32 v7, 16, v0", "v_lshlrev_b32 v7, 1, v7", "v_xor_b32 v5, v5, v7", "v_xor_b32 v6, 128, v5")
                self.mk_ai()
            between = None
            if T in (tqk + 1, tqk + 2):
                def between(jj):
                    a(*qk.pop(0))
            if T > 1:
                a("; tile %d (%s)" % (T, "K" if T < 16 else "V"))
            if T > 1:
                self.tile_issue(T, between)
            if T == 1:
                a("; code into L2; wave 0 of workgroup j = 0 resets the kv head's two flag arrays; x quarter, x row and residual slice")
                self.code_prefetch(93, 98, "L_pc0", "L_pc0")
                self.leader_fill()
            for kind, k in wl.get(T, []):
                self.weight_load(kind, k, T)
            if T == self.tfin - 1:
                self.weight_load("o", 0, None, 18)
            if self.stamps is not True and T > 1:
                self.stamp("T%02d" % T)
            if T == 1:
                self.setup_a()
            if T == self.clr1:
                a('; sentinel fill of the first two cross-die slots and of the arrival counters')
                self.early_fill()
            if T - 3 in self.tk:
                a("; early workgroups keep fewer loads in flight, late ones more, so that all finish the stream together")
                assert T < 25 + lag
                a("ds_read_b32 v100, v98", "s_waitcnt lgkmcnt(0)", "v_readfirstlane_b32 s4, v100",
                  "s_cmp_ge_u32 s4, %d" % self.th[0], "s_cselect_b32 s%d, 1, 0" % smode, "s_cmp_ge_u32 s4, %d" % self.th[1],
                  "s_addc_u32 s%d, s%d, 0" % (smode, smode))
            if lag <= T < 26 + lag:
                self.tile_consume(T - lag)
            if T == 2:
                a('; d_debug[g] = 1: flag arrays are reset')
                self.leader_flag(0, "L_nolead1", self.tok_lead)
            if T == t_dl:
                tok_f = self.flag_load(vF, 0, True)
            if T == t_f1:
                a('; flag 1 = die id + probe vote, set after the fills of all four waves; LayerNorm statistics of x[b]')
                self.flag_check(vF, 0, True, tok_f, "L_f0")
                a("s_barrier", "s_getreg_b32 s%d, hwreg(HW_REG_XCC_ID, 0, 4)" % stmp, "s_or_b32 s%d, s%d, s%d" % (stmp, stmp, svote))
                self.group_flag(0, "s%d" % stmp)
                a("v_lshlrev_b32 v%d, 16, v%d" % (vRES, vRES))
                self.stats(vX + 4, 8, True)
            if T in (t_l1, t_l2):
                fld = self.ld(vF, vF + 1, 101, 0 if T == t_l1 else 128, n=1)
                a("v_and_b32 v%d, 31, v0" % (vF + 1), "v_lshlrev_b32 v%d, 2, v%d" % (vF + 1, vF + 1), G17)
                tok_f = a(fld)
            if T == t_c1:
                a('; all 32 flags: same die -> plain stores through L2, else write-through; q partials and Wq column sums; fill of ML / A')
                self.check_or_poll([fld], [[vF]], 7, "xcc", max(tok_f, self.wtok["q"]), [G17])
                a("s_barrier")
                self.w_tiles([("q", vWQ)], 5, 7)
                a("v_cmp_lt_u32 vcc, 15, v%d" % vF, "v_and_b32 v%d, 15, v%d" % (vF, vF),
                  "s_and_b32 s100, vcc_lo, 0x55555555", "s_and_b32 s101, vcc_lo, 0xaaaaaaaa",
                  "s_bcnt1_i32_b32 s100, s100", "s_bcnt1_i32_b32 s101, s101")
                if self.stamps:
                    a("v_writelane_b32 v4, s100, 28", "v_writelane_b32 v4, s101, 29")
                a("s_getreg_b32 s%d, hwreg(HW_REG_XCC_ID, 0, 4)" % svote, "s_sub_u32 s%d, s100, s101" % stmp, "s_sub_u32 s101, s101, s100",
                  "s_bitcmp1_b32 s%d, 2" % svote, "s_cselect_b32 s101, s101, s%d" % stmp, "s_add_u32 s101, s101, 64")
                self.leader_flag(32, "L_nolead2", val="s101")
                if not self.force_slow:
                    a("v_cmp_ne_u32 vcc, s%d, v%d" % (svote, vF), "s_cmp_eq_u64 vcc, 0",
                      "s_cselect_b32 s%d, 0x%x, 0" % (sWF + 2, WS_SIZE), "s_cselect_b32 s%d, 0, 0x%x" % (sWL + 2, WS_SIZE))
                self.part_off(6, 7, 12)
                a("s_lshr_b32 s%d, s%d, 1" % (stmp, ss), "s_and_b32 s%d, s%d, 1" % (sclr, ss))
                self.colsum_pub(vWQ, 12, 16, 10, 11, OFF_CSQ, (stmp, 2048), (sclr, 512))
                self.mk_ix(8)
                self.gemv_zero(vD)
                self.gemv4(vX, vWQ, vD, 8)
                self.sentinels(20)
                self.gemv4_fin(9, vD)
                self.st_intra("buffer_store_dword", "v9", 6, sEst)
                self.fill_intra(24, 7, 20, LS + OFF_ML, 288)
                tok_q = a.mark()
                self.stamp("arrive")
            if T == t_f2:
                a('; flag 2: q partials and fills are visible; gate / up column sums')
                a.wait_vm(max(tok_q, self.wtok["g"]))
                a("s_barrier")
                self.group_flag(1, "1")
                self.w_tiles([("g", vWQ)], 5, 7)
                a("s_lshr_b32 s%d, s%d, 2" % (stmp, ss), "s_and_b32 s%d, s%d, 3" % (sclr, ss))
                self.colsum_pub(vWQ, 16, 20, 10, 11, OFF_CSG, (sclr, 2048), (stmp, 512))
            if T == t_c2:
                a('; fetch the q partials')
                self.check_or_poll([fld], [[vF]], 7, "q1", tok_f, [G17])
                self.colsum_ld(28, OFF_CSQ, sw)
                tok_q = a("v_lshlrev_b32 v7, 2, v0", *self.ld4(24, 7, sEld))
                self.next_region()
                self.stamp("barrier")
            if T == t_c2 + 1:
                self.s_zero()
                self.q_addrs(40, 42, 7)
            if T == tqk:
                a('; q = sum of partials - mean * column sum; QK^T and softmax run between the next loads')
                a.wait_vm(tok_q)
                self.colsum_fin(28, 36)
                self.sum4_init(38, 36)
                self.sum4(24, 38, 38)
                self.q_assemble(38, 40, 42)
                ls, _ = schedule(self.lines(self.qk))
                qk = [ls[len(ls) * k // 4:len(ls) * (k + 1) // 4] for k in range(4)]
            if T == tqk + 1:
                self.ml_off(22, 23)
                self.sexpr(100, L_WD, (sw, 2048))
                self.lin(16, 23, (2, 2, 6), (4, 2, 4))
                a("v_add_u32 v16, s100, v16", "v_lshl_add_u32 v17, v0, 2, s100")
                self.lds_or_zero(16, 23, 3)
                ls, _ = schedule(self.lines(self.softmax, 17, 22))
                qk = [ls[len(ls) * k // 4:len(ls) * (k + 1) // 4] for k in range(4)]
            if T == tqk + 2:
                self.stamp("softmax1")
            for p in pvat.get(T, ()):
                a('; PV of one 32-key group')
                self.p_read(ORDER.index(p), 16, p & 1)
                a("s_waitcnt lgkmcnt(0)")
                self.pv_dense(p, p & 1)
            for c, tw in enumerate(self.tk):
                if T == tw + 2:
                    a("s_cmp_eq_u32 s%d, %d" % (sw, self.tkw), "s_cbranch_scc0 L_tkb%d" % c)
                    a.wait_vm(tok_tk)
                    a("v_readfirstlane_b32 s4, v99", "s_add_u32 s4, s4, 1", "v_mov_b32 v99, s4", "ds_write_b32 v98, v99", "L_tkb%d:" % c)
                if T == tw:
                    a("; arrival rank among eight workgroups, one per kv head")
                    tok_tk = a.mark()
                    a("s_cmp_eq_u32 s%d, %d" % (sw, self.tkw), "s_cbranch_scc0 L_tka%d" % c, "v_mov_b32 v99, 1",
                      "buffer_atomic_add v99, v101, %s, s91 offen sc0 sc1" % srd(sXW), "s_add_u32 s91, s91, 4096", "L_tka%d:" % c)
                    a.uncounted(tok_tk)
            if T == self.ipf:
                self.code_prefetch(80, 4, "L_pc1", "L_tail")
            if T == self.tml:
                ml1 = [self.ld(64, vA16, sMLld)]
                a(*ml1)
                tok_warm = self.flag_load(70, 32, False)
            if T == self.tclr:
                a('; sentinel fill of the remaining per-head slots')
                self.sentinels(72)
                self.fill_intra(76, 77, 72, OFF_C, 352)
                self.fill_intra(78, 77, 72, LS, 480)
            if T == self.tfin:
                a('; all eight heads have filled their cross-die slots; summed votes pick the near copy')
                self.flag_check(70, 32, False, tok_warm, "L_f1")
                for k in (1, 2, 4):
                    self.dpp("v_add_u32", 70, 70, 70, "row_ror:%d" % k)
                a("v_readfirstlane_b32 s100, v70", "s_cmpk_ge_u32 s100, 512", "s_cselect_b32 s100, 0, 4", "s_xor_b32 s100, s100, s%d" % svote,
                  "s_bitcmp1_b32 s100, 2", "s_cselect_b32 s100, %s" % {1: "0x2000, 0", 2: "0, 0x2000"}[self.near],
                  "s_add_u32 s%d, s%d, s100" % (sBld, sBld), "s_add_u32 s%d, s%d, s100" % (sB2, sBst), "s_xor_b32 s%d, s%d, 0x2000" % (sBst, sB2))
                self.check_or_poll(ml1, [range(64, 68)], 69, "ml1", tok_warm)
                self.ml_finish(64)
                self.o_addr()
                a("s_mov_b32 s%d, 1" % slayer)
                a(*[x for x in self.lines(self.weight_load, "d", 0, None, 62) if x.startswith("s_")])
            if T == self.tp5:
                lds_pv(5)
        self.stamp("issued")
        for p in (5, 6, 7):
            if p > 5 or self.tp5 > 31:
                lds_pv(p)
        self.n_after_o = min(a.mark() - self.wtok["o"], 60)
        self.stamp("pv1")

    def code_prefetch(self, v, sp, here, start):
        a = self.a
        a("s_getpc_b64 s[%d:%d]" % (sp, sp + 1), here + ":")
        if start != here:
            a("s_add_u32 s%d, s%d, %s-%s" % (sp, sp, start, here), "s_addc_u32 s%d, s%d, 0" % (sp + 1, sp + 1))
        self.sexpr(100, 0, (sj, 512), (sw, 128))
        a("s_min_u32 s100, s100, L_codeend-%s-4" % start, "v_mov_b32 v%d, s100" % v, "global_load_dword v%d, v%d, s[%d:%d]" % (v, v, sp, sp + 1))

    def touch_addr(self, v, t, parts):
        a = self.a
        a("v_mov_b32 v%d, 0x%x" % (v, OOB), "v_lshl_add_u32 v%d, v0, 2, s%d" % (t + 1, sw))
        hi = sum(n for _, n in parts)
        for start, n in reversed(parts):
            self.sexpr(100, start - 128 * (hi - n), (sg, 1 << 17), (sj, 128 * n))
            a("v_lshl_add_u32 v%d, v%d, 7, s100" % (t, t + 1), "v_cmp_gt_u32 vcc, %d, v%d" % (hi, t + 1),
              "v_cndmask_b32 v%d, v%d, v%d, vcc" % (v, v, t))
            hi -= n

    def touch(self, v):
        return self.a("buffer_load_dword v%d, v%d, %s, 0 offen sc1" % (v, v, srd(sWS)))

    def fill_cross(self, d, hop):
        self.sentinels(d)
        self.lin(d + 4, d + 5, (4, 2, 15), (3, 1, 13), (0, 3, 4))
        self.sexpr(100, (hop >> 1) * 0x4000 + (hop & 1) * 0x1000, (ss, 1 << 17), (sg, 512), (sb, 128))
        self.a("buffer_store_dwordx4 %s, v%d, %s, s100 offen sc1" % (q(d), d + 4, srd(sXW)))

    def st_cross(self, v):
        a = self.a
        for so in (sBst, sB2):
            a("buffer_store_dword v%d, v95, %s, s%d offen sc1" % (v, srd(sXW), so))

    def red_loads(self, x, soff):
        return [self.ld(x + 4 * i, vA16, soff, i * 1024, rs=sXW) for i in range(4)]

    def prep_split(self, name, work, loads):
        a = self.a
        n = self.at[name][0]
        while n < len(work) and work[n].startswith(("s_cselect", "s_addc", "s_cbranch")):
            n += 1
        a(*work[:n])
        a("s_cmp_eq_u32 s%d, 0" % sw, "s_cbranch_scc0 L_%s_n" % name)
        self.idle(n - len(work))
        a(*loads)
        a("L_%s_n:" % name, *work[n:])
        self.est += (name, len(work))

    def reduce_x(self, name, x, d, soff):
        a = self.a
        self.poll(self.red_loads(x, soff), [range(x + 4 * i, x + 4 * i + 4) for i in range(4)], 7, name,
                  spec=lambda i: self.mfma(d, q(x + 4 * i), q(vSEL), i > 0), again=self.kx)
        m = "s[%d:%d]" % (sM1, sM1 + 1)
        a("v_cndmask_b32 v%d, v%d, v%d, %s" % (d, d, d + 1, m), "v_cndmask_b32 v%d, v%d, v%d, %s" % (d + 2, d + 2, d + 3, m),
          "v_permlane32_swap_b32 v%d, v%d" % (d, d + 2), "v_add_f32 v%d, v%d, v%d" % (vRES, vRES, d),
          "v_add_f32 v%d, v%d, v%d" % (vRES, vRES, d + 2))
        self.pack_pairs(7, vRES)

    def x_off(self, v, t, bs):
        self.lin(v, t, (5, 1, bs), (4, 1, bs + 1), (0, 4, 1))
        self.even_only(v, t)

    def layer1(self, name):
        self.a("s_cmp_eq_u32 s%d, 1" % slayer, "s_cbranch_scc0 " + name)

    def chain(self):
        a = self.a
        a("L_tail:")
        a('; ---- attention output: sum over the four waves, publish per head')
        self.lin(23, 6, (2, 4, 4), (1, 1, 8), (0, 1, 3))
        self.sexpr(sclr, L_SCR, (sw, 2048))
        a("v_add_u32 v23, s%d, v23" % sclr, "s_waitcnt lgkmcnt(0)", "s_barrier")
        for src in range(4):
            a("ds_read_b64 %s, v23 offset:%d" % (q(8 + 2 * src, 2), src * 512))
        a("v_lshlrev_b32 v17, 2, v0", "s_mov_b32 m0, s%d" % sclr)
        self.lin(56, 16, (2, 2, 9), (4, 2, 7), (2, 2, 5), (0, 2, 3))
        a("s_lshl_b32 s100, s%d, 5" % sw, "v_xor_b32 v56, s100, v56", "v_add_u32 v56, 0x%x, v56" % L_WO)
        a("s_waitcnt lgkmcnt(2)", "v_pk_add_f32 v[8:9], v[8:9], v[10:11]", "s_waitcnt lgkmcnt(0)", "v_pk_add_f32 v[12:13], v[12:13], v[14:15]",
          "v_pk_add_f32 v[8:9], v[8:9], v[12:13]", "v_cvt_pk_bf16_f32 v7, v8, v9")
        self.st_intra("buffer_store_dword", "v7", 17, sAst)
        self.stamp("Apub", True)
        if self.stamps:
            a("s_mov_b32 m0, s%d" % sclr)
        a("v_lshrrev_b32 v5, 4, v0", "v_and_b32 v6, 15, v0", "v_xor_b32 v16, v5, v6", "v_lshlrev_b32 v16, 4, v16",
          "v_lshl_add_u32 v18, v5, 8, v16", "s_and_b32 s100, s%d, 1" % sw, "s_lshl_b32 s100, s100, 7", "v_xor_b32 v18, s100, v18",
          "v_xor_b32 v19, 64, v18")
        lda = ["buffer_load_dwordx4 v%d, %s, s%d offen offset:%d sc1 lds" % (18 + h, srd(sWS), sAld, h * 1024) for h in range(2)]

        def prep_a():
            a = self.a
            a("v_lshl_add_u32 v20, v6, 8, v16", "v_add_u32 v20, 0x%x, v20" % L_SCR)
            for st in range(1, 4):
                a("v_xor_b32 v%d, %d, v20" % (20 + st, st << 6))
            a("v_add_u32 v5, s%d, v%d" % (sclr, vA16), "v_lshlrev_b32 v95, 1, v0")
            self.even_only(95, 6)
            a(*[x for x in self.lines(self.weight_load, "d", 0, None, 62) if x.startswith("v_")])
            self.touch_addr(59, 60, T1)
        n = self.with_loads("pollA", self.lines(prep_a), lda)
        a("s_waitcnt vmcnt(%d)" % (1 + 2 * n + self.n_after_o), "s_barrier")
        for st in range(4):
            for h in range(2):
                a("ds_read_b64_tr_b16 %s, v56 offset:%d" % (q(24 + 4 * st + 2 * h, 2), st * 4096 + h * 2048))
        a("s_branch L_pollA_w", "L_pollA:", *lda)
        a(*self.spin_count())
        a("L_pollA_w:", "s_waitcnt vmcnt(%d)" % (2 * n - 1), "ds_read_b128 v[8:11], v5", "s_waitcnt vmcnt(%d)" % (2 * n - 2),
          "ds_read_b128 v[12:15], v5 offset:1024")
        ck = self.lines(self.check, [range(8, 12), range(12, 16)], 7, 0)
        a("s_waitcnt lgkmcnt(1)", *ck[:2], "s_waitcnt lgkmcnt(0)", *ck[2:])
        a("s_cbranch_vccnz L_pollA")
        if self.stamps is not True:
            self.stamp("pollA", True)
        a("s_barrier")
        ops = [40, 44, 48, 52, 64, 68, 72, 76]
        rd = ["ds_read_b128 %s, v%d offset:%d" % (q(ops[k]), 20 + (k >> 1), (k & 1) * 4096) for k in range(8)]
        m = self.oahead
        a(*rd[:m])
        self.late_loads("L_l1b")
        for k in range(8):
            a("s_waitcnt lgkmcnt(%d)" % (min(8, m + k) - k - 1))
            self.mfma(8, q(ops[k]), q(24 + 4 * (k >> 1)), k > 0)
            if m + k < 8:
                a(rd[m + k])
        a("v_add_f32 v8, v8, v9", "v_add_f32 v10, v10, v11", "v_add_f32 v8, v8, v10")
        self.pack_pairs(7, 8)
        self.st_cross(7)
        self.stamp("Bpub", True)
        self.colsum_ld(80, OFF_CSG, sb)
        self.layer1("L_l1c")
        self.colsum_ld(24, OFF_CSQ, sw)
        a("L_l1c:")
        wt = self.lines(self.w_tiles, [("d", vWD)], 91, 7)

        def prep_b():
            a = self.a
            self.w_tiles([("g", vWG), ("q", vWQ)], 5, 7)
            a("v_and_b32 v5, 1, v0", "v_lshlrev_b32 v5, 4, v5", "v_lshlrev_b32 v5, v5, s%d" % sLO, "v_bfe_u32 v6, v0, 1, 2")
            for r in range(4):
                a("v_cmp_eq_u32 vcc, %d, v6" % r, "v_cndmask_b32 v%d, 0, v5, vcc" % (vSEL + r))
            self.x_off(94, 7, 6)
            self.st_off(93, 7)
            a("s_bitcmp1_b32 s%d, 0" % sact, "s_cselect_b32 s%d, 0, -1" % stmp)
            self.part_off(92, 7, 10, "s%d" % stmp)
            self.lin(89, 7, (0, 5, 2), (5, 1, 1))
            self.sexpr(100, L_H, (sw, 128))
            a("v_add_u32 v89, s100, v89")
            self.mk_ix(90)
            self.lin(88, 7, (2, 2, 7), (0, 1, 4), (4, 2, 5))
            a("v_add_u32 v88, 0x%x, v88" % L_H)
            a(*[x for x in wt if not x.startswith("ds_")])
            self.sexpr(stmp, 0, (sRow, 1), (sw, 256))
            self.sexpr(sclr, 0, (sRow, 1), (sj, 4))
            a("s_add_u32 s%d, s%d, 0x1000" % (sBst, sBst), "s_add_u32 s%d, s%d, 0x1000" % (sB2, sB2))
        self.prep_split("pollB", self.lines(prep_b), self.red_loads(vX, sBld))
        aux = [self.ld(vX + 4, 91, stmp, n=1)]
        a("s_waitcnt lgkmcnt(0)", "s_cmp_eq_u32 s%d, 0" % sw, "s_cbranch_scc0 L_nored1")
        self.cold += (["L_nored1:", "s_lshl2_add_u32 s100, s%d, s%d" % (slayer, sw), "s_cmp_eq_u32 s100, 5", "s_cbranch_scc0 L_nof2"]
                      + self.lines(self.fill_cross, vX + 8, 2) + ["L_nof2:", "s_waitcnt vmcnt(0)", "s_branch L_red1"])
        self.reduce_x("pollB", vX, vD, sBld)
        self.st_intra("buffer_store_dword", "v7", 94, sXst)
        a("v_lshlrev_b32 v%d, 16, v7" % vRES)
        self.stamp("XBpub", True)
        a("L_red1:", "s_barrier")
        ldx = [self.ld(vX, vA16, sXld)]
        work, _ = schedule(self.lines(self.colsum_fin, 24, vCQ) + self.lines(self.colsum_fin, 80, vCG) + self.lines(self.gemv_zero, vD)
                           + [x + " ; prio=100" for x in self.lines(self.slice_sums, 5, 93, sclr)])
        k = max(i for i, x in enumerate(work) if "_dpp" in x) + 1
        ex = int(self.at["pollXB"][0] <= k)
        work[k:k] = self.lines(self.st_intra, "buffer_store_dword", "v5", 93, sclr)
        self.with_loads("pollXB", work, ldx)
        a(*[x for x in wt if x.startswith("ds_")])
        a("v_lshlrev_b32 v91, 2, v0")
        self.poll(ldx, [range(vX, vX + 4)], 7, "pollXB", self.lines(self.gemv4, vX, vWG, vD, 90), self.lines(self.gemv_zero, vD), extra=ex)
        a(*aux)
        self.gemv4_fin(6, vD)
        self.st_intra("buffer_store_dword", "v6", 92, sCst)
        self.stamp("Cpub", True)
        a("v_mov_b32 v5, 0", "s_bitcmp1_b32 s%d, 1" % sact, "s_cbranch_scc0 L_nod")
        ldc = self.ld4(vX, 91, sCld)
        st = self.lines(self.stats_fin, vX + 4, vD, False) + self.lines(self.sum4_init, vD + 2, vCG)
        self.stats_poll("pollC", aux, vX + 4, st, ldc)
        self.poll(ldc, [range(vX, vX + 4)], 7, "pollC", self.lines(self.sum4, vX, vD, vD + 2))
        a("v_permlane32_swap_b32 v%d, v%d" % (vD, vD + 1), "v_mul_f32 v%d, s%d, v%d" % (vD, sSC, vD),
          "v_mul_f32 v%d, v%d, v%d" % (vD, vD, vD + 1), "v_cvt_pk_bf16_f32 v%d, v%d, v%d" % (vD, vD, vD),
          "ds_write_b16 v89, v%d" % vD, "v_mov_b64 %s, 0" % q(vD + 4, 2), "s_waitcnt lgkmcnt(0)", "s_barrier", "ds_read_b128 %s, v88" % q(vX + 4), "s_waitcnt lgkmcnt(0)")
        self.smf(vD + 4, q(vX + 4), q(vWD, 8), 90)
        a("v_add_f32 v7, v%d, v%d" % (vD + 4, vD + 5))
        self.pack_pairs(5, 7)
        a("L_nod:")
        self.st_cross(5)
        self.stamp("Dpub", True)
        a("s_add_u32 s%d, s%d, 0x1000" % (stmp, sBld))
        self.layer1("L_last")
        a('; ---- operands of the second attention while the cross-die partials travel')
        a("s_waitcnt vmcnt(2) lgkmcnt(0)")

        def prep_d():
            a = self.a
            a("v_mov_b32 v28, v94", "v_mov_b32 v30, v93", "s_add_u32 s%d, s%d, 0x3000" % (sBst, sBst),
              "s_add_u32 s%d, s%d, 0x3000" % (sB2, sB2), "s_add_u32 s%d, s%d, 0x4000" % (sBld, sBld))
            self.mk_ai()
            self.s_zero()
            self.part_off(29, 7, 12)
            self.q_addrs(31, 48, 7)
            self.lin(5, 7, (2, 2, 6), (5, 1, 8), (4, 1, 5), (0, 1, 4))
            self.sexpr(100, L_WQ, (sw, QSTR))
            a("v_add_u32 v5, s100, v5")
            self.lds_or_zero(5, 7, 2)
            self.ml_off(6, 7)
            self.sexpr(98, 1024, (sRow, 1), (sb, 256))
            self.sexpr(sWl, 1024, (sRow, 1), (sj, 4))
            self.sexpr(sWo, 0, (sg, 1 << 17), (sj, 2048), (sw, 512))
            a("s_add_u32 s%d, s%d, 0x%x" % (sclr, sXst, OFF_XD - OFF_XB), "s_add_u32 s99, s%d, 0x%x" % (sXld, OFF_XD - OFF_XB))
        self.prep_split("pollD", self.lines(prep_d), self.red_loads(8, stmp))
        a("s_waitcnt lgkmcnt(0)", "s_cmp_eq_u32 s%d, 0" % sw, "s_cbranch_scc0 L_fill3", "L_redd:")
        self.cold += ["L_fill3:", "s_cmp_eq_u32 s%d, 1" % sw, "s_cbranch_scc0 L_nored2"] + self.lines(self.fill_cross, 16, 3) + ["s_branch L_nored2"]
        self.reduce_x("pollD", 8, 24, stmp)
        self.st_intra("buffer_store_dword", "v7", 28, sclr)
        a("s_cmp_eq_u32 s%d, 2" % slayer, "s_cbranch_scc1 L_out")
        a("v_lshlrev_b32 v%d, 16, v7" % vRES)
        self.stamp("XDpub")
        a("L_nored2:", "s_barrier")
        row = [self.ld(24, 28, 98, n=1)]
        ldx = [self.ld(52, vA16, 99)]
        work = self.lines(self.slice_sums, 26, 30, sWl)
        ex = int(self.at["pollXD"][0] <= len(work))
        work += self.lines(self.st_intra, "buffer_store_dword", "v26", 30, sWl) + ["v_lshlrev_b32 v28, 2, v0"]
        n = self.with_loads("pollXD", work, ldx)
        a("s_waitcnt vmcnt(%d)" % (n + 2))
        self.gemv_zero(8)
        self.poll(ldx, [range(52, 56)], 7, "pollXD", self.lines(self.gemv4, 52, vWQ, 8, vIX), self.lines(self.gemv_zero, 8), extra=ex)
        a(*row)
        self.gemv4_fin(10, 8)
        self.st_intra("buffer_store_dword", "v10", 29, sEst)
        self.stamp("Epub")
        lde = self.ld4(52, 28, sEld)
        st = self.lines(self.stats_fin, 24, 32, True) + self.lines(self.sum4_init, 34, vCQ)
        self.stats_poll("pollE", row, 24, st, lde)
        self.poll(lde, [range(52, 56)], 7, "pollE", self.lines(self.sum4, 52, 32, 34))
        self.stamp("Eget")
        rd = self.q_assemble(32, 31, 48, self.lines(self.next_region) + ["s_mov_b32 s%d, 2" % slayer]
                             + ["v_min_u32 v38, 3, v0", "v_lshlrev_b32 v38, 7, v38"])
        a(self.ld(38, 38, sWo, n=1))
        for i in range(7):
            a("v_mov_b64 %s, 0" % q(vO + 4 * i, 2))
        if self.stamps is not True:
            self.stamp("qrdy")
        a('; ---- second attention, keys and values already on chip')
        x = 128
        ldm = [self.ld(x, vA16, sMLld)]

        def att():
            a = self.a
            self.qk()
            a("s_waitcnt vmcnt(1) ; guards=v[52:55] after=v%d" % (vS + 20))
            a("v_subrev_u32 v23, 0x%x, v31" % (L_Q - L_WQ))
            a("v_mov_b64 %s, 0" % q(vO + 28, 2))
            self.softmax(23, 6)
            self.o_addr()
            for h in range(2):
                self.v_reads(5 + h, lambda i, e: q(8 * i + 4 * h + 2 * e, 2, "a"))
            self.v_reads(7)
            for n in range(4):
                self.p_read(2 * n, 5, n & 1)
                for i in range(8):
                    B = q(128 + 64 * n + 8 * i, 8) if n < 2 else q(8 * i, 8, "a") if n == 2 else "vp[%d]" % i
                    self.smf(vO + 4 * i, q(vQ + 4 * (n & 1)), B)
                    if n == i == 0:
                        for d in self.mlat:
                            a(ldm[0] + " ; lat=%d tail=%d" % (d, self.mltail))
        ls = [x + " prio=%d" % self.p0 if x.endswith("mem=p0") else x for x in self.lines(att)]
        cut = len(ls) - self.mlcut
        out, t1 = schedule(ls[:cut], rd)
        if self.stamps and self.stamps is not True:
            k = max(i for i, x in enumerate(out) if x.startswith("buffer_store")) + 1
            out[k:k] = self.lines(self.stamp, "mlpub")
            k = min(i for i, x in enumerate(out) if x.startswith("v_pk_fma"))
            out[k:k] = self.lines(self.stamp, "maxed")
        a(*out)
        a("s_waitcnt lgkmcnt(0)")
        if self.stamps is not True:
            self.stamp("pv2a")
        L = a.lab("ml2")
        a(L + "_w:")
        fin = ["v_sub_f32 v58, v%d, v20" % x, "v_sub_f32 v59, v%d, v20" % (x + 2), "v_exp_f32 v58, v58", "v_exp_f32 v59, v59",
               "v_mul_f32 v7, v58, v%d" % (x + 1), "v_fmac_f32 v7, v59, v%d" % (x + 3)] + self.lines(self.ml_finish, x)[6:]
        self.check([range(x, x + 4)], 6, len(self.mlat))
        a(*fin[:3])
        a("s_cbranch_vccnz " + L)
        fin = fin[3:]
        if self.stamps is not True:
            self.stamp("mlget")
        t2 = self.sched([x + " ; prio=200" for x in fin] + ls[cut:] + self.lines(self.o_write, 8, 60, True))
        self.est += (t1, t2)
        self.stamp("pv2")
        a("s_branch L_tail", L + ":", *ldm)
        a(*self.spin_count())
        a("s_branch %s_w" % L)
        a('; ---- last layer: one workgroup per slice reduces the partials and writes d_out; the first read follows the acknowledgement of its own stores')
        a("L_last:", "s_lshr_b32 s100, s%d, 2" % sj, "s_xor_b32 s100, s100, s%d" % sg, "s_or_b32 s100, s100, s%d" % sw,
          "s_cmp_eq_u32 s100, 0", "s_cbranch_scc0 L_fin")
        self.x_off(28, 7, 10)
        self.mk_srd(sWF, sOUT, "4096")
        a("s_lshl_b32 s%d, s%d, 5" % (sclr, sj))
        a("s_waitcnt vmcnt(0)")
        a(*self.red_loads(8, stmp))
        a("s_branch L_redd")
        a("L_out:")
        if self.probe:
            self.stamp("out")
            k0, k = map(self.stamp_names.index, self.probe[:2])
            a("v_readlane_b32 s100, v4, %d" % k, "v_readlane_b32 s101, v4, %d" % k0, "s_sub_u32 s100, s100, s101", "s_mul_i32 s100, s100, %d" % self.probe[2],
              "s_min_u32 s100, s100, 100000", "s_memrealtime s[0:1]", "s_waitcnt lgkmcnt(0)", "s_mov_b32 s101, s0",
              "L_probe:", "s_memrealtime s[0:1]", "s_waitcnt lgkmcnt(0)", "s_sub_u32 s0, s0, s101", "s_cmp_lt_u32 s0, s100",
              "s_cbranch_scc1 L_probe")
        a("L_fin:")
        if self.stamps and not self.probe:
            self.stamp("end")
            a("s_lshl_b32 s100, s2, 2", "s_add_u32 s100, s100, s%d" % sw, "s_lshl_b32 s100, s100, 7",
              "s_add_u32 s100, s100, 0x%x" % (STAMP_OFF - 2 * LS), "s_mov_b32 s%d, 0x1000000" % (sWS + 2),
              "v_writelane_b32 v4, s%d, 30" % sspin, "v_writelane_b32 v4, s%d, 31" % (sWF + 2),
              "v_lshlrev_b32 v9, 2, v0", "v_cmp_gt_u32 vcc, 32, v0", "s_and_saveexec_b64 s[98:99], vcc",
              "buffer_store_dword v4, v9, %s, s100 offen sc1" % srd(sWS))
        a("L_end:", "s_endpgm")
        a(*self.cold)
        a("L_codeend:")

    def build(self):
        self.prologue()
        self.stream()
        self.chain()
        if self.jall:
            old, self.a = self.a.l, Asm()
            on = False
            for k, i in enumerate(old):
                on = on or i.label == "L_entered"
                hit = i.op == "s_barrier" or old[k - 1].op == "s_barrier" or (i.vmem and " nt" not in i.text) or i.op.startswith("ds_write") \
                    or (i.ds and not old[k - 1].ds and not old[k - 1].mfma)
                if on and hit and i.op:
                    L = "L_ja%d" % k
                    self.a("s_cselect_b32 s92, 1, 0", "s_memtime s[0:1]", "s_waitcnt lgkmcnt(0)", "s_mul_i32 s0, s0, 0x9e3779b1",
                           "s_lshr_b32 s0, s0, %d" % (32 - self.jall[0]), "s_cmp_eq_u32 s0, 0", "s_cbranch_scc0 " + L,
                           *["s_sleep %d" % self.jall[1]] * self.jall[2], L + ":", "s_cmp_eq_u32 s92, 1")
                self.a.l.append(i)
        self.a.pad()
        if self.win:
            self.est += align(self.a, self.win, "L_entered")
        head = open("cdna_kernels/" + KNAME[:-7] + ".s.ref").read().split("; Override launch")[0]
        return (head + "; @launch grid=(256,1,1) block=(256,1,1) lds=163840\n" + ABOUT +
                '.amdgcn_target "amdgcn-amd-amdhsa--gfx950"\n.text\n.globl %s\n.p2align 8\n.type %s,@function\n%s:\n' % (KNAME, KNAME, KNAME)
                + self.a.text() +
                '.section .rodata,"a"\n.p2align 6\n.amdhsa_kernel %s\n  .amdhsa_next_free_vgpr 512\n  .amdhsa_next_free_sgpr 102\n'
                "  .amdhsa_accum_offset 256\n  .amdhsa_group_segment_fixed_size 0\n  .amdhsa_kernarg_size 96\n"
                "  .amdhsa_user_sgpr_count 2\n  .amdhsa_user_sgpr_kernarg_segment_ptr 1\n  .amdhsa_system_sgpr_workgroup_id_x 1\n"
                ".end_amdhsa_kernel\n" % KNAME)


if __name__ == "__main__":
    out = sys.argv[1]
    kw = eval("dict(%s)" % (sys.argv[2] if len(sys.argv) > 2 else ""))
    g = Gen(**kw)
    s = g.build()
    open(out, "w").write(s)
    if len(sys.argv) > 3:
        print("estimated attention cycles", g.est)
    if g.stamps:
        open(out[:-2] + ".names", "w").write("\n".join(g.stamp_names))
```

```python
import struct
import sys
from asmlib import Asm, align, schedule

KNAME = "interleave_layers__gqa_block_cached__glu_gated_bilinear__decode_kernel"

LS = 1 << 20
OFF_ML, OFF_A, OFF_C, OFF_XB, OFF_ST, OFF_XD, OFF_E = 0, 4 << 10, 36 << 10, 52 << 10, 56 << 10, 60 << 10, 64 << 10
OFF_CSG, OFF_CSQ = 60 << 10, 68 << 10
WS_SIZE = 3 * LS
T1 = [(OFF_C, 11), (LS + OFF_ML, 1)]
OFF_TK = 1 << 20
OFF_XW = 5 << 20
STAMP_OFF = 8 << 20
OOB = 0x7FFF0000

RING = 24576
L_WQ = 4 * RING
L_WO = L_WQ + 16384
L_WG = L_WO + 16384
L_WD = L_WG + 16384
L_SCR = L_WD + 8192
L_H = L_SCR + 1024
L_Q, QSTR = L_SCR + 1536, 2112
L_OOB = 0x30000
assert L_SCR + 8192 == 163840

sK, sV, sWS, sWF, sWL, sOUT, sDBG, sXI, sT = 28, 32, 36, 40, 44, 48, 52, 56, 96
sw, sg, sj, sb, ss, su, sring, srot, stmp, slayer = range(60, 70)
(sMLst, sMLld, sAst, sAld, sBst, sBld, sXst, sXld, sCst, sCld, sCS, sS1, sSC, sRow, sEst, sEld) = range(70, 86)
sWo, sWl = 86, 87
sM1, smode = 88, 90
sspin, scmp = 94, 95
sclr, slead, sact = 3, 14, 15
sLO, sHI = 6, 7
sXW, sB2, svote = 24, 23, 22
sWo2, sWl2 = 8, 9
SPIN_LIMIT = 1 << 18

vL, vA16, vTRV, vRES = 0, 1, 2, 3
vQ, vO, vIX, vAI, vS = 8, 24, 56, 56, 64
vWG, vWD, vWQ, vCG, vCQ, vSEL, vX, vD = 8, 24, 32, 48, 50, 52, 56, 72
vKS, vKR = 240, 244
ORDER = [0, 1, 2, 3, 5, 6, 7, 4]
SLOT = {5: 2, 6: 4, 7: 0}
SCALE = 128 ** -0.5 * 1.4426950408889634
ONES = "0x3f803f80"


def f32(x):
    return "0x%08x" % struct.unpack("<I", struct.pack("<f", x))[0]


def q(r, n=4, k="v"):
    return "%s[%d:%d]" % (k, r, r + n - 1)


def srd(r):
    return "s[%d:%d]" % (r, r + 3)


ABOUT = """;
; One persistent workgroup per CU: workgroup i owns kv head g = i & 7, batch b = i >> 6 and key split s = (i >> 3) & 7.
; Hand-offs go through d_ws slots that are first filled with 0xFFFFFFFF inside this launch and then read until no such word
; Two choices affect speed only: which of the two copies is read (probe reads at entry) and how many stream loads a
; workgroup keeps in flight (arrival rank at two points of the stream).
"""


class Gen:
    def __init__(self, depth=6, d0={5: 8, 6: 8}, burst=4, lag=2, tq=(2, 2, 3, 3), tg=(6, 6, 7, 7), ogate=(7, 3, 3, 3, 3),
                 sync=(4, 6, 9, 11, 13, 16, 18), clr1=4, ipf=24, tclr=25, tml=27, tfin=29, tp5=30,
                 dbl="pollXB,pollC,pollXD,pollE", at={}, kx=1, nst_=2, oahead=4, mlat=(208, 84), mltail=500, mlcut=1, p0=400,
                 win=32, near=1, force_slow=False, stamps=False, cyc=False, probe=None, jitter=None, jall=None, reuse=True, tk=(14, 22), tkn=8, tkw=1, th=(3, 6), lv=((5, 6, 7),)):
        self.__dict__.update(locals())
        self.a = Asm()
        self.nst = 0
        self.cold = []
        self.nslow = 0
        self.est = ()
        self.at = dict(pollA=(18, 34), pollB=(88,), pollXB=(8, 17), pollC=(0, 11), pollD=(84,), pollXD=(2, 10), pollE=(0, 11))
        self.at.update(at)
        self.stamp_names = []

    def stamp(self, name, per_layer=False):
        if self.jitter:
            self.nslow += 1
            L = "L_jit%d" % self.nslow
            self.a("s_memtime s[0:1]", "s_waitcnt lgkmcnt(0)", "s_mul_i32 s0, s0, 0x9e3779b1", "s_lshr_b32 s0, s0, %d" % (32 - self.jitter[0]),
                   "s_cmp_eq_u32 s0, 0", "s_cbranch_scc0 " + L, *["s_sleep %d" % self.jitter[1]] * self.jitter[2], L + ":")
            return
        if not self.stamps or (self.stamps is not True and name not in self.stamps):
            return
        a = self.a
        k = self.nst
        self.nst += 2 if per_layer else 1
        assert self.nst <= 28
        a("%s s[0:1]" % ("s_memtime" if self.cyc else "s_memrealtime"), "s_waitcnt lgkmcnt(0)")
        if per_layer:
            self.stamp_names += [name + "/1", name + "/2"]
            a("s_add_u32 m0, s%d, %d" % (slayer, k - 1), "v_writelane_b32 v4, s0, m0")
        else:
            self.stamp_names.append(name)
            a("v_writelane_b32 v4, s0, %d" % k)

    def mk_srd(self, d, p, size):
        self.a("s_mov_b32 s%d, s%d" % (d, p), "s_mov_b32 s%d, s%d" % (d + 1, p + 1),
               "s_mov_b32 s%d, %s" % (d + 2, size), "s_mov_b32 s%d, 0x20000" % (d + 3))

    def lin(self, d, t, *terms):
        first = True
        for sh, bits, sc in terms:
            r = d if first else t
            if sh + bits >= 6:
                src = vL
                if sh:
                    self.a("v_lshrrev_b32 v%d, %d, v0" % (r, sh)); src = r
            elif sh == 0:
                self.a("v_and_b32 v%d, %d, v0" % (r, (1 << bits) - 1)); src = r
            else:
                self.a("v_bfe_u32 v%d, v0, %d, %d" % (r, sh, bits)); src = r
            if first:
                if sc or src != d:
                    self.a("v_lshlrev_b32 v%d, %d, v%d" % (d, sc, src))
            else:
                self.a("v_lshl_add_u32 v%d, v%d, %d, v%d" % (d, src, sc, d))
            first = False

    def sexpr(self, d, const, *terms):
        a = self.a
        first = True
        for reg, mult in terms:
            r = d if first else 101
            if mult & (mult - 1) == 0:
                a("s_lshl_b32 s%d, s%d, %d" % (r, reg, mult.bit_length() - 1))
            else:
                a("s_mul_i32 s%d, s%d, %d" % (r, reg, mult))
            if not first:
                a("s_add_u32 s%d, s%d, s101" % (d, d))
            first = False
        if const:
            a("s_add_u32 s%d, s%d, 0x%x" % (d, d, const))

    def oob_unless(self, v, t, cond):
        self.a(cond, "v_mov_b32 v%d, 0x%x" % (t, OOB), "v_cndmask_b32 v%d, v%d, v%d, vcc" % (v, t, v))

    def even_only(self, v, t, cmp="0"):
        self.a("v_and_b32 v%d, 1, v0" % t)
        self.oob_unless(v, t, "v_cmp_eq_u32 vcc, %s, v%d" % (cmp, t))

    def st_intra(self, op, data, voff, soff, both=False):
        a = self.a
        slow = "%s %s, v%d, %s, s%d offen sc1" % (op, data, voff, srd(sWL), soff)
        a("%s %s, v%d, %s, s%d offen" % (op, data, voff, srd(sWF), soff))
        if both:
            tk = a.mark()
            a(slow)
            a.uncounted(tk)
            return
        self.nslow += 1
        L = "L_slow%d" % self.nslow
        a("s_cmp_eq_u32 s%d, 0" % (sWF + 2), "s_cbranch_scc1 " + L, L + "_b:")
        self.cold += [L + ":", slow, "s_branch %s_b" % L]

    def ld(self, r, voff, soff, off=0, n=4, rs=sWS):
        return "buffer_load_dword%s %s, v%d, %s, s%d offen offset:%d sc1" % (
            "x%d" % n if n > 1 else "", q(r, n) if n > 1 else "v%d" % r, voff, srd(rs), soff, off)

    def ld4(self, r, voff, soff):
        return [self.ld(r + k, voff, soff, 256 * k, n=1) for k in range(4)]

    def spin_count(self):
        return ["s_add_u32 s%d, s%d, 1" % (sspin, sspin), "s_cmp_lt_u32 s%d, 0x%x" % (sspin, SPIN_LIMIT), "s_cselect_b32 s%d, -2, -1" % scmp]

    def rounds(self, name):
        return 1 + self.dbl.split(",").count(name)

    def poll(self, loads, regs, acc, name, work=(), reinit=(), spec=None, again=None, extra=0):
        a = self.a
        L = "L_" + name
        k, n = self.rounds(name), len(loads)
        if again:
            self.check(regs, acc, len(regs), spec)
            a("s_cbranch_vccz %s_d" % L, L + ":", *loads)
            a(*self.spin_count())
            self.check(regs, acc, again * n + len(regs), spec)
            a("s_cbranch_vccnz " + L, "s_nop 2", L + "_d:")
        else:
            a("s_branch %s_w" % L, L + ":", *loads)
            a(*self.spin_count())
            a(*reinit)
            a(L + "_w:")
            self.check(regs, acc, (k - 1) * n + len(regs) + extra, spec)
            a(*work)
            a("s_cbranch_vccnz " + L, L + "_d:")
        if self.stamps is not True:
            self.stamp(name, True)

    def stats_poll(self, name, aux, r, st, loads):
        a = self.a
        self.check_or_poll(aux, [[r]], 7, name + "s", a.mark() - 1, work=st[:self.nst_])
        self.with_loads(name, st[self.nst_:], loads)

    def idle(self, n):
        if n >= 16:
            self.a("s_sleep %d" % (n // 16))
        if n > 0 and n % 16:
            self.a("s_nop %d" % (n % 16 - 1))

    def with_loads(self, name, work, loads):
        pos = 0
        for d in self.at[name][:self.rounds(name)]:
            self.a(*work[pos:pos + d])
            self.idle(pos + d - max(pos, len(work)))
            self.a(*loads)
            pos += d
        self.a(*work[pos:])
        return self.rounds(name)

    def check(self, regs, acc, n, spec=None):
        a = self.a
        have = None
        for i, part in enumerate(regs):
            if n:
                a("s_waitcnt vmcnt(%d)" % (n - 1 - i))
            if spec and n == len(regs):
                spec(i)
            pool = ([have] if have is not None else []) + list(part)
            while len(pool) > 1:
                m = min(3, len(pool))
                a(("v_max3_u32 v%d, v%d, v%d, v%d" if m == 3 else "v_max_u32 v%d, v%d, v%d") % (acc, *pool[:m]))
                pool = [acc] + pool[m:]
            have = pool[0]
            if i == len(regs) - 1:
                a("v_cmp_lt_u32 vcc, s%d, v%d" % (scmp, have))
            if spec and n != len(regs):
                spec(i)

    def check_or_poll(self, loads, regs, acc, name, wait, pre=(), work=()):
        a = self.a
        tk = a.mark()
        a("s_branch L_%s_c" % name, "L_%s_r:" % name, *pre)
        a(*loads)
        a(*self.spin_count())
        a("s_waitcnt vmcnt(0)", "L_%s_c:" % name)
        a.uncounted(tk)
        a.wait_vm(wait)
        self.check(regs, acc, 0)
        a(*work)
        a("s_cbranch_vccnz L_%s_r" % name)

    def mfma(self, d, A, B, c):
        self.a("v_mfma_f32_16x16x32_bf16 %s, %s, %s, %s" % (q(d), A, B, q(d) if c else "0"))

    def smf(self, d, A, B, ix=None):
        self.a("v_smfmac_f32_16x16x64_bf16 %s, %s, %s, v%d" % (q(d), A, B, ix or vIX))

    def mk_ix(self, v):
        self.a("v_and_b32 v%d, 1, v0" % v, "v_mul_u32_u24 v%d, 0xaaaa, v%d" % (v, v), "v_add_u32 v%d, 0x4444, v%d" % (v, v))

    def dpp(self, op, d, s0, s1, ctl, rm="0xf"):
        self.a("%s_dpp v%d, v%d, v%d %s row_mask:%s bank_mask:0xf" % (op, d, s0, s1, ctl, rm))

    def pack_pairs(self, d, v):
        self.a("v_mov_b32_dpp v%d, v%d quad_perm:[1,1,3,3] row_mask:0xf bank_mask:0xf" % (d, v),
               "v_cvt_pk_bf16_f32 v%d, v%d, v%d" % (d, v, d))

    def tile_issue(self, T, between=None):
        a = self.a
        if T:
            a("s_add_u32 s%d, s%d, 0x20000" % (srot, srot), "s_and_b32 s%d, s%d, 0x1e0000" % (srot, srot))
        a("s_or_b32 s%d, s%d, s%d" % (stmp, srot, su), "s_add_u32 m0, s%d, %d" % (sring, (T % 6) * 4096))
        if T >= 6:
            a("s_waitcnt lgkmcnt(%d)" % (0 if between else 1))
        for jj in range(4):
            self.throttle(T, 4 * T + jj >= 128 - self.burst)
            va = vKS + jj if T < 16 else 5 + (jj & 1)
            a("buffer_load_dwordx4 v%d, %s, s%d offen offset:%d nt lds" % (va, srd(sK if T < 16 else sV), stmp, jj * 1024))
            self.ltok.append(a.mark())
            self.tok[T] = a.mark()
            if between:
                between(jj)
        if 16 <= T < 31:
            a("v_xor_b32 v5, 64, v5", "v_xor_b32 v6, 64, v6")

    def throttle(self, T, burst):
        a = self.a
        if self.tk and T > self.tk[0] + 3 and not burst:
            lv = self.lv[T % len(self.lv)]
            L = a.lab("th")
            for m in (2, 1, 0):
                if m == 2 or lv[m] != lv[m + 1]:
                    if m < 2:
                        a("s_cmp_gt_u32 s%d, %d" % (smode, m), "s_cbranch_scc1 " + L)
                    a.wait_vm(self.ltok[-lv[m]])
            a(L + ":")
            return
        d = self.d0.get(T, self.depth)
        if T > 1 and not burst and d < len(self.ltok):
            a.wait_vm(self.ltok[-d])

    def vreg(self, p, i):
        return 128 + 64 * (p >> 1) + 8 * i + 4 * (p & 1) if p < 4 else (96 if p == 4 else vS) + 4 * i

    def v_reads(self, p, dst=None):
        slot = (16 + 2 * p) % 6
        for i in range(8):
            for h in range(2):
                d = dst(i, h) if dst else q(self.vreg(p, i) + 2 * h, 2)
                self.a("ds_read_b64_tr_b16 %s, v%d offset:%d ; mem=v" % (d, vAI + i if i else vTRV, slot * 4096 + h * 512))

    def tile_consume(self, T):
        a = self.a
        if T < 16:
            a.wait_vm(self.tok[T])
            for st in range(4):
                a("ds_read_b128 %s, v%d offset:%d" % (q(16 * T + 4 * st, 4, "a"), vKR + st, (T % 6) * 4096))
        elif T & 1:
            a.wait_vm(self.tok[T])
            self.v_reads((T - 16) >> 1)

    def mk_ai(self):
        for i in range(1, 8):
            self.a("v_xor_b32 v%d, %d, v%d" % (vAI + i, i << 5, vTRV))
        self.mk_ix(vIX)

    def weight_load(self, kind, k, T, va=52):
        a = self.a
        t = va + 1
        pitch = {"q": 8192, "g": 3584, "d": 1024, "o": 1024}[kind]
        if k == 0:
            if kind == "o":
                self.lin(va, t, (5, 1, 14), (3, 2, 10), (0, 3, 4))
                self.mk_srd(sT, 12, "0x400000")
                self.sexpr(sWo, 0, (sg, 512 * 1024), (sb, 128 * 1024), (sw, 4096), (ss, 128))
                self.sexpr(sWl, L_WO, (sw, 4096))
            else:
                a("v_lshrrev_b32 v%d, 3, v0" % va, "v_mul_u32_u24 v%d, %d, v%d" % (va, pitch, va), "v_and_b32 v%d, 7, v0" % t,
                  "v_lshl_add_u32 v%d, v%d, 4, v%d" % (va, t, va))
            a("v_and_b32 v%d, 32, v0" % t, "v_xor_b32 v%d, v%d, v%d" % (va, va, t), "v_xor_b32 v%d, 64, v%d" % (t, va))
            if kind == "q":
                self.mk_srd(sT, 10, "0x400000")
                self.sexpr(sWo, 0, (sb, 128 * pitch), (sw, 32 * pitch), (sg, 1024), (ss, 128))
                self.sexpr(sWl, L_WQ, (sw, 4096))
            if kind in "gd":
                a("s_lshr_b32 s100, s%d, 1" % sg, "s_mul_i32 s100, s100, 7", "s_and_b32 s%d, s%d, 1" % (stmp, sg),
                  "s_lshl_b32 s%d, s%d, 2" % (stmp, stmp), "s_add_u32 s100, s100, s%d" % stmp)
            if kind == "g":
                a("s_and_b32 s%d, s%d, 3" % (stmp, ss), "s_add_u32 s100, s100, s%d" % stmp)
                self.sexpr(sWo, 0, (sb, 128 * pitch), (sw, 32 * pitch), (100, 128))
                self.sexpr(sWl, L_WG, (sw, 4096))
                a("s_bitcmp1_b32 s%d, 0" % sact, "s_cselect_b32 s100, 0x%x, 0" % (512 * pitch))
                self.mk_srd(sT, 16, "s100")
                a("s_cmp_ge_u32 s%d, 4" % ss, "s_cselect_b32 s%d, s18, s16" % sT, "s_cselect_b32 s%d, s19, s17" % (sT + 1))
            if kind == "d":
                a("s_add_u32 s100, s100, s%d" % sb)
                self.sexpr(sWo2, 0, (100, 64 * pitch), (sw, 16 * pitch), (ss, 128))
                self.sexpr(sWl2, L_WD, (sw, 2048))
                a("s_bitcmp1_b32 s%d, 1" % sact, "s_cselect_b32 s100, 0x%x, 0" % (1792 * pitch))
                self.mk_srd(sXI, 20, "s100")
            if T is None:
                return
        self.weight_issue(kind, k, T, va)

    def weight_issue(self, kind, k, T, va):
        a = self.a
        pitch = {"q": 8192, "g": 3584, "d": 1024, "o": 1024}[kind]
        so, sl, rs = (sWo2, sWl2, sXI) if kind == "d" else (sWo, sWl, sT)
        a("s_add_u32 s%d, s%d, 0x%x" % (stmp, so, (32 if kind == "o" else 8) * pitch * k), "s_add_u32 m0, s%d, 0x%x" % (sl, 1024 * k))
        if T < 31:
            self.throttle(T, False)
        a("buffer_load_dwordx4 v%d, %s, s%d offen nt lds" % (va + (k & 1), srd(rs), stmp))
        self.ltok.append(a.mark())
        self.wtok[kind] = a.mark()

    def lines(self, fn, *args):
        keep, self.a = self.a, Asm()
        fn(*args)
        out, self.a = [i.text for i in self.a.l], keep
        return out

    def sched(self, lines, pre=()):
        out, t = schedule(lines, pre)
        self.a(*out)
        return t

    def s_zero(self):
        for r in range(vS, vS + 32, 2):
            self.a("v_mov_b64 %s, 0" % q(r, 2))

    def qk(self):
        a = self.a
        for k, p in enumerate(ORDER):
            d = vS + 4 * k
            for sg_ in range(2):
                for hf in range(2):
                    self.smf(d, q(vQ + 8 * sg_ + 4 * hf), q(16 * (2 * p + sg_) + 8 * hf, 8, "a"))
            a("v_add_f32 v%d, v%d, v%d" % (d, d, d + 1), "v_add_f32 v%d, v%d, v%d" % (d + 1, d + 2, d + 3))
            a("v_max3_f32 v7, v7, v%d, v%d" % (d, d + 1) if k else "v_max_f32 v7, v%d, v%d" % (d, d + 1))

    def ml_off(self, v, t):
        self.a("v_mov_b32 v%d, v%d" % (v, vA16), "v_and_b32 v%d, 15, v0" % t)
        self.oob_unless(v, t, "v_cmp_eq_u32 vcc, 0, v%d" % t)

    def softmax(self, vw, voff):
        a = self.a
        for k in (1, 2, 4, 8):
            self.dpp("v_max_f32", 7, 7, 7, "row_ror:%d" % k)
        a("v_mul_f32 v20, s%d, v7" % sSC, "s_mov_b32 s100, %s" % ONES)
        for k in range(8):
            r = q(vS + 4 * k, 2)
            a("v_pk_fma_f32 %s, %s, s[%d:%d], v[20:21] op_sel_hi:[1,0,0] neg_lo:[0,0,1] neg_hi:[0,0,1]" % (r, r, sSC, sSC + 1))
        for k in range(8):
            r = vS + 4 * k
            a("v_exp_f32 v%d, v%d" % (r, r), "v_exp_f32 v%d, v%d" % (r + 1, r + 1), "v_cvt_pk_bf16_f32 v%d, v%d, v%d" % (r + 2, r, r + 1))
            if k & 1:
                a("ds_write2st64_b32 v%d, v%d, v%d offset0:%d offset1:%d ; mem=p%d" % (vw, r - 2, r + 2, k - 1, k, k - 1))
        for k in range(8):
            a("v_dot2_f32_bf16 v21, v%d, s100, %s" % (vS + 4 * k + 2, "v21" if k else "0"))
        for k in (1, 2, 4, 8):
            self.dpp("v_add_f32", 21, 21, 21, "row_ror:%d" % k)
        self.st_intra("buffer_store_dwordx2", "v[20:21]", voff, sMLst, both=True)

    def ml_finish(self, r):
        a = self.a
        a("v_sub_f32 v%d, v%d, v20" % (r, r), "v_sub_f32 v%d, v%d, v20" % (r + 2, r + 2),
          "v_exp_f32 v%d, v%d" % (r, r), "v_exp_f32 v%d, v%d" % (r + 2, r + 2),
          "v_mul_f32 v7, v%d, v%d" % (r, r + 1), "v_fmac_f32 v7, v%d, v%d" % (r + 2, r + 3))
        for k in (1, 2, 4, 8):
            self.dpp("v_add_f32", 7, 7, 7, "row_ror:%d" % k)
        a("v_rcp_f32 v7, v7")

    def lds_or_zero(self, v, t, mask, val=0):
        self.a("v_and_b32 v%d, %d, v0" % (t, mask), "v_cmp_eq_u32 vcc, %d, v%d" % (val, t), "v_mov_b32 v%d, 0x%x" % (t, L_OOB),
               "v_cndmask_b32 v%d, v%d, v%d, vcc" % (v, t, v))

    def p_read(self, k, va, buf):
        self.a("ds_read_b128 %s, v%d offset:%d ; mem=p%d" % (q(vQ + 4 * buf), va, k * 256, k & ~1))

    def pv_dense(self, p, buf, lgkm=None):
        for i in range(8):
            if lgkm is not None:
                self.a("s_waitcnt lgkmcnt(%d)" % lgkm(i))
            self.mfma(vO + 4 * i, q(vQ + 4 * buf), q(self.vreg(p, i)), p > 0)

    def o_addr(self):
        self.sexpr(4, L_SCR, (sw, 512))
        self.a("v_and_b32 v22, 48, v0", "v_mul_u32_u24 v22, 112, v22", "v_add3_u32 v22, v22, v%d, s4" % vA16)

    def o_write(self, t0, t1, sparse):
        a = self.a
        for h, t in enumerate((t0, t1)):
            for i in range(4):
                o = vO + 16 * h + 4 * i
                a("v_add_f32 v%d, v%d, v%d" % (t + i, o, o + 1) if sparse else "v_mul_f32 v%d, v7, v%d" % (t + i, o))
            if sparse:
                for i in (0, 2):
                    a("v_pk_mul_f32 %s, %s, v[6:7] op_sel:[0,1] op_sel_hi:[1,1]" % (q(t + i, 2), q(t + i, 2)))
            a("ds_write_b128 v22, %s offset:%d" % (q(t), 256 * h))

    def w_tiles(self, kinds, va, t):
        a = self.a
        last = None
        for kind, dst in kinds:
            qs = 11 if kind == "d" else 12
            if qs != last:
                self.lin(va, t, (4, 1, 5), (3, 1, 6))
                a("s_lshl_b32 s100, s%d, 5" % sw, "v_xor_b32 v%d, s100, v%d" % (va, va), "v_add_u32 v%d, 0x%x, v%d" % (va, L_WQ, va))
                for sh, bits, sc in ((5, 1, qs), (3, 1, 10), (4, 1, 9), (2, 1, 7), (0, 2, 3)):
                    a("v_bfe_u32 v%d, v0, %d, %d" % (t, sh, bits), "v_lshl_add_u32 v%d, v%d, %d, v%d" % (va, t, sc, va))
                last = qs
            base = {"q": L_WQ, "g": L_WG, "d": L_WD}[kind] - L_WQ
            for kb in range(2 if kind == "d" else 4):
                for h in range(2):
                    a("ds_read_b64_tr_b16 %s, v%d offset:%d" % (q(dst + 4 * kb + 2 * h, 2), va,
                                                                  base + (kb & 1) * (2 << qs) + (kb >> 1) * 2048 + h * 256))

    def gemv_zero(self, d):
        self.a("v_mov_b64 %s, 0" % q(d, 2), "v_mov_b64 %s, 0" % q(d + 6, 2))

    def gemv4(self, x, W, d, ix):
        for k in range(2):
            self.smf(d + 4 * k, q(x), q(W + 8 * k, 8), ix)

    def gemv4_fin(self, out, d):
        self.a("v_add_f32 v%d, v%d, v%d" % (d, d, d + 1), "v_add_f32 v%d, v%d, v%d" % (d + 6, d + 6, d + 7),
               "v_add_f32 v%d, v%d, v%d" % (d, d, d + 6))
        self.pack_pairs(out, d)

    def colsum_pub(self, W, ones, d, va, t, off, *terms):
        a = self.a
        for r in range(4):
            a("v_mov_b32 v%d, %s" % (ones + r, ONES))
        self.lin(va, t, (0, 1, 10), (1, 3, 4))
        self.oob_unless(va, t, "v_cmp_gt_u32 vcc, 16, v0")
        self.sexpr(100, off, (sCS, 1), (sb, 4), (sw, 128), *terms)
        a("s_waitcnt lgkmcnt(0)")
        for kb in range(4):
            self.mfma(d, q(ones), q(W + 4 * kb), kb > 0)
        self.st_intra("buffer_store_dword", "v%d" % d, va, 100)

    def colsum_ld(self, r, off, sel):
        self.sexpr(100, off, (sCS, 1), (sel, 2048))
        self.a(self.ld(r, vA16, 100, 0), self.ld(r + 4, vA16, 100, 1024))

    def colsum_fin(self, r, c):
        for k in range(2):
            b = r + 4 * k
            self.a("v_add_f32 v%d, v%d, v%d" % (b, b, b + 1), "v_add_f32 v%d, v%d, v%d" % (b + 2, b + 2, b + 3),
                   "v_add_f32 v%d, v%d, v%d" % (b, b, b + 2), "v_mul_f32 v%d, %s, v%d" % (c + k, f32(-1.0 / 512), b))

    def stats(self, x, t, att):
        a = self.a
        s1, s2 = t, t + 1
        a("s_mov_b32 s100, %s" % ONES)
        for k in range(4):
            a("v_dot2_f32_bf16 v%d, v%d, s100, %s" % (s1, x + k, "v%d" % s1 if k else "0"),
              "v_dot2_f32_bf16 v%d, v%d, v%d, %s" % (s2, x + k, x + k, "v%d" % s2 if k else "0"))
        a("v_permlane32_swap_b32 v%d, v%d" % (s1, s2), "v_add_f32 v%d, v%d, v%d" % (s1, s1, s2))
        self.stats_fin(s1, t, att)

    def slice_sums(self, t, voff, soff):
        a = self.a
        a("v_mul_f32 v%d, v%d, v%d" % (t + 1, vRES, vRES))
        self.dpp("v_add_f32", t, vRES, vRES, "row_ror:8")
        self.dpp("v_add_f32", t + 1, t + 1, t + 1, "row_ror:8")
        a("v_cndmask_b32 v%d, v%d, v%d, s[%d:%d]" % (t, t, t + 1, sM1, sM1 + 1))
        for ctl in ("quad_perm:[1,0,3,2]", "quad_perm:[2,3,0,1]", "row_half_mirror"):
            self.dpp("v_add_f32", t, t, t, ctl)

    def st_off(self, v, t):
        self.lin(v, t, (5, 1, 8), (4, 1, 9), (3, 1, 7))
        self.a("v_and_b32 v%d, 7, v0" % t, "v_add_u32 v%d, s%d, v%d" % (t, sw, t))
        self.oob_unless(v, t, "v_cmp_eq_u32 vcc, 0, v%d" % t)

    def stats_fin(self, x, t, att):
        a = self.a
        s1, s2 = t, t + 1
        for k in (1, 2, 4, 8):
            self.dpp("v_add_f32", s1, x if k == 1 else s1, x if k == 1 else s1, "row_ror:%d" % k)
        self.dpp("v_add_f32", s1, s1, s1, "row_bcast:15", "0xa")
        a("v_readlane_b32 s%d, v%d, 31" % (sS1, s1), "v_mul_f32 v%d, %s, v%d" % (s1, f32(1.0 / 512), s1),
          "v_mov_b32 v%d, s%d" % (s2, sS1), "v_mul_f32 v%d, %s, v%d" % (s2, f32(1.0 / 512), s2),
          "v_fma_f32 v%d, -v%d, v%d, v%d" % (s1, s2, s2, s1), "v_max_f32 v%d, 0, v%d" % (s1, s1),
          "v_add_f32 v%d, %s, v%d" % (s1, f32(1e-5), s1))
        if att:
            a("v_rsq_f32 v%d, v%d" % (s1, s1), "v_mul_f32 v%d, %s, v%d" % (s1, f32(SCALE), s1))
        else:
            a("v_rcp_f32 v%d, v%d" % (s1, s1), "s_nop 0")
        a("v_readlane_b32 s%d, v%d, 63" % (sSC, s1))

    def sum4_init(self, acc, c):
        self.a("v_mul_f32 v%d, s%d, v%d" % (acc, sS1, c), "v_mul_f32 v%d, s%d, v%d" % (acc + 1, sS1, c + 1))

    def sum4(self, x, acc, init):
        for k in range(4):
            c = acc if k else init
            self.a("v_dot2_f32_bf16 v%d, v%d, s%d, v%d" % (acc, x + k, sLO, c),
                   "v_dot2_f32_bf16 v%d, v%d, s%d, v%d" % (acc + 1, x + k, sHI, c + 1))

    def q_addrs(self, vw, vr, t):
        a = self.a
        self.lin(vw, t, (3, 3, 5), (0, 1, 4), (1, 2, 2))
        self.sexpr(100, L_Q, (sw, QSTR))
        a("v_add_u32 v%d, s100, v%d" % (vw, vw))
        self.lin(vr, t, (4, 2, 5), (0, 1, 4))
        a("v_bfe_u32 v%d, v0, 2, 2" % t, "v_mul_u32_u24 v%d, %d, v%d" % (t, QSTR, t), "v_add_u32 v%d, v%d, v%d" % (vr, vr, t),
          "v_add_u32 v%d, 0x%x, v%d" % (vr, L_Q, vr), "v_mov_b32 v%d, v%d" % (vr + 1, vr))
        self.lds_or_zero(vr, t, 2, 0)
        self.lds_or_zero(vr + 1, t, 2, 2)

    def q_assemble(self, acc, vw, vr, fill=()):
        a = self.a
        a("v_cvt_pk_bf16_f32 v%d, v%d, v%d" % (acc, acc, acc + 1), "ds_write_b32 v%d, v%d" % (vw, acc), *fill)
        a("s_waitcnt lgkmcnt(0)", "s_barrier")
        rd = ["ds_read_b128 %s, v%d offset:%d" % (q(vQ + 4 * st), vr + (st >> 1), (st & 1) * 128) for st in range(4)]
        a(*rd)
        return rd

    def late_loads(self, name):
        self.layer1(name)
        for k in range(2):
            self.weight_issue("d", k, 32, 62)
        self.touch(59)
        self.a(name + ":")

    def next_region(self):
        for r in (sWS, sWF, sWL):
            self.a("s_add_u32 s%d, s%d, 0x%x" % (r, r, LS), "s_addc_u32 s%d, s%d, 0" % (r + 1, r + 1))
        self.a("s_sub_u32 s%d, s%d, 0x%x" % (sCS, sCS, LS))

    def leader_fill(self):
        a = self.a
        a("v_mov_b32 v8, -1", "v_mov_b32 v9, -1", "v_mov_b32 v10, -1", "v_mov_b32 v11, -1", "v_lshlrev_b32 v12, 2, v0",
          "s_or_b32 s%d, s%d, s%d" % (slead, sj, sw), "s_cmp_eq_u32 s%d, 0" % slead, "s_cbranch_scc0 L_nolead0")
        tk = a.mark()
        a("s_lshl_b32 s100, s%d, 17" % sg, "buffer_store_dword v8, v12, %s, s100 offen sc1" % srd(sWS), "L_nolead0:")
        a.uncounted(tk)
        self.tok_lead = tk

    def leader_flag(self, word, name, tok=None, val="1", v=54):
        a = self.a
        a("s_cmp_eq_u32 s%d, 0" % slead, "s_cbranch_scc0 " + name)
        if tok is not None:
            a.wait_vm(tok)
        tk = a.mark()
        a("v_mov_b32 v%d, %s" % (v + 1, val), "v_lshlrev_b32 v%d, 8, v0" % v, "s_lshl_b32 s100, s%d, 2" % sg,
          "buffer_store_dword v%d, v%d, %s, s100 offen offset:%d sc1" % (v + 1, v, srd(sDBG), word), name + ":")
        a.uncounted(tk)

    def flag_load(self, v, word, own):
        a = self.a
        if own:
            a("s_lshl_b32 s100, s%d, 2" % sg, "v_mov_b32 v%d, s100" % v)
        else:
            a("v_and_b32 v%d, 7, v0" % v, "v_lshlrev_b32 v%d, 2, v%d" % (v, v))
        return a("buffer_load_dword v%d, v%d, %s, 0 offen offset:%d sc1" % (v, v, srd(sDBG), word))

    def flag_check(self, v, word, own, tok, name):
        a = self.a
        a.wait_vm(tok)
        tk = a.mark()
        a("s_branch %s_c" % name, name + "_s:", "s_sleep 8")
        self.flag_load(v, word, own)
        a("s_add_u32 s%d, s%d, 1" % (sspin, sspin), "s_cmp_lt_u32 s%d, 0x%x" % (sspin, SPIN_LIMIT), "s_waitcnt vmcnt(0)",
          "s_cbranch_scc0 %s_d" % name, name + "_c:", "v_cmp_eq_u32 vcc, 0, v%d" % v, "s_cbranch_vccnz %s_s" % name, name + "_d:")
        a.uncounted(tk)

    def fill_intra(self, v, t, d, start, per_wave):
        a = self.a
        self.sexpr(100, start, (sg, 1 << 17), (sj, 4 * per_wave), (sw, per_wave))
        a("v_mov_b32 v%d, v%d" % (v, vA16))
        self.oob_unless(v, t, "v_cmp_gt_u32 vcc, %d, v0" % (per_wave // 16))
        self.st_intra("buffer_store_dwordx4", q(d), v, 100)

    def sentinels(self, d):
        for r in range(4):
            self.a("v_mov_b32 v%d, -1" % (d + r))

    def prologue(self):
        a = self.a
        if self.stamps and not self.probe:
            a("%s s[92:93]" % ("s_memtime" if self.cyc else "s_memrealtime"))
        a('; ---- entry: everything up to the first K tile fits the 256 bytes that are fetched before the wave starts')
        a("s_load_dwordx16 s[4:19], s[0:1], 0", "s_load_dwordx8 s[20:27], s[0:1], 64",
          "v_lshrrev_b32 v1, 6, v0", "s_cmpk_ge_u32 s2, 256", "v_readfirstlane_b32 s%d, v1" % sw, "s_cbranch_scc1 L_end")
        a("v_and_b32 v0, 63, v0", "s_and_b32 s%d, s2, 7" % sg, "s_lshr_b32 s%d, s2, 3" % sj, "s_lshr_b32 s%d, s2, 6" % sb,
          "s_and_b32 s%d, s%d, 7" % (ss, sj), "s_lshl2_add_u32 s%d, s%d, s%d" % (su, ss, sw),
          "s_lshl3_add_u32 s100, s%d, s%d" % (sb, sg), "s_lshl_b32 s100, s100, 21", "s_mul_i32 s%d, s%d, %d" % (sring, sw, RING))
        a("s_lshl_b32 s%d, s%d, 12" % (su, su), "s_lshl2_add_u32 s%d, s%d, s%d" % (srot, sb, sg),
          "s_and_b32 s%d, s%d, 15" % (srot, srot), "s_lshl_b32 s%d, s%d, 17" % (srot, srot))
        a("v_lshrrev_b32 v5, 4, v0", "v_and_b32 v6, 15, v0", "v_xor_b32 v7, v5, v6", "v_lshlrev_b32 v7, 4, v7",
          "v_lshl_add_u32 v%d, v5, 8, v7" % vKS)
        a("v_xor_b32 v%d, 64, v%d" % (vKS + 1, vKS), "v_xor_b32 v%d, 128, v%d" % (vKS + 2, vKS), "v_xor_b32 v%d, 64, v%d" % (vKS + 3, vKS + 2),
          "s_lshl_b32 s98, s2, 10", "s_bitset1_b32 s98, 22", "v_mov_b32 v9, s98", "v_xor_b32 v10, 0x2000, v9",
          "s_lshl_b32 s%d, 1, 21" % (sK + 2), "s_mov_b32 s%d, 0x20000" % (sK + 3))
        self.tok, self.ltok, self.wtok = {}, [], {}
        first = self.lines(self.tile_issue, 0)
        self.tok, self.ltok = {}, []
        a(*first[:2])
        a("s_waitcnt lgkmcnt(0)", "global_load_dword v95, v9, s[26:27] sc1")
        tok_cal = a.mark()
        a("global_load_dword v95, v10, s[26:27] offset:128 sc1", "s_add_u32 s%d, s6, s100" % sK, "s_addc_u32 s%d, s7, 0" % (sK + 1))
        for x in first[2:]:
            self.ltok.append(a(x))
        self.tok[0] = a.mark()
        a("s_cmp_eq_u32 s%d, 0" % sw, "s_cbranch_scc0 L_novote")
        a.wait_vm(tok_cal)
        a("L_novote:", "s_add_u32 s%d, s8, s100" % sV, "s_addc_u32 s%d, s9, 0" % (sV + 1), "s_mov_b32 s%d, s%d" % (sV + 2, sK + 2),
          "s_getreg_b32 s99, hwreg(HW_REG_IB_STS, 0, 4)", "L_entered:")
        if self.probe:
            a("s_memrealtime s[92:93]")
        a('; ---- K / V stream: tile T = 16 rows, LDS-DMA into a 6-slot ring per wave, a bounded number of loads in flight')
        self.tile_issue(1)
        a("s_mov_b32 s%d, 0x20000" % (sV + 3))
        a("v_lshl_add_u32 v%d, v6, 8, v7" % vKR, "v_add_u32 v%d, s%d, v%d" % (vKR, sring, vKR))
        for st in range(1, 4):
            a("v_xor_b32 v%d, %d, v%d" % (vKR + st, st << 6, vKR))
        a("v_lshlrev_b32 v%d, 4, v0" % vA16)
        self.mk_srd(sDBG, 24, "256")
        self.mk_srd(sWS, 26, "0x%x" % WS_SIZE)
        self.mk_srd(sOUT, 22, "4096")
        a("s_add_u32 s%d, s26, 0x%x" % (sXW, OFF_XW), "s_addc_u32 s%d, s27, 0" % (sXW + 1),
          "s_mov_b32 s%d, 0x%x" % (sXW + 2, OFF_TK + len(self.tk) * 4096), "s_mov_b32 s%d, 0x20000" % (sXW + 3))
        if self.stamps:
            a("s_waitcnt lgkmcnt(0)", "v_mov_b32 v4, 0", "v_writelane_b32 v4, s92, 0")
            self.nst = 1
            self.stamp_names.append("entry")
        self.stamp("start")
        a("s_cmp_gt_u32 s99, 4", "s_cselect_b32 s%d, 16, 0" % svote)
        self.setup_b()
        self.setup_c()

    def setup_a(self):
        a = self.a
        self.mk_srd(sXI, 4, "4096")
        self.lin(6, 7, (4, 2, 6), (2, 2, 10), (0, 2, 4))
        self.lin(5, 7, (5, 1, 10), (4, 1, 11), (0, 4, 1))
        a("s_lshl_b32 s100, s%d, 8" % sb, "s_lshl_b32 s101, s%d, 10" % sb, "s_lshl_b32 s%d, s%d, 5" % (stmp, sj),
          "buffer_load_dwordx4 %s, v6, %s, s100 offen" % (q(vX), srd(sXI)),
          "buffer_load_dwordx4 %s, v%d, %s, s101 offen" % (q(vX + 4), vA16, srd(sXI)),
          "buffer_load_ushort v%d, v5, %s, s%d offen" % (vRES, srd(sXI), stmp))

    def early_fill(self):
        a = self.a
        self.sexpr(100, 0, (sj, 32768), (sg, 2048), (sw, 512))
        if not self.tk:
            a("v_mov_b32 v12, v%d" % vA16)
            self.oob_unless(12, 13, "v_cmp_gt_u32 vcc, 32, v0")
            a("buffer_store_dwordx4 v[8:11], v12, %s, s100 offen sc1" % srd(sXW))
            return
        a("v_add_u32 v12, s100, v%d" % vA16)
        self.sexpr(100, OFF_TK - 512, (2, 128))
        a("v_add_u32 v13, s100, v%d" % vA16, "v_cmp_gt_u32 vcc, 32, v0", "v_cndmask_b32 v12, v13, v12, vcc",
          "s_cmp_eq_u32 s%d, 3" % sw, "s_cselect_b32 s100, 40, 32")
        self.oob_unless(12, 13, "v_cmp_gt_u32 vcc, s100, v0")
        a("buffer_store_dwordx4 v[8:11], v12, %s, 0 offen sc1" % srd(sXW),
          "v_mov_b32 v98, 0x%x" % (L_SCR + 512 * self.tkw), "v_mov_b32 v99, %d" % self.th[0], "ds_write_b32 v98, v99", "v_lshlrev_b32 v101, 24, v0")
        self.sexpr(91, 0, (sj, 1), (sg, 3))
        a("s_and_b32 s91, s91, %d" % (256 // self.tkn - 1), "s_lshl_b32 s91, s91, 7", "s_add_u32 s91, s91, 0x%x" % OFF_TK)

    def setup_b(self):
        a = self.a
        self.mk_srd(sWF, sWS, "0")
        self.mk_srd(sWL, sWS, "0x%x" % WS_SIZE)
        G = (sg, 1 << 17)
        self.sexpr(sCS, 2 * LS, G)
        a("s_lshr_b32 s%d, s%d, 1" % (stmp, ss), "s_and_b32 s100, s%d, 1" % ss)
        self.sexpr(sEst, OFF_E, G, (stmp, 1024), (100, 128), (sw, 32), (sb, 256))
        self.sexpr(sEld, OFF_E, G, (sb, 4096), (sw, 1024))
        self.sexpr(sMLld, OFF_ML, G, (sb, 1024))
        a("s_lshr_b32 s%d, s%d, 9" % (sMLst, su), "s_add_u32 s%d, s%d, s%d" % (sMLst, sMLst, sMLld),
          "s_mov_b32 s%d, 0" % slayer, "s_mov_b32 s%d, 0" % sspin, "s_mov_b32 s%d, -2" % scmp,
          "s_mov_b32 s%d, 0x3f80" % sLO, "s_mov_b32 s%d, 0x3f800000" % sHI,
          "s_and_b32 s100, s%d, 3" % ss, "s_cmp_eq_u32 s100, 3", "s_cselect_b32 s%d, 0, 1" % sact,
          "s_cmp_eq_u32 s%d, 3" % sb, "s_cselect_b32 s100, 0, 2", "s_or_b32 s%d, s%d, s100" % (sact, sact),
          "s_bitcmp1_b32 s%d, 0" % sg, "s_cselect_b32 s%d, s%d, 3" % (sact, sact))

    def setup_c(self):
        a = self.a
        G = (sg, 1 << 17)
        a("s_lshr_b32 s%d, s%d, 2" % (stmp, ss), "s_and_b32 s100, s%d, 3" % ss)
        self.sexpr(sAst, OFF_A, G, (sw, 8192), (stmp, 4096), (sb, 1024), (100, 256))
        self.sexpr(sCst, OFF_C, G, (100, 4096), (stmp, 128), (sw, 32), (sb, 256))
        self.sexpr(sAld, OFF_A, G, (sb, 8192), (sw, 2048))
        self.sexpr(sCld, OFF_C, G, (sb, 4096), (sw, 1024))
        self.sexpr(sBst, 0, (su, 8), (sg, 512), (sb, 128))
        self.sexpr(sBld, 0, (sj, 32768))
        a("s_lshr_b32 s%d, s%d, 1" % (stmp, sj), "s_and_b32 s100, s%d, 1" % sj)
        self.sexpr(sXst, OFF_XB, G, (stmp, 256), (100, 32))
        self.sexpr(sXld, OFF_XB, G, (sb, 1024))
        self.sexpr(sRow, OFF_ST, G)
        a("s_mov_b32 s%d, 0xff00ff00" % sM1, "s_mov_b32 s%d, 0xff00ff00" % (sM1 + 1))
        self.lin(vTRV, 7, (2, 1, 12), (4, 2, 10), (3, 1, 8), (4, 1, 7), (2, 1, 6), (3, 1, 5), (0, 2, 3))
        a("v_add_u32 v%d, s%d, v%d" % (vTRV, sring, vTRV))

    def part_off(self, v, t, bs, cmp="0"):
        self.lin(v, t, (4, 2, bs), (0, 4, 1))
        self.even_only(v, t, cmp)

    def group_flag(self, k, val):
        a = self.a
        a("v_mov_b32 v14, %s" % val, "v_add_u32 v15, s%d, v0" % sw, "v_lshlrev_b32 v15, 24, v15")
        self.sexpr(100, 128 * k, (sg, 1 << 17), (sj, 4))
        self.st_intra("buffer_store_dword", "v14", 15, 100)

    def stream(self):
        a = self.a
        lag = self.lag
        t_dl, t_f1, t_l1, t_c1, t_f2, t_l2, t_c2 = self.sync
        wl = {}
        for kind, ts in (("q", self.tq), ("g", self.tg)):
            for k, T in enumerate(ts):
                wl.setdefault(T, []).append((kind, k))
        tqk = max(t_c2 + 2, 16 + lag)
        assert self.clr1 <= t_dl and self.tq[-1] + 2 <= t_c1 and self.tg[-1] + 2 <= t_f2
        pvat = {}
        for p in range(5):
            pvat.setdefault(max(tqk + 3 + (p >> 1), 17 + 2 * p + lag), []).append(p)
        assert min(self.ipf, self.tml, self.tclr) >= tqk + 3 and max(pvat) < 32
        vF = 94
        G17 = "s_lshl_b32 s101, s%d, 17" % sg
        qk = None
        assert self.tml + 2 <= self.tfin <= self.tp5 and max(pvat) <= self.tp5

        def lds_pv(p):
            a("; PV of a group that stays in LDS")
            self.p_read(ORDER.index(p), 16, p & 1)
            if p == self.ogate[0]:
                a("; Wo follows once most of V has landed")
                for k in range(4):
                    a.wait_vm(self.tok[31] - self.ogate[1 + k])
                    self.weight_issue("o", k, 31, 18)
            a.wait_vm(self.tok[17 + 2 * p])
            self.sched(self.lines(self.v_reads, p) + self.lines(self.pv_dense, p, p & 1)
                       + (self.lines(self.o_write, 8, 16, False) if p == 7 else []))
        for T in range(1, 32):
            if T == 16:
                self.lin(5, 7, (4, 2, 8), (0, 4, 4))
                a("v_and_b32 v7, 16, v0", "v_lshlrev_b32 v7, 1, v7", "v_xor_b32 v5, v5, v7", "v_xor_b32 v6, 128, v5")
                self.mk_ai()
            between = None
            if T in (tqk + 1, tqk + 2):
                def between(jj):
                    a(*qk.pop(0))
            if T > 1:
                a("; tile %d (%s)" % (T, "K" if T < 16 else "V"))
            if T > 1:
                self.tile_issue(T, between)
            if T == 1:
                a("; code into L2; wave 0 of workgroup j = 0 resets the kv head's two flag arrays; x quarter, x row and residual slice")
                self.code_prefetch(93, 98, "L_pc0", "L_pc0")
                self.leader_fill()
            for kind, k in wl.get(T, []):
                self.weight_load(kind, k, T)
            if T == self.tfin - 1:
                self.weight_load("o", 0, None, 18)
            if self.stamps is not True and T > 1:
                self.stamp("T%02d" % T)
            if T == 1:
                self.setup_a()
            if T == self.clr1:
                a('; sentinel fill of the first two cross-die slots and of the arrival counters')
                self.early_fill()
            if T - 3 in self.tk:
                a("; early workgroups keep fewer loads in flight, late ones more, so that all finish the stream together")
                assert T < 25 + lag
                a("ds_read_b32 v100, v98", "s_waitcnt lgkmcnt(0)", "v_readfirstlane_b32 s4, v100",
                  "s_cmp_ge_u32 s4, %d" % self.th[0], "s_cselect_b32 s%d, 1, 0" % smode, "s_cmp_ge_u32 s4, %d" % self.th[1],
                  "s_addc_u32 s%d, s%d, 0" % (smode, smode))
            if lag <= T < 26 + lag:
                self.tile_consume(T - lag)
            if T == 2:
                a('; d_debug[g] = 1: flag arrays are reset')
                self.leader_flag(0, "L_nolead1", self.tok_lead)
            if T == t_dl:
                tok_f = self.flag_load(vF, 0, True)
            if T == t_f1:
                a('; flag 1 = die id + probe vote, set after the fills of all four waves; LayerNorm statistics of x[b]')
                self.flag_check(vF, 0, True, tok_f, "L_f0")
                a("s_barrier", "s_getreg_b32 s%d, hwreg(HW_REG_XCC_ID, 0, 4)" % stmp, "s_or_b32 s%d, s%d, s%d" % (stmp, stmp, svote))
                self.group_flag(0, "s%d" % stmp)
                a("v_lshlrev_b32 v%d, 16, v%d" % (vRES, vRES))
                self.stats(vX + 4, 8, True)
            if T in (t_l1, t_l2):
                fld = self.ld(vF, vF + 1, 101, 0 if T == t_l1 else 128, n=1)
                a("v_and_b32 v%d, 31, v0" % (vF + 1), "v_lshlrev_b32 v%d, 2, v%d" % (vF + 1, vF + 1), G17)
                tok_f = a(fld)
            if T == t_c1:
                a('; all 32 flags: same die -> plain stores through L2, else write-through; q partials and Wq column sums; fill of ML / A')
                self.check_or_poll([fld], [[vF]], 7, "xcc", max(tok_f, self.wtok["q"]), [G17])
                a("s_barrier")
                self.w_tiles([("q", vWQ)], 5, 7)
                a("v_cmp_lt_u32 vcc, 15, v%d" % vF, "v_and_b32 v%d, 15, v%d" % (vF, vF),
                  "s_and_b32 s100, vcc_lo, 0x55555555", "s_and_b32 s101, vcc_lo, 0xaaaaaaaa",
                  "s_bcnt1_i32_b32 s100, s100", "s_bcnt1_i32_b32 s101, s101")
                if self.stamps:
                    a("v_writelane_b32 v4, s100, 28", "v_writelane_b32 v4, s101, 29")
                a("s_getreg_b32 s%d, hwreg(HW_REG_XCC_ID, 0, 4)" % svote, "s_sub_u32 s%d, s100, s101" % stmp, "s_sub_u32 s101, s101, s100",
                  "s_bitcmp1_b32 s%d, 2" % svote, "s_cselect_b32 s101, s101, s%d" % stmp, "s_add_u32 s101, s101, 64")
                self.leader_flag(32, "L_nolead2", val="s101")
                if not self.force_slow:
                    a("v_cmp_ne_u32 vcc, s%d, v%d" % (svote, vF), "s_cmp_eq_u64 vcc, 0",
                      "s_cselect_b32 s%d, 0x%x, 0" % (sWF + 2, WS_SIZE), "s_cselect_b32 s%d, 0, 0x%x" % (sWL + 2, WS_SIZE))
                self.part_off(6, 7, 12)
                a("s_lshr_b32 s%d, s%d, 1" % (stmp, ss), "s_and_b32 s%d, s%d, 1" % (sclr, ss))
                self.colsum_pub(vWQ, 12, 16, 10, 11, OFF_CSQ, (stmp, 2048), (sclr, 512))
                self.mk_ix(8)
                self.gemv_zero(vD)
                self.gemv4(vX, vWQ, vD, 8)
                self.sentinels(20)
                self.gemv4_fin(9, vD)
                self.st_intra("buffer_store_dword", "v9", 6, sEst)
                self.fill_intra(24, 7, 20, LS + OFF_ML, 288)
                tok_q = a.mark()
                self.stamp("arrive")
            if T == t_f2:
                a('; flag 2: q partials and fills are visible; gate / up column sums')
                a.wait_vm(max(tok_q, self.wtok["g"]))
                a("s_barrier")
                self.group_flag(1, "1")
                self.w_tiles([("g", vWQ)], 5, 7)
                a("s_lshr_b32 s%d, s%d, 2" % (stmp, ss), "s_and_b32 s%d, s%d, 3" % (sclr, ss))
                self.colsum_pub(vWQ, 16, 20, 10, 11, OFF_CSG, (sclr, 2048), (stmp, 512))
            if T == t_c2:
                a('; fetch the q partials')
                self.check_or_poll([fld], [[vF]], 7, "q1", tok_f, [G17])
                self.colsum_ld(28, OFF_CSQ, sw)
                tok_q = a("v_lshlrev_b32 v7, 2, v0", *self.ld4(24, 7, sEld))
                self.next_region()
                self.stamp("barrier")
            if T == t_c2 + 1:
                self.s_zero()
                self.q_addrs(40, 42, 7)
            if T == tqk:
                a('; q = sum of partials - mean * column sum; QK^T and softmax run between the next loads')
                a.wait_vm(tok_q)
                self.colsum_fin(28, 36)
                self.sum4_init(38, 36)
                self.sum4(24, 38, 38)
                self.q_assemble(38, 40, 42)
                ls, _ = schedule(self.lines(self.qk))
                qk = [ls[len(ls) * k // 4:len(ls) * (k + 1) // 4] for k in range(4)]
            if T == tqk + 1:
                self.ml_off(22, 23)
                self.sexpr(100, L_WD, (sw, 2048))
                self.lin(16, 23, (2, 2, 6), (4, 2, 4))
                a("v_add_u32 v16, s100, v16", "v_lshl_add_u32 v17, v0, 2, s100")
                self.lds_or_zero(16, 23, 3)
                ls, _ = schedule(self.lines(self.softmax, 17, 22))
                qk = [ls[len(ls) * k // 4:len(ls) * (k + 1) // 4] for k in range(4)]
            if T == tqk + 2:
                self.stamp("softmax1")
            for p in pvat.get(T, ()):
                a('; PV of one 32-key group')
                self.p_read(ORDER.index(p), 16, p & 1)
                a("s_waitcnt lgkmcnt(0)")
                self.pv_dense(p, p & 1)
            for c, tw in enumerate(self.tk):
                if T == tw + 2:
                    a("s_cmp_eq_u32 s%d, %d" % (sw, self.tkw), "s_cbranch_scc0 L_tkb%d" % c)
                    a.wait_vm(tok_tk)
                    a("v_readfirstlane_b32 s4, v99", "s_add_u32 s4, s4, 1", "v_mov_b32 v99, s4", "ds_write_b32 v98, v99", "L_tkb%d:" % c)
                if T == tw:
                    a("; arrival rank among eight workgroups, one per kv head")
                    tok_tk = a.mark()
                    a("s_cmp_eq_u32 s%d, %d" % (sw, self.tkw), "s_cbranch_scc0 L_tka%d" % c, "v_mov_b32 v99, 1",
                      "buffer_atomic_add v99, v101, %s, s91 offen sc0 sc1" % srd(sXW), "s_add_u32 s91, s91, 4096", "L_tka%d:" % c)
                    a.uncounted(tok_tk)
            if T == self.ipf:
                self.code_prefetch(80, 4, "L_pc1", "L_tail")
            if T == self.tml:
                ml1 = [self.ld(64, vA16, sMLld)]
                a(*ml1)
                tok_warm = self.flag_load(70, 32, False)
            if T == self.tclr:
                a('; sentinel fill of the remaining per-head slots')
                self.sentinels(72)
                self.fill_intra(76, 77, 72, OFF_C, 352)
                if not self.reuse:
                    self.fill_intra(78, 77, 72, LS, 480)
            if T == self.tfin:
                a('; all eight heads have filled their cross-die slots; summed votes pick the near copy')
                self.flag_check(70, 32, False, tok_warm, "L_f1")
                for k in (1, 2, 4):
                    self.dpp("v_add_u32", 70, 70, 70, "row_ror:%d" % k)
                a("v_readfirstlane_b32 s100, v70", "s_cmpk_ge_u32 s100, 512", "s_cselect_b32 s100, 0, 4", "s_xor_b32 s100, s100, s%d" % svote,
                  "s_bitcmp1_b32 s100, 2", "s_cselect_b32 s100, %s" % {1: "0x2000, 0", 2: "0, 0x2000"}[self.near],
                  "s_add_u32 s%d, s%d, s100" % (sBld, sBld), "s_add_u32 s%d, s%d, s100" % (sB2, sBst), "s_xor_b32 s%d, s%d, 0x2000" % (sBst, sB2))
                self.check_or_poll(ml1, [range(64, 68)], 69, "ml1", tok_warm)
                self.ml_finish(64)
                self.o_addr()
                a("s_mov_b32 s%d, 1" % slayer)
                a(*[x for x in self.lines(self.weight_load, "d", 0, None, 62) if x.startswith("s_")])
            if T == self.tp5:
                lds_pv(5)
        self.stamp("issued")
        for p in (5, 6, 7):
            if p > 5 or self.tp5 > 31:
                lds_pv(p)
        self.n_after_o = min(a.mark() - self.wtok["o"], 60)
        self.stamp("pv1")

    def code_prefetch(self, v, sp, here, start):
        a = self.a
        a("s_getpc_b64 s[%d:%d]" % (sp, sp + 1), here + ":")
        if start != here:
            a("s_add_u32 s%d, s%d, %s-%s" % (sp, sp, start, here), "s_addc_u32 s%d, s%d, 0" % (sp + 1, sp + 1))
        self.sexpr(100, 0, (sj, 512), (sw, 128))
        a("s_min_u32 s100, s100, L_codeend-%s-4" % start, "v_mov_b32 v%d, s100" % v, "global_load_dword v%d, v%d, s[%d:%d]" % (v, v, sp, sp + 1))

    def touch_addr(self, v, t, parts):
        a = self.a
        a("v_mov_b32 v%d, 0x%x" % (v, OOB), "v_lshl_add_u32 v%d, v0, 2, s%d" % (t + 1, sw))
        hi = sum(n for _, n in parts)
        for start, n in reversed(parts):
            self.sexpr(100, start - 128 * (hi - n), (sg, 1 << 17), (sj, 128 * n))
            a("v_lshl_add_u32 v%d, v%d, 7, s100" % (t, t + 1), "v_cmp_gt_u32 vcc, %d, v%d" % (hi, t + 1),
              "v_cndmask_b32 v%d, v%d, v%d, vcc" % (v, v, t))
            hi -= n

    def touch(self, v):
        return self.a("buffer_load_dword v%d, v%d, %s, 0 offen sc1" % (v, v, srd(sWS)))

    def fill_cross(self, d, hop):
        self.sentinels(d)
        self.lin(d + 4, d + 5, (4, 2, 15), (3, 1, 13), (0, 3, 4))
        self.sexpr(100, (hop >> 1) * 0x4000 + (hop & 1) * 0x1000, (ss, 1 << 17), (sg, 512), (sb, 128))
        self.a("buffer_store_dwordx4 %s, v%d, %s, s100 offen sc1" % (q(d), d + 4, srd(sXW)))

    def st_cross(self, v):
        a = self.a
        for so in (sBst, sB2):
            a("buffer_store_dword v%d, v95, %s, s%d offen sc1" % (v, srd(sXW), so))

    def red_loads(self, x, soff):
        return [self.ld(x + 4 * i, vA16, soff, i * 1024, rs=sXW) for i in range(4)]

    def prep_split(self, name, work, loads):
        a = self.a
        n = self.at[name][0]
        while n < len(work) and work[n].startswith(("s_cselect", "s_addc", "s_cbranch")):
            n += 1
        a(*work[:n])
        a("s_cmp_eq_u32 s%d, 0" % sw, "s_cbranch_scc0 L_%s_n" % name)
        self.idle(n - len(work))
        a(*loads)
        a("L_%s_n:" % name, *work[n:])
        self.est += (name, len(work))

    def reduce_x(self, name, x, d, soff):
        a = self.a
        self.poll(self.red_loads(x, soff), [range(x + 4 * i, x + 4 * i + 4) for i in range(4)], 7, name,
                  spec=lambda i: self.mfma(d, q(x + 4 * i), q(vSEL), i > 0), again=self.kx)
        m = "s[%d:%d]" % (sM1, sM1 + 1)
        a("v_cndmask_b32 v%d, v%d, v%d, %s" % (d, d, d + 1, m), "v_cndmask_b32 v%d, v%d, v%d, %s" % (d + 2, d + 2, d + 3, m),
          "v_permlane32_swap_b32 v%d, v%d" % (d, d + 2), "v_add_f32 v%d, v%d, v%d" % (vRES, vRES, d),
          "v_add_f32 v%d, v%d, v%d" % (vRES, vRES, d + 2))
        self.pack_pairs(7, vRES)

    def x_off(self, v, t, bs):
        self.lin(v, t, (5, 1, bs), (4, 1, bs + 1), (0, 4, 1))
        self.even_only(v, t)

    def layer1(self, name):
        self.a("s_cmp_eq_u32 s%d, 1" % slayer, "s_cbranch_scc0 " + name)

    def chain(self):
        a = self.a
        a("L_tail:")
        a('; ---- attention output: sum over the four waves, publish per head')
        self.lin(23, 6, (2, 4, 4), (1, 1, 8), (0, 1, 3))
        self.sexpr(sclr, L_SCR, (sw, 2048))
        a("v_add_u32 v23, s%d, v23" % sclr, "s_waitcnt lgkmcnt(0)", "s_barrier")
        for src in range(4):
            a("ds_read_b64 %s, v23 offset:%d" % (q(8 + 2 * src, 2), src * 512))
        a("v_lshlrev_b32 v17, 2, v0", "s_mov_b32 m0, s%d" % sclr)
        self.lin(56, 16, (2, 2, 9), (4, 2, 7), (2, 2, 5), (0, 2, 3))
        a("s_lshl_b32 s100, s%d, 5" % sw, "v_xor_b32 v56, s100, v56", "v_add_u32 v56, 0x%x, v56" % L_WO)
        a("s_waitcnt lgkmcnt(2)", "v_pk_add_f32 v[8:9], v[8:9], v[10:11]", "s_waitcnt lgkmcnt(0)", "v_pk_add_f32 v[12:13], v[12:13], v[14:15]",
          "v_pk_add_f32 v[8:9], v[8:9], v[12:13]", "v_cvt_pk_bf16_f32 v7, v8, v9")
        self.st_intra("buffer_store_dword", "v7", 17, sAst)
        self.stamp("Apub", True)
        if self.stamps:
            a("s_mov_b32 m0, s%d" % sclr)
        a("v_lshrrev_b32 v5, 4, v0", "v_and_b32 v6, 15, v0", "v_xor_b32 v16, v5, v6", "v_lshlrev_b32 v16, 4, v16",
          "v_lshl_add_u32 v18, v5, 8, v16", "s_and_b32 s100, s%d, 1" % sw, "s_lshl_b32 s100, s100, 7", "v_xor_b32 v18, s100, v18",
          "v_xor_b32 v19, 64, v18")
        lda = ["buffer_load_dwordx4 v%d, %s, s%d offen offset:%d sc1 lds" % (18 + h, srd(sWS), sAld, h * 1024) for h in range(2)]

        def prep_a():
            a = self.a
            a("v_lshl_add_u32 v20, v6, 8, v16", "v_add_u32 v20, 0x%x, v20" % L_SCR)
            for st in range(1, 4):
                a("v_xor_b32 v%d, %d, v20" % (20 + st, st << 6))
            a("v_add_u32 v5, s%d, v%d" % (sclr, vA16), "v_lshlrev_b32 v95, 1, v0")
            self.even_only(95, 6)
            a(*[x for x in self.lines(self.weight_load, "d", 0, None, 62) if x.startswith("v_")])
            self.touch_addr(59, 60, T1[:1] if self.reuse else T1)
        n = self.with_loads("pollA", self.lines(prep_a), lda)
        a("s_waitcnt vmcnt(%d)" % (1 + 2 * n + self.n_after_o), "s_barrier")
        for st in range(4):
            for h in range(2):
                a("ds_read_b64_tr_b16 %s, v56 offset:%d" % (q(24 + 4 * st + 2 * h, 2), st * 4096 + h * 2048))
        a("s_branch L_pollA_w", "L_pollA:", *lda)
        a(*self.spin_count())
        a("L_pollA_w:", "s_waitcnt vmcnt(%d)" % (2 * n - 1), "ds_read_b128 v[8:11], v5", "s_waitcnt vmcnt(%d)" % (2 * n - 2),
          "ds_read_b128 v[12:15], v5 offset:1024")
        ck = self.lines(self.check, [range(8, 12), range(12, 16)], 7, 0)
        a("s_waitcnt lgkmcnt(1)", *ck[:2], "s_waitcnt lgkmcnt(0)", *ck[2:])
        a("s_cbranch_vccnz L_pollA")
        if self.stamps is not True:
            self.stamp("pollA", True)
        a("s_barrier")
        ops = [40, 44, 48, 52, 64, 68, 72, 76]
        rd = ["ds_read_b128 %s, v%d offset:%d" % (q(ops[k]), 20 + (k >> 1), (k & 1) * 4096) for k in range(8)]
        m = self.oahead
        a(*rd[:m])
        self.late_loads("L_l1b")
        for k in range(8):
            a("s_waitcnt lgkmcnt(%d)" % (min(8, m + k) - k - 1))
            self.mfma(8, q(ops[k]), q(24 + 4 * (k >> 1)), k > 0)
            if m + k < 8:
                a(rd[m + k])
        a("v_add_f32 v8, v8, v9", "v_add_f32 v10, v10, v11", "v_add_f32 v8, v8, v10")
        self.pack_pairs(7, 8)
        self.st_cross(7)
        self.stamp("Bpub", True)
        self.colsum_ld(80, OFF_CSG, sb)
        self.layer1("L_l1c")
        self.colsum_ld(24, OFF_CSQ, sw)
        a("L_l1c:")
        wt = self.lines(self.w_tiles, [("d", vWD)], 91, 7)

        def prep_b():
            a = self.a
            self.w_tiles([("g", vWG), ("q", vWQ)], 5, 7)
            a("v_and_b32 v5, 1, v0", "v_lshlrev_b32 v5, 4, v5", "v_lshlrev_b32 v5, v5, s%d" % sLO, "v_bfe_u32 v6, v0, 1, 2")
            for r in range(4):
                a("v_cmp_eq_u32 vcc, %d, v6" % r, "v_cndmask_b32 v%d, 0, v5, vcc" % (vSEL + r))
            self.x_off(94, 7, 6)
            self.st_off(93, 7)
            a("s_bitcmp1_b32 s%d, 0" % sact, "s_cselect_b32 s%d, 0, -1" % stmp)
            self.part_off(92, 7, 10, "s%d" % stmp)
            self.lin(89, 7, (0, 5, 2), (5, 1, 1))
            self.sexpr(100, L_H, (sw, 128))
            a("v_add_u32 v89, s100, v89")
            self.mk_ix(90)
            self.lin(88, 7, (2, 2, 7), (0, 1, 4), (4, 2, 5))
            a("v_add_u32 v88, 0x%x, v88" % L_H)
            a(*[x for x in wt if not x.startswith("ds_")])
            self.sexpr(stmp, 0, (sRow, 1), (sw, 256))
            self.sexpr(sclr, 0, (sRow, 1), (sj, 4))
            a("s_add_u32 s%d, s%d, 0x1000" % (sBst, sBst), "s_add_u32 s%d, s%d, 0x1000" % (sB2, sB2))
        self.prep_split("pollB", self.lines(prep_b), self.red_loads(vX, sBld))
        aux = [self.ld(vX + 4, 91, stmp, n=1)]
        a("s_waitcnt lgkmcnt(0)", "s_cmp_eq_u32 s%d, 0" % sw, "s_cbranch_scc0 L_nored1")
        self.cold += (["L_nored1:", "s_lshl2_add_u32 s100, s%d, s%d" % (slayer, sw), "s_cmp_eq_u32 s100, 5", "s_cbranch_scc0 L_nof2"]
                      + self.lines(self.fill_cross, vX + 8, 2) + ["L_nof2:", "s_waitcnt vmcnt(0)", "s_branch L_red1"])
        self.reduce_x("pollB", vX, vD, sBld)
        self.st_intra("buffer_store_dword", "v7", 94, sXst)
        a("v_lshlrev_b32 v%d, 16, v7" % vRES)
        self.stamp("XBpub", True)
        a("L_red1:", "s_barrier")
        ldx = [self.ld(vX, vA16, sXld)]
        work, _ = schedule(self.lines(self.colsum_fin, 24, vCQ) + self.lines(self.colsum_fin, 80, vCG) + self.lines(self.gemv_zero, vD)
                           + [x + " ; prio=100" for x in self.lines(self.slice_sums, 5, 93, sclr)])
        k = max(i for i, x in enumerate(work) if "_dpp" in x) + 1
        ex = int(self.at["pollXB"][0] <= k)
        work[k:k] = self.lines(self.st_intra, "buffer_store_dword", "v5", 93, sclr)
        self.with_loads("pollXB", work, ldx)
        a(*[x for x in wt if x.startswith("ds_")])
        a("v_lshlrev_b32 v91, 2, v0")
        self.poll(ldx, [range(vX, vX + 4)], 7, "pollXB", self.lines(self.gemv4, vX, vWG, vD, 90), self.lines(self.gemv_zero, vD), extra=ex)
        a(*aux)
        self.gemv4_fin(6, vD)
        self.st_intra("buffer_store_dword", "v6", 92, sCst)
        self.stamp("Cpub", True)
        a("v_mov_b32 v5, 0", "s_bitcmp1_b32 s%d, 1" % sact, "s_cbranch_scc0 %s" % ("L_idled" if self.reuse else "L_nod"))
        if self.reuse:
            self.cold += ["L_idled:"] + aux + self.spin_count() + self.lines(self.check, [[vX + 4]], 7, 1) + ["s_cbranch_vccnz L_idled", "s_branch L_nod"]
        ldc = self.ld4(vX, 91, sCld)
        st = self.lines(self.stats_fin, vX + 4, vD, False) + self.lines(self.sum4_init, vD + 2, vCG)
        self.stats_poll("pollC", aux, vX + 4, st, ldc)
        self.poll(ldc, [range(vX, vX + 4)], 7, "pollC", self.lines(self.sum4, vX, vD, vD + 2))
        a("v_permlane32_swap_b32 v%d, v%d" % (vD, vD + 1), "v_mul_f32 v%d, s%d, v%d" % (vD, sSC, vD),
          "v_mul_f32 v%d, v%d, v%d" % (vD, vD, vD + 1), "v_cvt_pk_bf16_f32 v%d, v%d, v%d" % (vD, vD, vD),
          "ds_write_b16 v89, v%d" % vD, "v_mov_b64 %s, 0" % q(vD + 4, 2), "s_waitcnt lgkmcnt(0)", "s_barrier", "ds_read_b128 %s, v88" % q(vX + 4), "s_waitcnt lgkmcnt(0)")
        self.smf(vD + 4, q(vX + 4), q(vWD, 8), 90)
        a("v_add_f32 v7, v%d, v%d" % (vD + 4, vD + 5))
        self.pack_pairs(5, 7)
        a("L_nod:")
        self.st_cross(5)
        self.stamp("Dpub", True)
        a("s_add_u32 s%d, s%d, 0x1000" % (stmp, sBld))
        self.layer1("L_last")
        a('; ---- operands of the second attention while the cross-die partials travel')
        a("s_waitcnt vmcnt(2) lgkmcnt(0)")

        def refill_a():
            self.sentinels(16)
            self.sexpr(100, OFF_ML - 2 * 576 + LS, (sg, 1 << 17), (sj, 1152), (sw, 576))
            self.a("s_sub_u32 s100, s100, 0x%x" % LS, "v_mov_b32 v20, v%d" % vA16)
            self.oob_unless(20, 21, "v_cmp_gt_u32 vcc, 36, v0")
            self.st_intra("buffer_store_dwordx4", q(16), 20, 100, both=True)

        def prep_d():
            a = self.a
            a("v_mov_b32 v28, v94", "v_mov_b32 v30, v93", "s_add_u32 s%d, s%d, 0x3000" % (sBst, sBst),
              "s_add_u32 s%d, s%d, 0x3000" % (sB2, sB2), "s_add_u32 s%d, s%d, 0x4000" % (sBld, sBld))
            self.mk_ai()
            self.s_zero()
            self.part_off(29, 7, 12)
            self.q_addrs(31, 48, 7)
            self.lin(5, 7, (2, 2, 6), (5, 1, 8), (4, 1, 5), (0, 1, 4))
            self.sexpr(100, L_WQ, (sw, QSTR))
            a("v_add_u32 v5, s100, v5")
            self.lds_or_zero(5, 7, 2)
            self.ml_off(6, 7)
            self.sexpr(98, 1024, (sRow, 1), (sb, 256))
            self.sexpr(sWl, 1024, (sRow, 1), (sj, 4))
            if self.reuse:
                self.sexpr(sWo, OFF_C, (sg, 1 << 17), (sj, 672), (sw, 168))
            else:
                self.sexpr(sWo, 0, (sg, 1 << 17), (sj, 2048), (sw, 512))
            a("s_add_u32 s%d, s%d, 0x%x" % (sclr, sXst, OFF_XD - OFF_XB), "s_add_u32 s99, s%d, 0x%x" % (sXld, OFF_XD - OFF_XB))
        self.prep_split("pollD", self.lines(prep_d), self.red_loads(8, stmp))
        a("s_waitcnt lgkmcnt(0)", "s_cmp_eq_u32 s%d, 0" % sw, "s_cbranch_scc0 L_fill3", "L_redd:")
        self.cold += ["L_fill3:", "s_cmp_eq_u32 s%d, 1" % sw, "s_cbranch_scc0 L_fill4"] + self.lines(self.fill_cross, 16, 3) + ["s_branch L_nored2", "L_fill4:"]
        if self.reuse:
            self.cold += self.lines(refill_a)
        self.cold += ["s_branch L_nored2"]
        self.reduce_x("pollD", 8, 24, stmp)
        self.st_intra("buffer_store_dword", "v7", 28, sclr)
        a("s_cmp_eq_u32 s%d, 2" % slayer, "s_cbranch_scc1 L_out")
        a("v_lshlrev_b32 v%d, 16, v7" % vRES)
        self.stamp("XDpub")
        a("L_nored2:", "s_barrier")
        row = [self.ld(24, 28, 98, n=1)]
        ldx = [self.ld(52, vA16, 99)]
        work = self.lines(self.slice_sums, 26, 30, sWl)
        ex = int(self.at["pollXD"][0] <= len(work))
        work += self.lines(self.st_intra, "buffer_store_dword", "v26", 30, sWl) + ["v_lshlrev_b32 v28, 2, v0"]
        n = self.with_loads("pollXD", work, ldx)
        a("s_waitcnt vmcnt(%d)" % (n + 2))
        self.gemv_zero(8)
        self.poll(ldx, [range(52, 56)], 7, "pollXD", self.lines(self.gemv4, 52, vWQ, 8, vIX), self.lines(self.gemv_zero, 8), extra=ex)
        a(*row)
        self.gemv4_fin(10, 8)
        self.st_intra("buffer_store_dword", "v10", 29, sEst)
        self.stamp("Epub")
        lde = self.ld4(52, 28, sEld)
        st = self.lines(self.stats_fin, 24, 32, True) + self.lines(self.sum4_init, 34, vCQ)
        self.stats_poll("pollE", row, 24, st, lde)
        self.poll(lde, [range(52, 56)], 7, "pollE", self.lines(self.sum4, 52, 32, 34))
        self.stamp("Eget")
        if self.reuse:
            rd = self.q_assemble(32, 31, 48, ["s_mov_b32 s%d, 2" % slayer, "v_min_u32 v42, 20, v0", "v_lshlrev_b32 v42, 3, v42", "v_mov_b64 v[38:39], -1"])
            self.st_intra("buffer_store_dwordx2", "v[38:39]", 42, sWo, both=True)
        else:
            rd = self.q_assemble(32, 31, 48, self.lines(self.next_region) + ["s_mov_b32 s%d, 2" % slayer]
                                 + ["v_min_u32 v38, 3, v0", "v_lshlrev_b32 v38, 7, v38"])
            a(self.ld(38, 38, sWo, n=1))
        for i in range(7):
            a("v_mov_b64 %s, 0" % q(vO + 4 * i, 2))
        if self.stamps is not True:
            self.stamp("qrdy")
        a('; ---- second attention, keys and values already on chip')
        x = 128
        ldm = [self.ld(x, vA16, sMLld)]

        def att():
            a = self.a
            self.qk()
            a("s_waitcnt vmcnt(%d) ; guards=v[52:55] after=v%d" % (2 if self.reuse else 1, vS + 20))
            a("v_subrev_u32 v23, 0x%x, v31" % (L_Q - L_WQ))
            a("v_mov_b64 %s, 0" % q(vO + 28, 2))
            self.softmax(23, 6)
            self.o_addr()
            for h in range(2):
                self.v_reads(5 + h, lambda i, e: q(8 * i + 4 * h + 2 * e, 2, "a"))
            self.v_reads(7)
            for n in range(4):
                self.p_read(2 * n, 5, n & 1)
                for i in range(8):
                    B = q(128 + 64 * n + 8 * i, 8) if n < 2 else q(8 * i, 8, "a") if n == 2 else "vp[%d]" % i
                    self.smf(vO + 4 * i, q(vQ + 4 * (n & 1)), B)
                    if n == i == 0:
                        for d in self.mlat:
                            a(ldm[0] + " ; lat=%d tail=%d" % (d, self.mltail))
        ls = [x + " prio=%d" % self.p0 if x.endswith("mem=p0") else x for x in self.lines(att)]
        cut = len(ls) - self.mlcut
        out, t1 = schedule(ls[:cut], rd)
        if self.stamps and self.stamps is not True:
            k = max(i for i, x in enumerate(out) if x.startswith("buffer_store")) + 1
            out[k:k] = self.lines(self.stamp, "mlpub")
            k = min(i for i, x in enumerate(out) if x.startswith("v_pk_fma"))
            out[k:k] = self.lines(self.stamp, "maxed")
        a(*out)
        a("s_waitcnt lgkmcnt(0)")
        if self.stamps is not True:
            self.stamp("pv2a")
        L = a.lab("ml2")
        a(L + "_w:")
        fin = ["v_sub_f32 v58, v%d, v20" % x, "v_sub_f32 v59, v%d, v20" % (x + 2), "v_exp_f32 v58, v58", "v_exp_f32 v59, v59",
               "v_mul_f32 v7, v58, v%d" % (x + 1), "v_fmac_f32 v7, v59, v%d" % (x + 3)] + self.lines(self.ml_finish, x)[6:]
        self.check([range(x, x + 4)], 6, len(self.mlat))
        a(*fin[:3])
        a("s_cbranch_vccnz " + L)
        fin = fin[3:]
        if self.stamps is not True:
            self.stamp("mlget")
        t2 = self.sched([x + " ; prio=200" for x in fin] + ls[cut:] + self.lines(self.o_write, 8, 60, True))
        self.est += (t1, t2)
        self.stamp("pv2")
        a("s_branch L_tail", L + ":", *ldm)
        a(*self.spin_count())
        a("s_branch %s_w" % L)
        a('; ---- last layer: one workgroup per slice reduces the partials and writes d_out; the first read follows the acknowledgement of its own stores')
        a("L_last:", "s_lshr_b32 s100, s%d, 2" % sj, "s_xor_b32 s100, s100, s%d" % sg, "s_or_b32 s100, s100, s%d" % sw,
          "s_cmp_eq_u32 s100, 0", "s_cbranch_scc0 L_fin")
        self.x_off(28, 7, 10)
        self.mk_srd(sWF, sOUT, "4096")
        a("s_lshl_b32 s%d, s%d, 5" % (sclr, sj))
        a("s_waitcnt vmcnt(0)")
        a(*self.red_loads(8, stmp))
        a("s_branch L_redd")
        a("L_out:")
        if self.probe:
            self.stamp("out")
            k0, k = map(self.stamp_names.index, self.probe[:2])
            a("v_readlane_b32 s100, v4, %d" % k, "v_readlane_b32 s101, v4, %d" % k0, "s_sub_u32 s100, s100, s101", "s_mul_i32 s100, s100, %d" % self.probe[2],
              "s_min_u32 s100, s100, 100000", "s_memrealtime s[0:1]", "s_waitcnt lgkmcnt(0)", "s_mov_b32 s101, s0",
              "L_probe:", "s_memrealtime s[0:1]", "s_waitcnt lgkmcnt(0)", "s_sub_u32 s0, s0, s101", "s_cmp_lt_u32 s0, s100",
              "s_cbranch_scc1 L_probe")
        a("L_fin:")
        if self.stamps and not self.probe:
            self.stamp("end")
            a("s_lshl_b32 s100, s2, 2", "s_add_u32 s100, s100, s%d" % sw, "s_lshl_b32 s100, s100, 7",
              "s_add_u32 s100, s100, 0x%x" % (STAMP_OFF - (1 if self.reuse else 2) * LS), "s_mov_b32 s%d, 0x1000000" % (sWS + 2),
              "v_writelane_b32 v4, s%d, 30" % sspin, "v_writelane_b32 v4, s%d, 31" % (sWF + 2),
              "v_lshlrev_b32 v9, 2, v0", "v_cmp_gt_u32 vcc, 32, v0", "s_and_saveexec_b64 s[98:99], vcc",
              "buffer_store_dword v4, v9, %s, s100 offen sc1" % srd(sWS))
        a("L_end:", "s_endpgm")
        a(*self.cold)
        a("L_codeend:")

    def build(self):
        self.prologue()
        self.stream()
        self.chain()
        if self.jall:
            old, self.a = self.a.l, Asm()
            on = False
            for k, i in enumerate(old):
                on = on or i.label == "L_entered"
                hit = i.op == "s_barrier" or old[k - 1].op == "s_barrier" or (i.vmem and " nt" not in i.text) or i.op.startswith("ds_write") \
                    or (i.ds and not old[k - 1].ds and not old[k - 1].mfma)
                if on and hit and i.op:
                    L = "L_ja%d" % k
                    self.a("s_cselect_b32 s92, 1, 0", "s_memtime s[0:1]", "s_waitcnt lgkmcnt(0)", "s_mul_i32 s0, s0, 0x9e3779b1",
                           "s_lshr_b32 s0, s0, %d" % (32 - self.jall[0]), "s_cmp_eq_u32 s0, 0", "s_cbranch_scc0 " + L,
                           *["s_sleep %d" % self.jall[1]] * self.jall[2], L + ":", "s_cmp_eq_u32 s92, 1")
                self.a.l.append(i)
        self.a.pad()
        if self.win:
            self.est += align(self.a, self.win, "L_entered")
        head = open("cdna_kernels/" + KNAME[:-7] + ".s.ref").read().split("; Override launch")[0]
        return (head + "; @launch grid=(256,1,1) block=(256,1,1) lds=163840\n" + ABOUT +
                '.amdgcn_target "amdgcn-amd-amdhsa--gfx950"\n.text\n.globl %s\n.p2align 8\n.type %s,@function\n%s:\n' % (KNAME, KNAME, KNAME)
                + self.a.text() +
                '.section .rodata,"a"\n.p2align 6\n.amdhsa_kernel %s\n  .amdhsa_next_free_vgpr 512\n  .amdhsa_next_free_sgpr 102\n'
                "  .amdhsa_accum_offset 256\n  .amdhsa_group_segment_fixed_size 0\n  .amdhsa_kernarg_size 96\n"
                "  .amdhsa_user_sgpr_count 2\n  .amdhsa_user_sgpr_kernarg_segment_ptr 1\n  .amdhsa_system_sgpr_workgroup_id_x 1\n"
                ".end_amdhsa_kernel\n" % KNAME)


if __name__ == "__main__":
    out = sys.argv[1]
    kw = eval("dict(%s)" % (sys.argv[2] if len(sys.argv) > 2 else ""))
    g = Gen(**kw)
    s = g.build()
    open(out, "w").write(s)
    if len(sys.argv) > 3:
        print("estimated attention cycles", g.est)
    if g.stamps:
        open(out[:-2] + ".names", "w").write("\n".join(g.stamp_names))
```
